```python
import torch

def _softmax(x, axis=-1):
    return torch.softmax(x, dim=axis)

def _gelu(x):
    return torch.nn.functional.gelu(x, approximate='tanh')

def _silu(x):
    return torch.nn.functional.silu(x)

def _sigmoid(x):
    return torch.sigmoid(x)

def _layernorm(x, axis=-1, eps=1e-05):
    m = x.mean(dim=axis, keepdim=True)
    v = x.var(dim=axis, keepdim=True, unbiased=False)
    return (x - m) / torch.sqrt(v + eps)

def _scatter_add(tgt, idx, src, axis=0):
    return tgt.clone().index_add_(axis, idx, src)

def _segment_sum(src, seg, n):
    out = torch.zeros((n,) + src.shape[1:], dtype=src.dtype)
    return out.index_add_(0, seg, src)

def _pad(x, pw):
    flat = tuple((v for pair in reversed(pw) for v in pair))
    return torch.nn.functional.pad(x, flat)
kernel_name = 'adaLN_cond__spectral_gfnet__mixer_token_mlp__prompt'

def setup_inputs():

    _w = lambda a: (lambda t: t.to(torch.bfloat16) if t.is_floating_point() else t)(torch.as_tensor(a))

    def _A_setup():
        B, S, D = (1, 2048, 576)
        Df = D // 2 + 1
        return {'x': _w((lambda *s: torch.randn(*s, dtype=torch.bfloat16) * 0.05)(B, S, D)), 'w_r': _w((lambda *s: torch.randn(*s, dtype=torch.bfloat16) * 1.6)(S, Df) * 0.02), 'w_i': _w((lambda *s: torch.randn(*s, dtype=torch.bfloat16) * 1.6)(S, Df) * 0.02)}
    _A_in = _A_setup()

    def _B_setup():
        B, S, D, F = (1, 2048, 576, 4608)
        return {'x': _w((lambda *s: torch.randn(*s, dtype=torch.bfloat16) * 0.05)(B, S, D)), 'w1': _w((lambda *s: torch.randn(*s, dtype=torch.bfloat16) * 0.8)(S, F) * S ** (-0.5)), 'b1': _w((lambda *s: torch.randn(*s, dtype=torch.bfloat16) * 12.8)(F) * 0.02), 'w2': _w((lambda *s: torch.randn(*s, dtype=torch.bfloat16) * 0.2)(F, S) * F ** (-0.5)), 'b2': _w((lambda *s: torch.randn(*s, dtype=torch.bfloat16) * 1.6)(S) * 0.02)}
    _B_in = _B_setup()
    return {'A_x': _A_in['x'], 'A_w_r': _A_in['w_r'], 'A_w_i': _A_in['w_i'], 'B_x': _B_in['x'], 'B_w1': _B_in['w1'], 'B_b1': _B_in['b1'], 'B_w2': _B_in['w2'], 'B_b2': _B_in['b2'], 'c': _w((lambda *s: torch.randn(*s, dtype=torch.bfloat16) * 0.1)(1, 576) * 8.0), 'w_mod': _w((lambda *s: torch.randn(*s, dtype=torch.bfloat16) * 0.1)(576, 6 * 576) * 576 ** (-0.5) * 8.0)}

def reference(A_x, A_w_r, A_w_i, B_x, B_w1, B_b1, B_w2, B_b2, c, w_mod):

    def _A_ref(x, w_r, w_i):
        B, S, D = x.shape
        X = (lambda x, axes=(-2, -1): torch.fft.rfft2(x.float(), dim=axes))(x, axes=(-2, -1))
        W = w_r + 1j * w_i
        X = X * W
        y = (lambda x, s, axes=(-2, -1): torch.fft.irfft2(x, s=s, dim=axes).to(torch.bfloat16))(X, (S, D), axes=(-2, -1))
        return y

    def _B_ref(x, w1, b1, w2, b2):
        B, S, D = x.shape
        h = _layernorm(x, axis=-1)
        u = torch.einsum('bsd,sf->bdf', h, w1) + b1
        u = _gelu(u)
        y = torch.einsum('bdf,fs->bds', u, w2) + b2
        return (lambda x, *d: x.permute(*d))(y, 0, 2, 1)
    x = A_x
    mod = (_silu(c) @ w_mod).reshape(c.shape[0], 6, 1, -1)
    sa, ca, ga, sb, cb, gb = (mod[:, 0].clone(), mod[:, 1].clone(), mod[:, 2].clone(), mod[:, 3].clone(), mod[:, 4].clone(), mod[:, 5].clone())
    h = _layernorm(x, axis=-1) * (1 + ca) + sa
    x = x + ga * _A_ref(h, A_w_r, A_w_i)
    h = _layernorm(x, axis=-1) * (1 + cb) + sb
    x = x + gb * _B_ref(h, B_w1, B_b1, B_w2, B_b2)
    return x
```

```python
import re

REG_RE = re.compile(r'(?<![\w.])([vas])(\d+|\[(\d+):(\d+)\])(?![\w])')
TRANS = ('v_exp_f32', 'v_log_f32', 'v_rcp_f32', 'v_rsq_f32', 'v_sqrt_f32', 'v_sin_f32', 'v_cos_f32')
NO_DST_S = ('s_cmp', 's_cbranch', 's_waitcnt', 's_barrier', 's_nop', 's_sleep', 's_setprio', 's_endpgm',
            's_branch', 's_bitcmp', 's_setpc', 's_setreg')


def regs_of(op):
    out = set()
    for m in REG_RE.finditer(op):
        if m.group(3) is not None:
            for i in range(int(m.group(3)), int(m.group(4)) + 1):
                out.add(m.group(1) + str(i))
        else:
            out.add(m.group(1) + m.group(2))
    for n in ('vcc', 'exec', 'm0'):
        if re.search(r'(?<![\w])' + n + r'(_lo|_hi)?(?![\w])', op):
            out.add(n)
    return out


def split_ops(s):
    ops, depth, cur = [], 0, ''
    for ch in s:
        if ch in '[(':
            depth += 1
        if ch in '])':
            depth -= 1
        if ch == ',' and depth == 0:
            ops.append(cur.strip())
            cur = ''
        else:
            cur += ch
    if cur.strip():
        ops.append(cur.strip())
    return ops


class Ins:
    def __init__(self, text):
        self.text = text
        t = text.split(';')[0].strip()
        p = t.split(None, 1)
        self.mn = mn = p[0]
        rest = p[1] if len(p) > 1 else ''
        ops = split_ops(rest)
        mods = ''
        if ops:
            q = ops[-1].split(None, 1)
            ops[-1] = q[0]
            mods = q[1] if len(q) > 1 else ''
        self.ops, self.mods = ops, mods
        R = [regs_of(o) for o in ops]
        allr = set().union(*R) if R else set()
        self.defs, self.uses = set(), set()
        self.kind = 'other'
        self.passes = 0
        self.srcC = set()
        self.srcAB = set()
        self.store_data = set()
        if mn.startswith('v_mfma'):
            self.kind = 'mfma'
            self.passes = 8 if '32x32' in mn else 4
            assert 'bf16' in mn, mn
            self.defs = R[0]
            self.srcAB = R[1] | R[2]
            self.srcC = R[3]
            self.uses = self.srcAB | self.srcC
        elif mn.startswith('v_'):
            self.kind = 'valu'
            if mn == 'v_nop':
                pass
            elif 'swap' in mn:
                self.defs = set(allr)
                self.uses = set(allr)
            else:
                self.defs = set(R[0])
                rs = 1
                if '_co_' in mn or mn.startswith('v_mad_u64') or mn.startswith('v_div_scale'):
                    self.defs |= R[1]
                    rs = 2
                self.uses = set().union(*R[rs:]) if len(R) > rs else set()
                if 'fmac' in mn or 'dot2c' in mn or 'writelane' in mn or '_dpp' in mn or '_sdwa' in mn:
                    self.uses |= R[0]
                if mn.startswith('v_cmpx'):
                    self.defs.add('exec')
        elif mn.startswith('ds_'):
            self.kind = 'ds'
            if mn.startswith(('ds_read', 'ds_bpermute', 'ds_permute', 'ds_swizzle')) or '_rtn' in mn:
                self.defs = R[0]
                self.uses = set().union(*R[1:])
            else:
                self.uses = allr
        elif mn.startswith(('buffer_', 'global_')):
            self.kind = 'vmem'
            words = mods.split()
            if mn in ('buffer_wbl2', 'buffer_inv'):
                pass
            elif 'lds' in words or '_lds_' in mn:
                self.uses = allr | {'m0'}
            elif '_load' in mn:
                self.defs = R[0]
                self.uses = set().union(*R[1:])
            elif '_atomic' in mn:
                self.uses = allr
                if 'sc0' in words:
                    self.defs = R[0]
            else:
                self.uses = allr
                if mn.endswith(('x3', 'x4')):
                    self.store_data = R[0] if mn.startswith('buffer_') else R[1]
        elif mn.startswith(('s_load', 's_buffer_load', 's_memtime', 's_memrealtime')):
            self.kind = 'smem'
            self.defs = R[0]
            self.uses = set().union(*R[1:]) if len(R) > 1 else set()
        elif mn.startswith('s_'):
            self.kind = 'salu'
            if mn.startswith(NO_DST_S):
                self.uses = allr
                if 'vcc' in mn:
                    self.uses.add('vcc')
                if 'exec' in mn:
                    self.uses.add('exec')
            else:
                self.defs = set(R[0])
                self.uses = set().union(*R[1:]) if len(R) > 1 else set()
                if 'saveexec' in mn:
                    self.defs.add('exec')
                    self.uses.add('exec')
                if mn.startswith(('s_addk', 's_mulk', 's_cmov')):
                    self.uses |= R[0]
        else:
            raise ValueError(text)
        self.states = (int(ops[0], 0) + 1) if mn == 's_nop' else 1
        base = mn.replace('_e32', '').replace('_e64', '')
        self.trans = base in TRANS
        self.slow = self.kind == 'valu' and (self.trans or mn.startswith(('v_pk_', 'v_swap', 'v_mul_lo', 'v_mul_hi')) or 'b64' in mn)
        self.dpp = '_dpp' in mn
        self.permlane = mn.startswith('v_permlane')
        self.readlane = mn.startswith(('v_readlane', 'v_readfirstlane'))
        self.opsel_dst = ('_sdwa' in mn and 'dst_sel:DWORD' not in mods)


def vec(rs):
    return {r for r in rs if r[0] in 'va' and r not in ('vcc',)}


def sca(rs):
    return {r for r in rs if r[0] == 's' or r == 'vcc'}


def need(p, c):
    n = 0
    if p.kind == 'valu':
        vd = vec(p.defs)
        sd = sca(p.defs)
        if c.kind == 'mfma' and vd & c.uses:
            n = max(n, 2)
        if c.kind == 'mfma' and p.slow:
            n = max(n, 1)
        if c.kind == 'valu':
            if (c.dpp or c.permlane) and vd & c.uses:
                n = max(n, 2)
            if c.readlane and vd & c.uses:
                n = max(n, 1)
            if p.trans and vd & (c.uses | c.defs):
                n = max(n, 1)
            if p.opsel_dst and vd & (c.uses | c.defs):
                n = max(n, 1)
            if sd & c.uses:
                n = max(n, 4 if (c.readlane or 'writelane' in c.mn or 'div_fmas' in c.mn) else 2)
            if 'exec' in p.defs:
                n = max(n, 5)
        if p.trans and c.kind in ('ds', 'vmem') and vd & c.uses:
            n = max(n, 1)
        if c.kind == 'vmem' and sd & c.uses:
            n = max(n, 5)
        if c.kind == 'salu' and sd & c.uses:
            n = max(n, 1)
        if c.kind == 'smem' and sd & c.uses:
            n = max(n, 5)
        if c.kind == 'mfma' and 'exec' in p.defs:
            n = max(n, 4)
    if p.kind == 'mfma':
        big = {4: 8, 8: 12}[p.passes]
        if c.kind == 'mfma':
            if p.defs & c.srcAB:
                n = max(n, big)
            if p.defs & c.srcC and not (p.defs == c.srcC and p.passes == c.passes):
                n = max(n, big - 2)
            if p.defs & c.defs and not (p.defs & c.srcC):
                n = max(n, big - 2)
        elif c.kind in ('valu', 'ds', 'vmem'):
            if p.defs & (c.uses | c.defs):
                n = max(n, big)
            if p.srcC & c.defs:
                n = max(n, p.passes - 1)
    if p.kind == 'salu' and 'm0' in p.defs and 'm0' in c.uses and c.kind in ('vmem', 'ds'):
        n = max(n, 1)
    if p.store_data and (p.store_data & c.defs):
        n = max(n, 2)
    return n


class K:
    def __init__(self, name):
        self.name = name
        self.out = []
        self.hist = []
        self.vm = []
        self.lg = []
        self.cond = 0
        self.nlab = 0
        self.maxreg = {'v': -1, 'a': -1, 's': -1}
        self.stats = {}
        self.drop = None

    def raw(self, s):
        self.out.append(s)

    def c(self, s):
        self.out.append('    ; ' + s)

    def _push(self, ins):
        self.out.append('    ' + ins.text)
        self.hist.append(ins)
        if len(self.hist) > 24:
            self.hist.pop(0)
        self.stats[ins.kind] = self.stats.get(ins.kind, 0) + 1

    def _apply_wait(self, vm, lg):
        if vm is not None:
            keep, cnt = [], 0
            for o in reversed(self.vm):
                if cnt >= vm:
                    break
                keep.append(o)
                if o[1]:
                    cnt += 1
            self.vm = keep[::-1]
        if lg is not None:
            if lg == 0:
                self.lg = []
            elif not any(o[2] for o in self.lg):
                keep, cnt = [], 0
                for o in reversed(self.lg):
                    if cnt >= lg:
                        break
                    keep.append(o)
                    if o[1]:
                        cnt += 1
                self.lg = keep[::-1]

    def wait(self, vm=None, lg=None):
        parts = []
        if vm is not None:
            vm = min(vm, 62)
            parts.append(f'vmcnt({vm})')
        if lg is not None:
            lg = min(lg, 14)
            parts.append(f'lgkmcnt({lg})')
        self._push(Ins('s_waitcnt ' + ' '.join(parts)))
        self._apply_wait(vm, lg)

    def __call__(self, text):
        for line in text.strip().split('\n'):
            line = line.strip()
            if not line:
                continue
            if line.startswith(';'):
                self.raw('    ' + line)
                continue
            if line.endswith(':'):
                self.raw(line)
                continue
            self.ins(line)

    def ins(self, text):
        if self.drop and self.drop(text):
            return
        i = Ins(text)
        if i.mn == 's_waitcnt':
            vm = re.search(r'vmcnt\((\d+)\)', text)
            lg = re.search(r'lgkmcnt\((\d+)\)', text)
            self.wait(int(vm.group(1)) if vm else None, int(lg.group(1)) if lg else None)
            return
        for r in i.defs | i.uses:
            if r[0] in 'vas' and r[1:].isdigit():
                self.maxreg[r[0]] = max(self.maxreg[r[0]], int(r[1:]))
        touch = i.defs | i.uses
        vm = lg = None
        cnt = 0
        for o in reversed(self.vm):
            if o[0] & touch:
                vm = cnt
                break
            if o[1]:
                cnt += 1
        cnt = 0
        for o in reversed(self.lg):
            if o[0] & touch:
                lg = 0 if any(x[2] for x in self.lg) else cnt
                break
            if o[1]:
                cnt += 1
        if vm is not None or lg is not None:
            self.wait(vm, lg)
        dist, pad = 0, 0
        mf_between = False
        for p in reversed(self.hist):
            pad = max(pad, need(p, i) - dist)
            if mf_between and p.slow and vec(p.defs) & (i.uses | i.defs):
                pad = max(pad, 2 - dist)
            mf_between |= p.kind == 'mfma'
            dist += p.states
            if dist > 20:
                break
        if pad > 0:
            self._push(Ins(f's_nop {pad - 1}'))
        self._push(i)
        sure = self.cond == 0
        if i.kind == 'vmem':
            self.vm.append((set(i.defs), sure))
        elif i.kind == 'ds':
            self.lg.append((set(i.defs), sure, False))
        elif i.kind == 'smem':
            self.lg.append((set(i.defs), sure, True))

    def cover(self, texts):
        touch = set()
        for t in texts:
            i = Ins(t)
            touch |= i.defs | i.uses
        cnt = 0
        for o in reversed(self.lg):
            if o[0] & touch:
                self.wait(lg=0 if any(x[2] for x in self.lg) else cnt)
                return
            if o[1]:
                cnt += 1

    def lab(self, base='L'):
        self.nlab += 1
        return f'{base}_{self.name}_{self.nlab}'

    def label(self, name):
        self.raw(name + ':')

    def fresh(self):
        self.vm, self.lg, self.hist = [], [], []

    def pending_regs(self):
        s = set()
        for o in self.vm + self.lg:
            s |= o[0]
        return s

    def text(self):
        return '\n'.join(self.out) + '\n'


def vr(b, n=1, t='v'):
    return f'{t}{b}' if n == 1 else f'{t}[{b}:{b + n - 1}]'


def ar(b, n=1):
    return vr(b, n, 'a')


def sr(b, n=1):
    return vr(b, n, 's')


class Alloc:
    def __init__(self, start, limit):
        self.p, self.limit = start, limit

    def __call__(self, n=1, align=None):
        align = align or (2 if n >= 2 else 1)
        self.p = (self.p + align - 1) // align * align
        r = self.p
        self.p += n
        assert self.p <= self.limit, 'out of registers'
        return r


def descriptor(name, vgpr, agpr, sgpr):
    acc = max(4, (vgpr + 3) // 4 * 4)
    tot = acc + agpr if agpr else vgpr
    return f""".p2align 6
.amdhsa_kernel {name}
  .amdhsa_next_free_vgpr {tot}
  .amdhsa_next_free_sgpr {sgpr}
  .amdhsa_accum_offset {acc}
  .amdhsa_group_segment_fixed_size 0
  .amdhsa_kernarg_size 104
  .amdhsa_user_sgpr_count 2
  .amdhsa_user_sgpr_kernarg_segment_ptr 1
  .amdhsa_system_sgpr_workgroup_id_x 1
.end_amdhsa_kernel
"""


def sizes_of(lines):
    import subprocess, tempfile, os
    d = tempfile.mkdtemp()
    open(d + '/t.s', 'w').write('.amdgcn_target "amdgcn-amd-amdhsa--gfx950"\n.text\n' + '\n'.join(lines) + '\n')
    subprocess.run(['clang', '-x', 'assembler', '-target', 'amdgcn-amd-amdhsa', '-mcpu=gfx950', '-c', d + '/t.s', '-o', d + '/t.o'], check=True)
    o = subprocess.run(['llvm-objdump', '-d', '--mcpu=gfx950', d + '/t.o'], capture_output=True, text=True).stdout
    sz = [4 * len(l.split('//')[1].split(':')[1].split('<')[0].split()) for l in o.split('\n') if '//' in l]
    out, it = [], iter(sz)
    for l in lines:
        t = l.split(';')[0].strip()
        out.append(0 if (not t or t.endswith(':')) else next(it))
    assert next(it, None) is None
    return out


def page_touch(lines):
    sz = sizes_of(lines)
    out, chains, off, region, n = [], {}, None, None, 0

    def stub(pad):
        nonlocal n
        n += 1
        out.append(f'    s_branch L_skip_{n}')
        out.extend(['    s_nop 0'] * pad)
        chains.setdefault(region, []).append(n)
        out.append(f'L_stub_{n}:')
        out.append(f'@STUB {n}')
        out.append(f'L_skip_{n}:')
    for l, b in zip(lines, sz):
        t = l.strip()
        if t == '; @align':
            if out[-1].endswith(':') and out[-2].split()[0] == 's_branch':
                out[-1:] = ['.p2align 12', out[-1]]
            else:
                out += ['    s_branch L_aligned', '.p2align 12', 'L_aligned:']
            off = 0
            continue
        if t.startswith('; @region'):
            region = t.split()[2]
            region = None if region == '-' else region
            continue
        if t.startswith('; @touch'):
            b = 4
        if t == '; @target':
            if off is not None and region and off % 4096 < 4096 - 64:
                pad = 1 if (off + 8) % 64 == 0 else 0
                stub(pad)
                off += 8 + 4 * pad
            continue
        if off is not None and b:
            left = -off % 4096
            if region and left and left < b + 4:
                stub(left // 4 - 1)
                off += left + 4
            off += b
        out.append(l)
    nxt = {}
    for r, c in chains.items():
        for a, b in zip(c, c[1:] + [None]):
            nxt[a] = f'L_stub_{b}' if b else f'L_back_{r}'
    res, seen = [], set()
    for l in out:
        if l.startswith('@STUB'):
            res.append(f'    s_branch {nxt[int(l.split()[1])]}')
        elif l.strip().startswith('; @touch'):
            r = l.split()[2]
            seen.add(r)
            res += [f'    s_branch L_stub_{chains[r][0]}' if r in chains else '    s_nop 0', f'L_back_{r}:']
        else:
            res.append(l)
    assert set(chains) <= seen, (chains, seen)
    return res, {r: len(c) for r, c in chains.items()}
```

```python
import struct, sys
from asm import *

NAME = 'adaLN_cond__spectral_gfnet__mixer_token_mlp__prompt'
S, D, F = 2048, 576, 4608
MB = 1 << 20
WS_MOD, WS_EPOCH, WS_MODG, WS_MODB, WS_FLAG, WS_CUE = 0, 0x8000, 0xE80000, 0x30000, 0x40000, 0x80000
WS_WP, WS_T1, WS_T2, WS_X1, WS_H2, WS_U, WS_XCH = 1 * MB, 4 * MB, 8 * MB, 12 * MB, 16 * MB, 20 * MB, 26 * MB
WS_SIZE = 48 * MB
WS_XCUE = 36 * MB
WS_XRDY = 37 * MB
XW, XM, XB = 2304, 9216, 27648
WS_FL2 = 15 * MB
OOB = 0x7ff00000
MF = 'v_mfma_f32_16x16x32_bf16'
sW, sJ, sR, sS2, sBUD = 3, 4, 5, 6, 7
pX, pWR, pWI, pW1, pB1, pW2, pB2, pC, pWM, pOUT, pWS = 8, 10, 12, 16, 18, 20, 22, 24, 26, 28, 32
sWAVE = 34
WS = 's[36:39]'
vTAG = 3
L_SLAB, L_WST, L_MG, L_TR, L_SILU = 0, 36864, 61440, 77824, 90112
L_X = 100352
L_ST = L_X + 9472
L_M = L_ST + 128
L_E = L_M + 16384
L_MI = 147456
L_ACT = 98304
L_Z, L_MOD, L_Y, L_H = 98304, 108544, 116736, 135808
XROW, YROW = 1184, 2320
L_ACT2, AST2, NSA2, NSW2, NST2 = 90112, 18432, 4, 5, 18
L_X1, L_GB, L_S = 2 * 16384, 81920, 3 * 16384
NSW = 6
OPT = dict(xc=0, xlead=2, xclr=[4, 8], xrdy=[13, 17], pf9=0, rot1=0, xcue=0, xsl=2, wx=0, hx=1, hsl=0, hsl2=1, stamp=0, codepf=1, poll_sleep=1, outflag='', xst=4, xst2=0, a1pre=2, a2pre=3,
           asap=0, jit=2, xk=0, pfm=0, lz=1, ec2=0, single=0, pa=12, lead=0, fa1='sc1', fa2='sc1', fw1='', fw2='', a0=0, twi=0, ufirst=1, defer=4, wla2=2, sp1=0, sp2=2, spw=0, sl3=2, cl3=0, cl4=1, xo=26, touch=1, mw=1, wla=3, rs1=[6, 10, 14, 18, 22, 26], rs2=[4, 6, 8, 10, 11, 12], rf=0, f21=48, f22=32, pw1=[16, 16],
           pf1=0, pf2=96, pf3=2, pf4=2, pf4at=[0, 14, 0], pf8=2, pf8at=[0, 8, 0], a2la=27, pf5=288, pf6=0, pf7=0, x1=0, cue_at=2, wat=2, prew=1, m1early=2, tlb=0, dly=0, hp=1, up=2, f64=1, mb=2, fs=4, mask=1, warm=1, c2=1, wfl=1, wearly=1, pfd=0, xdef=2, rf2=8, ne=4, neq=[10, 22, 32], xm=7, nl=10, tw1=1, tw3=1, sl2=1, na=1, nm=1)


def f32(x):
    return '0x%08x' % struct.unpack('<I', struct.pack('<f', x))[0]


def P(r):
    return f'v[{r}:{r+1}]'


def Q(r):
    return f'v[{r}:{r+3}]'


def srd(k, dst, ptr, size):
    k(f's_mov_b32 s{dst}, s{ptr}\ns_mov_b32 s{dst+1}, s{ptr+1}\ns_mov_b32 s{dst+2}, {size}\ns_mov_b32 s{dst+3}, 0x20000')


def mark(k, i):
    if OPT['stamp']:
        k.raw(f'    s_memrealtime s[{70+2*i}:{71+2*i}]')


def tag(k, what):
    if OPT['touch']:
        k.raw('    ; @' + what)


def xmark(k, grp, i):
    if OPT.get('mk') == grp:
        mark(k, i)
    if OPT.get('mk') == grp + 'c':
        k.raw(f'    s_memtime s[{70+2*i}:{71+2*i}]')


def bar(k, vm=None, lg=None):
    if vm is not None or lg is not None:
        k.wait(vm, lg)
    k('s_barrier')


def cs_pair(k, ang, tc, ts, dsts):
    k(f'v_cos_f32 v{tc}, v{ang}\nv_sin_f32 v{ts}, v{ang}')
    m = {'c': f'v{tc}', 's': f'v{ts}', '-c': f'-v{tc}', '-s': f'-v{ts}'}
    for d, lo, hi in dsts:
        k(f'v_cvt_pk_bf16_f32 v{d}, {m[lo]}, {m[hi]}')


def dft_frag(k, base, step, re, im, tmp, inverse):
    for j in range(4):
        a, tc, ts = tmp + 3 * (j & 1), tmp + 3 * (j & 1) + 1, tmp + 3 * (j & 1) + 2
        if j == 0:
            a = base
        elif j == 3:
            k(f'v_add_f32 v{a}, v{tmp}, v{step}')
        else:
            k(f'v_fma_f32 v{a}, v{step}, {float(j)}, v{base}')
        if inverse:
            cs_pair(k, a, tc, ts, [(re + j, 'c', '-s'), (im + j, 's', 'c')])
        else:
            cs_pair(k, a, tc, ts, [(re + j, 'c', 's'), (im + j, '-s', 'c')])


def red32(k, regs, t):
    for mod in ('quad_perm:[1,0,3,2]', 'quad_perm:[2,3,0,1]', 'row_half_mirror', 'row_mirror'):
        for r in regs:
            k(f'v_add_f32_dpp v{r}, v{r}, v{r} {mod} row_mask:0xf bank_mask:0xf')
    for i, r in enumerate(regs):
        k(f'v_mov_b32 v{t+i}, v{r}')
    for i, r in enumerate(regs):
        k(f'v_permlane16_swap_b32 v{r}, v{t+i}')
    for i, r in enumerate(regs):
        k(f'v_add_f32 v{r}, v{r}, v{t+i}')


def poll(k, loads, check, sleep=None, masked=False, alt=None):
    L, E = k.lab('Lp'), k.lab('Le')
    sleep = OPT['poll_sleep'] if sleep is None else sleep
    if alt and alt[2] > 1:
        k(f's_mov_b32 s14, {alt[2] - 1}')
    k.label(L)
    for l in loads:
        k(l)
    k.wait(0)
    check()
    k(f's_cbranch_vccz {E}')
    k(f's_sub_u32 s{sBUD}, s{sBUD}, 1\ns_cbranch_scc1 {E}')
    if alt and alt[2] > 1:
        k(f's_cmp_gt_i32 s14, 0\ns_cselect_b32 s15, {alt[1]}, 0\ns_sub_u32 s14, s14, 1')
        for r in alt[0]:
            k(f's_add_u32 s{r}, s{r}, s15')
    masked = masked and OPT['mask']
    if masked:
        k('s_mov_b64 exec, vcc')
    if sleep:
        k(f's_sleep {sleep}')
    k(f's_branch {L}')
    k.label(E)
    if masked:
        k('s_mov_b64 exec, -1')
    k(f's_max_i32 s{sBUD}, s{sBUD}, 0')


def check_tags(k, regs):
    def f():
        k(f'v_cmp_ne_u32 vcc, v{vTAG}, v{regs[0]}')
        for r in regs[1:]:
            k(f'v_cmp_ne_u32 s[48:49], v{vTAG}, v{r}\ns_or_b64 vcc, vcc, s[48:49]')
    return f


def publish(k, sync, sidx, t, ncue=0, cue_add=0):
    k(f'''s_lshl_b32 s48, s{sidx}, {OPT['fs']}
    s_lshl_b32 s49, s{sW}, 16
    s_add_u32 s48, s48, s49
    s_add_u32 s48, s48, {WS_FL2 + sync*0x40000}
    v_mov_b32 v{t}, {OOB}''')
    for a in range(OPT['na']):
        k(f'v_writelane_b32 v{t}, s48, {a}\ns_add_u32 s48, s48, 16384')
    if ncue:
        k(f'''s_add_u32 s48, s2, {8*cue_add}
        s_lshl_b32 s48, s48, 7
        s_add_u32 s48, s48, {WS_CUE + sync*0x8000}
        s_lshl_b32 s49, s{sW}, 8
        s_add_u32 s49, s49, s{sR}
        s_cmp_lt_u32 s49, {ncue}
        s_cselect_b32 s48, s48, {OOB}
        v_writelane_b32 v{t}, s48, 8''')


def do_publish(k, t):
    k(f'buffer_store_dword v{vTAG}, v{t}, {WS}, 0 offen sc1')
    k.wait(0)


def wait_cue(k, sync, t, sleep=4):
    k(f's_lshl_b32 s50, s2, 7\ns_add_u32 s50, s50, {WS_CUE + sync*0x8000}\nv_mov_b32 v{t}, 0')
    poll(k, [f'buffer_load_dword v{t+1}, v{t}, {WS}, s50 offen sc1'], check_tags(k, [t + 1]), sleep=sleep)


def h3_idx(k, d):
    k(f'''s_bfe_u32 s{d}, s{sS2}, 0x10002
    s_lshl_b32 s{d}, s{d}, 7
    s_lshr_b32 s{d+1}, s{sS2}, 3
    s_lshl_b32 s{d+1}, s{d+1}, 2
    s_add_u32 s{d}, s{d}, s{d+1}
    s_and_b32 s{d+1}, s{sS2}, 3
    s_add_u32 s{d}, s{d}, s{d+1}''')


def g1_tile(k):
    k(f'''s_mul_i32 s52, s{sJ}, 27
    s_add_u32 s52, s52, s{sR}
    s_mul_i32 s51, s52, 171
    s_lshr_b32 s51, s51, 10
    s_mul_i32 s48, s51, 6
    s_sub_u32 s52, s52, s48''')


def g2_tile(k):
    k(f'''s_lshr_b32 s53, s{sJ}, 1
    s_and_b32 s54, s{sJ}, 1
    s_lshl_b32 s54, s54, 3
    s_lshr_b32 s48, s{sR}, 2
    s_add_u32 s54, s54, s48
    s_and_b32 s55, s{sR}, 3''')


def ring_adv(k, s, step, lo, hi):
    k(f's_add_u32 s{s}, s{s}, {step}\ns_cmp_eq_u32 s{s}, {hi}\ns_cselect_b32 s{s}, {lo}, s{s}')


def preload_w(vW0, vW, pairs):
    r = []
    for half in range(2):
        mine = [(sl, f0) for sl, f0 in pairs if sl // 3 == half]
        if mine:
            r += [f'v_add_u32 v{vW+nt}, {49152*half}, v{vW0+nt}' for nt in range(2)]
        for sl, f0 in mine:
            for st in range(2):
                for nt in range(2):
                    f = f0 + 8 * st + 4 * nt
                    o = (sl % 3) * 16384 + st * 8192
                    r += [f'ds_read_b64_tr_b16 {P(f)}, v{vW+nt} offset:{o}', f'ds_read_b64_tr_b16 {P(f+2)}, v{vW+nt} offset:{o+4096}']
    return r


def reg_stages(g):
    return OPT['rs1'] if g == 0 else OPT['rs2']


def kappa(n, NST):
    rs = reg_stages(0 if NST == 32 else 1)
    return rs.index(n) if n in rs else len(rs) + n - sum(x < n for x in rs)


def leaders(g):
    if not OPT['lead'] & (1 << g):
        return 0, (27, 32)[g]
    l = [6 * (c & 3) + c for c in range(6)] if g == 0 else [4 * d + (d & 3) for d in range(8)]
    return sum(1 << x for x in l), (27, 32)[g] - len(l)


def spec_range(g):
    if g == 0:
        c = {(kappa(n, 32) + OPT['xst'] * (j & OPT['xm']) + OPT['xo']) % 32 for n in range(5) for j in range(8)}
    else:
        c = {kappa(n, NST2) for n in range(NSA2)}
    return min(c), max(c) - min(c) + 1


def clear_loop(k, sidx, stride, total, addr, ones, la):
    for x in range((total + stride - 1) // stride):
        L = k.lab()
        k(f's_add_u32 s48, s{sidx}, {x*stride}\ns_cmp_ge_u32 s48, {total}\ns_cbranch_scc1 {L}')
        addr()
        k.cond += 1
        k(f'buffer_store_dwordx4 {Q(ones)}, v{la}, {WS}, s48 offen sc1')
        k.cond -= 1
        k.label(L)


def gemm_c(k, MT, NST, NSA, ASTAGE, vA, vA4, vW0, vW, fa, fw, acc, rg, rs, w_is_A, at_end=None, last_order=None, defer=0, send=None, single=False, slot0=0):
    NT = 2
    for nt in range(NT):
        k(f'v_add_u32 v{vW+nt}, 49152, v{vW0+nt}')

    def reads(n, st, wslot):
        w, a = [None] * 4, []
        if wslot is not None:
            for nt in range(NT):
                f = fw + 4 * (st * NT + nt)
                r, o = (vW0 if wslot < 3 else vW) + nt, (wslot % 3) * 16384 + st * 8192
                w[2 * nt] = f'ds_read_b64_tr_b16 {P(f)}, v{r} offset:{o}'
                w[2 * nt + 1] = f'ds_read_b64_tr_b16 {P(f+2)}, v{r} offset:{o+4096}'
        o = (n % NSA) * ASTAGE + st * ASTAGE // 2
        for mt in range(MT):
            f = fa + 4 * ((0 if single else st) * MT + mt)
            if vA4 is not None and mt == MT - 1:
                a.append(f'ds_read_b128 {Q(f)}, v{vA4} offset:{o}')
            else:
                a.append(f'ds_read_b128 {Q(f)}, v{vA} offset:{o+256*mt}')
        if single:
            return [x for mt in range(MT) for x in (w[mt] if mt < 4 else None, a[mt])]
        return [w[0], a[0], w[1], a[1], w[2], a[2], w[3]] + a[3:]

    def mfmas(p, wb):
        r = []
        order = [(0, 0), (1, 0), (2, 0), (0, 1), (1, 1), (2, 1)] + [(mt, nt) for mt in range(3, MT) for nt in range(NT)]
        if single:
            order = [(mt, nt) for mt in range(MT) for nt in range(NT)]
        for mt, nt in order:
            a = acc + 4 * (mt * NT + nt)
            x, y = fa + 4 * ((0 if single else p) * MT + mt), wb + 4 * (p * NT + nt)
            if w_is_A:
                x, y = y, x
            r.append(f'{MF} {Q(a)}, {Q(x)}, {Q(y)}, {Q(a)}')
        return r
    def step(mm, rd, barrier, merged=True):
        if OPT.get('noread'):
            rd = []
        if OPT.get('nomfma'):
            mm = ['s_nop 0'] * len(mm)
        if not mm and barrier:
            k('s_barrier')
        per = 1 if len(mm) >= len(rd) else 2
        rd = list(rd) if per == 1 else [x for x in rd if x]
        done = 0
        for i, mi in enumerate(mm):
            if merged and OPT['mw'] and i == 6:
                k.wait(lg=done)
            k(mi)
            if barrier and i == 0:
                k('s_barrier')
            for x in rd[:per]:
                if x:
                    k(x)
                    done += 1
            rd = rd[per:]
        for x in rd:
            if x:
                k(x)
    isnt = lambda mi, nt: ((int(mi.split('[')[1].split(':')[0]) - acc) // 4) % 2 == nt
    prev, m = None, 0
    D0 = 2 * (NST - defer)
    assert all(n < NST - defer - 1 for n in rs)
    for n in range(NST):
        cur, wslot = (rg[rs.index(n)], None) if n in rs else (fw, (m + slot0) % NSW)
        m += n not in rs
        for st in range(2):
            rd = reads(n, st, wslot)
            mm = [] if prev is None and st == 0 else mfmas(st ^ 1, prev if st == 0 else cur)
            q = 2 * n + st
            if q >= D0:
                f, g = fw + 8 * st, rg[0] + 4 * (q - D0)
                rd[0], rd[2] = rd[0].replace(P(f), P(g)), rd[2].replace(P(f + 2), P(g + 2))
                rd = [rd[4], rd[6], rd[1], rd[3], rd[5]] + rd[7:] + [rd[0], rd[2]]
            if q > D0:
                step([x for x in mm if isnt(x, 1)], rd, st == 0, False)
                continue
            if mm and (OPT['mw'] and (n, st) != (0, 1) or (st == 0 and prev == fw)):
                k.wait(lg=MT - 3)
            step(mm, rd, st == 0, not single or OPT['mw'] == 2)
        prev = cur
    if not defer:
        k.wait(lg=0)
        if at_end:
            at_end()
        mm = mfmas(1, prev)
        if last_order:
            mm.sort(key=last_order)
        for mi in mm:
            k(mi)
        return
    acts = lambda q: [x for x in reads(q // 2, q % 2, None) if x]
    mm = [x for x in mfmas(1, prev) if isnt(x, 1)]
    mm.sort(key=last_order)
    last = 2 * NST - 1
    step(mm, acts(D0), False, False)
    step([x for x in mfmas(1, rg[0] + 4 * (last - D0) - 8) if isnt(x, 0)], [], False, False)
    send()
    for q in range(D0, last):
        step([x for x in mfmas(q % 2, rg[0] + 4 * (q - D0) - 8 * (q % 2)) if isnt(x, 0)], acts(q + 1) if q + 1 < last else [], False, False)
    at_end()


def gemm2_c(k, vAo, vAx, vA4, vW0, vW, fa, fw, accf, rg, rs, D, send_bc, send_a, at_end, fill={}, drain=None):
    MT, NST = 9, NST2
    last = 2 * NST - 1
    D0 = 2 * (NST - D)
    park = rg[0]
    assert all(n < NST - D - 1 for n in rs) and 1 <= D <= NSA2 and 8 * D <= 32
    for nt in range(2):
        k(f'v_add_u32 v{vW+nt}, 49152, v{vW0+nt}')

    def aread(q, mt):
        v, o = (vAo, 256 * mt) if mt < 4 else ((vA4, 0) if mt == 4 else (vAx, 256 * (mt - 5)))
        return f'ds_read_b128 {Q(fa+4*mt)}, v{v} offset:{((q >> 1) % NSA2)*AST2 + (q & 1)*9216 + o}'

    def wreg(q, nt):
        n, st = q >> 1, q & 1
        if n in rs:
            return rg[rs.index(n)] + 8 * st + 4 * nt
        if q >= D0 and nt == 0:
            return park + 4 * (q - D0)
        return fw + 8 * st + 4 * nt
    ring = [n for n in range(NST) if n not in rs]

    def wreads(q):
        n, st = q >> 1, q & 1
        if n in rs:
            return []
        sl = ring.index(n) % NSW2
        r = []
        for nt in (1, 0):
            f, v, o = wreg(q, nt), (vW0 if sl < 3 else vW) + nt, (sl % 3) * 16384 + st * 8192
            r += [f'ds_read_b64_tr_b16 {P(f)}, v{v} offset:{o}', f'ds_read_b64_tr_b16 {P(f+2)}, v{v} offset:{o+4096}']
        return r

    def mf(q, mt, nt):
        a = accf(mt, nt)
        return f'{MF} {Q(a)}, {Q(fa+4*mt)}, {Q(wreg(q, nt))}, {Q(a)}'

    def emit(mm, after, group=6, barrier=False, extra=None):
        if OPT.get('noread'):
            after = [[x for x in a if not x.startswith('ds_')] for a in after]
        if barrier and not mm:
            k('s_barrier')
        for i, m in enumerate(mm):
            if i % group == 0:
                k.cover(mm[i:i + group])
            k('s_nop 0' if OPT.get('nomfma') else m)
            if barrier and i == 0:
                k('s_barrier')
            for x in after[i]:
                k(x)
            if extra:
                for x in extra[:2]:
                    k(x)
                del extra[:2]
        for a in after[len(mm):]:
            for x in a:
                k(x)
    for q in range(last + 1):
        w = wreads(q)
        p = q - 1
        if p < 0:
            emit([], [w + [aread(q, mt) for mt in range(MT)]], barrier=True)
        elif p < D0:
            mm = [mf(p, mt, nt) for mt in range(MT) for nt in (1, 0)]
            after = [[] for _ in mm]
            for i, x in enumerate(w):
                after[2 * i].append(x)
            for mt in range(MT):
                after[2 * mt + 1].append(aread(q, mt))
            after[10] += fill.get(q, [])
            if q == drain:
                k.wait(0)
            emit(mm, after, barrier=not q & 1)
        else:
            mm = [mf(p, mt, 1) for mt in range(MT)]
            after = [[aread(q, mt)] for mt in range(MT)]
            for i, x in enumerate(w):
                after[(0, 1, 5, 6)[i]].append(x)
            emit(mm, after, group=3, barrier=not q & 1)
    emit([mf(last, mt, 1) for mt in range(MT)], [[] for _ in range(MT)], group=3)
    hi, lo = [4, 5, 6, 7, 8], [0, 1, 2, 3]
    emit([mf(last, mt, 0) for mt in hi + lo], [[aread(D0, mt)] for mt in hi + lo], group=9)
    x = send_bc()
    for q in range(D0, last):
        emit([mf(q, mt, 0) for mt in hi], [[aread(q + 1, mt)] if q + 1 < last else [] for mt in hi], group=5, extra=x)
    for y in x:
        k(y)
    x = None
    for q in range(D0, last):
        emit([mf(q, mt, 0) for mt in lo], [[aread(q + 1, mt)] if q + 1 < last else [] for mt in lo], group=4, extra=x)
        if x is None:
            x = send_a()
    for y in x:
        k(y)
    at_end()


def warm_xch(k, t, dst, store=False):
    k(f'''s_mul_i32 s48, s{sW}, 3072
    s_mul_i32 s49, s2, 36864
    s_add_u32 s48, s48, s49
    s_add_u32 s48, s48, {WS_XCH}''')
    for i in range(2):
        k(f'''v_add_u32 v{t}, {64*i}, v0
        v_min_u32 v{t}, 71, v{t}
        v_mul_u32_u24 v{t+1}, 2731, v{t}
        v_lshrrev_b32 v{t+1}, 16, v{t+1}
        v_mul_u32_u24 v{t+1}, {12288 - 24*128}, v{t+1}
        v_lshl_add_u32 v{t}, v{t}, 7, v{t+1}''')
        k.raw(f'    buffer_load_dword v{dst+i}, v{t}, {WS}, s48 offen')


def load_tag(k, t):
    k(f'v_mov_b32 v{t}, {WS_EPOCH}\nbuffer_load_dword v{vTAG}, v{t}, {WS}, 0 offen sc1')


def finish_tag(k):
    k(f's_mov_b32 s48, 0x9e3779b1\nv_mul_lo_u32 v{vTAG}, v{vTAG}, s48\nv_add_u32 v{vTAG}, 0x7f4a7c15, v{vTAG}\nv_or_b32 v{vTAG}, 0x01010101, v{vTAG}')


def w2_lane(k, t, d):
    k(f'''v_lshrrev_b32 v{t}, 4, v0
    v_and_b32 v{t+1}, 15, v0
    v_lshlrev_b32 v{t}, 12, v{t}
    v_lshl_add_u32 v{t}, v{t+1}, 7, v{t}
    s_lshr_b32 s48, s{sJ}, 1
    s_mul_i32 s48, s48, {1152*4096}
    s_and_b32 s49, s{sJ}, 1
    s_lshl_b32 s49, s49, 11
    s_add_u32 s48, s48, s49
    v_add_u32 v{t}, s48, v{t}
    s_mov_b32 s{d}, 0''')


def pf_loop(k, which, sN, stride, end, t, sd, tmp=50):
    assert 0 <= end <= 320 and stride > 0
    L, E = k.lab(), k.lab()
    if which == 2:
        w2_lane(k, t, tmp)
    k.label(L)
    k(f's_cmp_ge_u32 s{sN}, {end}\ns_cbranch_scc1 {E}')
    if which == 1:
        nl = OPT['nl']
        mg = {9: 911, 10: 820}[nl]
        k(f'''s_mul_i32 s48, s{sN}, {mg}
        s_lshr_b32 s48, s48, 13
        s_mul_i32 s49, s48, {nl}
        s_sub_u32 s49, s{sN}, s49
        s_lshl_b32 s49, s49, 6
        v_add_u32 v{t}, s49, v0
        s_and_b32 s49, s{sJ}, {OPT['xm']}
        s_mul_i32 s49, s49, {OPT['xst']}
        s_add_u32 s48, s48, s49
        s_add_u32 s48, s48, {OPT['xo']}''')
        if OPT['rot1']:
            assert nl == 10
            k(f'''s_mul_i32 s49, s{sJ}, 1152
            s_lshr_b32 s15, s49, 8
            s_mul_i32 s15, s15, {OPT['rot1']}
            s_add_u32 s15, s15, s48
            s_and_b32 s48, s49, -256''')
        else:
            k(f'''s_and_b32 s48, s48, 31
            s_mul_i32 s48, s48, {8*9216}
            s_mul_i32 s49, s{sJ}, 1152
            s_and_b32 s49, s49, {-256 if nl == 10 else -128}
            s_add_u32 s48, s48, s49''')
        k(f'''v_mul_u32_u24 v{t+1}, {mg}, v{t}
        v_lshrrev_b32 v{t+1}, 13, v{t+1}
        v_mul_u32_u24 v{t+2}, {nl}, v{t+1}
        v_sub_u32 v{t+2}, v{t}, v{t+2}
        v_and_b32 v{t}, 7, v{t+1}
        v_lshrrev_b32 v{t+1}, 3, v{t+1}
        v_lshl_add_u32 v{t}, v{t}, 8, v{t+1}
        v_mul_u32_u24 v{t}, 9216, v{t}
        v_lshl_add_u32 v{t}, v{t+2}, 7, v{t}''')
        if OPT['rot1']:
            k(f'''v_lshrrev_b32 v{t+2}, 1, v{t+2}
            v_mul_u32_u24 v{t+2}, {OPT['rot1']}, v{t+2}
            v_add_u32 v{t+2}, s15, v{t+2}
            v_and_b32 v{t+2}, 31, v{t+2}
            v_mul_u32_u24 v{t+2}, {8*9216}, v{t+2}
            v_add_u32 v{t}, v{t}, v{t+2}''')
    else:
        k(f'''s_add_u32 s48, s{sN}, s{tmp}
        s_cmp_ge_u32 s48, 288
        s_cselect_b32 s49, 288, 0
        s_sub_u32 s48, s48, s49
        s_lshl_b32 s48, s48, 14''')
    k.cond += 1
    k(f'buffer_load_dword v{t+3}, v{t}, s[{sd}:{sd+3}], s48 offen')
    k.cond -= 1
    k(f's_add_u32 s{sN}, s{sN}, {stride}\ns_branch {L}')
    k.label(E)


def tag_check4(k, r, t, first):
    k(f'''v_perm_b32 v{t}, v{r+1}, v{r}, s56
    v_perm_b32 v{t+1}, v{r+3}, v{r+2}, s57
    v_or_b32 v{t}, v{t}, v{t+1}''')
    if first:
        k(f'v_cmp_ne_u32 vcc, v{vTAG}, v{t}')
    else:
        k(f'v_cmp_ne_u32 s[48:49], v{vTAG}, v{t}\ns_or_b64 vcc, vcc, s[48:49]')


def check_sent(k, regs, t):
    def f():
        r = list(regs)
        k(f'v_max3_u32 v{t}, v{r[0]}, v{r[1]}, v{r[2]}')
        for x in r[3:]:
            k(f'v_max_u32 v{t}, v{t}, v{x}')
        k(f'v_cmp_eq_u32 vcc, -1, v{t}')
    return f


def stats(k, xf, u):
    k(f'v_pk_add_f32 {P(u)}, {P(xf)}, {P(xf+2)}\nv_pk_mul_f32 {P(u+2)}, {P(xf)}, {P(xf)}')
    for j in range(1, 9):
        if j > 1:
            k(f'v_pk_add_f32 {P(u)}, {P(u)}, {P(xf+2*j)}')
        k(f'v_pk_fma_f32 {P(u+2)}, {P(xf+2*j)}, {P(xf+2*j)}, {P(u+2)}')
    k(f'v_add_f32 v{u}, v{u}, v{u+1}\nv_add_f32 v{u+1}, v{u+2}, v{u+3}')
    red32(k, [u, u + 1], u + 2)
    k(f'''v_mul_f32 v{u}, {f32(-1/576)}, v{u}
    v_mul_f32 v{u+1}, {f32(1/576)}, v{u+1}
    v_fma_f32 v{u+1}, -v{u}, v{u}, v{u+1}
    v_max_f32 v{u+1}, 0, v{u+1}
    v_add_f32 v{u+1}, {f32(1e-5)}, v{u+1}
    v_rsq_f32 v{u+2}, v{u+1}
    v_mul_f32 v{u}, v{u}, v{u+2}''')


def gen_C(k):
    V = Alloc(4, 256)
    bb = V(4, 2); b2 = V()
    base = V.p
    xr = V(9, 1); t = V(12); twi = V(6); la = V(); a576 = V(); F64 = V(32, 4)
    keep = V.p
    mv = V(18, 2); ma = V(8); tw = V(8); xf = V(24, 2); st = V(16, 4); hf = V(12, 4); mf = V(60, 4); acc = V(24, 4)
    if OPT['touch'] == 2:
        tag(k, 'align')
    k(f'''v_lshrrev_b32 v{t}, 5, v0
    v_and_b32 v{t+1}, 31, v0
    v_mul_u32_u24 v{t+2}, {256*1152}, v{t}
    v_lshl_add_u32 v{t+2}, v{t+1}, 2, v{t+2}
    s_mul_i32 s62, s{sW}, {512*1152}
    s_mul_i32 s48, s{sS2}, 1152
    s_add_u32 s62, s62, s48''')
    srd(k, 40, pX, S * D * 2)
    for j in range(9):
        k(f'buffer_load_dword v{xr+j}, v{t+2}, s[40:43], s62 offen offset:{128*j}')
    srd(k, 36, pWS, WS_SIZE)
    load_tag(k, t + 3)
    g1_tile(k)
    g2_tile(k)
    srd(k, 44, pB1, F * 2)
    srd(k, 64, pB2, S * 2)
    k(f'''s_lshl_b32 s48, s51, 8
    s_lshl_b32 s49, s{sW}, 6
    s_add_u32 s48, s48, s49
    v_lshl_add_u32 v{t+4}, v2, 3, s48
    buffer_load_dwordx2 {P(bb)}, v{t+4}, s[44:47], 0 offen
    buffer_load_dwordx2 {P(bb+2)}, v{t+4}, s[44:47], 0 offen offset:32
    s_lshl_b32 s48, s54, 8
    s_add_u32 s48, s48, s49
    s_lshr_b32 s49, s53, 1
    s_lshl_b32 s49, s49, 5
    s_add_u32 s48, s48, s49
    v_lshl_add_u32 v{t+5}, v1, 1, s48
    buffer_load_ushort v{b2}, v{t+5}, s[64:67], 0 offen''')
    if OPT['tlb']:
        k(f'''s_cmp_eq_u32 s{sW}, 1
        s_cselect_b32 s56, s{pW1}, s{pWS}
        s_cselect_b32 s57, s{pW1+1}, s{pWS+1}
        s_cmp_eq_u32 s{sW}, 2
        s_cselect_b32 s56, s{pW2}, s56
        s_cselect_b32 s57, s{pW2+1}, s57
        s_cmp_eq_u32 s{sW}, 3
        s_cselect_b32 s56, s{pOUT}, s56
        s_cselect_b32 s57, s{pOUT+1}, s57
        s_mov_b32 s58, {S*F*2}
        s_cselect_b32 s58, {S*D*2}, s58
        s_cmp_eq_u32 s{sW}, 0
        s_cselect_b32 s58, {WS_SIZE}, s58
        s_mov_b32 s59, 0x20000
        v_lshlrev_b32 v{t+6}, {OPT['tlb']}, v0
        v_add_u32 v{t+6}, {(1<<OPT['tlb'])-128}, v{t+6}
        buffer_load_dword v{tw}, v{t+6}, s[56:59], 0 offen''')
    if OPT['warm']:
        h3_idx(k, 56)
        publish(k, 2, 56, t + 6)
        k(f's_lshl_b32 s56, s52, 6\ns_add_u32 s56, s56, s51')
        publish(k, 3, 56, t + 7, ncue=5, cue_add=27)
        k(f'buffer_load_dword v{ma}, v{t+6}, {WS}, 0 offen\nbuffer_load_dword v{ma+1}, v{t+7}, {WS}, 0 offen')
    if OPT['touch'] == 1:
        tag(k, 'align')
    xw = hf
    k(f'''v_lshlrev_b32 v{la}, 4, v0
    v_mul_u32_u24 v{xw}, {XROW}, v{t}
    v_lshl_add_u32 v{xw}, v{t+1}, 2, v{xw}
    s_mul_i32 s48, s{sW}, {2*XROW}
    s_add_u32 s48, s48, {L_X}
    v_add_u32 v{xw}, s48, v{xw}''')
    m = acc
    k(f'''v_lshrrev_b32 v{m}, 1, v1
    v_and_b32 v{m+1}, 1, v1
    v_and_b32 v{m+2}, 1, v{m}
    v_cvt_f32_u32 v{m}, v{m}
    v_cvt_f32_u32 v{m+1}, v{m+1}
    v_mul_f32 v{m}, {f32(0.125)}, v{m}
    v_mul_f32 v{m+1}, {f32(0.25)}, v{m+1}
    v_mul_u32_u24 v{m+2}, 0x8000, v{m+2}
    v_lshl_or_b32 v{m+2}, v{m+2}, 16, v{m+2}
    s_lshl_b32 s48, s{sW}, 10
    s_add_u32 s48, s48, {L_M}
    v_add_u32 v{m+3}, s48, v{la}
    s_mov_b32 s63, {f32(1/9)}''')
    for i in range(4):
        o = m + 12 + 4 * (i & 1)
        k(f'''s_add_u32 s48, s{sW}, {4*i}
        s_mul_i32 s49, s48, 43
        s_lshr_b32 s49, s49, 7
        s_mul_i32 s50, s49, 3
        s_sub_u32 s50, s48, s50
        s_lshl_b32 s50, s50, 2
        v_add_u32 v{m+4}, s50, v2
        v_cmp_gt_u32 vcc, 9, v{m+4}
        v_mul_u32_u24 v{m+4}, s49, v{m+4}
        v_cvt_f32_u32 v{m+4}, v{m+4}
        v_fma_f32 v{m+4}, v{m+4}, s63, v{m+1}
        v_add_f32 v{m+5}, v{m+4}, v{m}
        v_fma_f32 v{m+6}, v{m}, 2.0, v{m+4}
        v_add_f32 v{m+7}, v{m+6}, v{m}
        v_cos_f32 v{m+4}, v{m+4}
        v_cos_f32 v{m+5}, v{m+5}
        v_cos_f32 v{m+6}, v{m+6}
        v_cos_f32 v{m+7}, v{m+7}
        v_cvt_pk_bf16_f32 v{o}, v{m+4}, v{m+5}
        v_cvt_pk_bf16_f32 v{o+1}, v{m+6}, v{m+7}
        v_cndmask_b32 v{o}, 0, v{o}, vcc
        v_cndmask_b32 v{o+1}, 0, v{o+1}, vcc
        v_xor_b32 v{o+2}, v{m+2}, v{o}
        v_xor_b32 v{o+3}, v{m+2}, v{o+1}
        ds_write_b128 v{m+3}, {Q(o)} offset:{4096*i}''')
    def gen_twi():
        k(f'''v_lshrrev_b32 v{t+4}, 1, v2
        v_cvt_f32_u32 v{t+4}, v{t+4}
        v_add_f32 v{t+5}, 1.0, v{t+4}
        v_mul_f32 v{t+5}, {f32(1/(S*D))}, v{t+5}''')
        for tt in range(3):
            if tt:
                k(f'v_add_f32 v{t+4}, 2.0, v{t+4}')
            sc = f'v{t+5}' if tt == 0 else f32(2 / (S * D))
            k(f'''v_mul_f32 v{t+6}, v{t+4}, v{a576}
            v_cos_f32 v{t+7}, v{t+6}
            v_sin_f32 v{t+8}, v{t+6}
            v_mul_f32 v{twi+2*tt}, {sc}, v{t+7}
            v_mul_f32 v{twi+2*tt+1}, {sc}, v{t+8}''')

    def gen_f64():
        k(f'''s_lshl_b32 s48, s{sW}, 4
        v_add_u32 v{t+6}, s48, v1
        v_cvt_f32_u32 v{t+6}, v{t+6}
        v_mul_f32 v{t+6}, {f32(1/64)}, v{t+6}
        v_cvt_f32_u32 v{t+8}, v2
        v_mul_f32 v{t+8}, 4.0, v{t+8}''')
        for T in range(4):
            if T:
                k(f'v_add_f32 v{t+8}, {f32(16.0)}, v{t+8}')
            k(f'v_mul_f32 v{t+7}, v{t+8}, v{t+6}')
            dft_frag(k, t + 7, t + 6, F64 + 8 * T, F64 + 8 * T + 4, t, False)
        k(f'v_mul_f32 v{a576}, {f32(1/9)}, v{t+6}')
        for lb in range(1, 5):
            k(f'''v_mul_f32 v{t+4}, {f32(float(lb))}, v{a576}
            v_cos_f32 v{tw+2*lb-2}, v{t+4}
            v_sin_f32 v{tw+2*lb-1}, v{t+4}''')
    if OPT['f64'] == 0:
        gen_f64()
    if OPT['a0']:
        L1 = k.lab()
        k(f's_cmp_lt_u32 s2, 202\ns_cbranch_scc1 {L1}')
        vm = list(k.vm)
        if OPT['f64'] == 1:
            gen_f64()
        k.vm = vm
        k('s_barrier')
        k.label(L1)
    ta = st
    k(f'''v_lshrrev_b32 v{t+4}, 5, v0
    v_lshlrev_b32 v{t+4}, 2, v{t+4}
    s_lshl_b32 s48, s{sW}, 3
    s_add_u32 s48, s48, {L_ST}
    v_add_u32 v{t+4}, s48, v{t+4}
    v_bfe_u32 v{t}, v0, 2, 2
    v_mul_u32_u24 v{t}, {XROW}, v{t}
    v_and_b32 v{t+1}, 3, v0
    v_lshl_add_u32 v{t}, v{t+1}, 3, v{t}
    s_lshl_b32 s48, s{sW}, 5
    s_add_u32 s48, s48, {L_X}
    v_add_u32 v{t+1}, s48, v{t}
    v_lshl_add_u32 v{t}, v2, 7, v{t+1}
    v_mov_b32 v{t+2}, {L_ST}
    v_add_u32 v{t+3}, {L_M}, v{la}''')
    for j in range(9):
        k(f'ds_write_b32 v{xw}, v{xr+j} offset:{128*j}')
        k(f'v_lshlrev_b32 v{xf+2*j}, 16, v{xr+j}\nv_and_b32 v{xf+2*j+1}, 0xffff0000, v{xr+j}')
    stats(k, xf, t + 6)
    k(f'ds_write_b32 v{t+4}, v{t+8}\nds_write_b32 v{t+4}, v{t+6} offset:32')
    mark(k, 1)
    if OPT['touch'] == 3:
        tag(k, 'align')
    bar(k, lg=0)
    for i in range(4):
        k(f'ds_read_b128 {Q(st+4*i)}, v{t+2} offset:{16*i}')
    for tt in range(3):
        a = t if tt < 2 else t + 1
        k(f'ds_read_b64_tr_b16 {P(hf+4*tt)}, v{a} offset:{512*tt}')
        k(f'ds_read_b64_tr_b16 {P(hf+4*tt+2)}, v{a} offset:{512*tt+4*XROW}')
    for fi in range(15):
        k(f'ds_read_b128 {Q(mf+4*fi)}, v{t+3} offset:{1024*fi}')
    if OPT['f64'] == 1:
        L1 = k.lab()
        if OPT['a0']:
            k(f's_cmp_ge_u32 s2, 202\ns_cbranch_scc1 {L1}')
        lg, vm = list(k.lg), list(k.vm)
        gen_f64()
        k.lg, k.vm = lg, vm
        k.label(L1)
    for tt in range(3):
        for p in range(4):
            x = xf + 8 * tt + 2 * p
            k(f'''v_lshlrev_b32 v{x}, 16, v{hf+4*tt+p}
            v_and_b32 v{x+1}, 0xffff0000, v{hf+4*tt+p}
            v_pk_fma_f32 {P(x)}, {P(x)}, {P(st+2*p)}, {P(st+8+2*p)}''')
    def gen_m1i(m):
        k(f'''v_and_b32 v{m}, 7, v1
        v_cvt_f32_u32 v{m}, v{m}
        v_mul_f32 v{m}, {f32(0.125)}, v{m}
        v_and_b32 v{m+1}, 1, v2
        v_cvt_f32_u32 v{m+1}, v{m+1}
        v_mul_f32 v{m+1}, 4.0, v{m+1}
        v_mul_f32 v{m+1}, v{m+1}, v{m}
        v_lshrrev_b32 v{m+2}, 3, v1
        v_lshrrev_b32 v{m+3}, 1, v2
        s_lshl_b32 s48, s{sW}, 10
        s_add_u32 s48, s48, {L_MI}
        v_add_u32 v{m+4}, s48, v{la}''')
        for i in range(4):
            o = m + 12 + 4 * (i & 1)
            k(f'''s_add_u32 s48, s{sW}, {4*i}
            s_mul_i32 s49, s48, 43
            s_lshr_b32 s49, s49, 7
            s_mul_i32 s50, s49, 3
            s_sub_u32 s50, s48, s50
            s_lshl_b32 s50, s50, 1
            s_lshl_b32 s49, s49, 1
            v_add_u32 v{m+5}, s49, v{m+2}
            v_add_u32 v{m+6}, s50, v{m+3}
            v_cmp_gt_u32 vcc, 9, v{m+5}
            v_cmp_gt_u32 s[48:49], 5, v{m+6}
            v_mul_u32_u24 v{m+5}, v{m+5}, v{m+6}
            v_cvt_f32_u32 v{m+5}, v{m+5}
            s_and_b64 vcc, vcc, s[48:49]
            v_fma_f32 v{m+5}, v{m+5}, s63, v{m+1}''')
            for j in range(4):
                if j:
                    k(f'v_add_f32 v{m+5}, v{m+5}, v{m}')
                cs_pair(k, m + 5, m + 6 + 2 * (j & 1), m + 7 + 2 * (j & 1), [(o + j, 'c', '-s')])
            for j in range(4):
                k(f'v_cndmask_b32 v{o+j}, 0, v{o+j}, vcc')
            k(f'ds_write_b128 v{m+4}, {Q(o)} offset:{4096*i}')
    if OPT['m1early'] == 1:
        gen_m1i(acc)
    if OPT['m1early'] == 2:
        L1 = k.lab()
        k.wait(lg=0)
        k(f's_cmp_ge_u32 s2, 202\ns_cbranch_scc1 {L1}')
        gen_m1i(acc)
        k.label(L1)
    gen_twi()
    finish_tag(k)
    k(f'''s_lshl_b32 s48, s{sW}, 6
    s_add_u32 s48, s48, {L_E}
    v_mul_u32_u24 v{t}, 576, v2
    v_lshl_add_u32 v{t}, v1, 2, v{t}
    v_add_u32 v{t}, s48, v{t}
    v_mul_u32_u24 v{t+1}, 288, v1
    v_lshl_add_u32 v{t+1}, v2, 4, v{t+1}
    v_add_u32 v{t+1}, {L_E}, v{t+1}
    v_bfe_u32 v{t+9}, v1, 1, 2
    v_xor_b32 v{t+9}, v{t+9}, v2
    v_lshl_add_u32 v{t+9}, v1, 2, v{t+9}
    s_mul_i32 s48, s{sW}, 3072
    s_add_u32 s48, s48, {L_TR}
    v_lshl_add_u32 v{t+9}, v{t+9}, 4, s48
    v_add_u32 v{t+10}, s48, v{la}
    v_lshrrev_b32 v{t+2}, 3, v0
    v_xor_b32 v{t+2}, v{t+2}, v0
    v_and_b32 v{t+2}, 3, v{t+2}
    v_lshlrev_b32 v{t+2}, 4, v{t+2}
    v_lshrrev_b32 v{t+3}, 2, v0
    v_lshl_add_u32 v{t+2}, v{t+3}, 16, v{t+2}
    s_lshl_b32 s48, s{sW}, 14
    s_lshl_b32 s49, s{sS2}, 6
    s_add_u32 s48, s48, s49
    s_add_u32 s48, s48, {WS_T1}
    v_add_u32 v{t+2}, s48, v{t+2}
    v_add_u32 v{t+3}, {1<<20}, v{t+2}
    v_add_u32 v{t+4}, {2<<20}, v{t+2}
    v_cmp_gt_u32 vcc, 32, v0
    v_mov_b32 v{t+5}, {OOB}
    v_cndmask_b32 v{t+4}, v{t+5}, v{t+4}, vcc
    s_lshl_b32 s58, s{sW}, 12
    s_add_u32 s58, s58, {L_MG}
    v_lshl_add_u32 v{ma+3}, v1, 2, s58
    v_lshl_add_u32 v{ma}, v2, 6, v{ma+3}
    v_add_u32 v{ma+3}, 512, v{ma+3}
    v_add_u32 v{ma+1}, 1152, v{ma}
    v_add_u32 v{ma+2}, 2304, v{ma}
    v_add_u32 v{ma+4}, 1152, v{ma+3}
    v_add_u32 v{ma+5}, 2304, v{ma+3}
    v_cmp_gt_u32 vcc, 24, v0
    v_cndmask_b32 v{ma+6}, v{t+5}, v{la}, vcc
    s_mul_i32 s59, s{sJ}, 13824
    s_mul_i32 s48, s{sW}, 3456
    s_add_u32 s59, s59, s48
    s_add_u32 s59, s59, {WS_MODG}
    v_min_u32 v{ma+7}, {31*16}, v{la}
    s_mul_i32 s48, s{sW}, 2560
    s_mul_i32 s60, s{sS2}, 10240
    s_add_u32 s60, s60, s48
    s_add_u32 s60, s60, {WS_T2}
    v_mov_b64 {P(st+12)}, -1
    v_mov_b64 {P(st+14)}, -1
    v_and_b32 v{t+6}, 3, v1
    v_lshlrev_b32 v{t+6}, 3, v{t+6}
    v_bfe_u32 v{t+6}, v{vTAG}, v{t+6}, 8
    s_mov_b32 m0, s58''')
    tag(k, 'touch c1')
    tag(k, 'region c1')
    k.wait(0, 0)
    mark(k, 2)

    def chk():
        for p in range(3):
            for tt in range(3):
                o = 64 * tt if tt < 2 else 0
                k(f'ds_read2_b32 {P(mv+6*p+2*tt)}, v{ma+p+(3 if tt==2 else 0)} offset0:{o} offset1:{o+144}')
        for i in range(0, 18, 2):
            k(f'v_xor_b32 v{mv+i}, v{mv+i}, v{t+6}\nv_xor_b32 v{mv+i+1}, v{mv+i+1}, v{t+6}')
            k(f'v_or3_b32 v{t+8}, v{mv+i}, v{mv+i+1}, v{t+8}' if i else f'v_or_b32 v{t+8}, v{mv}, v{mv+1}')
        k(f'v_and_b32 v{t+8}, 0xff, v{t+8}\nv_cmp_ne_u32 vcc, 0, v{t+8}')

    def clr2():
        for i in range(3):
            k(f'buffer_store_dwordx4 {Q(st+12)}, v{la if i<2 else ma+7}, {WS}, s60 offen offset:{1024*i} sc1')
    if OPT['c2'] == 0:
        clr2()
        k.wait(0)
    if OPT['dly']:
        k(f's_sleep {OPT["dly"]}')
    poll(k, [f'buffer_load_dwordx4 v{la if i<3 else ma+6}, {WS}, s59 offen offset:{1024*i} sc1 lds' for i in range(4)], chk, alt=([59], 0x20000, OPT['nm']))
    mark(k, 3)
    if OPT['c2'] == 1:
        clr2()
    for tt in range(3):
        a = mv + 2 * tt
        k(f'v_pk_add_f32 {P(a)}, {P(a)}, {P(a+6)}')
    for tt in range(3):
        a = mv + 2 * tt
        k(f'v_pk_add_f32 {P(a)}, {P(a)}, {P(a+12)}')
    for tt in range(3):
        a = mv + 2 * tt
        k(f'''v_cvt_pk_bf16_f32 v{a+6}, v{a}, v{a+1}
        v_and_b32 v{a+1}, 0xffff0000, v{a+6}
        v_add_f32 v{a+1}, 1.0, v{a+1}
        v_lshlrev_b32 v{a}, 16, v{a+6}
        v_cvt_pk_bf16_f32 v{a+1}, 0, v{a+1}''')
        for p in range(4):
            x = xf + 8 * tt + 2 * p
            k(f'v_pk_fma_f32 {P(x)}, {P(x)}, {P(a)}, {P(a)} op_sel:[0,1,0] op_sel_hi:[1,1,0]')
        for p in range(4):
            x = xf + 8 * tt + 2 * p
            k(f'v_cvt_pk_bf16_f32 v{hf+4*tt+p}, v{x}, v{x+1}')

    def twid(lb):
        r = []
        for jj in range(2):
            z = acc + 4 * lb + 2 * jj
            o = xf + 4 * (jj + 2 * (lb & 1))
            c = tw + 2 * lb - 2
            if lb == 0:
                r.append(f'v_cvt_pk_bf16_f32 v{o+2}, v{z}, v{z+1}')
            elif OPT['tw1'] & 1:
                r += [f'v_mul_f32 v{o}, v{z}, v{c}', f'v_mul_f32 v{o+1}, v{z+1}, v{c}',
                      f'v_fmac_f32 v{o}, v{z+1}, v{c+1}', f'v_fma_f32 v{o+1}, -v{z}, v{c+1}, v{o+1}',
                      f'v_cvt_pk_bf16_f32 v{o+2}, v{o}, v{o+1}']
            else:
                r += [f'v_pk_mul_f32 {P(o)}, {P(z)}, {P(c)} op_sel_hi:[1,0]',
                      f'v_pk_fma_f32 {P(o)}, {P(z)}, {P(c)}, {P(o)} op_sel:[1,1,0] op_sel_hi:[0,1,1] neg_hi:[1,0,0]',
                      f'v_cvt_pk_bf16_f32 v{o+2}, v{o}, v{o+1}']
            r.append(f'ds_write_b32 v{t}, v{o+2} offset:{(8*lb+jj)*288}')
        return r
    order = [1, 2, 3, 4, 0]
    pend = []
    for x, lb in enumerate(order):
        if x >= 2:
            pend += twid(order[x - 2])
        for tt in range(3):
            a = acc + 4 * lb
            k(f'{MF} {Q(a)}, {Q(mf+4*(3*lb+tt))}, {Q(hf+4*tt)}, ' + ('0' if tt == 0 else Q(a)))
            for _ in range(0 if OPT['tw1'] & 2 else (2 if OPT['tw1'] & 1 else (4 if tt < 2 else 0))):
                if pend:
                    k(pend.pop(0))
    for x in pend + twid(order[3]) + twid(order[4]):
        k(x)
    k.wait(lg=0)
    xmark(k, 'p1', 10)
    k('s_barrier')
    xmark(k, 'p1', 11)
    ef = mf
    for tt in range(3):
        for T in range(4):
            k(f'ds_read_b128 {Q(ef+4*(4*tt+T))}, v{t+1} offset:{16*288*tt+64*T}')
    pend = []
    for tt in range(3):
        for T in range(4):
            for ri in range(2):
                a = acc + 8 * tt + 4 * ri
                k(f'{MF} {Q(a)}, {Q(F64+8*T+4*ri)}, {Q(ef+4*(4*tt+T))}, ' + ('0' if T == 0 else Q(a)))
                if T >= 2 and pend:
                    k(pend.pop(0))
        for x in pend:
            k(x)
        o = hf + 4 * tt
        pend = [f'v_cvt_pk_bf16_f32 v{o+j}, v{acc+8*tt+j}, v{acc+8*tt+4+j}' for j in range(4)]
        st_prev = f'buffer_store_dwordx4 {Q(st+4*(tt-1))}, v{t+1+tt}, {WS}, 0 offen sc1'
        pend.append(f'ds_write_b128 v{t+9}, {Q(o)} offset:{1024*tt}\nds_read_b128 {Q(st+4*tt)}, v{t+10} offset:{1024*tt}')
        if tt:
            pend.append(st_prev)
    for x in pend:
        k(x)
    k(f'buffer_store_dwordx4 {Q(st+8)}, v{t+4}, {WS}, 0 offen sc1')
    if OPT['c2'] == 2:
        clr2()
    mark(k, 4)
    V.p = keep
    za = V(8); zf = V(48, 4); mf = V(60, 4); acc = V(24, 4); ef = V(12, 4); ad = V(8); zl = V(4); xf = V(18, 2)
    yf = zf + 20
    assert za + 8 <= st
    k(f'''v_lshrrev_b32 v{t}, 2, v1
    v_and_b32 v{t}, 2, v{t}
    v_xor_b32 v{t}, v{t}, v2
    v_lshlrev_b32 v{t}, 4, v{t}
    v_lshl_add_u32 v{t}, v1, 8, v{t}
    v_add_u32 v{t}, {L_Z}, v{t}
    v_and_b32 v{t+1}, 7, v1
    v_lshlrev_b32 v{t+1}, 8, v{t+1}
    v_lshl_add_u32 v{t+1}, v2, 4, v{t+1}
    v_add_u32 v{t+1}, {L_Z}, v{t+1}
    v_and_b32 v{t+5}, 3, v1''')
    for T in range(4):
        k(f'''v_xor_b32 v{t+6}, {T}, v{t+5}
        v_lshl_add_u32 v{za+T}, v{t+6}, 6, v{t}
        v_lshl_add_u32 v{za+4+T}, v{t+6}, 6, v{t+1}''')
    k(f'''v_and_b32 v{t}, 7, v1
    v_mul_u32_u24 v{t}, {YROW}, v{t}
    v_lshl_add_u32 v{t}, v2, 4, v{t}
    s_lshl_b32 s48, s{sW}, 6
    s_add_u32 s48, s48, {L_Y}
    v_add_u32 v{t}, s48, v{t}
    v_lshrrev_b32 v{t+1}, 3, v1
    v_lshl_add_u32 v{ad+1}, v{t+1}, 8, v{t}
    v_cmp_gt_u32 vcc, 8, v1
    v_mov_b32 v{t+5}, {L_Y+8*YROW-2048}
    v_cndmask_b32 v{ad}, v{t+5}, v{t}, vcc
    v_lshrrev_b32 v{t+5}, 5, v0
    s_lshl_b32 s48, s{sW}, 1
    v_add_u32 v{t+5}, s48, v{t+5}
    v_and_b32 v{t+6}, 31, v0
    v_mul_u32_u24 v{t}, {YROW}, v{t+5}
    v_lshl_add_u32 v{t}, v{t+6}, 3, v{t}
    v_add_u32 v{ad+2}, {L_Y}, v{t}
    v_mul_u32_u24 v{t}, {XROW}, v{t+5}
    v_lshl_add_u32 v{t}, v{t+6}, 2, v{t}
    v_add_u32 v{ad+3}, {L_H}, v{t}
    v_mul_u32_u24 v{t}, 1152, v{t+5}
    v_lshl_add_u32 v{t}, v{t+6}, 2, v{t}
    v_add_u32 v{ad+7}, {L_Z}, v{t}
    v_lshlrev_b32 v{t}, 3, v{t+6}
    v_add_u32 v{ad+4}, {L_MOD}, v{t}
    v_add_u32 v{a576}, {L_MOD+256}, v{t}
    v_bfe_u32 v{t}, v0, 2, 2
    v_mul_u32_u24 v{t}, {XROW}, v{t}
    v_and_b32 v{t+1}, 3, v0
    v_lshl_add_u32 v{t}, v{t+1}, 3, v{t}
    v_lshl_add_u32 v{t}, v2, 5, v{t}
    s_lshl_b32 s48, s{sW}, 7
    s_add_u32 s48, s48, {L_H}
    v_add_u32 v{ad+5}, s48, v{t}
    v_add_u32 v{ad+6}, {L_MI}, v{la}
    v_min_u32 v{zl}, {31*16}, v{la}
    s_mul_i32 s48, s{sW}, 2560
    s_mul_i32 s66, s{sS2}, 10240
    s_add_u32 s66, s66, s48
    s_add_u32 s66, s66, {WS_T2}
    s_add_u32 s48, s48, {L_Z}
    v_add_u32 v{zl+1}, s48, v{la}
    v_add_u32 v{zl+2}, s48, v{zl}
    s_lshr_b32 s48, s{sJ}, 1
    s_lshl_b32 s48, s48, 12
    s_mul_i32 s49, s{sW}, 640
    s_add_u32 s48, s48, s49
    s_add_u32 s48, s48, {WS_FLAG + 0x8000}
    v_min_u32 v{zl+3}, {39*16}, v{la}
    v_add_u32 v{zl+3}, s48, v{zl+3}''')
    k.wait(0)
    if OPT.get('mk') != 'u':
        mark(k, 1)
    bar(k, 0)
    if OPT['wx'] == 1:
        warm_xch(k, t, ef)
    if not OPT['m1early']:
        gen_m1i(acc)
    if OPT['m1early'] == 2:
        L1 = k.lab()
        k(f's_cmp_lt_u32 s2, 202\ns_cbranch_scc1 {L1}')
        gen_m1i(acc)
        k.label(L1)
    k(f's_lshl_b32 s58, s{sW}, 10')
    k(f'''v_add_u32 v{t}, s58, v{la}
    v_add_u32 v{t+1}, 4096, v{t}
    v_min_u32 v{t+1}, {431*16}, v{t+1}
    v_min_u32 v{t+2}, {143*16}, v{t}
    v_add_u32 v{t+2}, {432*16}, v{t+2}
    s_mov_b32 s56, 0x0c0c0400
    s_mov_b32 s57, 0x04000c0c
    s_mov_b32 s58, {WS_MODB}
    s_mov_b32 s59, {WS_MODB+9216}
    s_mov_b32 s60, {WS_MODB+18432}''')
    mb = zf

    def modb_loads(rounds):
        return [f'buffer_load_dwordx4 {Q(mb+12*x+4*p)}, v{t+rd}, {WS}, s{58+p} offen sc1' for x, rd in enumerate(rounds) for p in range(2)]

    def modb_chk(n):
        def f():
            for x in range(2 * n):
                tag_check4(k, mb + 12 * (x >> 1) + 4 * (x & 1), t + 4, x == 0)
        return f

    def modb_sum(x, one):
        a = mb + 12 * x
        for j in range(8):
            k(f'v_and_b32 v{a+j}, 0xffffff00, v{a+j}')
        for p in (1,):
            k(f'v_pk_add_f32 {P(a)}, {P(a)}, {P(a+4*p)}\nv_pk_add_f32 {P(a+2)}, {P(a+2)}, {P(a+4*p+2)}')
        for j in range(4):
            k(f'v_cvt_pk_bf16_f32 v{a+j}, 0, v{a+j}')
        if one is not None:
            for j in range(4):
                k(f'v_add_f32 v{a+j}, v{a+j}, v{one}')
            for j in range(4):
                k(f'v_cvt_pk_bf16_f32 v{a+j}, 0, v{a+j}')

    def clear_h2():
        c0, n = spec_range(0)
        k(f'v_mov_b64 {P(ef)}, -1\nv_mov_b64 {P(ef+2)}, -1\ns_lshl_b32 s61, s2, 2\ns_add_u32 s61, s61, s{sW}')
        clear_loop(k, 61, 640, 72 * n, lambda: k(f's_lshl_b32 s48, s48, 10\ns_add_u32 s48, s48, {WS_H2 + c0*73728}'), ef, la)
    L1 = k.lab()
    k.wait(lg=0)
    k(f's_cmp_ge_u32 s{sR}, 20\ns_cbranch_scc1 {L1}')
    if OPT['sp1'] and OPT['cl3'] == 0:
        clear_h2()
        k.wait(0)
    k('s_barrier')
    if OPT['sp1'] and OPT['cl3'] == 1:
        clear_h2()
    k.label(L1)
    for l in modb_loads([0, 1]):
        k(l)
    L1 = k.lab()
    k(f's_cmp_ge_u32 s{sR}, 20\ns_cbranch_scc1 {L1}\ns_barrier')
    if OPT['sp1'] and OPT['cl3'] == 1:
        vm = k.vm
        bar(k, 4)
        k.vm = vm
    k.label(L1)
    L2 = k.lab()
    k.wait(0)
    modb_chk(2)()
    k(f's_cbranch_vccz {L2}')
    poll(k, modb_loads([0, 1]), modb_chk(2))
    k.label(L2)
    k(f'v_cmp_le_u32 vcc, {288*16}, v{t+1}\nv_cndmask_b32 v{t+4}, 0, 1.0, vcc')
    modb_sum(0, None)
    modb_sum(1, t + 4)
    k(f'''v_add_u32 v{t+4}, {L_MOD}, v{t}
    v_add_u32 v{t+5}, {L_MOD}, v{t+1}
    ds_write_b128 v{t+4}, {Q(mb)}
    ds_write_b128 v{t+5}, {Q(mb+12)}''')
    L2 = k.lab()
    k(f's_cmp_lg_u32 s2, 255\ns_cbranch_scc1 {L2}')
    k(f's_mov_b32 s50, {WS_MOD+2*2304}')
    k(f'buffer_store_dwordx4 {Q(mb)}, v{t}, {WS}, s50 offen sc1\nbuffer_store_dwordx4 {Q(mb+12)}, v{t+1}, {WS}, s50 offen sc1')
    mb += 24
    poll(k, modb_loads([2]), modb_chk(1))
    modb_sum(0, None)
    k(f'buffer_store_dwordx4 {Q(mb)}, v{t+2}, {WS}, s50 offen sc1')
    k.label(L2)
    for j in range(9):
        k(f'v_lshlrev_b32 v{xf+2*j}, 16, v{xr+j}\nv_and_b32 v{xf+2*j+1}, 0xffff0000, v{xr+j}')
    LN, LJ = k.lab(), k.lab()
    k(f's_cmp_ge_u32 s{sR}, 20\ns_cbranch_scc1 {LN}')
    for fi in range(15):
        k(f'ds_read_b128 {Q(mf+4*fi)}, v{ad+6} offset:{1024*fi}')
    bar(k, lg=0)
    k(f's_branch {LJ}')
    k.label(LN)
    bar(k, lg=0)
    for fi in range(15):
        k(f'ds_read_b128 {Q(mf+4*fi)}, v{ad+6} offset:{1024*fi}')
    if OPT['ec2'] != 2:
        wait_cue(k, 1, t)
    k.wait(lg=0)
    k.label(LJ)
    if OPT['ec2']:
        poll(k, [f'buffer_load_dword v{t}, v{zl+3}, {WS}, 0 offen sc1'], check_tags(k, [t]), masked=True)
    mark(k, 5)
    zi = ef
    poll(k, [f'buffer_load_dwordx4 {Q(zi+4*i)}, v{la if i<2 else zl}, {WS}, s66 offen offset:{1024*i} sc1' for i in range(3)],
         check_sent(k, [zi, zi + 4, zi + 8], t), masked=True, sleep=OPT['sl2'])
    for i in range(3):
        k(f'ds_write_b128 v{zl+1 if i<2 else zl+2}, {Q(zi+4*i)} offset:{1024*i}')
    mark(k, 6)
    bar(k, lg=0)
    xmark(k, 'p3', 1)
    xmark(k, 'q3', 1)
    for tt in range(3):
        for T in range(4):
            k(f'ds_read_b128 {Q(zf+4*(4*tt+T))}, v{za+T+(4 if tt==2 else 0)} offset:{4096*tt}')

    def twid3(tt):
        c = twi + 2 * tt
        if OPT['tw3'] & 1:
            r = []
            for j in range(4):
                re, im, o = acc + 8 * tt + j, acc + 8 * tt + 4 + j, t + 2 * j
                r.append([f'v_mul_f32 v{o}, v{re}, v{c}', f'v_mul_f32 v{o+1}, v{im}, v{c}',
                          f'v_fma_f32 v{o}, -v{im}, v{c+1}, v{o}', f'v_fmac_f32 v{o+1}, v{re}, v{c+1}',
                          f'v_cvt_pk_bf16_f32 v{ef+4*tt+j}, v{o}, v{o+1}'])
            return sum(r, [])
        r = [[], []]
        for p in range(2):
            re, im, o = acc + 8 * tt + 2 * p, acc + 8 * tt + 4 + 2 * p, t + 4 * p
            r[p] = [f'v_pk_mul_f32 {P(o)}, {P(re)}, {P(c)} op_sel_hi:[1,0]',
                    f'v_pk_mul_f32 {P(o+2)}, {P(im)}, {P(c)} op_sel_hi:[1,0]',
                    f'v_pk_fma_f32 {P(o)}, {P(im)}, {P(c)}, {P(o)} op_sel:[0,1,0] neg_lo:[1,0,0] neg_hi:[1,0,0]',
                    f'v_pk_fma_f32 {P(o+2)}, {P(re)}, {P(c)}, {P(o+2)} op_sel:[0,1,0]',
                    f'v_cvt_pk_bf16_f32 v{ef+4*tt+2*p}, v{o}, v{o+2}',
                    f'v_cvt_pk_bf16_f32 v{ef+4*tt+2*p+1}, v{o+1}, v{o+3}']
        return [r[p][2 * q + i] for q in range(3) for p in range(2) for i in range(2)]
    ya = zf
    s2m = [[f'{MF} {Q(acc+8*tt+4*ri)}, {Q(zf+4*(4*tt+T))}, {Q(F64+8*T+4*(1-ri))}, ' + ('0' if T == 0 else Q(acc + 8 * tt + 4 * ri))
            for T in range(4) for ri in range(2)] for tt in range(3)]
    jm = [[f'{MF} {Q(ya+4*mt)}, {Q(ef+4*tt)}, {Q(mf+4*(3*mt+tt))}, ' + ('0' if tt == 0 else Q(ya + 4 * mt))
           for mt in range(5)] for tt in range(3)]

    def weave(mm, vv, skip, per):
        for i, x in enumerate(mm):
            k(x)
            if i >= skip:
                for y in vv[:per]:
                    k(y)
                vv = vv[per:]
        return vv
    if OPT['tw3'] & 2:
        for x in s2m[0] + s2m[1] + s2m[2] + twid3(0) + twid3(1) + jm[0][:1] + twid3(2) + jm[0][1:] + jm[1] + jm[2]:
            k(x)
    else:
        n = len(twid3(0))
        weave(s2m[0], [], 0, 0)
        xmark(k, 'q3', 2)
        rest = weave(s2m[1], twid3(0), 4, 2)
        rest = weave(s2m[2], rest + twid3(1), 0, 2)
        xmark(k, 'q3', 3)
        for x in rest[:max(0, len(rest) - n)]:
            k(x)
        rest = weave(jm[0], rest[max(0, len(rest) - n):] + twid3(2), 0, 2)
        for x in rest[:max(0, len(rest) - n)]:
            k(x)
        rest = weave(jm[1], rest[max(0, len(rest) - n):], 0, 2)
        for x in rest + jm[2]:
            k(x)
        xmark(k, 'q3', 4)
    pos = {0: 0, 2: 2, 1: 4, 3: 6, 4: 8, 6: 10, 5: 12, 7: 14, 8: 16}

    def vec_reads(dst, va, vb, o):
        r = []
        for j in (0, 1, 4, 5):
            e = o // 256 + j
            r.append(f'ds_read2st64_b64 {Q(dst+pos[j])}, v{vb if e & 1 else va} offset0:{e//2} offset1:{e//2+1}')
        return r + [f'ds_read_b64 {P(dst+16)}, v{va} offset:{o+2048}']
    ga, cb, sb = F64, acc, mf
    for x in vec_reads(ga, ad + 4, a576, 0):
        k(x)
    for mt in range(5):
        k(f'ds_write_b128 v{ad+1 if mt<4 else ad}, {Q(ya+4*mt)} offset:{512*mt}')
    for x in vec_reads(cb, ad + 4, a576, 4608) + vec_reads(sb, ad + 4, a576, 2304):
        k(x)
    k.wait(lg=10)
    xmark(k, 'p3', 2)
    xmark(k, 'q3', 5)
    k('s_barrier')
    xmark(k, 'p3', 3)
    for j in range(9):
        k(f'ds_read_b64 {P(yf+2*j)}, v{ad+2} offset:{256*j}')
    k(f'''s_mul_i32 s48, s{sS2}, 9216
    s_lshl_b32 s49, s{sW}, 10
    s_add_u32 s48, s48, s49
    s_add_u32 s48, s48, {WS_H2}
    s_add_u32 s49, s48, 4096
    s_add_u32 s50, s48, 8192''')
    u = t + 6
    for j in range(9):
        k(f'v_pk_fma_f32 {P(xf+2*j)}, {P(yf+2*j)}, {P(ga+pos[j])}, {P(xf+2*j)}')
    stats(k, xf, u)
    for j in range(9):
        k(f'v_pk_fma_f32 {P(yf+2*j)}, {P(xf+2*j)}, {P(u+2)}, {P(u)} op_sel_hi:[1,0,0]')
    for j in range(9):
        k(f'v_pk_fma_f32 {P(yf+2*j)}, {P(yf+2*j)}, {P(cb+pos[j])}, {P(sb+pos[j])}')
    stats(k, yf, u)
    for j in range(9):
        k(f'v_pk_fma_f32 {P(yf+2*j)}, {P(yf+2*j)}, {P(u+2)}, {P(u)} op_sel_hi:[1,0,0]')
        k(f'v_cvt_pk_bf16_f32 v{xr+j}, v{yf+2*j}, v{yf+2*j+1}')
        if j & 1:
            k(f'ds_write2_b32 v{ad+3}, v{xr+j-1}, v{xr+j} offset0:{32*j-32} offset1:{32*j}')
    k(f'ds_write_b32 v{ad+3}, v{xr+8} offset:1024')
    k.wait(lg=0)
    xmark(k, 'p3', 4)
    k('s_barrier')
    xmark(k, 'p3', 5)
    for i in range(3):
        o = acc + 4 * i
        k(f'ds_read_b64_tr_b16 {P(o)}, v{ad+5} offset:{512*i}')
        k(f'ds_read_b64_tr_b16 {P(o+2)}, v{ad+5} offset:{512*i+4*XROW}')
    for i in range(2):
        k(f'buffer_store_dwordx4 {Q(acc+4*i)}, v{la}, {WS}, s{48+i} offen sc1')
    L1 = k.lab()
    k.wait(lg=0)
    k(f's_cmp_lg_u32 s{sW}, 0\ns_cbranch_scc1 {L1}')
    k(f'buffer_store_dwordx4 {Q(acc+8)}, v{la}, {WS}, s50 offen sc1')
    k.label(L1)
    mark(k, 7)
    for j in range(9):
        k(f'v_cvt_pk_bf16_f32 v{xr+j}, v{xf+2*j}, v{xf+2*j+1}')
    for j in range(0, 8, 2):
        k(f'ds_write2_b32 v{ad+7}, v{xr+j}, v{xr+j+1} offset0:{32*j} offset1:{32*j+32}')
    k(f'ds_write_b32 v{ad+7}, v{xr+8} offset:1024')
    bar(k, lg=0)
    V.p = base
    la2 = V(); t = V(8); vA0 = V(); vA40 = V(); vW0 = V(2); vA = V(); vA4 = V(); vW = V(2)
    fa = V(48, 4); fw = V(16, 4); rg = V(96, 4)
    V.p = 204
    acc = V(48, 4)

    def w_read_addr(extra):
        k(f'''v_lshrrev_b32 v{t}, 2, v0
        v_and_b32 v{t+1}, 7, v{t}
        s_lshl_b32 s59, s{sW}, 1
        s_add_u32 s59, s59, {extra}
        v_xor_b32 v{t+1}, s59, v{t+1}
        v_xor_b32 v{t+2}, 1, v{t+1}
        v_and_b32 v{t+3}, 3, v0
        v_lshlrev_b32 v{t+3}, 3, v{t+3}
        v_lshl_add_u32 v{t}, v{t}, 8, v{t+3}
        v_lshl_add_u32 v{vW0}, v{t+1}, 5, v{t}
        v_lshl_add_u32 v{vW0+1}, v{t+2}, 5, v{t}''')
    LN, LJ = k.lab(), k.lab()
    k(f's_cmp_ge_u32 s{sR}, 27\ns_cbranch_scc1 {LN}')
    w_read_addr(0)
    rg1 = [rg + 16 * x for x in range(6)]
    for x in preload_w(vW0, vW, list(enumerate(rg1))):
        k(x)
    if OPT['rf']:
        bar(k, lg=0)
    bar(k, 0, 0)
    nx = len(reg_stages(0)) - 6
    rgx = [188, fa + 24][:nx]
    k(f'''v_mul_u32_u24 v{vA0}, 1536, v2
    v_lshl_add_u32 v{vA0}, v1, 4, v{vA0}
    v_add_u32 v{vA0}, {L_ACT}, v{vA0}''')
    for nt in range(2):
        for p in range(2):
            a = acc + 4 * nt + 2 * p
            k(f'v_lshlrev_b32 v{a}, 16, v{bb+2*nt+p}\nv_and_b32 v{a+1}, 0xffff0000, v{bb+2*nt+p}')
    for mt in range(1, 6):
        for i in range(0, 8, 2):
            k(f'v_mov_b64 {P(acc+8*mt+i)}, {P(acc+i)}')
    if nx:
        k('s_barrier')
        for x in preload_w(vW0, vW, list(enumerate(rgx))):
            k(x)
        bar(k, lg=0)
    tag(k, 'touch c2')
    tag(k, 'region c2')
    gemm_c(k, 6, 32, 5, 12288, vA0, None, vW0, vW, fa, fw, acc, rg1 + rgx, reg_stages(0), True, at_end=lambda: k('s_barrier'),
           single=nx == 2 or OPT['single'], slot0=nx)
    mark(k, 8)
    k(f'''s_lshl_b32 s48, s51, 2
    s_add_u32 s48, s48, s{sW}
    s_mul_i32 s48, s48, {4*9216}
    s_mul_i32 s49, s52, {96*16}
    s_add_u32 s48, s48, s49
    s_add_u32 s48, s48, {WS_U}
    v_mul_u32_u24 v{vA}, 9216, v2
    v_lshl_add_u32 v{vA}, v1, 4, v{vA}
    s_mov_b32 s60, {f32(-2*0.7978845608028654*0.044715*1.4426950408889634)}
    v_mov_b32 v{bb}, {f32(-2*0.7978845608028654*1.4426950408889634)}''')
    for mt in range(6):
        q = fa + 8 * (mt & 1)
        o = fw + 4 * (mt & 1)
        a = acc + 8 * mt
        for i in range(0, 8, 2):
            k(f'v_pk_mul_f32 {P(q+i)}, {P(a+i)}, {P(a+i)}')
        for i in range(0, 8, 2):
            k(f'v_pk_fma_f32 {P(q+i)}, {P(q+i)}, s[60:61], {P(bb)} op_sel_hi:[1,0,0]')
        for i in range(0, 8, 2):
            k(f'v_pk_mul_f32 {P(q+i)}, {P(q+i)}, {P(a+i)}')
        for i in range(8):
            k(f'v_exp_f32 v{q+i}, v{q+i}')
        for i in range(0, 8, 2):
            k(f'v_pk_add_f32 {P(q+i)}, {P(q+i)}, 1.0 op_sel_hi:[1,0]')
        for i in range(8):
            k(f'v_rcp_f32 v{q+i}, v{q+i}')
        for i in range(0, 8, 2):
            k(f'v_pk_mul_f32 {P(q+i)}, {P(q+i)}, {P(a+i)}')
        for i in range(4):
            k(f'v_cvt_pk_bf16_f32 v{o+i}, v{q+2*i}, v{q+2*i+1}')
        k(f'buffer_store_dwordx4 {Q(o)}, v{vA}, {WS}, s48 offen offset:{256*mt} sc1')
    mark(k, 9)
    k(f's_branch {LJ}')
    tag(k, 'region -')
    k.label(LN)
    k.fresh()
    bar(k, 0)
    srd(k, 40, pW1, S * F * 2)
    srd(k, 44, pW2, S * F * 2)
    k(f'''s_mul_i32 s56, s{sW}, 5
    s_add_u32 s56, s56, s{sR}
    s_sub_u32 s56, s56, 27
    s_add_u32 s57, s56, {OPT['pf2'] + 10*OPT['pf3'] + 27*OPT['pf7']}
    s_add_u32 s56, s56, {OPT['pf9']}''')
    pf_loop(k, 1, 57, 20, 32 * OPT['nl'], t, 40)
    pf_loop(k, 2, 56, 20, min(OPT['pf5'], 288 - 2 * leaders(1)[1] * OPT['pf8'] - 2 * leaders(0)[1] * OPT['pf4']), t + 4, 44)
    k.wait(0)
    mark(k, 9)
    bar(k, 0)
    tag(k, 'region c2')
    tag(k, 'target')
    k.label(LJ)
    k('s_lshr_b32 s58, s53, 1')
    w_read_addr('s58')
    k('s_barrier')
    xmark(k, 'h4', 1)
    for x in preload_w(vW0, vW, [((2 + x) % 6, rg1[x]) for x in range(6)]):
        k(x)
    k.wait(lg=0)
    if OPT['rf2']:
        k('s_barrier')
    xmark(k, 'h4', 2)
    bar(k, 0)
    xmark(k, 'h4', 3)
    vAo, vA4g, vAx, og4 = vA0, vA40, vA, vA4
    accf = lambda mt, nt: (188 + 4 * (2 * mt + nt)) if 2 * mt + nt < 17 else 64
    og = 68
    park = rg1[0]
    sx = park + 32
    rx = sx
    gb = sx + 36
    x1 = fa
    qf = fa + 16
    sm = sx + 12
    assert gb + 20 <= 188 and OPT['defer'] <= 4
    oa = bb
    k(f'''s_and_b32 s58, s53, 1
    s_mul_i32 s48, s58, 1280
    s_sub_u32 s49, 1280, s48
    v_mul_u32_u24 v{t}, 2304, v2
    v_add_u32 v{t}, {L_ACT2}, v{t}
    v_lshl_add_u32 v{t+2}, v1, 4, v{t}
    v_add_u32 v{vAo}, s48, v{t+2}
    v_add_u32 v{vAx}, s49, v{t+2}
    s_lshl_b32 s48, s58, 3
    v_xor_b32 v{t+1}, s48, v1
    v_lshl_add_u32 v{vA4g}, v{t+1}, 4, v{t}
    v_add_u32 v{vA4g}, 1024, v{vA4g}
    v_lshlrev_b32 v{la2}, 4, v0''')
    k(f'v_lshlrev_b32 v{b2}, 16, v{b2}\nv_cmp_gt_u32 vcc, 32, v0\nv_cndmask_b32 v{t}, 0, v{b2}, vcc')
    for mt in range(9):
        for nt in range(2):
            a = accf(mt, nt)
            if nt == 0 and mt <= 4:
                for i in range(4):
                    k(f'v_mov_b32 v{a+i}, v{b2 if mt < 4 else t}')
            else:
                k(f'v_mov_b64 {P(a)}, 0\nv_mov_b64 {P(a+2)}, 0')
    srd(k, 44, pOUT, S * D * 2)
    k(f'''s_mul_i32 s48, s{sW}, {16*144}
    s_add_u32 s48, s48, {L_X1}
    v_mul_u32_u24 v{t}, 144, v1
    v_lshl_add_u32 v{t}, v2, 3, v{t}
    v_add_u32 v{t}, s48, v{t}
    v_add_u32 v{oa+3}, s48, v{la2}
    s_lshl_b32 s49, s58, 4
    v_add_u32 v{oa}, s49, v{t}
    s_lshl_b32 s49, s58, 7
    s_sub_u32 s49, 128, s49
    v_add_u32 v{t}, s49, v{t}
    v_cmp_gt_u32 vcc, 32, v0
    v_mov_b32 v{t+1}, {L_GB + 512}
    v_cndmask_b32 v{oa+1}, v{t+1}, v{t}, vcc
    v_lshlrev_b32 v{t}, 4, v2
    v_add_u32 v{t}, {L_GB}, v{t}
    s_lshl_b32 s49, s58, 5
    v_add_u32 v{oa+2}, s49, v{t}
    s_lshl_b32 s49, s58, 8
    s_sub_u32 s49, 256, s49
    v_add_u32 v{og4}, s49, v{t}
    s_lshl_b32 s48, s59, 4
    s_lshl_b32 s49, s54, 7
    s_add_u32 s48, s48, s49
    s_mul_i32 s48, s48, 1152
    s_mul_i32 s49, s55, 288
    s_add_u32 s62, s48, s49
    s_mul_i32 s49, s58, 144
    s_add_u32 s62, s62, s49''')
    for i in range(3):
        k(f'''v_add_u32 v{t}, {64*i}, v0
        v_mul_u32_u24 v{t+1}, 911, v{t}
        v_lshrrev_b32 v{t+1}, 13, v{t+1}
        v_mul_u32_u24 v{t+1}, {1152-144}, v{t+1}
        v_lshl_add_u32 v{og+i}, v{t}, 4, v{t+1}''')
    k(f'''v_cmp_gt_u32 vcc, 16, v0
    v_mov_b32 v{t+1}, {OOB}
    v_cndmask_b32 v{og+2}, v{t+1}, v{og+2}, vcc
    s_mul_i32 s48, s{sW}, {XW}
    s_add_u32 s48, s48, {WS_XCH}
    s_mul_i32 s64, s2, {XB}
    s_add_u32 s64, s64, s48
    v_and_b32 v{t}, 3, v0
    v_cmp_eq_u32 vcc, 0, v{t}
    v_lshlrev_b32 v27, 2, v0
    v_cndmask_b32 v26, v{t+1}, v27, vcc
    s_mul_i32 s49, s{sW}, {2*XW}
    s_add_u32 s49, s49, {L_S}
    v_add_u32 v71, s49, v{la2}
    v_mov_b64 {P(72)}, -1''')
    for x in range(1, 4):
        k(f'''s_xor_b32 s{64+x}, s2, {2*x}
        s_mul_i32 s{64+x}, s{64+x}, {XB}
        s_add_u32 s{64+x}, s{64+x}, s48
        s_add_u32 s{64+x}, s{64+x}, {XM*(x-1)}''')
    cue = OPT['xcue']
    assert not cue
    if cue:
        k(f'''v_cmp_gt_u32 vcc, 8, v0
        v_cndmask_b32 v27, v{t+1}, v{la2}, vcc
        s_lshl_b32 s48, s{sW}, 7
        s_add_u32 s48, s48, {WS_XCUE}
        s_mul_i32 s61, s2, 1536
        s_add_u32 s61, s61, s48''')
        for x, r in ((1, 56), (2, 57), (3, 60)):
            k(f'''s_xor_b32 s{r}, s2, {2*x}
            s_mul_i32 s{r}, s{r}, 1536
            s_add_u32 s{r}, s{r}, s48
            s_add_u32 s{r}, s{r}, {512*(x-1)}''')
    mbox = [f'buffer_load_dwordx4 {Q(rx+4*c)}, v{la2}, {WS}, s64 offen offset:{1024*c} sc1' for c in range(2)] + \
           [f'buffer_load_dword v{rx+8}, v27, {WS}, s64 offen offset:2048 sc1']
    sel = fw

    def g2_end():
        xmark(k, 'x', 2)
        k('s_barrier')
        xmark(k, 'x', 3)
        for mt in range(4):
            k(f'ds_read_b64 {P(x1+2*mt)}, v{oa} offset:{32*mt}\nds_read_b128 {Q(gb+4*mt)}, v{oa+2} offset:{64*mt}')
        k(f'ds_read_b64 {P(x1+8)}, v{oa+1}\nds_read_b128 {Q(gb+16)}, v{og4}')

    def message(x, nt, rows, r8):
        b, r = sx + 12 * (x - 1), list(r8)
        r += [f'v_mov_b32_dpp v{b+8+j}, v{b+8} quad_perm:[{j},{j},{j},{j}] row_mask:0xf bank_mask:0xf' for j in (1, 2, 3)]
        for c in range(2):
            for i in range(4):
                a = accf(rows[2 * c + (i >> 1)], nt) + 2 * (i & 1)
                r.append(f'v_cvt_pk_bf16_f32 v{b+4*c+i}, v{a}, v{a+1}')
            r.append(f'buffer_store_dwordx4 {Q(b+4*c)}, v{la2}, {WS}, s{64+x} offen offset:{1024*c} sc1')
        r.append(f'buffer_store_dwordx4 {Q(b+8)}, v26, {WS}, s{64+x} offen offset:2048 sc1')
        if cue:
            r.append(f'buffer_store_dwordx4 {Q(t+4)}, v27, {WS}, s{(56, 57, 60)[x-1]} offen sc1')
        return r

    def split4(nt, own, other):
        a = accf(4, nt)
        return [f'v_cvt_pk_bf16_f32 v{own}, v{a}, v{a+1}', f'v_cvt_pk_bf16_f32 v{other}, v{a+2}, v{a+3}',
                f'v_permlane32_swap_b32 v{own}, v{other}']

    def send_bc():
        if OPT.get('mk') != 'p1':
            mark(k, 10)
        if cue:
            for i in range(4):
                k(f'v_mov_b32 v{t+4+i}, v{vTAG}')
        s4 = split4(1, sx + 12 + 8, sx + 24 + 8)
        return message(3, 1, [5, 6, 7, 8], s4) + message(2, 1, [0, 1, 2, 3], [])

    def selectors():
        z, u = sel, t
        return [f'v_lshrrev_b32 v{u}, 2, v1', f'v_and_b32 v{u+1}, 1, v1', f'v_lshlrev_b32 v{u+1}, 4, v{u+1}',
                f'v_mov_b32 v{u+2}, 0x3f80', f'v_lshlrev_b32 v{u+1}, v{u+1}, v{u+2}',
                f'v_and_b32 v{u+2}, 2, v1', f'v_add_u32 v{u+3}, v{u}, v{u+2}',
                f'v_cmp_eq_u32 vcc, v{u}, v2', f'v_cndmask_b32 v{z+4}, 0, v{u+1}, vcc',
                f'v_cmp_eq_u32 vcc, v{u+3}, v2', f'v_cndmask_b32 v{z}, 0, v{u+1}, vcc',
                f'v_cmp_gt_u32 vcc, 8, v1', f'v_cndmask_b32 v{z}, 0, v{z}, vcc',
                f'v_cmp_eq_u32 vcc, 0, v{u+2}', f'v_cndmask_b32 v{z+5}, v{z+4}, 0, vcc', f'v_cndmask_b32 v{z+4}, 0, v{z+4}, vcc',
                f'v_mov_b32 v{z+1}, v{z}', f'v_mov_b64 {P(z+2)}, 0', f'v_mov_b64 {P(z+6)}, 0']
    send_a = lambda: (xmark(k, 'x', 1), message(1, 0, [5, 6, 7, 8], split4(0, t + 3, sx + 8)) + selectors())[1]
    tag(k, 'touch c3')
    tag(k, 'region c3')
    fill, drain = {}, None
    if OPT['xc'] == 3:
        c0, cn = OPT['xclr']
        k(f'''v_mov_b64 {P(74)}, -1
        s_mul_i32 s63, s2, {XB}
        s_lshl_b32 s48, s{sW}, 10
        s_add_u32 s63, s63, s48
        s_add_u32 s63, s63, {WS_XCH}
        s_cmp_eq_u32 s{sW}, 3
        s_cselect_b32 s56, {5*4096}, {6*4096}'''.replace('s_cselect_b32 s56, 20480, 24576', 's_cselect_b32 s56, 4096, 0\ns_sub_u32 s56, 24576, s56'))
        for x in range(7):
            q = 2 * c0 + x * 2 * cn // 7
            so = f's_add_u32 s57, s63, {4096*x}' if x < 6 else 's_add_u32 s57, s63, s56'
            fill.setdefault(q, []).extend([so, f'buffer_store_dwordx4 {Q(72)}, v{la2}, {WS}, s57 offen sc1'])
        drain = 2 * OPT['xrdy'][0]
    gemm2_c(k, vAo, vAx, vA4g, vW0, vW, fa, fw, accf, rg1, reg_stages(1), OPT['defer'], send_bc, send_a, g2_end, fill, drain)

    def add_message(q0, th):
        for i in range(4):
            a = accf(i, 0)
            k(f'{MF} {Q(a)}, {Q(sel + (4 if i % 2 == 0 else 2))}, {Q(q0 + 4*(i >> 1))}, {Q(a)}')
        if th is not None:
            a = accf(4, 0)
            k(f'{MF} {Q(a)}, {Q(sel)}, {Q(th)}, {Q(a)}')
    k(f's_mul_i32 s49, s{sW}, {2*XW}\ns_add_u32 s49, s49, {L_S}\nv_add_u32 v73, s49, v27')
    for i in range(10):
        k(f'v_lshlrev_b32 v{qf+2*i}, 16, v{x1+i}\nv_and_b32 v{qf+2*i+1}, 0xffff0000, v{x1+i}')
    xmark(k, 'x', 4)
    k.wait(0)
    if OPT.get('mk') != 'p1':
        mark(k, 11)
    if cue == 1:
        k(f'v_mov_b32 v{t}, 0')
        poll(k, [f'buffer_load_dword v{t+1}, v{t}, {WS}, s61 offen sc1'], check_tags(k, [t + 1]), sleep=OPT['xsl'])
    k(f'v_mov_b32 v{rx+9}, 0\nv_mov_b64 {P(rx+10)}, 0\nv_mov_b64 {P(rx+22)}, 0')
    for l in mbox:
        k(l)
    k('s_barrier')
    xmark(k, 'x', 5)
    for x in range(2):
        for c in range(2):
            k(f'ds_read_b128 {Q(rx+12*(x+1)+4*c)}, v71 offset:{XW*x+1024*c}')
    k(f'ds_read_b32 v{rx+20}, v73 offset:2048\nds_read_b32 v{rx+21}, v73 offset:{XW+2048}')
    add_message(rx + 12, None)
    add_message(rx + 24, rx + 20)
    k.wait(0)
    L1 = k.lab()
    sent = check_sent(k, [rx, rx + 4, rx + 8], t)
    sent()
    k(f's_cbranch_vccz {L1}')
    poll(k, mbox, sent, masked=True)
    k.label(L1)
    xmark(k, 'x', 6)
    add_message(rx, rx + 8)
    for mt in (0, 1, 2, 3, 4):
        q, a = qf + 4 * mt, accf(mt, 0)
        for p in range(2):
            k(f'v_pk_fma_f32 {P(q+2*p)}, {P(a+2*p)}, {P(gb+4*mt+2*p)}, {P(q+2*p)}')
        for p in range(2):
            k(f'v_cvt_pk_bf16_f32 v{x1+2*mt+p}, v{q+2*p}, v{q+2*p+1}')
        k(f'ds_write_b64 v{oa}, {P(x1+2*mt)} offset:{32*mt}' if mt < 4 else f'ds_write_b64 v{oa+1}, {P(x1+8)}')
    xmark(k, 'x', 7)
    so = gb
    for i in range(3):
        k(f'ds_read_b128 {Q(so+4*i)}, v{oa+3} offset:{1024*i}')
    for i in range(3):
        k(f'buffer_store_dwordx4 {Q(so+4*i)}, v{og+i}, s[44:47], s62 offen {OPT["outflag"]}')
    k('s_branch L_end')


def gen_H(k):
    V = Alloc(4, 256)
    t = V(12); la = V(); fl = V(3, 1); wa = V(3, 1); sa_ = V(3, 1); c0 = V(2); mo = V(4); ones = V(4, 4)
    ld = V(16, 4); Fa = V(8, 4); Fai = V(8, 4); Fb = V(32, 4); Fbi = V(32, 4)
    wv = V(32, 4); acc = V(32, 4); pk = V(16, 4); a0 = V(); a1 = V(); a2 = V(); a3 = V(); a4 = V(); a5 = V(); g4 = V(); lf = V(); dum = V(4); wp = V(16, 4)
    g = acc
    k(f'v_lshlrev_b32 v{la}, 4, v0\nv_mov_b32 v{mo+2}, {OOB}\nv_mov_b32 v{t+8}, {OOB}\nv_mov_b32 v{fl+1}, {OOB}')
    k(f'''s_sub_u32 s63, 255, s2
    s_mul_i32 s62, s63, 171
    s_lshr_b32 s62, s62, 9
    s_mul_i32 s48, s62, 3
    s_sub_u32 s61, s63, s48''')

    def skip_unless(reg, val, op='lg'):
        L = k.lab()
        k(f's_cmp_{op}_u32 s{reg}, {val}\ns_cbranch_scc1 {L}')
        k.cond += 1
        return L

    def endif(L):
        k.cond -= 1
        k.label(L)

    def mod_addr(urgent, part=3):
        if part & 1:
            k(f'''v_lshrrev_b32 v{t}, 3, v0
        v_and_b32 v{t+1}, 7, v0
        v_and_b32 v{t+2}, 6, v{t}
        v_xor_b32 v{t+1}, v{t+1}, v{t+2}
        v_mul_u32_u24 v{t}, 6912, v{t}
        v_lshl_add_u32 v{t+8}, v{t+1}, 4, v{t}
        s_lshl_b32 s48, s61, 2
        s_add_u32 s48, s48, s{sW}
        s_mul_i32 s48, s48, {(48 if urgent else 72)*6912}
        s_lshl_b32 s49, s62, 7
        s_add_u32 s47, s48, s49
        s_lshl_b32 s50, s{sW}, 8
        v_lshl_add_u32 v{c0+1}, v0, 2, s50
        s_mul_i32 s49, s61, {384 if urgent else 576}
        v_add_u32 v{t+5}, s49, v{c0+1}
        v_add_u32 v{t+8}, s47, v{t+8}''')
        if not part & 2:
            return
        k(f'''v_lshrrev_b32 v{t}, 2, v0
        v_bfe_u32 v{t+1}, v{t}, 1, 2
        v_xor_b32 v{t+1}, s{sW}, v{t+1}
        v_lshlrev_b32 v{t+1}, 5, v{t+1}
        v_lshlrev_b32 v{t}, 7, v{t}
        v_and_b32 v{t+2}, 3, v0
        v_lshlrev_b32 v{t+2}, 3, v{t+2}
        v_add3_u32 v{mo}, v{t}, v{t+1}, v{t+2}
        v_lshlrev_b32 v{mo+1}, 3, v2
        v_add_u32 v{mo+1}, {L_SILU}, v{mo+1}''')
        if urgent:
            k(f'''s_mul_i32 s48, s{sW}, 3456
            s_mul_i32 s49, s61, 1152
            s_add_u32 s48, s48, s49
            s_lshl_b32 s49, s62, 6
            s_add_u32 s48, s48, s49
            s_add_u32 s48, s48, {WS_MODG}
            v_mul_u32_u24 v{t}, 13824, v2
            v_lshl_add_u32 v{t}, v1, 2, v{t}
            v_add_u32 v{mo+2}, s48, v{t}
            v_add_u32 v{mo+3}, {4*13824}, v{mo+2}''')
        else:
            k(f'''s_mul_i32 s49, s61, 9216
            s_lshl_b32 s50, s62, 8
            s_add_u32 s49, s49, s50
            s_lshl_b32 s50, s{sW}, 6
            s_add_u32 s49, s49, s50
            s_add_u32 s49, s49, {WS_MODB - 18*256}
            v_lshl_add_u32 v{t}, v1, 2, s49
            v_cmp_gt_u32 vcc, 16, v0
            v_mov_b32 v{t+1}, {OOB}
            v_cndmask_b32 v{mo+2}, v{t+1}, v{t}, vcc''')

    def mod_loads(n, i0, i1):
        if i0 == 0:
            k(f's_mul_i32 m0, s{sW}, {1024*n}\ns_mov_b32 s59, 0')
        for i in range(i0, i1):
            k(f'buffer_load_dwordx4 v{t+8}, s[40:43], s59 offen lds')
            if i < n - 1:
                k(f's_add_u32 m0, m0, 1024\ns_add_u32 s59, s59, {8*6912}')

    def c_load():
        srd(k, 44, pC, D * 2)
        k(f'buffer_load_dword v{c0}, v{t+5}, s[44:47], 0 offen')

    def mod_silu():
        k(f'''v_lshlrev_b32 v{t}, 16, v{c0}
        v_and_b32 v{t+1}, 0xffff0000, v{c0}
        v_mul_f32 v{t+2}, {f32(-1.4426950408889634)}, v{t}
        v_mul_f32 v{t+3}, {f32(-1.4426950408889634)}, v{t+1}
        v_exp_f32 v{t+2}, v{t+2}
        v_exp_f32 v{t+3}, v{t+3}
        v_add_f32 v{t+2}, 1.0, v{t+2}
        v_add_f32 v{t+3}, 1.0, v{t+3}
        v_rcp_f32 v{t+2}, v{t+2}
        v_rcp_f32 v{t+3}, v{t+3}
        v_mul_f32 v{t}, v{t}, v{t+2}
        v_mul_f32 v{t+1}, v{t+1}, v{t+3}
        v_cvt_pk_bf16_f32 v{c0}, v{t}, v{t+1}
        v_add_u32 v{c0+1}, {L_SILU}, v{c0+1}
        ds_write_b32 v{c0+1}, v{c0}''')

    def mod_compute(urgent):
        c = k.cond
        k.cond = 0
        k.lg = []
        n = 6 if urgent else 9
        g = wv
        for stp in range(n):
            a = g + stp * 8
            k(f'''ds_read_b64_tr_b16 {P(a)}, v{mo} offset:{stp*4096}
            ds_read_b64_tr_b16 {P(a+2)}, v{mo} offset:{stp*4096+2048}
            ds_read2_b64 {Q(a+4)}, v{mo+1} offset0:{stp*8} offset1:{stp*8+4}''')
        k(f'v_and_b32 v{t}, 3, v1\nv_or_b32 v{t}, 0x07060500, v{t}')
        for stp in range(n):
            a = g + stp * 8
            k(f'{MF} {Q(ld)}, {Q(a+4)}, {Q(a)}, ' + ('0' if stp == 0 else Q(ld)))
        k(f'v_add_u32 v{ld+4}, 0x80, v{ld}\nv_perm_b32 v{ld+4}, v{ld+4}, v{vTAG}, v{t}')
        k.cond = c
        if urgent:
            k.wait(OPT['warm'])
        for a in range(OPT['nm'] if urgent else 1):
            k(f's_mov_b32 s48, {a*0x20000}')
            for i in range(2 if urgent else 1):
                k(f'buffer_store_dword v{ld+4}, v{mo+2+i}, {WS}, s48 offen sc1')

    def wp_addr():
        k(f'''s_lshl_b32 s67, s{sJ}, 4
        s_add_u32 s67, s67, s{sR}
        s_and_b32 s67, s67, 127
        s_lshl_b32 s48, s{sW}, 9
        s_add_u32 s48, s48, s67
        s_mul_i32 s69, s{sW}, 6144
        s_add_u32 s69, s69, {L_WST}
        s_cmp_eq_u32 s67, 0
        s_cselect_b32 s68, 38, 0
        s_add_u32 s68, s68, 152
        v_mov_b32 v{t+4}, {OOB}''')
        for i in range(3):
            k(f'''v_add_u32 v{t}, {64*i}, v0
            v_mul_u32_u24 v{t+1}, 1725, v{t}
            v_lshrrev_b32 v{t+1}, 16, v{t+1}
            v_mul_u32_u24 v{t+2}, 38, v{t+1}
            v_sub_u32 v{t+2}, v{t}, v{t+2}
            v_cmp_gt_u32 vcc, s68, v{t}
            v_lshl_add_u32 v{t+1}, v{t+1}, 7, s48
            v_and_b32 v{t+1}, 2047, v{t+1}
            v_mul_u32_u24 v{t+1}, 578, v{t+1}
            v_and_b32 v{t+1}, 0xfffffff0, v{t+1}
            v_lshl_add_u32 v{t+1}, v{t+2}, 4, v{t+1}
            v_cndmask_b32 v{wa+i}, v{t+4}, v{t+1}, vcc''')

    def wp_gather():
        k(f'''s_lshl_b32 s48, s67, 1
        s_and_b32 s48, s48, 15
        s_add_u32 s48, s48, s69
        v_and_b32 v{t}, 1, v2
        v_lshrrev_b32 v{t+1}, 1, v2
        v_mul_u32_u24 v{t+2}, 144, v{t}
        v_mad_u32_u24 v{t+2}, v1, 9, v{t+2}
        v_add_lshl_u32 v{t+2}, v{t+2}, v{t+1}, 1
        v_add_u32 v{wa}, s48, v{t+2}
        s_cmp_eq_u32 s67, 0
        s_cselect_b32 s49, 608, 0
        s_add_u32 s48, s48, s49
        s_add_u32 s48, s48, {576-8}
        v_sub_u32 v{wa+1}, s48, v{t+2}
        v_lshl_add_u32 v{t}, v{t+1}, 5, v{t}
        v_lshlrev_b32 v{t}, 14, v{t}
        v_lshl_add_u32 v{sa_}, v1, 4, v{t}
        v_add_u32 v{sa_+1}, {64<<14}, v{sa_}
        v_add_u32 v{sa_+2}, {128<<14}, v{sa_}
        v_cmp_gt_u32 vcc, 32, v0
        v_mov_b32 v{t+4}, {OOB}
        v_cndmask_b32 v{sa_+2}, v{t+4}, v{sa_+2}, vcc
        s_lshl_b32 s48, s67, 2
        s_add_u32 s48, s48, s{sW}
        s_lshl_b32 s48, s48, 4
        s_add_u32 s48, s48, {WS_FLAG}
        v_writelane_b32 v{fl+1}, s48, 0''')
        if OPT['warm']:
            k(f'buffer_load_dword v{dum+2}, v{fl+1}, {WS}, 0 offen')
        for refl in range(2):
            if refl == 0:
                k(f's_mov_b32 s48, s67\ns_mov_b32 s49, s{sW}')
            else:
                k(f's_sub_u32 s48, 128, s67\ns_and_b32 s48, s48, 127\ns_sub_u32 s49, 3, s{sW}')
            k(f'''s_and_b32 s50, s48, 7
            s_lshr_b32 s48, s48, 3
            s_lshl_b32 s58, s50, 16
            s_lshl_b32 s59, s48, 10
            s_add_u32 s58, s58, s59
            s_lshl_b32 s59, s49, 8
            s_add_u32 s58, s58, s59
            s_add_u32 s{56+refl}, s58, {WS_WP + refl*(2<<14)}''')

    def wp_run():
        c = k.cond
        k.cond = 0
        k.lg = []
        g = wv
        for refl in range(2):
            for i in range(3):
                r = g + 24 * refl + 8 * i
                for j in range(4):
                    o = 608 * j + 4 * i if refl == 0 else 608 * (3 - j) + 8 - 4 * i
                    k(f'ds_read_u16 v{r+j}, v{wa+refl} offset:{o}\nds_read_u16 v{r+4+j}, v{wa+refl} offset:{3072+o}')
        k.cond = c
        for refl in range(2):
            for i in range(3):
                r = g + 24 * refl + 8 * i
                for j in range(4):
                    k(f'v_lshl_or_b32 v{r+j}, v{r+4+j}, 16, v{r+j}')
                for j in range(4 * refl):
                    k(f'v_xor_b32 v{r+j}, 0x80000000, v{r+j}')
                k(f'buffer_store_dwordx4 {Q(r)}, v{sa_+i}, {WS}, s{56+refl} offen sc1')

    def wp_loads():
        srd(k, 52, pWR, S * 578)
        srd(k, 56, pWI, S * 578)
        for arr in range(2):
            for i in range(3):
                k(f's_add_u32 m0, s69, {3072*arr+1024*i}')
                k(f'buffer_load_dwordx4 v{wa+i}, s[{52+4*arr}:{55+4*arr}], 0 offen lds')

    def flag_addr():
        k(f'''s_lshr_b32 s51, s{sR}, 2
        s_lshl_b32 s51, s51, 3
        s_add_u32 s51, s51, s{sJ}
        s_and_b32 s60, s{sR}, 3
        s_lshl_b32 s35, s51, 2
        s_add_u32 s35, s35, s60
        s_lshl_b32 s35, s35, 14
        s_bfe_u32 s48, s{sS2}, 0x20002
        s_lshl_b32 s48, s48, 6
        s_lshr_b32 s49, s{sS2}, 4
        s_lshl_b32 s49, s49, 2
        s_add_u32 s48, s48, s49
        s_and_b32 s49, s{sS2}, 3
        s_add_u32 s48, s48, s49
        s_lshl_b32 s48, s48, {OPT['fs']}
        s_lshl_b32 s49, s{sW}, 16
        s_add_u32 s48, s48, s49
        s_add_u32 s48, s48, {WS_FL2}
        v_mov_b32 v{fl}, {OOB}''')
        for a in range(OPT['na']):
            k(f'v_writelane_b32 v{fl}, s48, {a}\ns_add_u32 s48, s48, 16384')
        k(f'''s_add_u32 s48, s2, 160
        s_lshl_b32 s48, s48, 7
        s_add_u32 s48, s48, {WS_CUE+0x8000}
        s_lshl_b32 s49, s{sW}, 8
        s_add_u32 s49, s49, s{sR}
        s_cmp_lt_u32 s49, 12
        s_cselect_b32 s48, s48, {OOB}
        v_mov_b32 v{fl+2}, {OOB}
        v_writelane_b32 v{fl+2}, s48, 0
        s_or_b32 s48, s2, s{sW}
        s_cmp_eq_u32 s48, 0
        s_cselect_b32 s48, 0, {OOB}
        s_add_u32 s48, s48, {WS_EPOCH}
        v_writelane_b32 v{fl+2}, s48, 1''')
        if OPT['ec2']:
            k(f'''s_lshr_b32 s48, s35, 10
            s_lshl_b32 s49, s{sW}, 12
            s_add_u32 s48, s48, s49
            s_add_u32 s48, s48, {WS_FLAG + 0x8000}
            s_cmp_lt_u32 s{sR}, 20
            s_cselect_b32 s48, s48, {OOB}
            v_writelane_b32 v{fl+2}, s48, 2''')

    def warm(regs):
        if OPT['warm']:
            for i, r in enumerate(regs):
                k(f'buffer_load_dword v{dum+i}, v{r}, {WS}, 0 offen')

    def clear1():
        k(f's_lshl_b32 s48, s{sW}, 12\ns_add_u32 s48, s48, s35\ns_add_u32 s48, s48, {WS_T1}')
        for i in range(4):
            k(f'buffer_store_dwordx4 {Q(ones)}, v{la}, {WS}, s48 offen offset:{1024*i} sc1')

    def clear2():
        k(f'''v_min_u32 v{t+1}, {31*16}, v{la}
        s_mul_i32 s48, s{sW}, 2560
        s_mul_i32 s49, s{sS2}, 10240
        s_add_u32 s48, s48, s49
        s_add_u32 s48, s48, {WS_T2}''')
        for i in range(3):
            k(f'buffer_store_dwordx4 {Q(ones)}, v{la if i<2 else t+1}, {WS}, s48 offen offset:{1024*i} sc1')
    LGEN, LNP, LP2, LG, LQ = k.lab(), k.lab(), k.lab(), k.lab(), k.lab()
    L_A, L_B = L_WST, L_WST + 16 * 1040
    k(f's_cmp_ge_u32 s63, 54\ns_cbranch_scc1 {LGEN}')
    if OPT['up'] & 1:
        k('s_setprio 2')
    mod_addr(True, 1)
    k.wait(lg=0)
    srd(k, 40, pWM, D * 3456 * 2)
    mod_loads(6, 0, 6)
    c_load()
    srd(k, 36, pWS, WS_SIZE)
    load_tag(k, t + 3)
    mark(k, 11)
    if OPT['up'] == 3:
        k('s_setprio 0')
    mod_addr(True, 2)
    if OPT['prew']:
        k(f'v_mov_b32 v{t+1}, 0')
        for a in range(OPT['nm']):
            k(f's_mov_b32 s48, {a*0x20000}')
            for i in range(2):
                k(f'buffer_store_dword v{t+1}, v{mo+2+i}, {WS}, s48 offen sc1')
    flag_addr()
    warm([fl])
    k.wait(2 * OPT['nm'] * OPT['prew'] + OPT['warm'])
    mark(k, 10)
    if OPT['up'] & 2:
        k('s_setprio 2')
    mod_silu()
    finish_tag(k)
    mark(k, 1)
    bar(k, lg=0)
    mod_compute(True)
    mark(k, 2)
    xmark(k, 'u', 4)
    if OPT['a0']:
        k('s_barrier')
    k(f's_setprio 0\ns_mov_b32 s63, 999\ns_branch {LQ}')
    k.raw('; @cut')
    k.label(LGEN)
    k.fresh()
    k(f'''s_sub_u32 s61, s63, 54
    s_lshr_b32 s62, s61, 1
    s_add_u32 s62, s62, 18
    s_and_b32 s61, s61, 1''')

    def mats1():
        k(f'''v_cvt_f32_u32 v{g4}, v2
        v_mul_f32 v{g4}, 4.0, v{g4}
        v_cvt_f32_u32 v{lf}, v1
        v_cvt_f32_u32 v{t+9}, s{sJ}
        v_mul_f32 v{t+6}, {f32(1/16)}, v{lf}
        v_fmac_f32 v{t+6}, {f32(1/128)}, v{t+9}
        v_mul_f32 v{t+7}, v{g4}, v{t+6}''')
        dft_frag(k, t + 7, t + 6, Fa, Fa + 4, t, False)
        k(f'''s_lshl_b32 s48, s{sW}, 5
        s_add_u32 s48, s48, s{sJ}
        v_cvt_f32_u32 v{t+10}, s48
        v_mul_f32 v{t+10}, {f32(1/2048)}, v{t+10}
        v_mul_f32 v{t+6}, {f32(1/16)}, v{lf}
        v_add_f32 v{t+6}, v{t+6}, v{t+10}''')
        for tt in range(4):
            if tt:
                k(f'v_add_f32 v{t+6}, {f32(8/2048)}, v{t+6}')
            k(f'v_mul_f32 v{t+7}, v{g4}, v{t+6}')
            dft_frag(k, t + 7, t + 6, Fb + 8 * tt, Fb + 8 * tt + 4, t, False)

    def mats2():
        k(f'''v_mul_f32 v{t+6}, {f32(1/16)}, v{lf}
        v_fmac_f32 v{t+10}, {f32(1/16)}, v{g4}''')
        for tt in range(4):
            if tt:
                k(f'v_add_f32 v{t+10}, {f32(8/2048)}, v{t+10}')
            k(f'v_mul_f32 v{t+7}, v{lf}, v{t+10}')
            dft_frag(k, t + 7, t + 6, Fbi + 8 * tt, Fbi + 8 * tt + 4, t, True)
        k(f'''v_mul_f32 v{t+9}, {f32(1/128)}, v{t+9}
        v_fmac_f32 v{t+9}, {f32(1/16)}, v{g4}
        v_mul_f32 v{t+7}, v{lf}, v{t+9}''')
        dft_frag(k, t + 7, t + 6, Fai, Fai + 4, t, True)

    def p2_addr():
        k(f'''s_lshl_b32 s54, s{sW}, 8
        s_add_u32 s52, s35, s54
        s_add_u32 s52, s52, {WS_T1}
        s_lshl_b32 s53, s{sW}, 12
        s_add_u32 s53, s53, s35
        s_add_u32 s53, s53, {WS_WP}
        v_and_b32 v{t}, 3, v1
        v_lshrrev_b32 v{t+1}, 2, v1
        v_lshlrev_b32 v{t+2}, 6, v{t}
        v_lshl_add_u32 v{t+2}, v{t+1}, 4, v{t+2}
        v_lshl_add_u32 v{a5}, v2, 12, v{t+2}
        v_mul_u32_u24 v{a0}, 1040, v1
        v_lshl_add_u32 v{a0}, v2, 6, v{a0}
        v_add_u32 v{a0}, s54, v{a0}
        s_mul_i32 s48, s{sW}, {4*1040}
        v_add_u32 v{a2}, s48, v{la}
        v_lshl_add_u32 v{t+2}, v2, 2, v{t}
        v_mul_u32_u24 v{a3}, 1056, v{t+2}
        v_lshl_add_u32 v{a3}, v{t+1}, 4, v{a3}
        v_add_u32 v{a3}, s54, v{a3}
        s_mul_i32 s48, s{sW}, {4*1056}
        v_add_u32 v{a1}, s48, v{la}
        s_and_b32 s66, s51, 3
        s_xor_b32 s66, s66, s60
        s_lshl_b32 s66, s66, 6
        s_lshl_b32 s48, s51, 8
        s_add_u32 s66, s66, s48
        s_mul_i32 s48, s{sW}, {4*10240}
        s_add_u32 s66, s66, s48
        s_add_u32 s66, s66, {WS_T2}
        s_add_u32 s67, s66, {16*10240}
        s_add_u32 s68, s66, {32*10240}
        s_add_u32 s69, s66, {48*10240}
        s_lshr_b32 s48, s51, 2
        s_and_b32 s48, s48, 2
        v_xor_b32 v{t}, s48, v{t}
        v_lshl_add_u32 v{t+1}, v2, 6, v{t+1}
        v_mul_u32_u24 v{a4}, 10240, v{t+1}
        v_lshl_add_u32 v{a4}, v{t}, 4, v{a4}''')
    wl = f'buffer_load_dword v{fl+1}, v{t+11}, {WS}, s64 offen sc1'

    def wpre():
        k(f'''s_lshl_b32 s48, s{sW}, 5
        s_add_u32 s48, s48, s{sJ}
        v_lshrrev_b32 v{t+4}, 2, v1
        v_lshl_add_u32 v{t+4}, v{t+4}, 3, s48
        s_cmp_lt_u32 s60, 2
        s_cselect_b32 s48, 1, -1
        v_mul_i32_i24 v{t+4}, s48, v{t+4}
        v_and_b32 v{t+4}, 127, v{t+4}
        v_and_b32 v{t+3}, 3, v1
        v_lshl_add_u32 v{t+4}, v{t+4}, 2, v{t+3}
        v_lshlrev_b32 v{t+11}, 4, v{t+4}
        s_mov_b32 s64, {WS_FLAG}''')
        L1 = skip_unless(sR, 20, 'ge')
        k(wl)
        endif(L1)

    def wpost():
        p2_addr()
        k(f'''s_lshr_b32 s65, s{sJ}, 1
        s_lshl_b32 s65, s65, 16
        s_add_u32 s65, s65, {WS_FL2}
        s_lshl_b32 s48, s{sW}, {6+OPT['fs']}
        s_add_u32 s65, s65, s48
        v_lshlrev_b32 v{g4}, {OPT['fs']}, v0''')
    LB, LJ = k.lab(), k.lab()
    k(f's_cmp_ge_u32 s{sR}, 16\ns_cbranch_scc1 {LB}')
    wp_addr()
    k.wait(lg=0)
    srd(k, 36, pWS, WS_SIZE)
    srd(k, 40, pWM, D * 3456 * 2)
    load_tag(k, t)
    flag_addr()
    warm([fl, fl + 2])

    def clear_xch():
        k(f'''v_mov_b64 {P(ones)}, -1
        v_mov_b64 {P(ones+2)}, -1
        s_lshl_b32 s61, s2, 2
        s_add_u32 s61, s61, s{sW}
        s_mul_i32 s61, s61, {14*1024}
        s_add_u32 s61, s61, {WS_XCH}''')
        for i in range(14):
            k(f'buffer_store_dwordx4 {Q(ones)}, v{la}, {WS}, s61 offen offset:{1024*(i&3)} sc1')
            if i & 3 == 3:
                k('s_add_u32 s61, s61, 4096')
    if OPT['xc'] == 1:
        clear_xch()
    if OPT['wat'] == 0:
        wp_loads()
    if OPT['wat'] == 2:
        mats1()
    mark(k, 1)
    k('s_barrier')
    if OPT['pf1']:
        srd(k, 44, pW1, S * F * 2)
        k(f's_lshl_b32 s61, s{sW}, 4\ns_add_u32 s61, s61, s{sR}')
        pf_loop(k, 1, 61, 64, 16 * OPT['pf1'], ld, 44)
    if OPT['wat'] >= 1:
        wp_loads()
    if OPT['xc'] == 2:
        clear_xch()
    wp_gather()
    if OPT['wat'] < 2:
        mats1()
    k.wait(0)
    mark(k, 10)
    finish_tag(k)
    wp_run()
    mark(k, 2)
    k(f's_branch {LQ}')
    k.label(LB)
    k.fresh()
    mod_addr(False)
    k.wait(lg=0)
    srd(k, 36, pWS, WS_SIZE)
    srd(k, 40, pWM, D * 3456 * 2)
    load_tag(k, t)
    c_load()
    flag_addr()
    warm([fl, fl + 2, mo + 2])
    L1 = skip_unless(63, 126, 'ge')
    mod_loads(9, 0, OPT['mb'])
    endif(L1)
    mark(k, 1)
    k('s_barrier')
    k.wait(0)
    L1 = skip_unless(63, 126, 'ge')
    mod_loads(9, OPT['mb'], 9)
    endif(L1)
    finish_tag(k)
    mod_silu()
    L1 = skip_unless(sR, 20, 'ge')
    mats1()
    endif(L1)
    k.label(LQ)
    k.fresh()
    mark(k, 3)
    bar(k, lg=0)
    L1 = skip_unless(sR, 20, 'ge')
    if OPT['wfl']:
        k.wait(0)
        k(f'buffer_store_dword v{vTAG}, v{fl+1}, {WS}, 0 offen sc1')
    mats2()
    endif(L1)
    tag(k, 'touch h1')
    tag(k, 'region h1')
    k.wait(0)
    if OPT['wearly']:
        wpre()
    mark(k, 2)
    k('s_barrier')
    if OPT.get('mk') != 'u':
        mark(k, 10)
    k(f'buffer_store_dword v{vTAG}, v{fl}, {WS}, 0 offen sc1')
    L1 = skip_unless(63, 126, 'ge')
    mod_compute(False)
    endif(L1)
    k(f's_cmp_lt_u32 s{sR}, 20\ns_cbranch_scc1 {LP2}')
    srd(k, 52, pW1, S * F * 2)
    k(f'''s_mul_i32 s58, s{sW}, 12
    s_add_u32 s58, s58, s{sR}
    s_add_u32 s58, s58, {16*OPT['pf1'] - 20}''')
    if OPT['pfd']:
        k.wait(0)
    if OPT['pfd'] > 1:
        k(f's_sleep {OPT["pfd"]}')
    pf_loop(k, 1, 58, 48, OPT['pf2'], dum, 52)
    if OPT['pf9']:
        srd(k, 64, pW2, S * F * 2)
        k(f'''s_mul_i32 s59, s{sW}, 12
        s_add_u32 s59, s59, s{sR}
        s_sub_u32 s59, s59, 20''')
        pf_loop(k, 2, 59, 48, OPT['pf9'], dum, 64)
    k.wait(0)
    mark(k, 5)
    k('s_barrier')
    k(f's_branch {LG}')
    tag(k, 'target')
    k.label(LP2)
    k.fresh()
    if OPT['hp']:
        k('s_setprio 1')
    unp = [f'v_lshlrev_b32 v{wv+8*(x>>2)+(x&3)}, 16, v{wp+x}\nv_and_b32 v{wv+8*(x>>2)+4+(x&3)}, 0xffff0000, v{wp+x}' for x in range(16)]
    if OPT['wfl']:
        if not OPT['wearly']:
            wpre()
        wpost()
        if OPT['wearly']:
            k.wait(1)
        L1 = k.lab()
        check_tags(k, [fl + 1])()
        k(f's_cbranch_vccz {L1}')
        poll(k, [wl], check_tags(k, [fl + 1]))
        k.label(L1)
        for tt in range(4):
            k(f'buffer_load_dwordx4 {Q(wp+4*tt)}, v{la}, {WS}, s53 offen offset:{1024*tt} sc1')
        k.wait({1: 0, 2: 3, 3: 4}[OPT['wfl']])
        mark(k, 11)
        poll(k, [f'buffer_load_dword v{t}, v{g4}, {WS}, s65 offen sc1'], check_tags(k, [t]), masked=True, alt=([65], 16384, OPT['na']))
        mark(k, 1)
        for j in range(4):
            k(f'buffer_load_dwordx4 {Q(ld+4*j)}, v{a5}, {WS}, s52 offen offset:{1024*j} sc1')
        for x in unp:
            k(x)
        unp = [''] * 16
        if OPT['stamp']:
            k.wait(0)
    else:
        p2_addr()
        k(f'''s_lshr_b32 s64, s{sJ}, 1
        s_lshl_b32 s64, s64, 16
        s_add_u32 s64, s64, {WS_FL2}
        s_lshl_b32 s48, s{sW}, {6+OPT['fs']}
        s_add_u32 s65, s64, s48
        v_lshlrev_b32 v{t+1}, {OPT['fs']}, v0
        s_lshl_b32 s48, s{sW}, 5
        s_add_u32 s48, s48, s{sJ}
        v_and_b32 v{t+2}, 3, v0
        v_lshl_add_u32 v{t+2}, v{t+2}, 3, s48
        s_cmp_lt_u32 s60, 2
        s_cselect_b32 s48, 1, -1
        v_mul_i32_i24 v{t+2}, s48, v{t+2}
        v_bfe_u32 v{t+3}, v{t+2}, 2, 2
        v_bfe_u32 v{t+4}, v{t+2}, 4, 3
        v_and_b32 v{t+2}, 3, v{t+2}
        v_lshl_add_u32 v{t+2}, v{t+3}, 6, v{t+2}
        v_lshl_add_u32 v{t+2}, v{t+4}, 3, v{t+2}
        v_lshlrev_b32 v{t+2}, {OPT['fs']}, v{t+2}''')
        k.wait(0)
        mark(k, 11)
        poll(k, [f'buffer_load_dword v{t}, v{t+1}, {WS}, s65 offen sc1', f'buffer_load_dword v{t+3}, v{t+2}, {WS}, s64 offen sc1'],
             check_tags(k, [t, t + 3]), masked=True, alt=([64, 65], 16384, OPT['na']))
        mark(k, 1)
        for j in range(4):
            k(f'buffer_load_dwordx4 {Q(ld+4*j)}, v{a5}, {WS}, s52 offen offset:{1024*j} sc1')
        for tt in range(4):
            k(f'buffer_load_dwordx4 {Q(wp+4*tt)}, v{la}, {WS}, s53 offen offset:{1024*tt} sc1')
    if OPT['stamp']:
        k.wait(4)
    mark(k, 4)
    for i in range(4):
        for j in range(i + 1, 4):
            k(f'v_swap_b32 v{ld+4*i+j}, v{ld+4*j+i}')
        for ri in range(2):
            k(f'{MF} {Q(acc+8*i+4*ri)}, {Q(ld+4*i)}, {Q(Fa+4*ri)}, 0')
    for ci in range(4):
        for j in range(4):
            k(f'v_cvt_pk_bf16_f32 v{pk+4*ci+j}, v{acc+8*ci+j}, v{acc+8*ci+4+j}')
        k(f'ds_write_b128 v{a0}, {Q(pk+4*ci)} offset:{L_A+16*ci}')
    bar(k, lg=0)
    for tt in range(4):
        k(f'ds_read_b128 {Q(ld+4*tt)}, v{a2} offset:{L_A+1040*tt}')
    cue = f'buffer_store_dword v{vTAG}, v{fl+2}, {WS}, 0 offen sc1'
    if OPT['cue_at'] == 0:
        k(cue)
    for x in unp[:8]:
        k(x)
    for tt in range(4):
        for ri in range(2):
            k(f'{MF} {Q(acc+8*tt+4*ri)}, {Q(Fb+8*tt+4*ri)}, {Q(ld+4*tt)}, 0')
            k(unp[8 + 2 * tt + ri])
    for tt in range(4):
        for p in range(2):
            re, im, wr, wi = acc + 8 * tt + 2 * p, acc + 8 * tt + 4 + 2 * p, wv + 8 * tt + 2 * p, wv + 8 * tt + 4 + 2 * p
            o = t + 4 * p
            k(f'''v_pk_mul_f32 {P(o)}, {P(re)}, {P(wr)}
            v_pk_mul_f32 {P(o+2)}, {P(im)}, {P(wr)}
            v_pk_fma_f32 {P(o)}, {P(im)}, {P(wi)}, {P(o)} neg_lo:[1,0,0] neg_hi:[1,0,0]
            v_pk_fma_f32 {P(o+2)}, {P(re)}, {P(wi)}, {P(o+2)}
            v_cvt_pk_bf16_f32 v{pk+4*tt+2*p}, v{o}, v{o+2}
            v_cvt_pk_bf16_f32 v{pk+4*tt+2*p+1}, v{o+1}, v{o+3}''')
            if tt:
                k(f'{MF} {Q(acc+8*(tt-1)+4*p)}, {Q(Fbi+8*(tt-1)+4*p)}, {Q(pk+4*(tt-1))}, 0')
            if OPT['cue_at'] == 4 and (tt, p) == (2, 1):
                k(cue)
    for tt in range(4):
        if tt == 1:
            for ri in range(2):
                k(f'{MF} {Q(acc+24+4*ri)}, {Q(Fbi+24+4*ri)}, {Q(pk+12)}, 0')
        for j in range(4):
            k(f'v_cvt_pk_bf16_f32 v{ld+4*j+tt}, v{acc+8*tt+j}, v{acc+8*tt+4+j}')
            if tt == 3:
                k(f'ds_write_b128 v{a3}, {Q(ld+4*j)} offset:{L_B+64*j}')
    bar(k, lg=0)
    for ci in range(4):
        k(f'ds_read_b128 {Q(pk+4*ci)}, v{a1} offset:{L_B+1056*ci}')
    if OPT['cue_at'] == 1:
        k(cue)
    for ci in range(4):
        for ri in range(2):
            k(f'{MF} {Q(acc+8*ci+4*ri)}, {Q(Fai+4*ri)}, {Q(pk+4*ci)}, 0')
    for ci in range(4):
        if ci == 3 and OPT['sp1'] and OPT['cl3'] == 1:
            k('s_barrier')
        for j in range(4):
            k(f'v_cvt_pk_bf16_f32 v{ld+4*j+ci}, v{acc+8*ci+4+j}, v{acc+8*ci+j}')
            if ci == 3:
                k(f'buffer_store_dwordx4 {Q(ld+4*j)}, v{a4}, {WS}, s{66+j} offen sc1')
    if OPT['cue_at'] == 2:
        k(cue)
    mark(k, 5)
    if OPT['hp']:
        k('s_setprio 0')
    bar(k, None if OPT['ec2'] else 0)
    if OPT['cue_at'] == 3:
        k(cue)
    tag(k, 'region -')
    k.label(LG)
    if OPT.get('nodma'):
        k.drop = lambda x: x.endswith(' lds') and (OPT['nodma'] == 1 or (OPT['nodma'] == 2) == ('sc1' in x))
    k.fresh()
    V.p = 4
    t = V(4); la_ = V(); fl = V(2); da = V(9); xa = V(6); xd = V(24, 4); pv = V(2); xf_ = V(); db = V(9); fb = V(3); xr_ = V(5); vr = V(10)
    k(f'v_lshlrev_b32 v{la_}, 4, v0')
    la = la_
    g1_tile(k)
    g2_tile(k)
    srd(k, 40, pW1, S * F * 2)
    srd(k, 44, pW2, S * F * 2)
    k(f'''s_and_b32 s62, s{sW}, 1
    s_and_b32 s63, s{sJ}, {OPT['xm']}
    s_mul_i32 s63, s63, {OPT["xst"]}
    s_add_u32 s63, s63, {OPT['xo']}
    s_mul_i32 s48, s51, {OPT['rot1']}
    s_add_u32 s63, s63, s48
    s_and_b32 s63, s63, 31
    s_mov_b32 s64, 0
    s_lshl_b32 s68, s62, 13''')

    def start_off(dst, hi, base, first, mul, n):
        k(f's_mul_i32 s{dst}, s{first}, {mul}\ns_add_u32 s{dst}, s{dst}, s{base}\ns_add_u32 s{hi}, s{base}, {n*mul}')

    def w_addr(g, da, lo):
        jst, gst, qoff = ((256 * 9216, 9216, 1024 * 9216), (4096, 16384, 16 * 4096))[g]
        k(f'''v_lshlrev_b32 v{t+1}, 1, v2
        v_xor_b32 v{t+1}, v{t+1}, v1
        v_xor_b32 v{t+2}, 8, v{t+1}
        v_mul_u32_u24 v{t}, {jst}, v2
        v_lshl_add_u32 v{da}, v{t+1}, 4, v{t}
        v_lshl_add_u32 v{da+1}, v{t+2}, 4, v{t}
        v_add_u32 v{da+2}, {2*(gst-1024)}, v{da}
        v_add_u32 v{da+3}, {3*(gst-1024)}, v{da+1}
        v_add_u32 v{da+1}, {gst-1024}, v{da+1}''')
        for i in range(4):
            k(f'v_add_u32 v{da+4+i}, {qoff}, v{da+i}')
        if g == 0:
            k(f's_mul_i32 s49, s62, {4*9216}\ns_lshl_b32 s48, s51, 8\ns_add_u32 s49, s49, s48')
            start_off(lo, lo + 1, 49, 63, 8 * 9216, 32)
        else:
            k(f'''s_mul_i32 s49, s53, {1152*4096}
            s_lshl_b32 s48, s62, 17
            s_add_u32 s49, s49, s48
            s_lshl_b32 s48, s54, 8
            s_add_u32 s49, s49, s48''')
            start_off(lo, lo + 1, 49, 64, 64 * 4096, NST2)

    def woff(n, mul, NST, lo=60, pair=False, d=50):
        if pair:
            p = f's_mul_i32 s{d}, s62, {(kappa(n+1, NST)-kappa(n, NST))*mul}\ns_add_u32 s{d}, s{d}, s{lo}\ns_add_u32 s{d}, s{d}, {kappa(n, NST)*mul}\n'
        else:
            p = f's_add_u32 s{d}, s{lo}, {kappa(n, NST)*mul}\n'
        return p + f's_cmp_ge_u32 s{d}, s{lo+1}\ns_cselect_b32 s48, {NST*mul}, 0\ns_sub_u32 s{d}, s{d}, s48\n'

    class Stream:
        def __init__(st, items):
            st.items, st.n, st.seq = items, 0, []

        def issue(st, upto, now):
            while st.n < min(upto, len(st.items)):
                need, free, txt = st.items[st.n]
                if free > now:
                    break
                k(txt)
                st.seq.append(k.stats.get('vmem', 0))
                st.n += 1

        def more(st, n):
            st.issue(st.n + n, -1)

        def run(st, NST, quota, last_bar=True, mk=None, hooks={}, verify={}, pre={}):
            landed = -1
            log = []
            for i in range(NST):
                nd = [x for x, it in enumerate(st.items) if it[0] <= i]
                vm = None
                if nd and nd[-1] > landed:
                    assert nd[-1] < st.n, (i, nd[-1], st.n)
                    landed = nd[-1]
                    vm = k.stats.get('vmem', 0) - st.seq[landed]
                if i in verify:
                    if vm is not None:
                        k.wait(vm)
                    verify[i]()
                    k('s_barrier')
                else:
                    bar(k, vm)
                if mk and OPT['stamp'] and i == 0:
                    mark(k, mk)
                    k.raw('    s_memtime s[98:99]')
                if mk and OPT.get('trace'):
                    k(f's_memtime s[14:15]\nv_writelane_b32 v{200 + (mk == 8)}, s14, {i}')
                if landed == len(st.items) - 1 and not last_bar:
                    break
                if i in pre:
                    pre[i]()
                n = st.n
                st.issue(quota(i), i)
                log.append((vm, st.n - n))
                if i in hooks:
                    n = k.stats['vmem']
                    hooks[i]()
                    k.stats['vmem'] = n + hooks.get('min', 0)
            if OPT.get('log'):
                print(log, file=sys.stderr)
            if mk and OPT['stamp']:
                mark(k, mk + 1)
                k('s_memtime s[100:101]')
                k(f's_sub_u32 s{84+mk}, s100, s98')

    def adv(s, inc, span, hi):
        return f's_add_u32 s{s}, s{s}, {inc}\ns_cmp_ge_u32 s{s}, s{hi}\ns_cselect_b32 s48, {span}, 0\ns_sub_u32 s{s}, s{s}, s48\n'

    def spread(n0, n1, i0, i1):
        return lambda i: n0 + int(round((n1 - n0) * max(0, min(i, i1) + 1 - i0) / (i1 + 1 - i0)))
    LHW = k.lab()
    if OPT.get('hprio'):
        k(f's_setprio {OPT["hprio"]}')
    k(f's_cmp_ge_u32 s{sW}, 2\ns_cbranch_scc1 {LHW}')
    x1f = f'buffer_load_dword v{fb+2}, v{fb+1}, {WS}, 0 offen sc1'

    def setup_g1():
        h3_idx(k, 56)
        publish(k, 2, 56, fl)
        k(f's_lshl_b32 s56, s52, 6\ns_add_u32 s56, s56, s51')
        publish(k, 3, 56, fl + 1, ncue=5, cue_add=27)
        k(f'''s_lshr_b32 s65, s{sJ}, 2
        s_lshl_b32 s65, s65, 16
        s_add_u32 s66, s65, {WS_FL2+3*0x40000}
        s_lshl_b32 s48, s62, {7+OPT['fs']}
        s_add_u32 s65, s65, s48
        s_add_u32 s65, s65, {WS_FL2+2*0x40000}
        s_add_u32 s69, s65, {64<<OPT['fs']}
        v_lshlrev_b32 v{xa+5}, {OPT['fs']}, v0
        s_mul_i32 s67, s52, {96*16}
        s_mul_i32 s48, s62, {4*9216}
        s_add_u32 s67, s67, s48
        s_add_u32 s67, s67, {WS_H2}
        v_add_u32 v{da+2}, {9216-1536}, v{la}
        v_cmp_gt_u32 vcc, 32, v0
        v_cndmask_b32 v{da+1}, v{da+2}, v{la}, vcc
        v_add_u32 v{da+3}, {2*9216}, v{la}
        v_add_u32 v{da+4}, {2*9216}, v{da+1}
        v_add_u32 v{da+5}, {2*9216}, v{da+2}
        s_mul_i32 s68, s62, 6144''')
        start_off(58, 59, 67, 63, 8 * 9216, 32)

    def setup_g2():
        for i in range(9):
            k(f'''v_add_u32 v{vr}, {64*i}, v0
            v_mul_u32_u24 v{vr+1}, 1821, v{vr}
            v_lshrrev_b32 v{vr+1}, 18, v{vr+1}
            v_mul_u32_u24 v{vr+1}, {9216-2304}, v{vr+1}
            v_lshl_add_u32 v{vr+1}, v{vr}, 4, v{vr+1}
            v_subrev_u32 v{db+i}, {1024*(i&3)}, v{vr+1}''')
        k(f'''s_mul_i32 s48, s55, 3
        s_add_u32 s49, s48, 2
        s_lshr_b32 s48, s48, 1
        s_lshr_b32 s49, s49, 1
        v_mov_b32 v{vr}, s48
        v_mov_b32 v{vr+1}, s49
        v_cmp_gt_u32 vcc, 32, v0
        v_cndmask_b32 v{vr}, v{vr+1}, v{vr}, vcc
        v_and_b32 v{vr+1}, 31, v0
        v_min_u32 v{vr+1}, 8, v{vr+1}
        v_lshl_add_u32 v{vr}, v{vr}, 6, v{vr+1}
        s_mul_i32 s48, s53, 9
        v_add_u32 v{vr}, s48, v{vr}
        v_lshlrev_b32 v{fb}, {OPT['fs']}, v{vr}''')
        k(f'''s_lshr_b32 s48, s54, 3
        s_lshl_b32 s48, s48, 2
        s_and_b32 s49, s54, 1
        s_lshl_b32 s49, s49, 1
        s_add_u32 s48, s48, s49
        s_add_u32 s48, s48, s62
        s_lshl_b32 s48, s48, 13
        s_add_u32 s48, s48, {WS_FL2 + 0x40000}
        v_lshl_add_u32 v{fb+1}, v0, 7, s48
        v_mov_b32 v{fb+2}, 0''')
        k(f'''s_lshl_b32 s48, s54, 7
        s_lshr_b32 s49, s53, 1
        s_lshl_b32 s49, s49, 4
        s_add_u32 s48, s48, s49
        s_mul_i32 s48, s48, 1152
        s_mul_i32 s49, s55, 288
        s_add_u32 s48, s48, s49
        s_and_b32 s49, s53, 1
        s_mul_i32 s49, s49, 144
        s_add_u32 s48, s48, s49
        s_add_u32 s12, s48, {WS_X1}
        s_lshl_b32 s13, s62, 6''')
        for i in range(5):
            k(f'''v_add_u32 v{vr}, s13, v0
            v_mul_u32_u24 v{vr+1}, 911, v{vr}
            v_lshrrev_b32 v{vr+1}, 13, v{vr+1}
            v_mul_u32_u24 v{vr+2}, 9, v{vr+1}
            v_sub_u32 v{vr+2}, v{vr}, v{vr+2}
            v_and_b32 v{vr}, 48, v{vr+1}
            v_add_u32 v{vr+1}, v{vr+1}, v{vr}
            v_mul_u32_u24 v{vr+1}, 1152, v{vr+1}
            v_lshl_add_u32 v{vr+1}, v{vr+2}, 4, v{vr+1}
            v_add_u32 v{xr_+i}, s12, v{vr+1}
            s_add_u32 s13, s13, 128''')
        k(f'''s_mul_i32 s48, s55, 576
        s_and_b32 s49, s53, 1
        s_mul_i32 s49, s49, 288
        s_add_u32 s48, s48, s49
        s_add_u32 s48, s48, {WS_MOD+5*2304}
        v_min_u32 v{vr}, {17*16}, v{la}
        v_add_u32 v{vr}, s48, v{vr}
        s_cmp_eq_u32 s62, 1
        s_cselect_b64 vcc, -1, 0
        v_cndmask_b32 v{xr_+4}, v{xr_+4}, v{vr}, vcc''')

    def setup_x1():
        k(f's_mul_i32 s56, s62, 288\ns_mul_i32 s57, s{sS2}, 1152\ns_add_u32 s57, s57, {WS_X1}')
        for i in range(5):
            k(f'''v_add_u32 v{t}, {64*i}, v0
            v_min_u32 v{t}, 287, v{t}
            v_add_u32 v{t}, s56, v{t}
            v_mul_u32_u24 v{t+1}, 911, v{t}
            v_lshrrev_b32 v{t+1}, 16, v{t+1}
            v_mul_u32_u24 v{t+1}, {256*1152 - 1152}, v{t+1}
            v_lshl_add_u32 v{xa+i}, v{t}, 4, v{t+1}''')
            if i in (0, 4):
                k(f'v_lshlrev_b32 v{t}, 4, v{t}\nv_add_u32 v{t+2+i//4}, {L_Z}, v{t}')
    if not OPT['lz']:
        setup_g1()
        setup_g2()
        setup_x1()
    tag(k, 'touch a1')
    tag(k, 'region a1')
    def clear_u():
        if OPT['sp2']:
            c0, n = spec_range(1)
            k(f'v_mov_b64 {P(xd)}, -1\nv_mov_b64 {P(xd+2)}, -1\ns_lshl_b32 s56, s2, 1\ns_add_u32 s56, s56, s62')

            def addr():
                k('s_mov_b32 s49, s48')
                for g in range(1, 4):
                    k(f's_cmp_ge_u32 s49, {72*n*g}\ns_cselect_b32 s50, {72*(NST2-n)}, 0\ns_add_u32 s48, s48, s50')
                k(f's_lshl_b32 s48, s48, 10\ns_add_u32 s48, s48, {WS_U + c0*73728}')
            clear_loop(k, 56, 512, 288 * n, addr, xd, la)
    if OPT['cl4'] == 0:
        clear_u()
    n7 = OPT['pf2'] + 10 * OPT['pf3']
    k(f'''s_mul_i32 s56, s62, 27
    s_add_u32 s56, s56, s{sR}
    s_add_u32 s56, s56, {n7}
    s_cmp_lt_u32 s{sR}, 27
    s_cselect_b32 s56, s56, 999
    s_barrier''')
    if OPT['pf7']:
        pf_loop(k, 1, 56, 54, n7 + 27 * OPT['pf7'], xd + 20, 40)
    if OPT['cl4'] == 1:
        clear_u()

    def clear_own_xch():
        k(f'''v_mov_b64 {P(xd)}, -1
        v_mov_b64 {P(xd+2)}, -1
        s_mul_i32 s56, s2, {XB}
        s_lshl_b32 s48, s62, 10
        s_add_u32 s56, s56, s48
        s_add_u32 s56, s56, {WS_XCH}''')
        for x in range(14):
            if x < 13:
                k(f's_add_u32 s48, s56, {2048*x}')
            else:
                k(f's_mul_i32 s48, s62, -2048\ns_add_u32 s48, s48, {2048*13}\ns_add_u32 s48, s48, s56')
            k(f'buffer_store_dwordx4 {Q(xd)}, v{la}, {WS}, s48 offen sc1')
    if OPT['xc'] == 4:
        clear_own_xch()
    if OPT['lz']:
        setup_g1()
    k('s_barrier')
    if OPT['cl4'] == 2:
        clear_u()
    if OPT['xc'] == 5:
        clear_own_xch()
    if OPT['lz']:
        setup_x1()
    k('s_barrier\ns_barrier')
    for i in range(5):
        k(f'ds_read_b128 {Q(xd+4*i)}, v{t+2+i//4} offset:{1024*(i&3)}')
    def x1_stores():
        for i in range(5):
            k(f'buffer_store_dwordx4 {Q(xd+4*i)}, v{xa+i}, {WS}, s57 offen sc1')

    def p3_publish():
        if not OPT['xdef']:
            bar(k, 0)
            do_publish(k, fl)
            return
        bar(k, lg=0)
        k(f'buffer_store_dword v{vTAG}, v{fl}, {WS}, 0 offen sc1')
        nx = len(reg_stages(0)) - 6
        if OPT['lz']:
            setup_g2()
        if OPT['xdef'] == 2:
            k.wait(0)
        if nx:
            k('s_barrier')
        x1_stores()
        if nx:
            k('s_barrier')
        k.wait(0)
        k(f'buffer_store_dwordx4 {Q(xd+20)}, v{xf_}, {WS}, 0 offen sc1')
    if not OPT['xdef']:
        x1_stores()
    else:
        k(f'''s_lshl_b32 s48, s62, 8
        s_add_u32 s48, s48, s{sS2}
        s_lshl_b32 s48, s48, 7
        s_add_u32 s48, s48, {WS_FL2 + 0x40000}
        v_add_u32 v{xf_}, s48, v{la}
        v_cmp_gt_u32 vcc, 8, v0
        v_mov_b32 v{t}, {OOB}
        v_cndmask_b32 v{xf_}, v{t}, v{xf_}, vcc''')
        k.wait(0)
        for i in range(4):
            k(f'v_mov_b32 v{xd+20+i}, v{vTAG}')
    LN, LJ = k.lab(), k.lab()
    k(f's_cmp_ge_u32 s{sR}, 27\ns_cbranch_scc1 {LN}')
    st0 = (list(k.vm), list(k.lg))
    if OPT['rf']:
        k('s_barrier')

    def act_text(g, n, i, so):
        if g == 0:
            pre = f's_add_u32 m0, s68, {L_ACT + (n % 5)*12288 + 1024*i}\n' if i % 3 == 0 else ''
            return pre + f'buffer_load_dwordx4 v{la if i==0 else da+i}, {WS}, s{so} offen offset:{1024*(i%3)} {OPT["fa1"].replace("_", " ")} lds'
        pre = f's_add_u32 m0, s57, {L_ACT2 + (n % NSA2)*AST2 + 1024*i}\n' if i % 4 == 0 else ''
        return pre + f'buffer_load_dwordx4 v{db+i}, {WS}, s{so} offen offset:{1024*(i&3)} {OPT["fa2"].replace("_", " ")} lds'

    def verifier(g, n):
        def f():
            ni, stg = ((6, 12288), (9, AST2))[g]
            L, E = k.lab(), k.lab()
            k.label(L)
            for i in range(ni):
                k(f'ds_read_b32 v{vr+i}, v{vr+9} offset:{n*stg + 1024*i}')
            for i in range(1, ni, 2):
                k(f'v_max3_u32 v{vr}, v{vr}, v{vr+i}, v{vr+min(i+1, ni-1)}')
            k(f'v_cmp_eq_u32 vcc, -1, v{vr}\ns_cbranch_vccz {E}')
            k(f's_sub_u32 s{sBUD}, s{sBUD}, 1\ns_cbranch_scc1 {E}')
            cnt, vm = k.stats['vmem'], k.vm
            k('s_mov_b32 s14, m0')
            if OPT['sl3']:
                k(f's_sleep {OPT["sl3"]}')
            k(woff(n, 8 * 9216, (32, NST2)[g], 58, False, 15))
            for i in range(ni):
                k(act_text(g, n, i, 15))
            k('s_mov_b32 m0, s14')
            k.wait(0)
            k(f's_branch {L}')
            k.stats['vmem'], k.vm = cnt, vm
            k.label(E)
            k(f's_max_i32 s{sBUD}, s{sBUD}, 0')
        return f

    def late_check(loads, regs, mk):
        seq = []

        def issue():
            for l in loads:
                k(l)
            seq.append(k.stats['vmem'])

        def check():
            k.wait(k.stats['vmem'] - seq[0])
            L = k.lab()
            check_tags(k, regs)()
            k(f's_cbranch_vccz {L}')
            cnt, vm = k.stats['vmem'], k.vm
            poll(k, loads, check_tags(k, regs), masked=True)
            k.stats['vmem'], k.vm = cnt, vm
            k.label(L)
            mark(k, mk)
        return issue, check
    h3l = [f'buffer_load_dword v{t}, v{xa+5}, {WS}, s65 offen sc1', f'buffer_load_dword v{t+1}, v{xa+5}, {WS}, s69 offen sc1']
    items = []
    for n in range(32):
        for i in range(6):
            post = '\n' + woff(n + 1, 8 * 9216, 32, 58) if i == 5 and n < 31 else ''
            items.append((n, max(n - 5 + 2, OPT['sp1']) if n >= 5 else -9, act_text(0, n, i, 50) + post))
    st = Stream(items)

    def stag_setup(n0, g, per, i0, span, gap):
        if not per:
            return {}
        assert n0 >= 0 and per <= 4
        mask, nf = leaders(g)
        w2_lane(k, pv, 35)
        k(f'''s_mov_b32 s49, s35
        s_mul_i32 s48, s62, {1 if OPT['jit'] else nf}
        s_add_u32 s49, s49, s48
        s_bfm_b32 s48, s{sR}, 0
        s_and_b32 s48, s48, {mask}
        s_bcnt1_i32_b32 s48, s48
        s_sub_u32 s12, s{sR}, s48''')
        bs = OPT['jit'] or 2
        for x in range(per):
            if OPT['jit']:
                x0 = x - x % bs
                k(f's_mul_i32 s35, s12, {2*min(bs, per-x0)}\ns_add_u32 s35, s35, {n0 + 2*x0*nf + 2*(x-x0)}')
            else:
                k(f's_add_u32 s35, s12, {n0 + 2*x*nf}')
            k(f'''s_add_u32 s35, s35, s49
            s_cmp_ge_u32 s35, 288
            s_cselect_b32 s48, 288, 0
            s_sub_u32 s35, s35, s48
            s_lshl_b32 s{8+x}, s35, 14''')
        k(f'''s_mul_i32 s35, s12, {span*256//nf}
        s_lshr_b32 s35, s35, 8
        s_add_u32 s35, s35, {i0}
        s_mov_b32 s48, {mask}
        s_bitcmp1_b32 s48, s{sR}
        s_cselect_b32 s35, 999, s35''')

        def hook(i):
            def f():
                for x0 in range(0, per, bs):
                    q = i - gap * (x0 // bs)
                    if i0 <= q < i0 + span:
                        L = k.lab()
                        k(f's_cmp_lg_u32 s35, {q}\ns_cbranch_scc1 {L}')
                        for x in range(x0, min(x0 + bs, per)):
                            k.raw(f'    buffer_load_dword v{pv+1}, v{pv}, s[44:47], s{8+x} offen')
                        k.label(L)
            return f
        return {i: hook(i) for i in range(i0, i0 + span + gap * ((per - 1) // bs))}
    n8 = 288 - 2 * leaders(1)[1] * OPT['pf8']
    hooks = stag_setup(n8 - 2 * leaders(0)[1] * OPT['pf4'], 0, OPT['pf4'], *OPT['pf4at'])
    k(woff(0, 8 * 9216, 32, 58))
    verify, pre = {}, {}
    if OPT['sp1']:
        k(f's_add_u32 s48, s68, {L_ACT}\nv_add_u32 v{vr+9}, s48, v{la}')
        bar(k, lg=0)
        k(f'buffer_store_dword v{vTAG}, v{fl}, {WS}, 0 offen sc1')
        if OPT['spw']:
            k.wait(0)
        mark(k, 6)
        verify = {n: verifier(0, n) for n in range(5)}
        pre[OPT['sp1'] - 1], pre[OPT['sp1']] = late_check(h3l, [t, t + 1], 7)
        pre[5] = x1_stores
        pre[10] = lambda: k(f'buffer_store_dwordx4 {Q(xd+20)}, v{xf_}, {WS}, 0 offen sc1')
    else:
        p3_publish()
        mark(k, 6)
        poll(k, h3l, check_tags(k, [t, t + 1]), masked=True, alt=([65, 69], 16384, OPT['na']))
        mark(k, 7)
    st.more(6 * OPT['a1pre'])
    if OPT['xdef']:
        assert 28 not in hooks
        hooks[28] = lambda: k(x1f)
    st.run(32, lambda i: 6 * (i + 4), hooks=hooks, verify=verify, pre=pre)
    k(f's_branch {LJ}')
    k.label(LN)
    k.fresh()
    if OPT['xdef']:
        k.wait(lg=0)
        x1_stores()
        bar(k, 0)
        k(f'buffer_store_dword v{vTAG}, v{fl}, {WS}, 0 offen sc1')
        k(f'buffer_store_dwordx4 {Q(xd+20)}, v{xf_}, {WS}, 0 offen sc1')
        if OPT['lz']:
            setup_g2()
        k.wait(0)
    else:
        p3_publish()
    poll(k, [f'buffer_load_dword v{t}, v{xa+5}, {WS}, s65 offen sc1', f'buffer_load_dword v{t+1}, v{xa+5}, {WS}, s69 offen sc1'],
         check_tags(k, [t, t + 1]), masked=True, alt=([65, 69], 16384, OPT['na']))
    k.label(LJ)
    k.fresh()
    t = xd
    k(f'''s_mul_i32 s67, s55, {144*16}
    s_mul_i32 s48, s53, {NST2*8*9216}
    s_add_u32 s67, s67, s48
    s_mul_i32 s48, s62, {4*9216}
    s_add_u32 s67, s67, s48
    s_add_u32 s67, s67, {WS_U}
    s_mul_i32 s57, s62, 9216
    s_add_u32 s48, s57, {L_ACT2}
    v_add_u32 v{vr+9}, s48, v{la}''')
    start_off(58, 59, 67, 64, 8 * 9216, NST2)
    k.wait(0)
    if OPT['xdef']:
        L1 = k.lab()
        check_tags(k, [fb + 2])()
        k(f's_cbranch_vccz {L1}')
        poll(k, [x1f], check_tags(k, [fb + 2]), masked=True)
        k.label(L1)
    hooks = stag_setup(n8, 1, OPT['pf8'], *OPT['pf8at'])
    k('s_barrier')
    tag(k, 'touch a2')
    tag(k, 'region a2')
    LN, LJ = k.lab(), k.lab()
    k('s_barrier\n' * (2 + bool(OPT['rf2'])))
    k(f's_cmp_ge_u32 s{sR}, 27\ns_cbranch_scc1 {LN}')
    k(f'buffer_store_dword v{vTAG}, v{fl+1}, {WS}, 0 offen sc1')
    if not OPT['sp2'] or OPT['spw']:
        k.wait(0)
    k(f's_branch {LJ}')
    k.label(LN)
    wait_cue(k, 3, t)
    k.label(LJ)
    k(woff(0, 8 * 9216, NST2, 58))
    mark(k, 8)
    h4l = [f'buffer_load_dword v{t}, v{fb}, {WS}, s66 offen sc1']
    verify, prh = {}, {}
    if OPT['sp2']:
        verify = {n: verifier(1, n) for n in range(NSA2)}
        prh[OPT['sp2'] - 1], prh[OPT['sp2']] = late_check(h4l, [t], 9)
    else:
        poll(k, h4l, check_tags(k, [t]), masked=True, alt=([66], 16384, OPT['na']))
        mark(k, 9)
    items = []
    for n in range(NST2):
        for i in range(9):
            post = '\n' + woff(n + 1, 8 * 9216, NST2, 58) if i == 8 and n < NST2 - 1 else ''
            items.append((n, n - NSA2 + 2 if n >= NSA2 else -9, act_text(1, n, i, 50) + post))
    ring2 = [n for n in range(NST2) if n not in reg_stages(1)]
    xfree = max(n for m, n in enumerate(ring2) if m % NSW2 == L_X1 // 16384) + 1
    for i in range(5):
        pre = f's_lshl_b32 s48, s62, 10\ns_add_u32 m0, s48, {L_X1 + 2048*i}\n' if i < 4 else \
              f's_mul_i32 s48, s62, {L_GB - L_X1 - 8192}\ns_add_u32 m0, s48, {L_X1 + 8192}\n'
        items.append((NST2, max(xfree, NST2 - NSA2 + 1), pre + f'buffer_load_dwordx4 v{xr_+i}, {WS}, 0 offen sc1 lds'))
    st = Stream(items)
    st.more(9 * OPT['a2pre'])
    assert OPT['sp2'] <= 2 or not OPT['sp2']
    st.run(NST2 + 1, lambda i: OPT['a2la'] + 9 * (i + 1), last_bar=False, hooks=hooks, verify=verify, pre=prh)
    LT = k.lab()
    k(f's_branch {LT if OPT["hx"] else "L_end"}')
    tag(k, 'region -')
    k.label(LHW)
    k.fresh()

    def witems(g, stages, slot0=0, NSW=NSW):
        NST, sd, mul, regs, lo = ((32, 40, 8 * 9216, da, 60), (NST2, 44, 64 * 4096, db, 58))[g]
        items = []
        for m, n in enumerate(stages):
            for i in range(8):
                pre = woff(n, mul, NST, lo) if i == 0 else ''
                pre += f's_add_u32 m0, s68, {((m + slot0) % NSW)*16384 + 1024*i}\n' if i % 4 == 0 else ''
                items.append((n, stages[m - NSW] + 1 if m >= NSW else -9,
                              pre + f'buffer_load_dwordx4 v{regs+i}, s[{sd}:{sd+3}], s50 offen offset:{1024*(i&3)} {OPT["fw2" if g else "fw1"].replace("_", " ")} lds'))
        return items

    def split(g):
        rs = reg_stages(g)
        return rs, [n for n in range((32, NST2)[g]) if n not in rs]
    w_addr(1, db, 58)
    rs2, ds2 = split(1)
    f1 = [it[2] for it in witems(1, rs2, 2)]
    LN, LJ = k.lab(), k.lab()
    k(f's_cmp_ge_u32 s{sR}, 27\ns_cbranch_scc1 {LN}')
    w_addr(0, da, 60)
    tag(k, 'touch w1')
    tag(k, 'region w1')
    rs, ds = split(0)
    nx = len(rs) - 6
    items = witems(0, ds, nx)
    n1 = len(items)
    assert (len(ds) + nx) % NSW == 2
    ne = OPT['ne']
    for x in range(ne):
        items += [(99, ds[len(ds) - NSW + x] + 1, it) for it in f1[8 * x:8 * x + 8]]
    st = Stream(items)
    s1 = Stream(witems(0, rs[:6]))
    for n in OPT['pw1']:
        s1.more(n)
        k('s_barrier')
    s1.more(999)
    k('s_barrier')
    bar(k, 0)
    if OPT['rf']:
        k('s_barrier')
        st.more(OPT['rf'])
    k('s_barrier')
    if nx:
        assert not OPT['rf'] and not OPT['sp1']
        Stream(witems(0, rs[6:])).more(99)
        st.more(OPT['pa'])
        bar(k, st.n)
        st.more(4)
        k('s_barrier')
    st.issue(OPT['f21'], -1)
    q1 = spread(st.n, n1, 0 if st.n < 48 else 1, ds[-1] - OPT['wla'])
    if OPT['asap']:
        n00 = st.n
        q1 = lambda i: min(n1, n00 + int(OPT['asap'] * (i + 1) / 10))
    st.run(32, lambda i: q1(i) + ([0] * 32 + OPT['neq'])[-32 + i], mk=6)
    assert st.n == len(items)
    k('s_barrier')
    k(f's_branch {LJ}')
    k.label(LN)
    k.fresh()
    k(f's_sub_u32 s56, s{sR}, 27\ns_lshl_b32 s56, s56, 1\ns_add_u32 s56, s56, s62\ns_add_u32 s56, s56, {OPT["pf2"]}')
    k('s_barrier')
    pf_loop(k, 1, 56, 10, OPT['pf2'] + 10 * OPT['pf3'], xa, 40)
    k('s_barrier\n' * 5)
    for it in f1[:8 * ne]:
        k(it)
    k.label(LJ)
    k.fresh()
    st = Stream(witems(1, ds2, 0, NSW2))
    for it in f1[8 * ne:]:
        k(it)
    tag(k, 'touch w2')
    tag(k, 'region w2')
    bar(k, 0)
    if OPT['rf2']:
        k('s_barrier')
        st.more(OPT['rf2'])
    k('s_barrier')
    st.issue(OPT['f22'], -1)
    wpre, wver = {}, {}
    if OPT['xc'] in (0, 3):
        on, tg, vrd, vpr, vds = 100, 104, 108, 109, 110
        k(f'''v_mov_b64 {P(on)}, -1
        v_mov_b64 {P(on+2)}, -1
        v_mov_b32 v{tg}, v{vTAG}
        v_mov_b32 v{tg+1}, v{vTAG}
        v_mov_b32 v{tg+2}, v{vTAG}
        v_mov_b32 v{tg+3}, v{vTAG}
        v_lshlrev_b32 v{vds}, 4, v0
        s_lshl_b32 s48, s2, 7
        s_add_u32 s48, s48, {WS_XRDY}
        v_add_u32 v{vrd}, s48, v{vds}
        s_cmp_eq_u32 s62, 0
        s_cselect_b32 s48, 8, 0
        v_cmp_gt_u32 vcc, s48, v0
        v_mov_b32 v{vpr}, {OOB}
        v_cndmask_b32 v{vrd}, v{vpr}, v{vrd}, vcc
        v_min_u32 v{vpr}, 2, v0
        v_add_u32 v{vpr}, 1, v{vpr}
        v_lshlrev_b32 v{vpr}, 1, v{vpr}
        v_xor_b32 v{vpr}, s2, v{vpr}
        v_lshlrev_b32 v{vpr}, 7, v{vpr}
        v_add_u32 v{vpr}, {WS_XRDY}, v{vpr}
        v_lshlrev_b32 v{tg+4+3}, 4, v0
        s_mul_i32 s56, s2, {XB}
        s_lshl_b32 s48, s62, 10
        s_add_u32 s56, s56, s48
        s_add_u32 s56, s56, {WS_XCH}''')
        c0, cn = OPT['xclr']
        cseq = []

        def clr(i):
            def f():
                for x in range((i - c0) * 14 // cn, (i - c0 + 1) * 14 // cn):
                    if x < 13:
                        k(f's_add_u32 s57, s56, {2048*x}')
                    else:
                        k(f's_mul_i32 s57, s62, -2048\ns_add_u32 s57, s57, {2048*13}\ns_add_u32 s57, s57, s56')
                    k(f'buffer_store_dwordx4 {Q(on)}, v{tg+7}, {WS}, s57 offen sc1')
                cseq[:] = [k.stats['vmem']]
            return f
        for i in range(c0, c0 + cn):
            if OPT['xc'] == 0:
                wpre[i] = clr(i)
        r0, r1 = OPT['xrdy']
        assert r0 > c0 + cn - 1 and r1 > r0 and r1 < NST2
        if OPT['xc'] == 0:
            wver[r0] = lambda: k.wait(k.stats['vmem'] - cseq[0])
        wpre[r0] = lambda: k(f'buffer_store_dwordx4 {Q(tg)}, v{vrd}, {WS}, 0 offen sc1')
        assert r1 - OPT['xlead'] > r0
        wpre[r1 - OPT['xlead']], chk = late_check([f'buffer_load_dword v{vds}, v{vpr}, {WS}, 0 offen sc1'], [vds], 12)
        wver[r1] = chk
    st.run(NST2, spread(st.n, len(st.items), 0 if st.n < 8 * NSW2 else 1, ds2[-1] - OPT['wla2']), mk=8, verify=wver, pre=wpre)
    if not OPT['hx']:
        return
    k('s_barrier')
    k.label(LT)
    k.fresh()
    ha, hr = 100, 104
    k(f'''v_lshlrev_b32 v{ha}, 4, v0
    v_lshlrev_b32 v{ha+1}, 2, v0
    s_mul_i32 s48, s{sW}, {XW}
    s_mul_i32 s60, s2, {XB}
    s_add_u32 s60, s60, s48
    s_add_u32 s60, s60, {WS_XCH + XM}
    s_add_u32 s61, s60, {XM}
    s_mul_i32 s63, s{sW}, {2*XW}
    s_add_u32 s63, s63, {L_S}
    v_add_u32 v{ha+2}, s63, v{ha}
    v_add_u32 v{ha+3}, s63, v{ha+1}''')
    xmark(k, 'x', 1)
    if OPT['hsl']:
        k(f's_sleep {OPT["hsl"]}')
    if OPT['xcue']:
        k(f'''s_lshl_b32 s48, s{sW}, 7
        s_mul_i32 s62, s2, 1536
        s_add_u32 s62, s62, s48
        s_add_u32 s62, s62, {WS_XCUE + 512}
        v_and_b32 v{hr+8}, 1, v0
        v_lshlrev_b32 v{hr+8}, 9, v{hr+8}''')
        poll(k, [f'buffer_load_dword v{hr+9}, v{hr+8}, {WS}, s62 offen sc1'], check_tags(k, [hr + 9]), sleep=OPT['xsl'])
        xmark(k, 'x', 2)
    loads = []
    for x in (1, 0):
        loads.append(f's_add_u32 m0, s63, {XW*x}\n' + f'buffer_load_dwordx4 v{ha}, {WS}, s{60+x} offen sc1 lds')
        loads.append(f'buffer_load_dwordx4 v{ha}, {WS}, s{60+x} offen offset:1024 sc1 lds')
        loads.append(f'buffer_load_dword v{ha+1}, {WS}, s{60+x} offen offset:2048 sc1 lds')

    def hchk():
        for x in range(2):
            k(f'ds_read_b32 v{hr+3*x}, v{ha+2} offset:{XW*x}\nds_read_b32 v{hr+3*x+1}, v{ha+2} offset:{XW*x+1024}\nds_read_b32 v{hr+3*x+2}, v{ha+3} offset:{XW*x+2048}')
        check_sent(k, [hr + i for i in range(6)], hr + 6)()
    poll(k, loads, hchk, sleep=OPT['hsl2'])
    xmark(k, 'x', 3)
    k('s_barrier')


def build():
    k = K('m')
    k(f's_cmp_ge_u32 s2, 256\ns_cbranch_scc1 L_exit')
    if OPT['stamp']:
        k('s_memrealtime s[70:71]')
        for i in range(72, 96):
            k(f's_mov_b32 s{i}, 0')
    k(f'''s_load_dwordx16 s[8:23], s[0:1], 0
    s_load_dwordx8 s[24:31], s[0:1], 64
    s_load_dwordx2 s[32:33], s[0:1], 96''')
    if OPT['codepf']:
        k(f'''v_readfirstlane_b32 s4, v0
        s_lshr_b32 s5, s2, 3
        s_lshr_b32 s4, s4, 6
        s_cmp_lg_u32 s4, s5
        s_cbranch_scc1 L_nopf
        s_getpc_b64 s[52:53]
        L_pc:
        s_sub_u32 s52, s52, L_pc-{NAME}_kernel
        s_subb_u32 s53, s53, 0
        s_mov_b32 s54, L_code_end-{NAME}_kernel
        s_mov_b32 s55, 0x20000
        v_lshlrev_b32 v1, 7, v0''')
        k.raw('    buffer_load_dword v255, v1, s[52:55], 0 offen')
        k('v_add_u32 v1, 65536, v1')
        k.raw('    buffer_load_dword v255, v1, s[52:55], 0 offen')
        k.maxreg['v'] = 255
        k.label('L_nopf')
    k(f'''v_lshrrev_b32 v1, 6, v0
    v_and_b32 v0, 63, v0
    v_readfirstlane_b32 s{sWAVE}, v1
    v_and_b32 v1, 15, v0
    v_lshrrev_b32 v2, 4, v0
    s_and_b32 s{sJ}, s2, 7
    s_lshr_b32 s{sR}, s2, 3
    s_lshl_b32 s{sS2}, s{sJ}, 5
    s_add_u32 s{sS2}, s{sS2}, s{sR}
    s_mov_b32 s{sBUD}, 100000
    s_and_b32 s{sW}, s{sWAVE}, 3''')
    k(f's_cmp_ge_u32 s{sWAVE}, 4')
    k('s_cbranch_scc0 L_C' if OPT['ufirst'] else 's_cbranch_scc1 L_H')
    n0 = len(k.out)
    k.label('L_C')
    gen_C(k)
    tag(k, 'region -')
    n1 = len(k.out)
    k.label('L_H')
    k.fresh()
    gen_H(k)
    n2 = k.out.index('; @cut')
    if OPT['ufirst']:
        k.out = k.out[:n0] + k.out[n1:n2] + k.out[n0:n1] + k.out[n2 + 1:]
    else:
        del k.out[n2]
    k.label('L_end')
    if OPT['stamp']:
        k.fresh()
        k('s_memrealtime s[94:95]')
        k.wait(0, 0)
        k('s_memrealtime s[96:97]')
        k(f's_add_u32 s40, s{pWS}, {64*MB}\ns_addc_u32 s41, s{pWS+1}, 0\ns_mov_b32 s42, {1*MB}\ns_mov_b32 s43, 0x20000')
        k(f's_lshl_b32 s48, s2, 3\ns_add_u32 s48, s48, s{sWAVE}\ns_lshl_b32 s48, s48, 6\nv_mov_b32 v3, 0')
        for i in range(14):
            k(f'v_mov_b32 v{4+i}, s{70+2*i}')
        k(f'v_mov_b32 v18, s{sBUD}\ns_getreg_b32 s49, hwreg(HW_REG_XCC_ID)\ns_getreg_b32 s50, hwreg(HW_REG_HW_ID)\ns_and_b32 s49, s49, 15\ns_lshl_b32 s50, s50, 4\ns_or_b32 s49, s49, s50\nv_mov_b32 v19, s49')
        for i in range(4):
            k(f'buffer_store_dwordx4 {Q(4+4*i)}, v3, s[40:43], s48 offen offset:{16*i}')
        if OPT.get('trace'):
            k(f's_lshl_b32 s48, s48, 3\ns_add_u32 s48, s48, {MB//2}\ns_mov_b32 s42, {2*MB}\nv_lshlrev_b32 v3, 2, v0')
            k('buffer_store_dword v200, v3, s[40:43], s48 offen\nbuffer_store_dword v201, v3, s[40:43], s48 offen offset:256')
    k.label('L_exit')
    k('s_endpgm')
    k.label('L_code_end')
    if OPT['touch']:
        k.out, ch = page_touch([f'{NAME}_kernel:'] + k.out)
        k.out = k.out[1:]
        print(ch, file=sys.stderr)
    ref = open(f'/code/{NAME}.s.ref').read().split('\n')
    hdr = [l for l in ref if l.startswith(';') and '@launch' not in l]
    out = '\n'.join(hdr) + '\n'
    if OPT.get('aslist'):
        out += f'; @launch kernel={NAME}_kernel grid=(256,1,1) block=(512,1,1) lds=163840\n'
    else:
        out += '; @launch grid=(256,1,1) block=(512,1,1) lds=163840\n'
    out += '.amdgcn_target "amdgcn-amd-amdhsa--gfx950"\n.text\n'
    out += f'.globl {NAME}_kernel\n.p2align 8\n.type {NAME}_kernel,@function\n{NAME}_kernel:\n' + k.text()
    out += '.section .rodata,"a"\n' + descriptor(NAME + '_kernel', k.maxreg['v'] + 1, 0, k.maxreg['s'] + 1)
    print('vgpr', k.maxreg['v'] + 1, 'sgpr', k.maxreg['s'] + 1, k.stats, file=sys.stderr)
    return out


if __name__ == '__main__':
    path = f'/code/{NAME}.s'
    for a in sys.argv[1:]:
        if '=' in a:
            n, v = a.split('=')
            OPT[n] = int(v) if v.lstrip('-').isdigit() else ([int(x) for x in v.split(',')] if ',' in v else v)
        else:
            path = a
    if OPT.get('wsh'):
        WS_H2 += OPT['wsh'] * MB
        WS_U += OPT['wsh'] * MB
        WS_SIZE = 64 * MB
    open(path, 'w').write(build())
```

```python
import struct, sys
from asm import *

NAME = 'adaLN_cond__spectral_gfnet__mixer_token_mlp__prompt'
S, D, F = 2048, 576, 4608
MB = 1 << 20
WS_MOD, WS_EPOCH, WS_MODG, WS_MODB, WS_FLAG, WS_CUE = 0, 0x8000, 0xE80000, 0x30000, 0x40000, 0x80000
WS_WP, WS_T1, WS_T2, WS_X1, WS_H2, WS_U, WS_XCH = 1 * MB, 4 * MB, 8 * MB, 12 * MB, 16 * MB, 20 * MB, 26 * MB
WS_SIZE = 48 * MB
WS_XCUE = 36 * MB
WS_XRDY = 37 * MB
XW, XM, XB = 2304, 9216, 27648
WS_FL2 = 15 * MB
OOB = 0x7ff00000
MF = 'v_mfma_f32_16x16x32_bf16'
sW, sJ, sR, sS2, sBUD = 3, 4, 5, 6, 7
pX, pWR, pWI, pW1, pB1, pW2, pB2, pC, pWM, pOUT, pWS = 8, 10, 12, 16, 18, 20, 22, 24, 26, 28, 32
sWAVE = 34
WS = 's[36:39]'
vTAG = 3
L_SLAB, L_WST, L_MG, L_TR, L_SILU = 0, 36864, 61440, 77824, 90112
L_X = 100352
L_ST = L_X + 9472
L_M = L_ST + 128
L_E = L_M + 16384
L_MI = 147456
L_ACT = 98304
L_Z, L_MOD, L_Y, L_H = 98304, 108544, 116736, 135808
XROW, YROW = 1184, 2320
AST2, NST2 = 18432, 18
L_ACT2, NSA2, NSW2 = 90112, 4, 5
L_X1, L_GB, L_S = 2 * 16384, 81920, 3 * 16384
NSW = 6
OPT = dict(wo=0, nsp=4, n4x=0, wlead=0, wmax=6, nsa2=4, xc=0, xlead=2, xclr=[2, 8], xrdy=[12, 17], pf9=0, rot1=0, xcue=0, xsl=2, wx=0, hx=1, hsl=0, hsl2=1, stamp=0, codepf=1, poll_sleep=1, outflag='sc1', xst=4, xst2=0, a1pre=2, a2pre=3,
           asap=0, jit=2, xk=0, pfm=0, lz=1, ec2=0, single=0, pa=12, lead=0, fa1='sc1', fa2='sc1', fw1='', fw2='', a0=0, twi=0, ufirst=1, defer=4, wla2=2, sp1=0, sp2=2, spw=0, sl3=2, cl3=0, cl4=1, xo=26, touch=1, mw=1, wla=3, rs1=[6, 10, 14, 18, 22, 26], rs2=[4, 6, 8, 10, 11, 12], rf=0, f21=48, f22=32, pw1=[16, 16],
           pf1=0, pf2=96, pf3=2, pf4=2, pf4at=[0, 14, 0], pf8=2, pf8at=[0, 8, 0], a2la=27, pf5=288, pf6=0, pf7=0, x1=0, cue_at=2, wat=2, prew=1, m1early=2, tlb=0, dly=0, hp=1, up=2, f64=1, mb=2, fs=4, mask=1, warm=1, c2=1, wfl=1, wearly=1, pfd=0, xdef=2, rf2=8, ne=4, neq=[10, 22, 32], xm=7, nl=10, tw1=1, tw3=1, sl2=1, na=1, nm=1)


def geometry():
    global L_ACT2, NSA2, NSW2, L_X1, L_GB, L_S
    if OPT['nsa2'] == 5:
        L_ACT2, NSA2, NSW2 = 65536, 5, 4
        L_X1, L_S, L_GB = 0, 16384, 65536 + 5 * AST2


def quads(rg, rs, D):
    D0 = 2 * (NST2 - D)
    early = [rg[i] + 4 * j for i, n in enumerate(rs) if n < NST2 - D for j in range(4)]
    late = [rg[i] + 8 * st + 4 for i, n in enumerate(rs) if n >= NST2 - D for st in range(2)]
    steps = [q for q in range(D0, 2 * NST2) if q >> 1 not in rs]
    park = dict(zip(steps, early))
    assert all(n < NST2 - D - 1 for i, n in enumerate(rs) if rg[i] <= max(park.values()) and n < NST2 - D)
    return park, early[len(steps):] + late


def f32(x):
    return '0x%08x' % struct.unpack('<I', struct.pack('<f', x))[0]


def P(r):
    return f'v[{r}:{r+1}]'


def Q(r):
    return f'v[{r}:{r+3}]'


def srd(k, dst, ptr, size):
    k(f's_mov_b32 s{dst}, s{ptr}\ns_mov_b32 s{dst+1}, s{ptr+1}\ns_mov_b32 s{dst+2}, {size}\ns_mov_b32 s{dst+3}, 0x20000')


def mark(k, i):
    if OPT['stamp']:
        k.raw(f'    s_memrealtime s[{70+2*i}:{71+2*i}]')


def tag(k, what):
    if OPT['touch']:
        k.raw('    ; @' + what)


def xmark(k, grp, i):
    if OPT.get('mk') == grp:
        mark(k, i)
    if OPT.get('mk') == grp + 'c':
        k.raw(f'    s_memtime s[{70+2*i}:{71+2*i}]')


def bar(k, vm=None, lg=None):
    if vm is not None or lg is not None:
        k.wait(vm, lg)
    k('s_barrier')


def cs_pair(k, ang, tc, ts, dsts):
    k(f'v_cos_f32 v{tc}, v{ang}\nv_sin_f32 v{ts}, v{ang}')
    m = {'c': f'v{tc}', 's': f'v{ts}', '-c': f'-v{tc}', '-s': f'-v{ts}'}
    for d, lo, hi in dsts:
        k(f'v_cvt_pk_bf16_f32 v{d}, {m[lo]}, {m[hi]}')


def dft_frag(k, base, step, re, im, tmp, inverse):
    for j in range(4):
        a, tc, ts = tmp + 3 * (j & 1), tmp + 3 * (j & 1) + 1, tmp + 3 * (j & 1) + 2
        if j == 0:
            a = base
        elif j == 3:
            k(f'v_add_f32 v{a}, v{tmp}, v{step}')
        else:
            k(f'v_fma_f32 v{a}, v{step}, {float(j)}, v{base}')
        if inverse:
            cs_pair(k, a, tc, ts, [(re + j, 'c', '-s'), (im + j, 's', 'c')])
        else:
            cs_pair(k, a, tc, ts, [(re + j, 'c', 's'), (im + j, '-s', 'c')])


def red32(k, regs, t):
    for mod in ('quad_perm:[1,0,3,2]', 'quad_perm:[2,3,0,1]', 'row_half_mirror', 'row_mirror'):
        for r in regs:
            k(f'v_add_f32_dpp v{r}, v{r}, v{r} {mod} row_mask:0xf bank_mask:0xf')
    for i, r in enumerate(regs):
        k(f'v_mov_b32 v{t+i}, v{r}')
    for i, r in enumerate(regs):
        k(f'v_permlane16_swap_b32 v{r}, v{t+i}')
    for i, r in enumerate(regs):
        k(f'v_add_f32 v{r}, v{r}, v{t+i}')


def poll(k, loads, check, sleep=None, masked=False, alt=None):
    L, E = k.lab('Lp'), k.lab('Le')
    sleep = OPT['poll_sleep'] if sleep is None else sleep
    if alt and alt[2] > 1:
        k(f's_mov_b32 s14, {alt[2] - 1}')
    k.label(L)
    for l in loads:
        k(l)
    k.wait(0)
    check()
    k(f's_cbranch_vccz {E}')
    k(f's_sub_u32 s{sBUD}, s{sBUD}, 1\ns_cbranch_scc1 {E}')
    if alt and alt[2] > 1:
        k(f's_cmp_gt_i32 s14, 0\ns_cselect_b32 s15, {alt[1]}, 0\ns_sub_u32 s14, s14, 1')
        for r in alt[0]:
            k(f's_add_u32 s{r}, s{r}, s15')
    masked = masked and OPT['mask']
    if masked:
        k('s_mov_b64 exec, vcc')
    if sleep:
        k(f's_sleep {sleep}')
    k(f's_branch {L}')
    k.label(E)
    if masked:
        k('s_mov_b64 exec, -1')
    k(f's_max_i32 s{sBUD}, s{sBUD}, 0')


def check_tags(k, regs):
    def f():
        k(f'v_cmp_ne_u32 vcc, v{vTAG}, v{regs[0]}')
        for r in regs[1:]:
            k(f'v_cmp_ne_u32 s[48:49], v{vTAG}, v{r}\ns_or_b64 vcc, vcc, s[48:49]')
    return f


def publish(k, sync, sidx, t, ncue=0, cue_add=0):
    k(f'''s_lshl_b32 s48, s{sidx}, {OPT['fs']}
    s_lshl_b32 s49, s{sW}, 16
    s_add_u32 s48, s48, s49
    s_add_u32 s48, s48, {WS_FL2 + sync*0x40000}
    v_mov_b32 v{t}, {OOB}''')
    for a in range(OPT['na']):
        k(f'v_writelane_b32 v{t}, s48, {a}\ns_add_u32 s48, s48, 16384')
    if ncue:
        k(f'''s_add_u32 s48, s2, {8*cue_add}
        s_lshl_b32 s48, s48, 7
        s_add_u32 s48, s48, {WS_CUE + sync*0x8000}
        s_lshl_b32 s49, s{sW}, 8
        s_add_u32 s49, s49, s{sR}
        s_cmp_lt_u32 s49, {ncue}
        s_cselect_b32 s48, s48, {OOB}
        v_writelane_b32 v{t}, s48, 8''')


def do_publish(k, t):
    k(f'buffer_store_dword v{vTAG}, v{t}, {WS}, 0 offen sc1')
    k.wait(0)


def wait_cue(k, sync, t, sleep=4):
    k(f's_lshl_b32 s50, s2, 7\ns_add_u32 s50, s50, {WS_CUE + sync*0x8000}\nv_mov_b32 v{t}, 0')
    poll(k, [f'buffer_load_dword v{t+1}, v{t}, {WS}, s50 offen sc1'], check_tags(k, [t + 1]), sleep=sleep)


def h3_idx(k, d):
    k(f'''s_bfe_u32 s{d}, s{sS2}, 0x10002
    s_lshl_b32 s{d}, s{d}, 7
    s_lshr_b32 s{d+1}, s{sS2}, 3
    s_lshl_b32 s{d+1}, s{d+1}, 2
    s_add_u32 s{d}, s{d}, s{d+1}
    s_and_b32 s{d+1}, s{sS2}, 3
    s_add_u32 s{d}, s{d}, s{d+1}''')


def g1_tile(k):
    k(f'''s_mul_i32 s52, s{sJ}, 27
    s_add_u32 s52, s52, s{sR}
    s_mul_i32 s51, s52, 171
    s_lshr_b32 s51, s51, 10
    s_mul_i32 s48, s51, 6
    s_sub_u32 s52, s52, s48''')


def g2_tile(k):
    k(f'''s_lshr_b32 s53, s{sJ}, 1
    s_and_b32 s54, s{sJ}, 1
    s_lshl_b32 s54, s54, 3
    s_lshr_b32 s48, s{sR}, 2
    s_add_u32 s54, s54, s48
    s_and_b32 s55, s{sR}, 3''')


def ring_adv(k, s, step, lo, hi):
    k(f's_add_u32 s{s}, s{s}, {step}\ns_cmp_eq_u32 s{s}, {hi}\ns_cselect_b32 s{s}, {lo}, s{s}')


def preload_w(vW0, vW, pairs):
    r = []
    for half in range(2):
        mine = [(sl, f0) for sl, f0 in pairs if sl // 3 == half]
        if mine:
            r += [f'v_add_u32 v{vW+nt}, {49152*half}, v{vW0+nt}' for nt in range(2)]
        for sl, f0 in mine:
            for st in range(2):
                for nt in range(2):
                    f = f0 + 8 * st + 4 * nt
                    o = (sl % 3) * 16384 + st * 8192
                    r += [f'ds_read_b64_tr_b16 {P(f)}, v{vW+nt} offset:{o}', f'ds_read_b64_tr_b16 {P(f+2)}, v{vW+nt} offset:{o+4096}']
    return r


def reg_stages(g):
    return OPT['rs1'] if g == 0 else OPT['rs2']


def kappa(n, NST):
    rs = reg_stages(0 if NST == 32 else 1)
    return rs.index(n) if n in rs else len(rs) + n - sum(x < n for x in rs)


def leaders(g):
    if not OPT['lead'] & (1 << g):
        return 0, (27, 32)[g]
    l = [6 * (c & 3) + c for c in range(6)] if g == 0 else [4 * d + (d & 3) for d in range(8)]
    return sum(1 << x for x in l), (27, 32)[g] - len(l)


def spec_range(g):
    if g == 0:
        c = {(kappa(n, 32) + OPT['xst'] * (j & OPT['xm']) + OPT['xo']) % 32 for n in range(5) for j in range(8)}
    else:
        c = {kappa(n, NST2) for n in range(OPT['nsp'])}
    return min(c), max(c) - min(c) + 1


def clear_loop(k, sidx, stride, total, addr, ones, la):
    for x in range((total + stride - 1) // stride):
        L = k.lab()
        k(f's_add_u32 s48, s{sidx}, {x*stride}\ns_cmp_ge_u32 s48, {total}\ns_cbranch_scc1 {L}')
        addr()
        k.cond += 1
        k(f'buffer_store_dwordx4 {Q(ones)}, v{la}, {WS}, s48 offen sc1')
        k.cond -= 1
        k.label(L)


def gemm_c(k, MT, NST, NSA, ASTAGE, vA, vA4, vW0, vW, fa, fw, acc, rg, rs, w_is_A, at_end=None, last_order=None, defer=0, send=None, single=False, slot0=0):
    NT = 2
    for nt in range(NT):
        k(f'v_add_u32 v{vW+nt}, 49152, v{vW0+nt}')

    def reads(n, st, wslot):
        w, a = [None] * 4, []
        if wslot is not None:
            for nt in range(NT):
                f = fw + 4 * (st * NT + nt)
                r, o = (vW0 if wslot < 3 else vW) + nt, (wslot % 3) * 16384 + st * 8192
                w[2 * nt] = f'ds_read_b64_tr_b16 {P(f)}, v{r} offset:{o}'
                w[2 * nt + 1] = f'ds_read_b64_tr_b16 {P(f+2)}, v{r} offset:{o+4096}'
        o = (n % NSA) * ASTAGE + st * ASTAGE // 2
        for mt in range(MT):
            f = fa + 4 * ((0 if single else st) * MT + mt)
            if vA4 is not None and mt == MT - 1:
                a.append(f'ds_read_b128 {Q(f)}, v{vA4} offset:{o}')
            else:
                a.append(f'ds_read_b128 {Q(f)}, v{vA} offset:{o+256*mt}')
        if single:
            return [x for mt in range(MT) for x in (w[mt] if mt < 4 else None, a[mt])]
        return [w[0], a[0], w[1], a[1], w[2], a[2], w[3]] + a[3:]

    def mfmas(p, wb):
        r = []
        order = [(0, 0), (1, 0), (2, 0), (0, 1), (1, 1), (2, 1)] + [(mt, nt) for mt in range(3, MT) for nt in range(NT)]
        if single:
            order = [(mt, nt) for mt in range(MT) for nt in range(NT)]
        for mt, nt in order:
            a = acc + 4 * (mt * NT + nt)
            x, y = fa + 4 * ((0 if single else p) * MT + mt), wb + 4 * (p * NT + nt)
            if w_is_A:
                x, y = y, x
            r.append(f'{MF} {Q(a)}, {Q(x)}, {Q(y)}, {Q(a)}')
        return r
    def step(mm, rd, barrier, merged=True):
        if OPT.get('noread'):
            rd = []
        if OPT.get('nomfma'):
            mm = ['s_nop 0'] * len(mm)
        if not mm and barrier:
            k('s_barrier')
        per = 1 if len(mm) >= len(rd) else 2
        rd = list(rd) if per == 1 else [x for x in rd if x]
        done = 0
        for i, mi in enumerate(mm):
            if merged and OPT['mw'] and i == 6:
                k.wait(lg=done)
            k(mi)
            if barrier and i == 0:
                k('s_barrier')
            for x in rd[:per]:
                if x:
                    k(x)
                    done += 1
            rd = rd[per:]
        for x in rd:
            if x:
                k(x)
    isnt = lambda mi, nt: ((int(mi.split('[')[1].split(':')[0]) - acc) // 4) % 2 == nt
    prev, m = None, 0
    D0 = 2 * (NST - defer)
    assert all(n < NST - defer - 1 for n in rs)
    for n in range(NST):
        cur, wslot = (rg[rs.index(n)], None) if n in rs else (fw, (m + slot0) % NSW)
        m += n not in rs
        for st in range(2):
            rd = reads(n, st, wslot)
            mm = [] if prev is None and st == 0 else mfmas(st ^ 1, prev if st == 0 else cur)
            q = 2 * n + st
            if q >= D0:
                f, g = fw + 8 * st, rg[0] + 4 * (q - D0)
                rd[0], rd[2] = rd[0].replace(P(f), P(g)), rd[2].replace(P(f + 2), P(g + 2))
                rd = [rd[4], rd[6], rd[1], rd[3], rd[5]] + rd[7:] + [rd[0], rd[2]]
            if q > D0:
                step([x for x in mm if isnt(x, 1)], rd, st == 0, False)
                continue
            if mm and (OPT['mw'] and (n, st) != (0, 1) or (st == 0 and prev == fw)):
                k.wait(lg=MT - 3)
            step(mm, rd, st == 0, not single or OPT['mw'] == 2)
        prev = cur
    if not defer:
        k.wait(lg=0)
        if at_end:
            at_end()
        mm = mfmas(1, prev)
        if last_order:
            mm.sort(key=last_order)
        for mi in mm:
            k(mi)
        return
    acts = lambda q: [x for x in reads(q // 2, q % 2, None) if x]
    mm = [x for x in mfmas(1, prev) if isnt(x, 1)]
    mm.sort(key=last_order)
    last = 2 * NST - 1
    step(mm, acts(D0), False, False)
    step([x for x in mfmas(1, rg[0] + 4 * (last - D0) - 8) if isnt(x, 0)], [], False, False)
    send()
    for q in range(D0, last):
        step([x for x in mfmas(q % 2, rg[0] + 4 * (q - D0) - 8 * (q % 2)) if isnt(x, 0)], acts(q + 1) if q + 1 < last else [], False, False)
    at_end()


def gemm2_c(k, vAo, vAx, vA4, vW0, vW, fa, fw, accf, rg, rs, D, send_bc, send_a, at_end, fill={}, drain=None, vhi=None):
    MT, NST = 9, NST2
    last = 2 * NST - 1
    D0 = 2 * (NST - D)
    park, _ = quads(rg, rs, D)
    assert 1 <= D <= NSA2
    for nt in range(2):
        k(f'v_add_u32 v{vW+nt}, 49152, v{vW0+nt}')

    def aread(q, mt):
        sl = (q >> 1) % NSA2
        base = (vAo, vA4, vAx)
        if sl >= 4:
            base, sl = vhi, sl - 4
        v, o = (base[0], 256 * mt) if mt < 4 else ((base[1], 0) if mt == 4 else (base[2], 256 * (mt - 5)))
        return f'ds_read_b128 {Q(fa+4*mt)}, v{v} offset:{sl*AST2 + (q & 1)*9216 + o}'

    def wreg(q, nt):
        n, st = q >> 1, q & 1
        if n in rs:
            return rg[rs.index(n)] + 8 * st + 4 * nt
        if q >= D0 and nt == 0:
            return park[q]
        return fw + 8 * st + 4 * nt
    ring = [n for n in range(NST) if n not in rs]

    def wreads(q):
        n, st = q >> 1, q & 1
        if n in rs:
            return []
        sl = ring.index(n) % NSW2
        r = []
        for nt in (1, 0):
            f, v, o = wreg(q, nt), (vW0 if sl < 3 else vW) + nt, (sl % 3) * 16384 + st * 8192
            r += [f'ds_read_b64_tr_b16 {P(f)}, v{v} offset:{o}', f'ds_read_b64_tr_b16 {P(f+2)}, v{v} offset:{o+4096}']
        return r

    def mf(q, mt, nt):
        a = accf(mt, nt)
        return f'{MF} {Q(a)}, {Q(fa+4*mt)}, {Q(wreg(q, nt))}, {Q(a)}'

    def emit(mm, after, group=6, barrier=False, extra=None):
        if OPT.get('noread'):
            after = [[x for x in a if not x.startswith('ds_')] for a in after]
        if barrier and not mm:
            k('s_barrier')
        for i, m in enumerate(mm):
            if i % group == 0:
                k.cover(mm[i:i + group])
            k('s_nop 0' if OPT.get('nomfma') else m)
            if barrier and i == 0:
                k('s_barrier')
            for x in after[i]:
                k(x)
            if extra:
                for x in extra[:2]:
                    k(x)
                del extra[:2]
        for a in after[len(mm):]:
            for x in a:
                k(x)
    for q in range(last + 1):
        w = wreads(q)
        p = q - 1
        if p < 0:
            emit([], [w + [aread(q, mt) for mt in range(MT)]], barrier=True)
        elif p < D0:
            mm = [mf(p, mt, nt) for mt in range(MT) for nt in (1, 0)]
            after = [[] for _ in mm]
            for i, x in enumerate(w):
                after[2 * i].append(x)
            for mt in range(MT):
                after[2 * mt + 1].append(aread(q, mt))
            after[10] += fill.get(q, [])
            if q == drain:
                k.wait(0)
            emit(mm, after, barrier=not q & 1)
        else:
            mm = [mf(p, mt, 1) for mt in range(MT)]
            after = [[aread(q, mt)] for mt in range(MT)]
            for i, x in enumerate(w):
                after[(0, 1, 5, 6)[i]].append(x)
            emit(mm, after, group=3, barrier=not q & 1)
    emit([mf(last, mt, 1) for mt in range(MT)], [[] for _ in range(MT)], group=3)
    hi, lo = [4, 5, 6, 7, 8], [0, 1, 2, 3]
    emit([mf(last, mt, 0) for mt in hi + lo], [[aread(D0, mt)] for mt in hi + lo], group=9)
    x = send_bc()
    for q in range(D0, last):
        emit([mf(q, mt, 0) for mt in hi], [[aread(q + 1, mt)] if q + 1 < last else [] for mt in hi], group=5, extra=x)
    for y in x:
        k(y)
    x = None
    for q in range(D0, last):
        emit([mf(q, mt, 0) for mt in lo], [[aread(q + 1, mt)] if q + 1 < last else [] for mt in lo], group=4, extra=x)
        if x is None:
            x = send_a()
    for y in x:
        k(y)
    at_end()


def warm_xch(k, t, dst, store=False):
    k(f'''s_mul_i32 s48, s{sW}, 3072
    s_mul_i32 s49, s2, 36864
    s_add_u32 s48, s48, s49
    s_add_u32 s48, s48, {WS_XCH}''')
    for i in range(2):
        k(f'''v_add_u32 v{t}, {64*i}, v0
        v_min_u32 v{t}, 71, v{t}
        v_mul_u32_u24 v{t+1}, 2731, v{t}
        v_lshrrev_b32 v{t+1}, 16, v{t+1}
        v_mul_u32_u24 v{t+1}, {12288 - 24*128}, v{t+1}
        v_lshl_add_u32 v{t}, v{t}, 7, v{t+1}''')
        k.raw(f'    buffer_load_dword v{dst+i}, v{t}, {WS}, s48 offen')


def load_tag(k, t):
    k(f'v_mov_b32 v{t}, {WS_EPOCH}\nbuffer_load_dword v{vTAG}, v{t}, {WS}, 0 offen sc1')


def finish_tag(k):
    k(f's_mov_b32 s48, 0x9e3779b1\nv_mul_lo_u32 v{vTAG}, v{vTAG}, s48\nv_add_u32 v{vTAG}, 0x7f4a7c15, v{vTAG}\nv_or_b32 v{vTAG}, 0x01010101, v{vTAG}')


def w2_lane(k, t, d):
    k(f'''v_lshrrev_b32 v{t}, 4, v0
    v_and_b32 v{t+1}, 15, v0
    v_lshlrev_b32 v{t}, 12, v{t}
    v_lshl_add_u32 v{t}, v{t+1}, 7, v{t}
    s_lshr_b32 s48, s{sJ}, 1
    s_mul_i32 s48, s48, {1152*4096}
    s_and_b32 s49, s{sJ}, 1
    s_lshl_b32 s49, s49, 11
    s_add_u32 s48, s48, s49
    v_add_u32 v{t}, s48, v{t}
    s_mov_b32 s{d}, 0''')


def pf_loop(k, which, sN, stride, end, t, sd, tmp=50):
    assert 0 <= end <= 320 and stride > 0
    L, E = k.lab(), k.lab()
    if which == 2:
        w2_lane(k, t, tmp)
    k.label(L)
    k(f's_cmp_ge_u32 s{sN}, {end}\ns_cbranch_scc1 {E}')
    if which == 1:
        nl = OPT['nl']
        mg = {9: 911, 10: 820}[nl]
        k(f'''s_mul_i32 s48, s{sN}, {mg}
        s_lshr_b32 s48, s48, 13
        s_mul_i32 s49, s48, {nl}
        s_sub_u32 s49, s{sN}, s49
        s_lshl_b32 s49, s49, 6
        v_add_u32 v{t}, s49, v0
        s_and_b32 s49, s{sJ}, {OPT['xm']}
        s_mul_i32 s49, s49, {OPT['xst']}
        s_add_u32 s48, s48, s49
        s_add_u32 s48, s48, {OPT['xo']}''')
        if OPT['rot1']:
            assert nl == 10
            k(f'''s_mul_i32 s49, s{sJ}, 1152
            s_lshr_b32 s15, s49, 8
            s_mul_i32 s15, s15, {OPT['rot1']}
            s_add_u32 s15, s15, s48
            s_and_b32 s48, s49, -256''')
        else:
            k(f'''s_and_b32 s48, s48, 31
            s_mul_i32 s48, s48, {8*9216}
            s_mul_i32 s49, s{sJ}, 1152
            s_and_b32 s49, s49, {-256 if nl == 10 else -128}
            s_add_u32 s48, s48, s49''')
        k(f'''v_mul_u32_u24 v{t+1}, {mg}, v{t}
        v_lshrrev_b32 v{t+1}, 13, v{t+1}
        v_mul_u32_u24 v{t+2}, {nl}, v{t+1}
        v_sub_u32 v{t+2}, v{t}, v{t+2}
        v_and_b32 v{t}, 7, v{t+1}
        v_lshrrev_b32 v{t+1}, 3, v{t+1}
        v_lshl_add_u32 v{t}, v{t}, 8, v{t+1}
        v_mul_u32_u24 v{t}, 9216, v{t}
        v_lshl_add_u32 v{t}, v{t+2}, 7, v{t}''')
        if OPT['rot1']:
            k(f'''v_lshrrev_b32 v{t+2}, 1, v{t+2}
            v_mul_u32_u24 v{t+2}, {OPT['rot1']}, v{t+2}
            v_add_u32 v{t+2}, s15, v{t+2}
            v_and_b32 v{t+2}, 31, v{t+2}
            v_mul_u32_u24 v{t+2}, {8*9216}, v{t+2}
            v_add_u32 v{t}, v{t}, v{t+2}''')
    else:
        k(f'''s_add_u32 s48, s{sN}, s{tmp}
        s_cmp_ge_u32 s48, 288
        s_cselect_b32 s49, 288, 0
        s_sub_u32 s48, s48, s49
        s_lshl_b32 s48, s48, 14''')
    k.cond += 1
    k(f'buffer_load_dword v{t+3}, v{t}, s[{sd}:{sd+3}], s48 offen')
    k.cond -= 1
    k(f's_add_u32 s{sN}, s{sN}, {stride}\ns_branch {L}')
    k.label(E)


def tag_check4(k, r, t, first):
    k(f'''v_perm_b32 v{t}, v{r+1}, v{r}, s56
    v_perm_b32 v{t+1}, v{r+3}, v{r+2}, s57
    v_or_b32 v{t}, v{t}, v{t+1}''')
    if first:
        k(f'v_cmp_ne_u32 vcc, v{vTAG}, v{t}')
    else:
        k(f'v_cmp_ne_u32 s[48:49], v{vTAG}, v{t}\ns_or_b64 vcc, vcc, s[48:49]')


def check_sent(k, regs, t):
    def f():
        r = list(regs)
        k(f'v_max3_u32 v{t}, v{r[0]}, v{r[1]}, v{r[2]}')
        for x in r[3:]:
            k(f'v_max_u32 v{t}, v{t}, v{x}')
        k(f'v_cmp_eq_u32 vcc, -1, v{t}')
    return f


def stats(k, xf, u):
    k(f'v_pk_add_f32 {P(u)}, {P(xf)}, {P(xf+2)}\nv_pk_mul_f32 {P(u+2)}, {P(xf)}, {P(xf)}')
    for j in range(1, 9):
        if j > 1:
            k(f'v_pk_add_f32 {P(u)}, {P(u)}, {P(xf+2*j)}')
        k(f'v_pk_fma_f32 {P(u+2)}, {P(xf+2*j)}, {P(xf+2*j)}, {P(u+2)}')
    k(f'v_add_f32 v{u}, v{u}, v{u+1}\nv_add_f32 v{u+1}, v{u+2}, v{u+3}')
    red32(k, [u, u + 1], u + 2)
    k(f'''v_mul_f32 v{u}, {f32(-1/576)}, v{u}
    v_mul_f32 v{u+1}, {f32(1/576)}, v{u+1}
    v_fma_f32 v{u+1}, -v{u}, v{u}, v{u+1}
    v_max_f32 v{u+1}, 0, v{u+1}
    v_add_f32 v{u+1}, {f32(1e-5)}, v{u+1}
    v_rsq_f32 v{u+2}, v{u+1}
    v_mul_f32 v{u}, v{u}, v{u+2}''')


def gen_C(k):
    V = Alloc(4, 256)
    bb = V(4, 2); b2 = V()
    base = V.p
    xr = V(9, 1); t = V(12); twi = V(6); la = V(); a576 = V(); F64 = V(32, 4)
    keep = V.p
    mv = V(18, 2); ma = V(8); tw = V(8); xf = V(24, 2); st = V(16, 4); hf = V(12, 4); mf = V(60, 4); acc = V(24, 4)
    if OPT['touch'] == 2:
        tag(k, 'align')
    k(f'''v_lshrrev_b32 v{t}, 5, v0
    v_and_b32 v{t+1}, 31, v0
    v_mul_u32_u24 v{t+2}, {256*1152}, v{t}
    v_lshl_add_u32 v{t+2}, v{t+1}, 2, v{t+2}
    s_mul_i32 s62, s{sW}, {512*1152}
    s_mul_i32 s48, s{sS2}, 1152
    s_add_u32 s62, s62, s48''')
    srd(k, 40, pX, S * D * 2)
    for j in range(9):
        k(f'buffer_load_dword v{xr+j}, v{t+2}, s[40:43], s62 offen offset:{128*j}')
    srd(k, 36, pWS, WS_SIZE)
    load_tag(k, t + 3)
    g1_tile(k)
    g2_tile(k)
    srd(k, 44, pB1, F * 2)
    srd(k, 64, pB2, S * 2)
    k(f'''s_lshl_b32 s48, s51, 8
    s_lshl_b32 s49, s{sW}, 6
    s_add_u32 s48, s48, s49
    v_lshl_add_u32 v{t+4}, v2, 3, s48
    buffer_load_dwordx2 {P(bb)}, v{t+4}, s[44:47], 0 offen
    buffer_load_dwordx2 {P(bb+2)}, v{t+4}, s[44:47], 0 offen offset:32
    s_lshl_b32 s48, s54, 8
    s_add_u32 s48, s48, s49
    s_lshr_b32 s49, s53, 1
    s_lshl_b32 s49, s49, 5
    s_add_u32 s48, s48, s49
    v_lshl_add_u32 v{t+5}, v1, 1, s48
    buffer_load_ushort v{b2}, v{t+5}, s[64:67], 0 offen''')
    if OPT['tlb']:
        k(f'''s_cmp_eq_u32 s{sW}, 1
        s_cselect_b32 s56, s{pW1}, s{pWS}
        s_cselect_b32 s57, s{pW1+1}, s{pWS+1}
        s_cmp_eq_u32 s{sW}, 2
        s_cselect_b32 s56, s{pW2}, s56
        s_cselect_b32 s57, s{pW2+1}, s57
        s_cmp_eq_u32 s{sW}, 3
        s_cselect_b32 s56, s{pOUT}, s56
        s_cselect_b32 s57, s{pOUT+1}, s57
        s_mov_b32 s58, {S*F*2}
        s_cselect_b32 s58, {S*D*2}, s58
        s_cmp_eq_u32 s{sW}, 0
        s_cselect_b32 s58, {WS_SIZE}, s58
        s_mov_b32 s59, 0x20000
        v_lshlrev_b32 v{t+6}, {OPT['tlb']}, v0
        v_add_u32 v{t+6}, {(1<<OPT['tlb'])-128}, v{t+6}
        buffer_load_dword v{tw}, v{t+6}, s[56:59], 0 offen''')
    if OPT['warm']:
        h3_idx(k, 56)
        publish(k, 2, 56, t + 6)
        k(f's_lshl_b32 s56, s52, 6\ns_add_u32 s56, s56, s51')
        publish(k, 3, 56, t + 7, ncue=5, cue_add=27)
        k(f'buffer_load_dword v{ma}, v{t+6}, {WS}, 0 offen\nbuffer_load_dword v{ma+1}, v{t+7}, {WS}, 0 offen')
    if OPT['touch'] == 1:
        tag(k, 'align')
    xw = hf
    k(f'''v_lshlrev_b32 v{la}, 4, v0
    v_mul_u32_u24 v{xw}, {XROW}, v{t}
    v_lshl_add_u32 v{xw}, v{t+1}, 2, v{xw}
    s_mul_i32 s48, s{sW}, {2*XROW}
    s_add_u32 s48, s48, {L_X}
    v_add_u32 v{xw}, s48, v{xw}''')
    m = acc
    k(f'''v_lshrrev_b32 v{m}, 1, v1
    v_and_b32 v{m+1}, 1, v1
    v_and_b32 v{m+2}, 1, v{m}
    v_cvt_f32_u32 v{m}, v{m}
    v_cvt_f32_u32 v{m+1}, v{m+1}
    v_mul_f32 v{m}, {f32(0.125)}, v{m}
    v_mul_f32 v{m+1}, {f32(0.25)}, v{m+1}
    v_mul_u32_u24 v{m+2}, 0x8000, v{m+2}
    v_lshl_or_b32 v{m+2}, v{m+2}, 16, v{m+2}
    s_lshl_b32 s48, s{sW}, 10
    s_add_u32 s48, s48, {L_M}
    v_add_u32 v{m+3}, s48, v{la}
    s_mov_b32 s63, {f32(1/9)}''')
    for i in range(4):
        o = m + 12 + 4 * (i & 1)
        k(f'''s_add_u32 s48, s{sW}, {4*i}
        s_mul_i32 s49, s48, 43
        s_lshr_b32 s49, s49, 7
        s_mul_i32 s50, s49, 3
        s_sub_u32 s50, s48, s50
        s_lshl_b32 s50, s50, 2
        v_add_u32 v{m+4}, s50, v2
        v_cmp_gt_u32 vcc, 9, v{m+4}
        v_mul_u32_u24 v{m+4}, s49, v{m+4}
        v_cvt_f32_u32 v{m+4}, v{m+4}
        v_fma_f32 v{m+4}, v{m+4}, s63, v{m+1}
        v_add_f32 v{m+5}, v{m+4}, v{m}
        v_fma_f32 v{m+6}, v{m}, 2.0, v{m+4}
        v_add_f32 v{m+7}, v{m+6}, v{m}
        v_cos_f32 v{m+4}, v{m+4}
        v_cos_f32 v{m+5}, v{m+5}
        v_cos_f32 v{m+6}, v{m+6}
        v_cos_f32 v{m+7}, v{m+7}
        v_cvt_pk_bf16_f32 v{o}, v{m+4}, v{m+5}
        v_cvt_pk_bf16_f32 v{o+1}, v{m+6}, v{m+7}
        v_cndmask_b32 v{o}, 0, v{o}, vcc
        v_cndmask_b32 v{o+1}, 0, v{o+1}, vcc
        v_xor_b32 v{o+2}, v{m+2}, v{o}
        v_xor_b32 v{o+3}, v{m+2}, v{o+1}
        ds_write_b128 v{m+3}, {Q(o)} offset:{4096*i}''')
    def gen_twi():
        k(f'''v_lshrrev_b32 v{t+4}, 1, v2
        v_cvt_f32_u32 v{t+4}, v{t+4}
        v_add_f32 v{t+5}, 1.0, v{t+4}
        v_mul_f32 v{t+5}, {f32(1/(S*D))}, v{t+5}''')
        for tt in range(3):
            if tt:
                k(f'v_add_f32 v{t+4}, 2.0, v{t+4}')
            sc = f'v{t+5}' if tt == 0 else f32(2 / (S * D))
            k(f'''v_mul_f32 v{t+6}, v{t+4}, v{a576}
            v_cos_f32 v{t+7}, v{t+6}
            v_sin_f32 v{t+8}, v{t+6}
            v_mul_f32 v{twi+2*tt}, {sc}, v{t+7}
            v_mul_f32 v{twi+2*tt+1}, {sc}, v{t+8}''')

    def gen_f64():
        k(f'''s_lshl_b32 s48, s{sW}, 4
        v_add_u32 v{t+6}, s48, v1
        v_cvt_f32_u32 v{t+6}, v{t+6}
        v_mul_f32 v{t+6}, {f32(1/64)}, v{t+6}
        v_cvt_f32_u32 v{t+8}, v2
        v_mul_f32 v{t+8}, 4.0, v{t+8}''')
        for T in range(4):
            if T:
                k(f'v_add_f32 v{t+8}, {f32(16.0)}, v{t+8}')
            k(f'v_mul_f32 v{t+7}, v{t+8}, v{t+6}')
            dft_frag(k, t + 7, t + 6, F64 + 8 * T, F64 + 8 * T + 4, t, False)
        k(f'v_mul_f32 v{a576}, {f32(1/9)}, v{t+6}')
        for lb in range(1, 5):
            k(f'''v_mul_f32 v{t+4}, {f32(float(lb))}, v{a576}
            v_cos_f32 v{tw+2*lb-2}, v{t+4}
            v_sin_f32 v{tw+2*lb-1}, v{t+4}''')
    if OPT['f64'] == 0:
        gen_f64()
    if OPT['a0']:
        L1 = k.lab()
        k(f's_cmp_lt_u32 s2, 202\ns_cbranch_scc1 {L1}')
        vm = list(k.vm)
        if OPT['f64'] == 1:
            gen_f64()
        k.vm = vm
        k('s_barrier')
        k.label(L1)
    ta = st
    k(f'''v_lshrrev_b32 v{t+4}, 5, v0
    v_lshlrev_b32 v{t+4}, 2, v{t+4}
    s_lshl_b32 s48, s{sW}, 3
    s_add_u32 s48, s48, {L_ST}
    v_add_u32 v{t+4}, s48, v{t+4}
    v_bfe_u32 v{t}, v0, 2, 2
    v_mul_u32_u24 v{t}, {XROW}, v{t}
    v_and_b32 v{t+1}, 3, v0
    v_lshl_add_u32 v{t}, v{t+1}, 3, v{t}
    s_lshl_b32 s48, s{sW}, 5
    s_add_u32 s48, s48, {L_X}
    v_add_u32 v{t+1}, s48, v{t}
    v_lshl_add_u32 v{t}, v2, 7, v{t+1}
    v_mov_b32 v{t+2}, {L_ST}
    v_add_u32 v{t+3}, {L_M}, v{la}''')
    for j in range(9):
        k(f'ds_write_b32 v{xw}, v{xr+j} offset:{128*j}')
        k(f'v_lshlrev_b32 v{xf+2*j}, 16, v{xr+j}\nv_and_b32 v{xf+2*j+1}, 0xffff0000, v{xr+j}')
    stats(k, xf, t + 6)
    k(f'ds_write_b32 v{t+4}, v{t+8}\nds_write_b32 v{t+4}, v{t+6} offset:32')
    mark(k, 1)
    if OPT['touch'] == 3:
        tag(k, 'align')
    bar(k, lg=0)
    for i in range(4):
        k(f'ds_read_b128 {Q(st+4*i)}, v{t+2} offset:{16*i}')
    for tt in range(3):
        a = t if tt < 2 else t + 1
        k(f'ds_read_b64_tr_b16 {P(hf+4*tt)}, v{a} offset:{512*tt}')
        k(f'ds_read_b64_tr_b16 {P(hf+4*tt+2)}, v{a} offset:{512*tt+4*XROW}')
    for fi in range(15):
        k(f'ds_read_b128 {Q(mf+4*fi)}, v{t+3} offset:{1024*fi}')
    if OPT['f64'] == 1:
        L1 = k.lab()
        if OPT['a0']:
            k(f's_cmp_ge_u32 s2, 202\ns_cbranch_scc1 {L1}')
        lg, vm = list(k.lg), list(k.vm)
        gen_f64()
        k.lg, k.vm = lg, vm
        k.label(L1)
    for tt in range(3):
        for p in range(4):
            x = xf + 8 * tt + 2 * p
            k(f'''v_lshlrev_b32 v{x}, 16, v{hf+4*tt+p}
            v_and_b32 v{x+1}, 0xffff0000, v{hf+4*tt+p}
            v_pk_fma_f32 {P(x)}, {P(x)}, {P(st+2*p)}, {P(st+8+2*p)}''')
    def gen_m1i(m):
        k(f'''v_and_b32 v{m}, 7, v1
        v_cvt_f32_u32 v{m}, v{m}
        v_mul_f32 v{m}, {f32(0.125)}, v{m}
        v_and_b32 v{m+1}, 1, v2
        v_cvt_f32_u32 v{m+1}, v{m+1}
        v_mul_f32 v{m+1}, 4.0, v{m+1}
        v_mul_f32 v{m+1}, v{m+1}, v{m}
        v_lshrrev_b32 v{m+2}, 3, v1
        v_lshrrev_b32 v{m+3}, 1, v2
        s_lshl_b32 s48, s{sW}, 10
        s_add_u32 s48, s48, {L_MI}
        v_add_u32 v{m+4}, s48, v{la}''')
        for i in range(4):
            o = m + 12 + 4 * (i & 1)
            k(f'''s_add_u32 s48, s{sW}, {4*i}
            s_mul_i32 s49, s48, 43
            s_lshr_b32 s49, s49, 7
            s_mul_i32 s50, s49, 3
            s_sub_u32 s50, s48, s50
            s_lshl_b32 s50, s50, 1
            s_lshl_b32 s49, s49, 1
            v_add_u32 v{m+5}, s49, v{m+2}
            v_add_u32 v{m+6}, s50, v{m+3}
            v_cmp_gt_u32 vcc, 9, v{m+5}
            v_cmp_gt_u32 s[48:49], 5, v{m+6}
            v_mul_u32_u24 v{m+5}, v{m+5}, v{m+6}
            v_cvt_f32_u32 v{m+5}, v{m+5}
            s_and_b64 vcc, vcc, s[48:49]
            v_fma_f32 v{m+5}, v{m+5}, s63, v{m+1}''')
            for j in range(4):
                if j:
                    k(f'v_add_f32 v{m+5}, v{m+5}, v{m}')
                cs_pair(k, m + 5, m + 6 + 2 * (j & 1), m + 7 + 2 * (j & 1), [(o + j, 'c', '-s')])
            for j in range(4):
                k(f'v_cndmask_b32 v{o+j}, 0, v{o+j}, vcc')
            k(f'ds_write_b128 v{m+4}, {Q(o)} offset:{4096*i}')
    if OPT['m1early'] == 1:
        gen_m1i(acc)
    if OPT['m1early'] == 2:
        L1 = k.lab()
        k.wait(lg=0)
        k(f's_cmp_ge_u32 s2, 202\ns_cbranch_scc1 {L1}')
        gen_m1i(acc)
        k.label(L1)
    gen_twi()
    finish_tag(k)
    k(f'''s_lshl_b32 s48, s{sW}, 6
    s_add_u32 s48, s48, {L_E}
    v_mul_u32_u24 v{t}, 576, v2
    v_lshl_add_u32 v{t}, v1, 2, v{t}
    v_add_u32 v{t}, s48, v{t}
    v_mul_u32_u24 v{t+1}, 288, v1
    v_lshl_add_u32 v{t+1}, v2, 4, v{t+1}
    v_add_u32 v{t+1}, {L_E}, v{t+1}
    v_bfe_u32 v{t+9}, v1, 1, 2
    v_xor_b32 v{t+9}, v{t+9}, v2
    v_lshl_add_u32 v{t+9}, v1, 2, v{t+9}
    s_mul_i32 s48, s{sW}, 3072
    s_add_u32 s48, s48, {L_TR}
    v_lshl_add_u32 v{t+9}, v{t+9}, 4, s48
    v_add_u32 v{t+10}, s48, v{la}
    v_lshrrev_b32 v{t+2}, 3, v0
    v_xor_b32 v{t+2}, v{t+2}, v0
    v_and_b32 v{t+2}, 3, v{t+2}
    v_lshlrev_b32 v{t+2}, 4, v{t+2}
    v_lshrrev_b32 v{t+3}, 2, v0
    v_lshl_add_u32 v{t+2}, v{t+3}, 16, v{t+2}
    s_lshl_b32 s48, s{sW}, 14
    s_lshl_b32 s49, s{sS2}, 6
    s_add_u32 s48, s48, s49
    s_add_u32 s48, s48, {WS_T1}
    v_add_u32 v{t+2}, s48, v{t+2}
    v_add_u32 v{t+3}, {1<<20}, v{t+2}
    v_add_u32 v{t+4}, {2<<20}, v{t+2}
    v_cmp_gt_u32 vcc, 32, v0
    v_mov_b32 v{t+5}, {OOB}
    v_cndmask_b32 v{t+4}, v{t+5}, v{t+4}, vcc
    s_lshl_b32 s58, s{sW}, 12
    s_add_u32 s58, s58, {L_MG}
    v_lshl_add_u32 v{ma+3}, v1, 2, s58
    v_lshl_add_u32 v{ma}, v2, 6, v{ma+3}
    v_add_u32 v{ma+3}, 512, v{ma+3}
    v_add_u32 v{ma+1}, 1152, v{ma}
    v_add_u32 v{ma+2}, 2304, v{ma}
    v_add_u32 v{ma+4}, 1152, v{ma+3}
    v_add_u32 v{ma+5}, 2304, v{ma+3}
    v_cmp_gt_u32 vcc, 24, v0
    v_cndmask_b32 v{ma+6}, v{t+5}, v{la}, vcc
    s_mul_i32 s59, s{sJ}, 13824
    s_mul_i32 s48, s{sW}, 3456
    s_add_u32 s59, s59, s48
    s_add_u32 s59, s59, {WS_MODG}
    v_min_u32 v{ma+7}, {31*16}, v{la}
    s_mul_i32 s48, s{sW}, 2560
    s_mul_i32 s60, s{sS2}, 10240
    s_add_u32 s60, s60, s48
    s_add_u32 s60, s60, {WS_T2}
    v_mov_b64 {P(st+12)}, -1
    v_mov_b64 {P(st+14)}, -1
    v_and_b32 v{t+6}, 3, v1
    v_lshlrev_b32 v{t+6}, 3, v{t+6}
    v_bfe_u32 v{t+6}, v{vTAG}, v{t+6}, 8
    s_mov_b32 m0, s58''')
    tag(k, 'touch c1')
    tag(k, 'region c1')
    k.wait(0, 0)
    mark(k, 2)

    def chk():
        for p in range(3):
            for tt in range(3):
                o = 64 * tt if tt < 2 else 0
                k(f'ds_read2_b32 {P(mv+6*p+2*tt)}, v{ma+p+(3 if tt==2 else 0)} offset0:{o} offset1:{o+144}')
        for i in range(0, 18, 2):
            k(f'v_xor_b32 v{mv+i}, v{mv+i}, v{t+6}\nv_xor_b32 v{mv+i+1}, v{mv+i+1}, v{t+6}')
            k(f'v_or3_b32 v{t+8}, v{mv+i}, v{mv+i+1}, v{t+8}' if i else f'v_or_b32 v{t+8}, v{mv}, v{mv+1}')
        k(f'v_and_b32 v{t+8}, 0xff, v{t+8}\nv_cmp_ne_u32 vcc, 0, v{t+8}')

    def clr2():
        for i in range(3):
            k(f'buffer_store_dwordx4 {Q(st+12)}, v{la if i<2 else ma+7}, {WS}, s60 offen offset:{1024*i} sc1')
    if OPT['c2'] == 0:
        clr2()
        k.wait(0)
    if OPT['dly']:
        k(f's_sleep {OPT["dly"]}')
    poll(k, [f'buffer_load_dwordx4 v{la if i<3 else ma+6}, {WS}, s59 offen offset:{1024*i} sc1 lds' for i in range(4)], chk, alt=([59], 0x20000, OPT['nm']))
    mark(k, 3)
    if OPT['c2'] == 1:
        clr2()
    for tt in range(3):
        a = mv + 2 * tt
        k(f'v_pk_add_f32 {P(a)}, {P(a)}, {P(a+6)}')
    for tt in range(3):
        a = mv + 2 * tt
        k(f'v_pk_add_f32 {P(a)}, {P(a)}, {P(a+12)}')
    for tt in range(3):
        a = mv + 2 * tt
        k(f'''v_cvt_pk_bf16_f32 v{a+6}, v{a}, v{a+1}
        v_and_b32 v{a+1}, 0xffff0000, v{a+6}
        v_add_f32 v{a+1}, 1.0, v{a+1}
        v_lshlrev_b32 v{a}, 16, v{a+6}
        v_cvt_pk_bf16_f32 v{a+1}, 0, v{a+1}''')
        for p in range(4):
            x = xf + 8 * tt + 2 * p
            k(f'v_pk_fma_f32 {P(x)}, {P(x)}, {P(a)}, {P(a)} op_sel:[0,1,0] op_sel_hi:[1,1,0]')
        for p in range(4):
            x = xf + 8 * tt + 2 * p
            k(f'v_cvt_pk_bf16_f32 v{hf+4*tt+p}, v{x}, v{x+1}')

    def twid(lb):
        r = []
        for jj in range(2):
            z = acc + 4 * lb + 2 * jj
            o = xf + 4 * (jj + 2 * (lb & 1))
            c = tw + 2 * lb - 2
            if lb == 0:
                r.append(f'v_cvt_pk_bf16_f32 v{o+2}, v{z}, v{z+1}')
            elif OPT['tw1'] & 1:
                r += [f'v_mul_f32 v{o}, v{z}, v{c}', f'v_mul_f32 v{o+1}, v{z+1}, v{c}',
                      f'v_fmac_f32 v{o}, v{z+1}, v{c+1}', f'v_fma_f32 v{o+1}, -v{z}, v{c+1}, v{o+1}',
                      f'v_cvt_pk_bf16_f32 v{o+2}, v{o}, v{o+1}']
            else:
                r += [f'v_pk_mul_f32 {P(o)}, {P(z)}, {P(c)} op_sel_hi:[1,0]',
                      f'v_pk_fma_f32 {P(o)}, {P(z)}, {P(c)}, {P(o)} op_sel:[1,1,0] op_sel_hi:[0,1,1] neg_hi:[1,0,0]',
                      f'v_cvt_pk_bf16_f32 v{o+2}, v{o}, v{o+1}']
            r.append(f'ds_write_b32 v{t}, v{o+2} offset:{(8*lb+jj)*288}')
        return r
    order = [1, 2, 3, 4, 0]
    pend = []
    for x, lb in enumerate(order):
        if x >= 2:
            pend += twid(order[x - 2])
        for tt in range(3):
            a = acc + 4 * lb
            k(f'{MF} {Q(a)}, {Q(mf+4*(3*lb+tt))}, {Q(hf+4*tt)}, ' + ('0' if tt == 0 else Q(a)))
            for _ in range(0 if OPT['tw1'] & 2 else (2 if OPT['tw1'] & 1 else (4 if tt < 2 else 0))):
                if pend:
                    k(pend.pop(0))
    for x in pend + twid(order[3]) + twid(order[4]):
        k(x)
    k.wait(lg=0)
    xmark(k, 'p1', 10)
    k('s_barrier')
    xmark(k, 'p1', 11)
    ef = mf
    for tt in range(3):
        for T in range(4):
            k(f'ds_read_b128 {Q(ef+4*(4*tt+T))}, v{t+1} offset:{16*288*tt+64*T}')
    pend = []
    for tt in range(3):
        for T in range(4):
            for ri in range(2):
                a = acc + 8 * tt + 4 * ri
                k(f'{MF} {Q(a)}, {Q(F64+8*T+4*ri)}, {Q(ef+4*(4*tt+T))}, ' + ('0' if T == 0 else Q(a)))
                if T >= 2 and pend:
                    k(pend.pop(0))
        for x in pend:
            k(x)
        o = hf + 4 * tt
        pend = [f'v_cvt_pk_bf16_f32 v{o+j}, v{acc+8*tt+j}, v{acc+8*tt+4+j}' for j in range(4)]
        st_prev = f'buffer_store_dwordx4 {Q(st+4*(tt-1))}, v{t+1+tt}, {WS}, 0 offen sc1'
        pend.append(f'ds_write_b128 v{t+9}, {Q(o)} offset:{1024*tt}\nds_read_b128 {Q(st+4*tt)}, v{t+10} offset:{1024*tt}')
        if tt:
            pend.append(st_prev)
    for x in pend:
        k(x)
    k(f'buffer_store_dwordx4 {Q(st+8)}, v{t+4}, {WS}, 0 offen sc1')
    if OPT['c2'] == 2:
        clr2()
    mark(k, 4)
    V.p = keep
    za = V(8); zf = V(48, 4); mf = V(60, 4); acc = V(24, 4); ef = V(12, 4); ad = V(8); zl = V(4); xf = V(18, 2)
    yf = zf + 20
    assert za + 8 <= st
    k(f'''v_lshrrev_b32 v{t}, 2, v1
    v_and_b32 v{t}, 2, v{t}
    v_xor_b32 v{t}, v{t}, v2
    v_lshlrev_b32 v{t}, 4, v{t}
    v_lshl_add_u32 v{t}, v1, 8, v{t}
    v_add_u32 v{t}, {L_Z}, v{t}
    v_and_b32 v{t+1}, 7, v1
    v_lshlrev_b32 v{t+1}, 8, v{t+1}
    v_lshl_add_u32 v{t+1}, v2, 4, v{t+1}
    v_add_u32 v{t+1}, {L_Z}, v{t+1}
    v_and_b32 v{t+5}, 3, v1''')
    for T in range(4):
        k(f'''v_xor_b32 v{t+6}, {T}, v{t+5}
        v_lshl_add_u32 v{za+T}, v{t+6}, 6, v{t}
        v_lshl_add_u32 v{za+4+T}, v{t+6}, 6, v{t+1}''')
    k(f'''v_and_b32 v{t}, 7, v1
    v_mul_u32_u24 v{t}, {YROW}, v{t}
    v_lshl_add_u32 v{t}, v2, 4, v{t}
    s_lshl_b32 s48, s{sW}, 6
    s_add_u32 s48, s48, {L_Y}
    v_add_u32 v{t}, s48, v{t}
    v_lshrrev_b32 v{t+1}, 3, v1
    v_lshl_add_u32 v{ad+1}, v{t+1}, 8, v{t}
    v_cmp_gt_u32 vcc, 8, v1
    v_mov_b32 v{t+5}, {L_Y+8*YROW-2048}
    v_cndmask_b32 v{ad}, v{t+5}, v{t}, vcc
    v_lshrrev_b32 v{t+5}, 5, v0
    s_lshl_b32 s48, s{sW}, 1
    v_add_u32 v{t+5}, s48, v{t+5}
    v_and_b32 v{t+6}, 31, v0
    v_mul_u32_u24 v{t}, {YROW}, v{t+5}
    v_lshl_add_u32 v{t}, v{t+6}, 3, v{t}
    v_add_u32 v{ad+2}, {L_Y}, v{t}
    v_mul_u32_u24 v{t}, {XROW}, v{t+5}
    v_lshl_add_u32 v{t}, v{t+6}, 2, v{t}
    v_add_u32 v{ad+3}, {L_H}, v{t}
    v_mul_u32_u24 v{t}, 1152, v{t+5}
    v_lshl_add_u32 v{t}, v{t+6}, 2, v{t}
    v_add_u32 v{ad+7}, {L_Z}, v{t}
    v_lshlrev_b32 v{t}, 3, v{t+6}
    v_add_u32 v{ad+4}, {L_MOD}, v{t}
    v_add_u32 v{a576}, {L_MOD+256}, v{t}
    v_bfe_u32 v{t}, v0, 2, 2
    v_mul_u32_u24 v{t}, {XROW}, v{t}
    v_and_b32 v{t+1}, 3, v0
    v_lshl_add_u32 v{t}, v{t+1}, 3, v{t}
    v_lshl_add_u32 v{t}, v2, 5, v{t}
    s_lshl_b32 s48, s{sW}, 7
    s_add_u32 s48, s48, {L_H}
    v_add_u32 v{ad+5}, s48, v{t}
    v_add_u32 v{ad+6}, {L_MI}, v{la}
    v_min_u32 v{zl}, {31*16}, v{la}
    s_mul_i32 s48, s{sW}, 2560
    s_mul_i32 s66, s{sS2}, 10240
    s_add_u32 s66, s66, s48
    s_add_u32 s66, s66, {WS_T2}
    s_add_u32 s48, s48, {L_Z}
    v_add_u32 v{zl+1}, s48, v{la}
    v_add_u32 v{zl+2}, s48, v{zl}
    s_lshr_b32 s48, s{sJ}, 1
    s_lshl_b32 s48, s48, 12
    s_mul_i32 s49, s{sW}, 640
    s_add_u32 s48, s48, s49
    s_add_u32 s48, s48, {WS_FLAG + 0x8000}
    v_min_u32 v{zl+3}, {39*16}, v{la}
    v_add_u32 v{zl+3}, s48, v{zl+3}''')
    k.wait(0)
    if OPT.get('mk') != 'u':
        mark(k, 1)
    bar(k, 0)
    if OPT['wx'] == 1:
        warm_xch(k, t, ef)
    if not OPT['m1early']:
        gen_m1i(acc)
    if OPT['m1early'] == 2:
        L1 = k.lab()
        k(f's_cmp_lt_u32 s2, 202\ns_cbranch_scc1 {L1}')
        gen_m1i(acc)
        k.label(L1)
    k(f's_lshl_b32 s58, s{sW}, 10')
    k(f'''v_add_u32 v{t}, s58, v{la}
    v_add_u32 v{t+1}, 4096, v{t}
    v_min_u32 v{t+1}, {431*16}, v{t+1}
    v_min_u32 v{t+2}, {143*16}, v{t}
    v_add_u32 v{t+2}, {432*16}, v{t+2}
    s_mov_b32 s56, 0x0c0c0400
    s_mov_b32 s57, 0x04000c0c
    s_mov_b32 s58, {WS_MODB}
    s_mov_b32 s59, {WS_MODB+9216}
    s_mov_b32 s60, {WS_MODB+18432}''')
    mb = zf

    def modb_loads(rounds):
        return [f'buffer_load_dwordx4 {Q(mb+12*x+4*p)}, v{t+rd}, {WS}, s{58+p} offen sc1' for x, rd in enumerate(rounds) for p in range(2)]

    def modb_chk(n):
        def f():
            for x in range(2 * n):
                tag_check4(k, mb + 12 * (x >> 1) + 4 * (x & 1), t + 4, x == 0)
        return f

    def modb_sum(x, one):
        a = mb + 12 * x
        for j in range(8):
            k(f'v_and_b32 v{a+j}, 0xffffff00, v{a+j}')
        for p in (1,):
            k(f'v_pk_add_f32 {P(a)}, {P(a)}, {P(a+4*p)}\nv_pk_add_f32 {P(a+2)}, {P(a+2)}, {P(a+4*p+2)}')
        for j in range(4):
            k(f'v_cvt_pk_bf16_f32 v{a+j}, 0, v{a+j}')
        if one is not None:
            for j in range(4):
                k(f'v_add_f32 v{a+j}, v{a+j}, v{one}')
            for j in range(4):
                k(f'v_cvt_pk_bf16_f32 v{a+j}, 0, v{a+j}')

    def clear_h2():
        c0, n = spec_range(0)
        k(f'v_mov_b64 {P(ef)}, -1\nv_mov_b64 {P(ef+2)}, -1\ns_lshl_b32 s61, s2, 2\ns_add_u32 s61, s61, s{sW}')
        clear_loop(k, 61, 640, 72 * n, lambda: k(f's_lshl_b32 s48, s48, 10\ns_add_u32 s48, s48, {WS_H2 + c0*73728}'), ef, la)
    L1 = k.lab()
    k.wait(lg=0)
    k(f's_cmp_ge_u32 s{sR}, 20\ns_cbranch_scc1 {L1}')
    if OPT['sp1'] and OPT['cl3'] == 0:
        clear_h2()
        k.wait(0)
    k('s_barrier')
    if OPT['sp1'] and OPT['cl3'] == 1:
        clear_h2()
    k.label(L1)
    for l in modb_loads([0, 1]):
        k(l)
    L1 = k.lab()
    k(f's_cmp_ge_u32 s{sR}, 20\ns_cbranch_scc1 {L1}\ns_barrier')
    if OPT['sp1'] and OPT['cl3'] == 1:
        vm = k.vm
        bar(k, 4)
        k.vm = vm
    k.label(L1)
    L2 = k.lab()
    k.wait(0)
    modb_chk(2)()
    k(f's_cbranch_vccz {L2}')
    poll(k, modb_loads([0, 1]), modb_chk(2))
    k.label(L2)
    k(f'v_cmp_le_u32 vcc, {288*16}, v{t+1}\nv_cndmask_b32 v{t+4}, 0, 1.0, vcc')
    modb_sum(0, None)
    modb_sum(1, t + 4)
    k(f'''v_add_u32 v{t+4}, {L_MOD}, v{t}
    v_add_u32 v{t+5}, {L_MOD}, v{t+1}
    ds_write_b128 v{t+4}, {Q(mb)}
    ds_write_b128 v{t+5}, {Q(mb+12)}''')
    L2 = k.lab()
    k(f's_cmp_lg_u32 s2, 255\ns_cbranch_scc1 {L2}')
    k(f's_mov_b32 s50, {WS_MOD+2*2304}')
    k(f'buffer_store_dwordx4 {Q(mb)}, v{t}, {WS}, s50 offen sc1\nbuffer_store_dwordx4 {Q(mb+12)}, v{t+1}, {WS}, s50 offen sc1')
    mb += 24
    poll(k, modb_loads([2]), modb_chk(1))
    modb_sum(0, None)
    k(f'buffer_store_dwordx4 {Q(mb)}, v{t+2}, {WS}, s50 offen sc1')
    k.label(L2)
    for j in range(9):
        k(f'v_lshlrev_b32 v{xf+2*j}, 16, v{xr+j}\nv_and_b32 v{xf+2*j+1}, 0xffff0000, v{xr+j}')
    LN, LJ = k.lab(), k.lab()
    k(f's_cmp_ge_u32 s{sR}, 20\ns_cbranch_scc1 {LN}')
    for fi in range(15):
        k(f'ds_read_b128 {Q(mf+4*fi)}, v{ad+6} offset:{1024*fi}')
    bar(k, lg=0)
    k(f's_branch {LJ}')
    k.label(LN)
    bar(k, lg=0)
    for fi in range(15):
        k(f'ds_read_b128 {Q(mf+4*fi)}, v{ad+6} offset:{1024*fi}')
    if OPT['ec2'] != 2:
        wait_cue(k, 1, t)
    k.wait(lg=0)
    k.label(LJ)
    if OPT['ec2']:
        poll(k, [f'buffer_load_dword v{t}, v{zl+3}, {WS}, 0 offen sc1'], check_tags(k, [t]), masked=True)
    mark(k, 5)
    zi = ef
    poll(k, [f'buffer_load_dwordx4 {Q(zi+4*i)}, v{la if i<2 else zl}, {WS}, s66 offen offset:{1024*i} sc1' for i in range(3)],
         check_sent(k, [zi, zi + 4, zi + 8], t), masked=True, sleep=OPT['sl2'])
    for i in range(3):
        k(f'ds_write_b128 v{zl+1 if i<2 else zl+2}, {Q(zi+4*i)} offset:{1024*i}')
    mark(k, 6)
    bar(k, lg=0)
    xmark(k, 'p3', 1)
    xmark(k, 'q3', 1)
    for tt in range(3):
        for T in range(4):
            k(f'ds_read_b128 {Q(zf+4*(4*tt+T))}, v{za+T+(4 if tt==2 else 0)} offset:{4096*tt}')

    def twid3(tt):
        c = twi + 2 * tt
        if OPT['tw3'] & 1:
            r = []
            for j in range(4):
                re, im, o = acc + 8 * tt + j, acc + 8 * tt + 4 + j, t + 2 * j
                r.append([f'v_mul_f32 v{o}, v{re}, v{c}', f'v_mul_f32 v{o+1}, v{im}, v{c}',
                          f'v_fma_f32 v{o}, -v{im}, v{c+1}, v{o}', f'v_fmac_f32 v{o+1}, v{re}, v{c+1}',
                          f'v_cvt_pk_bf16_f32 v{ef+4*tt+j}, v{o}, v{o+1}'])
            return sum(r, [])
        r = [[], []]
        for p in range(2):
            re, im, o = acc + 8 * tt + 2 * p, acc + 8 * tt + 4 + 2 * p, t + 4 * p
            r[p] = [f'v_pk_mul_f32 {P(o)}, {P(re)}, {P(c)} op_sel_hi:[1,0]',
                    f'v_pk_mul_f32 {P(o+2)}, {P(im)}, {P(c)} op_sel_hi:[1,0]',
                    f'v_pk_fma_f32 {P(o)}, {P(im)}, {P(c)}, {P(o)} op_sel:[0,1,0] neg_lo:[1,0,0] neg_hi:[1,0,0]',
                    f'v_pk_fma_f32 {P(o+2)}, {P(re)}, {P(c)}, {P(o+2)} op_sel:[0,1,0]',
                    f'v_cvt_pk_bf16_f32 v{ef+4*tt+2*p}, v{o}, v{o+2}',
                    f'v_cvt_pk_bf16_f32 v{ef+4*tt+2*p+1}, v{o+1}, v{o+3}']
        return [r[p][2 * q + i] for q in range(3) for p in range(2) for i in range(2)]
    ya = zf
    s2m = [[f'{MF} {Q(acc+8*tt+4*ri)}, {Q(zf+4*(4*tt+T))}, {Q(F64+8*T+4*(1-ri))}, ' + ('0' if T == 0 else Q(acc + 8 * tt + 4 * ri))
            for T in range(4) for ri in range(2)] for tt in range(3)]
    jm = [[f'{MF} {Q(ya+4*mt)}, {Q(ef+4*tt)}, {Q(mf+4*(3*mt+tt))}, ' + ('0' if tt == 0 else Q(ya + 4 * mt))
           for mt in range(5)] for tt in range(3)]

    def weave(mm, vv, skip, per):
        for i, x in enumerate(mm):
            k(x)
            if i >= skip:
                for y in vv[:per]:
                    k(y)
                vv = vv[per:]
        return vv
    if OPT['tw3'] & 2:
        for x in s2m[0] + s2m[1] + s2m[2] + twid3(0) + twid3(1) + jm[0][:1] + twid3(2) + jm[0][1:] + jm[1] + jm[2]:
            k(x)
    else:
        n = len(twid3(0))
        weave(s2m[0], [], 0, 0)
        xmark(k, 'q3', 2)
        rest = weave(s2m[1], twid3(0), 4, 2)
        rest = weave(s2m[2], rest + twid3(1), 0, 2)
        xmark(k, 'q3', 3)
        for x in rest[:max(0, len(rest) - n)]:
            k(x)
        rest = weave(jm[0], rest[max(0, len(rest) - n):] + twid3(2), 0, 2)
        for x in rest[:max(0, len(rest) - n)]:
            k(x)
        rest = weave(jm[1], rest[max(0, len(rest) - n):], 0, 2)
        for x in rest + jm[2]:
            k(x)
        xmark(k, 'q3', 4)
    pos = {0: 0, 2: 2, 1: 4, 3: 6, 4: 8, 6: 10, 5: 12, 7: 14, 8: 16}

    def vec_reads(dst, va, vb, o):
        r = []
        for j in (0, 1, 4, 5):
            e = o // 256 + j
            r.append(f'ds_read2st64_b64 {Q(dst+pos[j])}, v{vb if e & 1 else va} offset0:{e//2} offset1:{e//2+1}')
        return r + [f'ds_read_b64 {P(dst+16)}, v{va} offset:{o+2048}']
    ga, cb, sb = F64, acc, mf
    for x in vec_reads(ga, ad + 4, a576, 0):
        k(x)
    for mt in range(5):
        k(f'ds_write_b128 v{ad+1 if mt<4 else ad}, {Q(ya+4*mt)} offset:{512*mt}')
    for x in vec_reads(cb, ad + 4, a576, 4608) + vec_reads(sb, ad + 4, a576, 2304):
        k(x)
    k.wait(lg=10)
    xmark(k, 'p3', 2)
    xmark(k, 'q3', 5)
    k('s_barrier')
    xmark(k, 'p3', 3)
    for j in range(9):
        k(f'ds_read_b64 {P(yf+2*j)}, v{ad+2} offset:{256*j}')
    k(f'''s_mul_i32 s48, s{sS2}, 9216
    s_lshl_b32 s49, s{sW}, 10
    s_add_u32 s48, s48, s49
    s_add_u32 s48, s48, {WS_H2}
    s_add_u32 s49, s48, 4096
    s_add_u32 s50, s48, 8192''')
    u = t + 6
    for j in range(9):
        k(f'v_pk_fma_f32 {P(xf+2*j)}, {P(yf+2*j)}, {P(ga+pos[j])}, {P(xf+2*j)}')
    stats(k, xf, u)
    for j in range(9):
        k(f'v_pk_fma_f32 {P(yf+2*j)}, {P(xf+2*j)}, {P(u+2)}, {P(u)} op_sel_hi:[1,0,0]')
    for j in range(9):
        k(f'v_pk_fma_f32 {P(yf+2*j)}, {P(yf+2*j)}, {P(cb+pos[j])}, {P(sb+pos[j])}')
    stats(k, yf, u)
    for j in range(9):
        k(f'v_pk_fma_f32 {P(yf+2*j)}, {P(yf+2*j)}, {P(u+2)}, {P(u)} op_sel_hi:[1,0,0]')
        k(f'v_cvt_pk_bf16_f32 v{xr+j}, v{yf+2*j}, v{yf+2*j+1}')
        if j & 1:
            k(f'ds_write2_b32 v{ad+3}, v{xr+j-1}, v{xr+j} offset0:{32*j-32} offset1:{32*j}')
    k(f'ds_write_b32 v{ad+3}, v{xr+8} offset:1024')
    k.wait(lg=0)
    xmark(k, 'p3', 4)
    k('s_barrier')
    xmark(k, 'p3', 5)
    for i in range(3):
        o = acc + 4 * i
        k(f'ds_read_b64_tr_b16 {P(o)}, v{ad+5} offset:{512*i}')
        k(f'ds_read_b64_tr_b16 {P(o+2)}, v{ad+5} offset:{512*i+4*XROW}')
    for i in range(2):
        k(f'buffer_store_dwordx4 {Q(acc+4*i)}, v{la}, {WS}, s{48+i} offen sc1')
    L1 = k.lab()
    k.wait(lg=0)
    k(f's_cmp_lg_u32 s{sW}, 0\ns_cbranch_scc1 {L1}')
    k(f'buffer_store_dwordx4 {Q(acc+8)}, v{la}, {WS}, s50 offen sc1')
    k.label(L1)
    mark(k, 7)
    for j in range(9):
        k(f'v_cvt_pk_bf16_f32 v{xr+j}, v{xf+2*j}, v{xf+2*j+1}')
    for j in range(0, 8, 2):
        k(f'ds_write2_b32 v{ad+7}, v{xr+j}, v{xr+j+1} offset0:{32*j} offset1:{32*j+32}')
    k(f'ds_write_b32 v{ad+7}, v{xr+8} offset:1024')
    bar(k, lg=0)
    V.p = base
    la2 = V(); t = V(8); vA0 = V(); vA40 = V(); vW0 = V(2); vA = V(); vA4 = V(); vW = V(2)
    fa = V(48, 4); fw = V(16, 4); rg = V(96, 4)
    V.p = 204
    acc = V(48, 4)

    def w_read_addr(extra):
        k(f'''v_lshrrev_b32 v{t}, 2, v0
        v_and_b32 v{t+1}, 7, v{t}
        s_lshl_b32 s59, s{sW}, 1
        s_add_u32 s59, s59, {extra}
        v_xor_b32 v{t+1}, s59, v{t+1}
        v_xor_b32 v{t+2}, 1, v{t+1}
        v_and_b32 v{t+3}, 3, v0
        v_lshlrev_b32 v{t+3}, 3, v{t+3}
        v_lshl_add_u32 v{t}, v{t}, 8, v{t+3}
        v_lshl_add_u32 v{vW0}, v{t+1}, 5, v{t}
        v_lshl_add_u32 v{vW0+1}, v{t+2}, 5, v{t}''')
    LN, LJ = k.lab(), k.lab()
    k(f's_cmp_ge_u32 s{sR}, 27\ns_cbranch_scc1 {LN}')
    w_read_addr(0)
    rg1 = [rg + 16 * x for x in range(6)]
    for x in preload_w(vW0, vW, list(enumerate(rg1))):
        k(x)
    if OPT['rf']:
        bar(k, lg=0)
    bar(k, 0, 0)
    nx = len(reg_stages(0)) - 6
    rgx = [188, fa + 24][:nx]
    k(f'''v_mul_u32_u24 v{vA0}, 1536, v2
    v_lshl_add_u32 v{vA0}, v1, 4, v{vA0}
    v_add_u32 v{vA0}, {L_ACT}, v{vA0}''')
    for nt in range(2):
        for p in range(2):
            a = acc + 4 * nt + 2 * p
            k(f'v_lshlrev_b32 v{a}, 16, v{bb+2*nt+p}\nv_and_b32 v{a+1}, 0xffff0000, v{bb+2*nt+p}')
    for mt in range(1, 6):
        for i in range(0, 8, 2):
            k(f'v_mov_b64 {P(acc+8*mt+i)}, {P(acc+i)}')
    if nx:
        k('s_barrier')
        for x in preload_w(vW0, vW, list(enumerate(rgx))):
            k(x)
        bar(k, lg=0)
    tag(k, 'touch c2')
    tag(k, 'region c2')
    gemm_c(k, 6, 32, 5, 12288, vA0, None, vW0, vW, fa, fw, acc, rg1 + rgx, reg_stages(0), True, at_end=lambda: k('s_barrier'),
           single=nx == 2 or OPT['single'], slot0=nx)
    mark(k, 8)
    k(f'''s_lshl_b32 s48, s51, 2
    s_add_u32 s48, s48, s{sW}
    s_mul_i32 s48, s48, {4*9216}
    s_mul_i32 s49, s52, {96*16}
    s_add_u32 s48, s48, s49
    s_add_u32 s48, s48, {WS_U}
    v_mul_u32_u24 v{vA}, 9216, v2
    v_lshl_add_u32 v{vA}, v1, 4, v{vA}
    s_mov_b32 s60, {f32(-2*0.7978845608028654*0.044715*1.4426950408889634)}
    v_mov_b32 v{bb}, {f32(-2*0.7978845608028654*1.4426950408889634)}''')
    for mt in range(6):
        q = fa + 8 * (mt & 1)
        o = fw + 4 * (mt & 1)
        a = acc + 8 * mt
        for i in range(0, 8, 2):
            k(f'v_pk_mul_f32 {P(q+i)}, {P(a+i)}, {P(a+i)}')
        for i in range(0, 8, 2):
            k(f'v_pk_fma_f32 {P(q+i)}, {P(q+i)}, s[60:61], {P(bb)} op_sel_hi:[1,0,0]')
        for i in range(0, 8, 2):
            k(f'v_pk_mul_f32 {P(q+i)}, {P(q+i)}, {P(a+i)}')
        for i in range(8):
            k(f'v_exp_f32 v{q+i}, v{q+i}')
        for i in range(0, 8, 2):
            k(f'v_pk_add_f32 {P(q+i)}, {P(q+i)}, 1.0 op_sel_hi:[1,0]')
        for i in range(8):
            k(f'v_rcp_f32 v{q+i}, v{q+i}')
        for i in range(0, 8, 2):
            k(f'v_pk_mul_f32 {P(q+i)}, {P(q+i)}, {P(a+i)}')
        for i in range(4):
            k(f'v_cvt_pk_bf16_f32 v{o+i}, v{q+2*i}, v{q+2*i+1}')
        k(f'buffer_store_dwordx4 {Q(o)}, v{vA}, {WS}, s48 offen offset:{256*mt} sc1')
    mark(k, 9)
    k(f's_branch {LJ}')
    tag(k, 'region -')
    k.label(LN)
    k.fresh()
    bar(k, 0)
    srd(k, 40, pW1, S * F * 2)
    srd(k, 44, pW2, S * F * 2)
    k(f'''s_mul_i32 s56, s{sW}, 5
    s_add_u32 s56, s56, s{sR}
    s_sub_u32 s56, s56, 27
    s_add_u32 s57, s56, {OPT['pf2'] + 10*OPT['pf3'] + 27*OPT['pf7']}
    s_add_u32 s56, s56, {OPT['pf9']}''')
    pf_loop(k, 1, 57, 20, 32 * OPT['nl'], t, 40)
    pf_loop(k, 2, 56, 20, min(OPT['pf5'], 288 - 2 * leaders(1)[1] * OPT['pf8'] - 2 * leaders(0)[1] * OPT['pf4'] + OPT['n4x']), t + 4, 44)
    if OPT['wo']:
        srd(k, 40, pOUT, S * D * 2)
        k(f'''s_mul_i32 s56, s{sW}, 5
        s_add_u32 s56, s56, s{sR}
        s_sub_u32 s56, s56, 27
        s_lshl_b32 s56, s56, 1
        s_mul_i32 s57, s{sJ}, 36
        v_lshlrev_b32 v{t}, 7, v0''')
        for x in range(2):
            k(f'''s_add_u32 s48, s56, {x}
            s_min_u32 s48, s48, 35
            s_add_u32 s48, s48, s57
            s_lshl_b32 s48, s48, 13''')
            k.raw(f'    buffer_load_dword v{t+1}, v{t}, s[40:43], s48 offen {("", "", "nt", "sc1")[OPT["wo"]]}')
    k.wait(0)
    mark(k, 9)
    bar(k, 0)
    tag(k, 'region c2')
    tag(k, 'target')
    k.label(LJ)
    k('s_lshr_b32 s58, s53, 1')
    w_read_addr('s58')
    k('s_barrier')
    xmark(k, 'h4', 1)
    for x in preload_w(vW0, vW, [((2 + x) % 6, rg1[x]) for x in range(6)]):
        k(x)
    k.wait(lg=0)
    if OPT['rf2']:
        k('s_barrier')
    xmark(k, 'h4', 2)
    bar(k, 0)
    xmark(k, 'h4', 3)
    vAo, vA4g, vAx, og4 = vA0, vA40, vA, vA4
    accf = lambda mt, nt: (188 + 4 * (2 * mt + nt)) if 2 * mt + nt < 17 else 64
    og = 68
    free = quads(rg1, reg_stages(1), OPT['defer'])[1]
    assert len(free) >= 14
    sq = [free[3 * x:3 * x + 3] for x in range(3)]
    gq = free[9:14]
    x1 = fa
    qf = fa + 16
    oa = bb
    k(f'''s_and_b32 s58, s53, 1
    s_mul_i32 s48, s58, 1280
    s_sub_u32 s49, 1280, s48
    v_mul_u32_u24 v{t}, 2304, v2
    v_add_u32 v{t}, {L_ACT2}, v{t}
    v_lshl_add_u32 v{t+2}, v1, 4, v{t}
    v_add_u32 v{vAo}, s48, v{t+2}
    v_add_u32 v{vAx}, s49, v{t+2}
    s_lshl_b32 s48, s58, 3
    v_xor_b32 v{t+1}, s48, v1
    v_lshl_add_u32 v{vA4g}, v{t+1}, 4, v{t}
    v_add_u32 v{vA4g}, 1024, v{vA4g}
    v_lshlrev_b32 v{la2}, 4, v0''')
    k(f'v_lshlrev_b32 v{b2}, 16, v{b2}\nv_cmp_gt_u32 vcc, 32, v0\nv_cndmask_b32 v{t}, 0, v{b2}, vcc')
    for mt in range(9):
        for nt in range(2):
            a = accf(mt, nt)
            if nt == 0 and mt <= 4:
                for i in range(4):
                    k(f'v_mov_b32 v{a+i}, v{b2 if mt < 4 else t}')
            else:
                k(f'v_mov_b64 {P(a)}, 0\nv_mov_b64 {P(a+2)}, 0')
    srd(k, 44, pOUT, S * D * 2)
    k(f'''s_mul_i32 s48, s{sW}, {16*144}
    s_add_u32 s48, s48, {L_X1}
    v_mul_u32_u24 v{t}, 144, v1
    v_lshl_add_u32 v{t}, v2, 3, v{t}
    v_add_u32 v{t}, s48, v{t}
    v_add_u32 v{oa+3}, s48, v{la2}
    s_lshl_b32 s49, s58, 4
    v_add_u32 v{oa}, s49, v{t}
    s_lshl_b32 s49, s58, 7
    s_sub_u32 s49, 128, s49
    v_add_u32 v{t}, s49, v{t}
    v_cmp_gt_u32 vcc, 32, v0
    v_mov_b32 v{t+1}, {L_GB + 512}
    v_cndmask_b32 v{oa+1}, v{t+1}, v{t}, vcc
    v_lshlrev_b32 v{t}, 4, v2
    v_add_u32 v{t}, {L_GB}, v{t}
    s_lshl_b32 s49, s58, 5
    v_add_u32 v{oa+2}, s49, v{t}
    s_lshl_b32 s49, s58, 8
    s_sub_u32 s49, 256, s49
    v_add_u32 v{og4}, s49, v{t}
    s_lshl_b32 s48, s59, 4
    s_lshl_b32 s49, s54, 7
    s_add_u32 s48, s48, s49
    s_mul_i32 s48, s48, 1152
    s_mul_i32 s49, s55, 288
    s_add_u32 s62, s48, s49
    s_mul_i32 s49, s58, 144
    s_add_u32 s62, s62, s49''')
    for i in range(3):
        k(f'''v_add_u32 v{t}, {64*i}, v0
        v_mul_u32_u24 v{t+1}, 911, v{t}
        v_lshrrev_b32 v{t+1}, 13, v{t+1}
        v_mul_u32_u24 v{t+1}, {1152-144}, v{t+1}
        v_lshl_add_u32 v{og+i}, v{t}, 4, v{t+1}''')
    k(f'''v_cmp_gt_u32 vcc, 16, v0
    v_mov_b32 v{t+1}, {OOB}
    v_cndmask_b32 v{og+2}, v{t+1}, v{og+2}, vcc
    s_mul_i32 s48, s{sW}, {XW}
    s_add_u32 s48, s48, {WS_XCH}
    s_mul_i32 s64, s2, {XB}
    s_add_u32 s64, s64, s48
    v_and_b32 v{t}, 3, v0
    v_cmp_eq_u32 vcc, 0, v{t}
    v_lshlrev_b32 v27, 2, v0
    v_cndmask_b32 v26, v{t+1}, v27, vcc
    s_mul_i32 s49, s{sW}, {2*XW}
    s_add_u32 s49, s49, {L_S}
    v_add_u32 v71, s49, v{la2}''')
    if OPT['xc'] == 3:
        k(f'v_mov_b64 {P(72)}, -1')
    else:
        k(f'v_add_u32 v72, {4*AST2}, v{vAo}\nv_add_u32 v75, {4*AST2}, v{vA4g}\nv_add_u32 v74, {4*AST2}, v{vAx}')
    for x in range(1, 4):
        k(f'''s_xor_b32 s{64+x}, s2, {2*x}
        s_mul_i32 s{64+x}, s{64+x}, {XB}
        s_add_u32 s{64+x}, s{64+x}, s48
        s_add_u32 s{64+x}, s{64+x}, {XM*(x-1)}''')
    cue = OPT['xcue']
    assert not cue
    if cue:
        k(f'''v_cmp_gt_u32 vcc, 8, v0
        v_cndmask_b32 v27, v{t+1}, v{la2}, vcc
        s_lshl_b32 s48, s{sW}, 7
        s_add_u32 s48, s48, {WS_XCUE}
        s_mul_i32 s61, s2, 1536
        s_add_u32 s61, s61, s48''')
        for x, r in ((1, 56), (2, 57), (3, 60)):
            k(f'''s_xor_b32 s{r}, s2, {2*x}
            s_mul_i32 s{r}, s{r}, 1536
            s_add_u32 s{r}, s{r}, s48
            s_add_u32 s{r}, s{r}, {512*(x-1)}''')
    mbox = [f'buffer_load_dwordx4 {Q(sq[0][c])}, v{la2}, {WS}, s64 offen offset:{1024*c} sc1' for c in range(2)] + \
           [f'buffer_load_dword v{sq[0][2]}, v27, {WS}, s64 offen offset:2048 sc1']
    sel = fw

    def g2_end():
        xmark(k, 'x', 2)
        k('s_barrier')
        xmark(k, 'x', 3)
        for mt in range(4):
            k(f'ds_read_b64 {P(x1+2*mt)}, v{oa} offset:{32*mt}\nds_read_b128 {Q(gq[mt])}, v{oa+2} offset:{64*mt}')
        k(f'ds_read_b64 {P(x1+8)}, v{oa+1}\nds_read_b128 {Q(gq[4])}, v{og4}')

    def message(x, nt, rows, r8):
        b, r = sq[x - 1], list(r8)
        r += [f'v_mov_b32_dpp v{b[2]+j}, v{b[2]} quad_perm:[{j},{j},{j},{j}] row_mask:0xf bank_mask:0xf' for j in (1, 2, 3)]
        for c in range(2):
            for i in range(4):
                a = accf(rows[2 * c + (i >> 1)], nt) + 2 * (i & 1)
                r.append(f'v_cvt_pk_bf16_f32 v{b[c]+i}, v{a}, v{a+1}')
            r.append(f'buffer_store_dwordx4 {Q(b[c])}, v{la2}, {WS}, s{64+x} offen offset:{1024*c} sc1')
        r.append(f'buffer_store_dwordx4 {Q(b[2])}, v26, {WS}, s{64+x} offen offset:2048 sc1')
        if cue:
            r.append(f'buffer_store_dwordx4 {Q(t+4)}, v27, {WS}, s{(56, 57, 60)[x-1]} offen sc1')
        return r

    def split4(nt, own, other):
        a = accf(4, nt)
        return [f'v_cvt_pk_bf16_f32 v{own}, v{a}, v{a+1}', f'v_cvt_pk_bf16_f32 v{other}, v{a+2}, v{a+3}',
                f'v_permlane32_swap_b32 v{own}, v{other}']

    def send_bc():
        if OPT.get('mk') != 'p1':
            mark(k, 10)
        if cue:
            for i in range(4):
                k(f'v_mov_b32 v{t+4+i}, v{vTAG}')
        s4 = split4(1, sq[1][2], sq[2][2])
        return message(3, 1, [5, 6, 7, 8], s4) + message(2, 1, [0, 1, 2, 3], [])

    def selectors():
        z, u = sel, t
        return [f'v_lshrrev_b32 v{u}, 2, v1', f'v_and_b32 v{u+1}, 1, v1', f'v_lshlrev_b32 v{u+1}, 4, v{u+1}',
                f'v_mov_b32 v{u+2}, 0x3f80', f'v_lshlrev_b32 v{u+1}, v{u+1}, v{u+2}',
                f'v_and_b32 v{u+2}, 2, v1', f'v_add_u32 v{u+3}, v{u}, v{u+2}',
                f'v_cmp_eq_u32 vcc, v{u}, v2', f'v_cndmask_b32 v{z+4}, 0, v{u+1}, vcc',
                f'v_cmp_eq_u32 vcc, v{u+3}, v2', f'v_cndmask_b32 v{z}, 0, v{u+1}, vcc',
                f'v_cmp_gt_u32 vcc, 8, v1', f'v_cndmask_b32 v{z}, 0, v{z}, vcc',
                f'v_cmp_eq_u32 vcc, 0, v{u+2}', f'v_cndmask_b32 v{z+5}, v{z+4}, 0, vcc', f'v_cndmask_b32 v{z+4}, 0, v{z+4}, vcc',
                f'v_mov_b32 v{z+1}, v{z}', f'v_mov_b64 {P(z+2)}, 0', f'v_mov_b64 {P(z+6)}, 0']
    send_a = lambda: (xmark(k, 'x', 1), message(1, 0, [5, 6, 7, 8], split4(0, t + 3, sq[0][2])) + selectors())[1]
    tag(k, 'touch c3')
    tag(k, 'region c3')
    fill, drain = {}, None
    if OPT['xc'] == 3:
        c0, cn = OPT['xclr']
        k(f'''v_mov_b64 {P(74)}, -1
        s_mul_i32 s63, s2, {XB}
        s_lshl_b32 s48, s{sW}, 10
        s_add_u32 s63, s63, s48
        s_add_u32 s63, s63, {WS_XCH}
        s_cmp_eq_u32 s{sW}, 3
        s_cselect_b32 s56, {5*4096}, {6*4096}'''.replace('s_cselect_b32 s56, 20480, 24576', 's_cselect_b32 s56, 4096, 0\ns_sub_u32 s56, 24576, s56'))
        for x in range(7):
            q = 2 * c0 + x * 2 * cn // 7
            so = f's_add_u32 s57, s63, {4096*x}' if x < 6 else 's_add_u32 s57, s63, s56'
            fill.setdefault(q, []).extend([so, f'buffer_store_dwordx4 {Q(72)}, v{la2}, {WS}, s57 offen sc1'])
        drain = 2 * OPT['xrdy'][0]
    gemm2_c(k, vAo, vAx, vA4g, vW0, vW, fa, fw, accf, rg1, reg_stages(1), OPT['defer'], send_bc, send_a, g2_end, fill, drain, (72, 75, 74))

    def add_message(q0, th):
        for i in range(4):
            a = accf(i, 0)
            k(f'{MF} {Q(a)}, {Q(sel + (4 if i % 2 == 0 else 2))}, {Q(q0[i >> 1])}, {Q(a)}')
        if th is not None:
            a = accf(4, 0)
            k(f'{MF} {Q(a)}, {Q(sel)}, {Q(th)}, {Q(a)}')
    k(f's_mul_i32 s49, s{sW}, {2*XW}\ns_add_u32 s49, s49, {L_S}\nv_add_u32 v73, s49, v27')
    for i in range(10):
        k(f'v_lshlrev_b32 v{qf+2*i}, 16, v{x1+i}\nv_and_b32 v{qf+2*i+1}, 0xffff0000, v{x1+i}')
    xmark(k, 'x', 4)
    k.wait(0)
    if OPT.get('mk') != 'p1':
        mark(k, 11)
    if cue == 1:
        k(f'v_mov_b32 v{t}, 0')
        poll(k, [f'buffer_load_dword v{t+1}, v{t}, {WS}, s61 offen sc1'], check_tags(k, [t + 1]), sleep=OPT['xsl'])
    k(f'v_mov_b32 v{sq[0][2]+1}, 0\nv_mov_b64 {P(sq[0][2]+2)}, 0\nv_mov_b64 {P(sq[1][2]+2)}, 0')
    for l in mbox:
        k(l)
    k('s_barrier')
    xmark(k, 'x', 5)
    for x in range(2):
        for c in range(2):
            k(f'ds_read_b128 {Q(sq[x+1][c])}, v71 offset:{XW*x+1024*c}')
    k(f'ds_read_b32 v{sq[1][2]}, v73 offset:2048\nds_read_b32 v{sq[1][2]+1}, v73 offset:{XW+2048}')
    add_message(sq[1], None)
    add_message(sq[2], sq[1][2])
    k.wait(0)
    L1 = k.lab()
    sent = check_sent(k, sq[0], t)
    sent()
    k(f's_cbranch_vccz {L1}')
    poll(k, mbox, sent, masked=True)
    k.label(L1)
    xmark(k, 'x', 6)
    add_message(sq[0], sq[0][2])
    for mt in (0, 1, 2, 3, 4):
        q, a = qf + 4 * mt, accf(mt, 0)
        for p in range(2):
            k(f'v_pk_fma_f32 {P(q+2*p)}, {P(a+2*p)}, {P(gq[mt]+2*p)}, {P(q+2*p)}')
        for p in range(2):
            k(f'v_cvt_pk_bf16_f32 v{x1+2*mt+p}, v{q+2*p}, v{q+2*p+1}')
        k(f'ds_write_b64 v{oa}, {P(x1+2*mt)} offset:{32*mt}' if mt < 4 else f'ds_write_b64 v{oa+1}, {P(x1+8)}')
    xmark(k, 'x', 7)
    if OPT.get('outlin'):
        k(f's_mul_i32 s62, s2, 9216\ns_mul_i32 s48, s{sW}, 2304\ns_add_u32 s62, s62, s48')
        k(f'v_mov_b32 v{og}, v{la2}\nv_add_u32 v{og+1}, 1024, v{la2}\nv_add_u32 v{t}, 2048, v{la2}\nv_cmp_gt_u32 vcc, 16, v0\nv_mov_b32 v{t+1}, {OOB}\nv_cndmask_b32 v{og+2}, v{t+1}, v{t}, vcc')
    for i in range(3):
        k(f'ds_read_b128 {Q(gq[i])}, v{oa+3} offset:{1024*i}')
    for i in range(3):
        k(f'buffer_store_dwordx4 {Q(gq[i])}, v{og+i}, s[44:47], s62 offen {OPT["outflag"]}')
    k('s_branch L_end')


def gen_H(k):
    V = Alloc(4, 256)
    t = V(12); la = V(); fl = V(3, 1); wa = V(3, 1); sa_ = V(3, 1); c0 = V(2); mo = V(4); ones = V(4, 4)
    ld = V(16, 4); Fa = V(8, 4); Fai = V(8, 4); Fb = V(32, 4); Fbi = V(32, 4)
    wv = V(32, 4); acc = V(32, 4); pk = V(16, 4); a0 = V(); a1 = V(); a2 = V(); a3 = V(); a4 = V(); a5 = V(); g4 = V(); lf = V(); dum = V(4); wp = V(16, 4)
    g = acc
    k(f'v_lshlrev_b32 v{la}, 4, v0\nv_mov_b32 v{mo+2}, {OOB}\nv_mov_b32 v{t+8}, {OOB}\nv_mov_b32 v{fl+1}, {OOB}')
    k(f'''s_sub_u32 s63, 255, s2
    s_mul_i32 s62, s63, 171
    s_lshr_b32 s62, s62, 9
    s_mul_i32 s48, s62, 3
    s_sub_u32 s61, s63, s48''')

    def skip_unless(reg, val, op='lg'):
        L = k.lab()
        k(f's_cmp_{op}_u32 s{reg}, {val}\ns_cbranch_scc1 {L}')
        k.cond += 1
        return L

    def endif(L):
        k.cond -= 1
        k.label(L)

    def mod_addr(urgent, part=3):
        if part & 1:
            k(f'''v_lshrrev_b32 v{t}, 3, v0
        v_and_b32 v{t+1}, 7, v0
        v_and_b32 v{t+2}, 6, v{t}
        v_xor_b32 v{t+1}, v{t+1}, v{t+2}
        v_mul_u32_u24 v{t}, 6912, v{t}
        v_lshl_add_u32 v{t+8}, v{t+1}, 4, v{t}
        s_lshl_b32 s48, s61, 2
        s_add_u32 s48, s48, s{sW}
        s_mul_i32 s48, s48, {(48 if urgent else 72)*6912}
        s_lshl_b32 s49, s62, 7
        s_add_u32 s47, s48, s49
        s_lshl_b32 s50, s{sW}, 8
        v_lshl_add_u32 v{c0+1}, v0, 2, s50
        s_mul_i32 s49, s61, {384 if urgent else 576}
        v_add_u32 v{t+5}, s49, v{c0+1}
        v_add_u32 v{t+8}, s47, v{t+8}''')
        if not part & 2:
            return
        k(f'''v_lshrrev_b32 v{t}, 2, v0
        v_bfe_u32 v{t+1}, v{t}, 1, 2
        v_xor_b32 v{t+1}, s{sW}, v{t+1}
        v_lshlrev_b32 v{t+1}, 5, v{t+1}
        v_lshlrev_b32 v{t}, 7, v{t}
        v_and_b32 v{t+2}, 3, v0
        v_lshlrev_b32 v{t+2}, 3, v{t+2}
        v_add3_u32 v{mo}, v{t}, v{t+1}, v{t+2}
        v_lshlrev_b32 v{mo+1}, 3, v2
        v_add_u32 v{mo+1}, {L_SILU}, v{mo+1}''')
        if urgent:
            k(f'''s_mul_i32 s48, s{sW}, 3456
            s_mul_i32 s49, s61, 1152
            s_add_u32 s48, s48, s49
            s_lshl_b32 s49, s62, 6
            s_add_u32 s48, s48, s49
            s_add_u32 s48, s48, {WS_MODG}
            v_mul_u32_u24 v{t}, 13824, v2
            v_lshl_add_u32 v{t}, v1, 2, v{t}
            v_add_u32 v{mo+2}, s48, v{t}
            v_add_u32 v{mo+3}, {4*13824}, v{mo+2}''')
        else:
            k(f'''s_mul_i32 s49, s61, 9216
            s_lshl_b32 s50, s62, 8
            s_add_u32 s49, s49, s50
            s_lshl_b32 s50, s{sW}, 6
            s_add_u32 s49, s49, s50
            s_add_u32 s49, s49, {WS_MODB - 18*256}
            v_lshl_add_u32 v{t}, v1, 2, s49
            v_cmp_gt_u32 vcc, 16, v0
            v_mov_b32 v{t+1}, {OOB}
            v_cndmask_b32 v{mo+2}, v{t+1}, v{t}, vcc''')

    def mod_loads(n, i0, i1):
        if i0 == 0:
            k(f's_mul_i32 m0, s{sW}, {1024*n}\ns_mov_b32 s59, 0')
        for i in range(i0, i1):
            k(f'buffer_load_dwordx4 v{t+8}, s[40:43], s59 offen lds')
            if i < n - 1:
                k(f's_add_u32 m0, m0, 1024\ns_add_u32 s59, s59, {8*6912}')

    def c_load():
        srd(k, 44, pC, D * 2)
        k(f'buffer_load_dword v{c0}, v{t+5}, s[44:47], 0 offen')

    def mod_silu():
        k(f'''v_lshlrev_b32 v{t}, 16, v{c0}
        v_and_b32 v{t+1}, 0xffff0000, v{c0}
        v_mul_f32 v{t+2}, {f32(-1.4426950408889634)}, v{t}
        v_mul_f32 v{t+3}, {f32(-1.4426950408889634)}, v{t+1}
        v_exp_f32 v{t+2}, v{t+2}
        v_exp_f32 v{t+3}, v{t+3}
        v_add_f32 v{t+2}, 1.0, v{t+2}
        v_add_f32 v{t+3}, 1.0, v{t+3}
        v_rcp_f32 v{t+2}, v{t+2}
        v_rcp_f32 v{t+3}, v{t+3}
        v_mul_f32 v{t}, v{t}, v{t+2}
        v_mul_f32 v{t+1}, v{t+1}, v{t+3}
        v_cvt_pk_bf16_f32 v{c0}, v{t}, v{t+1}
        v_add_u32 v{c0+1}, {L_SILU}, v{c0+1}
        ds_write_b32 v{c0+1}, v{c0}''')

    def mod_compute(urgent):
        c = k.cond
        k.cond = 0
        k.lg = []
        n = 6 if urgent else 9
        g = wv
        for stp in range(n):
            a = g + stp * 8
            k(f'''ds_read_b64_tr_b16 {P(a)}, v{mo} offset:{stp*4096}
            ds_read_b64_tr_b16 {P(a+2)}, v{mo} offset:{stp*4096+2048}
            ds_read2_b64 {Q(a+4)}, v{mo+1} offset0:{stp*8} offset1:{stp*8+4}''')
        k(f'v_and_b32 v{t}, 3, v1\nv_or_b32 v{t}, 0x07060500, v{t}')
        for stp in range(n):
            a = g + stp * 8
            k(f'{MF} {Q(ld)}, {Q(a+4)}, {Q(a)}, ' + ('0' if stp == 0 else Q(ld)))
        k(f'v_add_u32 v{ld+4}, 0x80, v{ld}\nv_perm_b32 v{ld+4}, v{ld+4}, v{vTAG}, v{t}')
        k.cond = c
        if urgent:
            k.wait(OPT['warm'])
        for a in range(OPT['nm'] if urgent else 1):
            k(f's_mov_b32 s48, {a*0x20000}')
            for i in range(2 if urgent else 1):
                k(f'buffer_store_dword v{ld+4}, v{mo+2+i}, {WS}, s48 offen sc1')

    def wp_addr():
        k(f'''s_lshl_b32 s67, s{sJ}, 4
        s_add_u32 s67, s67, s{sR}
        s_and_b32 s67, s67, 127
        s_lshl_b32 s48, s{sW}, 9
        s_add_u32 s48, s48, s67
        s_mul_i32 s69, s{sW}, 6144
        s_add_u32 s69, s69, {L_WST}
        s_cmp_eq_u32 s67, 0
        s_cselect_b32 s68, 38, 0
        s_add_u32 s68, s68, 152
        v_mov_b32 v{t+4}, {OOB}''')
        for i in range(3):
            k(f'''v_add_u32 v{t}, {64*i}, v0
            v_mul_u32_u24 v{t+1}, 1725, v{t}
            v_lshrrev_b32 v{t+1}, 16, v{t+1}
            v_mul_u32_u24 v{t+2}, 38, v{t+1}
            v_sub_u32 v{t+2}, v{t}, v{t+2}
            v_cmp_gt_u32 vcc, s68, v{t}
            v_lshl_add_u32 v{t+1}, v{t+1}, 7, s48
            v_and_b32 v{t+1}, 2047, v{t+1}
            v_mul_u32_u24 v{t+1}, 578, v{t+1}
            v_and_b32 v{t+1}, 0xfffffff0, v{t+1}
            v_lshl_add_u32 v{t+1}, v{t+2}, 4, v{t+1}
            v_cndmask_b32 v{wa+i}, v{t+4}, v{t+1}, vcc''')

    def wp_gather():
        k(f'''s_lshl_b32 s48, s67, 1
        s_and_b32 s48, s48, 15
        s_add_u32 s48, s48, s69
        v_and_b32 v{t}, 1, v2
        v_lshrrev_b32 v{t+1}, 1, v2
        v_mul_u32_u24 v{t+2}, 144, v{t}
        v_mad_u32_u24 v{t+2}, v1, 9, v{t+2}
        v_add_lshl_u32 v{t+2}, v{t+2}, v{t+1}, 1
        v_add_u32 v{wa}, s48, v{t+2}
        s_cmp_eq_u32 s67, 0
        s_cselect_b32 s49, 608, 0
        s_add_u32 s48, s48, s49
        s_add_u32 s48, s48, {576-8}
        v_sub_u32 v{wa+1}, s48, v{t+2}
        v_lshl_add_u32 v{t}, v{t+1}, 5, v{t}
        v_lshlrev_b32 v{t}, 14, v{t}
        v_lshl_add_u32 v{sa_}, v1, 4, v{t}
        v_add_u32 v{sa_+1}, {64<<14}, v{sa_}
        v_add_u32 v{sa_+2}, {128<<14}, v{sa_}
        v_cmp_gt_u32 vcc, 32, v0
        v_mov_b32 v{t+4}, {OOB}
        v_cndmask_b32 v{sa_+2}, v{t+4}, v{sa_+2}, vcc
        s_lshl_b32 s48, s67, 2
        s_add_u32 s48, s48, s{sW}
        s_lshl_b32 s48, s48, 4
        s_add_u32 s48, s48, {WS_FLAG}
        v_writelane_b32 v{fl+1}, s48, 0''')
        if OPT['warm']:
            k(f'buffer_load_dword v{dum+2}, v{fl+1}, {WS}, 0 offen')
        for refl in range(2):
            if refl == 0:
                k(f's_mov_b32 s48, s67\ns_mov_b32 s49, s{sW}')
            else:
                k(f's_sub_u32 s48, 128, s67\ns_and_b32 s48, s48, 127\ns_sub_u32 s49, 3, s{sW}')
            k(f'''s_and_b32 s50, s48, 7
            s_lshr_b32 s48, s48, 3
            s_lshl_b32 s58, s50, 16
            s_lshl_b32 s59, s48, 10
            s_add_u32 s58, s58, s59
            s_lshl_b32 s59, s49, 8
            s_add_u32 s58, s58, s59
            s_add_u32 s{56+refl}, s58, {WS_WP + refl*(2<<14)}''')

    def wp_run():
        c = k.cond
        k.cond = 0
        k.lg = []
        g = wv
        for refl in range(2):
            for i in range(3):
                r = g + 24 * refl + 8 * i
                for j in range(4):
                    o = 608 * j + 4 * i if refl == 0 else 608 * (3 - j) + 8 - 4 * i
                    k(f'ds_read_u16 v{r+j}, v{wa+refl} offset:{o}\nds_read_u16 v{r+4+j}, v{wa+refl} offset:{3072+o}')
        k.cond = c
        for refl in range(2):
            for i in range(3):
                r = g + 24 * refl + 8 * i
                for j in range(4):
                    k(f'v_lshl_or_b32 v{r+j}, v{r+4+j}, 16, v{r+j}')
                for j in range(4 * refl):
                    k(f'v_xor_b32 v{r+j}, 0x80000000, v{r+j}')
                k(f'buffer_store_dwordx4 {Q(r)}, v{sa_+i}, {WS}, s{56+refl} offen sc1')

    def wp_loads():
        srd(k, 52, pWR, S * 578)
        srd(k, 56, pWI, S * 578)
        for arr in range(2):
            for i in range(3):
                k(f's_add_u32 m0, s69, {3072*arr+1024*i}')
                k(f'buffer_load_dwordx4 v{wa+i}, s[{52+4*arr}:{55+4*arr}], 0 offen lds')

    def flag_addr():
        k(f'''s_lshr_b32 s51, s{sR}, 2
        s_lshl_b32 s51, s51, 3
        s_add_u32 s51, s51, s{sJ}
        s_and_b32 s60, s{sR}, 3
        s_lshl_b32 s35, s51, 2
        s_add_u32 s35, s35, s60
        s_lshl_b32 s35, s35, 14
        s_bfe_u32 s48, s{sS2}, 0x20002
        s_lshl_b32 s48, s48, 6
        s_lshr_b32 s49, s{sS2}, 4
        s_lshl_b32 s49, s49, 2
        s_add_u32 s48, s48, s49
        s_and_b32 s49, s{sS2}, 3
        s_add_u32 s48, s48, s49
        s_lshl_b32 s48, s48, {OPT['fs']}
        s_lshl_b32 s49, s{sW}, 16
        s_add_u32 s48, s48, s49
        s_add_u32 s48, s48, {WS_FL2}
        v_mov_b32 v{fl}, {OOB}''')
        for a in range(OPT['na']):
            k(f'v_writelane_b32 v{fl}, s48, {a}\ns_add_u32 s48, s48, 16384')
        k(f'''s_add_u32 s48, s2, 160
        s_lshl_b32 s48, s48, 7
        s_add_u32 s48, s48, {WS_CUE+0x8000}
        s_lshl_b32 s49, s{sW}, 8
        s_add_u32 s49, s49, s{sR}
        s_cmp_lt_u32 s49, 12
        s_cselect_b32 s48, s48, {OOB}
        v_mov_b32 v{fl+2}, {OOB}
        v_writelane_b32 v{fl+2}, s48, 0
        s_or_b32 s48, s2, s{sW}
        s_cmp_eq_u32 s48, 0
        s_cselect_b32 s48, 0, {OOB}
        s_add_u32 s48, s48, {WS_EPOCH}
        v_writelane_b32 v{fl+2}, s48, 1''')
        if OPT['ec2']:
            k(f'''s_lshr_b32 s48, s35, 10
            s_lshl_b32 s49, s{sW}, 12
            s_add_u32 s48, s48, s49
            s_add_u32 s48, s48, {WS_FLAG + 0x8000}
            s_cmp_lt_u32 s{sR}, 20
            s_cselect_b32 s48, s48, {OOB}
            v_writelane_b32 v{fl+2}, s48, 2''')

    def warm(regs):
        if OPT['warm']:
            for i, r in enumerate(regs):
                k(f'buffer_load_dword v{dum+i}, v{r}, {WS}, 0 offen')

    def clear1():
        k(f's_lshl_b32 s48, s{sW}, 12\ns_add_u32 s48, s48, s35\ns_add_u32 s48, s48, {WS_T1}')
        for i in range(4):
            k(f'buffer_store_dwordx4 {Q(ones)}, v{la}, {WS}, s48 offen offset:{1024*i} sc1')

    def clear2():
        k(f'''v_min_u32 v{t+1}, {31*16}, v{la}
        s_mul_i32 s48, s{sW}, 2560
        s_mul_i32 s49, s{sS2}, 10240
        s_add_u32 s48, s48, s49
        s_add_u32 s48, s48, {WS_T2}''')
        for i in range(3):
            k(f'buffer_store_dwordx4 {Q(ones)}, v{la if i<2 else t+1}, {WS}, s48 offen offset:{1024*i} sc1')
    LGEN, LNP, LP2, LG, LQ = k.lab(), k.lab(), k.lab(), k.lab(), k.lab()
    L_A, L_B = L_WST, L_WST + 16 * 1040
    k(f's_cmp_ge_u32 s63, 54\ns_cbranch_scc1 {LGEN}')
    if OPT['up'] & 1:
        k('s_setprio 2')
    mod_addr(True, 1)
    k.wait(lg=0)
    srd(k, 40, pWM, D * 3456 * 2)
    mod_loads(6, 0, 6)
    c_load()
    srd(k, 36, pWS, WS_SIZE)
    load_tag(k, t + 3)
    mark(k, 11)
    if OPT['up'] == 3:
        k('s_setprio 0')
    mod_addr(True, 2)
    if OPT['prew']:
        k(f'v_mov_b32 v{t+1}, 0')
        for a in range(OPT['nm']):
            k(f's_mov_b32 s48, {a*0x20000}')
            for i in range(2):
                k(f'buffer_store_dword v{t+1}, v{mo+2+i}, {WS}, s48 offen sc1')
    flag_addr()
    warm([fl])
    k.wait(2 * OPT['nm'] * OPT['prew'] + OPT['warm'])
    mark(k, 10)
    if OPT['up'] & 2:
        k('s_setprio 2')
    mod_silu()
    finish_tag(k)
    mark(k, 1)
    bar(k, lg=0)
    mod_compute(True)
    mark(k, 2)
    xmark(k, 'u', 4)
    if OPT['a0']:
        k('s_barrier')
    k(f's_setprio 0\ns_mov_b32 s63, 999\ns_branch {LQ}')
    k.raw('; @cut')
    k.label(LGEN)
    k.fresh()
    k(f'''s_sub_u32 s61, s63, 54
    s_lshr_b32 s62, s61, 1
    s_add_u32 s62, s62, 18
    s_and_b32 s61, s61, 1''')

    def mats1():
        k(f'''v_cvt_f32_u32 v{g4}, v2
        v_mul_f32 v{g4}, 4.0, v{g4}
        v_cvt_f32_u32 v{lf}, v1
        v_cvt_f32_u32 v{t+9}, s{sJ}
        v_mul_f32 v{t+6}, {f32(1/16)}, v{lf}
        v_fmac_f32 v{t+6}, {f32(1/128)}, v{t+9}
        v_mul_f32 v{t+7}, v{g4}, v{t+6}''')
        dft_frag(k, t + 7, t + 6, Fa, Fa + 4, t, False)
        k(f'''s_lshl_b32 s48, s{sW}, 5
        s_add_u32 s48, s48, s{sJ}
        v_cvt_f32_u32 v{t+10}, s48
        v_mul_f32 v{t+10}, {f32(1/2048)}, v{t+10}
        v_mul_f32 v{t+6}, {f32(1/16)}, v{lf}
        v_add_f32 v{t+6}, v{t+6}, v{t+10}''')
        for tt in range(4):
            if tt:
                k(f'v_add_f32 v{t+6}, {f32(8/2048)}, v{t+6}')
            k(f'v_mul_f32 v{t+7}, v{g4}, v{t+6}')
            dft_frag(k, t + 7, t + 6, Fb + 8 * tt, Fb + 8 * tt + 4, t, False)

    def mats2():
        k(f'''v_mul_f32 v{t+6}, {f32(1/16)}, v{lf}
        v_fmac_f32 v{t+10}, {f32(1/16)}, v{g4}''')
        for tt in range(4):
            if tt:
                k(f'v_add_f32 v{t+10}, {f32(8/2048)}, v{t+10}')
            k(f'v_mul_f32 v{t+7}, v{lf}, v{t+10}')
            dft_frag(k, t + 7, t + 6, Fbi + 8 * tt, Fbi + 8 * tt + 4, t, True)
        k(f'''v_mul_f32 v{t+9}, {f32(1/128)}, v{t+9}
        v_fmac_f32 v{t+9}, {f32(1/16)}, v{g4}
        v_mul_f32 v{t+7}, v{lf}, v{t+9}''')
        dft_frag(k, t + 7, t + 6, Fai, Fai + 4, t, True)

    def p2_addr():
        k(f'''s_lshl_b32 s54, s{sW}, 8
        s_add_u32 s52, s35, s54
        s_add_u32 s52, s52, {WS_T1}
        s_lshl_b32 s53, s{sW}, 12
        s_add_u32 s53, s53, s35
        s_add_u32 s53, s53, {WS_WP}
        v_and_b32 v{t}, 3, v1
        v_lshrrev_b32 v{t+1}, 2, v1
        v_lshlrev_b32 v{t+2}, 6, v{t}
        v_lshl_add_u32 v{t+2}, v{t+1}, 4, v{t+2}
        v_lshl_add_u32 v{a5}, v2, 12, v{t+2}
        v_mul_u32_u24 v{a0}, 1040, v1
        v_lshl_add_u32 v{a0}, v2, 6, v{a0}
        v_add_u32 v{a0}, s54, v{a0}
        s_mul_i32 s48, s{sW}, {4*1040}
        v_add_u32 v{a2}, s48, v{la}
        v_lshl_add_u32 v{t+2}, v2, 2, v{t}
        v_mul_u32_u24 v{a3}, 1056, v{t+2}
        v_lshl_add_u32 v{a3}, v{t+1}, 4, v{a3}
        v_add_u32 v{a3}, s54, v{a3}
        s_mul_i32 s48, s{sW}, {4*1056}
        v_add_u32 v{a1}, s48, v{la}
        s_and_b32 s66, s51, 3
        s_xor_b32 s66, s66, s60
        s_lshl_b32 s66, s66, 6
        s_lshl_b32 s48, s51, 8
        s_add_u32 s66, s66, s48
        s_mul_i32 s48, s{sW}, {4*10240}
        s_add_u32 s66, s66, s48
        s_add_u32 s66, s66, {WS_T2}
        s_add_u32 s67, s66, {16*10240}
        s_add_u32 s68, s66, {32*10240}
        s_add_u32 s69, s66, {48*10240}
        s_lshr_b32 s48, s51, 2
        s_and_b32 s48, s48, 2
        v_xor_b32 v{t}, s48, v{t}
        v_lshl_add_u32 v{t+1}, v2, 6, v{t+1}
        v_mul_u32_u24 v{a4}, 10240, v{t+1}
        v_lshl_add_u32 v{a4}, v{t}, 4, v{a4}''')
    wl = f'buffer_load_dword v{fl+1}, v{t+11}, {WS}, s64 offen sc1'

    def wpre():
        k(f'''s_lshl_b32 s48, s{sW}, 5
        s_add_u32 s48, s48, s{sJ}
        v_lshrrev_b32 v{t+4}, 2, v1
        v_lshl_add_u32 v{t+4}, v{t+4}, 3, s48
        s_cmp_lt_u32 s60, 2
        s_cselect_b32 s48, 1, -1
        v_mul_i32_i24 v{t+4}, s48, v{t+4}
        v_and_b32 v{t+4}, 127, v{t+4}
        v_and_b32 v{t+3}, 3, v1
        v_lshl_add_u32 v{t+4}, v{t+4}, 2, v{t+3}
        v_lshlrev_b32 v{t+11}, 4, v{t+4}
        s_mov_b32 s64, {WS_FLAG}''')
        L1 = skip_unless(sR, 20, 'ge')
        k(wl)
        endif(L1)

    def wpost():
        p2_addr()
        k(f'''s_lshr_b32 s65, s{sJ}, 1
        s_lshl_b32 s65, s65, 16
        s_add_u32 s65, s65, {WS_FL2}
        s_lshl_b32 s48, s{sW}, {6+OPT['fs']}
        s_add_u32 s65, s65, s48
        v_lshlrev_b32 v{g4}, {OPT['fs']}, v0''')
    LB, LJ = k.lab(), k.lab()
    k(f's_cmp_ge_u32 s{sR}, 16\ns_cbranch_scc1 {LB}')
    wp_addr()
    k.wait(lg=0)
    srd(k, 36, pWS, WS_SIZE)
    srd(k, 40, pWM, D * 3456 * 2)
    load_tag(k, t)
    flag_addr()
    warm([fl, fl + 2])

    def clear_xch():
        k(f'''v_mov_b64 {P(ones)}, -1
        v_mov_b64 {P(ones+2)}, -1
        s_lshl_b32 s61, s2, 2
        s_add_u32 s61, s61, s{sW}
        s_mul_i32 s61, s61, {14*1024}
        s_add_u32 s61, s61, {WS_XCH}''')
        for i in range(14):
            k(f'buffer_store_dwordx4 {Q(ones)}, v{la}, {WS}, s61 offen offset:{1024*(i&3)} sc1')
            if i & 3 == 3:
                k('s_add_u32 s61, s61, 4096')
    if OPT['xc'] == 1:
        clear_xch()
    if OPT['wat'] == 0:
        wp_loads()
    if OPT['wat'] >= 2:
        mats1()
    if OPT['wat'] == 3:
        wp_loads()
    mark(k, 1)
    k('s_barrier')
    if OPT['pf1']:
        srd(k, 44, pW1, S * F * 2)
        k(f's_lshl_b32 s61, s{sW}, 4\ns_add_u32 s61, s61, s{sR}')
        pf_loop(k, 1, 61, 64, 16 * OPT['pf1'], ld, 44)
    if OPT['wat'] in (1, 2):
        wp_loads()
    if OPT['xc'] == 2:
        clear_xch()
    wp_gather()
    if OPT['wat'] < 2:
        mats1()
    k.wait(0)
    mark(k, 10)
    finish_tag(k)
    wp_run()
    mark(k, 2)
    k(f's_branch {LQ}')
    k.label(LB)
    k.fresh()
    mod_addr(False)
    k.wait(lg=0)
    srd(k, 36, pWS, WS_SIZE)
    srd(k, 40, pWM, D * 3456 * 2)
    load_tag(k, t)
    c_load()
    flag_addr()
    warm([fl, fl + 2, mo + 2])
    L1 = skip_unless(63, 126, 'ge')
    mod_loads(9, 0, OPT['mb'])
    endif(L1)
    mark(k, 1)
    k('s_barrier')
    k.wait(0)
    L1 = skip_unless(63, 126, 'ge')
    mod_loads(9, OPT['mb'], 9)
    endif(L1)
    finish_tag(k)
    mod_silu()
    L1 = skip_unless(sR, 20, 'ge')
    mats1()
    endif(L1)
    k.label(LQ)
    k.fresh()
    mark(k, 3)
    bar(k, lg=0)
    L1 = skip_unless(sR, 20, 'ge')
    if OPT['wfl']:
        k.wait(0)
        k(f'buffer_store_dword v{vTAG}, v{fl+1}, {WS}, 0 offen sc1')
    mats2()
    endif(L1)
    tag(k, 'touch h1')
    tag(k, 'region h1')
    k.wait(0)
    if OPT['wearly']:
        wpre()
    mark(k, 2)
    k('s_barrier')
    if OPT.get('mk') != 'u':
        mark(k, 10)
    k(f'buffer_store_dword v{vTAG}, v{fl}, {WS}, 0 offen sc1')
    L1 = skip_unless(63, 126, 'ge')
    mod_compute(False)
    endif(L1)
    k(f's_cmp_lt_u32 s{sR}, 20\ns_cbranch_scc1 {LP2}')
    srd(k, 52, pW1, S * F * 2)
    k(f'''s_mul_i32 s58, s{sW}, 12
    s_add_u32 s58, s58, s{sR}
    s_add_u32 s58, s58, {16*OPT['pf1'] - 20}''')
    if OPT['pfd']:
        k.wait(0)
    if OPT['pfd'] > 1:
        k(f's_sleep {OPT["pfd"]}')
    pf_loop(k, 1, 58, 48, OPT['pf2'], dum, 52)
    if OPT['pf9']:
        srd(k, 64, pW2, S * F * 2)
        k(f'''s_mul_i32 s59, s{sW}, 12
        s_add_u32 s59, s59, s{sR}
        s_sub_u32 s59, s59, 20''')
        pf_loop(k, 2, 59, 48, OPT['pf9'], dum, 64)
    k.wait(0)
    mark(k, 5)
    k('s_barrier')
    k(f's_branch {LG}')
    tag(k, 'target')
    k.label(LP2)
    k.fresh()
    if OPT['hp']:
        k('s_setprio 1')
    unp = [f'v_lshlrev_b32 v{wv+8*(x>>2)+(x&3)}, 16, v{wp+x}\nv_and_b32 v{wv+8*(x>>2)+4+(x&3)}, 0xffff0000, v{wp+x}' for x in range(16)]
    if OPT['wfl']:
        if not OPT['wearly']:
            wpre()
        wpost()
        if OPT['wearly']:
            k.wait(1)
        L1 = k.lab()
        check_tags(k, [fl + 1])()
        k(f's_cbranch_vccz {L1}')
        poll(k, [wl], check_tags(k, [fl + 1]))
        k.label(L1)
        for tt in range(4):
            k(f'buffer_load_dwordx4 {Q(wp+4*tt)}, v{la}, {WS}, s53 offen offset:{1024*tt} sc1')
        k.wait({1: 0, 2: 3, 3: 4}[OPT['wfl']])
        mark(k, 11)
        poll(k, [f'buffer_load_dword v{t}, v{g4}, {WS}, s65 offen sc1'], check_tags(k, [t]), masked=True, alt=([65], 16384, OPT['na']))
        mark(k, 1)
        for j in range(4):
            k(f'buffer_load_dwordx4 {Q(ld+4*j)}, v{a5}, {WS}, s52 offen offset:{1024*j} sc1')
        for x in unp:
            k(x)
        unp = [''] * 16
        if OPT['stamp']:
            k.wait(0)
    else:
        p2_addr()
        k(f'''s_lshr_b32 s64, s{sJ}, 1
        s_lshl_b32 s64, s64, 16
        s_add_u32 s64, s64, {WS_FL2}
        s_lshl_b32 s48, s{sW}, {6+OPT['fs']}
        s_add_u32 s65, s64, s48
        v_lshlrev_b32 v{t+1}, {OPT['fs']}, v0
        s_lshl_b32 s48, s{sW}, 5
        s_add_u32 s48, s48, s{sJ}
        v_and_b32 v{t+2}, 3, v0
        v_lshl_add_u32 v{t+2}, v{t+2}, 3, s48
        s_cmp_lt_u32 s60, 2
        s_cselect_b32 s48, 1, -1
        v_mul_i32_i24 v{t+2}, s48, v{t+2}
        v_bfe_u32 v{t+3}, v{t+2}, 2, 2
        v_bfe_u32 v{t+4}, v{t+2}, 4, 3
        v_and_b32 v{t+2}, 3, v{t+2}
        v_lshl_add_u32 v{t+2}, v{t+3}, 6, v{t+2}
        v_lshl_add_u32 v{t+2}, v{t+4}, 3, v{t+2}
        v_lshlrev_b32 v{t+2}, {OPT['fs']}, v{t+2}''')
        k.wait(0)
        mark(k, 11)
        poll(k, [f'buffer_load_dword v{t}, v{t+1}, {WS}, s65 offen sc1', f'buffer_load_dword v{t+3}, v{t+2}, {WS}, s64 offen sc1'],
             check_tags(k, [t, t + 3]), masked=True, alt=([64, 65], 16384, OPT['na']))
        mark(k, 1)
        for j in range(4):
            k(f'buffer_load_dwordx4 {Q(ld+4*j)}, v{a5}, {WS}, s52 offen offset:{1024*j} sc1')
        for tt in range(4):
            k(f'buffer_load_dwordx4 {Q(wp+4*tt)}, v{la}, {WS}, s53 offen offset:{1024*tt} sc1')
    if OPT['stamp']:
        k.wait(4)
    mark(k, 4)
    for i in range(4):
        for j in range(i + 1, 4):
            k(f'v_swap_b32 v{ld+4*i+j}, v{ld+4*j+i}')
        for ri in range(2):
            k(f'{MF} {Q(acc+8*i+4*ri)}, {Q(ld+4*i)}, {Q(Fa+4*ri)}, 0')
    for ci in range(4):
        for j in range(4):
            k(f'v_cvt_pk_bf16_f32 v{pk+4*ci+j}, v{acc+8*ci+j}, v{acc+8*ci+4+j}')
        k(f'ds_write_b128 v{a0}, {Q(pk+4*ci)} offset:{L_A+16*ci}')
    bar(k, lg=0)
    for tt in range(4):
        k(f'ds_read_b128 {Q(ld+4*tt)}, v{a2} offset:{L_A+1040*tt}')
    cue = f'buffer_store_dword v{vTAG}, v{fl+2}, {WS}, 0 offen sc1'
    if OPT['cue_at'] == 0:
        k(cue)
    for x in unp[:8]:
        k(x)
    for tt in range(4):
        for ri in range(2):
            k(f'{MF} {Q(acc+8*tt+4*ri)}, {Q(Fb+8*tt+4*ri)}, {Q(ld+4*tt)}, 0')
            k(unp[8 + 2 * tt + ri])
    for tt in range(4):
        for p in range(2):
            re, im, wr, wi = acc + 8 * tt + 2 * p, acc + 8 * tt + 4 + 2 * p, wv + 8 * tt + 2 * p, wv + 8 * tt + 4 + 2 * p
            o = t + 4 * p
            k(f'''v_pk_mul_f32 {P(o)}, {P(re)}, {P(wr)}
            v_pk_mul_f32 {P(o+2)}, {P(im)}, {P(wr)}
            v_pk_fma_f32 {P(o)}, {P(im)}, {P(wi)}, {P(o)} neg_lo:[1,0,0] neg_hi:[1,0,0]
            v_pk_fma_f32 {P(o+2)}, {P(re)}, {P(wi)}, {P(o+2)}
            v_cvt_pk_bf16_f32 v{pk+4*tt+2*p}, v{o}, v{o+2}
            v_cvt_pk_bf16_f32 v{pk+4*tt+2*p+1}, v{o+1}, v{o+3}''')
            if tt:
                k(f'{MF} {Q(acc+8*(tt-1)+4*p)}, {Q(Fbi+8*(tt-1)+4*p)}, {Q(pk+4*(tt-1))}, 0')
            if OPT['cue_at'] == 4 and (tt, p) == (2, 1):
                k(cue)
    for tt in range(4):
        if tt == 1:
            for ri in range(2):
                k(f'{MF} {Q(acc+24+4*ri)}, {Q(Fbi+24+4*ri)}, {Q(pk+12)}, 0')
        for j in range(4):
            k(f'v_cvt_pk_bf16_f32 v{ld+4*j+tt}, v{acc+8*tt+j}, v{acc+8*tt+4+j}')
            if tt == 3:
                k(f'ds_write_b128 v{a3}, {Q(ld+4*j)} offset:{L_B+64*j}')
    bar(k, lg=0)
    for ci in range(4):
        k(f'ds_read_b128 {Q(pk+4*ci)}, v{a1} offset:{L_B+1056*ci}')
    if OPT['cue_at'] == 1:
        k(cue)
    for ci in range(4):
        for ri in range(2):
            k(f'{MF} {Q(acc+8*ci+4*ri)}, {Q(Fai+4*ri)}, {Q(pk+4*ci)}, 0')
    for ci in range(4):
        if ci == 3 and OPT['sp1'] and OPT['cl3'] == 1:
            k('s_barrier')
        for j in range(4):
            k(f'v_cvt_pk_bf16_f32 v{ld+4*j+ci}, v{acc+8*ci+4+j}, v{acc+8*ci+j}')
            if ci == 3:
                k(f'buffer_store_dwordx4 {Q(ld+4*j)}, v{a4}, {WS}, s{66+j} offen sc1')
    if OPT['cue_at'] == 2:
        k(cue)
    mark(k, 5)
    if OPT['hp']:
        k('s_setprio 0')
    bar(k, None if OPT['ec2'] else 0)
    if OPT['cue_at'] == 3:
        k(cue)
    tag(k, 'region -')
    k.label(LG)
    if OPT.get('nodma'):
        k.drop = lambda x: x.endswith(' lds') and (OPT['nodma'] == 1 or (OPT['nodma'] == 2) == ('sc1' in x))
    k.fresh()
    V.p = 4
    t = V(4); la_ = V(); fl = V(2); da = V(9); xa = V(6); xd = V(24, 4); pv = V(2); xf_ = V(); db = V(9); fb = V(3); xr_ = V(5); vr = V(10)
    k(f'v_lshlrev_b32 v{la_}, 4, v0')
    la = la_
    g1_tile(k)
    g2_tile(k)
    srd(k, 40, pW1, S * F * 2)
    srd(k, 44, pW2, S * F * 2)
    k(f'''s_and_b32 s62, s{sW}, 1
    s_and_b32 s63, s{sJ}, {OPT['xm']}
    s_mul_i32 s63, s63, {OPT["xst"]}
    s_add_u32 s63, s63, {OPT['xo']}
    s_mul_i32 s48, s51, {OPT['rot1']}
    s_add_u32 s63, s63, s48
    s_and_b32 s63, s63, 31
    s_mov_b32 s64, 0
    s_lshl_b32 s68, s62, 13''')

    def start_off(dst, hi, base, first, mul, n):
        k(f's_mul_i32 s{dst}, s{first}, {mul}\ns_add_u32 s{dst}, s{dst}, s{base}\ns_add_u32 s{hi}, s{base}, {n*mul}')

    def w_addr(g, da, lo):
        jst, gst, qoff = ((256 * 9216, 9216, 1024 * 9216), (4096, 16384, 16 * 4096))[g]
        k(f'''v_lshlrev_b32 v{t+1}, 1, v2
        v_xor_b32 v{t+1}, v{t+1}, v1
        v_xor_b32 v{t+2}, 8, v{t+1}
        v_mul_u32_u24 v{t}, {jst}, v2
        v_lshl_add_u32 v{da}, v{t+1}, 4, v{t}
        v_lshl_add_u32 v{da+1}, v{t+2}, 4, v{t}
        v_add_u32 v{da+2}, {2*(gst-1024)}, v{da}
        v_add_u32 v{da+3}, {3*(gst-1024)}, v{da+1}
        v_add_u32 v{da+1}, {gst-1024}, v{da+1}''')
        for i in range(4):
            k(f'v_add_u32 v{da+4+i}, {qoff}, v{da+i}')
        if g == 0:
            k(f's_mul_i32 s49, s62, {4*9216}\ns_lshl_b32 s48, s51, 8\ns_add_u32 s49, s49, s48')
            start_off(lo, lo + 1, 49, 63, 8 * 9216, 32)
        else:
            k(f'''s_mul_i32 s49, s53, {1152*4096}
            s_lshl_b32 s48, s62, 17
            s_add_u32 s49, s49, s48
            s_lshl_b32 s48, s54, 8
            s_add_u32 s49, s49, s48''')
            start_off(lo, lo + 1, 49, 64, 64 * 4096, NST2)

    def woff(n, mul, NST, lo=60, pair=False, d=50):
        if pair:
            p = f's_mul_i32 s{d}, s62, {(kappa(n+1, NST)-kappa(n, NST))*mul}\ns_add_u32 s{d}, s{d}, s{lo}\ns_add_u32 s{d}, s{d}, {kappa(n, NST)*mul}\n'
        else:
            p = f's_add_u32 s{d}, s{lo}, {kappa(n, NST)*mul}\n'
        return p + f's_cmp_ge_u32 s{d}, s{lo+1}\ns_cselect_b32 s48, {NST*mul}, 0\ns_sub_u32 s{d}, s{d}, s48\n'

    class Stream:
        def __init__(st, items):
            st.items, st.n, st.seq = items, 0, []

        def issue(st, upto, now):
            while st.n < min(upto, len(st.items)):
                need, free, txt = st.items[st.n]
                if free > now:
                    break
                k(txt)
                st.seq.append(k.stats.get('vmem', 0))
                st.n += 1

        def more(st, n):
            st.issue(st.n + n, -1)

        def run(st, NST, quota, last_bar=True, mk=None, hooks={}, verify={}, pre={}):
            landed = -1
            log = []
            for i in range(NST):
                nd = [x for x, it in enumerate(st.items) if it[0] <= i]
                vm = None
                if nd and nd[-1] > landed:
                    assert nd[-1] < st.n, (i, nd[-1], st.n)
                    landed = nd[-1]
                    vm = k.stats.get('vmem', 0) - st.seq[landed]
                if i in verify:
                    if vm is not None:
                        k.wait(vm)
                    verify[i]()
                    k('s_barrier')
                else:
                    bar(k, vm)
                if mk and OPT['stamp'] and i == 0:
                    mark(k, mk)
                    k.raw('    s_memtime s[98:99]')
                if mk and OPT.get('trace'):
                    k(f's_memtime s[14:15]\nv_writelane_b32 v{200 + (mk == 8)}, s14, {i}')
                if landed == len(st.items) - 1 and not last_bar:
                    break
                if i in pre:
                    pre[i]()
                n = st.n
                st.issue(quota(i), i)
                log.append((vm, st.n - n))
                if i in hooks:
                    n = k.stats['vmem']
                    hooks[i]()
                    k.stats['vmem'] = n + hooks.get('min', 0)
            if OPT.get('log'):
                print(log, file=sys.stderr)
            if mk and OPT['stamp']:
                mark(k, mk + 1)
                k('s_memtime s[100:101]')
                k(f's_sub_u32 s{84+mk}, s100, s98')

    def adv(s, inc, span, hi):
        return f's_add_u32 s{s}, s{s}, {inc}\ns_cmp_ge_u32 s{s}, s{hi}\ns_cselect_b32 s48, {span}, 0\ns_sub_u32 s{s}, s{s}, s48\n'

    def spread(n0, n1, i0, i1):
        return lambda i: n0 + int(round((n1 - n0) * max(0, min(i, i1) + 1 - i0) / (i1 + 1 - i0)))
    LHW = k.lab()
    if OPT.get('hprio'):
        k(f's_setprio {OPT["hprio"]}')
    k(f's_cmp_ge_u32 s{sW}, 2\ns_cbranch_scc1 {LHW}')
    x1f = f'buffer_load_dword v{fb+2}, v{fb+1}, {WS}, 0 offen sc1'

    def setup_g1():
        h3_idx(k, 56)
        publish(k, 2, 56, fl)
        k(f's_lshl_b32 s56, s52, 6\ns_add_u32 s56, s56, s51')
        publish(k, 3, 56, fl + 1, ncue=5, cue_add=27)
        k(f'''s_lshr_b32 s65, s{sJ}, 2
        s_lshl_b32 s65, s65, 16
        s_add_u32 s66, s65, {WS_FL2+3*0x40000}
        s_lshl_b32 s48, s62, {7+OPT['fs']}
        s_add_u32 s65, s65, s48
        s_add_u32 s65, s65, {WS_FL2+2*0x40000}
        s_add_u32 s69, s65, {64<<OPT['fs']}
        v_lshlrev_b32 v{xa+5}, {OPT['fs']}, v0
        s_mul_i32 s67, s52, {96*16}
        s_mul_i32 s48, s62, {4*9216}
        s_add_u32 s67, s67, s48
        s_add_u32 s67, s67, {WS_H2}
        v_add_u32 v{da+2}, {9216-1536}, v{la}
        v_cmp_gt_u32 vcc, 32, v0
        v_cndmask_b32 v{da+1}, v{da+2}, v{la}, vcc
        v_add_u32 v{da+3}, {2*9216}, v{la}
        v_add_u32 v{da+4}, {2*9216}, v{da+1}
        v_add_u32 v{da+5}, {2*9216}, v{da+2}
        s_mul_i32 s68, s62, 6144''')
        start_off(58, 59, 67, 63, 8 * 9216, 32)

    def setup_g2():
        for i in range(9):
            k(f'''v_add_u32 v{vr}, {64*i}, v0
            v_mul_u32_u24 v{vr+1}, 1821, v{vr}
            v_lshrrev_b32 v{vr+1}, 18, v{vr+1}
            v_mul_u32_u24 v{vr+1}, {9216-2304}, v{vr+1}
            v_lshl_add_u32 v{vr+1}, v{vr}, 4, v{vr+1}
            v_subrev_u32 v{db+i}, {1024*(i&3)}, v{vr+1}''')
        k(f'''s_mul_i32 s48, s55, 3
        s_add_u32 s49, s48, 2
        s_lshr_b32 s48, s48, 1
        s_lshr_b32 s49, s49, 1
        v_mov_b32 v{vr}, s48
        v_mov_b32 v{vr+1}, s49
        v_cmp_gt_u32 vcc, 32, v0
        v_cndmask_b32 v{vr}, v{vr+1}, v{vr}, vcc
        v_and_b32 v{vr+1}, 31, v0
        v_min_u32 v{vr+1}, 8, v{vr+1}
        v_lshl_add_u32 v{vr}, v{vr}, 6, v{vr+1}
        s_mul_i32 s48, s53, 9
        v_add_u32 v{vr}, s48, v{vr}
        v_lshlrev_b32 v{fb}, {OPT['fs']}, v{vr}''')
        k(f'''s_lshr_b32 s48, s54, 3
        s_lshl_b32 s48, s48, 2
        s_and_b32 s49, s54, 1
        s_lshl_b32 s49, s49, 1
        s_add_u32 s48, s48, s49
        s_add_u32 s48, s48, s62
        s_lshl_b32 s48, s48, 13
        s_add_u32 s48, s48, {WS_FL2 + 0x40000}
        v_lshl_add_u32 v{fb+1}, v0, 7, s48
        v_mov_b32 v{fb+2}, 0''')
        k(f'''s_lshl_b32 s48, s54, 7
        s_lshr_b32 s49, s53, 1
        s_lshl_b32 s49, s49, 4
        s_add_u32 s48, s48, s49
        s_mul_i32 s48, s48, 1152
        s_mul_i32 s49, s55, 288
        s_add_u32 s48, s48, s49
        s_and_b32 s49, s53, 1
        s_mul_i32 s49, s49, 144
        s_add_u32 s48, s48, s49
        s_add_u32 s12, s48, {WS_X1}
        s_lshl_b32 s13, s62, 6''')
        for i in range(5):
            k(f'''v_add_u32 v{vr}, s13, v0
            v_mul_u32_u24 v{vr+1}, 911, v{vr}
            v_lshrrev_b32 v{vr+1}, 13, v{vr+1}
            v_mul_u32_u24 v{vr+2}, 9, v{vr+1}
            v_sub_u32 v{vr+2}, v{vr}, v{vr+2}
            v_and_b32 v{vr}, 48, v{vr+1}
            v_add_u32 v{vr+1}, v{vr+1}, v{vr}
            v_mul_u32_u24 v{vr+1}, 1152, v{vr+1}
            v_lshl_add_u32 v{vr+1}, v{vr+2}, 4, v{vr+1}
            v_add_u32 v{xr_+i}, s12, v{vr+1}
            s_add_u32 s13, s13, 128''')
        k(f'''s_mul_i32 s48, s55, 576
        s_and_b32 s49, s53, 1
        s_mul_i32 s49, s49, 288
        s_add_u32 s48, s48, s49
        s_add_u32 s48, s48, {WS_MOD+5*2304}
        v_min_u32 v{vr}, {17*16}, v{la}
        v_add_u32 v{vr}, s48, v{vr}
        s_cmp_eq_u32 s62, 1
        s_cselect_b64 vcc, -1, 0
        v_cndmask_b32 v{xr_+4}, v{xr_+4}, v{vr}, vcc''')

    def setup_x1():
        k(f's_mul_i32 s56, s62, 288\ns_mul_i32 s57, s{sS2}, 1152\ns_add_u32 s57, s57, {WS_X1}')
        for i in range(5):
            k(f'''v_add_u32 v{t}, {64*i}, v0
            v_min_u32 v{t}, 287, v{t}
            v_add_u32 v{t}, s56, v{t}
            v_mul_u32_u24 v{t+1}, 911, v{t}
            v_lshrrev_b32 v{t+1}, 16, v{t+1}
            v_mul_u32_u24 v{t+1}, {256*1152 - 1152}, v{t+1}
            v_lshl_add_u32 v{xa+i}, v{t}, 4, v{t+1}''')
            if i in (0, 4):
                k(f'v_lshlrev_b32 v{t}, 4, v{t}\nv_add_u32 v{t+2+i//4}, {L_Z}, v{t}')
    if not OPT['lz']:
        setup_g1()
        setup_g2()
        setup_x1()
    tag(k, 'touch a1')
    tag(k, 'region a1')
    def clear_u():
        if OPT['sp2']:
            c0, n = spec_range(1)
            k(f'v_mov_b64 {P(xd)}, -1\nv_mov_b64 {P(xd+2)}, -1\ns_lshl_b32 s56, s2, 1\ns_add_u32 s56, s56, s62')

            def addr():
                k('s_mov_b32 s49, s48')
                for g in range(1, 4):
                    k(f's_cmp_ge_u32 s49, {72*n*g}\ns_cselect_b32 s50, {72*(NST2-n)}, 0\ns_add_u32 s48, s48, s50')
                k(f's_lshl_b32 s48, s48, 10\ns_add_u32 s48, s48, {WS_U + c0*73728}')
            clear_loop(k, 56, 512, 288 * n, addr, xd, la)
    if OPT['cl4'] == 0:
        clear_u()
    n7 = OPT['pf2'] + 10 * OPT['pf3']
    k(f'''s_mul_i32 s56, s62, 27
    s_add_u32 s56, s56, s{sR}
    s_add_u32 s56, s56, {n7}
    s_cmp_lt_u32 s{sR}, 27
    s_cselect_b32 s56, s56, 999
    s_barrier''')
    if OPT['pf7']:
        pf_loop(k, 1, 56, 54, n7 + 27 * OPT['pf7'], xd + 20, 40)
    if OPT['cl4'] == 1:
        clear_u()

    def clear_own_xch():
        k(f'''v_mov_b64 {P(xd)}, -1
        v_mov_b64 {P(xd+2)}, -1
        s_mul_i32 s56, s2, {XB}
        s_lshl_b32 s48, s62, 10
        s_add_u32 s56, s56, s48
        s_add_u32 s56, s56, {WS_XCH}''')
        for x in range(14):
            if x < 13:
                k(f's_add_u32 s48, s56, {2048*x}')
            else:
                k(f's_mul_i32 s48, s62, -2048\ns_add_u32 s48, s48, {2048*13}\ns_add_u32 s48, s48, s56')
            k(f'buffer_store_dwordx4 {Q(xd)}, v{la}, {WS}, s48 offen sc1')
    if OPT['xc'] == 4:
        clear_own_xch()
    if OPT['lz']:
        setup_g1()
    k('s_barrier')
    if OPT['cl4'] == 2:
        clear_u()
    if OPT['xc'] == 5:
        clear_own_xch()
    if OPT['lz']:
        setup_x1()
    k('s_barrier\ns_barrier')
    for i in range(5):
        k(f'ds_read_b128 {Q(xd+4*i)}, v{t+2+i//4} offset:{1024*(i&3)}')
    def x1_stores():
        for i in range(5):
            k(f'buffer_store_dwordx4 {Q(xd+4*i)}, v{xa+i}, {WS}, s57 offen sc1')

    def p3_publish():
        if not OPT['xdef']:
            bar(k, 0)
            do_publish(k, fl)
            return
        bar(k, lg=0)
        k(f'buffer_store_dword v{vTAG}, v{fl}, {WS}, 0 offen sc1')
        nx = len(reg_stages(0)) - 6
        if OPT['lz']:
            setup_g2()
        if OPT['xdef'] == 2:
            k.wait(0)
        if nx:
            k('s_barrier')
        x1_stores()
        if nx:
            k('s_barrier')
        k.wait(0)
        k(f'buffer_store_dwordx4 {Q(xd+20)}, v{xf_}, {WS}, 0 offen sc1')
    if not OPT['xdef']:
        x1_stores()
    else:
        k(f'''s_lshl_b32 s48, s62, 8
        s_add_u32 s48, s48, s{sS2}
        s_lshl_b32 s48, s48, 7
        s_add_u32 s48, s48, {WS_FL2 + 0x40000}
        v_add_u32 v{xf_}, s48, v{la}
        v_cmp_gt_u32 vcc, 8, v0
        v_mov_b32 v{t}, {OOB}
        v_cndmask_b32 v{xf_}, v{t}, v{xf_}, vcc''')
        k.wait(0)
        for i in range(4):
            k(f'v_mov_b32 v{xd+20+i}, v{vTAG}')
    LN, LJ = k.lab(), k.lab()
    k(f's_cmp_ge_u32 s{sR}, 27\ns_cbranch_scc1 {LN}')
    st0 = (list(k.vm), list(k.lg))
    if OPT['rf']:
        k('s_barrier')

    def act_text(g, n, i, so):
        if g == 0:
            pre = f's_add_u32 m0, s68, {L_ACT + (n % 5)*12288 + 1024*i}\n' if i % 3 == 0 else ''
            return pre + f'buffer_load_dwordx4 v{la if i==0 else da+i}, {WS}, s{so} offen offset:{1024*(i%3)} {OPT["fa1"].replace("_", " ")} lds'
        pre = f's_add_u32 m0, s57, {L_ACT2 + (n % NSA2)*AST2 + 1024*i}\n' if i % 4 == 0 else ''
        return pre + f'buffer_load_dwordx4 v{db+i}, {WS}, s{so} offen offset:{1024*(i&3)} {OPT["fa2"].replace("_", " ")} lds'

    def verifier(g, n):
        def f():
            ni, stg = ((6, 12288), (9, AST2))[g]
            L, E = k.lab(), k.lab()
            k.label(L)
            for i in range(ni):
                k(f'ds_read_b32 v{vr+i}, v{vr+9} offset:{n*stg + 1024*i}' if n < 4 or g == 0 else f'ds_read_b32 v{vr+i}, v90 offset:{(n-4)*stg + 1024*i}')
            for i in range(1, ni, 2):
                k(f'v_max3_u32 v{vr}, v{vr}, v{vr+i}, v{vr+min(i+1, ni-1)}')
            k(f'v_cmp_eq_u32 vcc, -1, v{vr}\ns_cbranch_vccz {E}')
            k(f's_sub_u32 s{sBUD}, s{sBUD}, 1\ns_cbranch_scc1 {E}')
            cnt, vm = k.stats['vmem'], k.vm
            k('s_mov_b32 s14, m0')
            if OPT['sl3']:
                k(f's_sleep {OPT["sl3"]}')
            k(woff(n, 8 * 9216, (32, NST2)[g], 58, False, 15))
            for i in range(ni):
                k(act_text(g, n, i, 15))
            k('s_mov_b32 m0, s14')
            k.wait(0)
            k(f's_branch {L}')
            k.stats['vmem'], k.vm = cnt, vm
            k.label(E)
            k(f's_max_i32 s{sBUD}, s{sBUD}, 0')
        return f

    def late_check(loads, regs, mk):
        seq = []

        def issue():
            for l in loads:
                k(l)
            seq.append(k.stats['vmem'])

        def check():
            k.wait(k.stats['vmem'] - seq[0])
            L = k.lab()
            check_tags(k, regs)()
            k(f's_cbranch_vccz {L}')
            cnt, vm = k.stats['vmem'], k.vm
            poll(k, loads, check_tags(k, regs), masked=True)
            k.stats['vmem'], k.vm = cnt, vm
            k.label(L)
            mark(k, mk)
        return issue, check
    h3l = [f'buffer_load_dword v{t}, v{xa+5}, {WS}, s65 offen sc1', f'buffer_load_dword v{t+1}, v{xa+5}, {WS}, s69 offen sc1']
    items = []
    for n in range(32):
        for i in range(6):
            post = '\n' + woff(n + 1, 8 * 9216, 32, 58) if i == 5 and n < 31 else ''
            items.append((n, max(n - 5 + 2, OPT['sp1']) if n >= 5 else -9, act_text(0, n, i, 50) + post))
    st = Stream(items)

    def stag_setup(n0, g, per, i0, span, gap, lim=288):
        if not per:
            return {}
        assert n0 >= 0 and per <= 4
        mask, nf = leaders(g)
        w2_lane(k, pv, 35)
        k(f'''s_mov_b32 s49, s35
        s_mul_i32 s48, s62, {1 if OPT['jit'] else nf}
        s_add_u32 s49, s49, s48
        s_bfm_b32 s48, s{sR}, 0
        s_and_b32 s48, s48, {mask}
        s_bcnt1_i32_b32 s48, s48
        s_sub_u32 s12, s{sR}, s48''')
        bs = OPT['jit'] or 2
        for x in range(per):
            if OPT['jit']:
                x0 = x - x % bs
                k(f's_mul_i32 s35, s12, {2*min(bs, per-x0)}\ns_add_u32 s35, s35, {n0 + 2*x0*nf + 2*(x-x0)}')
            else:
                k(f's_add_u32 s35, s12, {n0 + 2*x*nf}')
            k(f'''s_add_u32 s35, s35, s49
            s_min_u32 s35, s35, {lim-1}
            s_lshl_b32 s{8+x}, s35, 14''')
        k(f'''s_mul_i32 s35, s12, {span*256//nf}
        s_lshr_b32 s35, s35, 8
        s_add_u32 s35, s35, {i0}
        s_mov_b32 s48, {mask}
        s_bitcmp1_b32 s48, s{sR}
        s_cselect_b32 s35, 999, s35''')

        def hook(i):
            def f():
                for x0 in range(0, per, bs):
                    q = i - gap * (x0 // bs)
                    if i0 <= q < i0 + span:
                        L = k.lab()
                        k(f's_cmp_lg_u32 s35, {q}\ns_cbranch_scc1 {L}')
                        for x in range(x0, min(x0 + bs, per)):
                            k.raw(f'    buffer_load_dword v{pv+1}, v{pv}, s[44:47], s{8+x} offen')
                        k.label(L)
            return f
        return {i: hook(i) for i in range(i0, i0 + span + gap * ((per - 1) // bs))}
    n8 = 288 - 2 * leaders(1)[1] * OPT['pf8']
    hooks = stag_setup(n8 - 2 * leaders(0)[1] * OPT['pf4'] + OPT['n4x'], 0, OPT['pf4'], *OPT['pf4at'], lim=n8)
    k(woff(0, 8 * 9216, 32, 58))
    verify, pre = {}, {}
    if OPT['sp1']:
        k(f's_add_u32 s48, s68, {L_ACT}\nv_add_u32 v{vr+9}, s48, v{la}')
        bar(k, lg=0)
        k(f'buffer_store_dword v{vTAG}, v{fl}, {WS}, 0 offen sc1')
        if OPT['spw']:
            k.wait(0)
        mark(k, 6)
        verify = {n: verifier(0, n) for n in range(5)}
        pre[OPT['sp1'] - 1], pre[OPT['sp1']] = late_check(h3l, [t, t + 1], 7)
        pre[5] = x1_stores
        pre[10] = lambda: k(f'buffer_store_dwordx4 {Q(xd+20)}, v{xf_}, {WS}, 0 offen sc1')
    else:
        p3_publish()
        mark(k, 6)
        poll(k, h3l, check_tags(k, [t, t + 1]), masked=True, alt=([65, 69], 16384, OPT['na']))
        mark(k, 7)
    st.more(6 * OPT['a1pre'])
    if OPT['xdef']:
        assert 28 not in hooks
        hooks[28] = lambda: k(x1f)
    st.run(32, lambda i: 6 * (i + 4), hooks=hooks, verify=verify, pre=pre)
    k(f's_branch {LJ}')
    k.label(LN)
    k.fresh()
    if OPT['xdef']:
        k.wait(lg=0)
        x1_stores()
        bar(k, 0)
        k(f'buffer_store_dword v{vTAG}, v{fl}, {WS}, 0 offen sc1')
        k(f'buffer_store_dwordx4 {Q(xd+20)}, v{xf_}, {WS}, 0 offen sc1')
        if OPT['lz']:
            setup_g2()
        k.wait(0)
    else:
        p3_publish()
    poll(k, [f'buffer_load_dword v{t}, v{xa+5}, {WS}, s65 offen sc1', f'buffer_load_dword v{t+1}, v{xa+5}, {WS}, s69 offen sc1'],
         check_tags(k, [t, t + 1]), masked=True, alt=([65, 69], 16384, OPT['na']))
    k.label(LJ)
    k.fresh()
    t = xd
    k(f'''s_mul_i32 s67, s55, {144*16}
    s_mul_i32 s48, s53, {NST2*8*9216}
    s_add_u32 s67, s67, s48
    s_mul_i32 s48, s62, {4*9216}
    s_add_u32 s67, s67, s48
    s_add_u32 s67, s67, {WS_U}
    s_mul_i32 s57, s62, 9216
    s_add_u32 s48, s57, {L_ACT2}
    v_add_u32 v{vr+9}, s48, v{la}
    v_add_u32 v90, {4*AST2}, v{vr+9}''')
    start_off(58, 59, 67, 64, 8 * 9216, NST2)
    k.wait(0)
    if OPT['xdef']:
        L1 = k.lab()
        check_tags(k, [fb + 2])()
        k(f's_cbranch_vccz {L1}')
        poll(k, [x1f], check_tags(k, [fb + 2]), masked=True)
        k.label(L1)
    hooks = stag_setup(n8, 1, OPT['pf8'], *OPT['pf8at'])
    k('s_barrier')
    tag(k, 'touch a2')
    tag(k, 'region a2')
    LN, LJ = k.lab(), k.lab()
    k('s_barrier\n' * (2 + bool(OPT['rf2'])))
    k(f's_cmp_ge_u32 s{sR}, 27\ns_cbranch_scc1 {LN}')
    k(f'buffer_store_dword v{vTAG}, v{fl+1}, {WS}, 0 offen sc1')
    if not OPT['sp2'] or OPT['spw']:
        k.wait(0)
    k(f's_branch {LJ}')
    k.label(LN)
    wait_cue(k, 3, t)
    k.label(LJ)
    k(woff(0, 8 * 9216, NST2, 58))
    mark(k, 8)
    h4l = [f'buffer_load_dword v{t}, v{fb}, {WS}, s66 offen sc1']
    verify, prh = {}, {}
    if OPT['sp2']:
        verify = {n: verifier(1, n) for n in range(OPT['nsp'])}
        prh[OPT['sp2'] - 1], prh[OPT['sp2']] = late_check(h4l, [t], 9)
    else:
        poll(k, h4l, check_tags(k, [t]), masked=True, alt=([66], 16384, OPT['na']))
        mark(k, 9)
    items = []
    for n in range(NST2):
        for i in range(9):
            post = '\n' + woff(n + 1, 8 * 9216, NST2, 58) if i == 8 and n < NST2 - 1 else ''
            items.append((n, max(n - NSA2 + 2, OPT['sp2']) if n >= OPT['nsp'] else -9, act_text(1, n, i, 50) + post))
    ring2 = [n for n in range(NST2) if n not in reg_stages(1)]
    xfree = max(n for m, n in enumerate(ring2) if m % NSW2 == L_X1 // 16384) + 1
    for i in range(5):
        pre = f's_lshl_b32 s48, s62, 10\ns_add_u32 m0, s48, {L_X1 + 2048*i}\n' if i < 4 else \
              f's_mul_i32 s48, s62, {L_GB - L_X1 - 8192}\ns_add_u32 m0, s48, {L_X1 + 8192}\n'
        items.append((NST2, max(xfree, NST2 - NSA2 + 1), pre + f'buffer_load_dwordx4 v{xr_+i}, {WS}, 0 offen sc1 lds'))
    st = Stream(items)
    st.more(9 * OPT['a2pre'])
    assert OPT['nsp'] <= NSA2
    st.run(NST2 + 1, lambda i: OPT['a2la'] + 9 * (i + 1), last_bar=False, hooks=hooks, verify=verify, pre=prh)
    LT = k.lab()
    k(f's_branch {LT if OPT["hx"] else "L_end"}')
    tag(k, 'region -')
    k.label(LHW)
    k.fresh()

    def witems(g, stages, slot0=0, NSW=NSW):
        NST, sd, mul, regs, lo = ((32, 40, 8 * 9216, da, 60), (NST2, 44, 64 * 4096, db, 58))[g]
        items = []
        for m, n in enumerate(stages):
            for i in range(8):
                pre = woff(n, mul, NST, lo) if i == 0 else ''
                pre += f's_add_u32 m0, s68, {((m + slot0) % NSW)*16384 + 1024*i}\n' if i % 4 == 0 else ''
                items.append((n, stages[m - NSW] + 1 if m >= NSW else -9,
                              pre + f'buffer_load_dwordx4 v{regs+i}, s[{sd}:{sd+3}], s50 offen offset:{1024*(i&3)} {OPT["fw2" if g else "fw1"].replace("_", " ")} lds'))
        return items

    def split(g):
        rs = reg_stages(g)
        return rs, [n for n in range((32, NST2)[g]) if n not in rs]
    w_addr(1, db, 58)
    rs2, ds2 = split(1)
    f1 = [it[2] for it in witems(1, rs2, 2)]
    LN, LJ = k.lab(), k.lab()
    k(f's_cmp_ge_u32 s{sR}, 27\ns_cbranch_scc1 {LN}')
    w_addr(0, da, 60)
    tag(k, 'touch w1')
    tag(k, 'region w1')
    rs, ds = split(0)
    nx = len(rs) - 6
    items = witems(0, ds, nx)
    n1 = len(items)
    assert (len(ds) + nx) % NSW == 2
    ne = OPT['ne']
    for x in range(ne):
        items += [(99, ds[len(ds) - NSW + x] + 1, it) for it in f1[8 * x:8 * x + 8]]
    st = Stream(items)
    s1 = Stream(witems(0, rs[:6]))
    for n in OPT['pw1']:
        s1.more(n)
        k('s_barrier')
    s1.more(999)
    k('s_barrier')
    bar(k, 0)
    if OPT['rf']:
        k('s_barrier')
        st.more(OPT['rf'])
    k('s_barrier')
    if nx:
        assert not OPT['rf'] and not OPT['sp1']
        Stream(witems(0, rs[6:])).more(99)
        st.more(OPT['pa'])
        bar(k, st.n)
        st.more(4)
        k('s_barrier')
    st.issue(OPT['f21'], -1)
    q1 = spread(st.n, n1, 0 if st.n < 48 else 1, ds[-1] - OPT['wla'])
    if OPT['asap']:
        n00 = st.n
        q1 = lambda i: min(n1, n00 + int(OPT['asap'] * (i + 1) / 10))
    st.run(32, lambda i: q1(i) + ([0] * 32 + OPT['neq'])[-32 + i], mk=6)
    assert st.n == len(items)
    k('s_barrier')
    k(f's_branch {LJ}')
    k.label(LN)
    k.fresh()
    k(f's_sub_u32 s56, s{sR}, 27\ns_lshl_b32 s56, s56, 1\ns_add_u32 s56, s56, s62\ns_add_u32 s56, s56, {OPT["pf2"]}')
    k('s_barrier')
    pf_loop(k, 1, 56, 10, OPT['pf2'] + 10 * OPT['pf3'], xa, 40)
    k('s_barrier\n' * 5)
    for it in f1[:8 * ne]:
        k(it)
    k.label(LJ)
    k.fresh()
    st = Stream(witems(1, ds2, 0, NSW2))
    for it in f1[8 * ne:]:
        k(it)
    tag(k, 'touch w2')
    tag(k, 'region w2')
    bar(k, 0)
    if OPT['rf2']:
        k('s_barrier')
        st.more(OPT['rf2'])
    k('s_barrier')
    st.issue(OPT['f22'], -1)
    wpre, wver = {}, {}
    if OPT['xc'] in (0, 3):
        on, tg, vrd, vpr, vds = 100, 104, 108, 109, 110
        k(f'''v_mov_b64 {P(on)}, -1
        v_mov_b64 {P(on+2)}, -1
        v_mov_b32 v{tg}, v{vTAG}
        v_mov_b32 v{tg+1}, v{vTAG}
        v_mov_b32 v{tg+2}, v{vTAG}
        v_mov_b32 v{tg+3}, v{vTAG}
        v_lshlrev_b32 v{vds}, 4, v0
        s_lshl_b32 s48, s2, 7
        s_add_u32 s48, s48, {WS_XRDY}
        v_add_u32 v{vrd}, s48, v{vds}
        s_cmp_eq_u32 s62, 0
        s_cselect_b32 s48, 8, 0
        v_cmp_gt_u32 vcc, s48, v0
        v_mov_b32 v{vpr}, {OOB}
        v_cndmask_b32 v{vrd}, v{vpr}, v{vrd}, vcc
        v_min_u32 v{vpr}, 2, v0
        v_add_u32 v{vpr}, 1, v{vpr}
        v_lshlrev_b32 v{vpr}, 1, v{vpr}
        v_xor_b32 v{vpr}, s2, v{vpr}
        v_lshlrev_b32 v{vpr}, 7, v{vpr}
        v_add_u32 v{vpr}, {WS_XRDY}, v{vpr}
        v_lshlrev_b32 v{tg+4+3}, 4, v0
        s_mul_i32 s56, s2, {XB}
        s_lshl_b32 s48, s62, 10
        s_add_u32 s56, s56, s48
        s_add_u32 s56, s56, {WS_XCH}''')
        c0, cn = OPT['xclr']
        cseq = []

        def clr(i):
            def f():
                for x in range((i - c0) * 14 // cn, (i - c0 + 1) * 14 // cn):
                    if x < 13:
                        k(f's_add_u32 s57, s56, {2048*x}')
                    else:
                        k(f's_mul_i32 s57, s62, -2048\ns_add_u32 s57, s57, {2048*13}\ns_add_u32 s57, s57, s56')
                    k(f'buffer_store_dwordx4 {Q(on)}, v{tg+7}, {WS}, s57 offen sc1')
                cseq[:] = [k.stats['vmem']]
            return f
        for i in range(c0, c0 + cn):
            if OPT['xc'] == 0:
                wpre[i] = clr(i)
        r0, r1 = OPT['xrdy']
        assert r0 > c0 + cn - 1 and r1 > r0 and r1 < NST2
        if OPT['xc'] == 0:
            wver[r0] = lambda: k.wait(k.stats['vmem'] - cseq[0])
        wpre[r0] = lambda: k(f'buffer_store_dwordx4 {Q(tg)}, v{vrd}, {WS}, 0 offen sc1')
        assert r1 - OPT['xlead'] > r0
        wpre[r1 - OPT['xlead']], chk = late_check([f'buffer_load_dword v{vds}, v{vpr}, {WS}, 0 offen sc1'], [vds], 12)
        wver[r1] = chk
    q2 = spread(st.n, len(st.items), 0 if st.n < 8 * NSW2 else 1, ds2[-1] - OPT['wla2'])
    if OPT['wlead']:
        qs, cur = [], st.n
        for i in range(NST2):
            cur = max(cur, min(8 * sum(n <= i + OPT['wlead'] for n in ds2), cur + OPT['wmax']))
            qs.append(cur)
        q2 = lambda i: qs[i]
    st.run(NST2, q2, mk=8, verify=wver, pre=wpre)
    if not OPT['hx']:
        return
    k('s_barrier')
    k.label(LT)
    k.fresh()
    ha, hr = 100, 104
    k(f'''v_lshlrev_b32 v{ha}, 4, v0
    v_lshlrev_b32 v{ha+1}, 2, v0
    s_mul_i32 s48, s{sW}, {XW}
    s_mul_i32 s60, s2, {XB}
    s_add_u32 s60, s60, s48
    s_add_u32 s60, s60, {WS_XCH + XM}
    s_add_u32 s61, s60, {XM}
    s_mul_i32 s63, s{sW}, {2*XW}
    s_add_u32 s63, s63, {L_S}
    v_add_u32 v{ha+2}, s63, v{ha}
    v_add_u32 v{ha+3}, s63, v{ha+1}''')
    xmark(k, 'x', 1)
    if OPT['hsl']:
        k(f's_sleep {OPT["hsl"]}')
    if OPT['xcue']:
        k(f'''s_lshl_b32 s48, s{sW}, 7
        s_mul_i32 s62, s2, 1536
        s_add_u32 s62, s62, s48
        s_add_u32 s62, s62, {WS_XCUE + 512}
        v_and_b32 v{hr+8}, 1, v0
        v_lshlrev_b32 v{hr+8}, 9, v{hr+8}''')
        poll(k, [f'buffer_load_dword v{hr+9}, v{hr+8}, {WS}, s62 offen sc1'], check_tags(k, [hr + 9]), sleep=OPT['xsl'])
        xmark(k, 'x', 2)
    loads = []
    for x in (1, 0):
        loads.append(f's_add_u32 m0, s63, {XW*x}\n' + f'buffer_load_dwordx4 v{ha}, {WS}, s{60+x} offen sc1 lds')
        loads.append(f'buffer_load_dwordx4 v{ha}, {WS}, s{60+x} offen offset:1024 sc1 lds')
        loads.append(f'buffer_load_dword v{ha+1}, {WS}, s{60+x} offen offset:2048 sc1 lds')

    def hchk():
        for x in range(2):
            k(f'ds_read_b32 v{hr+3*x}, v{ha+2} offset:{XW*x}\nds_read_b32 v{hr+3*x+1}, v{ha+2} offset:{XW*x+1024}\nds_read_b32 v{hr+3*x+2}, v{ha+3} offset:{XW*x+2048}')
        check_sent(k, [hr + i for i in range(6)], hr + 6)()
    poll(k, loads, hchk, sleep=OPT['hsl2'])
    xmark(k, 'x', 3)
    k('s_barrier')


def build():
    geometry()
    k = K('m')
    k(f's_cmp_ge_u32 s2, 256\ns_cbranch_scc1 L_exit')
    if OPT['stamp']:
        k('s_memrealtime s[70:71]')
        for i in range(72, 96):
            k(f's_mov_b32 s{i}, 0')
    k(f'''s_load_dwordx16 s[8:23], s[0:1], 0
    s_load_dwordx8 s[24:31], s[0:1], 64
    s_load_dwordx2 s[32:33], s[0:1], 96''')
    if OPT['codepf']:
        k(f'''v_readfirstlane_b32 s4, v0
        s_lshr_b32 s5, s2, 3
        s_lshr_b32 s4, s4, 6
        s_cmp_lg_u32 s4, s5
        s_cbranch_scc1 L_nopf
        s_getpc_b64 s[52:53]
        L_pc:
        s_sub_u32 s52, s52, L_pc-{NAME}_kernel
        s_subb_u32 s53, s53, 0
        s_mov_b32 s54, L_code_end-{NAME}_kernel
        s_mov_b32 s55, 0x20000
        v_lshlrev_b32 v1, 7, v0''')
        k.raw('    buffer_load_dword v255, v1, s[52:55], 0 offen')
        k('v_add_u32 v1, 65536, v1')
        k.raw('    buffer_load_dword v255, v1, s[52:55], 0 offen')
        k.maxreg['v'] = 255
        k.label('L_nopf')
    k(f'''v_lshrrev_b32 v1, 6, v0
    v_and_b32 v0, 63, v0
    v_readfirstlane_b32 s{sWAVE}, v1
    v_and_b32 v1, 15, v0
    v_lshrrev_b32 v2, 4, v0
    s_and_b32 s{sJ}, s2, 7
    s_lshr_b32 s{sR}, s2, 3
    s_lshl_b32 s{sS2}, s{sJ}, 5
    s_add_u32 s{sS2}, s{sS2}, s{sR}
    s_mov_b32 s{sBUD}, 100000
    s_and_b32 s{sW}, s{sWAVE}, 3''')
    k(f's_cmp_ge_u32 s{sWAVE}, 4')
    k('s_cbranch_scc0 L_C' if OPT['ufirst'] else 's_cbranch_scc1 L_H')
    n0 = len(k.out)
    k.label('L_C')
    gen_C(k)
    tag(k, 'region -')
    n1 = len(k.out)
    k.label('L_H')
    k.fresh()
    gen_H(k)
    n2 = k.out.index('; @cut')
    if OPT['ufirst']:
        k.out = k.out[:n0] + k.out[n1:n2] + k.out[n0:n1] + k.out[n2 + 1:]
    else:
        del k.out[n2]
    k.label('L_end')
    if OPT['stamp']:
        k.fresh()
        k('s_memrealtime s[94:95]')
        k.wait(0, 0)
        k('s_memrealtime s[96:97]')
        k(f's_add_u32 s40, s{pWS}, {64*MB}\ns_addc_u32 s41, s{pWS+1}, 0\ns_mov_b32 s42, {1*MB}\ns_mov_b32 s43, 0x20000')
        k(f's_lshl_b32 s48, s2, 3\ns_add_u32 s48, s48, s{sWAVE}\ns_lshl_b32 s48, s48, 6\nv_mov_b32 v3, 0')
        for i in range(14):
            k(f'v_mov_b32 v{4+i}, s{70+2*i}')
        k(f'v_mov_b32 v18, s{sBUD}\ns_getreg_b32 s49, hwreg(HW_REG_XCC_ID)\ns_getreg_b32 s50, hwreg(HW_REG_HW_ID)\ns_and_b32 s49, s49, 15\ns_lshl_b32 s50, s50, 4\ns_or_b32 s49, s49, s50\nv_mov_b32 v19, s49')
        for i in range(4):
            k(f'buffer_store_dwordx4 {Q(4+4*i)}, v3, s[40:43], s48 offen offset:{16*i}')
        if OPT.get('trace'):
            k(f's_lshl_b32 s48, s48, 3\ns_add_u32 s48, s48, {MB//2}\ns_mov_b32 s42, {2*MB}\nv_lshlrev_b32 v3, 2, v0')
            k('buffer_store_dword v200, v3, s[40:43], s48 offen\nbuffer_store_dword v201, v3, s[40:43], s48 offen offset:256')
    k.label('L_exit')
    k('s_endpgm')
    k.label('L_code_end')
    if OPT['touch']:
        k.out, ch = page_touch([f'{NAME}_kernel:'] + k.out)
        k.out = k.out[1:]
        print(ch, file=sys.stderr)
    ref = open(f'/code/{NAME}.s.ref').read().split('\n')
    hdr = [l for l in ref if l.startswith(';') and '@launch' not in l]
    out = '\n'.join(hdr) + '\n'
    if OPT.get('aslist'):
        out += f'; @launch kernel={NAME}_kernel grid=(256,1,1) block=(512,1,1) lds=163840\n'
    else:
        out += '; @launch grid=(256,1,1) block=(512,1,1) lds=163840\n'
    out += '.amdgcn_target "amdgcn-amd-amdhsa--gfx950"\n.text\n'
    out += f'.globl {NAME}_kernel\n.p2align 8\n.type {NAME}_kernel,@function\n{NAME}_kernel:\n' + k.text()
    out += '.section .rodata,"a"\n' + descriptor(NAME + '_kernel', k.maxreg['v'] + 1, 0, k.maxreg['s'] + 1)
    print('vgpr', k.maxreg['v'] + 1, 'sgpr', k.maxreg['s'] + 1, k.stats, file=sys.stderr)
    return out


if __name__ == '__main__':
    path = f'/code/{NAME}.s'
    for a in sys.argv[1:]:
        if '=' in a:
            n, v = a.split('=')
            OPT[n] = int(v) if v.lstrip('-').isdigit() else ([int(x) for x in v.split(',')] if ',' in v else v)
        else:
            path = a
    if OPT.get('wsh'):
        WS_H2 += OPT['wsh'] * MB
        WS_U += OPT['wsh'] * MB
        WS_SIZE = 64 * MB
    open(path, 'w').write(build())
```

```python
import struct, sys
from asm import *

NAME = 'adaLN_cond__spectral_gfnet__mixer_token_mlp__prompt'
S, D, F = 2048, 576, 4608
MB = 1 << 20
WS_MOD, WS_EPOCH, WS_MODG, WS_MODB, WS_FLAG, WS_CUE = 0, 0x8000, 0xE80000, 0x30000, 0x40000, 0x80000
WS_WP, WS_T1, WS_T2, WS_X1, WS_H2, WS_U, WS_XCH = 1 * MB, 4 * MB, 8 * MB, 12 * MB, 16 * MB, 20 * MB, 26 * MB
WS_SIZE = 48 * MB
WS_XCUE = 36 * MB
WS_XRDY = 37 * MB
XW, XM, XB = 2304, 9216, 27648
WS_FL2 = 15 * MB
OOB = 0x7ff00000
MF = 'v_mfma_f32_16x16x32_bf16'
sW, sJ, sR, sS2, sBUD = 3, 4, 5, 6, 7
pX, pWR, pWI, pW1, pB1, pW2, pB2, pC, pWM, pOUT, pWS = 8, 10, 12, 16, 18, 20, 22, 24, 26, 28, 32
sWAVE = 34
WS = 's[36:39]'
vTAG = 3
L_SLAB, L_WST, L_MG, L_TR, L_SILU = 0, 36864, 61440, 77824, 90112
L_X = 100352
L_ST = L_X + 9472
L_M = L_ST + 128
L_E = L_M + 16384
L_MI = 147456
L_ACT = 98304
L_Z, L_MOD, L_Y, L_H = 98304, 108544, 116736, 135808
XROW, YROW = 1184, 2320
AST2, NST2 = 18432, 18
L_ACT2, NSA2, NSW2 = 90112, 4, 5
L_X1, L_GB, L_S = 2 * 16384, 81920, 3 * 16384
NSW = 6
OPT = dict(tfirst=0, tsl=2, pfa=0, pfap=0, pfnt=0, wo=0, nsp=4, n4x=0, wlead=0, wmax=6, nsa2=4, xc=0, xlead=2, xclr=[2, 8], xrdy=[12, 17], pf9=0, rot1=0, xcue=0, xsl=2, wx=0, hx=1, hsl=0, hsl2=1, stamp=0, codepf=1, poll_sleep=1, outflag='sc1', xst=4, xst2=0, a1pre=2, a2pre=3,
           asap=0, jit=2, xk=0, pfm=0, lz=1, ec2=0, single=0, pa=12, lead=0, fa1='sc1', fa2='sc1', fw1='', fw2='', a0=0, twi=0, ufirst=1, defer=4, wla2=2, sp1=0, sp2=2, spw=0, sl3=2, cl3=0, cl4=1, xo=26, touch=1, mw=1, wla=3, rs1=[6, 9, 12, 15, 18, 21, 24, 27], rs2=[4, 6, 8, 10, 11, 12], rf=0, f21=48, f22=32, pw1=[16, 16],
           pf1=0, pf2=96, pf3=2, pf4=2, pf4at=[0, 14, 0], pf8=2, pf8at=[0, 8, 0], a2la=27, pf5=288, pf6=0, pf7=0, x1=0, cue_at=2, wat=2, prew=1, m1early=2, tlb=0, dly=0, hp=1, up=2, f64=1, mb=2, fs=4, mask=1, warm=1, c2=1, wfl=1, wearly=1, pfd=0, xdef=2, rf2=8, ne=4, neq=[10, 22, 32], xm=7, nl=10, tw1=1, tw3=1, sl2=1, na=1, nm=1)


def geometry():
    global L_ACT2, NSA2, NSW2, L_X1, L_GB, L_S
    if OPT['nsa2'] == 5:
        L_ACT2, NSA2, NSW2 = 65536, 5, 4
        L_X1, L_S, L_GB = 0, 16384, 65536 + 5 * AST2


def quads(rg, rs, D):
    D0 = 2 * (NST2 - D)
    early = [rg[i] + 4 * j for i, n in enumerate(rs) if n < NST2 - D for j in range(4)]
    late = [rg[i] + 8 * st + 4 for i, n in enumerate(rs) if n >= NST2 - D for st in range(2)]
    steps = [q for q in range(D0, 2 * NST2) if q >> 1 not in rs]
    park = dict(zip(steps, early))
    assert all(n < NST2 - D - 1 for i, n in enumerate(rs) if rg[i] <= max(park.values()) and n < NST2 - D)
    return park, early[len(steps):] + late


def f32(x):
    return '0x%08x' % struct.unpack('<I', struct.pack('<f', x))[0]


def P(r):
    return f'v[{r}:{r+1}]'


def Q(r):
    return f'v[{r}:{r+3}]'


def srd(k, dst, ptr, size):
    k(f's_mov_b32 s{dst}, s{ptr}\ns_mov_b32 s{dst+1}, s{ptr+1}\ns_mov_b32 s{dst+2}, {size}\ns_mov_b32 s{dst+3}, 0x20000')


def mark(k, i):
    if OPT['stamp']:
        k.raw(f'    s_memrealtime s[{70+2*i}:{71+2*i}]')


def tag(k, what):
    if OPT['touch']:
        k.raw('    ; @' + what)


def xmark(k, grp, i):
    if OPT.get('mk') == grp:
        mark(k, i)
    if OPT.get('mk') == grp + 'c':
        k.raw(f'    s_memtime s[{70+2*i}:{71+2*i}]')


def bar(k, vm=None, lg=None):
    if vm is not None or lg is not None:
        k.wait(vm, lg)
    k('s_barrier')


def cs_pair(k, ang, tc, ts, dsts):
    k(f'v_cos_f32 v{tc}, v{ang}\nv_sin_f32 v{ts}, v{ang}')
    m = {'c': f'v{tc}', 's': f'v{ts}', '-c': f'-v{tc}', '-s': f'-v{ts}'}
    for d, lo, hi in dsts:
        k(f'v_cvt_pk_bf16_f32 v{d}, {m[lo]}, {m[hi]}')


def dft_frag(k, base, step, re, im, tmp, inverse):
    for j in range(4):
        a, tc, ts = tmp + 3 * (j & 1), tmp + 3 * (j & 1) + 1, tmp + 3 * (j & 1) + 2
        if j == 0:
            a = base
        elif j == 3:
            k(f'v_add_f32 v{a}, v{tmp}, v{step}')
        else:
            k(f'v_fma_f32 v{a}, v{step}, {float(j)}, v{base}')
        if inverse:
            cs_pair(k, a, tc, ts, [(re + j, 'c', '-s'), (im + j, 's', 'c')])
        else:
            cs_pair(k, a, tc, ts, [(re + j, 'c', 's'), (im + j, '-s', 'c')])


def red32(k, regs, t):
    for mod in ('quad_perm:[1,0,3,2]', 'quad_perm:[2,3,0,1]', 'row_half_mirror', 'row_mirror'):
        for r in regs:
            k(f'v_add_f32_dpp v{r}, v{r}, v{r} {mod} row_mask:0xf bank_mask:0xf')
    for i, r in enumerate(regs):
        k(f'v_mov_b32 v{t+i}, v{r}')
    for i, r in enumerate(regs):
        k(f'v_permlane16_swap_b32 v{r}, v{t+i}')
    for i, r in enumerate(regs):
        k(f'v_add_f32 v{r}, v{r}, v{t+i}')


def poll(k, loads, check, sleep=None, masked=False, alt=None):
    L, E = k.lab('Lp'), k.lab('Le')
    sleep = OPT['poll_sleep'] if sleep is None else sleep
    if alt and alt[2] > 1:
        k(f's_mov_b32 s14, {alt[2] - 1}')
    k.label(L)
    for l in loads:
        k(l)
    k.wait(0)
    check()
    k(f's_cbranch_vccz {E}')
    k(f's_sub_u32 s{sBUD}, s{sBUD}, 1\ns_cbranch_scc1 {E}')
    if alt and alt[2] > 1:
        k(f's_cmp_gt_i32 s14, 0\ns_cselect_b32 s15, {alt[1]}, 0\ns_sub_u32 s14, s14, 1')
        for r in alt[0]:
            k(f's_add_u32 s{r}, s{r}, s15')
    masked = masked and OPT['mask']
    if masked:
        k('s_mov_b64 exec, vcc')
    if sleep:
        k(f's_sleep {sleep}')
    k(f's_branch {L}')
    k.label(E)
    if masked:
        k('s_mov_b64 exec, -1')
    k(f's_max_i32 s{sBUD}, s{sBUD}, 0')


def check_tags(k, regs):
    def f():
        k(f'v_cmp_ne_u32 vcc, v{vTAG}, v{regs[0]}')
        for r in regs[1:]:
            k(f'v_cmp_ne_u32 s[48:49], v{vTAG}, v{r}\ns_or_b64 vcc, vcc, s[48:49]')
    return f


def publish(k, sync, sidx, t, ncue=0, cue_add=0):
    k(f'''s_lshl_b32 s48, s{sidx}, {OPT['fs']}
    s_lshl_b32 s49, s{sW}, 16
    s_add_u32 s48, s48, s49
    s_add_u32 s48, s48, {WS_FL2 + sync*0x40000}
    v_mov_b32 v{t}, {OOB}''')
    for a in range(OPT['na']):
        k(f'v_writelane_b32 v{t}, s48, {a}\ns_add_u32 s48, s48, 16384')
    if ncue:
        k(f'''s_add_u32 s48, s2, {8*cue_add}
        s_lshl_b32 s48, s48, 7
        s_add_u32 s48, s48, {WS_CUE + sync*0x8000}
        s_lshl_b32 s49, s{sW}, 8
        s_add_u32 s49, s49, s{sR}
        s_cmp_lt_u32 s49, {ncue}
        s_cselect_b32 s48, s48, {OOB}
        v_writelane_b32 v{t}, s48, 8''')


def do_publish(k, t):
    k(f'buffer_store_dword v{vTAG}, v{t}, {WS}, 0 offen sc1')
    k.wait(0)


def wait_cue(k, sync, t, sleep=4):
    k(f's_lshl_b32 s50, s2, 7\ns_add_u32 s50, s50, {WS_CUE + sync*0x8000}\nv_mov_b32 v{t}, 0')
    poll(k, [f'buffer_load_dword v{t+1}, v{t}, {WS}, s50 offen sc1'], check_tags(k, [t + 1]), sleep=sleep)


def h3_idx(k, d):
    k(f'''s_bfe_u32 s{d}, s{sS2}, 0x10002
    s_lshl_b32 s{d}, s{d}, 7
    s_lshr_b32 s{d+1}, s{sS2}, 3
    s_lshl_b32 s{d+1}, s{d+1}, 2
    s_add_u32 s{d}, s{d}, s{d+1}
    s_and_b32 s{d+1}, s{sS2}, 3
    s_add_u32 s{d}, s{d}, s{d+1}''')


def g1_tile(k):
    k(f'''s_mul_i32 s52, s{sJ}, 27
    s_add_u32 s52, s52, s{sR}
    s_mul_i32 s51, s52, 171
    s_lshr_b32 s51, s51, 10
    s_mul_i32 s48, s51, 6
    s_sub_u32 s52, s52, s48''')


def g2_tile(k):
    k(f'''s_lshr_b32 s53, s{sJ}, 1
    s_and_b32 s54, s{sJ}, 1
    s_lshl_b32 s54, s54, 3
    s_lshr_b32 s48, s{sR}, 2
    s_add_u32 s54, s54, s48
    s_and_b32 s55, s{sR}, 3''')


def ring_adv(k, s, step, lo, hi):
    k(f's_add_u32 s{s}, s{s}, {step}\ns_cmp_eq_u32 s{s}, {hi}\ns_cselect_b32 s{s}, {lo}, s{s}')


def preload_w(vW0, vW, pairs):
    r = []
    for half in range(2):
        mine = [(sl, f0) for sl, f0 in pairs if sl // 3 == half]
        if mine:
            r += [f'v_add_u32 v{vW+nt}, {49152*half}, v{vW0+nt}' for nt in range(2)]
        for sl, f0 in mine:
            for st in range(2):
                for nt in range(2):
                    f = f0 + 8 * st + 4 * nt
                    o = (sl % 3) * 16384 + st * 8192
                    r += [f'ds_read_b64_tr_b16 {P(f)}, v{vW+nt} offset:{o}', f'ds_read_b64_tr_b16 {P(f+2)}, v{vW+nt} offset:{o+4096}']
    return r


def reg_stages(g):
    return OPT['rs1'] if g == 0 else OPT['rs2']


def kappa(n, NST):
    rs = reg_stages(0 if NST == 32 else 1)
    return rs.index(n) if n in rs else len(rs) + n - sum(x < n for x in rs)


def leaders(g):
    if not OPT['lead'] & (1 << g):
        return 0, (27, 32)[g]
    l = [6 * (c & 3) + c for c in range(6)] if g == 0 else [4 * d + (d & 3) for d in range(8)]
    return sum(1 << x for x in l), (27, 32)[g] - len(l)


def spec_range(g):
    if g == 0:
        c = {(kappa(n, 32) + OPT['xst'] * (j & OPT['xm']) + OPT['xo']) % 32 for n in range(5) for j in range(8)}
    else:
        c = {kappa(n, NST2) for n in range(OPT['nsp'])}
    return min(c), max(c) - min(c) + 1


def clear_loop(k, sidx, stride, total, addr, ones, la):
    for x in range((total + stride - 1) // stride):
        L = k.lab()
        k(f's_add_u32 s48, s{sidx}, {x*stride}\ns_cmp_ge_u32 s48, {total}\ns_cbranch_scc1 {L}')
        addr()
        k.cond += 1
        k(f'buffer_store_dwordx4 {Q(ones)}, v{la}, {WS}, s48 offen sc1')
        k.cond -= 1
        k.label(L)


def gemm_c(k, MT, NST, NSA, ASTAGE, vA, vA4, vW0, vW, fa, fw, acc, rg, rs, w_is_A, at_end=None, last_order=None, defer=0, send=None, single=False, slot0=0):
    NT = 2
    for nt in range(NT):
        k(f'v_add_u32 v{vW+nt}, 49152, v{vW0+nt}')

    def reads(n, st, wslot):
        w, a = [None] * 4, []
        if wslot is not None:
            for nt in range(NT):
                f = fw + 4 * (st * NT + nt)
                r, o = (vW0 if wslot < 3 else vW) + nt, (wslot % 3) * 16384 + st * 8192
                w[2 * nt] = f'ds_read_b64_tr_b16 {P(f)}, v{r} offset:{o}'
                w[2 * nt + 1] = f'ds_read_b64_tr_b16 {P(f+2)}, v{r} offset:{o+4096}'
        o = (n % NSA) * ASTAGE + st * ASTAGE // 2
        for mt in range(MT):
            f = fa + 4 * ((0 if single else st) * MT + mt)
            if vA4 is not None and mt == MT - 1:
                a.append(f'ds_read_b128 {Q(f)}, v{vA4} offset:{o}')
            else:
                a.append(f'ds_read_b128 {Q(f)}, v{vA} offset:{o+256*mt}')
        if single:
            return [x for mt in range(MT) for x in (w[mt] if mt < 4 else None, a[mt])]
        return [w[0], a[0], w[1], a[1], w[2], a[2], w[3]] + a[3:]

    def mfmas(p, wb):
        r = []
        order = [(0, 0), (1, 0), (2, 0), (0, 1), (1, 1), (2, 1)] + [(mt, nt) for mt in range(3, MT) for nt in range(NT)]
        if single:
            order = [(mt, nt) for mt in range(MT) for nt in range(NT)]
        for mt, nt in order:
            a = acc + 4 * (mt * NT + nt)
            x, y = fa + 4 * ((0 if single else p) * MT + mt), wb + 4 * (p * NT + nt)
            if w_is_A:
                x, y = y, x
            r.append(f'{MF} {Q(a)}, {Q(x)}, {Q(y)}, {Q(a)}')
        return r
    def step(mm, rd, barrier, merged=True):
        if OPT.get('noread'):
            rd = []
        if OPT.get('nomfma'):
            mm = ['s_nop 0'] * len(mm)
        if not mm and barrier:
            k('s_barrier')
        per = 1 if len(mm) >= len(rd) else 2
        rd = list(rd) if per == 1 else [x for x in rd if x]
        done = 0
        for i, mi in enumerate(mm):
            if merged and OPT['mw'] and i == 6:
                k.wait(lg=done)
            k(mi)
            if barrier and i == 0:
                k('s_barrier')
            for x in rd[:per]:
                if x:
                    k(x)
                    done += 1
            rd = rd[per:]
        for x in rd:
            if x:
                k(x)
    isnt = lambda mi, nt: ((int(mi.split('[')[1].split(':')[0]) - acc) // 4) % 2 == nt
    prev, m = None, 0
    D0 = 2 * (NST - defer)
    assert all(n < NST - defer - 1 for n in rs)
    for n in range(NST):
        cur, wslot = (rg[rs.index(n)], None) if n in rs else (fw, (m + slot0) % NSW)
        m += n not in rs
        for st in range(2):
            rd = reads(n, st, wslot)
            mm = [] if prev is None and st == 0 else mfmas(st ^ 1, prev if st == 0 else cur)
            q = 2 * n + st
            if q >= D0:
                f, g = fw + 8 * st, rg[0] + 4 * (q - D0)
                rd[0], rd[2] = rd[0].replace(P(f), P(g)), rd[2].replace(P(f + 2), P(g + 2))
                rd = [rd[4], rd[6], rd[1], rd[3], rd[5]] + rd[7:] + [rd[0], rd[2]]
            if q > D0:
                step([x for x in mm if isnt(x, 1)], rd, st == 0, False)
                continue
            if mm and (OPT['mw'] and (n, st) != (0, 1) or (st == 0 and prev == fw)):
                k.wait(lg=MT - 3)
            step(mm, rd, st == 0, not single or OPT['mw'] == 2)
        prev = cur
    if not defer:
        k.wait(lg=0)
        if at_end:
            at_end()
        mm = mfmas(1, prev)
        if last_order:
            mm.sort(key=last_order)
        for mi in mm:
            k(mi)
        return
    acts = lambda q: [x for x in reads(q // 2, q % 2, None) if x]
    mm = [x for x in mfmas(1, prev) if isnt(x, 1)]
    mm.sort(key=last_order)
    last = 2 * NST - 1
    step(mm, acts(D0), False, False)
    step([x for x in mfmas(1, rg[0] + 4 * (last - D0) - 8) if isnt(x, 0)], [], False, False)
    send()
    for q in range(D0, last):
        step([x for x in mfmas(q % 2, rg[0] + 4 * (q - D0) - 8 * (q % 2)) if isnt(x, 0)], acts(q + 1) if q + 1 < last else [], False, False)
    at_end()


def gemm2_c(k, vAo, vAx, vA4, vW0, vW, fa, fw, accf, rg, rs, D, send_bc, send_a, at_end, fill={}, drain=None, vhi=None):
    MT, NST = 9, NST2
    last = 2 * NST - 1
    D0 = 2 * (NST - D)
    park, _ = quads(rg, rs, D)
    assert 1 <= D <= NSA2
    for nt in range(2):
        k(f'v_add_u32 v{vW+nt}, 49152, v{vW0+nt}')

    def aread(q, mt):
        sl = (q >> 1) % NSA2
        base = (vAo, vA4, vAx)
        if sl >= 4:
            base, sl = vhi, sl - 4
        v, o = (base[0], 256 * mt) if mt < 4 else ((base[1], 0) if mt == 4 else (base[2], 256 * (mt - 5)))
        return f'ds_read_b128 {Q(fa+4*mt)}, v{v} offset:{sl*AST2 + (q & 1)*9216 + o}'

    def wreg(q, nt):
        n, st = q >> 1, q & 1
        if n in rs:
            return rg[rs.index(n)] + 8 * st + 4 * nt
        if q >= D0 and nt == 0:
            return park[q]
        return fw + 8 * st + 4 * nt
    ring = [n for n in range(NST) if n not in rs]

    def wreads(q):
        n, st = q >> 1, q & 1
        if n in rs:
            return []
        sl = ring.index(n) % NSW2
        r = []
        for nt in (1, 0):
            f, v, o = wreg(q, nt), (vW0 if sl < 3 else vW) + nt, (sl % 3) * 16384 + st * 8192
            r += [f'ds_read_b64_tr_b16 {P(f)}, v{v} offset:{o}', f'ds_read_b64_tr_b16 {P(f+2)}, v{v} offset:{o+4096}']
        return r

    def mf(q, mt, nt):
        a = accf(mt, nt)
        return f'{MF} {Q(a)}, {Q(fa+4*mt)}, {Q(wreg(q, nt))}, {Q(a)}'

    def emit(mm, after, group=6, barrier=False, extra=None):
        if OPT.get('noread'):
            after = [[x for x in a if not x.startswith('ds_')] for a in after]
        if barrier and not mm:
            k('s_barrier')
        for i, m in enumerate(mm):
            if i % group == 0:
                k.cover(mm[i:i + group])
            k('s_nop 0' if OPT.get('nomfma') else m)
            if barrier and i == 0:
                k('s_barrier')
            for x in after[i]:
                k(x)
            if extra:
                for x in extra[:2]:
                    k(x)
                del extra[:2]
        for a in after[len(mm):]:
            for x in a:
                k(x)
    for q in range(last + 1):
        w = wreads(q)
        p = q - 1
        if p < 0:
            emit([], [w + [aread(q, mt) for mt in range(MT)]], barrier=True)
        elif p < D0:
            mm = [mf(p, mt, nt) for mt in range(MT) for nt in (1, 0)]
            after = [[] for _ in mm]
            for i, x in enumerate(w):
                after[2 * i].append(x)
            for mt in range(MT):
                after[2 * mt + 1].append(aread(q, mt))
            after[10] += fill.get(q, [])
            if q == drain:
                k.wait(0)
            emit(mm, after, barrier=not q & 1)
        else:
            mm = [mf(p, mt, 1) for mt in range(MT)]
            after = [[aread(q, mt)] for mt in range(MT)]
            for i, x in enumerate(w):
                after[(0, 1, 5, 6)[i]].append(x)
            emit(mm, after, group=3, barrier=not q & 1)
    emit([mf(last, mt, 1) for mt in range(MT)], [[] for _ in range(MT)], group=3)
    hi, lo = [4, 5, 6, 7, 8], [0, 1, 2, 3]
    emit([mf(last, mt, 0) for mt in hi + lo], [[aread(D0, mt)] for mt in hi + lo], group=9)
    x = send_bc()
    for q in range(D0, last):
        emit([mf(q, mt, 0) for mt in hi], [[aread(q + 1, mt)] if q + 1 < last else [] for mt in hi], group=5, extra=x)
    for y in x:
        k(y)
    x = None
    for q in range(D0, last):
        emit([mf(q, mt, 0) for mt in lo], [[aread(q + 1, mt)] if q + 1 < last else [] for mt in lo], group=4, extra=x)
        if x is None:
            x = send_a()
    for y in x:
        k(y)
    at_end()


def warm_xch(k, t, dst, store=False):
    k(f'''s_mul_i32 s48, s{sW}, 3072
    s_mul_i32 s49, s2, 36864
    s_add_u32 s48, s48, s49
    s_add_u32 s48, s48, {WS_XCH}''')
    for i in range(2):
        k(f'''v_add_u32 v{t}, {64*i}, v0
        v_min_u32 v{t}, 71, v{t}
        v_mul_u32_u24 v{t+1}, 2731, v{t}
        v_lshrrev_b32 v{t+1}, 16, v{t+1}
        v_mul_u32_u24 v{t+1}, {12288 - 24*128}, v{t+1}
        v_lshl_add_u32 v{t}, v{t}, 7, v{t+1}''')
        k.raw(f'    buffer_load_dword v{dst+i}, v{t}, {WS}, s48 offen')


def load_tag(k, t):
    k(f'v_mov_b32 v{t}, {WS_EPOCH}\nbuffer_load_dword v{vTAG}, v{t}, {WS}, 0 offen sc1')


def finish_tag(k):
    k(f's_mov_b32 s48, 0x9e3779b1\nv_mul_lo_u32 v{vTAG}, v{vTAG}, s48\nv_add_u32 v{vTAG}, 0x7f4a7c15, v{vTAG}\nv_or_b32 v{vTAG}, 0x01010101, v{vTAG}')


def w2_lane(k, t, d):
    k(f'''v_lshrrev_b32 v{t}, 4, v0
    v_and_b32 v{t+1}, 15, v0
    v_lshlrev_b32 v{t}, 12, v{t}
    v_lshl_add_u32 v{t}, v{t+1}, 7, v{t}
    s_lshr_b32 s48, s{sJ}, 1
    s_mul_i32 s48, s48, {1152*4096}
    s_and_b32 s49, s{sJ}, 1
    s_lshl_b32 s49, s49, 11
    s_add_u32 s48, s48, s49
    v_add_u32 v{t}, s48, v{t}
    s_mov_b32 s{d}, 0''')


def pf_loop(k, which, sN, stride, end, t, sd, tmp=50):
    assert 0 <= end <= 320 and stride > 0
    L, E = k.lab(), k.lab()
    if which == 2:
        w2_lane(k, t, tmp)
    k.label(L)
    k(f's_cmp_ge_u32 s{sN}, {end}\ns_cbranch_scc1 {E}')
    if which == 1:
        nl = OPT['nl']
        mg = {9: 911, 10: 820}[nl]
        k(f'''s_mul_i32 s48, s{sN}, {mg}
        s_lshr_b32 s48, s48, 13
        s_mul_i32 s49, s48, {nl}
        s_sub_u32 s49, s{sN}, s49
        s_lshl_b32 s49, s49, 6
        v_add_u32 v{t}, s49, v0
        s_and_b32 s49, s{sJ}, {OPT['xm']}
        s_mul_i32 s49, s49, {OPT['xst']}
        s_add_u32 s48, s48, s49
        s_add_u32 s48, s48, {OPT['xo']}''')
        if OPT['rot1']:
            assert nl == 10
            k(f'''s_mul_i32 s49, s{sJ}, 1152
            s_lshr_b32 s15, s49, 8
            s_mul_i32 s15, s15, {OPT['rot1']}
            s_add_u32 s15, s15, s48
            s_and_b32 s48, s49, -256''')
        else:
            k(f'''s_and_b32 s48, s48, 31
            s_mul_i32 s48, s48, {8*9216}
            s_mul_i32 s49, s{sJ}, 1152
            s_and_b32 s49, s49, {-256 if nl == 10 else -128}
            s_add_u32 s48, s48, s49''')
        k(f'''v_mul_u32_u24 v{t+1}, {mg}, v{t}
        v_lshrrev_b32 v{t+1}, 13, v{t+1}
        v_mul_u32_u24 v{t+2}, {nl}, v{t+1}
        v_sub_u32 v{t+2}, v{t}, v{t+2}
        v_and_b32 v{t}, 7, v{t+1}
        v_lshrrev_b32 v{t+1}, 3, v{t+1}
        v_lshl_add_u32 v{t}, v{t}, 8, v{t+1}
        v_mul_u32_u24 v{t}, 9216, v{t}
        v_lshl_add_u32 v{t}, v{t+2}, 7, v{t}''')
        if OPT['rot1']:
            k(f'''v_lshrrev_b32 v{t+2}, 1, v{t+2}
            v_mul_u32_u24 v{t+2}, {OPT['rot1']}, v{t+2}
            v_add_u32 v{t+2}, s15, v{t+2}
            v_and_b32 v{t+2}, 31, v{t+2}
            v_mul_u32_u24 v{t+2}, {8*9216}, v{t+2}
            v_add_u32 v{t}, v{t}, v{t+2}''')
    else:
        k(f'''s_add_u32 s48, s{sN}, s{tmp}
        s_cmp_ge_u32 s48, 288
        s_cselect_b32 s49, 288, 0
        s_sub_u32 s48, s48, s49
        s_lshl_b32 s48, s48, 14''')
    k.cond += 1
    fl = 'nt' if OPT['pfnt'] & which else ''
    k(f'buffer_load_dword v{t+3}, v{t}, s[{sd}:{sd+3}], s48 offen {fl}')
    k.cond -= 1
    k(f's_add_u32 s{sN}, s{sN}, {stride}\ns_branch {L}')
    k.label(E)


def tag_check4(k, r, t, first):
    k(f'''v_perm_b32 v{t}, v{r+1}, v{r}, s56
    v_perm_b32 v{t+1}, v{r+3}, v{r+2}, s57
    v_or_b32 v{t}, v{t}, v{t+1}''')
    if first:
        k(f'v_cmp_ne_u32 vcc, v{vTAG}, v{t}')
    else:
        k(f'v_cmp_ne_u32 s[48:49], v{vTAG}, v{t}\ns_or_b64 vcc, vcc, s[48:49]')


def check_sent(k, regs, t):
    def f():
        r = list(regs)
        k(f'v_max3_u32 v{t}, v{r[0]}, v{r[1]}, v{r[2]}')
        for x in r[3:]:
            k(f'v_max_u32 v{t}, v{t}, v{x}')
        k(f'v_cmp_eq_u32 vcc, -1, v{t}')
    return f


def stats(k, xf, u):
    k(f'v_pk_add_f32 {P(u)}, {P(xf)}, {P(xf+2)}\nv_pk_mul_f32 {P(u+2)}, {P(xf)}, {P(xf)}')
    for j in range(1, 9):
        if j > 1:
            k(f'v_pk_add_f32 {P(u)}, {P(u)}, {P(xf+2*j)}')
        k(f'v_pk_fma_f32 {P(u+2)}, {P(xf+2*j)}, {P(xf+2*j)}, {P(u+2)}')
    k(f'v_add_f32 v{u}, v{u}, v{u+1}\nv_add_f32 v{u+1}, v{u+2}, v{u+3}')
    red32(k, [u, u + 1], u + 2)
    k(f'''v_mul_f32 v{u}, {f32(-1/576)}, v{u}
    v_mul_f32 v{u+1}, {f32(1/576)}, v{u+1}
    v_fma_f32 v{u+1}, -v{u}, v{u}, v{u+1}
    v_max_f32 v{u+1}, 0, v{u+1}
    v_add_f32 v{u+1}, {f32(1e-5)}, v{u+1}
    v_rsq_f32 v{u+2}, v{u+1}
    v_mul_f32 v{u}, v{u}, v{u+2}''')


def gen_C(k):
    V = Alloc(4, 256)
    bb = V(4, 2); b2 = V()
    base = V.p
    xr = V(9, 1); t = V(12); twi = V(6); la = V(); a576 = V(); F64 = V(32, 4)
    keep = V.p
    mv = V(18, 2); ma = V(8); tw = V(8); xf = V(24, 2); st = V(16, 4); hf = V(12, 4); mf = V(60, 4); acc = V(24, 4)
    if OPT['touch'] == 2:
        tag(k, 'align')
    k(f'''v_lshrrev_b32 v{t}, 5, v0
    v_and_b32 v{t+1}, 31, v0
    v_mul_u32_u24 v{t+2}, {256*1152}, v{t}
    v_lshl_add_u32 v{t+2}, v{t+1}, 2, v{t+2}
    s_mul_i32 s62, s{sW}, {512*1152}
    s_mul_i32 s48, s{sS2}, 1152
    s_add_u32 s62, s62, s48''')
    srd(k, 40, pX, S * D * 2)
    for j in range(9):
        k(f'buffer_load_dword v{xr+j}, v{t+2}, s[40:43], s62 offen offset:{128*j}')
    srd(k, 36, pWS, WS_SIZE)
    load_tag(k, t + 3)
    g1_tile(k)
    g2_tile(k)
    srd(k, 44, pB1, F * 2)
    srd(k, 64, pB2, S * 2)
    k(f'''s_lshl_b32 s48, s51, 8
    s_lshl_b32 s49, s{sW}, 6
    s_add_u32 s48, s48, s49
    v_lshl_add_u32 v{t+4}, v2, 3, s48
    buffer_load_dwordx2 {P(bb)}, v{t+4}, s[44:47], 0 offen
    buffer_load_dwordx2 {P(bb+2)}, v{t+4}, s[44:47], 0 offen offset:32
    s_lshl_b32 s48, s54, 8
    s_add_u32 s48, s48, s49
    s_lshr_b32 s49, s53, 1
    s_lshl_b32 s49, s49, 5
    s_add_u32 s48, s48, s49
    v_lshl_add_u32 v{t+5}, v1, 1, s48
    buffer_load_ushort v{b2}, v{t+5}, s[64:67], 0 offen''')
    if OPT['tlb']:
        k(f'''s_cmp_eq_u32 s{sW}, 1
        s_cselect_b32 s56, s{pW1}, s{pWS}
        s_cselect_b32 s57, s{pW1+1}, s{pWS+1}
        s_cmp_eq_u32 s{sW}, 2
        s_cselect_b32 s56, s{pW2}, s56
        s_cselect_b32 s57, s{pW2+1}, s57
        s_cmp_eq_u32 s{sW}, 3
        s_cselect_b32 s56, s{pOUT}, s56
        s_cselect_b32 s57, s{pOUT+1}, s57
        s_mov_b32 s58, {S*F*2}
        s_cselect_b32 s58, {S*D*2}, s58
        s_cmp_eq_u32 s{sW}, 0
        s_cselect_b32 s58, {WS_SIZE}, s58
        s_mov_b32 s59, 0x20000
        v_lshlrev_b32 v{t+6}, {OPT['tlb']}, v0
        v_add_u32 v{t+6}, {(1<<OPT['tlb'])-128}, v{t+6}
        buffer_load_dword v{tw}, v{t+6}, s[56:59], 0 offen''')
    if OPT['warm']:
        h3_idx(k, 56)
        publish(k, 2, 56, t + 6)
        k(f's_lshl_b32 s56, s52, 6\ns_add_u32 s56, s56, s51')
        publish(k, 3, 56, t + 7, ncue=5, cue_add=27)
        k(f'buffer_load_dword v{ma}, v{t+6}, {WS}, 0 offen\nbuffer_load_dword v{ma+1}, v{t+7}, {WS}, 0 offen')
    if OPT['touch'] == 1:
        tag(k, 'align')
    xw = hf
    k(f'''v_lshlrev_b32 v{la}, 4, v0
    v_mul_u32_u24 v{xw}, {XROW}, v{t}
    v_lshl_add_u32 v{xw}, v{t+1}, 2, v{xw}
    s_mul_i32 s48, s{sW}, {2*XROW}
    s_add_u32 s48, s48, {L_X}
    v_add_u32 v{xw}, s48, v{xw}''')
    m = acc
    k(f'''v_lshrrev_b32 v{m}, 1, v1
    v_and_b32 v{m+1}, 1, v1
    v_and_b32 v{m+2}, 1, v{m}
    v_cvt_f32_u32 v{m}, v{m}
    v_cvt_f32_u32 v{m+1}, v{m+1}
    v_mul_f32 v{m}, {f32(0.125)}, v{m}
    v_mul_f32 v{m+1}, {f32(0.25)}, v{m+1}
    v_mul_u32_u24 v{m+2}, 0x8000, v{m+2}
    v_lshl_or_b32 v{m+2}, v{m+2}, 16, v{m+2}
    s_lshl_b32 s48, s{sW}, 10
    s_add_u32 s48, s48, {L_M}
    v_add_u32 v{m+3}, s48, v{la}
    s_mov_b32 s63, {f32(1/9)}''')
    for i in range(4):
        o = m + 12 + 4 * (i & 1)
        k(f'''s_add_u32 s48, s{sW}, {4*i}
        s_mul_i32 s49, s48, 43
        s_lshr_b32 s49, s49, 7
        s_mul_i32 s50, s49, 3
        s_sub_u32 s50, s48, s50
        s_lshl_b32 s50, s50, 2
        v_add_u32 v{m+4}, s50, v2
        v_cmp_gt_u32 vcc, 9, v{m+4}
        v_mul_u32_u24 v{m+4}, s49, v{m+4}
        v_cvt_f32_u32 v{m+4}, v{m+4}
        v_fma_f32 v{m+4}, v{m+4}, s63, v{m+1}
        v_add_f32 v{m+5}, v{m+4}, v{m}
        v_fma_f32 v{m+6}, v{m}, 2.0, v{m+4}
        v_add_f32 v{m+7}, v{m+6}, v{m}
        v_cos_f32 v{m+4}, v{m+4}
        v_cos_f32 v{m+5}, v{m+5}
        v_cos_f32 v{m+6}, v{m+6}
        v_cos_f32 v{m+7}, v{m+7}
        v_cvt_pk_bf16_f32 v{o}, v{m+4}, v{m+5}
        v_cvt_pk_bf16_f32 v{o+1}, v{m+6}, v{m+7}
        v_cndmask_b32 v{o}, 0, v{o}, vcc
        v_cndmask_b32 v{o+1}, 0, v{o+1}, vcc
        v_xor_b32 v{o+2}, v{m+2}, v{o}
        v_xor_b32 v{o+3}, v{m+2}, v{o+1}
        ds_write_b128 v{m+3}, {Q(o)} offset:{4096*i}''')
    def gen_twi():
        k(f'''v_lshrrev_b32 v{t+4}, 1, v2
        v_cvt_f32_u32 v{t+4}, v{t+4}
        v_add_f32 v{t+5}, 1.0, v{t+4}
        v_mul_f32 v{t+5}, {f32(1/(S*D))}, v{t+5}''')
        for tt in range(3):
            if tt:
                k(f'v_add_f32 v{t+4}, 2.0, v{t+4}')
            sc = f'v{t+5}' if tt == 0 else f32(2 / (S * D))
            k(f'''v_mul_f32 v{t+6}, v{t+4}, v{a576}
            v_cos_f32 v{t+7}, v{t+6}
            v_sin_f32 v{t+8}, v{t+6}
            v_mul_f32 v{twi+2*tt}, {sc}, v{t+7}
            v_mul_f32 v{twi+2*tt+1}, {sc}, v{t+8}''')

    def gen_f64():
        k(f'''s_lshl_b32 s48, s{sW}, 4
        v_add_u32 v{t+6}, s48, v1
        v_cvt_f32_u32 v{t+6}, v{t+6}
        v_mul_f32 v{t+6}, {f32(1/64)}, v{t+6}
        v_cvt_f32_u32 v{t+8}, v2
        v_mul_f32 v{t+8}, 4.0, v{t+8}''')
        for T in range(4):
            if T:
                k(f'v_add_f32 v{t+8}, {f32(16.0)}, v{t+8}')
            k(f'v_mul_f32 v{t+7}, v{t+8}, v{t+6}')
            dft_frag(k, t + 7, t + 6, F64 + 8 * T, F64 + 8 * T + 4, t, False)
        k(f'v_mul_f32 v{a576}, {f32(1/9)}, v{t+6}')
        for lb in range(1, 5):
            k(f'''v_mul_f32 v{t+4}, {f32(float(lb))}, v{a576}
            v_cos_f32 v{tw+2*lb-2}, v{t+4}
            v_sin_f32 v{tw+2*lb-1}, v{t+4}''')
    if OPT['f64'] == 0:
        gen_f64()
    if OPT['a0']:
        L1 = k.lab()
        k(f's_cmp_lt_u32 s2, 202\ns_cbranch_scc1 {L1}')
        vm = list(k.vm)
        if OPT['f64'] == 1:
            gen_f64()
        k.vm = vm
        k('s_barrier')
        k.label(L1)
    ta = st
    k(f'''v_lshrrev_b32 v{t+4}, 5, v0
    v_lshlrev_b32 v{t+4}, 2, v{t+4}
    s_lshl_b32 s48, s{sW}, 3
    s_add_u32 s48, s48, {L_ST}
    v_add_u32 v{t+4}, s48, v{t+4}
    v_bfe_u32 v{t}, v0, 2, 2
    v_mul_u32_u24 v{t}, {XROW}, v{t}
    v_and_b32 v{t+1}, 3, v0
    v_lshl_add_u32 v{t}, v{t+1}, 3, v{t}
    s_lshl_b32 s48, s{sW}, 5
    s_add_u32 s48, s48, {L_X}
    v_add_u32 v{t+1}, s48, v{t}
    v_lshl_add_u32 v{t}, v2, 7, v{t+1}
    v_mov_b32 v{t+2}, {L_ST}
    v_add_u32 v{t+3}, {L_M}, v{la}''')
    for j in range(9):
        k(f'ds_write_b32 v{xw}, v{xr+j} offset:{128*j}')
        k(f'v_lshlrev_b32 v{xf+2*j}, 16, v{xr+j}\nv_and_b32 v{xf+2*j+1}, 0xffff0000, v{xr+j}')
    stats(k, xf, t + 6)
    k(f'ds_write_b32 v{t+4}, v{t+8}\nds_write_b32 v{t+4}, v{t+6} offset:32')
    mark(k, 1)
    if OPT['touch'] == 3:
        tag(k, 'align')
    bar(k, lg=0)
    for i in range(4):
        k(f'ds_read_b128 {Q(st+4*i)}, v{t+2} offset:{16*i}')
    for tt in range(3):
        a = t if tt < 2 else t + 1
        k(f'ds_read_b64_tr_b16 {P(hf+4*tt)}, v{a} offset:{512*tt}')
        k(f'ds_read_b64_tr_b16 {P(hf+4*tt+2)}, v{a} offset:{512*tt+4*XROW}')
    for fi in range(15):
        k(f'ds_read_b128 {Q(mf+4*fi)}, v{t+3} offset:{1024*fi}')
    if OPT['f64'] == 1:
        L1 = k.lab()
        if OPT['a0']:
            k(f's_cmp_ge_u32 s2, 202\ns_cbranch_scc1 {L1}')
        lg, vm = list(k.lg), list(k.vm)
        gen_f64()
        k.lg, k.vm = lg, vm
        k.label(L1)
    for tt in range(3):
        for p in range(4):
            x = xf + 8 * tt + 2 * p
            k(f'''v_lshlrev_b32 v{x}, 16, v{hf+4*tt+p}
            v_and_b32 v{x+1}, 0xffff0000, v{hf+4*tt+p}
            v_pk_fma_f32 {P(x)}, {P(x)}, {P(st+2*p)}, {P(st+8+2*p)}''')
    def gen_m1i(m):
        k(f'''v_and_b32 v{m}, 7, v1
        v_cvt_f32_u32 v{m}, v{m}
        v_mul_f32 v{m}, {f32(0.125)}, v{m}
        v_and_b32 v{m+1}, 1, v2
        v_cvt_f32_u32 v{m+1}, v{m+1}
        v_mul_f32 v{m+1}, 4.0, v{m+1}
        v_mul_f32 v{m+1}, v{m+1}, v{m}
        v_lshrrev_b32 v{m+2}, 3, v1
        v_lshrrev_b32 v{m+3}, 1, v2
        s_lshl_b32 s48, s{sW}, 10
        s_add_u32 s48, s48, {L_MI}
        v_add_u32 v{m+4}, s48, v{la}''')
        for i in range(4):
            o = m + 12 + 4 * (i & 1)
            k(f'''s_add_u32 s48, s{sW}, {4*i}
            s_mul_i32 s49, s48, 43
            s_lshr_b32 s49, s49, 7
            s_mul_i32 s50, s49, 3
            s_sub_u32 s50, s48, s50
            s_lshl_b32 s50, s50, 1
            s_lshl_b32 s49, s49, 1
            v_add_u32 v{m+5}, s49, v{m+2}
            v_add_u32 v{m+6}, s50, v{m+3}
            v_cmp_gt_u32 vcc, 9, v{m+5}
            v_cmp_gt_u32 s[48:49], 5, v{m+6}
            v_mul_u32_u24 v{m+5}, v{m+5}, v{m+6}
            v_cvt_f32_u32 v{m+5}, v{m+5}
            s_and_b64 vcc, vcc, s[48:49]
            v_fma_f32 v{m+5}, v{m+5}, s63, v{m+1}''')
            for j in range(4):
                if j:
                    k(f'v_add_f32 v{m+5}, v{m+5}, v{m}')
                cs_pair(k, m + 5, m + 6 + 2 * (j & 1), m + 7 + 2 * (j & 1), [(o + j, 'c', '-s')])
            for j in range(4):
                k(f'v_cndmask_b32 v{o+j}, 0, v{o+j}, vcc')
            k(f'ds_write_b128 v{m+4}, {Q(o)} offset:{4096*i}')
    if OPT['m1early'] == 1:
        gen_m1i(acc)
    if OPT['m1early'] == 2:
        L1 = k.lab()
        k.wait(lg=0)
        k(f's_cmp_ge_u32 s2, 202\ns_cbranch_scc1 {L1}')
        gen_m1i(acc)
        k.label(L1)
    gen_twi()
    finish_tag(k)
    k(f'''s_lshl_b32 s48, s{sW}, 6
    s_add_u32 s48, s48, {L_E}
    v_mul_u32_u24 v{t}, 576, v2
    v_lshl_add_u32 v{t}, v1, 2, v{t}
    v_add_u32 v{t}, s48, v{t}
    v_mul_u32_u24 v{t+1}, 288, v1
    v_lshl_add_u32 v{t+1}, v2, 4, v{t+1}
    v_add_u32 v{t+1}, {L_E}, v{t+1}
    v_bfe_u32 v{t+9}, v1, 1, 2
    v_xor_b32 v{t+9}, v{t+9}, v2
    v_lshl_add_u32 v{t+9}, v1, 2, v{t+9}
    s_mul_i32 s48, s{sW}, 3072
    s_add_u32 s48, s48, {L_TR}
    v_lshl_add_u32 v{t+9}, v{t+9}, 4, s48
    v_add_u32 v{t+10}, s48, v{la}
    v_lshrrev_b32 v{t+2}, 3, v0
    v_xor_b32 v{t+2}, v{t+2}, v0
    v_and_b32 v{t+2}, 3, v{t+2}
    v_lshlrev_b32 v{t+2}, 4, v{t+2}
    v_lshrrev_b32 v{t+3}, 2, v0
    v_lshl_add_u32 v{t+2}, v{t+3}, 16, v{t+2}
    s_lshl_b32 s48, s{sW}, 14
    s_lshl_b32 s49, s{sS2}, 6
    s_add_u32 s48, s48, s49
    s_add_u32 s48, s48, {WS_T1}
    v_add_u32 v{t+2}, s48, v{t+2}
    v_add_u32 v{t+3}, {1<<20}, v{t+2}
    v_add_u32 v{t+4}, {2<<20}, v{t+2}
    v_cmp_gt_u32 vcc, 32, v0
    v_mov_b32 v{t+5}, {OOB}
    v_cndmask_b32 v{t+4}, v{t+5}, v{t+4}, vcc
    s_lshl_b32 s58, s{sW}, 12
    s_add_u32 s58, s58, {L_MG}
    v_lshl_add_u32 v{ma+3}, v1, 2, s58
    v_lshl_add_u32 v{ma}, v2, 6, v{ma+3}
    v_add_u32 v{ma+3}, 512, v{ma+3}
    v_add_u32 v{ma+1}, 1152, v{ma}
    v_add_u32 v{ma+2}, 2304, v{ma}
    v_add_u32 v{ma+4}, 1152, v{ma+3}
    v_add_u32 v{ma+5}, 2304, v{ma+3}
    v_cmp_gt_u32 vcc, 24, v0
    v_cndmask_b32 v{ma+6}, v{t+5}, v{la}, vcc
    s_mul_i32 s59, s{sJ}, 13824
    s_mul_i32 s48, s{sW}, 3456
    s_add_u32 s59, s59, s48
    s_add_u32 s59, s59, {WS_MODG}
    v_min_u32 v{ma+7}, {31*16}, v{la}
    s_mul_i32 s48, s{sW}, 2560
    s_mul_i32 s60, s{sS2}, 10240
    s_add_u32 s60, s60, s48
    s_add_u32 s60, s60, {WS_T2}
    v_mov_b64 {P(st+12)}, -1
    v_mov_b64 {P(st+14)}, -1
    v_and_b32 v{t+6}, 3, v1
    v_lshlrev_b32 v{t+6}, 3, v{t+6}
    v_bfe_u32 v{t+6}, v{vTAG}, v{t+6}, 8
    s_mov_b32 m0, s58''')
    tag(k, 'touch c1')
    tag(k, 'region c1')
    k.wait(0, 0)
    mark(k, 2)

    def chk():
        for p in range(3):
            for tt in range(3):
                o = 64 * tt if tt < 2 else 0
                k(f'ds_read2_b32 {P(mv+6*p+2*tt)}, v{ma+p+(3 if tt==2 else 0)} offset0:{o} offset1:{o+144}')
        for i in range(0, 18, 2):
            k(f'v_xor_b32 v{mv+i}, v{mv+i}, v{t+6}\nv_xor_b32 v{mv+i+1}, v{mv+i+1}, v{t+6}')
            k(f'v_or3_b32 v{t+8}, v{mv+i}, v{mv+i+1}, v{t+8}' if i else f'v_or_b32 v{t+8}, v{mv}, v{mv+1}')
        k(f'v_and_b32 v{t+8}, 0xff, v{t+8}\nv_cmp_ne_u32 vcc, 0, v{t+8}')

    def clr2():
        for i in range(3):
            k(f'buffer_store_dwordx4 {Q(st+12)}, v{la if i<2 else ma+7}, {WS}, s60 offen offset:{1024*i} sc1')
    if OPT['c2'] == 0:
        clr2()
        k.wait(0)
    if OPT['dly']:
        k(f's_sleep {OPT["dly"]}')
    poll(k, [f'buffer_load_dwordx4 v{la if i<3 else ma+6}, {WS}, s59 offen offset:{1024*i} sc1 lds' for i in range(4)], chk, alt=([59], 0x20000, OPT['nm']))
    mark(k, 3)
    if OPT['c2'] == 1:
        clr2()
    for tt in range(3):
        a = mv + 2 * tt
        k(f'v_pk_add_f32 {P(a)}, {P(a)}, {P(a+6)}')
    for tt in range(3):
        a = mv + 2 * tt
        k(f'v_pk_add_f32 {P(a)}, {P(a)}, {P(a+12)}')
    for tt in range(3):
        a = mv + 2 * tt
        k(f'''v_cvt_pk_bf16_f32 v{a+6}, v{a}, v{a+1}
        v_and_b32 v{a+1}, 0xffff0000, v{a+6}
        v_add_f32 v{a+1}, 1.0, v{a+1}
        v_lshlrev_b32 v{a}, 16, v{a+6}
        v_cvt_pk_bf16_f32 v{a+1}, 0, v{a+1}''')
        for p in range(4):
            x = xf + 8 * tt + 2 * p
            k(f'v_pk_fma_f32 {P(x)}, {P(x)}, {P(a)}, {P(a)} op_sel:[0,1,0] op_sel_hi:[1,1,0]')
        for p in range(4):
            x = xf + 8 * tt + 2 * p
            k(f'v_cvt_pk_bf16_f32 v{hf+4*tt+p}, v{x}, v{x+1}')

    def twid(lb):
        r = []
        for jj in range(2):
            z = acc + 4 * lb + 2 * jj
            o = xf + 4 * (jj + 2 * (lb & 1))
            c = tw + 2 * lb - 2
            if lb == 0:
                r.append(f'v_cvt_pk_bf16_f32 v{o+2}, v{z}, v{z+1}')
            elif OPT['tw1'] & 1:
                r += [f'v_mul_f32 v{o}, v{z}, v{c}', f'v_mul_f32 v{o+1}, v{z+1}, v{c}',
                      f'v_fmac_f32 v{o}, v{z+1}, v{c+1}', f'v_fma_f32 v{o+1}, -v{z}, v{c+1}, v{o+1}',
                      f'v_cvt_pk_bf16_f32 v{o+2}, v{o}, v{o+1}']
            else:
                r += [f'v_pk_mul_f32 {P(o)}, {P(z)}, {P(c)} op_sel_hi:[1,0]',
                      f'v_pk_fma_f32 {P(o)}, {P(z)}, {P(c)}, {P(o)} op_sel:[1,1,0] op_sel_hi:[0,1,1] neg_hi:[1,0,0]',
                      f'v_cvt_pk_bf16_f32 v{o+2}, v{o}, v{o+1}']
            r.append(f'ds_write_b32 v{t}, v{o+2} offset:{(8*lb+jj)*288}')
        return r
    order = [1, 2, 3, 4, 0]
    pend = []
    for x, lb in enumerate(order):
        if x >= 2:
            pend += twid(order[x - 2])
        for tt in range(3):
            a = acc + 4 * lb
            k(f'{MF} {Q(a)}, {Q(mf+4*(3*lb+tt))}, {Q(hf+4*tt)}, ' + ('0' if tt == 0 else Q(a)))
            for _ in range(0 if OPT['tw1'] & 2 else (2 if OPT['tw1'] & 1 else (4 if tt < 2 else 0))):
                if pend:
                    k(pend.pop(0))
    for x in pend + twid(order[3]) + twid(order[4]):
        k(x)
    k.wait(lg=0)
    xmark(k, 'p1', 10)
    k('s_barrier')
    xmark(k, 'p1', 11)
    ef = mf
    for tt in range(3):
        for T in range(4):
            k(f'ds_read_b128 {Q(ef+4*(4*tt+T))}, v{t+1} offset:{16*288*tt+64*T}')
    pend = []
    for tt in range(3):
        for T in range(4):
            for ri in range(2):
                a = acc + 8 * tt + 4 * ri
                k(f'{MF} {Q(a)}, {Q(F64+8*T+4*ri)}, {Q(ef+4*(4*tt+T))}, ' + ('0' if T == 0 else Q(a)))
                if T >= 2 and pend:
                    k(pend.pop(0))
        for x in pend:
            k(x)
        o = hf + 4 * tt
        pend = [f'v_cvt_pk_bf16_f32 v{o+j}, v{acc+8*tt+j}, v{acc+8*tt+4+j}' for j in range(4)]
        st_prev = f'buffer_store_dwordx4 {Q(st+4*(tt-1))}, v{t+1+tt}, {WS}, 0 offen sc1'
        pend.append(f'ds_write_b128 v{t+9}, {Q(o)} offset:{1024*tt}\nds_read_b128 {Q(st+4*tt)}, v{t+10} offset:{1024*tt}')
        if tt:
            pend.append(st_prev)
    for x in pend:
        k(x)
    k(f'buffer_store_dwordx4 {Q(st+8)}, v{t+4}, {WS}, 0 offen sc1')
    if OPT['c2'] == 2:
        clr2()
    mark(k, 4)
    V.p = keep
    za = V(8); zf = V(48, 4); mf = V(60, 4); acc = V(24, 4); ef = V(12, 4); ad = V(8); zl = V(4); xf = V(18, 2)
    yf = zf + 20
    assert za + 8 <= st
    k(f'''v_lshrrev_b32 v{t}, 2, v1
    v_and_b32 v{t}, 2, v{t}
    v_xor_b32 v{t}, v{t}, v2
    v_lshlrev_b32 v{t}, 4, v{t}
    v_lshl_add_u32 v{t}, v1, 8, v{t}
    v_add_u32 v{t}, {L_Z}, v{t}
    v_and_b32 v{t+1}, 7, v1
    v_lshlrev_b32 v{t+1}, 8, v{t+1}
    v_lshl_add_u32 v{t+1}, v2, 4, v{t+1}
    v_add_u32 v{t+1}, {L_Z}, v{t+1}
    v_and_b32 v{t+5}, 3, v1''')
    for T in range(4):
        k(f'''v_xor_b32 v{t+6}, {T}, v{t+5}
        v_lshl_add_u32 v{za+T}, v{t+6}, 6, v{t}
        v_lshl_add_u32 v{za+4+T}, v{t+6}, 6, v{t+1}''')
    k(f'''v_and_b32 v{t}, 7, v1
    v_mul_u32_u24 v{t}, {YROW}, v{t}
    v_lshl_add_u32 v{t}, v2, 4, v{t}
    s_lshl_b32 s48, s{sW}, 6
    s_add_u32 s48, s48, {L_Y}
    v_add_u32 v{t}, s48, v{t}
    v_lshrrev_b32 v{t+1}, 3, v1
    v_lshl_add_u32 v{ad+1}, v{t+1}, 8, v{t}
    v_cmp_gt_u32 vcc, 8, v1
    v_mov_b32 v{t+5}, {L_Y+8*YROW-2048}
    v_cndmask_b32 v{ad}, v{t+5}, v{t}, vcc
    v_lshrrev_b32 v{t+5}, 5, v0
    s_lshl_b32 s48, s{sW}, 1
    v_add_u32 v{t+5}, s48, v{t+5}
    v_and_b32 v{t+6}, 31, v0
    v_mul_u32_u24 v{t}, {YROW}, v{t+5}
    v_lshl_add_u32 v{t}, v{t+6}, 3, v{t}
    v_add_u32 v{ad+2}, {L_Y}, v{t}
    v_mul_u32_u24 v{t}, {XROW}, v{t+5}
    v_lshl_add_u32 v{t}, v{t+6}, 2, v{t}
    v_add_u32 v{ad+3}, {L_H}, v{t}
    v_mul_u32_u24 v{t}, 1152, v{t+5}
    v_lshl_add_u32 v{t}, v{t+6}, 2, v{t}
    v_add_u32 v{ad+7}, {L_Z}, v{t}
    v_lshlrev_b32 v{t}, 3, v{t+6}
    v_add_u32 v{ad+4}, {L_MOD}, v{t}
    v_add_u32 v{a576}, {L_MOD+256}, v{t}
    v_bfe_u32 v{t}, v0, 2, 2
    v_mul_u32_u24 v{t}, {XROW}, v{t}
    v_and_b32 v{t+1}, 3, v0
    v_lshl_add_u32 v{t}, v{t+1}, 3, v{t}
    v_lshl_add_u32 v{t}, v2, 5, v{t}
    s_lshl_b32 s48, s{sW}, 7
    s_add_u32 s48, s48, {L_H}
    v_add_u32 v{ad+5}, s48, v{t}
    v_add_u32 v{ad+6}, {L_MI}, v{la}
    v_min_u32 v{zl}, {31*16}, v{la}
    s_mul_i32 s48, s{sW}, 2560
    s_mul_i32 s66, s{sS2}, 10240
    s_add_u32 s66, s66, s48
    s_add_u32 s66, s66, {WS_T2}
    s_add_u32 s48, s48, {L_Z}
    v_add_u32 v{zl+1}, s48, v{la}
    v_add_u32 v{zl+2}, s48, v{zl}
    s_lshr_b32 s48, s{sJ}, 1
    s_lshl_b32 s48, s48, 12
    s_mul_i32 s49, s{sW}, 640
    s_add_u32 s48, s48, s49
    s_add_u32 s48, s48, {WS_FLAG + 0x8000}
    v_min_u32 v{zl+3}, {39*16}, v{la}
    v_add_u32 v{zl+3}, s48, v{zl+3}''')
    k.wait(0)
    if OPT.get('mk') != 'u':
        mark(k, 1)
    bar(k, 0)
    if OPT['wx'] == 1:
        warm_xch(k, t, ef)
    if not OPT['m1early']:
        gen_m1i(acc)
    if OPT['m1early'] == 2:
        L1 = k.lab()
        k(f's_cmp_lt_u32 s2, 202\ns_cbranch_scc1 {L1}')
        gen_m1i(acc)
        k.label(L1)
    k(f's_lshl_b32 s58, s{sW}, 10')
    k(f'''v_add_u32 v{t}, s58, v{la}
    v_add_u32 v{t+1}, 4096, v{t}
    v_min_u32 v{t+1}, {431*16}, v{t+1}
    v_min_u32 v{t+2}, {143*16}, v{t}
    v_add_u32 v{t+2}, {432*16}, v{t+2}
    s_mov_b32 s56, 0x0c0c0400
    s_mov_b32 s57, 0x04000c0c
    s_mov_b32 s58, {WS_MODB}
    s_mov_b32 s59, {WS_MODB+9216}
    s_mov_b32 s60, {WS_MODB+18432}''')
    mb = zf

    def modb_loads(rounds):
        return [f'buffer_load_dwordx4 {Q(mb+12*x+4*p)}, v{t+rd}, {WS}, s{58+p} offen sc1' for x, rd in enumerate(rounds) for p in range(2)]

    def modb_chk(n):
        def f():
            for x in range(2 * n):
                tag_check4(k, mb + 12 * (x >> 1) + 4 * (x & 1), t + 4, x == 0)
        return f

    def modb_sum(x, one):
        a = mb + 12 * x
        for j in range(8):
            k(f'v_and_b32 v{a+j}, 0xffffff00, v{a+j}')
        for p in (1,):
            k(f'v_pk_add_f32 {P(a)}, {P(a)}, {P(a+4*p)}\nv_pk_add_f32 {P(a+2)}, {P(a+2)}, {P(a+4*p+2)}')
        for j in range(4):
            k(f'v_cvt_pk_bf16_f32 v{a+j}, 0, v{a+j}')
        if one is not None:
            for j in range(4):
                k(f'v_add_f32 v{a+j}, v{a+j}, v{one}')
            for j in range(4):
                k(f'v_cvt_pk_bf16_f32 v{a+j}, 0, v{a+j}')

    def clear_h2():
        c0, n = spec_range(0)
        k(f'v_mov_b64 {P(ef)}, -1\nv_mov_b64 {P(ef+2)}, -1\ns_lshl_b32 s61, s2, 2\ns_add_u32 s61, s61, s{sW}')
        clear_loop(k, 61, 640, 72 * n, lambda: k(f's_lshl_b32 s48, s48, 10\ns_add_u32 s48, s48, {WS_H2 + c0*73728}'), ef, la)
    L1 = k.lab()
    k.wait(lg=0)
    k(f's_cmp_ge_u32 s{sR}, 20\ns_cbranch_scc1 {L1}')
    if OPT['sp1'] and OPT['cl3'] == 0:
        clear_h2()
        k.wait(0)
    k('s_barrier')
    if OPT['sp1'] and OPT['cl3'] == 1:
        clear_h2()
    k.label(L1)
    for l in modb_loads([0, 1]):
        k(l)
    L1 = k.lab()
    k(f's_cmp_ge_u32 s{sR}, 20\ns_cbranch_scc1 {L1}\ns_barrier')
    if OPT['sp1'] and OPT['cl3'] == 1:
        vm = k.vm
        bar(k, 4)
        k.vm = vm
    k.label(L1)
    L2 = k.lab()
    k.wait(0)
    modb_chk(2)()
    k(f's_cbranch_vccz {L2}')
    poll(k, modb_loads([0, 1]), modb_chk(2))
    k.label(L2)
    k(f'v_cmp_le_u32 vcc, {288*16}, v{t+1}\nv_cndmask_b32 v{t+4}, 0, 1.0, vcc')
    modb_sum(0, None)
    modb_sum(1, t + 4)
    k(f'''v_add_u32 v{t+4}, {L_MOD}, v{t}
    v_add_u32 v{t+5}, {L_MOD}, v{t+1}
    ds_write_b128 v{t+4}, {Q(mb)}
    ds_write_b128 v{t+5}, {Q(mb+12)}''')
    L2 = k.lab()
    k(f's_cmp_lg_u32 s2, 255\ns_cbranch_scc1 {L2}')
    k(f's_mov_b32 s50, {WS_MOD+2*2304}')
    k(f'buffer_store_dwordx4 {Q(mb)}, v{t}, {WS}, s50 offen sc1\nbuffer_store_dwordx4 {Q(mb+12)}, v{t+1}, {WS}, s50 offen sc1')
    mb += 24
    poll(k, modb_loads([2]), modb_chk(1))
    modb_sum(0, None)
    k(f'buffer_store_dwordx4 {Q(mb)}, v{t+2}, {WS}, s50 offen sc1')
    k.label(L2)
    for j in range(9):
        k(f'v_lshlrev_b32 v{xf+2*j}, 16, v{xr+j}\nv_and_b32 v{xf+2*j+1}, 0xffff0000, v{xr+j}')
    LN, LJ = k.lab(), k.lab()
    k(f's_cmp_ge_u32 s{sR}, 20\ns_cbranch_scc1 {LN}')
    for fi in range(15):
        k(f'ds_read_b128 {Q(mf+4*fi)}, v{ad+6} offset:{1024*fi}')
    bar(k, lg=0)
    k(f's_branch {LJ}')
    k.label(LN)
    bar(k, lg=0)
    for fi in range(15):
        k(f'ds_read_b128 {Q(mf+4*fi)}, v{ad+6} offset:{1024*fi}')
    if OPT['ec2'] != 2:
        wait_cue(k, 1, t)
    k.wait(lg=0)
    k.label(LJ)
    if OPT['ec2']:
        poll(k, [f'buffer_load_dword v{t}, v{zl+3}, {WS}, 0 offen sc1'], check_tags(k, [t]), masked=True)
    mark(k, 5)
    zi = ef
    poll(k, [f'buffer_load_dwordx4 {Q(zi+4*i)}, v{la if i<2 else zl}, {WS}, s66 offen offset:{1024*i} sc1' for i in range(3)],
         check_sent(k, [zi, zi + 4, zi + 8], t), masked=True, sleep=OPT['sl2'])
    for i in range(3):
        k(f'ds_write_b128 v{zl+1 if i<2 else zl+2}, {Q(zi+4*i)} offset:{1024*i}')
    mark(k, 6)
    bar(k, lg=0)
    xmark(k, 'p3', 1)
    xmark(k, 'q3', 1)
    for tt in range(3):
        for T in range(4):
            k(f'ds_read_b128 {Q(zf+4*(4*tt+T))}, v{za+T+(4 if tt==2 else 0)} offset:{4096*tt}')

    def twid3(tt):
        c = twi + 2 * tt
        if OPT['tw3'] & 1:
            r = []
            for j in range(4):
                re, im, o = acc + 8 * tt + j, acc + 8 * tt + 4 + j, t + 2 * j
                r.append([f'v_mul_f32 v{o}, v{re}, v{c}', f'v_mul_f32 v{o+1}, v{im}, v{c}',
                          f'v_fma_f32 v{o}, -v{im}, v{c+1}, v{o}', f'v_fmac_f32 v{o+1}, v{re}, v{c+1}',
                          f'v_cvt_pk_bf16_f32 v{ef+4*tt+j}, v{o}, v{o+1}'])
            return sum(r, [])
        r = [[], []]
        for p in range(2):
            re, im, o = acc + 8 * tt + 2 * p, acc + 8 * tt + 4 + 2 * p, t + 4 * p
            r[p] = [f'v_pk_mul_f32 {P(o)}, {P(re)}, {P(c)} op_sel_hi:[1,0]',
                    f'v_pk_mul_f32 {P(o+2)}, {P(im)}, {P(c)} op_sel_hi:[1,0]',
                    f'v_pk_fma_f32 {P(o)}, {P(im)}, {P(c)}, {P(o)} op_sel:[0,1,0] neg_lo:[1,0,0] neg_hi:[1,0,0]',
                    f'v_pk_fma_f32 {P(o+2)}, {P(re)}, {P(c)}, {P(o+2)} op_sel:[0,1,0]',
                    f'v_cvt_pk_bf16_f32 v{ef+4*tt+2*p}, v{o}, v{o+2}',
                    f'v_cvt_pk_bf16_f32 v{ef+4*tt+2*p+1}, v{o+1}, v{o+3}']
        return [r[p][2 * q + i] for q in range(3) for p in range(2) for i in range(2)]
    ya = zf
    s2m = [[f'{MF} {Q(acc+8*tt+4*ri)}, {Q(zf+4*(4*tt+T))}, {Q(F64+8*T+4*(1-ri))}, ' + ('0' if T == 0 else Q(acc + 8 * tt + 4 * ri))
            for T in range(4) for ri in range(2)] for tt in range(3)]
    jm = [[f'{MF} {Q(ya+4*mt)}, {Q(ef+4*tt)}, {Q(mf+4*(3*mt+tt))}, ' + ('0' if tt == 0 else Q(ya + 4 * mt))
           for mt in range(5)] for tt in range(3)]

    def weave(mm, vv, skip, per):
        for i, x in enumerate(mm):
            k(x)
            if i >= skip:
                for y in vv[:per]:
                    k(y)
                vv = vv[per:]
        return vv
    if OPT['tw3'] & 2:
        for x in s2m[0] + s2m[1] + s2m[2] + twid3(0) + twid3(1) + jm[0][:1] + twid3(2) + jm[0][1:] + jm[1] + jm[2]:
            k(x)
    else:
        n = len(twid3(0))
        weave(s2m[0], [], 0, 0)
        xmark(k, 'q3', 2)
        rest = weave(s2m[1], twid3(0), 4, 2)
        rest = weave(s2m[2], rest + twid3(1), 0, 2)
        xmark(k, 'q3', 3)
        for x in rest[:max(0, len(rest) - n)]:
            k(x)
        rest = weave(jm[0], rest[max(0, len(rest) - n):] + twid3(2), 0, 2)
        for x in rest[:max(0, len(rest) - n)]:
            k(x)
        rest = weave(jm[1], rest[max(0, len(rest) - n):], 0, 2)
        for x in rest + jm[2]:
            k(x)
        xmark(k, 'q3', 4)
    pos = {0: 0, 2: 2, 1: 4, 3: 6, 4: 8, 6: 10, 5: 12, 7: 14, 8: 16}

    def vec_reads(dst, va, vb, o):
        r = []
        for j in (0, 1, 4, 5):
            e = o // 256 + j
            r.append(f'ds_read2st64_b64 {Q(dst+pos[j])}, v{vb if e & 1 else va} offset0:{e//2} offset1:{e//2+1}')
        return r + [f'ds_read_b64 {P(dst+16)}, v{va} offset:{o+2048}']
    ga, cb, sb = F64, acc, mf
    for x in vec_reads(ga, ad + 4, a576, 0):
        k(x)
    for mt in range(5):
        k(f'ds_write_b128 v{ad+1 if mt<4 else ad}, {Q(ya+4*mt)} offset:{512*mt}')
    for x in vec_reads(cb, ad + 4, a576, 4608) + vec_reads(sb, ad + 4, a576, 2304):
        k(x)
    k.wait(lg=10)
    xmark(k, 'p3', 2)
    xmark(k, 'q3', 5)
    k('s_barrier')
    xmark(k, 'p3', 3)
    for j in range(9):
        k(f'ds_read_b64 {P(yf+2*j)}, v{ad+2} offset:{256*j}')
    k(f'''s_mul_i32 s48, s{sS2}, 9216
    s_lshl_b32 s49, s{sW}, 10
    s_add_u32 s48, s48, s49
    s_add_u32 s48, s48, {WS_H2}
    s_add_u32 s49, s48, 4096
    s_add_u32 s50, s48, 8192''')
    u = t + 6
    for j in range(9):
        k(f'v_pk_fma_f32 {P(xf+2*j)}, {P(yf+2*j)}, {P(ga+pos[j])}, {P(xf+2*j)}')
    stats(k, xf, u)
    for j in range(9):
        k(f'v_pk_fma_f32 {P(yf+2*j)}, {P(xf+2*j)}, {P(u+2)}, {P(u)} op_sel_hi:[1,0,0]')
    for j in range(9):
        k(f'v_pk_fma_f32 {P(yf+2*j)}, {P(yf+2*j)}, {P(cb+pos[j])}, {P(sb+pos[j])}')
    stats(k, yf, u)
    for j in range(9):
        k(f'v_pk_fma_f32 {P(yf+2*j)}, {P(yf+2*j)}, {P(u+2)}, {P(u)} op_sel_hi:[1,0,0]')
        k(f'v_cvt_pk_bf16_f32 v{xr+j}, v{yf+2*j}, v{yf+2*j+1}')
        if j & 1:
            k(f'ds_write2_b32 v{ad+3}, v{xr+j-1}, v{xr+j} offset0:{32*j-32} offset1:{32*j}')
    k(f'ds_write_b32 v{ad+3}, v{xr+8} offset:1024')
    k.wait(lg=0)
    xmark(k, 'p3', 4)
    k('s_barrier')
    xmark(k, 'p3', 5)
    for i in range(3):
        o = acc + 4 * i
        k(f'ds_read_b64_tr_b16 {P(o)}, v{ad+5} offset:{512*i}')
        k(f'ds_read_b64_tr_b16 {P(o+2)}, v{ad+5} offset:{512*i+4*XROW}')
    for i in range(2):
        k(f'buffer_store_dwordx4 {Q(acc+4*i)}, v{la}, {WS}, s{48+i} offen sc1')
    L1 = k.lab()
    k.wait(lg=0)
    k(f's_cmp_lg_u32 s{sW}, 0\ns_cbranch_scc1 {L1}')
    k(f'buffer_store_dwordx4 {Q(acc+8)}, v{la}, {WS}, s50 offen sc1')
    k.label(L1)
    mark(k, 7)
    for j in range(9):
        k(f'v_cvt_pk_bf16_f32 v{xr+j}, v{xf+2*j}, v{xf+2*j+1}')
    for j in range(0, 8, 2):
        k(f'ds_write2_b32 v{ad+7}, v{xr+j}, v{xr+j+1} offset0:{32*j} offset1:{32*j+32}')
    k(f'ds_write_b32 v{ad+7}, v{xr+8} offset:1024')
    bar(k, lg=0)
    V.p = base
    la2 = V(); t = V(8); vA0 = V(); vA40 = V(); vW0 = V(2); vA = V(); vA4 = V(); vW = V(2)
    fa = V(48, 4); fw = V(16, 4); rg = V(96, 4)
    V.p = 204
    acc = V(48, 4)

    def w_read_addr(extra):
        k(f'''v_lshrrev_b32 v{t}, 2, v0
        v_and_b32 v{t+1}, 7, v{t}
        s_lshl_b32 s59, s{sW}, 1
        s_add_u32 s59, s59, {extra}
        v_xor_b32 v{t+1}, s59, v{t+1}
        v_xor_b32 v{t+2}, 1, v{t+1}
        v_and_b32 v{t+3}, 3, v0
        v_lshlrev_b32 v{t+3}, 3, v{t+3}
        v_lshl_add_u32 v{t}, v{t}, 8, v{t+3}
        v_lshl_add_u32 v{vW0}, v{t+1}, 5, v{t}
        v_lshl_add_u32 v{vW0+1}, v{t+2}, 5, v{t}''')
    LN, LJ = k.lab(), k.lab()
    k(f's_cmp_ge_u32 s{sR}, 27\ns_cbranch_scc1 {LN}')
    w_read_addr(0)
    rg1 = [rg + 16 * x for x in range(6)]
    for x in preload_w(vW0, vW, list(enumerate(rg1))):
        k(x)
    if OPT['rf']:
        bar(k, lg=0)
    bar(k, 0, 0)
    nx = len(reg_stages(0)) - 6
    rgx = [188, fa + 24][:nx]
    k(f'''v_mul_u32_u24 v{vA0}, 1536, v2
    v_lshl_add_u32 v{vA0}, v1, 4, v{vA0}
    v_add_u32 v{vA0}, {L_ACT}, v{vA0}''')
    for nt in range(2):
        for p in range(2):
            a = acc + 4 * nt + 2 * p
            k(f'v_lshlrev_b32 v{a}, 16, v{bb+2*nt+p}\nv_and_b32 v{a+1}, 0xffff0000, v{bb+2*nt+p}')
    for mt in range(1, 6):
        for i in range(0, 8, 2):
            k(f'v_mov_b64 {P(acc+8*mt+i)}, {P(acc+i)}')
    if nx:
        k('s_barrier')
        for x in preload_w(vW0, vW, list(enumerate(rgx))):
            k(x)
        bar(k, lg=0)
    tag(k, 'touch c2')
    tag(k, 'region c2')
    gemm_c(k, 6, 32, 5, 12288, vA0, None, vW0, vW, fa, fw, acc, rg1 + rgx, reg_stages(0), True, at_end=lambda: k('s_barrier'),
           single=nx == 2 or OPT['single'], slot0=nx)
    mark(k, 8)
    k(f'''s_lshl_b32 s48, s51, 2
    s_add_u32 s48, s48, s{sW}
    s_mul_i32 s48, s48, {4*9216}
    s_mul_i32 s49, s52, {96*16}
    s_add_u32 s48, s48, s49
    s_add_u32 s48, s48, {WS_U}
    v_mul_u32_u24 v{vA}, 9216, v2
    v_lshl_add_u32 v{vA}, v1, 4, v{vA}
    s_mov_b32 s60, {f32(-2*0.7978845608028654*0.044715*1.4426950408889634)}
    v_mov_b32 v{bb}, {f32(-2*0.7978845608028654*1.4426950408889634)}''')
    for mt in range(6):
        q = fa + 8 * (mt & 1)
        o = fw + 4 * (mt & 1)
        a = acc + 8 * mt
        for i in range(0, 8, 2):
            k(f'v_pk_mul_f32 {P(q+i)}, {P(a+i)}, {P(a+i)}')
        for i in range(0, 8, 2):
            k(f'v_pk_fma_f32 {P(q+i)}, {P(q+i)}, s[60:61], {P(bb)} op_sel_hi:[1,0,0]')
        for i in range(0, 8, 2):
            k(f'v_pk_mul_f32 {P(q+i)}, {P(q+i)}, {P(a+i)}')
        for i in range(8):
            k(f'v_exp_f32 v{q+i}, v{q+i}')
        for i in range(0, 8, 2):
            k(f'v_pk_add_f32 {P(q+i)}, {P(q+i)}, 1.0 op_sel_hi:[1,0]')
        for i in range(8):
            k(f'v_rcp_f32 v{q+i}, v{q+i}')
        for i in range(0, 8, 2):
            k(f'v_pk_mul_f32 {P(q+i)}, {P(q+i)}, {P(a+i)}')
        for i in range(4):
            k(f'v_cvt_pk_bf16_f32 v{o+i}, v{q+2*i}, v{q+2*i+1}')
        k(f'buffer_store_dwordx4 {Q(o)}, v{vA}, {WS}, s48 offen offset:{256*mt} sc1')
    mark(k, 9)
    k(f's_branch {LJ}')
    tag(k, 'region -')
    k.label(LN)
    k.fresh()
    bar(k, 0)
    srd(k, 40, pW1, S * F * 2)
    srd(k, 44, pW2, S * F * 2)
    k(f'''s_mul_i32 s56, s{sW}, 5
    s_add_u32 s56, s56, s{sR}
    s_sub_u32 s56, s56, 27
    s_add_u32 s57, s56, {OPT['pf2'] + 10*OPT['pf3'] + 27*OPT['pf7']}
    s_add_u32 s56, s56, {OPT['pf9']}''')
    pf_loop(k, 1, 57, 20, 32 * OPT['nl'], t, 40)
    pf_loop(k, 2, 56, 20, min(OPT['pf5'], 288 - 2 * leaders(1)[1] * OPT['pf8'] - 2 * leaders(0)[1] * OPT['pf4'] - 54 * OPT['pfa'] + OPT['n4x']), t + 4, 44)
    if OPT['wo']:
        srd(k, 40, pOUT, S * D * 2)
        k(f'''s_mul_i32 s56, s{sW}, 5
        s_add_u32 s56, s56, s{sR}
        s_sub_u32 s56, s56, 27
        s_lshl_b32 s56, s56, 1
        s_mul_i32 s57, s{sJ}, 36
        v_lshlrev_b32 v{t}, 7, v0''')
        for x in range(2):
            k(f'''s_add_u32 s48, s56, {x}
            s_min_u32 s48, s48, 35
            s_add_u32 s48, s48, s57
            s_lshl_b32 s48, s48, 13''')
            k.raw(f'    buffer_load_dword v{t+1}, v{t}, s[40:43], s48 offen {("", "", "nt", "sc1")[OPT["wo"]]}')
    k.wait(0)
    mark(k, 9)
    bar(k, 0)
    tag(k, 'region c2')
    tag(k, 'target')
    k.label(LJ)
    k('s_lshr_b32 s58, s53, 1')
    w_read_addr('s58')
    k('s_barrier')
    xmark(k, 'h4', 1)
    for x in preload_w(vW0, vW, [((2 + x) % 6, rg1[x]) for x in range(6)]):
        k(x)
    k.wait(lg=0)
    if OPT['rf2']:
        k('s_barrier')
    xmark(k, 'h4', 2)
    bar(k, 0)
    xmark(k, 'h4', 3)
    vAo, vA4g, vAx, og4 = vA0, vA40, vA, vA4
    accf = lambda mt, nt: (188 + 4 * (2 * mt + nt)) if 2 * mt + nt < 17 else 64
    og = 68
    free = quads(rg1, reg_stages(1), OPT['defer'])[1]
    assert len(free) >= 14
    sq = [free[3 * x:3 * x + 3] for x in range(3)]
    gq = free[9:14]
    x1 = fa
    qf = fa + 16
    oa = bb
    k(f'''s_and_b32 s58, s53, 1
    s_mul_i32 s48, s58, 1280
    s_sub_u32 s49, 1280, s48
    v_mul_u32_u24 v{t}, 2304, v2
    v_add_u32 v{t}, {L_ACT2}, v{t}
    v_lshl_add_u32 v{t+2}, v1, 4, v{t}
    v_add_u32 v{vAo}, s48, v{t+2}
    v_add_u32 v{vAx}, s49, v{t+2}
    s_lshl_b32 s48, s58, 3
    v_xor_b32 v{t+1}, s48, v1
    v_lshl_add_u32 v{vA4g}, v{t+1}, 4, v{t}
    v_add_u32 v{vA4g}, 1024, v{vA4g}
    v_lshlrev_b32 v{la2}, 4, v0''')
    k(f'v_lshlrev_b32 v{b2}, 16, v{b2}\nv_cmp_gt_u32 vcc, 32, v0\nv_cndmask_b32 v{t}, 0, v{b2}, vcc')
    for mt in range(9):
        for nt in range(2):
            a = accf(mt, nt)
            if nt == 0 and mt <= 4:
                for i in range(4):
                    k(f'v_mov_b32 v{a+i}, v{b2 if mt < 4 else t}')
            else:
                k(f'v_mov_b64 {P(a)}, 0\nv_mov_b64 {P(a+2)}, 0')
    srd(k, 44, pOUT, S * D * 2)
    k(f'''s_mul_i32 s48, s{sW}, {16*144}
    s_add_u32 s48, s48, {L_X1}
    v_mul_u32_u24 v{t}, 144, v1
    v_lshl_add_u32 v{t}, v2, 3, v{t}
    v_add_u32 v{t}, s48, v{t}
    v_add_u32 v{oa+3}, s48, v{la2}
    s_lshl_b32 s49, s58, 4
    v_add_u32 v{oa}, s49, v{t}
    s_lshl_b32 s49, s58, 7
    s_sub_u32 s49, 128, s49
    v_add_u32 v{t}, s49, v{t}
    v_cmp_gt_u32 vcc, 32, v0
    v_mov_b32 v{t+1}, {L_GB + 512}
    v_cndmask_b32 v{oa+1}, v{t+1}, v{t}, vcc
    v_lshlrev_b32 v{t}, 4, v2
    v_add_u32 v{t}, {L_GB}, v{t}
    s_lshl_b32 s49, s58, 5
    v_add_u32 v{oa+2}, s49, v{t}
    s_lshl_b32 s49, s58, 8
    s_sub_u32 s49, 256, s49
    v_add_u32 v{og4}, s49, v{t}
    s_lshl_b32 s48, s59, 4
    s_lshl_b32 s49, s54, 7
    s_add_u32 s48, s48, s49
    s_mul_i32 s48, s48, 1152
    s_mul_i32 s49, s55, 288
    s_add_u32 s62, s48, s49
    s_mul_i32 s49, s58, 144
    s_add_u32 s62, s62, s49''')
    for i in range(3):
        k(f'''v_add_u32 v{t}, {64*i}, v0
        v_mul_u32_u24 v{t+1}, 911, v{t}
        v_lshrrev_b32 v{t+1}, 13, v{t+1}
        v_mul_u32_u24 v{t+1}, {1152-144}, v{t+1}
        v_lshl_add_u32 v{og+i}, v{t}, 4, v{t+1}''')
    k(f'''v_cmp_gt_u32 vcc, 16, v0
    v_mov_b32 v{t+1}, {OOB}
    v_cndmask_b32 v{og+2}, v{t+1}, v{og+2}, vcc
    s_mul_i32 s48, s{sW}, {XW}
    s_add_u32 s48, s48, {WS_XCH}
    s_mul_i32 s64, s2, {XB}
    s_add_u32 s64, s64, s48
    v_and_b32 v{t}, 3, v0
    v_cmp_eq_u32 vcc, 0, v{t}
    v_lshlrev_b32 v27, 2, v0
    v_cndmask_b32 v26, v{t+1}, v27, vcc
    s_mul_i32 s49, s{sW}, {2*XW}
    s_add_u32 s49, s49, {L_S}
    v_add_u32 v71, s49, v{la2}''')
    if OPT['xc'] == 3:
        k(f'v_mov_b64 {P(72)}, -1')
    else:
        k(f'v_add_u32 v72, {4*AST2}, v{vAo}\nv_add_u32 v75, {4*AST2}, v{vA4g}\nv_add_u32 v74, {4*AST2}, v{vAx}')
    for x in range(1, 4):
        k(f'''s_xor_b32 s{64+x}, s2, {2*x}
        s_mul_i32 s{64+x}, s{64+x}, {XB}
        s_add_u32 s{64+x}, s{64+x}, s48
        s_add_u32 s{64+x}, s{64+x}, {XM*(x-1)}''')
    cue = OPT['xcue']
    assert not cue
    if cue:
        k(f'''v_cmp_gt_u32 vcc, 8, v0
        v_cndmask_b32 v27, v{t+1}, v{la2}, vcc
        s_lshl_b32 s48, s{sW}, 7
        s_add_u32 s48, s48, {WS_XCUE}
        s_mul_i32 s61, s2, 1536
        s_add_u32 s61, s61, s48''')
        for x, r in ((1, 56), (2, 57), (3, 60)):
            k(f'''s_xor_b32 s{r}, s2, {2*x}
            s_mul_i32 s{r}, s{r}, 1536
            s_add_u32 s{r}, s{r}, s48
            s_add_u32 s{r}, s{r}, {512*(x-1)}''')
    mbox = [f'buffer_load_dwordx4 {Q(sq[0][c])}, v{la2}, {WS}, s64 offen offset:{1024*c} sc1' for c in range(2)] + \
           [f'buffer_load_dword v{sq[0][2]}, v27, {WS}, s64 offen offset:2048 sc1']
    sel = fw

    def g2_end():
        xmark(k, 'x', 2)
        k('s_barrier')
        xmark(k, 'x', 3)
        for mt in range(4):
            k(f'ds_read_b64 {P(x1+2*mt)}, v{oa} offset:{32*mt}\nds_read_b128 {Q(gq[mt])}, v{oa+2} offset:{64*mt}')
        k(f'ds_read_b64 {P(x1+8)}, v{oa+1}\nds_read_b128 {Q(gq[4])}, v{og4}')

    def message(x, nt, rows, r8):
        b, r = sq[x - 1], list(r8)
        r += [f'v_mov_b32_dpp v{b[2]+j}, v{b[2]} quad_perm:[{j},{j},{j},{j}] row_mask:0xf bank_mask:0xf' for j in (1, 2, 3)]
        for c in range(2):
            for i in range(4):
                a = accf(rows[2 * c + (i >> 1)], nt) + 2 * (i & 1)
                r.append(f'v_cvt_pk_bf16_f32 v{b[c]+i}, v{a}, v{a+1}')
            r.append(f'buffer_store_dwordx4 {Q(b[c])}, v{la2}, {WS}, s{64+x} offen offset:{1024*c} sc1')
        r.append(f'buffer_store_dwordx4 {Q(b[2])}, v26, {WS}, s{64+x} offen offset:2048 sc1')
        if cue:
            r.append(f'buffer_store_dwordx4 {Q(t+4)}, v27, {WS}, s{(56, 57, 60)[x-1]} offen sc1')
        return r

    def split4(nt, own, other):
        a = accf(4, nt)
        return [f'v_cvt_pk_bf16_f32 v{own}, v{a}, v{a+1}', f'v_cvt_pk_bf16_f32 v{other}, v{a+2}, v{a+3}',
                f'v_permlane32_swap_b32 v{own}, v{other}']

    def send_bc():
        if OPT.get('mk') != 'p1':
            mark(k, 10)
        if cue:
            for i in range(4):
                k(f'v_mov_b32 v{t+4+i}, v{vTAG}')
        s4 = split4(1, sq[1][2], sq[2][2])
        return message(3, 1, [5, 6, 7, 8], s4) + message(2, 1, [0, 1, 2, 3], [])

    def selectors():
        z, u = sel, t
        return [f'v_lshrrev_b32 v{u}, 2, v1', f'v_and_b32 v{u+1}, 1, v1', f'v_lshlrev_b32 v{u+1}, 4, v{u+1}',
                f'v_mov_b32 v{u+2}, 0x3f80', f'v_lshlrev_b32 v{u+1}, v{u+1}, v{u+2}',
                f'v_and_b32 v{u+2}, 2, v1', f'v_add_u32 v{u+3}, v{u}, v{u+2}',
                f'v_cmp_eq_u32 vcc, v{u}, v2', f'v_cndmask_b32 v{z+4}, 0, v{u+1}, vcc',
                f'v_cmp_eq_u32 vcc, v{u+3}, v2', f'v_cndmask_b32 v{z}, 0, v{u+1}, vcc',
                f'v_cmp_gt_u32 vcc, 8, v1', f'v_cndmask_b32 v{z}, 0, v{z}, vcc',
                f'v_cmp_eq_u32 vcc, 0, v{u+2}', f'v_cndmask_b32 v{z+5}, v{z+4}, 0, vcc', f'v_cndmask_b32 v{z+4}, 0, v{z+4}, vcc',
                f'v_mov_b32 v{z+1}, v{z}', f'v_mov_b64 {P(z+2)}, 0', f'v_mov_b64 {P(z+6)}, 0']
    send_a = lambda: (xmark(k, 'x', 1), message(1, 0, [5, 6, 7, 8], split4(0, t + 3, sq[0][2])) + selectors())[1]
    tag(k, 'touch c3')
    tag(k, 'region c3')
    fill, drain = {}, None
    if OPT['xc'] == 3:
        c0, cn = OPT['xclr']
        k(f'''v_mov_b64 {P(74)}, -1
        s_mul_i32 s63, s2, {XB}
        s_lshl_b32 s48, s{sW}, 10
        s_add_u32 s63, s63, s48
        s_add_u32 s63, s63, {WS_XCH}
        s_cmp_eq_u32 s{sW}, 3
        s_cselect_b32 s56, {5*4096}, {6*4096}'''.replace('s_cselect_b32 s56, 20480, 24576', 's_cselect_b32 s56, 4096, 0\ns_sub_u32 s56, 24576, s56'))
        for x in range(7):
            q = 2 * c0 + x * 2 * cn // 7
            so = f's_add_u32 s57, s63, {4096*x}' if x < 6 else 's_add_u32 s57, s63, s56'
            fill.setdefault(q, []).extend([so, f'buffer_store_dwordx4 {Q(72)}, v{la2}, {WS}, s57 offen sc1'])
        drain = 2 * OPT['xrdy'][0]
    gemm2_c(k, vAo, vAx, vA4g, vW0, vW, fa, fw, accf, rg1, reg_stages(1), OPT['defer'], send_bc, send_a, g2_end, fill, drain, (72, 75, 74))

    def add_message(q0, th):
        for i in range(4):
            a = accf(i, 0)
            k(f'{MF} {Q(a)}, {Q(sel + (4 if i % 2 == 0 else 2))}, {Q(q0[i >> 1])}, {Q(a)}')
        if th is not None:
            a = accf(4, 0)
            k(f'{MF} {Q(a)}, {Q(sel)}, {Q(th)}, {Q(a)}')
    k(f's_mul_i32 s49, s{sW}, {2*XW}\ns_add_u32 s49, s49, {L_S}\nv_add_u32 v73, s49, v27')
    for i in range(10):
        k(f'v_lshlrev_b32 v{qf+2*i}, 16, v{x1+i}\nv_and_b32 v{qf+2*i+1}, 0xffff0000, v{x1+i}')
    xmark(k, 'x', 4)
    k.wait(0)
    if OPT.get('mk') != 'p1':
        mark(k, 11)
    if cue == 1:
        k(f'v_mov_b32 v{t}, 0')
        poll(k, [f'buffer_load_dword v{t+1}, v{t}, {WS}, s61 offen sc1'], check_tags(k, [t + 1]), sleep=OPT['xsl'])
    k(f'v_mov_b32 v{sq[0][2]+1}, 0\nv_mov_b64 {P(sq[0][2]+2)}, 0\nv_mov_b64 {P(sq[1][2]+2)}, 0')
    for l in mbox:
        k(l)
    k('s_barrier')
    xmark(k, 'x', 5)
    for x in range(2):
        for c in range(2):
            k(f'ds_read_b128 {Q(sq[x+1][c])}, v71 offset:{XW*x+1024*c}')
    k(f'ds_read_b32 v{sq[1][2]}, v73 offset:2048\nds_read_b32 v{sq[1][2]+1}, v73 offset:{XW+2048}')
    add_message(sq[1], None)
    add_message(sq[2], sq[1][2])
    k.wait(0)
    L1 = k.lab()
    sent = check_sent(k, sq[0], t)
    sent()
    k(f's_cbranch_vccz {L1}')
    poll(k, mbox, sent, masked=True)
    k.label(L1)
    xmark(k, 'x', 6)
    add_message(sq[0], sq[0][2])
    for mt in (0, 1, 2, 3, 4):
        q, a = qf + 4 * mt, accf(mt, 0)
        for p in range(2):
            k(f'v_pk_fma_f32 {P(q+2*p)}, {P(a+2*p)}, {P(gq[mt]+2*p)}, {P(q+2*p)}')
        for p in range(2):
            k(f'v_cvt_pk_bf16_f32 v{x1+2*mt+p}, v{q+2*p}, v{q+2*p+1}')
        k(f'ds_write_b64 v{oa}, {P(x1+2*mt)} offset:{32*mt}' if mt < 4 else f'ds_write_b64 v{oa+1}, {P(x1+8)}')
    xmark(k, 'x', 7)
    if OPT.get('outlin'):
        k(f's_mul_i32 s62, s2, 9216\ns_mul_i32 s48, s{sW}, 2304\ns_add_u32 s62, s62, s48')
        k(f'v_mov_b32 v{og}, v{la2}\nv_add_u32 v{og+1}, 1024, v{la2}\nv_add_u32 v{t}, 2048, v{la2}\nv_cmp_gt_u32 vcc, 16, v0\nv_mov_b32 v{t+1}, {OOB}\nv_cndmask_b32 v{og+2}, v{t+1}, v{t}, vcc')
    for i in range(3):
        k(f'ds_read_b128 {Q(gq[i])}, v{oa+3} offset:{1024*i}')
    for i in range(3):
        k(f'buffer_store_dwordx4 {Q(gq[i])}, v{og+i}, s[44:47], s62 offen {OPT["outflag"]}')
    k('s_branch L_end')


def gen_H(k):
    V = Alloc(4, 256)
    t = V(12); la = V(); fl = V(3, 1); wa = V(3, 1); sa_ = V(3, 1); c0 = V(2); mo = V(4); ones = V(4, 4)
    ld = V(16, 4); Fa = V(8, 4); Fai = V(8, 4); Fb = V(32, 4); Fbi = V(32, 4)
    wv = V(32, 4); acc = V(32, 4); pk = V(16, 4); a0 = V(); a1 = V(); a2 = V(); a3 = V(); a4 = V(); a5 = V(); g4 = V(); lf = V(); dum = V(4); wp = V(16, 4)
    g = acc
    k(f'v_lshlrev_b32 v{la}, 4, v0\nv_mov_b32 v{mo+2}, {OOB}\nv_mov_b32 v{t+8}, {OOB}\nv_mov_b32 v{fl+1}, {OOB}')
    k(f'''s_sub_u32 s63, 255, s2
    s_mul_i32 s62, s63, 171
    s_lshr_b32 s62, s62, 9
    s_mul_i32 s48, s62, 3
    s_sub_u32 s61, s63, s48''')

    def skip_unless(reg, val, op='lg'):
        L = k.lab()
        k(f's_cmp_{op}_u32 s{reg}, {val}\ns_cbranch_scc1 {L}')
        k.cond += 1
        return L

    def endif(L):
        k.cond -= 1
        k.label(L)

    def mod_addr(urgent, part=3):
        if part & 1:
            k(f'''v_lshrrev_b32 v{t}, 3, v0
        v_and_b32 v{t+1}, 7, v0
        v_and_b32 v{t+2}, 6, v{t}
        v_xor_b32 v{t+1}, v{t+1}, v{t+2}
        v_mul_u32_u24 v{t}, 6912, v{t}
        v_lshl_add_u32 v{t+8}, v{t+1}, 4, v{t}
        s_lshl_b32 s48, s61, 2
        s_add_u32 s48, s48, s{sW}
        s_mul_i32 s48, s48, {(48 if urgent else 72)*6912}
        s_lshl_b32 s49, s62, 7
        s_add_u32 s47, s48, s49
        s_lshl_b32 s50, s{sW}, 8
        v_lshl_add_u32 v{c0+1}, v0, 2, s50
        s_mul_i32 s49, s61, {384 if urgent else 576}
        v_add_u32 v{t+5}, s49, v{c0+1}
        v_add_u32 v{t+8}, s47, v{t+8}''')
        if not part & 2:
            return
        k(f'''v_lshrrev_b32 v{t}, 2, v0
        v_bfe_u32 v{t+1}, v{t}, 1, 2
        v_xor_b32 v{t+1}, s{sW}, v{t+1}
        v_lshlrev_b32 v{t+1}, 5, v{t+1}
        v_lshlrev_b32 v{t}, 7, v{t}
        v_and_b32 v{t+2}, 3, v0
        v_lshlrev_b32 v{t+2}, 3, v{t+2}
        v_add3_u32 v{mo}, v{t}, v{t+1}, v{t+2}
        v_lshlrev_b32 v{mo+1}, 3, v2
        v_add_u32 v{mo+1}, {L_SILU}, v{mo+1}''')
        if urgent:
            k(f'''s_mul_i32 s48, s{sW}, 3456
            s_mul_i32 s49, s61, 1152
            s_add_u32 s48, s48, s49
            s_lshl_b32 s49, s62, 6
            s_add_u32 s48, s48, s49
            s_add_u32 s48, s48, {WS_MODG}
            v_mul_u32_u24 v{t}, 13824, v2
            v_lshl_add_u32 v{t}, v1, 2, v{t}
            v_add_u32 v{mo+2}, s48, v{t}
            v_add_u32 v{mo+3}, {4*13824}, v{mo+2}''')
        else:
            k(f'''s_mul_i32 s49, s61, 9216
            s_lshl_b32 s50, s62, 8
            s_add_u32 s49, s49, s50
            s_lshl_b32 s50, s{sW}, 6
            s_add_u32 s49, s49, s50
            s_add_u32 s49, s49, {WS_MODB - 18*256}
            v_lshl_add_u32 v{t}, v1, 2, s49
            v_cmp_gt_u32 vcc, 16, v0
            v_mov_b32 v{t+1}, {OOB}
            v_cndmask_b32 v{mo+2}, v{t+1}, v{t}, vcc''')

    def mod_loads(n, i0, i1):
        if i0 == 0:
            k(f's_mul_i32 m0, s{sW}, {1024*n}\ns_mov_b32 s59, 0')
        for i in range(i0, i1):
            k(f'buffer_load_dwordx4 v{t+8}, s[40:43], s59 offen lds')
            if i < n - 1:
                k(f's_add_u32 m0, m0, 1024\ns_add_u32 s59, s59, {8*6912}')

    def c_load():
        srd(k, 44, pC, D * 2)
        k(f'buffer_load_dword v{c0}, v{t+5}, s[44:47], 0 offen')

    def mod_silu():
        k(f'''v_lshlrev_b32 v{t}, 16, v{c0}
        v_and_b32 v{t+1}, 0xffff0000, v{c0}
        v_mul_f32 v{t+2}, {f32(-1.4426950408889634)}, v{t}
        v_mul_f32 v{t+3}, {f32(-1.4426950408889634)}, v{t+1}
        v_exp_f32 v{t+2}, v{t+2}
        v_exp_f32 v{t+3}, v{t+3}
        v_add_f32 v{t+2}, 1.0, v{t+2}
        v_add_f32 v{t+3}, 1.0, v{t+3}
        v_rcp_f32 v{t+2}, v{t+2}
        v_rcp_f32 v{t+3}, v{t+3}
        v_mul_f32 v{t}, v{t}, v{t+2}
        v_mul_f32 v{t+1}, v{t+1}, v{t+3}
        v_cvt_pk_bf16_f32 v{c0}, v{t}, v{t+1}
        v_add_u32 v{c0+1}, {L_SILU}, v{c0+1}
        ds_write_b32 v{c0+1}, v{c0}''')

    def mod_compute(urgent):
        c = k.cond
        k.cond = 0
        k.lg = []
        n = 6 if urgent else 9
        g = wv
        for stp in range(n):
            a = g + stp * 8
            k(f'''ds_read_b64_tr_b16 {P(a)}, v{mo} offset:{stp*4096}
            ds_read_b64_tr_b16 {P(a+2)}, v{mo} offset:{stp*4096+2048}
            ds_read2_b64 {Q(a+4)}, v{mo+1} offset0:{stp*8} offset1:{stp*8+4}''')
        k(f'v_and_b32 v{t}, 3, v1\nv_or_b32 v{t}, 0x07060500, v{t}')
        for stp in range(n):
            a = g + stp * 8
            k(f'{MF} {Q(ld)}, {Q(a+4)}, {Q(a)}, ' + ('0' if stp == 0 else Q(ld)))
        k(f'v_add_u32 v{ld+4}, 0x80, v{ld}\nv_perm_b32 v{ld+4}, v{ld+4}, v{vTAG}, v{t}')
        k.cond = c
        if urgent:
            k.wait(OPT['warm'])
        for a in range(OPT['nm'] if urgent else 1):
            k(f's_mov_b32 s48, {a*0x20000}')
            for i in range(2 if urgent else 1):
                k(f'buffer_store_dword v{ld+4}, v{mo+2+i}, {WS}, s48 offen sc1')

    def wp_addr():
        k(f'''s_lshl_b32 s67, s{sJ}, 4
        s_add_u32 s67, s67, s{sR}
        s_and_b32 s67, s67, 127
        s_lshl_b32 s48, s{sW}, 9
        s_add_u32 s48, s48, s67
        s_mul_i32 s69, s{sW}, 6144
        s_add_u32 s69, s69, {L_WST}
        s_cmp_eq_u32 s67, 0
        s_cselect_b32 s68, 38, 0
        s_add_u32 s68, s68, 152
        v_mov_b32 v{t+4}, {OOB}''')
        for i in range(3):
            k(f'''v_add_u32 v{t}, {64*i}, v0
            v_mul_u32_u24 v{t+1}, 1725, v{t}
            v_lshrrev_b32 v{t+1}, 16, v{t+1}
            v_mul_u32_u24 v{t+2}, 38, v{t+1}
            v_sub_u32 v{t+2}, v{t}, v{t+2}
            v_cmp_gt_u32 vcc, s68, v{t}
            v_lshl_add_u32 v{t+1}, v{t+1}, 7, s48
            v_and_b32 v{t+1}, 2047, v{t+1}
            v_mul_u32_u24 v{t+1}, 578, v{t+1}
            v_and_b32 v{t+1}, 0xfffffff0, v{t+1}
            v_lshl_add_u32 v{t+1}, v{t+2}, 4, v{t+1}
            v_cndmask_b32 v{wa+i}, v{t+4}, v{t+1}, vcc''')

    def wp_gather():
        k(f'''s_lshl_b32 s48, s67, 1
        s_and_b32 s48, s48, 15
        s_add_u32 s48, s48, s69
        v_and_b32 v{t}, 1, v2
        v_lshrrev_b32 v{t+1}, 1, v2
        v_mul_u32_u24 v{t+2}, 144, v{t}
        v_mad_u32_u24 v{t+2}, v1, 9, v{t+2}
        v_add_lshl_u32 v{t+2}, v{t+2}, v{t+1}, 1
        v_add_u32 v{wa}, s48, v{t+2}
        s_cmp_eq_u32 s67, 0
        s_cselect_b32 s49, 608, 0
        s_add_u32 s48, s48, s49
        s_add_u32 s48, s48, {576-8}
        v_sub_u32 v{wa+1}, s48, v{t+2}
        v_lshl_add_u32 v{t}, v{t+1}, 5, v{t}
        v_lshlrev_b32 v{t}, 14, v{t}
        v_lshl_add_u32 v{sa_}, v1, 4, v{t}
        v_add_u32 v{sa_+1}, {64<<14}, v{sa_}
        v_add_u32 v{sa_+2}, {128<<14}, v{sa_}
        v_cmp_gt_u32 vcc, 32, v0
        v_mov_b32 v{t+4}, {OOB}
        v_cndmask_b32 v{sa_+2}, v{t+4}, v{sa_+2}, vcc
        s_lshl_b32 s48, s67, 2
        s_add_u32 s48, s48, s{sW}
        s_lshl_b32 s48, s48, 4
        s_add_u32 s48, s48, {WS_FLAG}
        v_writelane_b32 v{fl+1}, s48, 0''')
        if OPT['warm']:
            k(f'buffer_load_dword v{dum+2}, v{fl+1}, {WS}, 0 offen')
        for refl in range(2):
            if refl == 0:
                k(f's_mov_b32 s48, s67\ns_mov_b32 s49, s{sW}')
            else:
                k(f's_sub_u32 s48, 128, s67\ns_and_b32 s48, s48, 127\ns_sub_u32 s49, 3, s{sW}')
            k(f'''s_and_b32 s50, s48, 7
            s_lshr_b32 s48, s48, 3
            s_lshl_b32 s58, s50, 16
            s_lshl_b32 s59, s48, 10
            s_add_u32 s58, s58, s59
            s_lshl_b32 s59, s49, 8
            s_add_u32 s58, s58, s59
            s_add_u32 s{56+refl}, s58, {WS_WP + refl*(2<<14)}''')

    def wp_run():
        c = k.cond
        k.cond = 0
        k.lg = []
        g = wv
        for refl in range(2):
            for i in range(3):
                r = g + 24 * refl + 8 * i
                for j in range(4):
                    o = 608 * j + 4 * i if refl == 0 else 608 * (3 - j) + 8 - 4 * i
                    k(f'ds_read_u16 v{r+j}, v{wa+refl} offset:{o}\nds_read_u16 v{r+4+j}, v{wa+refl} offset:{3072+o}')
        k.cond = c
        for refl in range(2):
            for i in range(3):
                r = g + 24 * refl + 8 * i
                for j in range(4):
                    k(f'v_lshl_or_b32 v{r+j}, v{r+4+j}, 16, v{r+j}')
                for j in range(4 * refl):
                    k(f'v_xor_b32 v{r+j}, 0x80000000, v{r+j}')
                k(f'buffer_store_dwordx4 {Q(r)}, v{sa_+i}, {WS}, s{56+refl} offen sc1')

    def wp_loads():
        srd(k, 52, pWR, S * 578)
        srd(k, 56, pWI, S * 578)
        for arr in range(2):
            for i in range(3):
                k(f's_add_u32 m0, s69, {3072*arr+1024*i}')
                k(f'buffer_load_dwordx4 v{wa+i}, s[{52+4*arr}:{55+4*arr}], 0 offen lds')

    def flag_addr():
        k(f'''s_lshr_b32 s51, s{sR}, 2
        s_lshl_b32 s51, s51, 3
        s_add_u32 s51, s51, s{sJ}
        s_and_b32 s60, s{sR}, 3
        s_lshl_b32 s35, s51, 2
        s_add_u32 s35, s35, s60
        s_lshl_b32 s35, s35, 14
        s_bfe_u32 s48, s{sS2}, 0x20002
        s_lshl_b32 s48, s48, 6
        s_lshr_b32 s49, s{sS2}, 4
        s_lshl_b32 s49, s49, 2
        s_add_u32 s48, s48, s49
        s_and_b32 s49, s{sS2}, 3
        s_add_u32 s48, s48, s49
        s_lshl_b32 s48, s48, {OPT['fs']}
        s_lshl_b32 s49, s{sW}, 16
        s_add_u32 s48, s48, s49
        s_add_u32 s48, s48, {WS_FL2}
        v_mov_b32 v{fl}, {OOB}''')
        for a in range(OPT['na']):
            k(f'v_writelane_b32 v{fl}, s48, {a}\ns_add_u32 s48, s48, 16384')
        k(f'''s_add_u32 s48, s2, 160
        s_lshl_b32 s48, s48, 7
        s_add_u32 s48, s48, {WS_CUE+0x8000}
        s_lshl_b32 s49, s{sW}, 8
        s_add_u32 s49, s49, s{sR}
        s_cmp_lt_u32 s49, 12
        s_cselect_b32 s48, s48, {OOB}
        v_mov_b32 v{fl+2}, {OOB}
        v_writelane_b32 v{fl+2}, s48, 0
        s_or_b32 s48, s2, s{sW}
        s_cmp_eq_u32 s48, 0
        s_cselect_b32 s48, 0, {OOB}
        s_add_u32 s48, s48, {WS_EPOCH}
        v_writelane_b32 v{fl+2}, s48, 1''')
        if OPT['ec2']:
            k(f'''s_lshr_b32 s48, s35, 10
            s_lshl_b32 s49, s{sW}, 12
            s_add_u32 s48, s48, s49
            s_add_u32 s48, s48, {WS_FLAG + 0x8000}
            s_cmp_lt_u32 s{sR}, 20
            s_cselect_b32 s48, s48, {OOB}
            v_writelane_b32 v{fl+2}, s48, 2''')

    def warm(regs):
        if OPT['warm']:
            for i, r in enumerate(regs):
                k(f'buffer_load_dword v{dum+i}, v{r}, {WS}, 0 offen')

    def clear1():
        k(f's_lshl_b32 s48, s{sW}, 12\ns_add_u32 s48, s48, s35\ns_add_u32 s48, s48, {WS_T1}')
        for i in range(4):
            k(f'buffer_store_dwordx4 {Q(ones)}, v{la}, {WS}, s48 offen offset:{1024*i} sc1')

    def clear2():
        k(f'''v_min_u32 v{t+1}, {31*16}, v{la}
        s_mul_i32 s48, s{sW}, 2560
        s_mul_i32 s49, s{sS2}, 10240
        s_add_u32 s48, s48, s49
        s_add_u32 s48, s48, {WS_T2}''')
        for i in range(3):
            k(f'buffer_store_dwordx4 {Q(ones)}, v{la if i<2 else t+1}, {WS}, s48 offen offset:{1024*i} sc1')
    LGEN, LNP, LP2, LG, LQ = k.lab(), k.lab(), k.lab(), k.lab(), k.lab()
    L_A, L_B = L_WST, L_WST + 16 * 1040
    k(f's_cmp_ge_u32 s63, 54\ns_cbranch_scc1 {LGEN}')
    if OPT['up'] & 1:
        k('s_setprio 2')
    mod_addr(True, 1)
    k.wait(lg=0)
    srd(k, 40, pWM, D * 3456 * 2)
    mod_loads(6, 0, 6)
    c_load()
    srd(k, 36, pWS, WS_SIZE)
    load_tag(k, t + 3)
    mark(k, 11)
    if OPT['up'] == 3:
        k('s_setprio 0')
    mod_addr(True, 2)
    if OPT['prew']:
        k(f'v_mov_b32 v{t+1}, 0')
        for a in range(OPT['nm']):
            k(f's_mov_b32 s48, {a*0x20000}')
            for i in range(2):
                k(f'buffer_store_dword v{t+1}, v{mo+2+i}, {WS}, s48 offen sc1')
    flag_addr()
    warm([fl])
    k.wait(2 * OPT['nm'] * OPT['prew'] + OPT['warm'])
    mark(k, 10)
    if OPT['up'] & 2:
        k('s_setprio 2')
    mod_silu()
    finish_tag(k)
    mark(k, 1)
    bar(k, lg=0)
    mod_compute(True)
    mark(k, 2)
    xmark(k, 'u', 4)
    if OPT['a0']:
        k('s_barrier')
    k(f's_setprio 0\ns_mov_b32 s63, 999\ns_branch {LQ}')
    k.raw('; @cut')
    k.label(LGEN)
    k.fresh()
    k(f'''s_sub_u32 s61, s63, 54
    s_lshr_b32 s62, s61, 1
    s_add_u32 s62, s62, 18
    s_and_b32 s61, s61, 1''')

    def mats1():
        k(f'''v_cvt_f32_u32 v{g4}, v2
        v_mul_f32 v{g4}, 4.0, v{g4}
        v_cvt_f32_u32 v{lf}, v1
        v_cvt_f32_u32 v{t+9}, s{sJ}
        v_mul_f32 v{t+6}, {f32(1/16)}, v{lf}
        v_fmac_f32 v{t+6}, {f32(1/128)}, v{t+9}
        v_mul_f32 v{t+7}, v{g4}, v{t+6}''')
        dft_frag(k, t + 7, t + 6, Fa, Fa + 4, t, False)
        k(f'''s_lshl_b32 s48, s{sW}, 5
        s_add_u32 s48, s48, s{sJ}
        v_cvt_f32_u32 v{t+10}, s48
        v_mul_f32 v{t+10}, {f32(1/2048)}, v{t+10}
        v_mul_f32 v{t+6}, {f32(1/16)}, v{lf}
        v_add_f32 v{t+6}, v{t+6}, v{t+10}''')
        for tt in range(4):
            if tt:
                k(f'v_add_f32 v{t+6}, {f32(8/2048)}, v{t+6}')
            k(f'v_mul_f32 v{t+7}, v{g4}, v{t+6}')
            dft_frag(k, t + 7, t + 6, Fb + 8 * tt, Fb + 8 * tt + 4, t, False)

    def mats2():
        k(f'''v_mul_f32 v{t+6}, {f32(1/16)}, v{lf}
        v_fmac_f32 v{t+10}, {f32(1/16)}, v{g4}''')
        for tt in range(4):
            if tt:
                k(f'v_add_f32 v{t+10}, {f32(8/2048)}, v{t+10}')
            k(f'v_mul_f32 v{t+7}, v{lf}, v{t+10}')
            dft_frag(k, t + 7, t + 6, Fbi + 8 * tt, Fbi + 8 * tt + 4, t, True)
        k(f'''v_mul_f32 v{t+9}, {f32(1/128)}, v{t+9}
        v_fmac_f32 v{t+9}, {f32(1/16)}, v{g4}
        v_mul_f32 v{t+7}, v{lf}, v{t+9}''')
        dft_frag(k, t + 7, t + 6, Fai, Fai + 4, t, True)

    def p2_addr():
        k(f'''s_lshl_b32 s54, s{sW}, 8
        s_add_u32 s52, s35, s54
        s_add_u32 s52, s52, {WS_T1}
        s_lshl_b32 s53, s{sW}, 12
        s_add_u32 s53, s53, s35
        s_add_u32 s53, s53, {WS_WP}
        v_and_b32 v{t}, 3, v1
        v_lshrrev_b32 v{t+1}, 2, v1
        v_lshlrev_b32 v{t+2}, 6, v{t}
        v_lshl_add_u32 v{t+2}, v{t+1}, 4, v{t+2}
        v_lshl_add_u32 v{a5}, v2, 12, v{t+2}
        v_mul_u32_u24 v{a0}, 1040, v1
        v_lshl_add_u32 v{a0}, v2, 6, v{a0}
        v_add_u32 v{a0}, s54, v{a0}
        s_mul_i32 s48, s{sW}, {4*1040}
        v_add_u32 v{a2}, s48, v{la}
        v_lshl_add_u32 v{t+2}, v2, 2, v{t}
        v_mul_u32_u24 v{a3}, 1056, v{t+2}
        v_lshl_add_u32 v{a3}, v{t+1}, 4, v{a3}
        v_add_u32 v{a3}, s54, v{a3}
        s_mul_i32 s48, s{sW}, {4*1056}
        v_add_u32 v{a1}, s48, v{la}
        s_and_b32 s66, s51, 3
        s_xor_b32 s66, s66, s60
        s_lshl_b32 s66, s66, 6
        s_lshl_b32 s48, s51, 8
        s_add_u32 s66, s66, s48
        s_mul_i32 s48, s{sW}, {4*10240}
        s_add_u32 s66, s66, s48
        s_add_u32 s66, s66, {WS_T2}
        s_add_u32 s67, s66, {16*10240}
        s_add_u32 s68, s66, {32*10240}
        s_add_u32 s69, s66, {48*10240}
        s_lshr_b32 s48, s51, 2
        s_and_b32 s48, s48, 2
        v_xor_b32 v{t}, s48, v{t}
        v_lshl_add_u32 v{t+1}, v2, 6, v{t+1}
        v_mul_u32_u24 v{a4}, 10240, v{t+1}
        v_lshl_add_u32 v{a4}, v{t}, 4, v{a4}''')
    wl = f'buffer_load_dword v{fl+1}, v{t+11}, {WS}, s64 offen sc1'

    def wpre():
        k(f'''s_lshl_b32 s48, s{sW}, 5
        s_add_u32 s48, s48, s{sJ}
        v_lshrrev_b32 v{t+4}, 2, v1
        v_lshl_add_u32 v{t+4}, v{t+4}, 3, s48
        s_cmp_lt_u32 s60, 2
        s_cselect_b32 s48, 1, -1
        v_mul_i32_i24 v{t+4}, s48, v{t+4}
        v_and_b32 v{t+4}, 127, v{t+4}
        v_and_b32 v{t+3}, 3, v1
        v_lshl_add_u32 v{t+4}, v{t+4}, 2, v{t+3}
        v_lshlrev_b32 v{t+11}, 4, v{t+4}
        s_mov_b32 s64, {WS_FLAG}''')
        L1 = skip_unless(sR, 20, 'ge')
        k(wl)
        endif(L1)

    def wpost():
        p2_addr()
        k(f'''s_lshr_b32 s65, s{sJ}, 1
        s_lshl_b32 s65, s65, 16
        s_add_u32 s65, s65, {WS_FL2}
        s_lshl_b32 s48, s{sW}, {6+OPT['fs']}
        s_add_u32 s65, s65, s48
        v_lshlrev_b32 v{g4}, {OPT['fs']}, v0''')
    LB, LJ = k.lab(), k.lab()
    k(f's_cmp_ge_u32 s{sR}, 16\ns_cbranch_scc1 {LB}')
    wp_addr()
    k.wait(lg=0)
    srd(k, 36, pWS, WS_SIZE)
    srd(k, 40, pWM, D * 3456 * 2)
    load_tag(k, t)
    flag_addr()
    warm([fl, fl + 2])

    def clear_xch():
        k(f'''v_mov_b64 {P(ones)}, -1
        v_mov_b64 {P(ones+2)}, -1
        s_lshl_b32 s61, s2, 2
        s_add_u32 s61, s61, s{sW}
        s_mul_i32 s61, s61, {14*1024}
        s_add_u32 s61, s61, {WS_XCH}''')
        for i in range(14):
            k(f'buffer_store_dwordx4 {Q(ones)}, v{la}, {WS}, s61 offen offset:{1024*(i&3)} sc1')
            if i & 3 == 3:
                k('s_add_u32 s61, s61, 4096')
    if OPT['xc'] == 1:
        clear_xch()
    if OPT['wat'] == 0:
        wp_loads()
    if OPT['wat'] >= 2:
        mats1()
    if OPT['wat'] == 3:
        wp_loads()
    mark(k, 1)
    k('s_barrier')
    if OPT['pf1']:
        srd(k, 44, pW1, S * F * 2)
        k(f's_lshl_b32 s61, s{sW}, 4\ns_add_u32 s61, s61, s{sR}')
        pf_loop(k, 1, 61, 64, 16 * OPT['pf1'], ld, 44)
    if OPT['wat'] in (1, 2):
        wp_loads()
    if OPT['xc'] == 2:
        clear_xch()
    wp_gather()
    if OPT['wat'] < 2:
        mats1()
    k.wait(0)
    mark(k, 10)
    finish_tag(k)
    wp_run()
    mark(k, 2)
    k(f's_branch {LQ}')
    k.label(LB)
    k.fresh()
    mod_addr(False)
    k.wait(lg=0)
    srd(k, 36, pWS, WS_SIZE)
    srd(k, 40, pWM, D * 3456 * 2)
    load_tag(k, t)
    c_load()
    flag_addr()
    warm([fl, fl + 2, mo + 2])
    L1 = skip_unless(63, 126, 'ge')
    mod_loads(9, 0, OPT['mb'])
    endif(L1)
    mark(k, 1)
    k('s_barrier')
    k.wait(0)
    L1 = skip_unless(63, 126, 'ge')
    mod_loads(9, OPT['mb'], 9)
    endif(L1)
    finish_tag(k)
    mod_silu()
    L1 = skip_unless(sR, 20, 'ge')
    mats1()
    endif(L1)
    k.label(LQ)
    k.fresh()
    mark(k, 3)
    bar(k, lg=0)
    L1 = skip_unless(sR, 20, 'ge')
    if OPT['wfl']:
        k.wait(0)
        k(f'buffer_store_dword v{vTAG}, v{fl+1}, {WS}, 0 offen sc1')
    mats2()
    endif(L1)
    tag(k, 'touch h1')
    tag(k, 'region h1')
    k.wait(0)
    if OPT['wearly']:
        wpre()
    mark(k, 2)
    k('s_barrier')
    if OPT.get('mk') != 'u':
        mark(k, 10)
    k(f'buffer_store_dword v{vTAG}, v{fl}, {WS}, 0 offen sc1')
    L1 = skip_unless(63, 126, 'ge')
    mod_compute(False)
    endif(L1)
    k(f's_cmp_lt_u32 s{sR}, 20\ns_cbranch_scc1 {LP2}')
    srd(k, 52, pW1, S * F * 2)
    k(f'''s_mul_i32 s58, s{sW}, 12
    s_add_u32 s58, s58, s{sR}
    s_add_u32 s58, s58, {16*OPT['pf1'] - 20}''')
    if OPT['pfd']:
        k.wait(0)
    if OPT['pfd'] > 1:
        k(f's_sleep {OPT["pfd"]}')
    pf_loop(k, 1, 58, 48, OPT['pf2'], dum, 52)
    if OPT['pf9']:
        srd(k, 64, pW2, S * F * 2)
        k(f'''s_mul_i32 s59, s{sW}, 12
        s_add_u32 s59, s59, s{sR}
        s_sub_u32 s59, s59, 20''')
        pf_loop(k, 2, 59, 48, OPT['pf9'], dum, 64)
    k.wait(0)
    mark(k, 5)
    k('s_barrier')
    k(f's_branch {LG}')
    tag(k, 'target')
    k.label(LP2)
    k.fresh()
    if OPT['hp']:
        k('s_setprio 1')
    unp = [f'v_lshlrev_b32 v{wv+8*(x>>2)+(x&3)}, 16, v{wp+x}\nv_and_b32 v{wv+8*(x>>2)+4+(x&3)}, 0xffff0000, v{wp+x}' for x in range(16)]
    if OPT['wfl']:
        if not OPT['wearly']:
            wpre()
        wpost()
        if OPT['wearly']:
            k.wait(1)
        L1 = k.lab()
        check_tags(k, [fl + 1])()
        k(f's_cbranch_vccz {L1}')
        poll(k, [wl], check_tags(k, [fl + 1]))
        k.label(L1)
        for tt in range(4):
            k(f'buffer_load_dwordx4 {Q(wp+4*tt)}, v{la}, {WS}, s53 offen offset:{1024*tt} sc1')
        k.wait({1: 0, 2: 3, 3: 4}[OPT['wfl']])
        mark(k, 11)
        poll(k, [f'buffer_load_dword v{t}, v{g4}, {WS}, s65 offen sc1'], check_tags(k, [t]), masked=True, alt=([65], 16384, OPT['na']))
        mark(k, 1)
        for j in range(4):
            k(f'buffer_load_dwordx4 {Q(ld+4*j)}, v{a5}, {WS}, s52 offen offset:{1024*j} sc1')
        for x in unp:
            k(x)
        unp = [''] * 16
        if OPT['stamp']:
            k.wait(0)
    else:
        p2_addr()
        k(f'''s_lshr_b32 s64, s{sJ}, 1
        s_lshl_b32 s64, s64, 16
        s_add_u32 s64, s64, {WS_FL2}
        s_lshl_b32 s48, s{sW}, {6+OPT['fs']}
        s_add_u32 s65, s64, s48
        v_lshlrev_b32 v{t+1}, {OPT['fs']}, v0
        s_lshl_b32 s48, s{sW}, 5
        s_add_u32 s48, s48, s{sJ}
        v_and_b32 v{t+2}, 3, v0
        v_lshl_add_u32 v{t+2}, v{t+2}, 3, s48
        s_cmp_lt_u32 s60, 2
        s_cselect_b32 s48, 1, -1
        v_mul_i32_i24 v{t+2}, s48, v{t+2}
        v_bfe_u32 v{t+3}, v{t+2}, 2, 2
        v_bfe_u32 v{t+4}, v{t+2}, 4, 3
        v_and_b32 v{t+2}, 3, v{t+2}
        v_lshl_add_u32 v{t+2}, v{t+3}, 6, v{t+2}
        v_lshl_add_u32 v{t+2}, v{t+4}, 3, v{t+2}
        v_lshlrev_b32 v{t+2}, {OPT['fs']}, v{t+2}''')
        k.wait(0)
        mark(k, 11)
        poll(k, [f'buffer_load_dword v{t}, v{t+1}, {WS}, s65 offen sc1', f'buffer_load_dword v{t+3}, v{t+2}, {WS}, s64 offen sc1'],
             check_tags(k, [t, t + 3]), masked=True, alt=([64, 65], 16384, OPT['na']))
        mark(k, 1)
        for j in range(4):
            k(f'buffer_load_dwordx4 {Q(ld+4*j)}, v{a5}, {WS}, s52 offen offset:{1024*j} sc1')
        for tt in range(4):
            k(f'buffer_load_dwordx4 {Q(wp+4*tt)}, v{la}, {WS}, s53 offen offset:{1024*tt} sc1')
    if OPT['stamp']:
        k.wait(4)
    mark(k, 4)
    for i in range(4):
        for j in range(i + 1, 4):
            k(f'v_swap_b32 v{ld+4*i+j}, v{ld+4*j+i}')
        for ri in range(2):
            k(f'{MF} {Q(acc+8*i+4*ri)}, {Q(ld+4*i)}, {Q(Fa+4*ri)}, 0')
    for ci in range(4):
        for j in range(4):
            k(f'v_cvt_pk_bf16_f32 v{pk+4*ci+j}, v{acc+8*ci+j}, v{acc+8*ci+4+j}')
        k(f'ds_write_b128 v{a0}, {Q(pk+4*ci)} offset:{L_A+16*ci}')
    bar(k, lg=0)
    for tt in range(4):
        k(f'ds_read_b128 {Q(ld+4*tt)}, v{a2} offset:{L_A+1040*tt}')
    cue = f'buffer_store_dword v{vTAG}, v{fl+2}, {WS}, 0 offen sc1'
    if OPT['cue_at'] == 0:
        k(cue)
    for x in unp[:8]:
        k(x)
    for tt in range(4):
        for ri in range(2):
            k(f'{MF} {Q(acc+8*tt+4*ri)}, {Q(Fb+8*tt+4*ri)}, {Q(ld+4*tt)}, 0')
            k(unp[8 + 2 * tt + ri])
    for tt in range(4):
        for p in range(2):
            re, im, wr, wi = acc + 8 * tt + 2 * p, acc + 8 * tt + 4 + 2 * p, wv + 8 * tt + 2 * p, wv + 8 * tt + 4 + 2 * p
            o = t + 4 * p
            k(f'''v_pk_mul_f32 {P(o)}, {P(re)}, {P(wr)}
            v_pk_mul_f32 {P(o+2)}, {P(im)}, {P(wr)}
            v_pk_fma_f32 {P(o)}, {P(im)}, {P(wi)}, {P(o)} neg_lo:[1,0,0] neg_hi:[1,0,0]
            v_pk_fma_f32 {P(o+2)}, {P(re)}, {P(wi)}, {P(o+2)}
            v_cvt_pk_bf16_f32 v{pk+4*tt+2*p}, v{o}, v{o+2}
            v_cvt_pk_bf16_f32 v{pk+4*tt+2*p+1}, v{o+1}, v{o+3}''')
            if tt:
                k(f'{MF} {Q(acc+8*(tt-1)+4*p)}, {Q(Fbi+8*(tt-1)+4*p)}, {Q(pk+4*(tt-1))}, 0')
            if OPT['cue_at'] == 4 and (tt, p) == (2, 1):
                k(cue)
    for tt in range(4):
        if tt == 1:
            for ri in range(2):
                k(f'{MF} {Q(acc+24+4*ri)}, {Q(Fbi+24+4*ri)}, {Q(pk+12)}, 0')
        for j in range(4):
            k(f'v_cvt_pk_bf16_f32 v{ld+4*j+tt}, v{acc+8*tt+j}, v{acc+8*tt+4+j}')
            if tt == 3:
                k(f'ds_write_b128 v{a3}, {Q(ld+4*j)} offset:{L_B+64*j}')
    bar(k, lg=0)
    for ci in range(4):
        k(f'ds_read_b128 {Q(pk+4*ci)}, v{a1} offset:{L_B+1056*ci}')
    if OPT['cue_at'] == 1:
        k(cue)
    for ci in range(4):
        for ri in range(2):
            k(f'{MF} {Q(acc+8*ci+4*ri)}, {Q(Fai+4*ri)}, {Q(pk+4*ci)}, 0')
    for ci in range(4):
        if ci == 3 and OPT['sp1'] and OPT['cl3'] == 1:
            k('s_barrier')
        for j in range(4):
            k(f'v_cvt_pk_bf16_f32 v{ld+4*j+ci}, v{acc+8*ci+4+j}, v{acc+8*ci+j}')
            if ci == 3:
                k(f'buffer_store_dwordx4 {Q(ld+4*j)}, v{a4}, {WS}, s{66+j} offen sc1')
    if OPT['cue_at'] == 2:
        k(cue)
    mark(k, 5)
    if OPT['hp']:
        k('s_setprio 0')
    bar(k, None if OPT['ec2'] else 0)
    if OPT['cue_at'] == 3:
        k(cue)
    tag(k, 'region -')
    k.label(LG)
    if OPT.get('nodma'):
        k.drop = lambda x: x.endswith(' lds') and (OPT['nodma'] == 1 or (OPT['nodma'] == 2) == ('sc1' in x))
    k.fresh()
    V.p = 4
    t = V(4); la_ = V(); fl = V(2); da = V(9); xa = V(6); xd = V(24, 4); pv = V(2); xf_ = V(); db = V(9); fb = V(3); xr_ = V(5); vr = V(10)
    k(f'v_lshlrev_b32 v{la_}, 4, v0')
    la = la_
    g1_tile(k)
    g2_tile(k)
    srd(k, 40, pW1, S * F * 2)
    srd(k, 44, pW2, S * F * 2)
    k(f'''s_and_b32 s62, s{sW}, 1
    s_and_b32 s63, s{sJ}, {OPT['xm']}
    s_mul_i32 s63, s63, {OPT["xst"]}
    s_add_u32 s63, s63, {OPT['xo']}
    s_mul_i32 s48, s51, {OPT['rot1']}
    s_add_u32 s63, s63, s48
    s_and_b32 s63, s63, 31
    s_mov_b32 s64, 0
    s_lshl_b32 s68, s62, 13''')

    def start_off(dst, hi, base, first, mul, n):
        k(f's_mul_i32 s{dst}, s{first}, {mul}\ns_add_u32 s{dst}, s{dst}, s{base}\ns_add_u32 s{hi}, s{base}, {n*mul}')

    def w_addr(g, da, lo):
        jst, gst, qoff = ((256 * 9216, 9216, 1024 * 9216), (4096, 16384, 16 * 4096))[g]
        k(f'''v_lshlrev_b32 v{t+1}, 1, v2
        v_xor_b32 v{t+1}, v{t+1}, v1
        v_xor_b32 v{t+2}, 8, v{t+1}
        v_mul_u32_u24 v{t}, {jst}, v2
        v_lshl_add_u32 v{da}, v{t+1}, 4, v{t}
        v_lshl_add_u32 v{da+1}, v{t+2}, 4, v{t}
        v_add_u32 v{da+2}, {2*(gst-1024)}, v{da}
        v_add_u32 v{da+3}, {3*(gst-1024)}, v{da+1}
        v_add_u32 v{da+1}, {gst-1024}, v{da+1}''')
        for i in range(4):
            k(f'v_add_u32 v{da+4+i}, {qoff}, v{da+i}')
        if g == 0:
            k(f's_mul_i32 s49, s62, {4*9216}\ns_lshl_b32 s48, s51, 8\ns_add_u32 s49, s49, s48')
            start_off(lo, lo + 1, 49, 63, 8 * 9216, 32)
        else:
            k(f'''s_mul_i32 s49, s53, {1152*4096}
            s_lshl_b32 s48, s62, 17
            s_add_u32 s49, s49, s48
            s_lshl_b32 s48, s54, 8
            s_add_u32 s49, s49, s48''')
            start_off(lo, lo + 1, 49, 64, 64 * 4096, NST2)

    def woff(n, mul, NST, lo=60, pair=False, d=50):
        if pair:
            p = f's_mul_i32 s{d}, s62, {(kappa(n+1, NST)-kappa(n, NST))*mul}\ns_add_u32 s{d}, s{d}, s{lo}\ns_add_u32 s{d}, s{d}, {kappa(n, NST)*mul}\n'
        else:
            p = f's_add_u32 s{d}, s{lo}, {kappa(n, NST)*mul}\n'
        return p + f's_cmp_ge_u32 s{d}, s{lo+1}\ns_cselect_b32 s48, {NST*mul}, 0\ns_sub_u32 s{d}, s{d}, s48\n'

    class Stream:
        def __init__(st, items):
            st.items, st.n, st.seq = items, 0, []

        def issue(st, upto, now):
            while st.n < min(upto, len(st.items)):
                need, free, txt = st.items[st.n]
                if free > now:
                    break
                k(txt)
                st.seq.append(k.stats.get('vmem', 0))
                st.n += 1

        def more(st, n):
            st.issue(st.n + n, -1)

        def run(st, NST, quota, last_bar=True, mk=None, hooks={}, verify={}, pre={}):
            landed = -1
            log = []
            for i in range(NST):
                nd = [x for x, it in enumerate(st.items) if it[0] <= i]
                vm = None
                if nd and nd[-1] > landed:
                    assert nd[-1] < st.n, (i, nd[-1], st.n)
                    landed = nd[-1]
                    vm = k.stats.get('vmem', 0) - st.seq[landed]
                if i in verify:
                    if vm is not None:
                        k.wait(vm)
                    verify[i]()
                    k('s_barrier')
                else:
                    bar(k, vm)
                if mk and OPT['stamp'] and i == 0:
                    mark(k, mk)
                    k.raw('    s_memtime s[98:99]')
                if mk and OPT.get('trace'):
                    k(f's_memtime s[14:15]\nv_writelane_b32 v{200 + (mk == 8)}, s14, {i}')
                if landed == len(st.items) - 1 and not last_bar:
                    break
                if i in pre:
                    pre[i]()
                n = st.n
                st.issue(quota(i), i)
                log.append((vm, st.n - n))
                if i in hooks:
                    n = k.stats['vmem']
                    hooks[i]()
                    k.stats['vmem'] = n + hooks.get('min', 0)
            if OPT.get('log'):
                print(log, file=sys.stderr)
            if mk and OPT['stamp']:
                mark(k, mk + 1)
                k('s_memtime s[100:101]')
                k(f's_sub_u32 s{84+mk}, s100, s98')

    def adv(s, inc, span, hi):
        return f's_add_u32 s{s}, s{s}, {inc}\ns_cmp_ge_u32 s{s}, s{hi}\ns_cselect_b32 s48, {span}, 0\ns_sub_u32 s{s}, s{s}, s48\n'

    def spread(n0, n1, i0, i1):
        return lambda i: n0 + int(round((n1 - n0) * max(0, min(i, i1) + 1 - i0) / (i1 + 1 - i0)))
    LHW = k.lab()
    if OPT.get('hprio'):
        k(f's_setprio {OPT["hprio"]}')
    k(f's_cmp_ge_u32 s{sW}, 2\ns_cbranch_scc1 {LHW}')
    x1f = f'buffer_load_dword v{fb+2}, v{fb+1}, {WS}, 0 offen sc1'

    def setup_g1():
        h3_idx(k, 56)
        publish(k, 2, 56, fl)
        k(f's_lshl_b32 s56, s52, 6\ns_add_u32 s56, s56, s51')
        publish(k, 3, 56, fl + 1, ncue=5, cue_add=27)
        k(f'''s_lshr_b32 s65, s{sJ}, 2
        s_lshl_b32 s65, s65, 16
        s_add_u32 s66, s65, {WS_FL2+3*0x40000}
        s_lshl_b32 s48, s62, {7+OPT['fs']}
        s_add_u32 s65, s65, s48
        s_add_u32 s65, s65, {WS_FL2+2*0x40000}
        s_add_u32 s69, s65, {64<<OPT['fs']}
        v_lshlrev_b32 v{xa+5}, {OPT['fs']}, v0
        s_mul_i32 s67, s52, {96*16}
        s_mul_i32 s48, s62, {4*9216}
        s_add_u32 s67, s67, s48
        s_add_u32 s67, s67, {WS_H2}
        v_add_u32 v{da+2}, {9216-1536}, v{la}
        v_cmp_gt_u32 vcc, 32, v0
        v_cndmask_b32 v{da+1}, v{da+2}, v{la}, vcc
        v_add_u32 v{da+3}, {2*9216}, v{la}
        v_add_u32 v{da+4}, {2*9216}, v{da+1}
        v_add_u32 v{da+5}, {2*9216}, v{da+2}
        s_mul_i32 s68, s62, 6144''')
        start_off(58, 59, 67, 63, 8 * 9216, 32)

    def setup_g2():
        for i in range(9):
            k(f'''v_add_u32 v{vr}, {64*i}, v0
            v_mul_u32_u24 v{vr+1}, 1821, v{vr}
            v_lshrrev_b32 v{vr+1}, 18, v{vr+1}
            v_mul_u32_u24 v{vr+1}, {9216-2304}, v{vr+1}
            v_lshl_add_u32 v{vr+1}, v{vr}, 4, v{vr+1}
            v_subrev_u32 v{db+i}, {1024*(i&3)}, v{vr+1}''')
        k(f'''s_mul_i32 s48, s55, 3
        s_add_u32 s49, s48, 2
        s_lshr_b32 s48, s48, 1
        s_lshr_b32 s49, s49, 1
        v_mov_b32 v{vr}, s48
        v_mov_b32 v{vr+1}, s49
        v_cmp_gt_u32 vcc, 32, v0
        v_cndmask_b32 v{vr}, v{vr+1}, v{vr}, vcc
        v_and_b32 v{vr+1}, 31, v0
        v_min_u32 v{vr+1}, 8, v{vr+1}
        v_lshl_add_u32 v{vr}, v{vr}, 6, v{vr+1}
        s_mul_i32 s48, s53, 9
        v_add_u32 v{vr}, s48, v{vr}
        v_lshlrev_b32 v{fb}, {OPT['fs']}, v{vr}''')
        k(f'''s_lshr_b32 s48, s54, 3
        s_lshl_b32 s48, s48, 2
        s_and_b32 s49, s54, 1
        s_lshl_b32 s49, s49, 1
        s_add_u32 s48, s48, s49
        s_add_u32 s48, s48, s62
        s_lshl_b32 s48, s48, 13
        s_add_u32 s48, s48, {WS_FL2 + 0x40000}
        v_lshl_add_u32 v{fb+1}, v0, 7, s48
        v_mov_b32 v{fb+2}, 0''')
        k(f'''s_lshl_b32 s48, s54, 7
        s_lshr_b32 s49, s53, 1
        s_lshl_b32 s49, s49, 4
        s_add_u32 s48, s48, s49
        s_mul_i32 s48, s48, 1152
        s_mul_i32 s49, s55, 288
        s_add_u32 s48, s48, s49
        s_and_b32 s49, s53, 1
        s_mul_i32 s49, s49, 144
        s_add_u32 s48, s48, s49
        s_add_u32 s12, s48, {WS_X1}
        s_lshl_b32 s13, s62, 6''')
        for i in range(5):
            k(f'''v_add_u32 v{vr}, s13, v0
            v_mul_u32_u24 v{vr+1}, 911, v{vr}
            v_lshrrev_b32 v{vr+1}, 13, v{vr+1}
            v_mul_u32_u24 v{vr+2}, 9, v{vr+1}
            v_sub_u32 v{vr+2}, v{vr}, v{vr+2}
            v_and_b32 v{vr}, 48, v{vr+1}
            v_add_u32 v{vr+1}, v{vr+1}, v{vr}
            v_mul_u32_u24 v{vr+1}, 1152, v{vr+1}
            v_lshl_add_u32 v{vr+1}, v{vr+2}, 4, v{vr+1}
            v_add_u32 v{xr_+i}, s12, v{vr+1}
            s_add_u32 s13, s13, 128''')
        k(f'''s_mul_i32 s48, s55, 576
        s_and_b32 s49, s53, 1
        s_mul_i32 s49, s49, 288
        s_add_u32 s48, s48, s49
        s_add_u32 s48, s48, {WS_MOD+5*2304}
        v_min_u32 v{vr}, {17*16}, v{la}
        v_add_u32 v{vr}, s48, v{vr}
        s_cmp_eq_u32 s62, 1
        s_cselect_b64 vcc, -1, 0
        v_cndmask_b32 v{xr_+4}, v{xr_+4}, v{vr}, vcc''')

    def setup_x1():
        k(f's_mul_i32 s56, s62, 288\ns_mul_i32 s57, s{sS2}, 1152\ns_add_u32 s57, s57, {WS_X1}')
        for i in range(5):
            k(f'''v_add_u32 v{t}, {64*i}, v0
            v_min_u32 v{t}, 287, v{t}
            v_add_u32 v{t}, s56, v{t}
            v_mul_u32_u24 v{t+1}, 911, v{t}
            v_lshrrev_b32 v{t+1}, 16, v{t+1}
            v_mul_u32_u24 v{t+1}, {256*1152 - 1152}, v{t+1}
            v_lshl_add_u32 v{xa+i}, v{t}, 4, v{t+1}''')
            if i in (0, 4):
                k(f'v_lshlrev_b32 v{t}, 4, v{t}\nv_add_u32 v{t+2+i//4}, {L_Z}, v{t}')
    if not OPT['lz']:
        setup_g1()
        setup_g2()
        setup_x1()
    tag(k, 'touch a1')
    tag(k, 'region a1')
    def clear_u():
        if OPT['sp2']:
            c0, n = spec_range(1)
            k(f'v_mov_b64 {P(xd)}, -1\nv_mov_b64 {P(xd+2)}, -1\ns_lshl_b32 s56, s2, 1\ns_add_u32 s56, s56, s62')

            def addr():
                k('s_mov_b32 s49, s48')
                for g in range(1, 4):
                    k(f's_cmp_ge_u32 s49, {72*n*g}\ns_cselect_b32 s50, {72*(NST2-n)}, 0\ns_add_u32 s48, s48, s50')
                k(f's_lshl_b32 s48, s48, 10\ns_add_u32 s48, s48, {WS_U + c0*73728}')
            clear_loop(k, 56, 512, 288 * n, addr, xd, la)
    if OPT['cl4'] == 0:
        clear_u()
    n7 = OPT['pf2'] + 10 * OPT['pf3']
    k(f'''s_mul_i32 s56, s62, 27
    s_add_u32 s56, s56, s{sR}
    s_add_u32 s56, s56, {n7}
    s_cmp_lt_u32 s{sR}, 27
    s_cselect_b32 s56, s56, 999
    s_barrier''')
    if OPT['pf7']:
        pf_loop(k, 1, 56, 54, n7 + 27 * OPT['pf7'], xd + 20, 40)
    if OPT['cl4'] == 1:
        clear_u()

    def clear_own_xch():
        k(f'''v_mov_b64 {P(xd)}, -1
        v_mov_b64 {P(xd+2)}, -1
        s_mul_i32 s56, s2, {XB}
        s_lshl_b32 s48, s62, 10
        s_add_u32 s56, s56, s48
        s_add_u32 s56, s56, {WS_XCH}''')
        for x in range(14):
            if x < 13:
                k(f's_add_u32 s48, s56, {2048*x}')
            else:
                k(f's_mul_i32 s48, s62, -2048\ns_add_u32 s48, s48, {2048*13}\ns_add_u32 s48, s48, s56')
            k(f'buffer_store_dwordx4 {Q(xd)}, v{la}, {WS}, s48 offen sc1')
    if OPT['xc'] == 4:
        clear_own_xch()
    if OPT['lz']:
        setup_g1()
    k('s_barrier')
    if OPT['cl4'] == 2:
        clear_u()
    if OPT['xc'] == 5:
        clear_own_xch()
    if OPT['lz']:
        setup_x1()
    k('s_barrier\ns_barrier')
    for i in range(5):
        k(f'ds_read_b128 {Q(xd+4*i)}, v{t+2+i//4} offset:{1024*(i&3)}')
    def x1_stores():
        for i in range(5):
            k(f'buffer_store_dwordx4 {Q(xd+4*i)}, v{xa+i}, {WS}, s57 offen sc1')

    def p3_publish():
        if not OPT['xdef']:
            bar(k, 0)
            do_publish(k, fl)
            return
        bar(k, lg=0)
        k(f'buffer_store_dword v{vTAG}, v{fl}, {WS}, 0 offen sc1')
        nx = len(reg_stages(0)) - 6
        if OPT['lz']:
            setup_g2()
        if OPT['xdef'] == 2:
            k.wait(0)
        if nx:
            k('s_barrier')
        x1_stores()
        if nx:
            k('s_barrier')
        k.wait(0)
        k(f'buffer_store_dwordx4 {Q(xd+20)}, v{xf_}, {WS}, 0 offen sc1')
    if not OPT['xdef']:
        x1_stores()
    else:
        k(f'''s_lshl_b32 s48, s62, 8
        s_add_u32 s48, s48, s{sS2}
        s_lshl_b32 s48, s48, 7
        s_add_u32 s48, s48, {WS_FL2 + 0x40000}
        v_add_u32 v{xf_}, s48, v{la}
        v_cmp_gt_u32 vcc, 8, v0
        v_mov_b32 v{t}, {OOB}
        v_cndmask_b32 v{xf_}, v{t}, v{xf_}, vcc''')
        k.wait(0)
        for i in range(4):
            k(f'v_mov_b32 v{xd+20+i}, v{vTAG}')
    LN, LJ = k.lab(), k.lab()
    k(f's_cmp_ge_u32 s{sR}, 27\ns_cbranch_scc1 {LN}')
    st0 = (list(k.vm), list(k.lg))
    if OPT['rf']:
        k('s_barrier')

    def act_text(g, n, i, so):
        if g == 0:
            pre = f's_add_u32 m0, s68, {L_ACT + (n % 5)*12288 + 1024*i}\n' if i % 3 == 0 else ''
            return pre + f'buffer_load_dwordx4 v{la if i==0 else da+i}, {WS}, s{so} offen offset:{1024*(i%3)} {OPT["fa1"].replace("_", " ")} lds'
        pre = f's_add_u32 m0, s57, {L_ACT2 + (n % NSA2)*AST2 + 1024*i}\n' if i % 4 == 0 else ''
        return pre + f'buffer_load_dwordx4 v{db+i}, {WS}, s{so} offen offset:{1024*(i&3)} {OPT["fa2"].replace("_", " ")} lds'

    def verifier(g, n):
        def f():
            ni, stg = ((6, 12288), (9, AST2))[g]
            L, E = k.lab(), k.lab()
            k.label(L)
            for i in range(ni):
                k(f'ds_read_b32 v{vr+i}, v{vr+9} offset:{n*stg + 1024*i}' if n < 4 or g == 0 else f'ds_read_b32 v{vr+i}, v90 offset:{(n-4)*stg + 1024*i}')
            for i in range(1, ni, 2):
                k(f'v_max3_u32 v{vr}, v{vr}, v{vr+i}, v{vr+min(i+1, ni-1)}')
            k(f'v_cmp_eq_u32 vcc, -1, v{vr}\ns_cbranch_vccz {E}')
            k(f's_sub_u32 s{sBUD}, s{sBUD}, 1\ns_cbranch_scc1 {E}')
            cnt, vm = k.stats['vmem'], k.vm
            k('s_mov_b32 s14, m0')
            if OPT['sl3']:
                k(f's_sleep {OPT["sl3"]}')
            k(woff(n, 8 * 9216, (32, NST2)[g], 58, False, 15))
            for i in range(ni):
                k(act_text(g, n, i, 15))
            k('s_mov_b32 m0, s14')
            k.wait(0)
            k(f's_branch {L}')
            k.stats['vmem'], k.vm = cnt, vm
            k.label(E)
            k(f's_max_i32 s{sBUD}, s{sBUD}, 0')
        return f

    def late_check(loads, regs, mk):
        seq = []

        def issue():
            for l in loads:
                k(l)
            seq.append(k.stats['vmem'])

        def check():
            k.wait(k.stats['vmem'] - seq[0])
            L = k.lab()
            check_tags(k, regs)()
            k(f's_cbranch_vccz {L}')
            cnt, vm = k.stats['vmem'], k.vm
            poll(k, loads, check_tags(k, regs), masked=True)
            k.stats['vmem'], k.vm = cnt, vm
            k.label(L)
            mark(k, mk)
        return issue, check
    h3l = [f'buffer_load_dword v{t}, v{xa+5}, {WS}, s65 offen sc1', f'buffer_load_dword v{t+1}, v{xa+5}, {WS}, s69 offen sc1']
    items = []
    for n in range(32):
        for i in range(6):
            post = '\n' + woff(n + 1, 8 * 9216, 32, 58) if i == 5 and n < 31 else ''
            items.append((n, max(n - 5 + 2, OPT['sp1']) if n >= 5 else -9, act_text(0, n, i, 50) + post))
    st = Stream(items)

    def stag_setup(n0, g, per, i0, span, gap, lim=288):
        if not per:
            return {}
        assert n0 >= 0 and per <= 4
        mask, nf = leaders(g)
        w2_lane(k, pv, 35)
        k(f'''s_mov_b32 s49, s35
        s_mul_i32 s48, s62, {1 if OPT['jit'] else nf}
        s_add_u32 s49, s49, s48
        s_bfm_b32 s48, s{sR}, 0
        s_and_b32 s48, s48, {mask}
        s_bcnt1_i32_b32 s48, s48
        s_sub_u32 s12, s{sR}, s48''')
        bs = OPT['jit'] or 2
        for x in range(per):
            if OPT['jit']:
                x0 = x - x % bs
                k(f's_mul_i32 s35, s12, {2*min(bs, per-x0)}\ns_add_u32 s35, s35, {n0 + 2*x0*nf + 2*(x-x0)}')
            else:
                k(f's_add_u32 s35, s12, {n0 + 2*x*nf}')
            k(f'''s_add_u32 s35, s35, s49
            s_min_u32 s35, s35, {lim-1}
            s_lshl_b32 s{8+x}, s35, 14''')
        k(f'''s_mul_i32 s35, s12, {span*256//nf}
        s_lshr_b32 s35, s35, 8
        s_add_u32 s35, s35, {i0}
        s_mov_b32 s48, {mask}
        s_bitcmp1_b32 s48, s{sR}
        s_cselect_b32 s35, 999, s35''')

        def hook(i):
            def f():
                for x0 in range(0, per, bs):
                    q = i - gap * (x0 // bs)
                    if i0 <= q < i0 + span:
                        L = k.lab()
                        k(f's_cmp_lg_u32 s35, {q}\ns_cbranch_scc1 {L}')
                        for x in range(x0, min(x0 + bs, per)):
                            k.raw(f'    buffer_load_dword v{pv+1}, v{pv}, s[44:47], s{8+x} offen' + (' nt' if OPT['pfnt'] & (4 << g) else ''))
                        k.label(L)
            return f
        return {i: hook(i) for i in range(i0, i0 + span + gap * ((per - 1) // bs))}
    n8 = 288 - 2 * leaders(1)[1] * OPT['pf8']
    hooks = stag_setup(n8 - 2 * leaders(0)[1] * OPT['pf4'] + OPT['n4x'], 0, OPT['pf4'], *OPT['pf4at'], lim=n8)
    k(woff(0, 8 * 9216, 32, 58))
    verify, pre = {}, {}
    if OPT['sp1']:
        k(f's_add_u32 s48, s68, {L_ACT}\nv_add_u32 v{vr+9}, s48, v{la}')
        bar(k, lg=0)
        k(f'buffer_store_dword v{vTAG}, v{fl}, {WS}, 0 offen sc1')
        if OPT['spw']:
            k.wait(0)
        mark(k, 6)
        verify = {n: verifier(0, n) for n in range(5)}
        pre[OPT['sp1'] - 1], pre[OPT['sp1']] = late_check(h3l, [t, t + 1], 7)
        pre[5] = x1_stores
        pre[10] = lambda: k(f'buffer_store_dwordx4 {Q(xd+20)}, v{xf_}, {WS}, 0 offen sc1')
    else:
        p3_publish()
        mark(k, 6)
        poll(k, h3l, check_tags(k, [t, t + 1]), masked=True, alt=([65, 69], 16384, OPT['na']))
        mark(k, 7)
    st.more(6 * OPT['a1pre'])
    if OPT['xdef']:
        assert 28 not in hooks
        hooks[28] = lambda: k(x1f)
    st.run(32, lambda i: 6 * (i + 4), hooks=hooks, verify=verify, pre=pre)
    k(f's_branch {LJ}')
    k.label(LN)
    k.fresh()
    if OPT['xdef']:
        k.wait(lg=0)
        x1_stores()
        bar(k, 0)
        k(f'buffer_store_dword v{vTAG}, v{fl}, {WS}, 0 offen sc1')
        k(f'buffer_store_dwordx4 {Q(xd+20)}, v{xf_}, {WS}, 0 offen sc1')
        if OPT['lz']:
            setup_g2()
        k.wait(0)
    else:
        p3_publish()
    poll(k, [f'buffer_load_dword v{t}, v{xa+5}, {WS}, s65 offen sc1', f'buffer_load_dword v{t+1}, v{xa+5}, {WS}, s69 offen sc1'],
         check_tags(k, [t, t + 1]), masked=True, alt=([65, 69], 16384, OPT['na']))
    k.label(LJ)
    k.fresh()
    t = xd
    k(f'''s_mul_i32 s67, s55, {144*16}
    s_mul_i32 s48, s53, {NST2*8*9216}
    s_add_u32 s67, s67, s48
    s_mul_i32 s48, s62, {4*9216}
    s_add_u32 s67, s67, s48
    s_add_u32 s67, s67, {WS_U}
    s_mul_i32 s57, s62, 9216
    s_add_u32 s48, s57, {L_ACT2}
    v_add_u32 v{vr+9}, s48, v{la}
    v_add_u32 v90, {4*AST2}, v{vr+9}''')
    start_off(58, 59, 67, 64, 8 * 9216, NST2)
    k.wait(0)
    if OPT['xdef']:
        L1 = k.lab()
        check_tags(k, [fb + 2])()
        k(f's_cbranch_vccz {L1}')
        poll(k, [x1f], check_tags(k, [fb + 2]), masked=True)
        k.label(L1)
    hooks = stag_setup(n8, 1, OPT['pf8'], *OPT['pf8at'])
    k('s_barrier')
    tag(k, 'touch a2')
    tag(k, 'region a2')
    LN, LJ = k.lab(), k.lab()
    k('s_barrier\n' * (2 + bool(OPT['rf2'])))
    k(f's_cmp_ge_u32 s{sR}, 27\ns_cbranch_scc1 {LN}')
    k(f'buffer_store_dword v{vTAG}, v{fl+1}, {WS}, 0 offen sc1')
    if not OPT['sp2'] or OPT['spw']:
        k.wait(0)
    k(f's_branch {LJ}')
    k.label(LN)
    wait_cue(k, 3, t)
    k.label(LJ)
    k(woff(0, 8 * 9216, NST2, 58))
    mark(k, 8)
    h4l = [f'buffer_load_dword v{t}, v{fb}, {WS}, s66 offen sc1']
    verify, prh = {}, {}
    if OPT['sp2']:
        verify = {n: verifier(1, n) for n in range(OPT['nsp'])}
        prh[OPT['sp2'] - 1], prh[OPT['sp2']] = late_check(h4l, [t], 9)
    else:
        poll(k, h4l, check_tags(k, [t]), masked=True, alt=([66], 16384, OPT['na']))
        mark(k, 9)
    items = []
    for n in range(NST2):
        for i in range(9):
            post = '\n' + woff(n + 1, 8 * 9216, NST2, 58) if i == 8 and n < NST2 - 1 else ''
            items.append((n, max(n - NSA2 + 2, OPT['sp2']) if n >= OPT['nsp'] else -9, act_text(1, n, i, 50) + post))
    ring2 = [n for n in range(NST2) if n not in reg_stages(1)]
    xfree = max(n for m, n in enumerate(ring2) if m % NSW2 == L_X1 // 16384) + 1
    for i in range(5):
        pre = f's_lshl_b32 s48, s62, 10\ns_add_u32 m0, s48, {L_X1 + 2048*i}\n' if i < 4 else \
              f's_mul_i32 s48, s62, {L_GB - L_X1 - 8192}\ns_add_u32 m0, s48, {L_X1 + 8192}\n'
        items.append((NST2, max(xfree, NST2 - NSA2 + 1), pre + f'buffer_load_dwordx4 v{xr_+i}, {WS}, 0 offen sc1 lds'))
    st = Stream(items)
    st.more(9 * OPT['a2pre'])
    assert OPT['nsp'] <= NSA2
    st.run(NST2 + 1, lambda i: OPT['a2la'] + 9 * (i + 1), last_bar=False, hooks=hooks, verify=verify, pre=prh)
    LT = k.lab()
    k(f's_branch {LT if OPT["hx"] else "L_end"}')
    tag(k, 'region -')
    k.label(LHW)
    k.fresh()

    def witems(g, stages, slot0=0, NSW=NSW):
        NST, sd, mul, regs, lo = ((32, 40, 8 * 9216, da, 60), (NST2, 44, 64 * 4096, db, 58))[g]
        items = []
        for m, n in enumerate(stages):
            for i in range(8):
                pre = woff(n, mul, NST, lo) if i == 0 else ''
                pre += f's_add_u32 m0, s68, {((m + slot0) % NSW)*16384 + 1024*i}\n' if i % 4 == 0 else ''
                items.append((n, stages[m - NSW] + 1 if m >= NSW else -9,
                              pre + f'buffer_load_dwordx4 v{regs+i}, s[{sd}:{sd+3}], s50 offen offset:{1024*(i&3)} {OPT["fw2" if g else "fw1"].replace("_", " ")} lds'))
        return items

    def split(g):
        rs = reg_stages(g)
        return rs, [n for n in range((32, NST2)[g]) if n not in rs]
    w_addr(1, db, 58)
    rs2, ds2 = split(1)
    f1 = [it[2] for it in witems(1, rs2, 2)]
    LN, LJ = k.lab(), k.lab()
    k(f's_cmp_ge_u32 s{sR}, 27\ns_cbranch_scc1 {LN}')
    w_addr(0, da, 60)
    tag(k, 'touch w1')
    tag(k, 'region w1')
    rs, ds = split(0)
    nx = len(rs) - 6
    items = witems(0, ds, nx)
    n1 = len(items)
    assert (len(ds) + nx) % NSW == 2
    ne = OPT['ne']
    for x in range(ne):
        items += [(99, ds[len(ds) - NSW + x] + 1, it) for it in f1[8 * x:8 * x + 8]]
    st = Stream(items)
    s1 = Stream(witems(0, rs[:6]))
    for n in OPT['pw1']:
        s1.more(n)
        k('s_barrier')
    s1.more(999)
    k('s_barrier')
    bar(k, 0)
    if OPT['rf']:
        k('s_barrier')
        st.more(OPT['rf'])
    k('s_barrier')
    if nx:
        assert not OPT['rf'] and not OPT['sp1']
        Stream(witems(0, rs[6:])).more(99)
        st.more(OPT['pa'])
        bar(k, st.n)
        st.more(4)
        k('s_barrier')
    def pf_early():
        n0 = 288 - 64 * OPT['pf8'] - 54 * OPT['pf4'] - 54 * OPT['pfa'] + OPT['n4x']
        w2_lane(k, xa, 14)
        k(f's_lshl_b32 s14, s{sR}, 1\ns_add_u32 s14, s14, s62\ns_mul_i32 s14, s14, {OPT["pfa"]}\ns_add_u32 s14, s14, {n0}')
        for x in range(OPT['pfa']):
            k(f's_add_u32 s48, s14, {x}\ns_lshl_b32 s48, s48, 14')
            k(f'buffer_load_dword v{xa+2+x}, v{xa}, s[44:47], s48 offen')
    if OPT['pfa'] and OPT['pfap'] == 0:
        pf_early()
    st.issue(OPT['f21'], -1)
    if OPT['pfa'] and OPT['pfap'] == 1:
        pf_early()
    q1 = spread(st.n, n1, 0 if st.n < 48 else 1, ds[-1] - OPT['wla'])
    if OPT['asap']:
        n00 = st.n
        q1 = lambda i: min(n1, n00 + int(OPT['asap'] * (i + 1) / 10))
    st.run(32, lambda i: q1(i) + ([0] * 32 + OPT['neq'])[-32 + i], mk=6)
    assert st.n == len(items)
    k('s_barrier')
    k(f's_branch {LJ}')
    k.label(LN)
    k.fresh()
    k(f's_sub_u32 s56, s{sR}, 27\ns_lshl_b32 s56, s56, 1\ns_add_u32 s56, s56, s62\ns_add_u32 s56, s56, {OPT["pf2"]}')
    k('s_barrier')
    pf_loop(k, 1, 56, 10, OPT['pf2'] + 10 * OPT['pf3'], xa, 40)
    k('s_barrier\n' * 5)
    for it in f1[:8 * ne]:
        k(it)
    k.label(LJ)
    k.fresh()
    st = Stream(witems(1, ds2, 0, NSW2))
    for it in f1[8 * ne:]:
        k(it)
    tag(k, 'touch w2')
    tag(k, 'region w2')
    bar(k, 0)
    if OPT['rf2']:
        k('s_barrier')
        st.more(OPT['rf2'])
    k('s_barrier')
    st.issue(OPT['f22'], -1)
    wpre, wver = {}, {}
    if OPT['xc'] in (0, 3):
        on, tg, vrd, vpr, vds = 100, 104, 108, 109, 110
        k(f'''v_mov_b64 {P(on)}, -1
        v_mov_b64 {P(on+2)}, -1
        v_mov_b32 v{tg}, v{vTAG}
        v_mov_b32 v{tg+1}, v{vTAG}
        v_mov_b32 v{tg+2}, v{vTAG}
        v_mov_b32 v{tg+3}, v{vTAG}
        v_lshlrev_b32 v{vds}, 4, v0
        s_lshl_b32 s48, s2, 7
        s_add_u32 s48, s48, {WS_XRDY}
        v_add_u32 v{vrd}, s48, v{vds}
        s_cmp_eq_u32 s62, 0
        s_cselect_b32 s48, 8, 0
        v_cmp_gt_u32 vcc, s48, v0
        v_mov_b32 v{vpr}, {OOB}
        v_cndmask_b32 v{vrd}, v{vpr}, v{vrd}, vcc
        v_min_u32 v{vpr}, 2, v0
        v_add_u32 v{vpr}, 1, v{vpr}
        v_lshlrev_b32 v{vpr}, 1, v{vpr}
        v_xor_b32 v{vpr}, s2, v{vpr}
        v_lshlrev_b32 v{vpr}, 7, v{vpr}
        v_add_u32 v{vpr}, {WS_XRDY}, v{vpr}
        v_lshlrev_b32 v{tg+4+3}, 4, v0
        s_mul_i32 s56, s2, {XB}
        s_lshl_b32 s48, s62, 10
        s_add_u32 s56, s56, s48
        s_add_u32 s56, s56, {WS_XCH}''')
        c0, cn = OPT['xclr']
        cseq = []

        def clr(i):
            def f():
                for x in range((i - c0) * 14 // cn, (i - c0 + 1) * 14 // cn):
                    if x < 13:
                        k(f's_add_u32 s57, s56, {2048*x}')
                    else:
                        k(f's_mul_i32 s57, s62, -2048\ns_add_u32 s57, s57, {2048*13}\ns_add_u32 s57, s57, s56')
                    k(f'buffer_store_dwordx4 {Q(on)}, v{tg+7}, {WS}, s57 offen sc1')
                cseq[:] = [k.stats['vmem']]
            return f
        for i in range(c0, c0 + cn):
            if OPT['xc'] == 0:
                wpre[i] = clr(i)
        r0, r1 = OPT['xrdy']
        assert r0 > c0 + cn - 1 and r1 > r0 and r1 < NST2
        if OPT['xc'] == 0:
            wver[r0] = lambda: k.wait(k.stats['vmem'] - cseq[0])
        wpre[r0] = lambda: k(f'buffer_store_dwordx4 {Q(tg)}, v{vrd}, {WS}, 0 offen sc1')
        assert r1 - OPT['xlead'] > r0
        wpre[r1 - OPT['xlead']], chk = late_check([f'buffer_load_dword v{vds}, v{vpr}, {WS}, 0 offen sc1'], [vds], 12)
        wver[r1] = chk
    q2 = spread(st.n, len(st.items), 0 if st.n < 8 * NSW2 else 1, ds2[-1] - OPT['wla2'])
    if OPT['wlead']:
        qs, cur = [], st.n
        for i in range(NST2):
            cur = max(cur, min(8 * sum(n <= i + OPT['wlead'] for n in ds2), cur + OPT['wmax']))
            qs.append(cur)
        q2 = lambda i: qs[i]
    st.run(NST2, q2, mk=8, verify=wver, pre=wpre)
    if not OPT['hx']:
        return
    k('s_barrier')
    k.label(LT)
    k.fresh()
    ha, hr = 100, 104
    k(f'''v_lshlrev_b32 v{ha}, 4, v0
    v_lshlrev_b32 v{ha+1}, 2, v0
    s_mul_i32 s48, s{sW}, {XW}
    s_mul_i32 s60, s2, {XB}
    s_add_u32 s60, s60, s48
    s_add_u32 s60, s60, {WS_XCH + XM}
    s_add_u32 s61, s60, {XM}
    s_mul_i32 s63, s{sW}, {2*XW}
    s_add_u32 s63, s63, {L_S}
    v_add_u32 v{ha+2}, s63, v{ha}
    v_add_u32 v{ha+3}, s63, v{ha+1}''')
    xmark(k, 'x', 1)
    if OPT['hsl']:
        k(f's_sleep {OPT["hsl"]}')
    if OPT['xcue']:
        k(f'''s_lshl_b32 s48, s{sW}, 7
        s_mul_i32 s62, s2, 1536
        s_add_u32 s62, s62, s48
        s_add_u32 s62, s62, {WS_XCUE + 512}
        v_and_b32 v{hr+8}, 1, v0
        v_lshlrev_b32 v{hr+8}, 9, v{hr+8}''')
        poll(k, [f'buffer_load_dword v{hr+9}, v{hr+8}, {WS}, s62 offen sc1'], check_tags(k, [hr + 9]), sleep=OPT['xsl'])
        xmark(k, 'x', 2)
    if OPT['tfirst']:
        poll(k, [f'buffer_load_dword v{hr+8+x}, v{ha+1}, {WS}, s{60+x} offen offset:2048 sc1' for x in (1, 0)],
             check_sent(k, [hr + 8, hr + 9, hr + 9], hr + 6), sleep=OPT['tsl'])
        xmark(k, 'x', 2)
    loads = []
    for x in (1, 0):
        loads.append(f's_add_u32 m0, s63, {XW*x}\n' + f'buffer_load_dwordx4 v{ha}, {WS}, s{60+x} offen sc1 lds')
        loads.append(f'buffer_load_dwordx4 v{ha}, {WS}, s{60+x} offen offset:1024 sc1 lds')
        loads.append(f'buffer_load_dword v{ha+1}, {WS}, s{60+x} offen offset:2048 sc1 lds')

    def hchk():
        for x in range(2):
            k(f'ds_read_b32 v{hr+3*x}, v{ha+2} offset:{XW*x}\nds_read_b32 v{hr+3*x+1}, v{ha+2} offset:{XW*x+1024}\nds_read_b32 v{hr+3*x+2}, v{ha+3} offset:{XW*x+2048}')
        check_sent(k, [hr + i for i in range(6)], hr + 6)()
    poll(k, loads, hchk, sleep=OPT['hsl2'])
    xmark(k, 'x', 3)
    k('s_barrier')


def build():
    geometry()
    k = K('m')
    k(f's_cmp_ge_u32 s2, 256\ns_cbranch_scc1 L_exit')
    if OPT['stamp']:
        k('s_memrealtime s[70:71]')
        for i in range(72, 96):
            k(f's_mov_b32 s{i}, 0')
    k(f'''s_load_dwordx16 s[8:23], s[0:1], 0
    s_load_dwordx8 s[24:31], s[0:1], 64
    s_load_dwordx2 s[32:33], s[0:1], 96''')
    if OPT['codepf']:
        k(f'''v_readfirstlane_b32 s4, v0
        s_lshr_b32 s5, s2, 3
        s_lshr_b32 s4, s4, 6
        s_cmp_lg_u32 s4, s5
        s_cbranch_scc1 L_nopf
        s_getpc_b64 s[52:53]
        L_pc:
        s_sub_u32 s52, s52, L_pc-{NAME}_kernel
        s_subb_u32 s53, s53, 0
        s_mov_b32 s54, L_code_end-{NAME}_kernel
        s_mov_b32 s55, 0x20000
        v_lshlrev_b32 v1, 7, v0''')
        k.raw('    buffer_load_dword v255, v1, s[52:55], 0 offen')
        k('v_add_u32 v1, 65536, v1')
        k.raw('    buffer_load_dword v255, v1, s[52:55], 0 offen')
        k.maxreg['v'] = 255
        k.label('L_nopf')
    k(f'''v_lshrrev_b32 v1, 6, v0
    v_and_b32 v0, 63, v0
    v_readfirstlane_b32 s{sWAVE}, v1
    v_and_b32 v1, 15, v0
    v_lshrrev_b32 v2, 4, v0
    s_and_b32 s{sJ}, s2, 7
    s_lshr_b32 s{sR}, s2, 3
    s_lshl_b32 s{sS2}, s{sJ}, 5
    s_add_u32 s{sS2}, s{sS2}, s{sR}
    s_mov_b32 s{sBUD}, 100000
    s_and_b32 s{sW}, s{sWAVE}, 3''')
    k(f's_cmp_ge_u32 s{sWAVE}, 4')
    k('s_cbranch_scc0 L_C' if OPT['ufirst'] else 's_cbranch_scc1 L_H')
    n0 = len(k.out)
    k.label('L_C')
    gen_C(k)
    tag(k, 'region -')
    n1 = len(k.out)
    k.label('L_H')
    k.fresh()
    gen_H(k)
    n2 = k.out.index('; @cut')
    if OPT['ufirst']:
        k.out = k.out[:n0] + k.out[n1:n2] + k.out[n0:n1] + k.out[n2 + 1:]
    else:
        del k.out[n2]
    k.label('L_end')
    if OPT['stamp']:
        k.fresh()
        k('s_memrealtime s[94:95]')
        k.wait(0, 0)
        k('s_memrealtime s[96:97]')
        k(f's_add_u32 s40, s{pWS}, {64*MB}\ns_addc_u32 s41, s{pWS+1}, 0\ns_mov_b32 s42, {1*MB}\ns_mov_b32 s43, 0x20000')
        k(f's_lshl_b32 s48, s2, 3\ns_add_u32 s48, s48, s{sWAVE}\ns_lshl_b32 s48, s48, 6\nv_mov_b32 v3, 0')
        for i in range(14):
            k(f'v_mov_b32 v{4+i}, s{70+2*i}')
        k(f'v_mov_b32 v18, s{sBUD}\ns_getreg_b32 s49, hwreg(HW_REG_XCC_ID)\ns_getreg_b32 s50, hwreg(HW_REG_HW_ID)\ns_and_b32 s49, s49, 15\ns_lshl_b32 s50, s50, 4\ns_or_b32 s49, s49, s50\nv_mov_b32 v19, s49')
        for i in range(4):
            k(f'buffer_store_dwordx4 {Q(4+4*i)}, v3, s[40:43], s48 offen offset:{16*i}')
        if OPT.get('trace'):
            k(f's_lshl_b32 s48, s48, 3\ns_add_u32 s48, s48, {MB//2}\ns_mov_b32 s42, {2*MB}\nv_lshlrev_b32 v3, 2, v0')
            k('buffer_store_dword v200, v3, s[40:43], s48 offen\nbuffer_store_dword v201, v3, s[40:43], s48 offen offset:256')
    k.label('L_exit')
    k('s_endpgm')
    k.label('L_code_end')
    if OPT['touch']:
        k.out, ch = page_touch([f'{NAME}_kernel:'] + k.out)
        k.out = k.out[1:]
        print(ch, file=sys.stderr)
    ref = open(f'/code/{NAME}.s.ref').read().split('\n')
    hdr = [l for l in ref if l.startswith(';') and '@launch' not in l]
    out = '\n'.join(hdr) + '\n'
    if OPT.get('aslist'):
        out += f'; @launch kernel={NAME}_kernel grid=(256,1,1) block=(512,1,1) lds=163840\n'
    else:
        out += '; @launch grid=(256,1,1) block=(512,1,1) lds=163840\n'
    out += '.amdgcn_target "amdgcn-amd-amdhsa--gfx950"\n.text\n'
    out += f'.globl {NAME}_kernel\n.p2align 8\n.type {NAME}_kernel,@function\n{NAME}_kernel:\n' + k.text()
    out += '.section .rodata,"a"\n' + descriptor(NAME + '_kernel', k.maxreg['v'] + 1, 0, k.maxreg['s'] + 1)
    print('vgpr', k.maxreg['v'] + 1, 'sgpr', k.maxreg['s'] + 1, k.stats, file=sys.stderr)
    return out


if __name__ == '__main__':
    path = f'/code/{NAME}.s'
    for a in sys.argv[1:]:
        if '=' in a:
            n, v = a.split('=')
            OPT[n] = int(v) if v.lstrip('-').isdigit() else ([int(x) for x in v.split(',')] if ',' in v else v)
        else:
            path = a
    if OPT.get('wsh'):
        WS_H2 += OPT['wsh'] * MB
        WS_U += OPT['wsh'] * MB
        WS_SIZE = 64 * MB
    open(path, 'w').write(build())
```

```python
import struct, sys
from asm import *

NAME = 'adaLN_cond__spectral_gfnet__mixer_token_mlp__prompt'
S, D, F = 2048, 576, 4608
MB = 1 << 20
WS_MOD, WS_EPOCH, WS_MODG, WS_MODB, WS_FLAG, WS_CUE = 0, 0x8000, 0xE80000, 0x30000, 0x40000, 0x80000
WS_WP, WS_T1, WS_T2, WS_X1, WS_H2, WS_U, WS_XCH = 1 * MB, 4 * MB, 8 * MB, 12 * MB, 16 * MB, 20 * MB, 26 * MB
WS_SIZE = 48 * MB
WS_XCUE = 36 * MB
WS_XRDY = 37 * MB
XW, XM, XB = 2304, 9216, 27648
WS_FL2 = 15 * MB
OOB = 0x7ff00000
MF = 'v_mfma_f32_16x16x32_bf16'
sW, sJ, sR, sS2, sBUD = 3, 4, 5, 6, 7
pX, pWR, pWI, pW1, pB1, pW2, pB2, pC, pWM, pOUT, pWS = 8, 10, 12, 16, 18, 20, 22, 24, 26, 28, 32
sWAVE = 34
WS = 's[36:39]'
vTAG = 3
L_SLAB, L_WST, L_MG, L_TR, L_SILU = 0, 36864, 61440, 77824, 90112
L_X = 100352
L_ST = L_X + 9472
L_M = L_ST + 128
L_E = L_M + 16384
L_MI = 147456
L_ACT = 98304
L_Z, L_MOD, L_Y, L_H = 98304, 108544, 116736, 135808
XROW, YROW = 1184, 2320
AST2, NST2 = 18432, 18
L_ACT2, NSA2, NSW2 = 90112, 4, 5
L_X1, L_GB, L_S = 2 * 16384, 81920, 3 * 16384
NSW = 6
OPT = dict(su=0, suat=[0, 30], rotw=0, pfw1=999, bs1=0, bs2=0, wg1=0, wg2=0, tfirst=0, tsl=2, pfa=0, pfap=0, pfnt=0, wo=0, nsp=4, n4x=0, wlead=0, wmax=6, nsa2=4, xc=0, xlead=2, xclr=[2, 8], xrdy=[12, 17], pf9=0, rot1=0, xcue=0, xsl=2, wx=0, hx=1, hsl=0, hsl2=1, stamp=0, codepf=1, poll_sleep=1, outflag='sc1', xst=4, xst2=0, a1pre=2, a2pre=3,
           asap=0, jit=2, xk=0, pfm=0, lz=1, ec2=0, single=0, pa=12, lead=0, fa1='sc1', fa2='sc1', fw1='', fw2='', a0=0, twi=0, ufirst=1, defer=4, wla2=2, sp1=0, sp2=2, spw=0, sl3=2, cl3=0, cl4=1, xo=26, touch=1, mw=1, wla=3, rs1=[6, 9, 12, 15, 18, 21, 24, 27], rs2=[4, 6, 8, 10, 11, 12], rf=0, f21=48, f22=32, pw1=[16, 16],
           pf1=0, pf2=96, pf3=2, pf4=2, pf4at=[0, 14, 0], pf8=2, pf8at=[0, 8, 0], a2la=27, pf5=288, pf6=0, pf7=0, x1=0, cue_at=2, wat=2, prew=1, m1early=2, tlb=0, dly=0, hp=1, up=2, f64=1, mb=2, fs=4, mask=1, warm=1, c2=1, wfl=1, wearly=1, pfd=0, xdef=2, rf2=8, ne=4, neq=[10, 22, 32], xm=7, nl=10, tw1=1, tw3=1, sl2=1, na=1, nm=1)


def geometry():
    global L_ACT2, NSA2, NSW2, L_X1, L_GB, L_S
    if OPT['nsa2'] == 5:
        L_ACT2, NSA2, NSW2 = 65536, 5, 4
        L_X1, L_S, L_GB = 0, 16384, 65536 + 5 * AST2


def quads(rg, rs, D):
    D0 = 2 * (NST2 - D)
    early = [rg[i] + 4 * j for i, n in enumerate(rs) if n < NST2 - D for j in range(4)]
    late = [rg[i] + 8 * st + 4 for i, n in enumerate(rs) if n >= NST2 - D for st in range(2)]
    steps = [q for q in range(D0, 2 * NST2) if q >> 1 not in rs]
    park = dict(zip(steps, early))
    assert all(n < NST2 - D - 1 for i, n in enumerate(rs) if rg[i] <= max(park.values()) and n < NST2 - D)
    return park, early[len(steps):] + late


def f32(x):
    return '0x%08x' % struct.unpack('<I', struct.pack('<f', x))[0]


def P(r):
    return f'v[{r}:{r+1}]'


def Q(r):
    return f'v[{r}:{r+3}]'


def srd(k, dst, ptr, size):
    k(f's_mov_b32 s{dst}, s{ptr}\ns_mov_b32 s{dst+1}, s{ptr+1}\ns_mov_b32 s{dst+2}, {size}\ns_mov_b32 s{dst+3}, 0x20000')


def mark(k, i):
    if OPT['stamp']:
        k.raw(f'    s_memrealtime s[{70+2*i}:{71+2*i}]')


def tag(k, what):
    if OPT['touch']:
        k.raw('    ; @' + what)


def xmark(k, grp, i):
    if OPT.get('mk') == grp:
        mark(k, i)
    if OPT.get('mk') == grp + 'c':
        k.raw(f'    s_memtime s[{70+2*i}:{71+2*i}]')


def bar(k, vm=None, lg=None):
    if vm is not None or lg is not None:
        k.wait(vm, lg)
    k('s_barrier')


def cs_pair(k, ang, tc, ts, dsts):
    k(f'v_cos_f32 v{tc}, v{ang}\nv_sin_f32 v{ts}, v{ang}')
    m = {'c': f'v{tc}', 's': f'v{ts}', '-c': f'-v{tc}', '-s': f'-v{ts}'}
    for d, lo, hi in dsts:
        k(f'v_cvt_pk_bf16_f32 v{d}, {m[lo]}, {m[hi]}')


def dft_frag(k, base, step, re, im, tmp, inverse):
    for j in range(4):
        a, tc, ts = tmp + 3 * (j & 1), tmp + 3 * (j & 1) + 1, tmp + 3 * (j & 1) + 2
        if j == 0:
            a = base
        elif j == 3:
            k(f'v_add_f32 v{a}, v{tmp}, v{step}')
        else:
            k(f'v_fma_f32 v{a}, v{step}, {float(j)}, v{base}')
        if inverse:
            cs_pair(k, a, tc, ts, [(re + j, 'c', '-s'), (im + j, 's', 'c')])
        else:
            cs_pair(k, a, tc, ts, [(re + j, 'c', 's'), (im + j, '-s', 'c')])


def red32(k, regs, t):
    for mod in ('quad_perm:[1,0,3,2]', 'quad_perm:[2,3,0,1]', 'row_half_mirror', 'row_mirror'):
        for r in regs:
            k(f'v_add_f32_dpp v{r}, v{r}, v{r} {mod} row_mask:0xf bank_mask:0xf')
    for i, r in enumerate(regs):
        k(f'v_mov_b32 v{t+i}, v{r}')
    for i, r in enumerate(regs):
        k(f'v_permlane16_swap_b32 v{r}, v{t+i}')
    for i, r in enumerate(regs):
        k(f'v_add_f32 v{r}, v{r}, v{t+i}')


def poll(k, loads, check, sleep=None, masked=False, alt=None):
    L, E = k.lab('Lp'), k.lab('Le')
    sleep = OPT['poll_sleep'] if sleep is None else sleep
    if alt and alt[2] > 1:
        k(f's_mov_b32 s14, {alt[2] - 1}')
    k.label(L)
    for l in loads:
        k(l)
    k.wait(0)
    check()
    k(f's_cbranch_vccz {E}')
    k(f's_sub_u32 s{sBUD}, s{sBUD}, 1\ns_cbranch_scc1 {E}')
    if alt and alt[2] > 1:
        k(f's_cmp_gt_i32 s14, 0\ns_cselect_b32 s15, {alt[1]}, 0\ns_sub_u32 s14, s14, 1')
        for r in alt[0]:
            k(f's_add_u32 s{r}, s{r}, s15')
    masked = masked and OPT['mask']
    if masked:
        k('s_mov_b64 exec, vcc')
    if sleep:
        k(f's_sleep {sleep}')
    k(f's_branch {L}')
    k.label(E)
    if masked:
        k('s_mov_b64 exec, -1')
    k(f's_max_i32 s{sBUD}, s{sBUD}, 0')


def check_tags(k, regs):
    def f():
        k(f'v_cmp_ne_u32 vcc, v{vTAG}, v{regs[0]}')
        for r in regs[1:]:
            k(f'v_cmp_ne_u32 s[48:49], v{vTAG}, v{r}\ns_or_b64 vcc, vcc, s[48:49]')
    return f


def publish(k, sync, sidx, t, ncue=0, cue_add=0):
    k(f'''s_lshl_b32 s48, s{sidx}, {OPT['fs']}
    s_lshl_b32 s49, s{sW}, 16
    s_add_u32 s48, s48, s49
    s_add_u32 s48, s48, {WS_FL2 + sync*0x40000}
    v_mov_b32 v{t}, {OOB}''')
    for a in range(OPT['na']):
        k(f'v_writelane_b32 v{t}, s48, {a}\ns_add_u32 s48, s48, 16384')
    if ncue:
        k(f'''s_add_u32 s48, s2, {8*cue_add}
        s_lshl_b32 s48, s48, 7
        s_add_u32 s48, s48, {WS_CUE + sync*0x8000}
        s_lshl_b32 s49, s{sW}, 8
        s_add_u32 s49, s49, s{sR}
        s_cmp_lt_u32 s49, {ncue}
        s_cselect_b32 s48, s48, {OOB}
        v_writelane_b32 v{t}, s48, 8''')


def do_publish(k, t):
    k(f'buffer_store_dword v{vTAG}, v{t}, {WS}, 0 offen sc1')
    k.wait(0)


def wait_cue(k, sync, t, sleep=4):
    k(f's_lshl_b32 s50, s2, 7\ns_add_u32 s50, s50, {WS_CUE + sync*0x8000}\nv_mov_b32 v{t}, 0')
    poll(k, [f'buffer_load_dword v{t+1}, v{t}, {WS}, s50 offen sc1'], check_tags(k, [t + 1]), sleep=sleep)


def h3_idx(k, d):
    k(f'''s_bfe_u32 s{d}, s{sS2}, 0x10002
    s_lshl_b32 s{d}, s{d}, 7
    s_lshr_b32 s{d+1}, s{sS2}, 3
    s_lshl_b32 s{d+1}, s{d+1}, 2
    s_add_u32 s{d}, s{d}, s{d+1}
    s_and_b32 s{d+1}, s{sS2}, 3
    s_add_u32 s{d}, s{d}, s{d+1}''')


def g1_tile(k):
    k(f'''s_mul_i32 s52, s{sJ}, 27
    s_add_u32 s52, s52, s{sR}
    s_mul_i32 s51, s52, 171
    s_lshr_b32 s51, s51, 10
    s_mul_i32 s48, s51, 6
    s_sub_u32 s52, s52, s48''')


def g2_tile(k):
    k(f'''s_lshr_b32 s53, s{sJ}, 1
    s_and_b32 s54, s{sJ}, 1
    s_lshl_b32 s54, s54, 3
    s_lshr_b32 s48, s{sR}, 2
    s_add_u32 s54, s54, s48
    s_and_b32 s55, s{sR}, 3''')


def ring_adv(k, s, step, lo, hi):
    k(f's_add_u32 s{s}, s{s}, {step}\ns_cmp_eq_u32 s{s}, {hi}\ns_cselect_b32 s{s}, {lo}, s{s}')


def preload_w(vW0, vW, pairs):
    r = []
    for half in range(2):
        mine = [(sl, f0) for sl, f0 in pairs if sl // 3 == half]
        if mine:
            r += [f'v_add_u32 v{vW+nt}, {49152*half}, v{vW0+nt}' for nt in range(2)]
        for sl, f0 in mine:
            for st in range(2):
                for nt in range(2):
                    f = f0 + 8 * st + 4 * nt
                    o = (sl % 3) * 16384 + st * 8192
                    r += [f'ds_read_b64_tr_b16 {P(f)}, v{vW+nt} offset:{o}', f'ds_read_b64_tr_b16 {P(f+2)}, v{vW+nt} offset:{o+4096}']
    return r


def reg_stages(g):
    return OPT['rs1'] if g == 0 else OPT['rs2']


def kappa(n, NST):
    rs = reg_stages(0 if NST == 32 else 1)
    return rs.index(n) if n in rs else len(rs) + n - sum(x < n for x in rs)


def leaders(g):
    if not OPT['lead'] & (1 << g):
        return 0, (27, 32)[g]
    l = [6 * (c & 3) + c for c in range(6)] if g == 0 else [4 * d + (d & 3) for d in range(8)]
    return sum(1 << x for x in l), (27, 32)[g] - len(l)


def spec_range(g):
    if g == 0:
        c = {(kappa(n, 32) + OPT['xst'] * (j & OPT['xm']) + OPT['xo']) % 32 for n in range(5) for j in range(8)}
    else:
        c = {kappa(n, NST2) for n in range(OPT['nsp'])}
    return min(c), max(c) - min(c) + 1


def clear_loop(k, sidx, stride, total, addr, ones, la):
    for x in range((total + stride - 1) // stride):
        L = k.lab()
        k(f's_add_u32 s48, s{sidx}, {x*stride}\ns_cmp_ge_u32 s48, {total}\ns_cbranch_scc1 {L}')
        addr()
        k.cond += 1
        k(f'buffer_store_dwordx4 {Q(ones)}, v{la}, {WS}, s48 offen sc1')
        k.cond -= 1
        k.label(L)


def gemm_c(k, MT, NST, NSA, ASTAGE, vA, vA4, vW0, vW, fa, fw, acc, rg, rs, w_is_A, at_end=None, last_order=None, defer=0, send=None, single=False, slot0=0):
    NT = 2
    for nt in range(NT):
        k(f'v_add_u32 v{vW+nt}, 49152, v{vW0+nt}')

    def reads(n, st, wslot):
        w, a = [None] * 4, []
        if wslot is not None:
            for nt in range(NT):
                f = fw + 4 * (st * NT + nt)
                r, o = (vW0 if wslot < 3 else vW) + nt, (wslot % 3) * 16384 + st * 8192
                w[2 * nt] = f'ds_read_b64_tr_b16 {P(f)}, v{r} offset:{o}'
                w[2 * nt + 1] = f'ds_read_b64_tr_b16 {P(f+2)}, v{r} offset:{o+4096}'
        o = (n % NSA) * ASTAGE + st * ASTAGE // 2
        for mt in range(MT):
            f = fa + 4 * ((0 if single else st) * MT + mt)
            if vA4 is not None and mt == MT - 1:
                a.append(f'ds_read_b128 {Q(f)}, v{vA4} offset:{o}')
            else:
                a.append(f'ds_read_b128 {Q(f)}, v{vA} offset:{o+256*mt}')
        if single:
            return [x for mt in range(MT) for x in (w[mt] if mt < 4 else None, a[mt])]
        return [w[0], a[0], w[1], a[1], w[2], a[2], w[3]] + a[3:]

    def mfmas(p, wb):
        r = []
        order = [(0, 0), (1, 0), (2, 0), (0, 1), (1, 1), (2, 1)] + [(mt, nt) for mt in range(3, MT) for nt in range(NT)]
        if single:
            order = [(mt, nt) for mt in range(MT) for nt in range(NT)]
        for mt, nt in order:
            a = acc + 4 * (mt * NT + nt)
            x, y = fa + 4 * ((0 if single else p) * MT + mt), wb + 4 * (p * NT + nt)
            if w_is_A:
                x, y = y, x
            r.append(f'{MF} {Q(a)}, {Q(x)}, {Q(y)}, {Q(a)}')
        return r
    def step(mm, rd, barrier, merged=True):
        if OPT.get('noread'):
            rd = []
        if OPT.get('nomfma'):
            mm = ['s_nop 0'] * len(mm)
        if not mm and barrier:
            k('s_barrier')
        per = 1 if len(mm) >= len(rd) else 2
        rd = list(rd) if per == 1 else [x for x in rd if x]
        done = 0
        for i, mi in enumerate(mm):
            if merged and OPT['mw'] and i == 6:
                k.wait(lg=done)
            k(mi)
            if barrier and i == 0:
                k('s_barrier')
            for x in rd[:per]:
                if x:
                    k(x)
                    done += 1
            rd = rd[per:]
        for x in rd:
            if x:
                k(x)
    isnt = lambda mi, nt: ((int(mi.split('[')[1].split(':')[0]) - acc) // 4) % 2 == nt
    prev, m = None, 0
    D0 = 2 * (NST - defer)
    assert all(n < NST - defer - 1 for n in rs)
    for n in range(NST):
        cur, wslot = (rg[rs.index(n)], None) if n in rs else (fw, (m + slot0) % NSW)
        m += n not in rs
        for st in range(2):
            rd = reads(n, st, wslot)
            mm = [] if prev is None and st == 0 else mfmas(st ^ 1, prev if st == 0 else cur)
            q = 2 * n + st
            if q >= D0:
                f, g = fw + 8 * st, rg[0] + 4 * (q - D0)
                rd[0], rd[2] = rd[0].replace(P(f), P(g)), rd[2].replace(P(f + 2), P(g + 2))
                rd = [rd[4], rd[6], rd[1], rd[3], rd[5]] + rd[7:] + [rd[0], rd[2]]
            if q > D0:
                step([x for x in mm if isnt(x, 1)], rd, st == 0, False)
                continue
            if mm and (OPT['mw'] and (n, st) != (0, 1) or (st == 0 and prev == fw)):
                k.wait(lg=MT - 3)
            step(mm, rd, st == 0, not single or OPT['mw'] == 2)
        prev = cur
    if not defer:
        k.wait(lg=0)
        if at_end:
            at_end()
        mm = mfmas(1, prev)
        if last_order:
            mm.sort(key=last_order)
        for mi in mm:
            k(mi)
        return
    acts = lambda q: [x for x in reads(q // 2, q % 2, None) if x]
    mm = [x for x in mfmas(1, prev) if isnt(x, 1)]
    mm.sort(key=last_order)
    last = 2 * NST - 1
    step(mm, acts(D0), False, False)
    step([x for x in mfmas(1, rg[0] + 4 * (last - D0) - 8) if isnt(x, 0)], [], False, False)
    send()
    for q in range(D0, last):
        step([x for x in mfmas(q % 2, rg[0] + 4 * (q - D0) - 8 * (q % 2)) if isnt(x, 0)], acts(q + 1) if q + 1 < last else [], False, False)
    at_end()


def gemm2_c(k, vAo, vAx, vA4, vW0, vW, fa, fw, accf, rg, rs, D, send_bc, send_a, at_end, fill={}, drain=None, vhi=None):
    MT, NST = 9, NST2
    last = 2 * NST - 1
    D0 = 2 * (NST - D)
    park, _ = quads(rg, rs, D)
    assert 1 <= D <= NSA2
    for nt in range(2):
        k(f'v_add_u32 v{vW+nt}, 49152, v{vW0+nt}')

    def aread(q, mt):
        sl = (q >> 1) % NSA2
        base = (vAo, vA4, vAx)
        if sl >= 4:
            base, sl = vhi, sl - 4
        v, o = (base[0], 256 * mt) if mt < 4 else ((base[1], 0) if mt == 4 else (base[2], 256 * (mt - 5)))
        return f'ds_read_b128 {Q(fa+4*mt)}, v{v} offset:{sl*AST2 + (q & 1)*9216 + o}'

    def wreg(q, nt):
        n, st = q >> 1, q & 1
        if n in rs:
            return rg[rs.index(n)] + 8 * st + 4 * nt
        if q >= D0 and nt == 0:
            return park[q]
        return fw + 8 * st + 4 * nt
    ring = [n for n in range(NST) if n not in rs]

    def wreads(q):
        n, st = q >> 1, q & 1
        if n in rs:
            return []
        sl = ring.index(n) % NSW2
        r = []
        for nt in (1, 0):
            f, v, o = wreg(q, nt), (vW0 if sl < 3 else vW) + nt, (sl % 3) * 16384 + st * 8192
            r += [f'ds_read_b64_tr_b16 {P(f)}, v{v} offset:{o}', f'ds_read_b64_tr_b16 {P(f+2)}, v{v} offset:{o+4096}']
        return r

    def mf(q, mt, nt):
        a = accf(mt, nt)
        return f'{MF} {Q(a)}, {Q(fa+4*mt)}, {Q(wreg(q, nt))}, {Q(a)}'

    def emit(mm, after, group=6, barrier=False, extra=None):
        if OPT.get('noread'):
            after = [[x for x in a if not x.startswith('ds_')] for a in after]
        if barrier and not mm:
            k('s_barrier')
        for i, m in enumerate(mm):
            if i % group == 0:
                k.cover(mm[i:i + group])
            k('s_nop 0' if OPT.get('nomfma') else m)
            if barrier and i == 0:
                k('s_barrier')
            for x in after[i]:
                k(x)
            if extra:
                for x in extra[:2]:
                    k(x)
                del extra[:2]
        for a in after[len(mm):]:
            for x in a:
                k(x)
    for q in range(last + 1):
        w = wreads(q)
        p = q - 1
        if p < 0:
            emit([], [w + [aread(q, mt) for mt in range(MT)]], barrier=True)
        elif p < D0:
            mm = [mf(p, mt, nt) for mt in range(MT) for nt in (1, 0)]
            after = [[] for _ in mm]
            for i, x in enumerate(w):
                after[2 * i].append(x)
            for mt in range(MT):
                after[2 * mt + 1].append(aread(q, mt))
            after[10] += fill.get(q, [])
            if q == drain:
                k.wait(0)
            emit(mm, after, barrier=not q & 1)
        else:
            mm = [mf(p, mt, 1) for mt in range(MT)]
            after = [[aread(q, mt)] for mt in range(MT)]
            for i, x in enumerate(w):
                after[(0, 1, 5, 6)[i]].append(x)
            emit(mm, after, group=3, barrier=not q & 1)
    emit([mf(last, mt, 1) for mt in range(MT)], [[] for _ in range(MT)], group=3)
    hi, lo = [4, 5, 6, 7, 8], [0, 1, 2, 3]
    emit([mf(last, mt, 0) for mt in hi + lo], [[aread(D0, mt)] for mt in hi + lo], group=9)
    x = send_bc()
    for q in range(D0, last):
        emit([mf(q, mt, 0) for mt in hi], [[aread(q + 1, mt)] if q + 1 < last else [] for mt in hi], group=5, extra=x)
    for y in x:
        k(y)
    x = None
    for q in range(D0, last):
        emit([mf(q, mt, 0) for mt in lo], [[aread(q + 1, mt)] if q + 1 < last else [] for mt in lo], group=4, extra=x)
        if x is None:
            x = send_a()
    for y in x:
        k(y)
    at_end()


def warm_xch(k, t, dst, store=False):
    k(f'''s_mul_i32 s48, s{sW}, 3072
    s_mul_i32 s49, s2, 36864
    s_add_u32 s48, s48, s49
    s_add_u32 s48, s48, {WS_XCH}''')
    for i in range(2):
        k(f'''v_add_u32 v{t}, {64*i}, v0
        v_min_u32 v{t}, 71, v{t}
        v_mul_u32_u24 v{t+1}, 2731, v{t}
        v_lshrrev_b32 v{t+1}, 16, v{t+1}
        v_mul_u32_u24 v{t+1}, {12288 - 24*128}, v{t+1}
        v_lshl_add_u32 v{t}, v{t}, 7, v{t+1}''')
        k.raw(f'    buffer_load_dword v{dst+i}, v{t}, {WS}, s48 offen')


def load_tag(k, t):
    k(f'v_mov_b32 v{t}, {WS_EPOCH}\nbuffer_load_dword v{vTAG}, v{t}, {WS}, 0 offen sc1')


def finish_tag(k):
    k(f's_mov_b32 s48, 0x9e3779b1\nv_mul_lo_u32 v{vTAG}, v{vTAG}, s48\nv_add_u32 v{vTAG}, 0x7f4a7c15, v{vTAG}\nv_or_b32 v{vTAG}, 0x01010101, v{vTAG}')


def w2_lane(k, t, d):
    k(f'''v_lshrrev_b32 v{t}, 4, v0
    v_and_b32 v{t+1}, 15, v0
    v_lshlrev_b32 v{t}, 12, v{t}
    v_lshl_add_u32 v{t}, v{t+1}, 7, v{t}
    s_lshr_b32 s48, s{sJ}, 1
    s_mul_i32 s48, s48, {1152*4096}
    s_and_b32 s49, s{sJ}, 1
    s_lshl_b32 s49, s49, 11
    s_add_u32 s48, s48, s49
    v_add_u32 v{t}, s48, v{t}
    s_mov_b32 s{d}, 0''')


def pf_loop(k, which, sN, stride, end, t, sd, tmp=50):
    assert 0 <= end <= 320 and stride > 0
    L, E = k.lab(), k.lab()
    if which == 2:
        w2_lane(k, t, tmp)
    k.label(L)
    k(f's_cmp_ge_u32 s{sN}, {end}\ns_cbranch_scc1 {E}')
    if which == 1:
        nl = OPT['nl']
        mg = {9: 911, 10: 820}[nl]
        k(f'''s_mul_i32 s48, s{sN}, {mg}
        s_lshr_b32 s48, s48, 13
        s_mul_i32 s49, s48, {nl}
        s_sub_u32 s49, s{sN}, s49
        s_lshl_b32 s49, s49, 6
        v_add_u32 v{t}, s49, v0
        s_and_b32 s49, s{sJ}, {OPT['xm']}
        s_mul_i32 s49, s49, {OPT['xst']}
        s_add_u32 s48, s48, s49
        s_add_u32 s48, s48, {OPT['xo']}''')
        if OPT['rot1']:
            assert nl == 10
            k(f'''s_mul_i32 s49, s{sJ}, 1152
            s_lshr_b32 s15, s49, 8
            s_mul_i32 s15, s15, {OPT['rot1']}
            s_add_u32 s15, s15, s48
            s_and_b32 s48, s49, -256''')
        else:
            k(f'''s_and_b32 s48, s48, 31
            s_mul_i32 s48, s48, {8*9216}
            s_mul_i32 s49, s{sJ}, 1152
            s_and_b32 s49, s49, {-256 if nl == 10 else -128}
            s_add_u32 s48, s48, s49''')
        k(f'''v_mul_u32_u24 v{t+1}, {mg}, v{t}
        v_lshrrev_b32 v{t+1}, 13, v{t+1}
        v_mul_u32_u24 v{t+2}, {nl}, v{t+1}
        v_sub_u32 v{t+2}, v{t}, v{t+2}
        v_and_b32 v{t}, 7, v{t+1}
        v_lshrrev_b32 v{t+1}, 3, v{t+1}
        v_lshl_add_u32 v{t}, v{t}, 8, v{t+1}
        v_mul_u32_u24 v{t}, 9216, v{t}
        v_lshl_add_u32 v{t}, v{t+2}, 7, v{t}''')
        if OPT['rot1']:
            k(f'''v_lshrrev_b32 v{t+2}, 1, v{t+2}
            v_mul_u32_u24 v{t+2}, {OPT['rot1']}, v{t+2}
            v_add_u32 v{t+2}, s15, v{t+2}
            v_and_b32 v{t+2}, 31, v{t+2}
            v_mul_u32_u24 v{t+2}, {8*9216}, v{t+2}
            v_add_u32 v{t}, v{t}, v{t+2}''')
    else:
        k(f'''s_add_u32 s48, s{sN}, s{tmp}
        s_cmp_ge_u32 s48, 288
        s_cselect_b32 s49, 288, 0
        s_sub_u32 s48, s48, s49
        s_lshl_b32 s48, s48, 14''')
    k.cond += 1
    fl = 'nt' if OPT['pfnt'] & which else ''
    k(f'buffer_load_dword v{t+3}, v{t}, s[{sd}:{sd+3}], s48 offen {fl}')
    k.cond -= 1
    k(f's_add_u32 s{sN}, s{sN}, {stride}\ns_branch {L}')
    k.label(E)


def tag_check4(k, r, t, first):
    k(f'''v_perm_b32 v{t}, v{r+1}, v{r}, s56
    v_perm_b32 v{t+1}, v{r+3}, v{r+2}, s57
    v_or_b32 v{t}, v{t}, v{t+1}''')
    if first:
        k(f'v_cmp_ne_u32 vcc, v{vTAG}, v{t}')
    else:
        k(f'v_cmp_ne_u32 s[48:49], v{vTAG}, v{t}\ns_or_b64 vcc, vcc, s[48:49]')


def check_sent(k, regs, t):
    def f():
        r = list(regs)
        k(f'v_max3_u32 v{t}, v{r[0]}, v{r[1]}, v{r[2]}')
        for x in r[3:]:
            k(f'v_max_u32 v{t}, v{t}, v{x}')
        k(f'v_cmp_eq_u32 vcc, -1, v{t}')
    return f


def stats(k, xf, u):
    k(f'v_pk_add_f32 {P(u)}, {P(xf)}, {P(xf+2)}\nv_pk_mul_f32 {P(u+2)}, {P(xf)}, {P(xf)}')
    for j in range(1, 9):
        if j > 1:
            k(f'v_pk_add_f32 {P(u)}, {P(u)}, {P(xf+2*j)}')
        k(f'v_pk_fma_f32 {P(u+2)}, {P(xf+2*j)}, {P(xf+2*j)}, {P(u+2)}')
    k(f'v_add_f32 v{u}, v{u}, v{u+1}\nv_add_f32 v{u+1}, v{u+2}, v{u+3}')
    red32(k, [u, u + 1], u + 2)
    k(f'''v_mul_f32 v{u}, {f32(-1/576)}, v{u}
    v_mul_f32 v{u+1}, {f32(1/576)}, v{u+1}
    v_fma_f32 v{u+1}, -v{u}, v{u}, v{u+1}
    v_max_f32 v{u+1}, 0, v{u+1}
    v_add_f32 v{u+1}, {f32(1e-5)}, v{u+1}
    v_rsq_f32 v{u+2}, v{u+1}
    v_mul_f32 v{u}, v{u}, v{u+2}''')


def gen_C(k):
    V = Alloc(4, 256)
    bb = V(4, 2); b2 = V()
    base = V.p
    xr = V(9, 1); t = V(12); twi = V(6); la = V(); a576 = V(); F64 = V(32, 4)
    keep = V.p
    mv = V(18, 2); ma = V(8); tw = V(8); xf = V(24, 2); st = V(16, 4); hf = V(12, 4); mf = V(60, 4); acc = V(24, 4)
    if OPT['touch'] == 2:
        tag(k, 'align')
    k(f'''v_lshrrev_b32 v{t}, 5, v0
    v_and_b32 v{t+1}, 31, v0
    v_mul_u32_u24 v{t+2}, {256*1152}, v{t}
    v_lshl_add_u32 v{t+2}, v{t+1}, 2, v{t+2}
    s_mul_i32 s62, s{sW}, {512*1152}
    s_mul_i32 s48, s{sS2}, 1152
    s_add_u32 s62, s62, s48''')
    srd(k, 40, pX, S * D * 2)
    for j in range(9):
        k(f'buffer_load_dword v{xr+j}, v{t+2}, s[40:43], s62 offen offset:{128*j}')
    srd(k, 36, pWS, WS_SIZE)
    load_tag(k, t + 3)
    g1_tile(k)
    g2_tile(k)
    srd(k, 44, pB1, F * 2)
    srd(k, 64, pB2, S * 2)
    k(f'''s_lshl_b32 s48, s51, 8
    s_lshl_b32 s49, s{sW}, 6
    s_add_u32 s48, s48, s49
    v_lshl_add_u32 v{t+4}, v2, 3, s48
    buffer_load_dwordx2 {P(bb)}, v{t+4}, s[44:47], 0 offen
    buffer_load_dwordx2 {P(bb+2)}, v{t+4}, s[44:47], 0 offen offset:32
    s_lshl_b32 s48, s54, 8
    s_add_u32 s48, s48, s49
    s_lshr_b32 s49, s53, 1
    s_lshl_b32 s49, s49, 5
    s_add_u32 s48, s48, s49
    v_lshl_add_u32 v{t+5}, v1, 1, s48
    buffer_load_ushort v{b2}, v{t+5}, s[64:67], 0 offen''')
    if OPT['tlb']:
        k(f'''s_cmp_eq_u32 s{sW}, 1
        s_cselect_b32 s56, s{pW1}, s{pWS}
        s_cselect_b32 s57, s{pW1+1}, s{pWS+1}
        s_cmp_eq_u32 s{sW}, 2
        s_cselect_b32 s56, s{pW2}, s56
        s_cselect_b32 s57, s{pW2+1}, s57
        s_cmp_eq_u32 s{sW}, 3
        s_cselect_b32 s56, s{pOUT}, s56
        s_cselect_b32 s57, s{pOUT+1}, s57
        s_mov_b32 s58, {S*F*2}
        s_cselect_b32 s58, {S*D*2}, s58
        s_cmp_eq_u32 s{sW}, 0
        s_cselect_b32 s58, {WS_SIZE}, s58
        s_mov_b32 s59, 0x20000
        v_lshlrev_b32 v{t+6}, {OPT['tlb']}, v0
        v_add_u32 v{t+6}, {(1<<OPT['tlb'])-128}, v{t+6}
        buffer_load_dword v{tw}, v{t+6}, s[56:59], 0 offen''')
    if OPT['warm']:
        h3_idx(k, 56)
        publish(k, 2, 56, t + 6)
        k(f's_lshl_b32 s56, s52, 6\ns_add_u32 s56, s56, s51')
        publish(k, 3, 56, t + 7, ncue=5, cue_add=27)
        k(f'buffer_load_dword v{ma}, v{t+6}, {WS}, 0 offen\nbuffer_load_dword v{ma+1}, v{t+7}, {WS}, 0 offen')
    if OPT['touch'] == 1:
        tag(k, 'align')
    xw = hf
    k(f'''v_lshlrev_b32 v{la}, 4, v0
    v_mul_u32_u24 v{xw}, {XROW}, v{t}
    v_lshl_add_u32 v{xw}, v{t+1}, 2, v{xw}
    s_mul_i32 s48, s{sW}, {2*XROW}
    s_add_u32 s48, s48, {L_X}
    v_add_u32 v{xw}, s48, v{xw}''')
    m = acc
    k(f'''v_lshrrev_b32 v{m}, 1, v1
    v_and_b32 v{m+1}, 1, v1
    v_and_b32 v{m+2}, 1, v{m}
    v_cvt_f32_u32 v{m}, v{m}
    v_cvt_f32_u32 v{m+1}, v{m+1}
    v_mul_f32 v{m}, {f32(0.125)}, v{m}
    v_mul_f32 v{m+1}, {f32(0.25)}, v{m+1}
    v_mul_u32_u24 v{m+2}, 0x8000, v{m+2}
    v_lshl_or_b32 v{m+2}, v{m+2}, 16, v{m+2}
    s_lshl_b32 s48, s{sW}, 10
    s_add_u32 s48, s48, {L_M}
    v_add_u32 v{m+3}, s48, v{la}
    s_mov_b32 s63, {f32(1/9)}''')
    for i in range(4):
        o = m + 12 + 4 * (i & 1)
        k(f'''s_add_u32 s48, s{sW}, {4*i}
        s_mul_i32 s49, s48, 43
        s_lshr_b32 s49, s49, 7
        s_mul_i32 s50, s49, 3
        s_sub_u32 s50, s48, s50
        s_lshl_b32 s50, s50, 2
        v_add_u32 v{m+4}, s50, v2
        v_cmp_gt_u32 vcc, 9, v{m+4}
        v_mul_u32_u24 v{m+4}, s49, v{m+4}
        v_cvt_f32_u32 v{m+4}, v{m+4}
        v_fma_f32 v{m+4}, v{m+4}, s63, v{m+1}
        v_add_f32 v{m+5}, v{m+4}, v{m}
        v_fma_f32 v{m+6}, v{m}, 2.0, v{m+4}
        v_add_f32 v{m+7}, v{m+6}, v{m}
        v_cos_f32 v{m+4}, v{m+4}
        v_cos_f32 v{m+5}, v{m+5}
        v_cos_f32 v{m+6}, v{m+6}
        v_cos_f32 v{m+7}, v{m+7}
        v_cvt_pk_bf16_f32 v{o}, v{m+4}, v{m+5}
        v_cvt_pk_bf16_f32 v{o+1}, v{m+6}, v{m+7}
        v_cndmask_b32 v{o}, 0, v{o}, vcc
        v_cndmask_b32 v{o+1}, 0, v{o+1}, vcc
        v_xor_b32 v{o+2}, v{m+2}, v{o}
        v_xor_b32 v{o+3}, v{m+2}, v{o+1}
        ds_write_b128 v{m+3}, {Q(o)} offset:{4096*i}''')
    def gen_twi():
        k(f'''v_lshrrev_b32 v{t+4}, 1, v2
        v_cvt_f32_u32 v{t+4}, v{t+4}
        v_add_f32 v{t+5}, 1.0, v{t+4}
        v_mul_f32 v{t+5}, {f32(1/(S*D))}, v{t+5}''')
        for tt in range(3):
            if tt:
                k(f'v_add_f32 v{t+4}, 2.0, v{t+4}')
            sc = f'v{t+5}' if tt == 0 else f32(2 / (S * D))
            k(f'''v_mul_f32 v{t+6}, v{t+4}, v{a576}
            v_cos_f32 v{t+7}, v{t+6}
            v_sin_f32 v{t+8}, v{t+6}
            v_mul_f32 v{twi+2*tt}, {sc}, v{t+7}
            v_mul_f32 v{twi+2*tt+1}, {sc}, v{t+8}''')

    def gen_f64():
        k(f'''s_lshl_b32 s48, s{sW}, 4
        v_add_u32 v{t+6}, s48, v1
        v_cvt_f32_u32 v{t+6}, v{t+6}
        v_mul_f32 v{t+6}, {f32(1/64)}, v{t+6}
        v_cvt_f32_u32 v{t+8}, v2
        v_mul_f32 v{t+8}, 4.0, v{t+8}''')
        for T in range(4):
            if T:
                k(f'v_add_f32 v{t+8}, {f32(16.0)}, v{t+8}')
            k(f'v_mul_f32 v{t+7}, v{t+8}, v{t+6}')
            dft_frag(k, t + 7, t + 6, F64 + 8 * T, F64 + 8 * T + 4, t, False)
        k(f'v_mul_f32 v{a576}, {f32(1/9)}, v{t+6}')
        for lb in range(1, 5):
            k(f'''v_mul_f32 v{t+4}, {f32(float(lb))}, v{a576}
            v_cos_f32 v{tw+2*lb-2}, v{t+4}
            v_sin_f32 v{tw+2*lb-1}, v{t+4}''')
    if OPT['f64'] == 0:
        gen_f64()
    if OPT['a0']:
        L1 = k.lab()
        k(f's_cmp_lt_u32 s2, 202\ns_cbranch_scc1 {L1}')
        vm = list(k.vm)
        if OPT['f64'] == 1:
            gen_f64()
        k.vm = vm
        k('s_barrier')
        k.label(L1)
    ta = st
    k(f'''v_lshrrev_b32 v{t+4}, 5, v0
    v_lshlrev_b32 v{t+4}, 2, v{t+4}
    s_lshl_b32 s48, s{sW}, 3
    s_add_u32 s48, s48, {L_ST}
    v_add_u32 v{t+4}, s48, v{t+4}
    v_bfe_u32 v{t}, v0, 2, 2
    v_mul_u32_u24 v{t}, {XROW}, v{t}
    v_and_b32 v{t+1}, 3, v0
    v_lshl_add_u32 v{t}, v{t+1}, 3, v{t}
    s_lshl_b32 s48, s{sW}, 5
    s_add_u32 s48, s48, {L_X}
    v_add_u32 v{t+1}, s48, v{t}
    v_lshl_add_u32 v{t}, v2, 7, v{t+1}
    v_mov_b32 v{t+2}, {L_ST}
    v_add_u32 v{t+3}, {L_M}, v{la}''')
    for j in range(9):
        k(f'ds_write_b32 v{xw}, v{xr+j} offset:{128*j}')
        k(f'v_lshlrev_b32 v{xf+2*j}, 16, v{xr+j}\nv_and_b32 v{xf+2*j+1}, 0xffff0000, v{xr+j}')
    stats(k, xf, t + 6)
    k(f'ds_write_b32 v{t+4}, v{t+8}\nds_write_b32 v{t+4}, v{t+6} offset:32')
    mark(k, 1)
    if OPT['touch'] == 3:
        tag(k, 'align')
    bar(k, lg=0)
    for i in range(4):
        k(f'ds_read_b128 {Q(st+4*i)}, v{t+2} offset:{16*i}')
    for tt in range(3):
        a = t if tt < 2 else t + 1
        k(f'ds_read_b64_tr_b16 {P(hf+4*tt)}, v{a} offset:{512*tt}')
        k(f'ds_read_b64_tr_b16 {P(hf+4*tt+2)}, v{a} offset:{512*tt+4*XROW}')
    for fi in range(15):
        k(f'ds_read_b128 {Q(mf+4*fi)}, v{t+3} offset:{1024*fi}')
    if OPT['f64'] == 1:
        L1 = k.lab()
        if OPT['a0']:
            k(f's_cmp_ge_u32 s2, 202\ns_cbranch_scc1 {L1}')
        lg, vm = list(k.lg), list(k.vm)
        gen_f64()
        k.lg, k.vm = lg, vm
        k.label(L1)
    for tt in range(3):
        for p in range(4):
            x = xf + 8 * tt + 2 * p
            k(f'''v_lshlrev_b32 v{x}, 16, v{hf+4*tt+p}
            v_and_b32 v{x+1}, 0xffff0000, v{hf+4*tt+p}
            v_pk_fma_f32 {P(x)}, {P(x)}, {P(st+2*p)}, {P(st+8+2*p)}''')
    def gen_m1i(m):
        k(f'''v_and_b32 v{m}, 7, v1
        v_cvt_f32_u32 v{m}, v{m}
        v_mul_f32 v{m}, {f32(0.125)}, v{m}
        v_and_b32 v{m+1}, 1, v2
        v_cvt_f32_u32 v{m+1}, v{m+1}
        v_mul_f32 v{m+1}, 4.0, v{m+1}
        v_mul_f32 v{m+1}, v{m+1}, v{m}
        v_lshrrev_b32 v{m+2}, 3, v1
        v_lshrrev_b32 v{m+3}, 1, v2
        s_lshl_b32 s48, s{sW}, 10
        s_add_u32 s48, s48, {L_MI}
        v_add_u32 v{m+4}, s48, v{la}''')
        for i in range(4):
            o = m + 12 + 4 * (i & 1)
            k(f'''s_add_u32 s48, s{sW}, {4*i}
            s_mul_i32 s49, s48, 43
            s_lshr_b32 s49, s49, 7
            s_mul_i32 s50, s49, 3
            s_sub_u32 s50, s48, s50
            s_lshl_b32 s50, s50, 1
            s_lshl_b32 s49, s49, 1
            v_add_u32 v{m+5}, s49, v{m+2}
            v_add_u32 v{m+6}, s50, v{m+3}
            v_cmp_gt_u32 vcc, 9, v{m+5}
            v_cmp_gt_u32 s[48:49], 5, v{m+6}
            v_mul_u32_u24 v{m+5}, v{m+5}, v{m+6}
            v_cvt_f32_u32 v{m+5}, v{m+5}
            s_and_b64 vcc, vcc, s[48:49]
            v_fma_f32 v{m+5}, v{m+5}, s63, v{m+1}''')
            for j in range(4):
                if j:
                    k(f'v_add_f32 v{m+5}, v{m+5}, v{m}')
                cs_pair(k, m + 5, m + 6 + 2 * (j & 1), m + 7 + 2 * (j & 1), [(o + j, 'c', '-s')])
            for j in range(4):
                k(f'v_cndmask_b32 v{o+j}, 0, v{o+j}, vcc')
            k(f'ds_write_b128 v{m+4}, {Q(o)} offset:{4096*i}')
    if OPT['m1early'] == 1:
        gen_m1i(acc)
    if OPT['m1early'] == 2:
        L1 = k.lab()
        k.wait(lg=0)
        k(f's_cmp_ge_u32 s2, 202\ns_cbranch_scc1 {L1}')
        gen_m1i(acc)
        k.label(L1)
    gen_twi()
    finish_tag(k)
    k(f'''s_lshl_b32 s48, s{sW}, 6
    s_add_u32 s48, s48, {L_E}
    v_mul_u32_u24 v{t}, 576, v2
    v_lshl_add_u32 v{t}, v1, 2, v{t}
    v_add_u32 v{t}, s48, v{t}
    v_mul_u32_u24 v{t+1}, 288, v1
    v_lshl_add_u32 v{t+1}, v2, 4, v{t+1}
    v_add_u32 v{t+1}, {L_E}, v{t+1}
    v_bfe_u32 v{t+9}, v1, 1, 2
    v_xor_b32 v{t+9}, v{t+9}, v2
    v_lshl_add_u32 v{t+9}, v1, 2, v{t+9}
    s_mul_i32 s48, s{sW}, 3072
    s_add_u32 s48, s48, {L_TR}
    v_lshl_add_u32 v{t+9}, v{t+9}, 4, s48
    v_add_u32 v{t+10}, s48, v{la}
    v_lshrrev_b32 v{t+2}, 3, v0
    v_xor_b32 v{t+2}, v{t+2}, v0
    v_and_b32 v{t+2}, 3, v{t+2}
    v_lshlrev_b32 v{t+2}, 4, v{t+2}
    v_lshrrev_b32 v{t+3}, 2, v0
    v_lshl_add_u32 v{t+2}, v{t+3}, 16, v{t+2}
    s_lshl_b32 s48, s{sW}, 14
    s_lshl_b32 s49, s{sS2}, 6
    s_add_u32 s48, s48, s49
    s_add_u32 s48, s48, {WS_T1}
    v_add_u32 v{t+2}, s48, v{t+2}
    v_add_u32 v{t+3}, {1<<20}, v{t+2}
    v_add_u32 v{t+4}, {2<<20}, v{t+2}
    v_cmp_gt_u32 vcc, 32, v0
    v_mov_b32 v{t+5}, {OOB}
    v_cndmask_b32 v{t+4}, v{t+5}, v{t+4}, vcc
    s_lshl_b32 s58, s{sW}, 12
    s_add_u32 s58, s58, {L_MG}
    v_lshl_add_u32 v{ma+3}, v1, 2, s58
    v_lshl_add_u32 v{ma}, v2, 6, v{ma+3}
    v_add_u32 v{ma+3}, 512, v{ma+3}
    v_add_u32 v{ma+1}, 1152, v{ma}
    v_add_u32 v{ma+2}, 2304, v{ma}
    v_add_u32 v{ma+4}, 1152, v{ma+3}
    v_add_u32 v{ma+5}, 2304, v{ma+3}
    v_cmp_gt_u32 vcc, 24, v0
    v_cndmask_b32 v{ma+6}, v{t+5}, v{la}, vcc
    s_mul_i32 s59, s{sJ}, 13824
    s_mul_i32 s48, s{sW}, 3456
    s_add_u32 s59, s59, s48
    s_add_u32 s59, s59, {WS_MODG}
    v_min_u32 v{ma+7}, {31*16}, v{la}
    s_mul_i32 s48, s{sW}, 2560
    s_mul_i32 s60, s{sS2}, 10240
    s_add_u32 s60, s60, s48
    s_add_u32 s60, s60, {WS_T2}
    v_mov_b64 {P(st+12)}, -1
    v_mov_b64 {P(st+14)}, -1
    v_and_b32 v{t+6}, 3, v1
    v_lshlrev_b32 v{t+6}, 3, v{t+6}
    v_bfe_u32 v{t+6}, v{vTAG}, v{t+6}, 8
    s_mov_b32 m0, s58''')
    tag(k, 'touch c1')
    tag(k, 'region c1')
    k.wait(0, 0)
    mark(k, 2)

    def chk():
        for p in range(3):
            for tt in range(3):
                o = 64 * tt if tt < 2 else 0
                k(f'ds_read2_b32 {P(mv+6*p+2*tt)}, v{ma+p+(3 if tt==2 else 0)} offset0:{o} offset1:{o+144}')
        for i in range(0, 18, 2):
            k(f'v_xor_b32 v{mv+i}, v{mv+i}, v{t+6}\nv_xor_b32 v{mv+i+1}, v{mv+i+1}, v{t+6}')
            k(f'v_or3_b32 v{t+8}, v{mv+i}, v{mv+i+1}, v{t+8}' if i else f'v_or_b32 v{t+8}, v{mv}, v{mv+1}')
        k(f'v_and_b32 v{t+8}, 0xff, v{t+8}\nv_cmp_ne_u32 vcc, 0, v{t+8}')

    def clr2():
        for i in range(3):
            k(f'buffer_store_dwordx4 {Q(st+12)}, v{la if i<2 else ma+7}, {WS}, s60 offen offset:{1024*i} sc1')
    if OPT['c2'] == 0:
        clr2()
        k.wait(0)
    if OPT['dly']:
        k(f's_sleep {OPT["dly"]}')
    poll(k, [f'buffer_load_dwordx4 v{la if i<3 else ma+6}, {WS}, s59 offen offset:{1024*i} sc1 lds' for i in range(4)], chk, alt=([59], 0x20000, OPT['nm']))
    mark(k, 3)
    if OPT['c2'] == 1:
        clr2()
    for tt in range(3):
        a = mv + 2 * tt
        k(f'v_pk_add_f32 {P(a)}, {P(a)}, {P(a+6)}')
    for tt in range(3):
        a = mv + 2 * tt
        k(f'v_pk_add_f32 {P(a)}, {P(a)}, {P(a+12)}')
    for tt in range(3):
        a = mv + 2 * tt
        k(f'''v_cvt_pk_bf16_f32 v{a+6}, v{a}, v{a+1}
        v_and_b32 v{a+1}, 0xffff0000, v{a+6}
        v_add_f32 v{a+1}, 1.0, v{a+1}
        v_lshlrev_b32 v{a}, 16, v{a+6}
        v_cvt_pk_bf16_f32 v{a+1}, 0, v{a+1}''')
        for p in range(4):
            x = xf + 8 * tt + 2 * p
            k(f'v_pk_fma_f32 {P(x)}, {P(x)}, {P(a)}, {P(a)} op_sel:[0,1,0] op_sel_hi:[1,1,0]')
        for p in range(4):
            x = xf + 8 * tt + 2 * p
            k(f'v_cvt_pk_bf16_f32 v{hf+4*tt+p}, v{x}, v{x+1}')

    def twid(lb):
        r = []
        for jj in range(2):
            z = acc + 4 * lb + 2 * jj
            o = xf + 4 * (jj + 2 * (lb & 1))
            c = tw + 2 * lb - 2
            if lb == 0:
                r.append(f'v_cvt_pk_bf16_f32 v{o+2}, v{z}, v{z+1}')
            elif OPT['tw1'] & 1:
                r += [f'v_mul_f32 v{o}, v{z}, v{c}', f'v_mul_f32 v{o+1}, v{z+1}, v{c}',
                      f'v_fmac_f32 v{o}, v{z+1}, v{c+1}', f'v_fma_f32 v{o+1}, -v{z}, v{c+1}, v{o+1}',
                      f'v_cvt_pk_bf16_f32 v{o+2}, v{o}, v{o+1}']
            else:
                r += [f'v_pk_mul_f32 {P(o)}, {P(z)}, {P(c)} op_sel_hi:[1,0]',
                      f'v_pk_fma_f32 {P(o)}, {P(z)}, {P(c)}, {P(o)} op_sel:[1,1,0] op_sel_hi:[0,1,1] neg_hi:[1,0,0]',
                      f'v_cvt_pk_bf16_f32 v{o+2}, v{o}, v{o+1}']
            r.append(f'ds_write_b32 v{t}, v{o+2} offset:{(8*lb+jj)*288}')
        return r
    order = [1, 2, 3, 4, 0]
    pend = []
    for x, lb in enumerate(order):
        if x >= 2:
            pend += twid(order[x - 2])
        for tt in range(3):
            a = acc + 4 * lb
            k(f'{MF} {Q(a)}, {Q(mf+4*(3*lb+tt))}, {Q(hf+4*tt)}, ' + ('0' if tt == 0 else Q(a)))
            for _ in range(0 if OPT['tw1'] & 2 else (2 if OPT['tw1'] & 1 else (4 if tt < 2 else 0))):
                if pend:
                    k(pend.pop(0))
    for x in pend + twid(order[3]) + twid(order[4]):
        k(x)
    k.wait(lg=0)
    xmark(k, 'p1', 10)
    k('s_barrier')
    xmark(k, 'p1', 11)
    ef = mf
    for tt in range(3):
        for T in range(4):
            k(f'ds_read_b128 {Q(ef+4*(4*tt+T))}, v{t+1} offset:{16*288*tt+64*T}')
    pend = []
    for tt in range(3):
        for T in range(4):
            for ri in range(2):
                a = acc + 8 * tt + 4 * ri
                k(f'{MF} {Q(a)}, {Q(F64+8*T+4*ri)}, {Q(ef+4*(4*tt+T))}, ' + ('0' if T == 0 else Q(a)))
                if T >= 2 and pend:
                    k(pend.pop(0))
        for x in pend:
            k(x)
        o = hf + 4 * tt
        pend = [f'v_cvt_pk_bf16_f32 v{o+j}, v{acc+8*tt+j}, v{acc+8*tt+4+j}' for j in range(4)]
        st_prev = f'buffer_store_dwordx4 {Q(st+4*(tt-1))}, v{t+1+tt}, {WS}, 0 offen sc1'
        pend.append(f'ds_write_b128 v{t+9}, {Q(o)} offset:{1024*tt}\nds_read_b128 {Q(st+4*tt)}, v{t+10} offset:{1024*tt}')
        if tt:
            pend.append(st_prev)
    for x in pend:
        k(x)
    k(f'buffer_store_dwordx4 {Q(st+8)}, v{t+4}, {WS}, 0 offen sc1')
    if OPT['c2'] == 2:
        clr2()
    mark(k, 4)
    V.p = keep
    za = V(8); zf = V(48, 4); mf = V(60, 4); acc = V(24, 4); ef = V(12, 4); ad = V(8); zl = V(4); xf = V(18, 2)
    yf = zf + 20
    assert za + 8 <= st
    k(f'''v_lshrrev_b32 v{t}, 2, v1
    v_and_b32 v{t}, 2, v{t}
    v_xor_b32 v{t}, v{t}, v2
    v_lshlrev_b32 v{t}, 4, v{t}
    v_lshl_add_u32 v{t}, v1, 8, v{t}
    v_add_u32 v{t}, {L_Z}, v{t}
    v_and_b32 v{t+1}, 7, v1
    v_lshlrev_b32 v{t+1}, 8, v{t+1}
    v_lshl_add_u32 v{t+1}, v2, 4, v{t+1}
    v_add_u32 v{t+1}, {L_Z}, v{t+1}
    v_and_b32 v{t+5}, 3, v1''')
    for T in range(4):
        k(f'''v_xor_b32 v{t+6}, {T}, v{t+5}
        v_lshl_add_u32 v{za+T}, v{t+6}, 6, v{t}
        v_lshl_add_u32 v{za+4+T}, v{t+6}, 6, v{t+1}''')
    k(f'''v_and_b32 v{t}, 7, v1
    v_mul_u32_u24 v{t}, {YROW}, v{t}
    v_lshl_add_u32 v{t}, v2, 4, v{t}
    s_lshl_b32 s48, s{sW}, 6
    s_add_u32 s48, s48, {L_Y}
    v_add_u32 v{t}, s48, v{t}
    v_lshrrev_b32 v{t+1}, 3, v1
    v_lshl_add_u32 v{ad+1}, v{t+1}, 8, v{t}
    v_cmp_gt_u32 vcc, 8, v1
    v_mov_b32 v{t+5}, {L_Y+8*YROW-2048}
    v_cndmask_b32 v{ad}, v{t+5}, v{t}, vcc
    v_lshrrev_b32 v{t+5}, 5, v0
    s_lshl_b32 s48, s{sW}, 1
    v_add_u32 v{t+5}, s48, v{t+5}
    v_and_b32 v{t+6}, 31, v0
    v_mul_u32_u24 v{t}, {YROW}, v{t+5}
    v_lshl_add_u32 v{t}, v{t+6}, 3, v{t}
    v_add_u32 v{ad+2}, {L_Y}, v{t}
    v_mul_u32_u24 v{t}, {XROW}, v{t+5}
    v_lshl_add_u32 v{t}, v{t+6}, 2, v{t}
    v_add_u32 v{ad+3}, {L_H}, v{t}
    v_mul_u32_u24 v{t}, 1152, v{t+5}
    v_lshl_add_u32 v{t}, v{t+6}, 2, v{t}
    v_add_u32 v{ad+7}, {L_Z}, v{t}
    v_lshlrev_b32 v{t}, 3, v{t+6}
    v_add_u32 v{ad+4}, {L_MOD}, v{t}
    v_add_u32 v{a576}, {L_MOD+256}, v{t}
    v_bfe_u32 v{t}, v0, 2, 2
    v_mul_u32_u24 v{t}, {XROW}, v{t}
    v_and_b32 v{t+1}, 3, v0
    v_lshl_add_u32 v{t}, v{t+1}, 3, v{t}
    v_lshl_add_u32 v{t}, v2, 5, v{t}
    s_lshl_b32 s48, s{sW}, 7
    s_add_u32 s48, s48, {L_H}
    v_add_u32 v{ad+5}, s48, v{t}
    v_add_u32 v{ad+6}, {L_MI}, v{la}
    v_min_u32 v{zl}, {31*16}, v{la}
    s_mul_i32 s48, s{sW}, 2560
    s_mul_i32 s66, s{sS2}, 10240
    s_add_u32 s66, s66, s48
    s_add_u32 s66, s66, {WS_T2}
    s_add_u32 s48, s48, {L_Z}
    v_add_u32 v{zl+1}, s48, v{la}
    v_add_u32 v{zl+2}, s48, v{zl}
    s_lshr_b32 s48, s{sJ}, 1
    s_lshl_b32 s48, s48, 12
    s_mul_i32 s49, s{sW}, 640
    s_add_u32 s48, s48, s49
    s_add_u32 s48, s48, {WS_FLAG + 0x8000}
    v_min_u32 v{zl+3}, {39*16}, v{la}
    v_add_u32 v{zl+3}, s48, v{zl+3}''')
    k.wait(0)
    if OPT.get('mk') != 'u':
        mark(k, 1)
    bar(k, 0)
    if OPT['wx'] == 1:
        warm_xch(k, t, ef)
    if not OPT['m1early']:
        gen_m1i(acc)
    if OPT['m1early'] == 2:
        L1 = k.lab()
        k(f's_cmp_lt_u32 s2, 202\ns_cbranch_scc1 {L1}')
        gen_m1i(acc)
        k.label(L1)
    k(f's_lshl_b32 s58, s{sW}, 10')
    k(f'''v_add_u32 v{t}, s58, v{la}
    v_add_u32 v{t+1}, 4096, v{t}
    v_min_u32 v{t+1}, {431*16}, v{t+1}
    v_min_u32 v{t+2}, {143*16}, v{t}
    v_add_u32 v{t+2}, {432*16}, v{t+2}
    s_mov_b32 s56, 0x0c0c0400
    s_mov_b32 s57, 0x04000c0c
    s_mov_b32 s58, {WS_MODB}
    s_mov_b32 s59, {WS_MODB+9216}
    s_mov_b32 s60, {WS_MODB+18432}''')
    mb = zf

    def modb_loads(rounds):
        return [f'buffer_load_dwordx4 {Q(mb+12*x+4*p)}, v{t+rd}, {WS}, s{58+p} offen sc1' for x, rd in enumerate(rounds) for p in range(2)]

    def modb_chk(n):
        def f():
            for x in range(2 * n):
                tag_check4(k, mb + 12 * (x >> 1) + 4 * (x & 1), t + 4, x == 0)
        return f

    def modb_sum(x, one):
        a = mb + 12 * x
        for j in range(8):
            k(f'v_and_b32 v{a+j}, 0xffffff00, v{a+j}')
        for p in (1,):
            k(f'v_pk_add_f32 {P(a)}, {P(a)}, {P(a+4*p)}\nv_pk_add_f32 {P(a+2)}, {P(a+2)}, {P(a+4*p+2)}')
        for j in range(4):
            k(f'v_cvt_pk_bf16_f32 v{a+j}, 0, v{a+j}')
        if one is not None:
            for j in range(4):
                k(f'v_add_f32 v{a+j}, v{a+j}, v{one}')
            for j in range(4):
                k(f'v_cvt_pk_bf16_f32 v{a+j}, 0, v{a+j}')

    def clear_h2():
        c0, n = spec_range(0)
        k(f'v_mov_b64 {P(ef)}, -1\nv_mov_b64 {P(ef+2)}, -1\ns_lshl_b32 s61, s2, 2\ns_add_u32 s61, s61, s{sW}')
        clear_loop(k, 61, 640, 72 * n, lambda: k(f's_lshl_b32 s48, s48, 10\ns_add_u32 s48, s48, {WS_H2 + c0*73728}'), ef, la)
    L1 = k.lab()
    k.wait(lg=0)
    k(f's_cmp_ge_u32 s{sR}, 20\ns_cbranch_scc1 {L1}')
    if OPT['sp1'] and OPT['cl3'] == 0:
        clear_h2()
        k.wait(0)
    k('s_barrier')
    if OPT['sp1'] and OPT['cl3'] == 1:
        clear_h2()
    k.label(L1)
    for l in modb_loads([0, 1]):
        k(l)
    L1 = k.lab()
    k(f's_cmp_ge_u32 s{sR}, 20\ns_cbranch_scc1 {L1}\ns_barrier')
    if OPT['sp1'] and OPT['cl3'] == 1:
        vm = k.vm
        bar(k, 4)
        k.vm = vm
    k.label(L1)
    L2 = k.lab()
    k.wait(0)
    modb_chk(2)()
    k(f's_cbranch_vccz {L2}')
    poll(k, modb_loads([0, 1]), modb_chk(2))
    k.label(L2)
    k(f'v_cmp_le_u32 vcc, {288*16}, v{t+1}\nv_cndmask_b32 v{t+4}, 0, 1.0, vcc')
    modb_sum(0, None)
    modb_sum(1, t + 4)
    k(f'''v_add_u32 v{t+4}, {L_MOD}, v{t}
    v_add_u32 v{t+5}, {L_MOD}, v{t+1}
    ds_write_b128 v{t+4}, {Q(mb)}
    ds_write_b128 v{t+5}, {Q(mb+12)}''')
    L2 = k.lab()
    k(f's_cmp_lg_u32 s2, 255\ns_cbranch_scc1 {L2}')
    k(f's_mov_b32 s50, {WS_MOD+2*2304}')
    k(f'buffer_store_dwordx4 {Q(mb)}, v{t}, {WS}, s50 offen sc1\nbuffer_store_dwordx4 {Q(mb+12)}, v{t+1}, {WS}, s50 offen sc1')
    mb += 24
    poll(k, modb_loads([2]), modb_chk(1))
    modb_sum(0, None)
    k(f'buffer_store_dwordx4 {Q(mb)}, v{t+2}, {WS}, s50 offen sc1')
    k.label(L2)
    for j in range(9):
        k(f'v_lshlrev_b32 v{xf+2*j}, 16, v{xr+j}\nv_and_b32 v{xf+2*j+1}, 0xffff0000, v{xr+j}')
    LN, LJ = k.lab(), k.lab()
    k(f's_cmp_ge_u32 s{sR}, 20\ns_cbranch_scc1 {LN}')
    for fi in range(15):
        k(f'ds_read_b128 {Q(mf+4*fi)}, v{ad+6} offset:{1024*fi}')
    bar(k, lg=0)
    k(f's_branch {LJ}')
    k.label(LN)
    bar(k, lg=0)
    for fi in range(15):
        k(f'ds_read_b128 {Q(mf+4*fi)}, v{ad+6} offset:{1024*fi}')
    if OPT['ec2'] != 2:
        wait_cue(k, 1, t)
    k.wait(lg=0)
    k.label(LJ)
    if OPT['ec2']:
        poll(k, [f'buffer_load_dword v{t}, v{zl+3}, {WS}, 0 offen sc1'], check_tags(k, [t]), masked=True)
    mark(k, 5)
    zi = ef
    poll(k, [f'buffer_load_dwordx4 {Q(zi+4*i)}, v{la if i<2 else zl}, {WS}, s66 offen offset:{1024*i} sc1' for i in range(3)],
         check_sent(k, [zi, zi + 4, zi + 8], t), masked=True, sleep=OPT['sl2'])
    for i in range(3):
        k(f'ds_write_b128 v{zl+1 if i<2 else zl+2}, {Q(zi+4*i)} offset:{1024*i}')
    mark(k, 6)
    bar(k, lg=0)
    xmark(k, 'p3', 1)
    xmark(k, 'q3', 1)
    for tt in range(3):
        for T in range(4):
            k(f'ds_read_b128 {Q(zf+4*(4*tt+T))}, v{za+T+(4 if tt==2 else 0)} offset:{4096*tt}')

    def twid3(tt):
        c = twi + 2 * tt
        if OPT['tw3'] & 1:
            r = []
            for j in range(4):
                re, im, o = acc + 8 * tt + j, acc + 8 * tt + 4 + j, t + 2 * j
                r.append([f'v_mul_f32 v{o}, v{re}, v{c}', f'v_mul_f32 v{o+1}, v{im}, v{c}',
                          f'v_fma_f32 v{o}, -v{im}, v{c+1}, v{o}', f'v_fmac_f32 v{o+1}, v{re}, v{c+1}',
                          f'v_cvt_pk_bf16_f32 v{ef+4*tt+j}, v{o}, v{o+1}'])
            return sum(r, [])
        r = [[], []]
        for p in range(2):
            re, im, o = acc + 8 * tt + 2 * p, acc + 8 * tt + 4 + 2 * p, t + 4 * p
            r[p] = [f'v_pk_mul_f32 {P(o)}, {P(re)}, {P(c)} op_sel_hi:[1,0]',
                    f'v_pk_mul_f32 {P(o+2)}, {P(im)}, {P(c)} op_sel_hi:[1,0]',
                    f'v_pk_fma_f32 {P(o)}, {P(im)}, {P(c)}, {P(o)} op_sel:[0,1,0] neg_lo:[1,0,0] neg_hi:[1,0,0]',
                    f'v_pk_fma_f32 {P(o+2)}, {P(re)}, {P(c)}, {P(o+2)} op_sel:[0,1,0]',
                    f'v_cvt_pk_bf16_f32 v{ef+4*tt+2*p}, v{o}, v{o+2}',
                    f'v_cvt_pk_bf16_f32 v{ef+4*tt+2*p+1}, v{o+1}, v{o+3}']
        return [r[p][2 * q + i] for q in range(3) for p in range(2) for i in range(2)]
    ya = zf
    s2m = [[f'{MF} {Q(acc+8*tt+4*ri)}, {Q(zf+4*(4*tt+T))}, {Q(F64+8*T+4*(1-ri))}, ' + ('0' if T == 0 else Q(acc + 8 * tt + 4 * ri))
            for T in range(4) for ri in range(2)] for tt in range(3)]
    jm = [[f'{MF} {Q(ya+4*mt)}, {Q(ef+4*tt)}, {Q(mf+4*(3*mt+tt))}, ' + ('0' if tt == 0 else Q(ya + 4 * mt))
           for mt in range(5)] for tt in range(3)]

    def weave(mm, vv, skip, per):
        for i, x in enumerate(mm):
            k(x)
            if i >= skip:
                for y in vv[:per]:
                    k(y)
                vv = vv[per:]
        return vv
    if OPT['tw3'] & 2:
        for x in s2m[0] + s2m[1] + s2m[2] + twid3(0) + twid3(1) + jm[0][:1] + twid3(2) + jm[0][1:] + jm[1] + jm[2]:
            k(x)
    else:
        n = len(twid3(0))
        weave(s2m[0], [], 0, 0)
        xmark(k, 'q3', 2)
        rest = weave(s2m[1], twid3(0), 4, 2)
        rest = weave(s2m[2], rest + twid3(1), 0, 2)
        xmark(k, 'q3', 3)
        for x in rest[:max(0, len(rest) - n)]:
            k(x)
        rest = weave(jm[0], rest[max(0, len(rest) - n):] + twid3(2), 0, 2)
        for x in rest[:max(0, len(rest) - n)]:
            k(x)
        rest = weave(jm[1], rest[max(0, len(rest) - n):], 0, 2)
        for x in rest + jm[2]:
            k(x)
        xmark(k, 'q3', 4)
    pos = {0: 0, 2: 2, 1: 4, 3: 6, 4: 8, 6: 10, 5: 12, 7: 14, 8: 16}

    def vec_reads(dst, va, vb, o):
        r = []
        for j in (0, 1, 4, 5):
            e = o // 256 + j
            r.append(f'ds_read2st64_b64 {Q(dst+pos[j])}, v{vb if e & 1 else va} offset0:{e//2} offset1:{e//2+1}')
        return r + [f'ds_read_b64 {P(dst+16)}, v{va} offset:{o+2048}']
    ga, cb, sb = F64, acc, mf
    for x in vec_reads(ga, ad + 4, a576, 0):
        k(x)
    for mt in range(5):
        k(f'ds_write_b128 v{ad+1 if mt<4 else ad}, {Q(ya+4*mt)} offset:{512*mt}')
    for x in vec_reads(cb, ad + 4, a576, 4608) + vec_reads(sb, ad + 4, a576, 2304):
        k(x)
    k.wait(lg=10)
    xmark(k, 'p3', 2)
    xmark(k, 'q3', 5)
    k('s_barrier')
    xmark(k, 'p3', 3)
    for j in range(9):
        k(f'ds_read_b64 {P(yf+2*j)}, v{ad+2} offset:{256*j}')
    k(f'''s_mul_i32 s48, s{sS2}, 9216
    s_lshl_b32 s49, s{sW}, 10
    s_add_u32 s48, s48, s49
    s_add_u32 s48, s48, {WS_H2}
    s_add_u32 s49, s48, 4096
    s_add_u32 s50, s48, 8192''')
    u = t + 6
    for j in range(9):
        k(f'v_pk_fma_f32 {P(xf+2*j)}, {P(yf+2*j)}, {P(ga+pos[j])}, {P(xf+2*j)}')
    stats(k, xf, u)
    for j in range(9):
        k(f'v_pk_fma_f32 {P(yf+2*j)}, {P(xf+2*j)}, {P(u+2)}, {P(u)} op_sel_hi:[1,0,0]')
    for j in range(9):
        k(f'v_pk_fma_f32 {P(yf+2*j)}, {P(yf+2*j)}, {P(cb+pos[j])}, {P(sb+pos[j])}')
    stats(k, yf, u)
    for j in range(9):
        k(f'v_pk_fma_f32 {P(yf+2*j)}, {P(yf+2*j)}, {P(u+2)}, {P(u)} op_sel_hi:[1,0,0]')
        k(f'v_cvt_pk_bf16_f32 v{xr+j}, v{yf+2*j}, v{yf+2*j+1}')
        if j & 1:
            k(f'ds_write2_b32 v{ad+3}, v{xr+j-1}, v{xr+j} offset0:{32*j-32} offset1:{32*j}')
    k(f'ds_write_b32 v{ad+3}, v{xr+8} offset:1024')
    k.wait(lg=0)
    xmark(k, 'p3', 4)
    k('s_barrier')
    xmark(k, 'p3', 5)
    for i in range(3):
        o = acc + 4 * i
        k(f'ds_read_b64_tr_b16 {P(o)}, v{ad+5} offset:{512*i}')
        k(f'ds_read_b64_tr_b16 {P(o+2)}, v{ad+5} offset:{512*i+4*XROW}')
    for i in range(2):
        k(f'buffer_store_dwordx4 {Q(acc+4*i)}, v{la}, {WS}, s{48+i} offen sc1')
    L1 = k.lab()
    k.wait(lg=0)
    k(f's_cmp_lg_u32 s{sW}, 0\ns_cbranch_scc1 {L1}')
    k(f'buffer_store_dwordx4 {Q(acc+8)}, v{la}, {WS}, s50 offen sc1')
    k.label(L1)
    mark(k, 7)
    for j in range(9):
        k(f'v_cvt_pk_bf16_f32 v{xr+j}, v{xf+2*j}, v{xf+2*j+1}')
    for j in range(0, 8, 2):
        k(f'ds_write2_b32 v{ad+7}, v{xr+j}, v{xr+j+1} offset0:{32*j} offset1:{32*j+32}')
    k(f'ds_write_b32 v{ad+7}, v{xr+8} offset:1024')
    bar(k, lg=0)
    V.p = base
    la2 = V(); t = V(8); vA0 = V(); vA40 = V(); vW0 = V(2); vA = V(); vA4 = V(); vW = V(2)
    fa = V(48, 4); fw = V(16, 4); rg = V(96, 4)
    V.p = 204
    acc = V(48, 4)

    def w_read_addr(extra):
        k(f'''v_lshrrev_b32 v{t}, 2, v0
        v_and_b32 v{t+1}, 7, v{t}
        s_lshl_b32 s59, s{sW}, 1
        s_add_u32 s59, s59, {extra}
        v_xor_b32 v{t+1}, s59, v{t+1}
        v_xor_b32 v{t+2}, 1, v{t+1}
        v_and_b32 v{t+3}, 3, v0
        v_lshlrev_b32 v{t+3}, 3, v{t+3}
        v_lshl_add_u32 v{t}, v{t}, 8, v{t+3}
        v_lshl_add_u32 v{vW0}, v{t+1}, 5, v{t}
        v_lshl_add_u32 v{vW0+1}, v{t+2}, 5, v{t}''')
    LN, LJ = k.lab(), k.lab()
    k(f's_cmp_ge_u32 s{sR}, 27\ns_cbranch_scc1 {LN}')
    w_read_addr(0)
    rg1 = [rg + 16 * x for x in range(6)]
    for x in preload_w(vW0, vW, list(enumerate(rg1))):
        k(x)
    if OPT['rf']:
        bar(k, lg=0)
    bar(k, 0, 0)
    nx = len(reg_stages(0)) - 6
    rgx = [188, fa + 24][:nx]
    k(f'''v_mul_u32_u24 v{vA0}, 1536, v2
    v_lshl_add_u32 v{vA0}, v1, 4, v{vA0}
    v_add_u32 v{vA0}, {L_ACT}, v{vA0}''')
    for nt in range(2):
        for p in range(2):
            a = acc + 4 * nt + 2 * p
            k(f'v_lshlrev_b32 v{a}, 16, v{bb+2*nt+p}\nv_and_b32 v{a+1}, 0xffff0000, v{bb+2*nt+p}')
    for mt in range(1, 6):
        for i in range(0, 8, 2):
            k(f'v_mov_b64 {P(acc+8*mt+i)}, {P(acc+i)}')
    if nx:
        k('s_barrier')
        for x in preload_w(vW0, vW, list(enumerate(rgx))):
            k(x)
        bar(k, lg=0)
    tag(k, 'touch c2')
    tag(k, 'region c2')
    gemm_c(k, 6, 32, 5, 12288, vA0, None, vW0, vW, fa, fw, acc, rg1 + rgx, reg_stages(0), True, at_end=lambda: k('s_barrier'),
           single=nx == 2 or OPT['single'], slot0=nx)
    mark(k, 8)
    k(f'''s_lshl_b32 s48, s51, 2
    s_add_u32 s48, s48, s{sW}
    s_mul_i32 s48, s48, {4*9216}
    s_mul_i32 s49, s52, {96*16}
    s_add_u32 s48, s48, s49
    s_add_u32 s48, s48, {WS_U}
    v_mul_u32_u24 v{vA}, 9216, v2
    v_lshl_add_u32 v{vA}, v1, 4, v{vA}
    s_mov_b32 s60, {f32(-2*0.7978845608028654*0.044715*1.4426950408889634)}
    v_mov_b32 v{bb}, {f32(-2*0.7978845608028654*1.4426950408889634)}''')
    for mt in range(6):
        q = fa + 8 * (mt & 1)
        o = fw + 4 * (mt & 1)
        a = acc + 8 * mt
        for i in range(0, 8, 2):
            k(f'v_pk_mul_f32 {P(q+i)}, {P(a+i)}, {P(a+i)}')
        for i in range(0, 8, 2):
            k(f'v_pk_fma_f32 {P(q+i)}, {P(q+i)}, s[60:61], {P(bb)} op_sel_hi:[1,0,0]')
        for i in range(0, 8, 2):
            k(f'v_pk_mul_f32 {P(q+i)}, {P(q+i)}, {P(a+i)}')
        for i in range(8):
            k(f'v_exp_f32 v{q+i}, v{q+i}')
        for i in range(0, 8, 2):
            k(f'v_pk_add_f32 {P(q+i)}, {P(q+i)}, 1.0 op_sel_hi:[1,0]')
        for i in range(8):
            k(f'v_rcp_f32 v{q+i}, v{q+i}')
        for i in range(0, 8, 2):
            k(f'v_pk_mul_f32 {P(q+i)}, {P(q+i)}, {P(a+i)}')
        for i in range(4):
            k(f'v_cvt_pk_bf16_f32 v{o+i}, v{q+2*i}, v{q+2*i+1}')
        k(f'buffer_store_dwordx4 {Q(o)}, v{vA}, {WS}, s48 offen offset:{256*mt} sc1')
    mark(k, 9)
    k(f's_branch {LJ}')
    tag(k, 'region -')
    k.label(LN)
    k.fresh()
    bar(k, 0)
    srd(k, 40, pW1, S * F * 2)
    srd(k, 44, pW2, S * F * 2)
    k(f'''s_mul_i32 s56, s{sW}, 5
    s_add_u32 s56, s56, s{sR}
    s_sub_u32 s56, s56, 27
    s_add_u32 s57, s56, {OPT['pf2'] + 10*OPT['pf3'] + 27*OPT['pf7']}
    s_add_u32 s56, s56, {OPT['pf9']}''')
    pf_loop(k, 1, 57, 20, min(32 * OPT['nl'], OPT['pfw1']), t, 40)
    pf_loop(k, 2, 56, 20, min(OPT['pf5'], 288 - 2 * leaders(1)[1] * OPT['pf8'] - 2 * leaders(0)[1] * OPT['pf4'] - 54 * OPT['pfa'] - 27 * OPT['su'] + OPT['n4x']), t + 4, 44)
    if OPT['wo']:
        srd(k, 40, pOUT, S * D * 2)
        k(f'''s_mul_i32 s56, s{sW}, 5
        s_add_u32 s56, s56, s{sR}
        s_sub_u32 s56, s56, 27
        s_lshl_b32 s56, s56, 1
        s_mul_i32 s57, s{sJ}, 36
        v_lshlrev_b32 v{t}, 7, v0''')
        for x in range(2):
            k(f'''s_add_u32 s48, s56, {x}
            s_min_u32 s48, s48, 35
            s_add_u32 s48, s48, s57
            s_lshl_b32 s48, s48, 13''')
            k.raw(f'    buffer_load_dword v{t+1}, v{t}, s[40:43], s48 offen {("", "", "nt", "sc1")[OPT["wo"]]}')
    k.wait(0)
    mark(k, 9)
    bar(k, 0)
    tag(k, 'region c2')
    tag(k, 'target')
    k.label(LJ)
    k('s_lshr_b32 s58, s53, 1')
    w_read_addr('s58')
    k('s_barrier')
    xmark(k, 'h4', 1)
    for x in preload_w(vW0, vW, [((2 + x) % 6, rg1[x]) for x in range(6)]):
        k(x)
    k.wait(lg=0)
    if OPT['rf2']:
        k('s_barrier')
    xmark(k, 'h4', 2)
    bar(k, 0)
    xmark(k, 'h4', 3)
    vAo, vA4g, vAx, og4 = vA0, vA40, vA, vA4
    accf = lambda mt, nt: (188 + 4 * (2 * mt + nt)) if 2 * mt + nt < 17 else 64
    og = 68
    free = quads(rg1, reg_stages(1), OPT['defer'])[1]
    assert len(free) >= 14
    sq = [free[3 * x:3 * x + 3] for x in range(3)]
    gq = free[9:14]
    x1 = fa
    qf = fa + 16
    oa = bb
    k(f'''s_and_b32 s58, s53, 1
    s_mul_i32 s48, s58, 1280
    s_sub_u32 s49, 1280, s48
    v_mul_u32_u24 v{t}, 2304, v2
    v_add_u32 v{t}, {L_ACT2}, v{t}
    v_lshl_add_u32 v{t+2}, v1, 4, v{t}
    v_add_u32 v{vAo}, s48, v{t+2}
    v_add_u32 v{vAx}, s49, v{t+2}
    s_lshl_b32 s48, s58, 3
    v_xor_b32 v{t+1}, s48, v1
    v_lshl_add_u32 v{vA4g}, v{t+1}, 4, v{t}
    v_add_u32 v{vA4g}, 1024, v{vA4g}
    v_lshlrev_b32 v{la2}, 4, v0''')
    k(f'v_lshlrev_b32 v{b2}, 16, v{b2}\nv_cmp_gt_u32 vcc, 32, v0\nv_cndmask_b32 v{t}, 0, v{b2}, vcc')
    for mt in range(9):
        for nt in range(2):
            a = accf(mt, nt)
            if nt == 0 and mt <= 4:
                for i in range(4):
                    k(f'v_mov_b32 v{a+i}, v{b2 if mt < 4 else t}')
            else:
                k(f'v_mov_b64 {P(a)}, 0\nv_mov_b64 {P(a+2)}, 0')
    srd(k, 44, pOUT, S * D * 2)
    k(f'''s_mul_i32 s48, s{sW}, {16*144}
    s_add_u32 s48, s48, {L_X1}
    v_mul_u32_u24 v{t}, 144, v1
    v_lshl_add_u32 v{t}, v2, 3, v{t}
    v_add_u32 v{t}, s48, v{t}
    v_add_u32 v{oa+3}, s48, v{la2}
    s_lshl_b32 s49, s58, 4
    v_add_u32 v{oa}, s49, v{t}
    s_lshl_b32 s49, s58, 7
    s_sub_u32 s49, 128, s49
    v_add_u32 v{t}, s49, v{t}
    v_cmp_gt_u32 vcc, 32, v0
    v_mov_b32 v{t+1}, {L_GB + 512}
    v_cndmask_b32 v{oa+1}, v{t+1}, v{t}, vcc
    v_lshlrev_b32 v{t}, 4, v2
    v_add_u32 v{t}, {L_GB}, v{t}
    s_lshl_b32 s49, s58, 5
    v_add_u32 v{oa+2}, s49, v{t}
    s_lshl_b32 s49, s58, 8
    s_sub_u32 s49, 256, s49
    v_add_u32 v{og4}, s49, v{t}
    s_lshl_b32 s48, s59, 4
    s_lshl_b32 s49, s54, 7
    s_add_u32 s48, s48, s49
    s_mul_i32 s48, s48, 1152
    s_mul_i32 s49, s55, 288
    s_add_u32 s62, s48, s49
    s_mul_i32 s49, s58, 144
    s_add_u32 s62, s62, s49''')
    for i in range(3):
        k(f'''v_add_u32 v{t}, {64*i}, v0
        v_mul_u32_u24 v{t+1}, 911, v{t}
        v_lshrrev_b32 v{t+1}, 13, v{t+1}
        v_mul_u32_u24 v{t+1}, {1152-144}, v{t+1}
        v_lshl_add_u32 v{og+i}, v{t}, 4, v{t+1}''')
    k(f'''v_cmp_gt_u32 vcc, 16, v0
    v_mov_b32 v{t+1}, {OOB}
    v_cndmask_b32 v{og+2}, v{t+1}, v{og+2}, vcc
    s_mul_i32 s48, s{sW}, {XW}
    s_add_u32 s48, s48, {WS_XCH}
    s_mul_i32 s64, s2, {XB}
    s_add_u32 s64, s64, s48
    v_and_b32 v{t}, 3, v0
    v_cmp_eq_u32 vcc, 0, v{t}
    v_lshlrev_b32 v27, 2, v0
    v_cndmask_b32 v26, v{t+1}, v27, vcc
    s_mul_i32 s49, s{sW}, {2*XW}
    s_add_u32 s49, s49, {L_S}
    v_add_u32 v71, s49, v{la2}''')
    if OPT['xc'] == 3:
        k(f'v_mov_b64 {P(72)}, -1')
    else:
        k(f'v_add_u32 v72, {4*AST2}, v{vAo}\nv_add_u32 v75, {4*AST2}, v{vA4g}\nv_add_u32 v74, {4*AST2}, v{vAx}')
    for x in range(1, 4):
        k(f'''s_xor_b32 s{64+x}, s2, {2*x}
        s_mul_i32 s{64+x}, s{64+x}, {XB}
        s_add_u32 s{64+x}, s{64+x}, s48
        s_add_u32 s{64+x}, s{64+x}, {XM*(x-1)}''')
    cue = OPT['xcue']
    assert not cue
    if cue:
        k(f'''v_cmp_gt_u32 vcc, 8, v0
        v_cndmask_b32 v27, v{t+1}, v{la2}, vcc
        s_lshl_b32 s48, s{sW}, 7
        s_add_u32 s48, s48, {WS_XCUE}
        s_mul_i32 s61, s2, 1536
        s_add_u32 s61, s61, s48''')
        for x, r in ((1, 56), (2, 57), (3, 60)):
            k(f'''s_xor_b32 s{r}, s2, {2*x}
            s_mul_i32 s{r}, s{r}, 1536
            s_add_u32 s{r}, s{r}, s48
            s_add_u32 s{r}, s{r}, {512*(x-1)}''')
    mbox = [f'buffer_load_dwordx4 {Q(sq[0][c])}, v{la2}, {WS}, s64 offen offset:{1024*c} sc1' for c in range(2)] + \
           [f'buffer_load_dword v{sq[0][2]}, v27, {WS}, s64 offen offset:2048 sc1']
    sel = fw

    def g2_end():
        xmark(k, 'x', 2)
        k('s_barrier')
        xmark(k, 'x', 3)
        for mt in range(4):
            k(f'ds_read_b64 {P(x1+2*mt)}, v{oa} offset:{32*mt}\nds_read_b128 {Q(gq[mt])}, v{oa+2} offset:{64*mt}')
        k(f'ds_read_b64 {P(x1+8)}, v{oa+1}\nds_read_b128 {Q(gq[4])}, v{og4}')

    def message(x, nt, rows, r8):
        b, r = sq[x - 1], list(r8)
        r += [f'v_mov_b32_dpp v{b[2]+j}, v{b[2]} quad_perm:[{j},{j},{j},{j}] row_mask:0xf bank_mask:0xf' for j in (1, 2, 3)]
        for c in range(2):
            for i in range(4):
                a = accf(rows[2 * c + (i >> 1)], nt) + 2 * (i & 1)
                r.append(f'v_cvt_pk_bf16_f32 v{b[c]+i}, v{a}, v{a+1}')
            r.append(f'buffer_store_dwordx4 {Q(b[c])}, v{la2}, {WS}, s{64+x} offen offset:{1024*c} sc1')
        r.append(f'buffer_store_dwordx4 {Q(b[2])}, v26, {WS}, s{64+x} offen offset:2048 sc1')
        if cue:
            r.append(f'buffer_store_dwordx4 {Q(t+4)}, v27, {WS}, s{(56, 57, 60)[x-1]} offen sc1')
        return r

    def split4(nt, own, other):
        a = accf(4, nt)
        return [f'v_cvt_pk_bf16_f32 v{own}, v{a}, v{a+1}', f'v_cvt_pk_bf16_f32 v{other}, v{a+2}, v{a+3}',
                f'v_permlane32_swap_b32 v{own}, v{other}']

    def send_bc():
        if OPT.get('mk') != 'p1':
            mark(k, 10)
        if cue:
            for i in range(4):
                k(f'v_mov_b32 v{t+4+i}, v{vTAG}')
        s4 = split4(1, sq[1][2], sq[2][2])
        return message(3, 1, [5, 6, 7, 8], s4) + message(2, 1, [0, 1, 2, 3], [])

    def selectors():
        z, u = sel, t
        return [f'v_lshrrev_b32 v{u}, 2, v1', f'v_and_b32 v{u+1}, 1, v1', f'v_lshlrev_b32 v{u+1}, 4, v{u+1}',
                f'v_mov_b32 v{u+2}, 0x3f80', f'v_lshlrev_b32 v{u+1}, v{u+1}, v{u+2}',
                f'v_and_b32 v{u+2}, 2, v1', f'v_add_u32 v{u+3}, v{u}, v{u+2}',
                f'v_cmp_eq_u32 vcc, v{u}, v2', f'v_cndmask_b32 v{z+4}, 0, v{u+1}, vcc',
                f'v_cmp_eq_u32 vcc, v{u+3}, v2', f'v_cndmask_b32 v{z}, 0, v{u+1}, vcc',
                f'v_cmp_gt_u32 vcc, 8, v1', f'v_cndmask_b32 v{z}, 0, v{z}, vcc',
                f'v_cmp_eq_u32 vcc, 0, v{u+2}', f'v_cndmask_b32 v{z+5}, v{z+4}, 0, vcc', f'v_cndmask_b32 v{z+4}, 0, v{z+4}, vcc',
                f'v_mov_b32 v{z+1}, v{z}', f'v_mov_b64 {P(z+2)}, 0', f'v_mov_b64 {P(z+6)}, 0']
    send_a = lambda: (xmark(k, 'x', 1), message(1, 0, [5, 6, 7, 8], split4(0, t + 3, sq[0][2])) + selectors())[1]
    tag(k, 'touch c3')
    tag(k, 'region c3')
    fill, drain = {}, None
    if OPT['xc'] == 3:
        c0, cn = OPT['xclr']
        k(f'''v_mov_b64 {P(74)}, -1
        s_mul_i32 s63, s2, {XB}
        s_lshl_b32 s48, s{sW}, 10
        s_add_u32 s63, s63, s48
        s_add_u32 s63, s63, {WS_XCH}
        s_cmp_eq_u32 s{sW}, 3
        s_cselect_b32 s56, {5*4096}, {6*4096}'''.replace('s_cselect_b32 s56, 20480, 24576', 's_cselect_b32 s56, 4096, 0\ns_sub_u32 s56, 24576, s56'))
        for x in range(7):
            q = 2 * c0 + x * 2 * cn // 7
            so = f's_add_u32 s57, s63, {4096*x}' if x < 6 else 's_add_u32 s57, s63, s56'
            fill.setdefault(q, []).extend([so, f'buffer_store_dwordx4 {Q(72)}, v{la2}, {WS}, s57 offen sc1'])
        drain = 2 * OPT['xrdy'][0]
    gemm2_c(k, vAo, vAx, vA4g, vW0, vW, fa, fw, accf, rg1, reg_stages(1), OPT['defer'], send_bc, send_a, g2_end, fill, drain, (72, 75, 74))

    def add_message(q0, th):
        for i in range(4):
            a = accf(i, 0)
            k(f'{MF} {Q(a)}, {Q(sel + (4 if i % 2 == 0 else 2))}, {Q(q0[i >> 1])}, {Q(a)}')
        if th is not None:
            a = accf(4, 0)
            k(f'{MF} {Q(a)}, {Q(sel)}, {Q(th)}, {Q(a)}')
    k(f's_mul_i32 s49, s{sW}, {2*XW}\ns_add_u32 s49, s49, {L_S}\nv_add_u32 v73, s49, v27')
    for i in range(10):
        k(f'v_lshlrev_b32 v{qf+2*i}, 16, v{x1+i}\nv_and_b32 v{qf+2*i+1}, 0xffff0000, v{x1+i}')
    xmark(k, 'x', 4)
    k.wait(0)
    if OPT.get('mk') != 'p1':
        mark(k, 11)
    if cue == 1:
        k(f'v_mov_b32 v{t}, 0')
        poll(k, [f'buffer_load_dword v{t+1}, v{t}, {WS}, s61 offen sc1'], check_tags(k, [t + 1]), sleep=OPT['xsl'])
    k(f'v_mov_b32 v{sq[0][2]+1}, 0\nv_mov_b64 {P(sq[0][2]+2)}, 0\nv_mov_b64 {P(sq[1][2]+2)}, 0')
    for l in mbox:
        k(l)
    k('s_barrier')
    xmark(k, 'x', 5)
    for x in range(2):
        for c in range(2):
            k(f'ds_read_b128 {Q(sq[x+1][c])}, v71 offset:{XW*x+1024*c}')
    k(f'ds_read_b32 v{sq[1][2]}, v73 offset:2048\nds_read_b32 v{sq[1][2]+1}, v73 offset:{XW+2048}')
    add_message(sq[1], None)
    add_message(sq[2], sq[1][2])
    k.wait(0)
    L1 = k.lab()
    sent = check_sent(k, sq[0], t)
    sent()
    k(f's_cbranch_vccz {L1}')
    poll(k, mbox, sent, masked=True)
    k.label(L1)
    xmark(k, 'x', 6)
    add_message(sq[0], sq[0][2])
    for mt in (0, 1, 2, 3, 4):
        q, a = qf + 4 * mt, accf(mt, 0)
        for p in range(2):
            k(f'v_pk_fma_f32 {P(q+2*p)}, {P(a+2*p)}, {P(gq[mt]+2*p)}, {P(q+2*p)}')
        for p in range(2):
            k(f'v_cvt_pk_bf16_f32 v{x1+2*mt+p}, v{q+2*p}, v{q+2*p+1}')
        k(f'ds_write_b64 v{oa}, {P(x1+2*mt)} offset:{32*mt}' if mt < 4 else f'ds_write_b64 v{oa+1}, {P(x1+8)}')
    xmark(k, 'x', 7)
    if OPT.get('outlin'):
        k(f's_mul_i32 s62, s2, 9216\ns_mul_i32 s48, s{sW}, 2304\ns_add_u32 s62, s62, s48')
        k(f'v_mov_b32 v{og}, v{la2}\nv_add_u32 v{og+1}, 1024, v{la2}\nv_add_u32 v{t}, 2048, v{la2}\nv_cmp_gt_u32 vcc, 16, v0\nv_mov_b32 v{t+1}, {OOB}\nv_cndmask_b32 v{og+2}, v{t+1}, v{t}, vcc')
    for i in range(3):
        k(f'ds_read_b128 {Q(gq[i])}, v{oa+3} offset:{1024*i}')
    for i in range(3):
        k(f'buffer_store_dwordx4 {Q(gq[i])}, v{og+i}, s[44:47], s62 offen {OPT["outflag"]}')
    k('s_branch L_end')


def gen_H(k):
    V = Alloc(4, 256)
    t = V(12); la = V(); fl = V(3, 1); wa = V(3, 1); sa_ = V(3, 1); c0 = V(2); mo = V(4); ones = V(4, 4)
    ld = V(16, 4); Fa = V(8, 4); Fai = V(8, 4); Fb = V(32, 4); Fbi = V(32, 4)
    wv = V(32, 4); acc = V(32, 4); pk = V(16, 4); a0 = V(); a1 = V(); a2 = V(); a3 = V(); a4 = V(); a5 = V(); g4 = V(); lf = V(); dum = V(4); wp = V(16, 4)
    g = acc
    k(f'v_lshlrev_b32 v{la}, 4, v0\nv_mov_b32 v{mo+2}, {OOB}\nv_mov_b32 v{t+8}, {OOB}\nv_mov_b32 v{fl+1}, {OOB}')
    k(f'''s_sub_u32 s63, 255, s2
    s_mul_i32 s62, s63, 171
    s_lshr_b32 s62, s62, 9
    s_mul_i32 s48, s62, 3
    s_sub_u32 s61, s63, s48''')

    def skip_unless(reg, val, op='lg'):
        L = k.lab()
        k(f's_cmp_{op}_u32 s{reg}, {val}\ns_cbranch_scc1 {L}')
        k.cond += 1
        return L

    def endif(L):
        k.cond -= 1
        k.label(L)

    def mod_addr(urgent, part=3):
        if part & 1:
            k(f'''v_lshrrev_b32 v{t}, 3, v0
        v_and_b32 v{t+1}, 7, v0
        v_and_b32 v{t+2}, 6, v{t}
        v_xor_b32 v{t+1}, v{t+1}, v{t+2}
        v_mul_u32_u24 v{t}, 6912, v{t}
        v_lshl_add_u32 v{t+8}, v{t+1}, 4, v{t}
        s_lshl_b32 s48, s61, 2
        s_add_u32 s48, s48, s{sW}
        s_mul_i32 s48, s48, {(48 if urgent else 72)*6912}
        s_lshl_b32 s49, s62, 7
        s_add_u32 s47, s48, s49
        s_lshl_b32 s50, s{sW}, 8
        v_lshl_add_u32 v{c0+1}, v0, 2, s50
        s_mul_i32 s49, s61, {384 if urgent else 576}
        v_add_u32 v{t+5}, s49, v{c0+1}
        v_add_u32 v{t+8}, s47, v{t+8}''')
        if not part & 2:
            return
        k(f'''v_lshrrev_b32 v{t}, 2, v0
        v_bfe_u32 v{t+1}, v{t}, 1, 2
        v_xor_b32 v{t+1}, s{sW}, v{t+1}
        v_lshlrev_b32 v{t+1}, 5, v{t+1}
        v_lshlrev_b32 v{t}, 7, v{t}
        v_and_b32 v{t+2}, 3, v0
        v_lshlrev_b32 v{t+2}, 3, v{t+2}
        v_add3_u32 v{mo}, v{t}, v{t+1}, v{t+2}
        v_lshlrev_b32 v{mo+1}, 3, v2
        v_add_u32 v{mo+1}, {L_SILU}, v{mo+1}''')
        if urgent:
            k(f'''s_mul_i32 s48, s{sW}, 3456
            s_mul_i32 s49, s61, 1152
            s_add_u32 s48, s48, s49
            s_lshl_b32 s49, s62, 6
            s_add_u32 s48, s48, s49
            s_add_u32 s48, s48, {WS_MODG}
            v_mul_u32_u24 v{t}, 13824, v2
            v_lshl_add_u32 v{t}, v1, 2, v{t}
            v_add_u32 v{mo+2}, s48, v{t}
            v_add_u32 v{mo+3}, {4*13824}, v{mo+2}''')
        else:
            k(f'''s_mul_i32 s49, s61, 9216
            s_lshl_b32 s50, s62, 8
            s_add_u32 s49, s49, s50
            s_lshl_b32 s50, s{sW}, 6
            s_add_u32 s49, s49, s50
            s_add_u32 s49, s49, {WS_MODB - 18*256}
            v_lshl_add_u32 v{t}, v1, 2, s49
            v_cmp_gt_u32 vcc, 16, v0
            v_mov_b32 v{t+1}, {OOB}
            v_cndmask_b32 v{mo+2}, v{t+1}, v{t}, vcc''')

    def mod_loads(n, i0, i1):
        if i0 == 0:
            k(f's_mul_i32 m0, s{sW}, {1024*n}\ns_mov_b32 s59, 0')
        for i in range(i0, i1):
            k(f'buffer_load_dwordx4 v{t+8}, s[40:43], s59 offen lds')
            if i < n - 1:
                k(f's_add_u32 m0, m0, 1024\ns_add_u32 s59, s59, {8*6912}')

    def c_load():
        srd(k, 44, pC, D * 2)
        k(f'buffer_load_dword v{c0}, v{t+5}, s[44:47], 0 offen')

    def mod_silu():
        k(f'''v_lshlrev_b32 v{t}, 16, v{c0}
        v_and_b32 v{t+1}, 0xffff0000, v{c0}
        v_mul_f32 v{t+2}, {f32(-1.4426950408889634)}, v{t}
        v_mul_f32 v{t+3}, {f32(-1.4426950408889634)}, v{t+1}
        v_exp_f32 v{t+2}, v{t+2}
        v_exp_f32 v{t+3}, v{t+3}
        v_add_f32 v{t+2}, 1.0, v{t+2}
        v_add_f32 v{t+3}, 1.0, v{t+3}
        v_rcp_f32 v{t+2}, v{t+2}
        v_rcp_f32 v{t+3}, v{t+3}
        v_mul_f32 v{t}, v{t}, v{t+2}
        v_mul_f32 v{t+1}, v{t+1}, v{t+3}
        v_cvt_pk_bf16_f32 v{c0}, v{t}, v{t+1}
        v_add_u32 v{c0+1}, {L_SILU}, v{c0+1}
        ds_write_b32 v{c0+1}, v{c0}''')

    def mod_compute(urgent):
        c = k.cond
        k.cond = 0
        k.lg = []
        n = 6 if urgent else 9
        g = wv
        for stp in range(n):
            a = g + stp * 8
            k(f'''ds_read_b64_tr_b16 {P(a)}, v{mo} offset:{stp*4096}
            ds_read_b64_tr_b16 {P(a+2)}, v{mo} offset:{stp*4096+2048}
            ds_read2_b64 {Q(a+4)}, v{mo+1} offset0:{stp*8} offset1:{stp*8+4}''')
        k(f'v_and_b32 v{t}, 3, v1\nv_or_b32 v{t}, 0x07060500, v{t}')
        for stp in range(n):
            a = g + stp * 8
            k(f'{MF} {Q(ld)}, {Q(a+4)}, {Q(a)}, ' + ('0' if stp == 0 else Q(ld)))
        k(f'v_add_u32 v{ld+4}, 0x80, v{ld}\nv_perm_b32 v{ld+4}, v{ld+4}, v{vTAG}, v{t}')
        k.cond = c
        if urgent:
            k.wait(OPT['warm'])
        for a in range(OPT['nm'] if urgent else 1):
            k(f's_mov_b32 s48, {a*0x20000}')
            for i in range(2 if urgent else 1):
                k(f'buffer_store_dword v{ld+4}, v{mo+2+i}, {WS}, s48 offen sc1')

    def wp_addr():
        k(f'''s_lshl_b32 s67, s{sJ}, 4
        s_add_u32 s67, s67, s{sR}
        s_and_b32 s67, s67, 127
        s_lshl_b32 s48, s{sW}, 9
        s_add_u32 s48, s48, s67
        s_mul_i32 s69, s{sW}, 6144
        s_add_u32 s69, s69, {L_WST}
        s_cmp_eq_u32 s67, 0
        s_cselect_b32 s68, 38, 0
        s_add_u32 s68, s68, 152
        v_mov_b32 v{t+4}, {OOB}''')
        for i in range(3):
            k(f'''v_add_u32 v{t}, {64*i}, v0
            v_mul_u32_u24 v{t+1}, 1725, v{t}
            v_lshrrev_b32 v{t+1}, 16, v{t+1}
            v_mul_u32_u24 v{t+2}, 38, v{t+1}
            v_sub_u32 v{t+2}, v{t}, v{t+2}
            v_cmp_gt_u32 vcc, s68, v{t}
            v_lshl_add_u32 v{t+1}, v{t+1}, 7, s48
            v_and_b32 v{t+1}, 2047, v{t+1}
            v_mul_u32_u24 v{t+1}, 578, v{t+1}
            v_and_b32 v{t+1}, 0xfffffff0, v{t+1}
            v_lshl_add_u32 v{t+1}, v{t+2}, 4, v{t+1}
            v_cndmask_b32 v{wa+i}, v{t+4}, v{t+1}, vcc''')

    def wp_gather():
        k(f'''s_lshl_b32 s48, s67, 1
        s_and_b32 s48, s48, 15
        s_add_u32 s48, s48, s69
        v_and_b32 v{t}, 1, v2
        v_lshrrev_b32 v{t+1}, 1, v2
        v_mul_u32_u24 v{t+2}, 144, v{t}
        v_mad_u32_u24 v{t+2}, v1, 9, v{t+2}
        v_add_lshl_u32 v{t+2}, v{t+2}, v{t+1}, 1
        v_add_u32 v{wa}, s48, v{t+2}
        s_cmp_eq_u32 s67, 0
        s_cselect_b32 s49, 608, 0
        s_add_u32 s48, s48, s49
        s_add_u32 s48, s48, {576-8}
        v_sub_u32 v{wa+1}, s48, v{t+2}
        v_lshl_add_u32 v{t}, v{t+1}, 5, v{t}
        v_lshlrev_b32 v{t}, 14, v{t}
        v_lshl_add_u32 v{sa_}, v1, 4, v{t}
        v_add_u32 v{sa_+1}, {64<<14}, v{sa_}
        v_add_u32 v{sa_+2}, {128<<14}, v{sa_}
        v_cmp_gt_u32 vcc, 32, v0
        v_mov_b32 v{t+4}, {OOB}
        v_cndmask_b32 v{sa_+2}, v{t+4}, v{sa_+2}, vcc
        s_lshl_b32 s48, s67, 2
        s_add_u32 s48, s48, s{sW}
        s_lshl_b32 s48, s48, 4
        s_add_u32 s48, s48, {WS_FLAG}
        v_writelane_b32 v{fl+1}, s48, 0''')
        if OPT['warm']:
            k(f'buffer_load_dword v{dum+2}, v{fl+1}, {WS}, 0 offen')
        for refl in range(2):
            if refl == 0:
                k(f's_mov_b32 s48, s67\ns_mov_b32 s49, s{sW}')
            else:
                k(f's_sub_u32 s48, 128, s67\ns_and_b32 s48, s48, 127\ns_sub_u32 s49, 3, s{sW}')
            k(f'''s_and_b32 s50, s48, 7
            s_lshr_b32 s48, s48, 3
            s_lshl_b32 s58, s50, 16
            s_lshl_b32 s59, s48, 10
            s_add_u32 s58, s58, s59
            s_lshl_b32 s59, s49, 8
            s_add_u32 s58, s58, s59
            s_add_u32 s{56+refl}, s58, {WS_WP + refl*(2<<14)}''')

    def wp_run():
        c = k.cond
        k.cond = 0
        k.lg = []
        g = wv
        for refl in range(2):
            for i in range(3):
                r = g + 24 * refl + 8 * i
                for j in range(4):
                    o = 608 * j + 4 * i if refl == 0 else 608 * (3 - j) + 8 - 4 * i
                    k(f'ds_read_u16 v{r+j}, v{wa+refl} offset:{o}\nds_read_u16 v{r+4+j}, v{wa+refl} offset:{3072+o}')
        k.cond = c
        for refl in range(2):
            for i in range(3):
                r = g + 24 * refl + 8 * i
                for j in range(4):
                    k(f'v_lshl_or_b32 v{r+j}, v{r+4+j}, 16, v{r+j}')
                for j in range(4 * refl):
                    k(f'v_xor_b32 v{r+j}, 0x80000000, v{r+j}')
                k(f'buffer_store_dwordx4 {Q(r)}, v{sa_+i}, {WS}, s{56+refl} offen sc1')

    def wp_loads():
        srd(k, 52, pWR, S * 578)
        srd(k, 56, pWI, S * 578)
        for arr in range(2):
            for i in range(3):
                k(f's_add_u32 m0, s69, {3072*arr+1024*i}')
                k(f'buffer_load_dwordx4 v{wa+i}, s[{52+4*arr}:{55+4*arr}], 0 offen lds')

    def flag_addr():
        k(f'''s_lshr_b32 s51, s{sR}, 2
        s_lshl_b32 s51, s51, 3
        s_add_u32 s51, s51, s{sJ}
        s_and_b32 s60, s{sR}, 3
        s_lshl_b32 s35, s51, 2
        s_add_u32 s35, s35, s60
        s_lshl_b32 s35, s35, 14
        s_bfe_u32 s48, s{sS2}, 0x20002
        s_lshl_b32 s48, s48, 6
        s_lshr_b32 s49, s{sS2}, 4
        s_lshl_b32 s49, s49, 2
        s_add_u32 s48, s48, s49
        s_and_b32 s49, s{sS2}, 3
        s_add_u32 s48, s48, s49
        s_lshl_b32 s48, s48, {OPT['fs']}
        s_lshl_b32 s49, s{sW}, 16
        s_add_u32 s48, s48, s49
        s_add_u32 s48, s48, {WS_FL2}
        v_mov_b32 v{fl}, {OOB}''')
        for a in range(OPT['na']):
            k(f'v_writelane_b32 v{fl}, s48, {a}\ns_add_u32 s48, s48, 16384')
        k(f'''s_add_u32 s48, s2, 160
        s_lshl_b32 s48, s48, 7
        s_add_u32 s48, s48, {WS_CUE+0x8000}
        s_lshl_b32 s49, s{sW}, 8
        s_add_u32 s49, s49, s{sR}
        s_cmp_lt_u32 s49, 12
        s_cselect_b32 s48, s48, {OOB}
        v_mov_b32 v{fl+2}, {OOB}
        v_writelane_b32 v{fl+2}, s48, 0
        s_or_b32 s48, s2, s{sW}
        s_cmp_eq_u32 s48, 0
        s_cselect_b32 s48, 0, {OOB}
        s_add_u32 s48, s48, {WS_EPOCH}
        v_writelane_b32 v{fl+2}, s48, 1''')
        if OPT['ec2']:
            k(f'''s_lshr_b32 s48, s35, 10
            s_lshl_b32 s49, s{sW}, 12
            s_add_u32 s48, s48, s49
            s_add_u32 s48, s48, {WS_FLAG + 0x8000}
            s_cmp_lt_u32 s{sR}, 20
            s_cselect_b32 s48, s48, {OOB}
            v_writelane_b32 v{fl+2}, s48, 2''')

    def warm(regs):
        if OPT['warm']:
            for i, r in enumerate(regs):
                k(f'buffer_load_dword v{dum+i}, v{r}, {WS}, 0 offen')

    def clear1():
        k(f's_lshl_b32 s48, s{sW}, 12\ns_add_u32 s48, s48, s35\ns_add_u32 s48, s48, {WS_T1}')
        for i in range(4):
            k(f'buffer_store_dwordx4 {Q(ones)}, v{la}, {WS}, s48 offen offset:{1024*i} sc1')

    def clear2():
        k(f'''v_min_u32 v{t+1}, {31*16}, v{la}
        s_mul_i32 s48, s{sW}, 2560
        s_mul_i32 s49, s{sS2}, 10240
        s_add_u32 s48, s48, s49
        s_add_u32 s48, s48, {WS_T2}''')
        for i in range(3):
            k(f'buffer_store_dwordx4 {Q(ones)}, v{la if i<2 else t+1}, {WS}, s48 offen offset:{1024*i} sc1')
    LGEN, LNP, LP2, LG, LQ = k.lab(), k.lab(), k.lab(), k.lab(), k.lab()
    L_A, L_B = L_WST, L_WST + 16 * 1040
    k(f's_cmp_ge_u32 s63, 54\ns_cbranch_scc1 {LGEN}')
    if OPT['up'] & 1:
        k('s_setprio 2')
    mod_addr(True, 1)
    k.wait(lg=0)
    srd(k, 40, pWM, D * 3456 * 2)
    mod_loads(6, 0, 6)
    c_load()
    srd(k, 36, pWS, WS_SIZE)
    load_tag(k, t + 3)
    mark(k, 11)
    if OPT['up'] == 3:
        k('s_setprio 0')
    mod_addr(True, 2)
    if OPT['prew']:
        k(f'v_mov_b32 v{t+1}, 0')
        for a in range(OPT['nm']):
            k(f's_mov_b32 s48, {a*0x20000}')
            for i in range(2):
                k(f'buffer_store_dword v{t+1}, v{mo+2+i}, {WS}, s48 offen sc1')
    flag_addr()
    warm([fl])
    k.wait(2 * OPT['nm'] * OPT['prew'] + OPT['warm'])
    mark(k, 10)
    if OPT['up'] & 2:
        k('s_setprio 2')
    mod_silu()
    finish_tag(k)
    mark(k, 1)
    bar(k, lg=0)
    mod_compute(True)
    mark(k, 2)
    xmark(k, 'u', 4)
    if OPT['a0']:
        k('s_barrier')
    k(f's_setprio 0\ns_mov_b32 s63, 999\ns_branch {LQ}')
    k.raw('; @cut')
    k.label(LGEN)
    k.fresh()
    k(f'''s_sub_u32 s61, s63, 54
    s_lshr_b32 s62, s61, 1
    s_add_u32 s62, s62, 18
    s_and_b32 s61, s61, 1''')

    def mats1():
        k(f'''v_cvt_f32_u32 v{g4}, v2
        v_mul_f32 v{g4}, 4.0, v{g4}
        v_cvt_f32_u32 v{lf}, v1
        v_cvt_f32_u32 v{t+9}, s{sJ}
        v_mul_f32 v{t+6}, {f32(1/16)}, v{lf}
        v_fmac_f32 v{t+6}, {f32(1/128)}, v{t+9}
        v_mul_f32 v{t+7}, v{g4}, v{t+6}''')
        dft_frag(k, t + 7, t + 6, Fa, Fa + 4, t, False)
        k(f'''s_lshl_b32 s48, s{sW}, 5
        s_add_u32 s48, s48, s{sJ}
        v_cvt_f32_u32 v{t+10}, s48
        v_mul_f32 v{t+10}, {f32(1/2048)}, v{t+10}
        v_mul_f32 v{t+6}, {f32(1/16)}, v{lf}
        v_add_f32 v{t+6}, v{t+6}, v{t+10}''')
        for tt in range(4):
            if tt:
                k(f'v_add_f32 v{t+6}, {f32(8/2048)}, v{t+6}')
            k(f'v_mul_f32 v{t+7}, v{g4}, v{t+6}')
            dft_frag(k, t + 7, t + 6, Fb + 8 * tt, Fb + 8 * tt + 4, t, False)

    def mats2():
        k(f'''v_mul_f32 v{t+6}, {f32(1/16)}, v{lf}
        v_fmac_f32 v{t+10}, {f32(1/16)}, v{g4}''')
        for tt in range(4):
            if tt:
                k(f'v_add_f32 v{t+10}, {f32(8/2048)}, v{t+10}')
            k(f'v_mul_f32 v{t+7}, v{lf}, v{t+10}')
            dft_frag(k, t + 7, t + 6, Fbi + 8 * tt, Fbi + 8 * tt + 4, t, True)
        k(f'''v_mul_f32 v{t+9}, {f32(1/128)}, v{t+9}
        v_fmac_f32 v{t+9}, {f32(1/16)}, v{g4}
        v_mul_f32 v{t+7}, v{lf}, v{t+9}''')
        dft_frag(k, t + 7, t + 6, Fai, Fai + 4, t, True)

    def p2_addr():
        k(f'''s_lshl_b32 s54, s{sW}, 8
        s_add_u32 s52, s35, s54
        s_add_u32 s52, s52, {WS_T1}
        s_lshl_b32 s53, s{sW}, 12
        s_add_u32 s53, s53, s35
        s_add_u32 s53, s53, {WS_WP}
        v_and_b32 v{t}, 3, v1
        v_lshrrev_b32 v{t+1}, 2, v1
        v_lshlrev_b32 v{t+2}, 6, v{t}
        v_lshl_add_u32 v{t+2}, v{t+1}, 4, v{t+2}
        v_lshl_add_u32 v{a5}, v2, 12, v{t+2}
        v_mul_u32_u24 v{a0}, 1040, v1
        v_lshl_add_u32 v{a0}, v2, 6, v{a0}
        v_add_u32 v{a0}, s54, v{a0}
        s_mul_i32 s48, s{sW}, {4*1040}
        v_add_u32 v{a2}, s48, v{la}
        v_lshl_add_u32 v{t+2}, v2, 2, v{t}
        v_mul_u32_u24 v{a3}, 1056, v{t+2}
        v_lshl_add_u32 v{a3}, v{t+1}, 4, v{a3}
        v_add_u32 v{a3}, s54, v{a3}
        s_mul_i32 s48, s{sW}, {4*1056}
        v_add_u32 v{a1}, s48, v{la}
        s_and_b32 s66, s51, 3
        s_xor_b32 s66, s66, s60
        s_lshl_b32 s66, s66, 6
        s_lshl_b32 s48, s51, 8
        s_add_u32 s66, s66, s48
        s_mul_i32 s48, s{sW}, {4*10240}
        s_add_u32 s66, s66, s48
        s_add_u32 s66, s66, {WS_T2}
        s_add_u32 s67, s66, {16*10240}
        s_add_u32 s68, s66, {32*10240}
        s_add_u32 s69, s66, {48*10240}
        s_lshr_b32 s48, s51, 2
        s_and_b32 s48, s48, 2
        v_xor_b32 v{t}, s48, v{t}
        v_lshl_add_u32 v{t+1}, v2, 6, v{t+1}
        v_mul_u32_u24 v{a4}, 10240, v{t+1}
        v_lshl_add_u32 v{a4}, v{t}, 4, v{a4}''')
    wl = f'buffer_load_dword v{fl+1}, v{t+11}, {WS}, s64 offen sc1'

    def wpre():
        k(f'''s_lshl_b32 s48, s{sW}, 5
        s_add_u32 s48, s48, s{sJ}
        v_lshrrev_b32 v{t+4}, 2, v1
        v_lshl_add_u32 v{t+4}, v{t+4}, 3, s48
        s_cmp_lt_u32 s60, 2
        s_cselect_b32 s48, 1, -1
        v_mul_i32_i24 v{t+4}, s48, v{t+4}
        v_and_b32 v{t+4}, 127, v{t+4}
        v_and_b32 v{t+3}, 3, v1
        v_lshl_add_u32 v{t+4}, v{t+4}, 2, v{t+3}
        v_lshlrev_b32 v{t+11}, 4, v{t+4}
        s_mov_b32 s64, {WS_FLAG}''')
        L1 = skip_unless(sR, 20, 'ge')
        k(wl)
        endif(L1)

    def wpost():
        p2_addr()
        k(f'''s_lshr_b32 s65, s{sJ}, 1
        s_lshl_b32 s65, s65, 16
        s_add_u32 s65, s65, {WS_FL2}
        s_lshl_b32 s48, s{sW}, {6+OPT['fs']}
        s_add_u32 s65, s65, s48
        v_lshlrev_b32 v{g4}, {OPT['fs']}, v0''')
    LB, LJ = k.lab(), k.lab()
    k(f's_cmp_ge_u32 s{sR}, 16\ns_cbranch_scc1 {LB}')
    wp_addr()
    k.wait(lg=0)
    srd(k, 36, pWS, WS_SIZE)
    srd(k, 40, pWM, D * 3456 * 2)
    load_tag(k, t)
    flag_addr()
    warm([fl, fl + 2])

    def clear_xch():
        k(f'''v_mov_b64 {P(ones)}, -1
        v_mov_b64 {P(ones+2)}, -1
        s_lshl_b32 s61, s2, 2
        s_add_u32 s61, s61, s{sW}
        s_mul_i32 s61, s61, {14*1024}
        s_add_u32 s61, s61, {WS_XCH}''')
        for i in range(14):
            k(f'buffer_store_dwordx4 {Q(ones)}, v{la}, {WS}, s61 offen offset:{1024*(i&3)} sc1')
            if i & 3 == 3:
                k('s_add_u32 s61, s61, 4096')
    if OPT['xc'] == 1:
        clear_xch()
    if OPT['wat'] == 0:
        wp_loads()
    if OPT['wat'] >= 2:
        mats1()
    if OPT['wat'] == 3:
        wp_loads()
    mark(k, 1)
    k('s_barrier')
    if OPT['pf1']:
        srd(k, 44, pW1, S * F * 2)
        k(f's_lshl_b32 s61, s{sW}, 4\ns_add_u32 s61, s61, s{sR}')
        pf_loop(k, 1, 61, 64, 16 * OPT['pf1'], ld, 44)
    if OPT['wat'] in (1, 2):
        wp_loads()
    if OPT['xc'] == 2:
        clear_xch()
    wp_gather()
    if OPT['wat'] < 2:
        mats1()
    k.wait(0)
    mark(k, 10)
    finish_tag(k)
    wp_run()
    mark(k, 2)
    k(f's_branch {LQ}')
    k.label(LB)
    k.fresh()
    mod_addr(False)
    k.wait(lg=0)
    srd(k, 36, pWS, WS_SIZE)
    srd(k, 40, pWM, D * 3456 * 2)
    load_tag(k, t)
    c_load()
    flag_addr()
    warm([fl, fl + 2, mo + 2])
    L1 = skip_unless(63, 126, 'ge')
    mod_loads(9, 0, OPT['mb'])
    endif(L1)
    mark(k, 1)
    k('s_barrier')
    k.wait(0)
    L1 = skip_unless(63, 126, 'ge')
    mod_loads(9, OPT['mb'], 9)
    endif(L1)
    finish_tag(k)
    mod_silu()
    L1 = skip_unless(sR, 20, 'ge')
    mats1()
    endif(L1)
    k.label(LQ)
    k.fresh()
    mark(k, 3)
    bar(k, lg=0)
    L1 = skip_unless(sR, 20, 'ge')
    if OPT['wfl']:
        k.wait(0)
        k(f'buffer_store_dword v{vTAG}, v{fl+1}, {WS}, 0 offen sc1')
    mats2()
    endif(L1)
    tag(k, 'touch h1')
    tag(k, 'region h1')
    k.wait(0)
    if OPT['wearly']:
        wpre()
    mark(k, 2)
    k('s_barrier')
    if OPT.get('mk') != 'u':
        mark(k, 10)
    k(f'buffer_store_dword v{vTAG}, v{fl}, {WS}, 0 offen sc1')
    L1 = skip_unless(63, 126, 'ge')
    mod_compute(False)
    endif(L1)
    k(f's_cmp_lt_u32 s{sR}, 20\ns_cbranch_scc1 {LP2}')
    srd(k, 52, pW1, S * F * 2)
    k(f'''s_mul_i32 s58, s{sW}, 12
    s_add_u32 s58, s58, s{sR}
    s_add_u32 s58, s58, {16*OPT['pf1'] - 20}''')
    if OPT['pfd']:
        k.wait(0)
    if OPT['pfd'] > 1:
        k(f's_sleep {OPT["pfd"]}')
    pf_loop(k, 1, 58, 48, OPT['pf2'], dum, 52)
    if OPT['pf9']:
        srd(k, 64, pW2, S * F * 2)
        k(f'''s_mul_i32 s59, s{sW}, 12
        s_add_u32 s59, s59, s{sR}
        s_sub_u32 s59, s59, 20''')
        pf_loop(k, 2, 59, 48, OPT['pf9'], dum, 64)
    k.wait(0)
    mark(k, 5)
    k('s_barrier')
    k(f's_branch {LG}')
    tag(k, 'target')
    k.label(LP2)
    k.fresh()
    if OPT['hp']:
        k('s_setprio 1')
    unp = [f'v_lshlrev_b32 v{wv+8*(x>>2)+(x&3)}, 16, v{wp+x}\nv_and_b32 v{wv+8*(x>>2)+4+(x&3)}, 0xffff0000, v{wp+x}' for x in range(16)]
    if OPT['wfl']:
        if not OPT['wearly']:
            wpre()
        wpost()
        if OPT['wearly']:
            k.wait(1)
        L1 = k.lab()
        check_tags(k, [fl + 1])()
        k(f's_cbranch_vccz {L1}')
        poll(k, [wl], check_tags(k, [fl + 1]))
        k.label(L1)
        for tt in range(4):
            k(f'buffer_load_dwordx4 {Q(wp+4*tt)}, v{la}, {WS}, s53 offen offset:{1024*tt} sc1')
        k.wait({1: 0, 2: 3, 3: 4}[OPT['wfl']])
        mark(k, 11)
        poll(k, [f'buffer_load_dword v{t}, v{g4}, {WS}, s65 offen sc1'], check_tags(k, [t]), masked=True, alt=([65], 16384, OPT['na']))
        mark(k, 1)
        for j in range(4):
            k(f'buffer_load_dwordx4 {Q(ld+4*j)}, v{a5}, {WS}, s52 offen offset:{1024*j} sc1')
        for x in unp:
            k(x)
        unp = [''] * 16
        if OPT['stamp']:
            k.wait(0)
    else:
        p2_addr()
        k(f'''s_lshr_b32 s64, s{sJ}, 1
        s_lshl_b32 s64, s64, 16
        s_add_u32 s64, s64, {WS_FL2}
        s_lshl_b32 s48, s{sW}, {6+OPT['fs']}
        s_add_u32 s65, s64, s48
        v_lshlrev_b32 v{t+1}, {OPT['fs']}, v0
        s_lshl_b32 s48, s{sW}, 5
        s_add_u32 s48, s48, s{sJ}
        v_and_b32 v{t+2}, 3, v0
        v_lshl_add_u32 v{t+2}, v{t+2}, 3, s48
        s_cmp_lt_u32 s60, 2
        s_cselect_b32 s48, 1, -1
        v_mul_i32_i24 v{t+2}, s48, v{t+2}
        v_bfe_u32 v{t+3}, v{t+2}, 2, 2
        v_bfe_u32 v{t+4}, v{t+2}, 4, 3
        v_and_b32 v{t+2}, 3, v{t+2}
        v_lshl_add_u32 v{t+2}, v{t+3}, 6, v{t+2}
        v_lshl_add_u32 v{t+2}, v{t+4}, 3, v{t+2}
        v_lshlrev_b32 v{t+2}, {OPT['fs']}, v{t+2}''')
        k.wait(0)
        mark(k, 11)
        poll(k, [f'buffer_load_dword v{t}, v{t+1}, {WS}, s65 offen sc1', f'buffer_load_dword v{t+3}, v{t+2}, {WS}, s64 offen sc1'],
             check_tags(k, [t, t + 3]), masked=True, alt=([64, 65], 16384, OPT['na']))
        mark(k, 1)
        for j in range(4):
            k(f'buffer_load_dwordx4 {Q(ld+4*j)}, v{a5}, {WS}, s52 offen offset:{1024*j} sc1')
        for tt in range(4):
            k(f'buffer_load_dwordx4 {Q(wp+4*tt)}, v{la}, {WS}, s53 offen offset:{1024*tt} sc1')
    if OPT['stamp']:
        k.wait(4)
    mark(k, 4)
    for i in range(4):
        for j in range(i + 1, 4):
            k(f'v_swap_b32 v{ld+4*i+j}, v{ld+4*j+i}')
        for ri in range(2):
            k(f'{MF} {Q(acc+8*i+4*ri)}, {Q(ld+4*i)}, {Q(Fa+4*ri)}, 0')
    for ci in range(4):
        for j in range(4):
            k(f'v_cvt_pk_bf16_f32 v{pk+4*ci+j}, v{acc+8*ci+j}, v{acc+8*ci+4+j}')
        k(f'ds_write_b128 v{a0}, {Q(pk+4*ci)} offset:{L_A+16*ci}')
    bar(k, lg=0)
    for tt in range(4):
        k(f'ds_read_b128 {Q(ld+4*tt)}, v{a2} offset:{L_A+1040*tt}')
    cue = f'buffer_store_dword v{vTAG}, v{fl+2}, {WS}, 0 offen sc1'
    if OPT['cue_at'] == 0:
        k(cue)
    for x in unp[:8]:
        k(x)
    for tt in range(4):
        for ri in range(2):
            k(f'{MF} {Q(acc+8*tt+4*ri)}, {Q(Fb+8*tt+4*ri)}, {Q(ld+4*tt)}, 0')
            k(unp[8 + 2 * tt + ri])
    for tt in range(4):
        for p in range(2):
            re, im, wr, wi = acc + 8 * tt + 2 * p, acc + 8 * tt + 4 + 2 * p, wv + 8 * tt + 2 * p, wv + 8 * tt + 4 + 2 * p
            o = t + 4 * p
            k(f'''v_pk_mul_f32 {P(o)}, {P(re)}, {P(wr)}
            v_pk_mul_f32 {P(o+2)}, {P(im)}, {P(wr)}
            v_pk_fma_f32 {P(o)}, {P(im)}, {P(wi)}, {P(o)} neg_lo:[1,0,0] neg_hi:[1,0,0]
            v_pk_fma_f32 {P(o+2)}, {P(re)}, {P(wi)}, {P(o+2)}
            v_cvt_pk_bf16_f32 v{pk+4*tt+2*p}, v{o}, v{o+2}
            v_cvt_pk_bf16_f32 v{pk+4*tt+2*p+1}, v{o+1}, v{o+3}''')
            if tt:
                k(f'{MF} {Q(acc+8*(tt-1)+4*p)}, {Q(Fbi+8*(tt-1)+4*p)}, {Q(pk+4*(tt-1))}, 0')
            if OPT['cue_at'] == 4 and (tt, p) == (2, 1):
                k(cue)
    for tt in range(4):
        if tt == 1:
            for ri in range(2):
                k(f'{MF} {Q(acc+24+4*ri)}, {Q(Fbi+24+4*ri)}, {Q(pk+12)}, 0')
        for j in range(4):
            k(f'v_cvt_pk_bf16_f32 v{ld+4*j+tt}, v{acc+8*tt+j}, v{acc+8*tt+4+j}')
            if tt == 3:
                k(f'ds_write_b128 v{a3}, {Q(ld+4*j)} offset:{L_B+64*j}')
    bar(k, lg=0)
    for ci in range(4):
        k(f'ds_read_b128 {Q(pk+4*ci)}, v{a1} offset:{L_B+1056*ci}')
    if OPT['cue_at'] == 1:
        k(cue)
    for ci in range(4):
        for ri in range(2):
            k(f'{MF} {Q(acc+8*ci+4*ri)}, {Q(Fai+4*ri)}, {Q(pk+4*ci)}, 0')
    for ci in range(4):
        if ci == 3 and OPT['sp1'] and OPT['cl3'] == 1:
            k('s_barrier')
        for j in range(4):
            k(f'v_cvt_pk_bf16_f32 v{ld+4*j+ci}, v{acc+8*ci+4+j}, v{acc+8*ci+j}')
            if ci == 3:
                k(f'buffer_store_dwordx4 {Q(ld+4*j)}, v{a4}, {WS}, s{66+j} offen sc1')
    if OPT['cue_at'] == 2:
        k(cue)
    mark(k, 5)
    if OPT['hp']:
        k('s_setprio 0')
    bar(k, None if OPT['ec2'] else 0)
    if OPT['cue_at'] == 3:
        k(cue)
    tag(k, 'region -')
    k.label(LG)
    if OPT.get('nodma'):
        k.drop = lambda x: x.endswith(' lds') and (OPT['nodma'] == 1 or (OPT['nodma'] == 2) == ('sc1' in x))
    k.fresh()
    V.p = 4
    t = V(4); la_ = V(); fl = V(2); da = V(9); xa = V(6); xd = V(24, 4); pv = V(2); xf_ = V(); db = V(9); fb = V(3); xr_ = V(5); vr = V(10)
    k(f'v_lshlrev_b32 v{la_}, 4, v0')
    la = la_
    g1_tile(k)
    g2_tile(k)
    srd(k, 40, pW1, S * F * 2)
    srd(k, 44, pW2, S * F * 2)
    k(f'''s_and_b32 s62, s{sW}, 1
    s_and_b32 s63, s{sJ}, {OPT['xm']}
    s_mul_i32 s63, s63, {OPT["xst"]}
    s_add_u32 s63, s63, {OPT['xo']}
    s_mul_i32 s48, s51, {OPT['rot1']}
    s_add_u32 s63, s63, s48
    s_and_b32 s63, s63, 31
    s_mov_b32 s64, 0
    s_lshl_b32 s68, s62, 13''')

    def start_off(dst, hi, base, first, mul, n):
        k(f's_mul_i32 s{dst}, s{first}, {mul}\ns_add_u32 s{dst}, s{dst}, s{base}\ns_add_u32 s{hi}, s{base}, {n*mul}')

    def w_addr(g, da, lo):
        jst, gst, qoff = ((256 * 9216, 9216, 1024 * 9216), (4096, 16384, 16 * 4096))[g]
        k(f'''v_lshlrev_b32 v{t+1}, 1, v2
        v_xor_b32 v{t+1}, v{t+1}, v1
        v_xor_b32 v{t+2}, 8, v{t+1}
        v_mul_u32_u24 v{t}, {jst}, v2
        v_lshl_add_u32 v{t+1}, v{t+1}, 4, v{t}
        v_lshl_add_u32 v{t+2}, v{t+2}, 4, v{t}''')
        if OPT['rotw'] & (1 << g):
            sm = 16 + 8 * g
            k('s_mul_i32 s12, s52, 43\ns_lshr_b32 s12, s12, 5' if g == 0 else 's_lshl_b32 s12, s55, 1')
            for i in range(8):
                k(f'''s_add_u32 s14, s12, {i}
                s_and_b32 s14, s14, 7
                s_and_b32 s15, s14, 3
                s_mul_i32 s15, s15, {gst}
                s_lshr_b32 s48, s14, 2
                s_mul_i32 s48, s48, {qoff}
                s_add_u32 s15, s15, s48
                s_bitcmp1_b32 s14, 0
                s_cselect_b64 vcc, -1, 0
                v_cndmask_b32 v{da+i}, v{t+1}, v{t+2}, vcc
                v_add_u32 v{da+i}, s15, v{da+i}
                s_lshl_b32 s14, s14, 10
                s_add_u32 s{sm+i}, s14, s68''')
        else:
            k(f'''v_add_u32 v{da+2}, {2*(gst-1024)}, v{t+1}
            v_add_u32 v{da+3}, {3*(gst-1024)}, v{t+2}
            v_add_u32 v{da+1}, {gst-1024}, v{t+2}
            v_mov_b32 v{da}, v{t+1}''')
            for i in range(4):
                k(f'v_add_u32 v{da+4+i}, {qoff}, v{da+i}')
        if g == 0:
            k(f's_mul_i32 s49, s62, {4*9216}\ns_lshl_b32 s48, s51, 8\ns_add_u32 s49, s49, s48')
            start_off(lo, lo + 1, 49, 63, 8 * 9216, 32)
        else:
            k(f'''s_mul_i32 s49, s53, {1152*4096}
            s_lshl_b32 s48, s62, 17
            s_add_u32 s49, s49, s48
            s_lshl_b32 s48, s54, 8
            s_add_u32 s49, s49, s48''')
            start_off(lo, lo + 1, 49, 64, 64 * 4096, NST2)

    def woff(n, mul, NST, lo=60, pair=False, d=50):
        if pair:
            p = f's_mul_i32 s{d}, s62, {(kappa(n+1, NST)-kappa(n, NST))*mul}\ns_add_u32 s{d}, s{d}, s{lo}\ns_add_u32 s{d}, s{d}, {kappa(n, NST)*mul}\n'
        else:
            p = f's_add_u32 s{d}, s{lo}, {kappa(n, NST)*mul}\n'
        return p + f's_cmp_ge_u32 s{d}, s{lo+1}\ns_cselect_b32 s48, {NST*mul}, 0\ns_sub_u32 s{d}, s{d}, s48\n'

    class Stream:
        def __init__(st, items):
            st.items, st.n, st.seq = items, 0, []

        def issue(st, upto, now):
            while st.n < min(upto, len(st.items)):
                need, free, txt = st.items[st.n]
                if free > now:
                    break
                k(txt)
                st.seq.append(k.stats.get('vmem', 0))
                st.n += 1

        def more(st, n):
            st.issue(st.n + n, -1)

        def run(st, NST, quota, last_bar=True, mk=None, hooks={}, verify={}, pre={}):
            landed = -1
            log = []
            for i in range(NST):
                nd = [x for x, it in enumerate(st.items) if it[0] <= i]
                vm = None
                if nd and nd[-1] > landed:
                    assert nd[-1] < st.n, (i, nd[-1], st.n)
                    landed = nd[-1]
                    vm = k.stats.get('vmem', 0) - st.seq[landed]
                if i in verify:
                    if vm is not None:
                        k.wait(vm)
                    verify[i]()
                    k('s_barrier')
                else:
                    bar(k, vm)
                if mk and OPT['stamp'] and i == 0:
                    mark(k, mk)
                    k.raw('    s_memtime s[98:99]')
                if mk and OPT.get('trace'):
                    k(f's_memtime s[14:15]\nv_writelane_b32 v{200 + (mk == 8)}, s14, {i}')
                if landed == len(st.items) - 1 and not last_bar:
                    break
                if i in pre:
                    pre[i]()
                n = st.n
                st.issue(quota(i), i)
                log.append((vm, st.n - n))
                if i in hooks:
                    n = k.stats['vmem']
                    hooks[i]()
                    k.stats['vmem'] = n + hooks.get('min', 0)
            if OPT.get('log'):
                print(log, file=sys.stderr)
            if mk and OPT['stamp']:
                mark(k, mk + 1)
                k('s_memtime s[100:101]')
                k(f's_sub_u32 s{84+mk}, s100, s98')

    def adv(s, inc, span, hi):
        return f's_add_u32 s{s}, s{s}, {inc}\ns_cmp_ge_u32 s{s}, s{hi}\ns_cselect_b32 s48, {span}, 0\ns_sub_u32 s{s}, s{s}, s48\n'

    def spread(n0, n1, i0, i1):
        return lambda i: n0 + int(round((n1 - n0) * max(0, min(i, i1) + 1 - i0) / (i1 + 1 - i0)))
    def scalar_pf():
        su = OPT['su']
        if not su:
            return {}
        n0 = 288 - 64 * OPT['pf8'] - 54 * OPT['pf4'] - 54 * OPT['pfa'] - 27 * su + OPT['n4x']
        k(f'''s_lshl_b32 s63, s{sR}, 2
        s_add_u32 s63, s63, s{sW}
        s_mul_i32 s63, s63, {su*4096}
        s_add_u32 s63, s63, {n0*4*4096}
        s_lshr_b32 s48, s{sJ}, 1
        s_mul_i32 s48, s48, {1152*4096}
        s_add_u32 s63, s63, s48
        s_and_b32 s48, s{sJ}, 1
        s_lshl_b32 s48, s48, 11
        s_add_u32 s63, s63, s48''')
        i0, i1 = OPT['suat']
        tot = 32 * su

        def cb(i):
            def f():
                for q in range(tot * (i - i0) // (i1 - i0), tot * (i + 1 - i0) // (i1 - i0)):
                    k.raw(f'    s_load_dword s13, s[20:21], s63')
                    k(f's_add_u32 s63, s63, {64 + (2048 if q % 32 == 31 else 0)}')
            return f
        return {i: cb(i) for i in range(i0, i1)}
    LHW = k.lab()
    if OPT.get('hprio'):
        k(f's_setprio {OPT["hprio"]}')
    k(f's_cmp_ge_u32 s{sW}, 2\ns_cbranch_scc1 {LHW}')
    x1f = f'buffer_load_dword v{fb+2}, v{fb+1}, {WS}, 0 offen sc1'

    def setup_g1():
        h3_idx(k, 56)
        publish(k, 2, 56, fl)
        k(f's_lshl_b32 s56, s52, 6\ns_add_u32 s56, s56, s51')
        publish(k, 3, 56, fl + 1, ncue=5, cue_add=27)
        k(f'''s_lshr_b32 s65, s{sJ}, 2
        s_lshl_b32 s65, s65, 16
        s_add_u32 s66, s65, {WS_FL2+3*0x40000}
        s_lshl_b32 s48, s62, {7+OPT['fs']}
        s_add_u32 s65, s65, s48
        s_add_u32 s65, s65, {WS_FL2+2*0x40000}
        s_add_u32 s69, s65, {64<<OPT['fs']}
        v_lshlrev_b32 v{xa+5}, {OPT['fs']}, v0
        s_mul_i32 s67, s52, {96*16}
        s_mul_i32 s48, s62, {4*9216}
        s_add_u32 s67, s67, s48
        s_add_u32 s67, s67, {WS_H2}
        v_add_u32 v{da+2}, {9216-1536}, v{la}
        v_cmp_gt_u32 vcc, 32, v0
        v_cndmask_b32 v{da+1}, v{da+2}, v{la}, vcc
        v_add_u32 v{da+3}, {2*9216}, v{la}
        v_add_u32 v{da+4}, {2*9216}, v{da+1}
        v_add_u32 v{da+5}, {2*9216}, v{da+2}
        s_mul_i32 s68, s62, 6144''')
        start_off(58, 59, 67, 63, 8 * 9216, 32)

    def setup_g2():
        for i in range(9):
            k(f'''v_add_u32 v{vr}, {64*i}, v0
            v_mul_u32_u24 v{vr+1}, 1821, v{vr}
            v_lshrrev_b32 v{vr+1}, 18, v{vr+1}
            v_mul_u32_u24 v{vr+1}, {9216-2304}, v{vr+1}
            v_lshl_add_u32 v{vr+1}, v{vr}, 4, v{vr+1}
            v_subrev_u32 v{db+i}, {1024*(i&3)}, v{vr+1}''')
        k(f'''s_mul_i32 s48, s55, 3
        s_add_u32 s49, s48, 2
        s_lshr_b32 s48, s48, 1
        s_lshr_b32 s49, s49, 1
        v_mov_b32 v{vr}, s48
        v_mov_b32 v{vr+1}, s49
        v_cmp_gt_u32 vcc, 32, v0
        v_cndmask_b32 v{vr}, v{vr+1}, v{vr}, vcc
        v_and_b32 v{vr+1}, 31, v0
        v_min_u32 v{vr+1}, 8, v{vr+1}
        v_lshl_add_u32 v{vr}, v{vr}, 6, v{vr+1}
        s_mul_i32 s48, s53, 9
        v_add_u32 v{vr}, s48, v{vr}
        v_lshlrev_b32 v{fb}, {OPT['fs']}, v{vr}''')
        k(f'''s_lshr_b32 s48, s54, 3
        s_lshl_b32 s48, s48, 2
        s_and_b32 s49, s54, 1
        s_lshl_b32 s49, s49, 1
        s_add_u32 s48, s48, s49
        s_add_u32 s48, s48, s62
        s_lshl_b32 s48, s48, 13
        s_add_u32 s48, s48, {WS_FL2 + 0x40000}
        v_lshl_add_u32 v{fb+1}, v0, 7, s48
        v_mov_b32 v{fb+2}, 0''')
        k(f'''s_lshl_b32 s48, s54, 7
        s_lshr_b32 s49, s53, 1
        s_lshl_b32 s49, s49, 4
        s_add_u32 s48, s48, s49
        s_mul_i32 s48, s48, 1152
        s_mul_i32 s49, s55, 288
        s_add_u32 s48, s48, s49
        s_and_b32 s49, s53, 1
        s_mul_i32 s49, s49, 144
        s_add_u32 s48, s48, s49
        s_add_u32 s12, s48, {WS_X1}
        s_lshl_b32 s13, s62, 6''')
        for i in range(5):
            k(f'''v_add_u32 v{vr}, s13, v0
            v_mul_u32_u24 v{vr+1}, 911, v{vr}
            v_lshrrev_b32 v{vr+1}, 13, v{vr+1}
            v_mul_u32_u24 v{vr+2}, 9, v{vr+1}
            v_sub_u32 v{vr+2}, v{vr}, v{vr+2}
            v_and_b32 v{vr}, 48, v{vr+1}
            v_add_u32 v{vr+1}, v{vr+1}, v{vr}
            v_mul_u32_u24 v{vr+1}, 1152, v{vr+1}
            v_lshl_add_u32 v{vr+1}, v{vr+2}, 4, v{vr+1}
            v_add_u32 v{xr_+i}, s12, v{vr+1}
            s_add_u32 s13, s13, 128''')
        k(f'''s_mul_i32 s48, s55, 576
        s_and_b32 s49, s53, 1
        s_mul_i32 s49, s49, 288
        s_add_u32 s48, s48, s49
        s_add_u32 s48, s48, {WS_MOD+5*2304}
        v_min_u32 v{vr}, {17*16}, v{la}
        v_add_u32 v{vr}, s48, v{vr}
        s_cmp_eq_u32 s62, 1
        s_cselect_b64 vcc, -1, 0
        v_cndmask_b32 v{xr_+4}, v{xr_+4}, v{vr}, vcc''')

    def setup_x1():
        k(f's_mul_i32 s56, s62, 288\ns_mul_i32 s57, s{sS2}, 1152\ns_add_u32 s57, s57, {WS_X1}')
        for i in range(5):
            k(f'''v_add_u32 v{t}, {64*i}, v0
            v_min_u32 v{t}, 287, v{t}
            v_add_u32 v{t}, s56, v{t}
            v_mul_u32_u24 v{t+1}, 911, v{t}
            v_lshrrev_b32 v{t+1}, 16, v{t+1}
            v_mul_u32_u24 v{t+1}, {256*1152 - 1152}, v{t+1}
            v_lshl_add_u32 v{xa+i}, v{t}, 4, v{t+1}''')
            if i in (0, 4):
                k(f'v_lshlrev_b32 v{t}, 4, v{t}\nv_add_u32 v{t+2+i//4}, {L_Z}, v{t}')
    if not OPT['lz']:
        setup_g1()
        setup_g2()
        setup_x1()
    tag(k, 'touch a1')
    tag(k, 'region a1')
    def clear_u():
        if OPT['sp2']:
            c0, n = spec_range(1)
            k(f'v_mov_b64 {P(xd)}, -1\nv_mov_b64 {P(xd+2)}, -1\ns_lshl_b32 s56, s2, 1\ns_add_u32 s56, s56, s62')

            def addr():
                k('s_mov_b32 s49, s48')
                for g in range(1, 4):
                    k(f's_cmp_ge_u32 s49, {72*n*g}\ns_cselect_b32 s50, {72*(NST2-n)}, 0\ns_add_u32 s48, s48, s50')
                k(f's_lshl_b32 s48, s48, 10\ns_add_u32 s48, s48, {WS_U + c0*73728}')
            clear_loop(k, 56, 512, 288 * n, addr, xd, la)
    if OPT['cl4'] == 0:
        clear_u()
    n7 = OPT['pf2'] + 10 * OPT['pf3']
    k(f'''s_mul_i32 s56, s62, 27
    s_add_u32 s56, s56, s{sR}
    s_add_u32 s56, s56, {n7}
    s_cmp_lt_u32 s{sR}, 27
    s_cselect_b32 s56, s56, 999
    s_barrier''')
    if OPT['pf7']:
        pf_loop(k, 1, 56, 54, n7 + 27 * OPT['pf7'], xd + 20, 40)
    if OPT['cl4'] == 1:
        clear_u()

    def clear_own_xch():
        k(f'''v_mov_b64 {P(xd)}, -1
        v_mov_b64 {P(xd+2)}, -1
        s_mul_i32 s56, s2, {XB}
        s_lshl_b32 s48, s62, 10
        s_add_u32 s56, s56, s48
        s_add_u32 s56, s56, {WS_XCH}''')
        for x in range(14):
            if x < 13:
                k(f's_add_u32 s48, s56, {2048*x}')
            else:
                k(f's_mul_i32 s48, s62, -2048\ns_add_u32 s48, s48, {2048*13}\ns_add_u32 s48, s48, s56')
            k(f'buffer_store_dwordx4 {Q(xd)}, v{la}, {WS}, s48 offen sc1')
    if OPT['xc'] == 4:
        clear_own_xch()
    if OPT['lz']:
        setup_g1()
    k('s_barrier')
    if OPT['cl4'] == 2:
        clear_u()
    if OPT['xc'] == 5:
        clear_own_xch()
    if OPT['lz']:
        setup_x1()
    k('s_barrier\ns_barrier')
    for i in range(5):
        k(f'ds_read_b128 {Q(xd+4*i)}, v{t+2+i//4} offset:{1024*(i&3)}')
    def x1_stores():
        for i in range(5):
            k(f'buffer_store_dwordx4 {Q(xd+4*i)}, v{xa+i}, {WS}, s57 offen sc1')

    def p3_publish():
        if not OPT['xdef']:
            bar(k, 0)
            do_publish(k, fl)
            return
        bar(k, lg=0)
        k(f'buffer_store_dword v{vTAG}, v{fl}, {WS}, 0 offen sc1')
        nx = len(reg_stages(0)) - 6
        if OPT['lz']:
            setup_g2()
        if OPT['xdef'] == 2:
            k.wait(0)
        if nx:
            k('s_barrier')
        x1_stores()
        if nx:
            k('s_barrier')
        k.wait(0)
        k(f'buffer_store_dwordx4 {Q(xd+20)}, v{xf_}, {WS}, 0 offen sc1')
    if not OPT['xdef']:
        x1_stores()
    else:
        k(f'''s_lshl_b32 s48, s62, 8
        s_add_u32 s48, s48, s{sS2}
        s_lshl_b32 s48, s48, 7
        s_add_u32 s48, s48, {WS_FL2 + 0x40000}
        v_add_u32 v{xf_}, s48, v{la}
        v_cmp_gt_u32 vcc, 8, v0
        v_mov_b32 v{t}, {OOB}
        v_cndmask_b32 v{xf_}, v{t}, v{xf_}, vcc''')
        k.wait(0)
        for i in range(4):
            k(f'v_mov_b32 v{xd+20+i}, v{vTAG}')
    LN, LJ = k.lab(), k.lab()
    k(f's_cmp_ge_u32 s{sR}, 27\ns_cbranch_scc1 {LN}')
    st0 = (list(k.vm), list(k.lg))
    if OPT['rf']:
        k('s_barrier')

    def act_text(g, n, i, so):
        if g == 0:
            pre = f's_add_u32 m0, s68, {L_ACT + (n % 5)*12288 + 1024*i}\n' if i % 3 == 0 else ''
            return pre + f'buffer_load_dwordx4 v{la if i==0 else da+i}, {WS}, s{so} offen offset:{1024*(i%3)} {OPT["fa1"].replace("_", " ")} lds'
        pre = f's_add_u32 m0, s57, {L_ACT2 + (n % NSA2)*AST2 + 1024*i}\n' if i % 4 == 0 else ''
        return pre + f'buffer_load_dwordx4 v{db+i}, {WS}, s{so} offen offset:{1024*(i&3)} {OPT["fa2"].replace("_", " ")} lds'

    def verifier(g, n):
        def f():
            ni, stg = ((6, 12288), (9, AST2))[g]
            L, E = k.lab(), k.lab()
            k.label(L)
            for i in range(ni):
                k(f'ds_read_b32 v{vr+i}, v{vr+9} offset:{n*stg + 1024*i}' if n < 4 or g == 0 else f'ds_read_b32 v{vr+i}, v90 offset:{(n-4)*stg + 1024*i}')
            for i in range(1, ni, 2):
                k(f'v_max3_u32 v{vr}, v{vr}, v{vr+i}, v{vr+min(i+1, ni-1)}')
            k(f'v_cmp_eq_u32 vcc, -1, v{vr}\ns_cbranch_vccz {E}')
            k(f's_sub_u32 s{sBUD}, s{sBUD}, 1\ns_cbranch_scc1 {E}')
            cnt, vm = k.stats['vmem'], k.vm
            k('s_mov_b32 s14, m0')
            if OPT['sl3']:
                k(f's_sleep {OPT["sl3"]}')
            k(woff(n, 8 * 9216, (32, NST2)[g], 58, False, 15))
            for i in range(ni):
                k(act_text(g, n, i, 15))
            k('s_mov_b32 m0, s14')
            k.wait(0)
            k(f's_branch {L}')
            k.stats['vmem'], k.vm = cnt, vm
            k.label(E)
            k(f's_max_i32 s{sBUD}, s{sBUD}, 0')
        return f

    def late_check(loads, regs, mk):
        seq = []

        def issue():
            for l in loads:
                k(l)
            seq.append(k.stats['vmem'])

        def check():
            k.wait(k.stats['vmem'] - seq[0])
            L = k.lab()
            check_tags(k, regs)()
            k(f's_cbranch_vccz {L}')
            cnt, vm = k.stats['vmem'], k.vm
            poll(k, loads, check_tags(k, regs), masked=True)
            k.stats['vmem'], k.vm = cnt, vm
            k.label(L)
            mark(k, mk)
        return issue, check
    h3l = [f'buffer_load_dword v{t}, v{xa+5}, {WS}, s65 offen sc1', f'buffer_load_dword v{t+1}, v{xa+5}, {WS}, s69 offen sc1']
    items = []
    for n in range(32):
        for i in range(6):
            post = '\n' + woff(n + 1, 8 * 9216, 32, 58) if i == 5 and n < 31 else ''
            items.append((n, max(n - 5 + 2, OPT['sp1']) if n >= 5 else -9, act_text(0, n, i, 50) + post))
    st = Stream(items)

    def stag_setup(n0, g, per, i0, span, gap, lim=288):
        if not per:
            return {}
        assert n0 >= 0 and per <= 4
        mask, nf = leaders(g)
        w2_lane(k, pv, 35)
        k(f'''s_mov_b32 s49, s35
        s_mul_i32 s48, s62, {1 if OPT['jit'] else nf}
        s_add_u32 s49, s49, s48
        s_bfm_b32 s48, s{sR}, 0
        s_and_b32 s48, s48, {mask}
        s_bcnt1_i32_b32 s48, s48
        s_sub_u32 s12, s{sR}, s48''')
        bs = OPT[('bs1', 'bs2')[g]] or OPT['jit'] or 2
        wg = OPT[('wg1', 'wg2')[g]]
        for x in range(per):
            if OPT['jit']:
                x0 = x - x % bs
                k(f's_mul_i32 s35, s12, {2*min(bs, per-x0)}\ns_add_u32 s35, s35, {n0 + 2*x0*nf + 2*(x-x0)}')
            else:
                k(f's_add_u32 s35, s12, {n0 + 2*x*nf}')
            k(f'''s_add_u32 s35, s35, s49
            s_min_u32 s35, s35, {lim-1}
            s_lshl_b32 s{8+x}, s35, 14''')
        k(f'''s_mul_i32 s35, s12, {span*256//nf}
        s_lshr_b32 s35, s35, 8
        s_add_u32 s35, s35, {i0}
        s_mul_i32 s48, s62, {wg}
        s_add_u32 s35, s35, s48
        s_mov_b32 s48, {mask}
        s_bitcmp1_b32 s48, s{sR}
        s_cselect_b32 s35, 999, s35''')

        def hook(i):
            def f():
                for x0 in range(0, per, bs):
                    q = i - gap * (x0 // bs)
                    if i0 <= q < i0 + span + wg:
                        L = k.lab()
                        k(f's_cmp_lg_u32 s35, {q}\ns_cbranch_scc1 {L}')
                        for x in range(x0, min(x0 + bs, per)):
                            k.raw(f'    buffer_load_dword v{pv+1}, v{pv}, s[44:47], s{8+x} offen' + (' nt' if OPT['pfnt'] & (4 << g) else ''))
                        k.label(L)
            return f
        return {i: hook(i) for i in range(i0, i0 + span + wg + gap * ((per - 1) // bs))}
    n8 = 288 - 2 * leaders(1)[1] * OPT['pf8']
    hooks = stag_setup(n8 - 2 * leaders(0)[1] * OPT['pf4'] + OPT['n4x'], 0, OPT['pf4'], *OPT['pf4at'], lim=n8)
    k(woff(0, 8 * 9216, 32, 58))
    verify, pre = {}, {}
    if OPT['sp1']:
        k(f's_add_u32 s48, s68, {L_ACT}\nv_add_u32 v{vr+9}, s48, v{la}')
        bar(k, lg=0)
        k(f'buffer_store_dword v{vTAG}, v{fl}, {WS}, 0 offen sc1')
        if OPT['spw']:
            k.wait(0)
        mark(k, 6)
        verify = {n: verifier(0, n) for n in range(5)}
        pre[OPT['sp1'] - 1], pre[OPT['sp1']] = late_check(h3l, [t, t + 1], 7)
        pre[5] = x1_stores
        pre[10] = lambda: k(f'buffer_store_dwordx4 {Q(xd+20)}, v{xf_}, {WS}, 0 offen sc1')
    else:
        p3_publish()
        mark(k, 6)
        poll(k, h3l, check_tags(k, [t, t + 1]), masked=True, alt=([65, 69], 16384, OPT['na']))
        mark(k, 7)
    st.more(6 * OPT['a1pre'])
    if OPT['xdef']:
        assert 28 not in hooks
        hooks[28] = lambda: k(x1f)
    if OPT['su']:
        assert not OPT['sp1']
        pre = scalar_pf()
    st.run(32, lambda i: 6 * (i + 4), hooks=hooks, verify=verify, pre=pre)
    if OPT['su']:
        k.raw('    s_waitcnt lgkmcnt(0)')
    k(f's_branch {LJ}')
    k.label(LN)
    k.fresh()
    if OPT['xdef']:
        k.wait(lg=0)
        x1_stores()
        bar(k, 0)
        k(f'buffer_store_dword v{vTAG}, v{fl}, {WS}, 0 offen sc1')
        k(f'buffer_store_dwordx4 {Q(xd+20)}, v{xf_}, {WS}, 0 offen sc1')
        if OPT['lz']:
            setup_g2()
        k.wait(0)
    else:
        p3_publish()
    poll(k, [f'buffer_load_dword v{t}, v{xa+5}, {WS}, s65 offen sc1', f'buffer_load_dword v{t+1}, v{xa+5}, {WS}, s69 offen sc1'],
         check_tags(k, [t, t + 1]), masked=True, alt=([65, 69], 16384, OPT['na']))
    k.label(LJ)
    k.fresh()
    t = xd
    k(f'''s_mul_i32 s67, s55, {144*16}
    s_mul_i32 s48, s53, {NST2*8*9216}
    s_add_u32 s67, s67, s48
    s_mul_i32 s48, s62, {4*9216}
    s_add_u32 s67, s67, s48
    s_add_u32 s67, s67, {WS_U}
    s_mul_i32 s57, s62, 9216
    s_add_u32 s48, s57, {L_ACT2}
    v_add_u32 v{vr+9}, s48, v{la}
    v_add_u32 v90, {4*AST2}, v{vr+9}''')
    start_off(58, 59, 67, 64, 8 * 9216, NST2)
    k.wait(0)
    if OPT['xdef']:
        L1 = k.lab()
        check_tags(k, [fb + 2])()
        k(f's_cbranch_vccz {L1}')
        poll(k, [x1f], check_tags(k, [fb + 2]), masked=True)
        k.label(L1)
    hooks = stag_setup(n8, 1, OPT['pf8'], *OPT['pf8at'])
    k('s_barrier')
    tag(k, 'touch a2')
    tag(k, 'region a2')
    LN, LJ = k.lab(), k.lab()
    k('s_barrier\n' * (2 + bool(OPT['rf2'])))
    k(f's_cmp_ge_u32 s{sR}, 27\ns_cbranch_scc1 {LN}')
    k(f'buffer_store_dword v{vTAG}, v{fl+1}, {WS}, 0 offen sc1')
    if not OPT['sp2'] or OPT['spw']:
        k.wait(0)
    k(f's_branch {LJ}')
    k.label(LN)
    wait_cue(k, 3, t)
    k.label(LJ)
    k(woff(0, 8 * 9216, NST2, 58))
    mark(k, 8)
    h4l = [f'buffer_load_dword v{t}, v{fb}, {WS}, s66 offen sc1']
    verify, prh = {}, {}
    if OPT['sp2']:
        verify = {n: verifier(1, n) for n in range(OPT['nsp'])}
        prh[OPT['sp2'] - 1], prh[OPT['sp2']] = late_check(h4l, [t], 9)
    else:
        poll(k, h4l, check_tags(k, [t]), masked=True, alt=([66], 16384, OPT['na']))
        mark(k, 9)
    items = []
    for n in range(NST2):
        for i in range(9):
            post = '\n' + woff(n + 1, 8 * 9216, NST2, 58) if i == 8 and n < NST2 - 1 else ''
            items.append((n, max(n - NSA2 + 2, OPT['sp2']) if n >= OPT['nsp'] else -9, act_text(1, n, i, 50) + post))
    ring2 = [n for n in range(NST2) if n not in reg_stages(1)]
    xfree = max(n for m, n in enumerate(ring2) if m % NSW2 == L_X1 // 16384) + 1
    for i in range(5):
        pre = f's_lshl_b32 s48, s62, 10\ns_add_u32 m0, s48, {L_X1 + 2048*i}\n' if i < 4 else \
              f's_mul_i32 s48, s62, {L_GB - L_X1 - 8192}\ns_add_u32 m0, s48, {L_X1 + 8192}\n'
        items.append((NST2, max(xfree, NST2 - NSA2 + 1), pre + f'buffer_load_dwordx4 v{xr_+i}, {WS}, 0 offen sc1 lds'))
    st = Stream(items)
    st.more(9 * OPT['a2pre'])
    assert OPT['nsp'] <= NSA2
    st.run(NST2 + 1, lambda i: OPT['a2la'] + 9 * (i + 1), last_bar=False, hooks=hooks, verify=verify, pre=prh)
    LT = k.lab()
    k(f's_branch {LT if OPT["hx"] else "L_end"}')
    tag(k, 'region -')
    k.label(LHW)
    k.fresh()

    def witems(g, stages, slot0=0, NSW=NSW):
        NST, sd, mul, regs, lo = ((32, 40, 8 * 9216, da, 60), (NST2, 44, 64 * 4096, db, 58))[g]
        items = []
        for m, n in enumerate(stages):
            for i in range(8):
                pre = woff(n, mul, NST, lo) if i == 0 else ''
                rot = OPT['rotw'] & (1 << g)
                if rot:
                    pre += f's_add_u32 m0, s{16+8*g+i}, {((m + slot0) % NSW)*16384}\n'
                else:
                    pre += f's_add_u32 m0, s68, {((m + slot0) % NSW)*16384 + 1024*i}\n' if i % 4 == 0 else ''
                items.append((n, stages[m - NSW] + 1 if m >= NSW else -9,
                              pre + f'buffer_load_dwordx4 v{regs+i}, s[{sd}:{sd+3}], s50 offen offset:{0 if rot else 1024*(i&3)} {OPT["fw2" if g else "fw1"].replace("_", " ")} lds'))
        return items

    def split(g):
        rs = reg_stages(g)
        return rs, [n for n in range((32, NST2)[g]) if n not in rs]
    w_addr(1, db, 58)
    rs2, ds2 = split(1)
    f1 = [it[2] for it in witems(1, rs2, 2)]
    LN, LJ = k.lab(), k.lab()
    k(f's_cmp_ge_u32 s{sR}, 27\ns_cbranch_scc1 {LN}')
    w_addr(0, da, 60)
    tag(k, 'touch w1')
    tag(k, 'region w1')
    rs, ds = split(0)
    nx = len(rs) - 6
    items = witems(0, ds, nx)
    n1 = len(items)
    assert (len(ds) + nx) % NSW == 2
    ne = OPT['ne']
    for x in range(ne):
        items += [(99, ds[len(ds) - NSW + x] + 1, it) for it in f1[8 * x:8 * x + 8]]
    st = Stream(items)
    s1 = Stream(witems(0, rs[:6]))
    for n in OPT['pw1']:
        s1.more(n)
        k('s_barrier')
    s1.more(999)
    k('s_barrier')
    bar(k, 0)
    if OPT['rf']:
        k('s_barrier')
        st.more(OPT['rf'])
    k('s_barrier')
    if nx:
        assert not OPT['rf'] and not OPT['sp1']
        Stream(witems(0, rs[6:])).more(99)
        st.more(OPT['pa'])
        bar(k, st.n)
        st.more(4)
        k('s_barrier')
    def pf_early():
        n0 = 288 - 64 * OPT['pf8'] - 54 * OPT['pf4'] - 54 * OPT['pfa'] + OPT['n4x']
        w2_lane(k, xa, 14)
        k(f's_lshl_b32 s14, s{sR}, 1\ns_add_u32 s14, s14, s62\ns_mul_i32 s14, s14, {OPT["pfa"]}\ns_add_u32 s14, s14, {n0}')
        for x in range(OPT['pfa']):
            k(f's_add_u32 s48, s14, {x}\ns_lshl_b32 s48, s48, 14')
            k(f'buffer_load_dword v{xa+2+x}, v{xa}, s[44:47], s48 offen')
    if OPT['pfa'] and OPT['pfap'] == 0:
        pf_early()
    st.issue(OPT['f21'], -1)
    if OPT['pfa'] and OPT['pfap'] == 1:
        pf_early()
    q1 = spread(st.n, n1, 0 if st.n < 48 else 1, ds[-1] - OPT['wla'])
    if OPT['asap']:
        n00 = st.n
        q1 = lambda i: min(n1, n00 + int(OPT['asap'] * (i + 1) / 10))
    st.run(32, lambda i: q1(i) + ([0] * 32 + OPT['neq'])[-32 + i], mk=6, pre=scalar_pf())
    if OPT['su']:
        k.raw('    s_waitcnt lgkmcnt(0)')
    assert st.n == len(items)
    k('s_barrier')
    k(f's_branch {LJ}')
    k.label(LN)
    k.fresh()
    k(f's_sub_u32 s56, s{sR}, 27\ns_lshl_b32 s56, s56, 1\ns_add_u32 s56, s56, s62\ns_add_u32 s56, s56, {OPT["pf2"]}')
    k('s_barrier')
    pf_loop(k, 1, 56, 10, OPT['pf2'] + 10 * OPT['pf3'], xa, 40)
    k('s_barrier\n' * 5)
    for it in f1[:8 * ne]:
        k(it)
    k.label(LJ)
    k.fresh()
    st = Stream(witems(1, ds2, 0, NSW2))
    for it in f1[8 * ne:]:
        k(it)
    tag(k, 'touch w2')
    tag(k, 'region w2')
    bar(k, 0)
    if OPT['rf2']:
        k('s_barrier')
        st.more(OPT['rf2'])
    k('s_barrier')
    st.issue(OPT['f22'], -1)
    wpre, wver = {}, {}
    if OPT['xc'] in (0, 3):
        on, tg, vrd, vpr, vds = 100, 104, 108, 109, 110
        k(f'''v_mov_b64 {P(on)}, -1
        v_mov_b64 {P(on+2)}, -1
        v_mov_b32 v{tg}, v{vTAG}
        v_mov_b32 v{tg+1}, v{vTAG}
        v_mov_b32 v{tg+2}, v{vTAG}
        v_mov_b32 v{tg+3}, v{vTAG}
        v_lshlrev_b32 v{vds}, 4, v0
        s_lshl_b32 s48, s2, 7
        s_add_u32 s48, s48, {WS_XRDY}
        v_add_u32 v{vrd}, s48, v{vds}
        s_cmp_eq_u32 s62, 0
        s_cselect_b32 s48, 8, 0
        v_cmp_gt_u32 vcc, s48, v0
        v_mov_b32 v{vpr}, {OOB}
        v_cndmask_b32 v{vrd}, v{vpr}, v{vrd}, vcc
        v_min_u32 v{vpr}, 2, v0
        v_add_u32 v{vpr}, 1, v{vpr}
        v_lshlrev_b32 v{vpr}, 1, v{vpr}
        v_xor_b32 v{vpr}, s2, v{vpr}
        v_lshlrev_b32 v{vpr}, 7, v{vpr}
        v_add_u32 v{vpr}, {WS_XRDY}, v{vpr}
        v_lshlrev_b32 v{tg+4+3}, 4, v0
        s_mul_i32 s56, s2, {XB}
        s_lshl_b32 s48, s62, 10
        s_add_u32 s56, s56, s48
        s_add_u32 s56, s56, {WS_XCH}''')
        c0, cn = OPT['xclr']
        cseq = []

        def clr(i):
            def f():
                for x in range((i - c0) * 14 // cn, (i - c0 + 1) * 14 // cn):
                    if x < 13:
                        k(f's_add_u32 s57, s56, {2048*x}')
                    else:
                        k(f's_mul_i32 s57, s62, -2048\ns_add_u32 s57, s57, {2048*13}\ns_add_u32 s57, s57, s56')
                    k(f'buffer_store_dwordx4 {Q(on)}, v{tg+7}, {WS}, s57 offen sc1')
                cseq[:] = [k.stats['vmem']]
            return f
        for i in range(c0, c0 + cn):
            if OPT['xc'] == 0:
                wpre[i] = clr(i)
        r0, r1 = OPT['xrdy']
        assert r0 > c0 + cn - 1 and r1 > r0 and r1 < NST2
        if OPT['xc'] == 0:
            wver[r0] = lambda: k.wait(k.stats['vmem'] - cseq[0])
        wpre[r0] = lambda: k(f'buffer_store_dwordx4 {Q(tg)}, v{vrd}, {WS}, 0 offen sc1')
        assert r1 - OPT['xlead'] > r0
        wpre[r1 - OPT['xlead']], chk = late_check([f'buffer_load_dword v{vds}, v{vpr}, {WS}, 0 offen sc1'], [vds], 12)
        wver[r1] = chk
    q2 = spread(st.n, len(st.items), 0 if st.n < 8 * NSW2 else 1, ds2[-1] - OPT['wla2'])
    if OPT['wlead']:
        qs, cur = [], st.n
        for i in range(NST2):
            cur = max(cur, min(8 * sum(n <= i + OPT['wlead'] for n in ds2), cur + OPT['wmax']))
            qs.append(cur)
        q2 = lambda i: qs[i]
    st.run(NST2, q2, mk=8, verify=wver, pre=wpre)
    if not OPT['hx']:
        return
    k('s_barrier')
    k.label(LT)
    k.fresh()
    ha, hr = 100, 104
    k(f'''v_lshlrev_b32 v{ha}, 4, v0
    v_lshlrev_b32 v{ha+1}, 2, v0
    s_mul_i32 s48, s{sW}, {XW}
    s_mul_i32 s60, s2, {XB}
    s_add_u32 s60, s60, s48
    s_add_u32 s60, s60, {WS_XCH + XM}
    s_add_u32 s61, s60, {XM}
    s_mul_i32 s63, s{sW}, {2*XW}
    s_add_u32 s63, s63, {L_S}
    v_add_u32 v{ha+2}, s63, v{ha}
    v_add_u32 v{ha+3}, s63, v{ha+1}''')
    xmark(k, 'x', 1)
    if OPT['hsl']:
        k(f's_sleep {OPT["hsl"]}')
    if OPT['xcue']:
        k(f'''s_lshl_b32 s48, s{sW}, 7
        s_mul_i32 s62, s2, 1536
        s_add_u32 s62, s62, s48
        s_add_u32 s62, s62, {WS_XCUE + 512}
        v_and_b32 v{hr+8}, 1, v0
        v_lshlrev_b32 v{hr+8}, 9, v{hr+8}''')
        poll(k, [f'buffer_load_dword v{hr+9}, v{hr+8}, {WS}, s62 offen sc1'], check_tags(k, [hr + 9]), sleep=OPT['xsl'])
        xmark(k, 'x', 2)
    if OPT['tfirst']:
        poll(k, [f'buffer_load_dword v{hr+8+x}, v{ha+1}, {WS}, s{60+x} offen offset:2048 sc1' for x in (1, 0)],
             check_sent(k, [hr + 8, hr + 9, hr + 9], hr + 6), sleep=OPT['tsl'])
        xmark(k, 'x', 2)
    loads = []
    for x in (1, 0):
        loads.append(f's_add_u32 m0, s63, {XW*x}\n' + f'buffer_load_dwordx4 v{ha}, {WS}, s{60+x} offen sc1 lds')
        loads.append(f'buffer_load_dwordx4 v{ha}, {WS}, s{60+x} offen offset:1024 sc1 lds')
        loads.append(f'buffer_load_dword v{ha+1}, {WS}, s{60+x} offen offset:2048 sc1 lds')

    def hchk():
        for x in range(2):
            k(f'ds_read_b32 v{hr+3*x}, v{ha+2} offset:{XW*x}\nds_read_b32 v{hr+3*x+1}, v{ha+2} offset:{XW*x+1024}\nds_read_b32 v{hr+3*x+2}, v{ha+3} offset:{XW*x+2048}')
        check_sent(k, [hr + i for i in range(6)], hr + 6)()
    poll(k, loads, hchk, sleep=OPT['hsl2'])
    xmark(k, 'x', 3)
    k('s_barrier')


def build():
    geometry()
    k = K('m')
    k(f's_cmp_ge_u32 s2, 256\ns_cbranch_scc1 L_exit')
    if OPT['stamp']:
        k('s_memrealtime s[70:71]')
        for i in range(72, 96):
            k(f's_mov_b32 s{i}, 0')
    k(f'''s_load_dwordx16 s[8:23], s[0:1], 0
    s_load_dwordx8 s[24:31], s[0:1], 64
    s_load_dwordx2 s[32:33], s[0:1], 96''')
    if OPT['codepf']:
        k(f'''v_readfirstlane_b32 s4, v0
        s_lshr_b32 s5, s2, 3
        s_lshr_b32 s4, s4, 6
        s_cmp_lg_u32 s4, s5
        s_cbranch_scc1 L_nopf
        s_getpc_b64 s[52:53]
        L_pc:
        s_sub_u32 s52, s52, L_pc-{NAME}_kernel
        s_subb_u32 s53, s53, 0
        s_mov_b32 s54, L_code_end-{NAME}_kernel
        s_mov_b32 s55, 0x20000
        v_lshlrev_b32 v1, 7, v0''')
        k.raw('    buffer_load_dword v255, v1, s[52:55], 0 offen')
        k('v_add_u32 v1, 65536, v1')
        k.raw('    buffer_load_dword v255, v1, s[52:55], 0 offen')
        k.maxreg['v'] = 255
        k.label('L_nopf')
    k(f'''v_lshrrev_b32 v1, 6, v0
    v_and_b32 v0, 63, v0
    v_readfirstlane_b32 s{sWAVE}, v1
    v_and_b32 v1, 15, v0
    v_lshrrev_b32 v2, 4, v0
    s_and_b32 s{sJ}, s2, 7
    s_lshr_b32 s{sR}, s2, 3
    s_lshl_b32 s{sS2}, s{sJ}, 5
    s_add_u32 s{sS2}, s{sS2}, s{sR}
    s_mov_b32 s{sBUD}, 100000
    s_and_b32 s{sW}, s{sWAVE}, 3''')
    k(f's_cmp_ge_u32 s{sWAVE}, 4')
    k('s_cbranch_scc0 L_C' if OPT['ufirst'] else 's_cbranch_scc1 L_H')
    n0 = len(k.out)
    k.label('L_C')
    gen_C(k)
    tag(k, 'region -')
    n1 = len(k.out)
    k.label('L_H')
    k.fresh()
    gen_H(k)
    n2 = k.out.index('; @cut')
    if OPT['ufirst']:
        k.out = k.out[:n0] + k.out[n1:n2] + k.out[n0:n1] + k.out[n2 + 1:]
    else:
        del k.out[n2]
    k.label('L_end')
    if OPT['stamp']:
        k.fresh()
        k('s_memrealtime s[94:95]')
        k.wait(0, 0)
        k('s_memrealtime s[96:97]')
        k(f's_add_u32 s40, s{pWS}, {64*MB}\ns_addc_u32 s41, s{pWS+1}, 0\ns_mov_b32 s42, {1*MB}\ns_mov_b32 s43, 0x20000')
        k(f's_lshl_b32 s48, s2, 3\ns_add_u32 s48, s48, s{sWAVE}\ns_lshl_b32 s48, s48, 6\nv_mov_b32 v3, 0')
        for i in range(14):
            k(f'v_mov_b32 v{4+i}, s{70+2*i}')
        k(f'v_mov_b32 v18, s{sBUD}\ns_getreg_b32 s49, hwreg(HW_REG_XCC_ID)\ns_getreg_b32 s50, hwreg(HW_REG_HW_ID)\ns_and_b32 s49, s49, 15\ns_lshl_b32 s50, s50, 4\ns_or_b32 s49, s49, s50\nv_mov_b32 v19, s49')
        for i in range(4):
            k(f'buffer_store_dwordx4 {Q(4+4*i)}, v3, s[40:43], s48 offen offset:{16*i}')
        if OPT.get('trace'):
            k(f's_lshl_b32 s48, s48, 3\ns_add_u32 s48, s48, {MB//2}\ns_mov_b32 s42, {2*MB}\nv_lshlrev_b32 v3, 2, v0')
            k('buffer_store_dword v200, v3, s[40:43], s48 offen\nbuffer_store_dword v201, v3, s[40:43], s48 offen offset:256')
    k.label('L_exit')
    k('s_endpgm')
    k.label('L_code_end')
    if OPT['touch']:
        k.out, ch = page_touch([f'{NAME}_kernel:'] + k.out)
        k.out = k.out[1:]
        print(ch, file=sys.stderr)
    ref = open(f'/code/{NAME}.s.ref').read().split('\n')
    hdr = [l for l in ref if l.startswith(';') and '@launch' not in l]
    out = '\n'.join(hdr) + '\n'
    if OPT.get('aslist'):
        out += f'; @launch kernel={NAME}_kernel grid=(256,1,1) block=(512,1,1) lds=163840\n'
    else:
        out += '; @launch grid=(256,1,1) block=(512,1,1) lds=163840\n'
    out += '.amdgcn_target "amdgcn-amd-amdhsa--gfx950"\n.text\n'
    out += f'.globl {NAME}_kernel\n.p2align 8\n.type {NAME}_kernel,@function\n{NAME}_kernel:\n' + k.text()
    out += '.section .rodata,"a"\n' + descriptor(NAME + '_kernel', k.maxreg['v'] + 1, 0, k.maxreg['s'] + 1)
    print('vgpr', k.maxreg['v'] + 1, 'sgpr', k.maxreg['s'] + 1, k.stats, file=sys.stderr)
    return out


if __name__ == '__main__':
    path = f'/code/{NAME}.s'
    for a in sys.argv[1:]:
        if '=' in a:
            n, v = a.split('=')
            OPT[n] = int(v) if v.lstrip('-').isdigit() else ([int(x) for x in v.split(',')] if ',' in v else v)
        else:
            path = a
    if OPT.get('wsh'):
        WS_H2 += OPT['wsh'] * MB
        WS_U += OPT['wsh'] * MB
        WS_SIZE = 64 * MB
    open(path, 'w').write(build())
```

```python
import struct, sys
from asm import *

NAME = 'adaLN_cond__spectral_gfnet__mixer_token_mlp__prompt'
S, D, F = 2048, 576, 4608
MB = 1 << 20
WS_MOD, WS_EPOCH, WS_MODG, WS_MODB, WS_FLAG, WS_CUE = 0, 0x8000, 0xE80000, 0x30000, 0x40000, 0x80000
WS_WP, WS_T1, WS_T2, WS_X1, WS_H2, WS_U, WS_XCH = 1 * MB, 4 * MB, 8 * MB, 12 * MB, 16 * MB, 20 * MB, 26 * MB
WS_SIZE = 48 * MB
WS_XCUE = 36 * MB
WS_C3 = 38 * MB
WS_XRDY = 37 * MB
XW, XM, XB = 2304, 9216, 27648
WS_FL2 = 15 * MB
OOB = 0x7ff00000
MF = 'v_mfma_f32_16x16x32_bf16'
sW, sJ, sR, sS2, sBUD = 3, 4, 5, 6, 7
pX, pWR, pWI, pW1, pB1, pW2, pB2, pC, pWM, pOUT, pWS = 8, 10, 12, 16, 18, 20, 22, 24, 26, 28, 32
sWAVE = 34
WS = 's[36:39]'
vTAG = 3
L_SLAB, L_WST, L_MG, L_TR, L_SILU = 0, 36864, 61440, 77824, 90112
L_X = 100352
L_ST = L_X + 9472
L_M = L_ST + 128
L_E = L_M + 16384
L_MI = 147456
L_ACT = 98304
L_Z, L_MOD, L_Y, L_H = 98304, 108544, 116736, 135808
XROW, YROW = 1184, 2320
AST2, NST2 = 18432, 18
L_ACT2, NSA2, NSW2 = 90112, 4, 5
L_X1, L_GB, L_S = 2 * 16384, 81920, 3 * 16384
NSW = 6
OPT = dict(c3=1, c3s=1, u4=0, u8=3, su=0, suat=[0, 30], rotw=0, pfw1=999, bs1=0, bs2=0, wg1=0, wg2=0, tfirst=0, tsl=2, pfa=0, pfap=0, pfnt=0, wo=0, nsp=4, n4x=0, wlead=0, wmax=6, nsa2=4, xc=0, xlead=2, xclr=[2, 8], xrdy=[12, 17], pf9=0, rot1=0, xcue=0, xsl=2, wx=0, hx=1, hsl=0, hsl2=1, stamp=0, codepf=1, poll_sleep=1, outflag='sc1', xst=4, xst2=0, a1pre=2, a2pre=3,
           asap=0, jit=2, xk=0, pfm=0, lz=1, ec2=0, single=0, pa=12, lead=0, fa1='sc1', fa2='sc1', fw1='', fw2='', a0=0, twi=0, ufirst=1, defer=4, wla2=2, sp1=0, sp2=2, spw=0, sl3=2, cl3=0, cl4=1, xo=26, touch=1, mw=1, wla=3, rs1=[6, 9, 12, 15, 18, 21, 24, 27], rs2=[4, 6, 8, 10, 11, 12], rf=0, f21=48, f22=32, pw1=[16, 16],
           pf1=0, pf2=96, pf3=2, pf4=2, pf4at=[0, 14, 0], pf8=2, pf8at=[0, 8, 0], a2la=27, pf5=288, pf6=0, pf7=0, x1=0, cue_at=2, wat=2, prew=1, m1early=2, tlb=0, dly=0, hp=1, up=2, f64=1, mb=2, fs=4, mask=1, warm=1, c2=1, wfl=1, wearly=1, pfd=0, xdef=2, rf2=8, ne=4, neq=[10, 22, 32], xm=7, nl=10, tw1=1, tw3=1, sl2=1, na=1, nm=1)


def pf_split():
    u4, u8 = OPT['u4'] or 2 * OPT['pf4'], OPT['u8'] or 2 * OPT['pf8']
    n8 = 288 - 32 * u8
    return n8 - 27 * u4 + OPT['n4x'], n8, u4, u8


def geometry():
    global L_ACT2, NSA2, NSW2, L_X1, L_GB, L_S
    if OPT['nsa2'] == 5:
        L_ACT2, NSA2, NSW2 = 65536, 5, 4
        L_X1, L_S, L_GB = 0, 16384, 65536 + 5 * AST2


def quads(rg, rs, D):
    D0 = 2 * (NST2 - D)
    early = [rg[i] + 4 * j for i, n in enumerate(rs) if n < NST2 - D for j in range(4)]
    late = [rg[i] + 8 * st + 4 for i, n in enumerate(rs) if n >= NST2 - D for st in range(2)]
    steps = [q for q in range(D0, 2 * NST2) if q >> 1 not in rs]
    park = dict(zip(steps, early))
    assert all(n < NST2 - D - 1 for i, n in enumerate(rs) if rg[i] <= max(park.values()) and n < NST2 - D)
    return park, early[len(steps):] + late


def f32(x):
    return '0x%08x' % struct.unpack('<I', struct.pack('<f', x))[0]


def P(r):
    return f'v[{r}:{r+1}]'


def Q(r):
    return f'v[{r}:{r+3}]'


def srd(k, dst, ptr, size):
    k(f's_mov_b32 s{dst}, s{ptr}\ns_mov_b32 s{dst+1}, s{ptr+1}\ns_mov_b32 s{dst+2}, {size}\ns_mov_b32 s{dst+3}, 0x20000')


def mark(k, i):
    if OPT['stamp']:
        k.raw(f'    s_memrealtime s[{70+2*i}:{71+2*i}]')


def tag(k, what):
    if OPT['touch']:
        k.raw('    ; @' + what)


def xmark(k, grp, i):
    if OPT.get('mk') == grp:
        mark(k, i)
    if OPT.get('mk') == grp + 'c':
        k.raw(f'    s_memtime s[{70+2*i}:{71+2*i}]')


def bar(k, vm=None, lg=None):
    if vm is not None or lg is not None:
        k.wait(vm, lg)
    k('s_barrier')


def cs_pair(k, ang, tc, ts, dsts):
    k(f'v_cos_f32 v{tc}, v{ang}\nv_sin_f32 v{ts}, v{ang}')
    m = {'c': f'v{tc}', 's': f'v{ts}', '-c': f'-v{tc}', '-s': f'-v{ts}'}
    for d, lo, hi in dsts:
        k(f'v_cvt_pk_bf16_f32 v{d}, {m[lo]}, {m[hi]}')


def dft_frag(k, base, step, re, im, tmp, inverse):
    for j in range(4):
        a, tc, ts = tmp + 3 * (j & 1), tmp + 3 * (j & 1) + 1, tmp + 3 * (j & 1) + 2
        if j == 0:
            a = base
        elif j == 3:
            k(f'v_add_f32 v{a}, v{tmp}, v{step}')
        else:
            k(f'v_fma_f32 v{a}, v{step}, {float(j)}, v{base}')
        if inverse:
            cs_pair(k, a, tc, ts, [(re + j, 'c', '-s'), (im + j, 's', 'c')])
        else:
            cs_pair(k, a, tc, ts, [(re + j, 'c', 's'), (im + j, '-s', 'c')])


def red32(k, regs, t):
    for mod in ('quad_perm:[1,0,3,2]', 'quad_perm:[2,3,0,1]', 'row_half_mirror', 'row_mirror'):
        for r in regs:
            k(f'v_add_f32_dpp v{r}, v{r}, v{r} {mod} row_mask:0xf bank_mask:0xf')
    for i, r in enumerate(regs):
        k(f'v_mov_b32 v{t+i}, v{r}')
    for i, r in enumerate(regs):
        k(f'v_permlane16_swap_b32 v{r}, v{t+i}')
    for i, r in enumerate(regs):
        k(f'v_add_f32 v{r}, v{r}, v{t+i}')


def poll(k, loads, check, sleep=None, masked=False, alt=None):
    L, E = k.lab('Lp'), k.lab('Le')
    sleep = OPT['poll_sleep'] if sleep is None else sleep
    if alt and alt[2] > 1:
        k(f's_mov_b32 s14, {alt[2] - 1}')
    k.label(L)
    for l in loads:
        k(l)
    k.wait(0)
    check()
    k(f's_cbranch_vccz {E}')
    k(f's_sub_u32 s{sBUD}, s{sBUD}, 1\ns_cbranch_scc1 {E}')
    if alt and alt[2] > 1:
        k(f's_cmp_gt_i32 s14, 0\ns_cselect_b32 s15, {alt[1]}, 0\ns_sub_u32 s14, s14, 1')
        for r in alt[0]:
            k(f's_add_u32 s{r}, s{r}, s15')
    masked = masked and OPT['mask']
    if masked:
        k('s_mov_b64 exec, vcc')
    if sleep:
        k(f's_sleep {sleep}')
    k(f's_branch {L}')
    k.label(E)
    if masked:
        k('s_mov_b64 exec, -1')
    k(f's_max_i32 s{sBUD}, s{sBUD}, 0')


def check_tags(k, regs):
    def f():
        k(f'v_cmp_ne_u32 vcc, v{vTAG}, v{regs[0]}')
        for r in regs[1:]:
            k(f'v_cmp_ne_u32 s[48:49], v{vTAG}, v{r}\ns_or_b64 vcc, vcc, s[48:49]')
    return f


def publish(k, sync, sidx, t, ncue=0, cue_add=0):
    k(f'''s_lshl_b32 s48, s{sidx}, {OPT['fs']}
    s_lshl_b32 s49, s{sW}, 16
    s_add_u32 s48, s48, s49
    s_add_u32 s48, s48, {WS_FL2 + sync*0x40000}
    v_mov_b32 v{t}, {OOB}''')
    for a in range(OPT['na']):
        k(f'v_writelane_b32 v{t}, s48, {a}\ns_add_u32 s48, s48, 16384')
    if ncue:
        k(f'''s_add_u32 s48, s2, {8*cue_add}
        s_lshl_b32 s48, s48, 7
        s_add_u32 s48, s48, {WS_CUE + sync*0x8000}
        s_lshl_b32 s49, s{sW}, 8
        s_add_u32 s49, s49, s{sR}
        s_cmp_lt_u32 s49, {ncue}
        s_cselect_b32 s48, s48, {OOB}
        v_writelane_b32 v{t}, s48, 8''')


def do_publish(k, t):
    k(f'buffer_store_dword v{vTAG}, v{t}, {WS}, 0 offen sc1')
    k.wait(0)


def wait_cue(k, sync, t, sleep=4):
    k(f's_lshl_b32 s50, s2, 7\ns_add_u32 s50, s50, {WS_CUE + sync*0x8000}\nv_mov_b32 v{t}, 0')
    poll(k, [f'buffer_load_dword v{t+1}, v{t}, {WS}, s50 offen sc1'], check_tags(k, [t + 1]), sleep=sleep)


def h3_idx(k, d):
    k(f'''s_bfe_u32 s{d}, s{sS2}, 0x10002
    s_lshl_b32 s{d}, s{d}, 7
    s_lshr_b32 s{d+1}, s{sS2}, 3
    s_lshl_b32 s{d+1}, s{d+1}, 2
    s_add_u32 s{d}, s{d}, s{d+1}
    s_and_b32 s{d+1}, s{sS2}, 3
    s_add_u32 s{d}, s{d}, s{d+1}''')


def g1_tile(k):
    k(f'''s_mul_i32 s52, s{sJ}, 27
    s_add_u32 s52, s52, s{sR}
    s_mul_i32 s51, s52, 171
    s_lshr_b32 s51, s51, 10
    s_mul_i32 s48, s51, 6
    s_sub_u32 s52, s52, s48''')


def g2_tile(k):
    k(f'''s_lshr_b32 s53, s{sJ}, 1
    s_and_b32 s54, s{sJ}, 1
    s_lshl_b32 s54, s54, 3
    s_lshr_b32 s48, s{sR}, 2
    s_add_u32 s54, s54, s48
    s_and_b32 s55, s{sR}, 3''')


def ring_adv(k, s, step, lo, hi):
    k(f's_add_u32 s{s}, s{s}, {step}\ns_cmp_eq_u32 s{s}, {hi}\ns_cselect_b32 s{s}, {lo}, s{s}')


def preload_w(vW0, vW, pairs):
    r = []
    for half in range(2):
        mine = [(sl, f0) for sl, f0 in pairs if sl // 3 == half]
        if mine:
            r += [f'v_add_u32 v{vW+nt}, {49152*half}, v{vW0+nt}' for nt in range(2)]
        for sl, f0 in mine:
            for st in range(2):
                for nt in range(2):
                    f = f0 + 8 * st + 4 * nt
                    o = (sl % 3) * 16384 + st * 8192
                    r += [f'ds_read_b64_tr_b16 {P(f)}, v{vW+nt} offset:{o}', f'ds_read_b64_tr_b16 {P(f+2)}, v{vW+nt} offset:{o+4096}']
    return r


def reg_stages(g):
    return OPT['rs1'] if g == 0 else OPT['rs2']


def kappa(n, NST):
    rs = reg_stages(0 if NST == 32 else 1)
    return rs.index(n) if n in rs else len(rs) + n - sum(x < n for x in rs)


def leaders(g):
    if not OPT['lead'] & (1 << g):
        return 0, (27, 32)[g]
    l = [6 * (c & 3) + c for c in range(6)] if g == 0 else [4 * d + (d & 3) for d in range(8)]
    return sum(1 << x for x in l), (27, 32)[g] - len(l)


def spec_range(g):
    if g == 0:
        c = {(kappa(n, 32) + OPT['xst'] * (j & OPT['xm']) + OPT['xo']) % 32 for n in range(5) for j in range(8)}
    else:
        c = {kappa(n, NST2) for n in range(OPT['nsp'])}
    return min(c), max(c) - min(c) + 1


def clear_loop(k, sidx, stride, total, addr, ones, la):
    for x in range((total + stride - 1) // stride):
        L = k.lab()
        k(f's_add_u32 s48, s{sidx}, {x*stride}\ns_cmp_ge_u32 s48, {total}\ns_cbranch_scc1 {L}')
        addr()
        k.cond += 1
        k(f'buffer_store_dwordx4 {Q(ones)}, v{la}, {WS}, s48 offen sc1')
        k.cond -= 1
        k.label(L)


def gemm_c(k, MT, NST, NSA, ASTAGE, vA, vA4, vW0, vW, fa, fw, acc, rg, rs, w_is_A, at_end=None, last_order=None, defer=0, send=None, single=False, slot0=0):
    NT = 2
    for nt in range(NT):
        k(f'v_add_u32 v{vW+nt}, 49152, v{vW0+nt}')

    def reads(n, st, wslot):
        w, a = [None] * 4, []
        if wslot is not None:
            for nt in range(NT):
                f = fw + 4 * (st * NT + nt)
                r, o = (vW0 if wslot < 3 else vW) + nt, (wslot % 3) * 16384 + st * 8192
                w[2 * nt] = f'ds_read_b64_tr_b16 {P(f)}, v{r} offset:{o}'
                w[2 * nt + 1] = f'ds_read_b64_tr_b16 {P(f+2)}, v{r} offset:{o+4096}'
        o = (n % NSA) * ASTAGE + st * ASTAGE // 2
        for mt in range(MT):
            f = fa + 4 * ((0 if single else st) * MT + mt)
            if vA4 is not None and mt == MT - 1:
                a.append(f'ds_read_b128 {Q(f)}, v{vA4} offset:{o}')
            else:
                a.append(f'ds_read_b128 {Q(f)}, v{vA} offset:{o+256*mt}')
        if single:
            return [x for mt in range(MT) for x in (w[mt] if mt < 4 else None, a[mt])]
        return [w[0], a[0], w[1], a[1], w[2], a[2], w[3]] + a[3:]

    def mfmas(p, wb):
        r = []
        order = [(0, 0), (1, 0), (2, 0), (0, 1), (1, 1), (2, 1)] + [(mt, nt) for mt in range(3, MT) for nt in range(NT)]
        if single:
            order = [(mt, nt) for mt in range(MT) for nt in range(NT)]
        for mt, nt in order:
            a = acc + 4 * (mt * NT + nt)
            x, y = fa + 4 * ((0 if single else p) * MT + mt), wb + 4 * (p * NT + nt)
            if w_is_A:
                x, y = y, x
            r.append(f'{MF} {Q(a)}, {Q(x)}, {Q(y)}, {Q(a)}')
        return r
    def step(mm, rd, barrier, merged=True):
        if OPT.get('noread'):
            rd = []
        if OPT.get('nomfma'):
            mm = ['s_nop 0'] * len(mm)
        if not mm and barrier:
            k('s_barrier')
        per = 1 if len(mm) >= len(rd) else 2
        rd = list(rd) if per == 1 else [x for x in rd if x]
        done = 0
        for i, mi in enumerate(mm):
            if merged and OPT['mw'] and i == 6:
                k.wait(lg=done)
            k(mi)
            if barrier and i == 0:
                k('s_barrier')
            for x in rd[:per]:
                if x:
                    k(x)
                    done += 1
            rd = rd[per:]
        for x in rd:
            if x:
                k(x)
    isnt = lambda mi, nt: ((int(mi.split('[')[1].split(':')[0]) - acc) // 4) % 2 == nt
    prev, m = None, 0
    D0 = 2 * (NST - defer)
    assert all(n < NST - defer - 1 for n in rs)
    for n in range(NST):
        cur, wslot = (rg[rs.index(n)], None) if n in rs else (fw, (m + slot0) % NSW)
        m += n not in rs
        for st in range(2):
            rd = reads(n, st, wslot)
            mm = [] if prev is None and st == 0 else mfmas(st ^ 1, prev if st == 0 else cur)
            q = 2 * n + st
            if q >= D0:
                f, g = fw + 8 * st, rg[0] + 4 * (q - D0)
                rd[0], rd[2] = rd[0].replace(P(f), P(g)), rd[2].replace(P(f + 2), P(g + 2))
                rd = [rd[4], rd[6], rd[1], rd[3], rd[5]] + rd[7:] + [rd[0], rd[2]]
            if q > D0:
                step([x for x in mm if isnt(x, 1)], rd, st == 0, False)
                continue
            if mm and (OPT['mw'] and (n, st) != (0, 1) or (st == 0 and prev == fw)):
                k.wait(lg=MT - 3)
            step(mm, rd, st == 0, not single or OPT['mw'] == 2)
        prev = cur
    if not defer:
        k.wait(lg=0)
        if at_end:
            at_end()
        mm = mfmas(1, prev)
        if last_order:
            mm.sort(key=last_order)
        for mi in mm:
            k(mi)
        return
    acts = lambda q: [x for x in reads(q // 2, q % 2, None) if x]
    mm = [x for x in mfmas(1, prev) if isnt(x, 1)]
    mm.sort(key=last_order)
    last = 2 * NST - 1
    step(mm, acts(D0), False, False)
    step([x for x in mfmas(1, rg[0] + 4 * (last - D0) - 8) if isnt(x, 0)], [], False, False)
    send()
    for q in range(D0, last):
        step([x for x in mfmas(q % 2, rg[0] + 4 * (q - D0) - 8 * (q % 2)) if isnt(x, 0)], acts(q + 1) if q + 1 < last else [], False, False)
    at_end()


def gemm2_c(k, vAo, vAx, vA4, vW0, vW, fa, fw, accf, rg, rs, D, send_bc, send_a, at_end, fill={}, drain=None, vhi=None):
    MT, NST = 9, NST2
    last = 2 * NST - 1
    D0 = 2 * (NST - D)
    park, _ = quads(rg, rs, D)
    assert 1 <= D <= NSA2
    for nt in range(2):
        k(f'v_add_u32 v{vW+nt}, 49152, v{vW0+nt}')

    def aread(q, mt):
        sl = (q >> 1) % NSA2
        base = (vAo, vA4, vAx)
        if sl >= 4:
            base, sl = vhi, sl - 4
        v, o = (base[0], 256 * mt) if mt < 4 else ((base[1], 0) if mt == 4 else (base[2], 256 * (mt - 5)))
        return f'ds_read_b128 {Q(fa+4*mt)}, v{v} offset:{sl*AST2 + (q & 1)*9216 + o}'

    def wreg(q, nt):
        n, st = q >> 1, q & 1
        if n in rs:
            return rg[rs.index(n)] + 8 * st + 4 * nt
        if q >= D0 and nt == 0:
            return park[q]
        return fw + 8 * st + 4 * nt
    ring = [n for n in range(NST) if n not in rs]

    def wreads(q):
        n, st = q >> 1, q & 1
        if n in rs:
            return []
        sl = ring.index(n) % NSW2
        r = []
        for nt in (1, 0):
            f, v, o = wreg(q, nt), (vW0 if sl < 3 else vW) + nt, (sl % 3) * 16384 + st * 8192
            r += [f'ds_read_b64_tr_b16 {P(f)}, v{v} offset:{o}', f'ds_read_b64_tr_b16 {P(f+2)}, v{v} offset:{o+4096}']
        return r

    def mf(q, mt, nt):
        a = accf(mt, nt)
        return f'{MF} {Q(a)}, {Q(fa+4*mt)}, {Q(wreg(q, nt))}, {Q(a)}'

    def emit(mm, after, group=6, barrier=False, extra=None):
        if OPT.get('noread'):
            after = [[x for x in a if not x.startswith('ds_')] for a in after]
        if barrier and not mm:
            k('s_barrier')
        for i, m in enumerate(mm):
            if i % group == 0:
                k.cover(mm[i:i + group])
            k('s_nop 0' if OPT.get('nomfma') else m)
            if barrier and i == 0:
                k('s_barrier')
            for x in after[i]:
                k(x)
            if extra:
                for x in extra[:2]:
                    k(x)
                del extra[:2]
        for a in after[len(mm):]:
            for x in a:
                k(x)
    for q in range(last + 1):
        w = wreads(q)
        p = q - 1
        if p < 0:
            emit([], [w + [aread(q, mt) for mt in range(MT)]], barrier=True)
        elif p < D0:
            mm = [mf(p, mt, nt) for mt in range(MT) for nt in (1, 0)]
            after = [[] for _ in mm]
            for i, x in enumerate(w):
                after[2 * i].append(x)
            for mt in range(MT):
                after[2 * mt + 1].append(aread(q, mt))
            after[10] += fill.get(q, [])
            if q == drain:
                k.wait(0)
            emit(mm, after, barrier=not q & 1)
        else:
            mm = [mf(p, mt, 1) for mt in range(MT)]
            after = [[aread(q, mt)] for mt in range(MT)]
            for i, x in enumerate(w):
                after[(0, 1, 5, 6)[i]].append(x)
            emit(mm, after, group=3, barrier=not q & 1)
    emit([mf(last, mt, 1) for mt in range(MT)], [[] for _ in range(MT)], group=3)
    hi, lo = [4, 5, 6, 7, 8], [0, 1, 2, 3]
    emit([mf(last, mt, 0) for mt in hi + lo], [[aread(D0, mt)] for mt in hi + lo], group=9)
    x = send_bc()
    for q in range(D0, last):
        emit([mf(q, mt, 0) for mt in hi], [[aread(q + 1, mt)] if q + 1 < last else [] for mt in hi], group=5, extra=x)
    for y in x:
        k(y)
    x = None
    for q in range(D0, last):
        emit([mf(q, mt, 0) for mt in lo], [[aread(q + 1, mt)] if q + 1 < last else [] for mt in lo], group=4, extra=x)
        if x is None:
            x = send_a()
    for y in x:
        k(y)
    at_end()


def warm_xch(k, t, dst, store=False):
    k(f'''s_mul_i32 s48, s{sW}, 3072
    s_mul_i32 s49, s2, 36864
    s_add_u32 s48, s48, s49
    s_add_u32 s48, s48, {WS_XCH}''')
    for i in range(2):
        k(f'''v_add_u32 v{t}, {64*i}, v0
        v_min_u32 v{t}, 71, v{t}
        v_mul_u32_u24 v{t+1}, 2731, v{t}
        v_lshrrev_b32 v{t+1}, 16, v{t+1}
        v_mul_u32_u24 v{t+1}, {12288 - 24*128}, v{t+1}
        v_lshl_add_u32 v{t}, v{t}, 7, v{t+1}''')
        k.raw(f'    buffer_load_dword v{dst+i}, v{t}, {WS}, s48 offen')


def load_tag(k, t):
    k(f'v_mov_b32 v{t}, {WS_EPOCH}\nbuffer_load_dword v{vTAG}, v{t}, {WS}, 0 offen sc1')


def finish_tag(k):
    k(f's_mov_b32 s48, 0x9e3779b1\nv_mul_lo_u32 v{vTAG}, v{vTAG}, s48\nv_add_u32 v{vTAG}, 0x7f4a7c15, v{vTAG}\nv_or_b32 v{vTAG}, 0x01010101, v{vTAG}')


def w2_lane(k, t, d):
    k(f'''v_lshrrev_b32 v{t}, 4, v0
    v_and_b32 v{t+1}, 15, v0
    v_lshlrev_b32 v{t}, 12, v{t}
    v_lshl_add_u32 v{t}, v{t+1}, 7, v{t}
    s_lshr_b32 s48, s{sJ}, 1
    s_mul_i32 s48, s48, {1152*4096}
    s_and_b32 s49, s{sJ}, 1
    s_lshl_b32 s49, s49, 11
    s_add_u32 s48, s48, s49
    v_add_u32 v{t}, s48, v{t}
    s_mov_b32 s{d}, 0''')


def pf_loop(k, which, sN, stride, end, t, sd, tmp=50):
    assert 0 <= end <= 320 and stride > 0
    L, E = k.lab(), k.lab()
    if which == 2:
        w2_lane(k, t, tmp)
    k.label(L)
    k(f's_cmp_ge_u32 s{sN}, {end}\ns_cbranch_scc1 {E}')
    if which == 1:
        nl = OPT['nl']
        mg = {9: 911, 10: 820}[nl]
        k(f'''s_mul_i32 s48, s{sN}, {mg}
        s_lshr_b32 s48, s48, 13
        s_mul_i32 s49, s48, {nl}
        s_sub_u32 s49, s{sN}, s49
        s_lshl_b32 s49, s49, 6
        v_add_u32 v{t}, s49, v0
        s_and_b32 s49, s{sJ}, {OPT['xm']}
        s_mul_i32 s49, s49, {OPT['xst']}
        s_add_u32 s48, s48, s49
        s_add_u32 s48, s48, {OPT['xo']}''')
        if OPT['rot1']:
            assert nl == 10
            k(f'''s_mul_i32 s49, s{sJ}, 1152
            s_lshr_b32 s15, s49, 8
            s_mul_i32 s15, s15, {OPT['rot1']}
            s_add_u32 s15, s15, s48
            s_and_b32 s48, s49, -256''')
        else:
            k(f'''s_and_b32 s48, s48, 31
            s_mul_i32 s48, s48, {8*9216}
            s_mul_i32 s49, s{sJ}, 1152
            s_and_b32 s49, s49, {-256 if nl == 10 else -128}
            s_add_u32 s48, s48, s49''')
        k(f'''v_mul_u32_u24 v{t+1}, {mg}, v{t}
        v_lshrrev_b32 v{t+1}, 13, v{t+1}
        v_mul_u32_u24 v{t+2}, {nl}, v{t+1}
        v_sub_u32 v{t+2}, v{t}, v{t+2}
        v_and_b32 v{t}, 7, v{t+1}
        v_lshrrev_b32 v{t+1}, 3, v{t+1}
        v_lshl_add_u32 v{t}, v{t}, 8, v{t+1}
        v_mul_u32_u24 v{t}, 9216, v{t}
        v_lshl_add_u32 v{t}, v{t+2}, 7, v{t}''')
        if OPT['rot1']:
            k(f'''v_lshrrev_b32 v{t+2}, 1, v{t+2}
            v_mul_u32_u24 v{t+2}, {OPT['rot1']}, v{t+2}
            v_add_u32 v{t+2}, s15, v{t+2}
            v_and_b32 v{t+2}, 31, v{t+2}
            v_mul_u32_u24 v{t+2}, {8*9216}, v{t+2}
            v_add_u32 v{t}, v{t}, v{t+2}''')
    else:
        k(f'''s_add_u32 s48, s{sN}, s{tmp}
        s_cmp_ge_u32 s48, 288
        s_cselect_b32 s49, 288, 0
        s_sub_u32 s48, s48, s49
        s_lshl_b32 s48, s48, 14''')
    k.cond += 1
    fl = 'nt' if OPT['pfnt'] & which else ''
    k(f'buffer_load_dword v{t+3}, v{t}, s[{sd}:{sd+3}], s48 offen {fl}')
    k.cond -= 1
    k(f's_add_u32 s{sN}, s{sN}, {stride}\ns_branch {L}')
    k.label(E)


def tag_check4(k, r, t, first):
    k(f'''v_perm_b32 v{t}, v{r+1}, v{r}, s56
    v_perm_b32 v{t+1}, v{r+3}, v{r+2}, s57
    v_or_b32 v{t}, v{t}, v{t+1}''')
    if first:
        k(f'v_cmp_ne_u32 vcc, v{vTAG}, v{t}')
    else:
        k(f'v_cmp_ne_u32 s[48:49], v{vTAG}, v{t}\ns_or_b64 vcc, vcc, s[48:49]')


def check_sent(k, regs, t):
    def f():
        r = list(regs)
        k(f'v_max3_u32 v{t}, v{r[0]}, v{r[1]}, v{r[2]}')
        for x in r[3:]:
            k(f'v_max_u32 v{t}, v{t}, v{x}')
        k(f'v_cmp_eq_u32 vcc, -1, v{t}')
    return f


def stats(k, xf, u):
    k(f'v_pk_add_f32 {P(u)}, {P(xf)}, {P(xf+2)}\nv_pk_mul_f32 {P(u+2)}, {P(xf)}, {P(xf)}')
    for j in range(1, 9):
        if j > 1:
            k(f'v_pk_add_f32 {P(u)}, {P(u)}, {P(xf+2*j)}')
        k(f'v_pk_fma_f32 {P(u+2)}, {P(xf+2*j)}, {P(xf+2*j)}, {P(u+2)}')
    k(f'v_add_f32 v{u}, v{u}, v{u+1}\nv_add_f32 v{u+1}, v{u+2}, v{u+3}')
    red32(k, [u, u + 1], u + 2)
    k(f'''v_mul_f32 v{u}, {f32(-1/576)}, v{u}
    v_mul_f32 v{u+1}, {f32(1/576)}, v{u+1}
    v_fma_f32 v{u+1}, -v{u}, v{u}, v{u+1}
    v_max_f32 v{u+1}, 0, v{u+1}
    v_add_f32 v{u+1}, {f32(1e-5)}, v{u+1}
    v_rsq_f32 v{u+2}, v{u+1}
    v_mul_f32 v{u}, v{u}, v{u+2}''')


def gen_C(k):
    V = Alloc(4, 256)
    bb = V(4, 2); b2 = V()
    base = V.p
    xr = V(9, 1); t = V(12); twi = V(6); la = V(); a576 = V(); F64 = V(32, 4)
    keep = V.p
    mv = V(18, 2); ma = V(8); tw = V(8); xf = V(24, 2); st = V(16, 4); hf = V(12, 4); mf = V(60, 4); acc = V(24, 4)
    if OPT['touch'] == 2:
        tag(k, 'align')
    k(f'''v_lshrrev_b32 v{t}, 5, v0
    v_and_b32 v{t+1}, 31, v0
    v_mul_u32_u24 v{t+2}, {256*1152}, v{t}
    v_lshl_add_u32 v{t+2}, v{t+1}, 2, v{t+2}
    s_mul_i32 s62, s{sW}, {512*1152}
    s_mul_i32 s48, s{sS2}, 1152
    s_add_u32 s62, s62, s48''')
    srd(k, 40, pX, S * D * 2)
    for j in range(9):
        k(f'buffer_load_dword v{xr+j}, v{t+2}, s[40:43], s62 offen offset:{128*j}')
    srd(k, 36, pWS, WS_SIZE)
    load_tag(k, t + 3)
    g1_tile(k)
    g2_tile(k)
    srd(k, 44, pB1, F * 2)
    srd(k, 64, pB2, S * 2)
    k(f'''s_lshl_b32 s48, s51, 8
    s_lshl_b32 s49, s{sW}, 6
    s_add_u32 s48, s48, s49
    v_lshl_add_u32 v{t+4}, v2, 3, s48
    buffer_load_dwordx2 {P(bb)}, v{t+4}, s[44:47], 0 offen
    buffer_load_dwordx2 {P(bb+2)}, v{t+4}, s[44:47], 0 offen offset:32
    s_lshl_b32 s48, s54, 8
    s_add_u32 s48, s48, s49
    s_lshr_b32 s49, s53, 1
    s_lshl_b32 s49, s49, 5
    s_add_u32 s48, s48, s49
    v_lshl_add_u32 v{t+5}, v1, 1, s48
    buffer_load_ushort v{b2}, v{t+5}, s[64:67], 0 offen''')
    if OPT['tlb']:
        k(f'''s_cmp_eq_u32 s{sW}, 1
        s_cselect_b32 s56, s{pW1}, s{pWS}
        s_cselect_b32 s57, s{pW1+1}, s{pWS+1}
        s_cmp_eq_u32 s{sW}, 2
        s_cselect_b32 s56, s{pW2}, s56
        s_cselect_b32 s57, s{pW2+1}, s57
        s_cmp_eq_u32 s{sW}, 3
        s_cselect_b32 s56, s{pOUT}, s56
        s_cselect_b32 s57, s{pOUT+1}, s57
        s_mov_b32 s58, {S*F*2}
        s_cselect_b32 s58, {S*D*2}, s58
        s_cmp_eq_u32 s{sW}, 0
        s_cselect_b32 s58, {WS_SIZE}, s58
        s_mov_b32 s59, 0x20000
        v_lshlrev_b32 v{t+6}, {OPT['tlb']}, v0
        v_add_u32 v{t+6}, {(1<<OPT['tlb'])-128}, v{t+6}
        buffer_load_dword v{tw}, v{t+6}, s[56:59], 0 offen''')
    if OPT['warm']:
        h3_idx(k, 56)
        publish(k, 2, 56, t + 6)
        k(f's_lshl_b32 s56, s52, 6\ns_add_u32 s56, s56, s51')
        publish(k, 3, 56, t + 7, ncue=5, cue_add=27)
        k(f'buffer_load_dword v{ma}, v{t+6}, {WS}, 0 offen\nbuffer_load_dword v{ma+1}, v{t+7}, {WS}, 0 offen')
    if OPT['touch'] == 1:
        tag(k, 'align')
    xw = hf
    k(f'''v_lshlrev_b32 v{la}, 4, v0
    v_mul_u32_u24 v{xw}, {XROW}, v{t}
    v_lshl_add_u32 v{xw}, v{t+1}, 2, v{xw}
    s_mul_i32 s48, s{sW}, {2*XROW}
    s_add_u32 s48, s48, {L_X}
    v_add_u32 v{xw}, s48, v{xw}''')
    m = acc
    k(f'''v_lshrrev_b32 v{m}, 1, v1
    v_and_b32 v{m+1}, 1, v1
    v_and_b32 v{m+2}, 1, v{m}
    v_cvt_f32_u32 v{m}, v{m}
    v_cvt_f32_u32 v{m+1}, v{m+1}
    v_mul_f32 v{m}, {f32(0.125)}, v{m}
    v_mul_f32 v{m+1}, {f32(0.25)}, v{m+1}
    v_mul_u32_u24 v{m+2}, 0x8000, v{m+2}
    v_lshl_or_b32 v{m+2}, v{m+2}, 16, v{m+2}
    s_lshl_b32 s48, s{sW}, 10
    s_add_u32 s48, s48, {L_M}
    v_add_u32 v{m+3}, s48, v{la}
    s_mov_b32 s63, {f32(1/9)}''')
    for i in range(4):
        o = m + 12 + 4 * (i & 1)
        k(f'''s_add_u32 s48, s{sW}, {4*i}
        s_mul_i32 s49, s48, 43
        s_lshr_b32 s49, s49, 7
        s_mul_i32 s50, s49, 3
        s_sub_u32 s50, s48, s50
        s_lshl_b32 s50, s50, 2
        v_add_u32 v{m+4}, s50, v2
        v_cmp_gt_u32 vcc, 9, v{m+4}
        v_mul_u32_u24 v{m+4}, s49, v{m+4}
        v_cvt_f32_u32 v{m+4}, v{m+4}
        v_fma_f32 v{m+4}, v{m+4}, s63, v{m+1}
        v_add_f32 v{m+5}, v{m+4}, v{m}
        v_fma_f32 v{m+6}, v{m}, 2.0, v{m+4}
        v_add_f32 v{m+7}, v{m+6}, v{m}
        v_cos_f32 v{m+4}, v{m+4}
        v_cos_f32 v{m+5}, v{m+5}
        v_cos_f32 v{m+6}, v{m+6}
        v_cos_f32 v{m+7}, v{m+7}
        v_cvt_pk_bf16_f32 v{o}, v{m+4}, v{m+5}
        v_cvt_pk_bf16_f32 v{o+1}, v{m+6}, v{m+7}
        v_cndmask_b32 v{o}, 0, v{o}, vcc
        v_cndmask_b32 v{o+1}, 0, v{o+1}, vcc
        v_xor_b32 v{o+2}, v{m+2}, v{o}
        v_xor_b32 v{o+3}, v{m+2}, v{o+1}
        ds_write_b128 v{m+3}, {Q(o)} offset:{4096*i}''')
    def gen_twi():
        k(f'''v_lshrrev_b32 v{t+4}, 1, v2
        v_cvt_f32_u32 v{t+4}, v{t+4}
        v_add_f32 v{t+5}, 1.0, v{t+4}
        v_mul_f32 v{t+5}, {f32(1/(S*D))}, v{t+5}''')
        for tt in range(3):
            if tt:
                k(f'v_add_f32 v{t+4}, 2.0, v{t+4}')
            sc = f'v{t+5}' if tt == 0 else f32(2 / (S * D))
            k(f'''v_mul_f32 v{t+6}, v{t+4}, v{a576}
            v_cos_f32 v{t+7}, v{t+6}
            v_sin_f32 v{t+8}, v{t+6}
            v_mul_f32 v{twi+2*tt}, {sc}, v{t+7}
            v_mul_f32 v{twi+2*tt+1}, {sc}, v{t+8}''')

    def gen_f64():
        k(f'''s_lshl_b32 s48, s{sW}, 4
        v_add_u32 v{t+6}, s48, v1
        v_cvt_f32_u32 v{t+6}, v{t+6}
        v_mul_f32 v{t+6}, {f32(1/64)}, v{t+6}
        v_cvt_f32_u32 v{t+8}, v2
        v_mul_f32 v{t+8}, 4.0, v{t+8}''')
        for T in range(4):
            if T:
                k(f'v_add_f32 v{t+8}, {f32(16.0)}, v{t+8}')
            k(f'v_mul_f32 v{t+7}, v{t+8}, v{t+6}')
            dft_frag(k, t + 7, t + 6, F64 + 8 * T, F64 + 8 * T + 4, t, False)
        k(f'v_mul_f32 v{a576}, {f32(1/9)}, v{t+6}')
        for lb in range(1, 5):
            k(f'''v_mul_f32 v{t+4}, {f32(float(lb))}, v{a576}
            v_cos_f32 v{tw+2*lb-2}, v{t+4}
            v_sin_f32 v{tw+2*lb-1}, v{t+4}''')
    if OPT['f64'] == 0:
        gen_f64()
    if OPT['a0']:
        L1 = k.lab()
        k(f's_cmp_lt_u32 s2, 202\ns_cbranch_scc1 {L1}')
        vm = list(k.vm)
        if OPT['f64'] == 1:
            gen_f64()
        k.vm = vm
        k('s_barrier')
        k.label(L1)
    ta = st
    k(f'''v_lshrrev_b32 v{t+4}, 5, v0
    v_lshlrev_b32 v{t+4}, 2, v{t+4}
    s_lshl_b32 s48, s{sW}, 3
    s_add_u32 s48, s48, {L_ST}
    v_add_u32 v{t+4}, s48, v{t+4}
    v_bfe_u32 v{t}, v0, 2, 2
    v_mul_u32_u24 v{t}, {XROW}, v{t}
    v_and_b32 v{t+1}, 3, v0
    v_lshl_add_u32 v{t}, v{t+1}, 3, v{t}
    s_lshl_b32 s48, s{sW}, 5
    s_add_u32 s48, s48, {L_X}
    v_add_u32 v{t+1}, s48, v{t}
    v_lshl_add_u32 v{t}, v2, 7, v{t+1}
    v_mov_b32 v{t+2}, {L_ST}
    v_add_u32 v{t+3}, {L_M}, v{la}''')
    for j in range(9):
        k(f'ds_write_b32 v{xw}, v{xr+j} offset:{128*j}')
        k(f'v_lshlrev_b32 v{xf+2*j}, 16, v{xr+j}\nv_and_b32 v{xf+2*j+1}, 0xffff0000, v{xr+j}')
    stats(k, xf, t + 6)
    k(f'ds_write_b32 v{t+4}, v{t+8}\nds_write_b32 v{t+4}, v{t+6} offset:32')
    mark(k, 1)
    if OPT['touch'] == 3:
        tag(k, 'align')
    bar(k, lg=0)
    for i in range(4):
        k(f'ds_read_b128 {Q(st+4*i)}, v{t+2} offset:{16*i}')
    for tt in range(3):
        a = t if tt < 2 else t + 1
        k(f'ds_read_b64_tr_b16 {P(hf+4*tt)}, v{a} offset:{512*tt}')
        k(f'ds_read_b64_tr_b16 {P(hf+4*tt+2)}, v{a} offset:{512*tt+4*XROW}')
    for fi in range(15):
        k(f'ds_read_b128 {Q(mf+4*fi)}, v{t+3} offset:{1024*fi}')
    if OPT['f64'] == 1:
        L1 = k.lab()
        if OPT['a0']:
            k(f's_cmp_ge_u32 s2, 202\ns_cbranch_scc1 {L1}')
        lg, vm = list(k.lg), list(k.vm)
        gen_f64()
        k.lg, k.vm = lg, vm
        k.label(L1)
    for tt in range(3):
        for p in range(4):
            x = xf + 8 * tt + 2 * p
            k(f'''v_lshlrev_b32 v{x}, 16, v{hf+4*tt+p}
            v_and_b32 v{x+1}, 0xffff0000, v{hf+4*tt+p}
            v_pk_fma_f32 {P(x)}, {P(x)}, {P(st+2*p)}, {P(st+8+2*p)}''')
    def gen_m1i(m):
        k(f'''v_and_b32 v{m}, 7, v1
        v_cvt_f32_u32 v{m}, v{m}
        v_mul_f32 v{m}, {f32(0.125)}, v{m}
        v_and_b32 v{m+1}, 1, v2
        v_cvt_f32_u32 v{m+1}, v{m+1}
        v_mul_f32 v{m+1}, 4.0, v{m+1}
        v_mul_f32 v{m+1}, v{m+1}, v{m}
        v_lshrrev_b32 v{m+2}, 3, v1
        v_lshrrev_b32 v{m+3}, 1, v2
        s_lshl_b32 s48, s{sW}, 10
        s_add_u32 s48, s48, {L_MI}
        v_add_u32 v{m+4}, s48, v{la}''')
        for i in range(4):
            o = m + 12 + 4 * (i & 1)
            k(f'''s_add_u32 s48, s{sW}, {4*i}
            s_mul_i32 s49, s48, 43
            s_lshr_b32 s49, s49, 7
            s_mul_i32 s50, s49, 3
            s_sub_u32 s50, s48, s50
            s_lshl_b32 s50, s50, 1
            s_lshl_b32 s49, s49, 1
            v_add_u32 v{m+5}, s49, v{m+2}
            v_add_u32 v{m+6}, s50, v{m+3}
            v_cmp_gt_u32 vcc, 9, v{m+5}
            v_cmp_gt_u32 s[48:49], 5, v{m+6}
            v_mul_u32_u24 v{m+5}, v{m+5}, v{m+6}
            v_cvt_f32_u32 v{m+5}, v{m+5}
            s_and_b64 vcc, vcc, s[48:49]
            v_fma_f32 v{m+5}, v{m+5}, s63, v{m+1}''')
            for j in range(4):
                if j:
                    k(f'v_add_f32 v{m+5}, v{m+5}, v{m}')
                cs_pair(k, m + 5, m + 6 + 2 * (j & 1), m + 7 + 2 * (j & 1), [(o + j, 'c', '-s')])
            for j in range(4):
                k(f'v_cndmask_b32 v{o+j}, 0, v{o+j}, vcc')
            k(f'ds_write_b128 v{m+4}, {Q(o)} offset:{4096*i}')
    if OPT['m1early'] == 1:
        gen_m1i(acc)
    if OPT['m1early'] == 2:
        L1 = k.lab()
        k.wait(lg=0)
        k(f's_cmp_ge_u32 s2, 202\ns_cbranch_scc1 {L1}')
        gen_m1i(acc)
        k.label(L1)
    gen_twi()
    finish_tag(k)
    k(f'''s_lshl_b32 s48, s{sW}, 6
    s_add_u32 s48, s48, {L_E}
    v_mul_u32_u24 v{t}, 576, v2
    v_lshl_add_u32 v{t}, v1, 2, v{t}
    v_add_u32 v{t}, s48, v{t}
    v_mul_u32_u24 v{t+1}, 288, v1
    v_lshl_add_u32 v{t+1}, v2, 4, v{t+1}
    v_add_u32 v{t+1}, {L_E}, v{t+1}
    v_bfe_u32 v{t+9}, v1, 1, 2
    v_xor_b32 v{t+9}, v{t+9}, v2
    v_lshl_add_u32 v{t+9}, v1, 2, v{t+9}
    s_mul_i32 s48, s{sW}, 3072
    s_add_u32 s48, s48, {L_TR}
    v_lshl_add_u32 v{t+9}, v{t+9}, 4, s48
    v_add_u32 v{t+10}, s48, v{la}
    v_lshrrev_b32 v{t+2}, 3, v0
    v_xor_b32 v{t+2}, v{t+2}, v0
    v_and_b32 v{t+2}, 3, v{t+2}
    v_lshlrev_b32 v{t+2}, 4, v{t+2}
    v_lshrrev_b32 v{t+3}, 2, v0
    v_lshl_add_u32 v{t+2}, v{t+3}, 16, v{t+2}
    s_lshl_b32 s48, s{sW}, 14
    s_lshl_b32 s49, s{sS2}, 6
    s_add_u32 s48, s48, s49
    s_add_u32 s48, s48, {WS_T1}
    v_add_u32 v{t+2}, s48, v{t+2}
    v_add_u32 v{t+3}, {1<<20}, v{t+2}
    v_add_u32 v{t+4}, {2<<20}, v{t+2}
    v_cmp_gt_u32 vcc, 32, v0
    v_mov_b32 v{t+5}, {OOB}
    v_cndmask_b32 v{t+4}, v{t+5}, v{t+4}, vcc
    s_lshl_b32 s58, s{sW}, 12
    s_add_u32 s58, s58, {L_MG}
    v_lshl_add_u32 v{ma+3}, v1, 2, s58
    v_lshl_add_u32 v{ma}, v2, 6, v{ma+3}
    v_add_u32 v{ma+3}, 512, v{ma+3}
    v_add_u32 v{ma+1}, 1152, v{ma}
    v_add_u32 v{ma+2}, 2304, v{ma}
    v_add_u32 v{ma+4}, 1152, v{ma+3}
    v_add_u32 v{ma+5}, 2304, v{ma+3}
    v_cmp_gt_u32 vcc, 24, v0
    v_cndmask_b32 v{ma+6}, v{t+5}, v{la}, vcc
    s_mul_i32 s59, s{sJ}, 13824
    s_mul_i32 s48, s{sW}, 3456
    s_add_u32 s59, s59, s48
    s_add_u32 s59, s59, {WS_MODG}
    v_min_u32 v{ma+7}, {31*16}, v{la}
    s_mul_i32 s48, s{sW}, 2560
    s_mul_i32 s60, s{sS2}, 10240
    s_add_u32 s60, s60, s48
    s_add_u32 s60, s60, {WS_T2}
    v_mov_b64 {P(st+12)}, -1
    v_mov_b64 {P(st+14)}, -1
    v_and_b32 v{t+6}, 3, v1
    v_lshlrev_b32 v{t+6}, 3, v{t+6}
    v_bfe_u32 v{t+6}, v{vTAG}, v{t+6}, 8
    s_mov_b32 m0, s58''')
    tag(k, 'touch c1')
    tag(k, 'region c1')
    k.wait(0, 0)
    mark(k, 2)

    def chk():
        for p in range(3):
            for tt in range(3):
                o = 64 * tt if tt < 2 else 0
                k(f'ds_read2_b32 {P(mv+6*p+2*tt)}, v{ma+p+(3 if tt==2 else 0)} offset0:{o} offset1:{o+144}')
        for i in range(0, 18, 2):
            k(f'v_xor_b32 v{mv+i}, v{mv+i}, v{t+6}\nv_xor_b32 v{mv+i+1}, v{mv+i+1}, v{t+6}')
            k(f'v_or3_b32 v{t+8}, v{mv+i}, v{mv+i+1}, v{t+8}' if i else f'v_or_b32 v{t+8}, v{mv}, v{mv+1}')
        k(f'v_and_b32 v{t+8}, 0xff, v{t+8}\nv_cmp_ne_u32 vcc, 0, v{t+8}')

    def clr2():
        for i in range(3):
            k(f'buffer_store_dwordx4 {Q(st+12)}, v{la if i<2 else ma+7}, {WS}, s60 offen offset:{1024*i} sc1')
    if OPT['c2'] == 0:
        clr2()
        k.wait(0)
    if OPT['dly']:
        k(f's_sleep {OPT["dly"]}')
    poll(k, [f'buffer_load_dwordx4 v{la if i<3 else ma+6}, {WS}, s59 offen offset:{1024*i} sc1 lds' for i in range(4)], chk, alt=([59], 0x20000, OPT['nm']))
    mark(k, 3)
    if OPT['c2'] == 1:
        clr2()
    for tt in range(3):
        a = mv + 2 * tt
        k(f'v_pk_add_f32 {P(a)}, {P(a)}, {P(a+6)}')
    for tt in range(3):
        a = mv + 2 * tt
        k(f'v_pk_add_f32 {P(a)}, {P(a)}, {P(a+12)}')
    for tt in range(3):
        a = mv + 2 * tt
        k(f'''v_cvt_pk_bf16_f32 v{a+6}, v{a}, v{a+1}
        v_and_b32 v{a+1}, 0xffff0000, v{a+6}
        v_add_f32 v{a+1}, 1.0, v{a+1}
        v_lshlrev_b32 v{a}, 16, v{a+6}
        v_cvt_pk_bf16_f32 v{a+1}, 0, v{a+1}''')
        for p in range(4):
            x = xf + 8 * tt + 2 * p
            k(f'v_pk_fma_f32 {P(x)}, {P(x)}, {P(a)}, {P(a)} op_sel:[0,1,0] op_sel_hi:[1,1,0]')
        for p in range(4):
            x = xf + 8 * tt + 2 * p
            k(f'v_cvt_pk_bf16_f32 v{hf+4*tt+p}, v{x}, v{x+1}')

    def twid(lb):
        r = []
        for jj in range(2):
            z = acc + 4 * lb + 2 * jj
            o = xf + 4 * (jj + 2 * (lb & 1))
            c = tw + 2 * lb - 2
            if lb == 0:
                r.append(f'v_cvt_pk_bf16_f32 v{o+2}, v{z}, v{z+1}')
            elif OPT['tw1'] & 1:
                r += [f'v_mul_f32 v{o}, v{z}, v{c}', f'v_mul_f32 v{o+1}, v{z+1}, v{c}',
                      f'v_fmac_f32 v{o}, v{z+1}, v{c+1}', f'v_fma_f32 v{o+1}, -v{z}, v{c+1}, v{o+1}',
                      f'v_cvt_pk_bf16_f32 v{o+2}, v{o}, v{o+1}']
            else:
                r += [f'v_pk_mul_f32 {P(o)}, {P(z)}, {P(c)} op_sel_hi:[1,0]',
                      f'v_pk_fma_f32 {P(o)}, {P(z)}, {P(c)}, {P(o)} op_sel:[1,1,0] op_sel_hi:[0,1,1] neg_hi:[1,0,0]',
                      f'v_cvt_pk_bf16_f32 v{o+2}, v{o}, v{o+1}']
            r.append(f'ds_write_b32 v{t}, v{o+2} offset:{(8*lb+jj)*288}')
        return r
    order = [1, 2, 3, 4, 0]
    pend = []
    for x, lb in enumerate(order):
        if x >= 2:
            pend += twid(order[x - 2])
        for tt in range(3):
            a = acc + 4 * lb
            k(f'{MF} {Q(a)}, {Q(mf+4*(3*lb+tt))}, {Q(hf+4*tt)}, ' + ('0' if tt == 0 else Q(a)))
            for _ in range(0 if OPT['tw1'] & 2 else (2 if OPT['tw1'] & 1 else (4 if tt < 2 else 0))):
                if pend:
                    k(pend.pop(0))
    for x in pend + twid(order[3]) + twid(order[4]):
        k(x)
    k.wait(lg=0)
    xmark(k, 'p1', 10)
    k('s_barrier')
    xmark(k, 'p1', 11)
    ef = mf
    for tt in range(3):
        for T in range(4):
            k(f'ds_read_b128 {Q(ef+4*(4*tt+T))}, v{t+1} offset:{16*288*tt+64*T}')
    pend = []
    for tt in range(3):
        for T in range(4):
            for ri in range(2):
                a = acc + 8 * tt + 4 * ri
                k(f'{MF} {Q(a)}, {Q(F64+8*T+4*ri)}, {Q(ef+4*(4*tt+T))}, ' + ('0' if T == 0 else Q(a)))
                if T >= 2 and pend:
                    k(pend.pop(0))
        for x in pend:
            k(x)
        o = hf + 4 * tt
        pend = [f'v_cvt_pk_bf16_f32 v{o+j}, v{acc+8*tt+j}, v{acc+8*tt+4+j}' for j in range(4)]
        st_prev = f'buffer_store_dwordx4 {Q(st+4*(tt-1))}, v{t+1+tt}, {WS}, 0 offen sc1'
        pend.append(f'ds_write_b128 v{t+9}, {Q(o)} offset:{1024*tt}\nds_read_b128 {Q(st+4*tt)}, v{t+10} offset:{1024*tt}')
        if tt:
            pend.append(st_prev)
    for x in pend:
        k(x)
    k(f'buffer_store_dwordx4 {Q(st+8)}, v{t+4}, {WS}, 0 offen sc1')
    if OPT['c2'] == 2:
        clr2()
    mark(k, 4)
    V.p = keep
    za = V(8); zf = V(48, 4); mf = V(60, 4); acc = V(24, 4); ef = V(12, 4); ad = V(8); zl = V(4); xf = V(18, 2)
    yf = zf + 20
    assert za + 8 <= st
    k(f'''v_lshrrev_b32 v{t}, 2, v1
    v_and_b32 v{t}, 2, v{t}
    v_xor_b32 v{t}, v{t}, v2
    v_lshlrev_b32 v{t}, 4, v{t}
    v_lshl_add_u32 v{t}, v1, 8, v{t}
    v_add_u32 v{t}, {L_Z}, v{t}
    v_and_b32 v{t+1}, 7, v1
    v_lshlrev_b32 v{t+1}, 8, v{t+1}
    v_lshl_add_u32 v{t+1}, v2, 4, v{t+1}
    v_add_u32 v{t+1}, {L_Z}, v{t+1}
    v_and_b32 v{t+5}, 3, v1''')
    for T in range(4):
        k(f'''v_xor_b32 v{t+6}, {T}, v{t+5}
        v_lshl_add_u32 v{za+T}, v{t+6}, 6, v{t}
        v_lshl_add_u32 v{za+4+T}, v{t+6}, 6, v{t+1}''')
    k(f'''v_and_b32 v{t}, 7, v1
    v_mul_u32_u24 v{t}, {YROW}, v{t}
    v_lshl_add_u32 v{t}, v2, 4, v{t}
    s_lshl_b32 s48, s{sW}, 6
    s_add_u32 s48, s48, {L_Y}
    v_add_u32 v{t}, s48, v{t}
    v_lshrrev_b32 v{t+1}, 3, v1
    v_lshl_add_u32 v{ad+1}, v{t+1}, 8, v{t}
    v_cmp_gt_u32 vcc, 8, v1
    v_mov_b32 v{t+5}, {L_Y+8*YROW-2048}
    v_cndmask_b32 v{ad}, v{t+5}, v{t}, vcc
    v_lshrrev_b32 v{t+5}, 5, v0
    s_lshl_b32 s48, s{sW}, 1
    v_add_u32 v{t+5}, s48, v{t+5}
    v_and_b32 v{t+6}, 31, v0
    v_mul_u32_u24 v{t}, {YROW}, v{t+5}
    v_lshl_add_u32 v{t}, v{t+6}, 3, v{t}
    v_add_u32 v{ad+2}, {L_Y}, v{t}
    v_mul_u32_u24 v{t}, {XROW}, v{t+5}
    v_lshl_add_u32 v{t}, v{t+6}, 2, v{t}
    v_add_u32 v{ad+3}, {L_H}, v{t}
    v_mul_u32_u24 v{t}, 1152, v{t+5}
    v_lshl_add_u32 v{t}, v{t+6}, 2, v{t}
    v_add_u32 v{ad+7}, {L_Z}, v{t}
    v_lshlrev_b32 v{t}, 3, v{t+6}
    v_add_u32 v{ad+4}, {L_MOD}, v{t}
    v_add_u32 v{a576}, {L_MOD+256}, v{t}
    v_bfe_u32 v{t}, v0, 2, 2
    v_mul_u32_u24 v{t}, {XROW}, v{t}
    v_and_b32 v{t+1}, 3, v0
    v_lshl_add_u32 v{t}, v{t+1}, 3, v{t}
    v_lshl_add_u32 v{t}, v2, 5, v{t}
    s_lshl_b32 s48, s{sW}, 7
    s_add_u32 s48, s48, {L_H}
    v_add_u32 v{ad+5}, s48, v{t}
    v_add_u32 v{ad+6}, {L_MI}, v{la}
    v_min_u32 v{zl}, {31*16}, v{la}
    s_mul_i32 s48, s{sW}, 2560
    s_mul_i32 s66, s{sS2}, 10240
    s_add_u32 s66, s66, s48
    s_add_u32 s66, s66, {WS_T2}
    s_add_u32 s48, s48, {L_Z}
    v_add_u32 v{zl+1}, s48, v{la}
    v_add_u32 v{zl+2}, s48, v{zl}
    s_lshr_b32 s48, s{sJ}, 1
    s_lshl_b32 s48, s48, 12
    s_mul_i32 s49, s{sW}, 640
    s_add_u32 s48, s48, s49
    s_add_u32 s48, s48, {WS_FLAG + 0x8000}
    v_min_u32 v{zl+3}, {39*16}, v{la}
    v_add_u32 v{zl+3}, s48, v{zl+3}''')
    k.wait(0)
    if OPT.get('mk') != 'u':
        mark(k, 1)
    bar(k, 0)
    if OPT['wx'] == 1:
        warm_xch(k, t, ef)
    if not OPT['m1early']:
        gen_m1i(acc)
    if OPT['m1early'] == 2:
        L1 = k.lab()
        k(f's_cmp_lt_u32 s2, 202\ns_cbranch_scc1 {L1}')
        gen_m1i(acc)
        k.label(L1)
    k(f's_lshl_b32 s58, s{sW}, 10')
    k(f'''v_add_u32 v{t}, s58, v{la}
    v_add_u32 v{t+1}, 4096, v{t}
    v_min_u32 v{t+1}, {431*16}, v{t+1}
    v_min_u32 v{t+2}, {143*16}, v{t}
    v_add_u32 v{t+2}, {432*16}, v{t+2}
    s_mov_b32 s56, 0x0c0c0400
    s_mov_b32 s57, 0x04000c0c
    s_mov_b32 s58, {WS_MODB}
    s_mov_b32 s59, {WS_MODB+9216}
    s_mov_b32 s60, {WS_MODB+18432}''')
    mb = zf

    def modb_loads(rounds):
        return [f'buffer_load_dwordx4 {Q(mb+12*x+4*p)}, v{t+rd}, {WS}, s{58+p} offen sc1' for x, rd in enumerate(rounds) for p in range(2)]

    def modb_chk(n):
        def f():
            for x in range(2 * n):
                tag_check4(k, mb + 12 * (x >> 1) + 4 * (x & 1), t + 4, x == 0)
        return f

    def modb_sum(x, one):
        a = mb + 12 * x
        for j in range(8):
            k(f'v_and_b32 v{a+j}, 0xffffff00, v{a+j}')
        for p in (1,):
            k(f'v_pk_add_f32 {P(a)}, {P(a)}, {P(a+4*p)}\nv_pk_add_f32 {P(a+2)}, {P(a+2)}, {P(a+4*p+2)}')
        for j in range(4):
            k(f'v_cvt_pk_bf16_f32 v{a+j}, 0, v{a+j}')
        if one is not None:
            for j in range(4):
                k(f'v_add_f32 v{a+j}, v{a+j}, v{one}')
            for j in range(4):
                k(f'v_cvt_pk_bf16_f32 v{a+j}, 0, v{a+j}')

    def clear_h2():
        c0, n = spec_range(0)
        k(f'v_mov_b64 {P(ef)}, -1\nv_mov_b64 {P(ef+2)}, -1\ns_lshl_b32 s61, s2, 2\ns_add_u32 s61, s61, s{sW}')
        clear_loop(k, 61, 640, 72 * n, lambda: k(f's_lshl_b32 s48, s48, 10\ns_add_u32 s48, s48, {WS_H2 + c0*73728}'), ef, la)
    L1 = k.lab()
    k.wait(lg=0)
    k(f's_cmp_ge_u32 s{sR}, 20\ns_cbranch_scc1 {L1}')
    if OPT['sp1'] and OPT['cl3'] == 0:
        clear_h2()
        k.wait(0)
    k('s_barrier')
    if OPT['sp1'] and OPT['cl3'] == 1:
        clear_h2()
    k.label(L1)
    for l in modb_loads([0, 1]):
        k(l)
    L1 = k.lab()
    k(f's_cmp_ge_u32 s{sR}, 20\ns_cbranch_scc1 {L1}\ns_barrier')
    if OPT['sp1'] and OPT['cl3'] == 1:
        vm = k.vm
        bar(k, 4)
        k.vm = vm
    k.label(L1)
    L2 = k.lab()
    k.wait(0)
    modb_chk(2)()
    k(f's_cbranch_vccz {L2}')
    poll(k, modb_loads([0, 1]), modb_chk(2))
    k.label(L2)
    k(f'v_cmp_le_u32 vcc, {288*16}, v{t+1}\nv_cndmask_b32 v{t+4}, 0, 1.0, vcc')
    modb_sum(0, None)
    modb_sum(1, t + 4)
    k(f'''v_add_u32 v{t+4}, {L_MOD}, v{t}
    v_add_u32 v{t+5}, {L_MOD}, v{t+1}
    ds_write_b128 v{t+4}, {Q(mb)}
    ds_write_b128 v{t+5}, {Q(mb+12)}''')
    L2 = k.lab()
    k(f's_cmp_lg_u32 s2, 255\ns_cbranch_scc1 {L2}')
    k(f's_mov_b32 s50, {WS_MOD+2*2304}')
    k(f'buffer_store_dwordx4 {Q(mb)}, v{t}, {WS}, s50 offen sc1\nbuffer_store_dwordx4 {Q(mb+12)}, v{t+1}, {WS}, s50 offen sc1')
    mb += 24
    poll(k, modb_loads([2]), modb_chk(1))
    modb_sum(0, None)
    k(f'buffer_store_dwordx4 {Q(mb)}, v{t+2}, {WS}, s50 offen sc1')
    k.label(L2)
    for j in range(9):
        k(f'v_lshlrev_b32 v{xf+2*j}, 16, v{xr+j}\nv_and_b32 v{xf+2*j+1}, 0xffff0000, v{xr+j}')
    LN, LJ = k.lab(), k.lab()
    k(f's_cmp_ge_u32 s{sR}, 20\ns_cbranch_scc1 {LN}')
    for fi in range(15):
        k(f'ds_read_b128 {Q(mf+4*fi)}, v{ad+6} offset:{1024*fi}')
    bar(k, lg=0)
    k(f's_branch {LJ}')
    k.label(LN)
    bar(k, lg=0)
    for fi in range(15):
        k(f'ds_read_b128 {Q(mf+4*fi)}, v{ad+6} offset:{1024*fi}')
    if OPT['ec2'] != 2:
        wait_cue(k, 1, t)
    k.wait(lg=0)
    k.label(LJ)
    if OPT['ec2']:
        poll(k, [f'buffer_load_dword v{t}, v{zl+3}, {WS}, 0 offen sc1'], check_tags(k, [t]), masked=True)
    mark(k, 5)
    zi = ef
    poll(k, [f'buffer_load_dwordx4 {Q(zi+4*i)}, v{la if i<2 else zl}, {WS}, s66 offen offset:{1024*i} sc1' for i in range(3)],
         check_sent(k, [zi, zi + 4, zi + 8], t), masked=True, sleep=OPT['sl2'])
    for i in range(3):
        k(f'ds_write_b128 v{zl+1 if i<2 else zl+2}, {Q(zi+4*i)} offset:{1024*i}')
    mark(k, 6)
    bar(k, lg=0)
    xmark(k, 'p3', 1)
    xmark(k, 'q3', 1)
    for tt in range(3):
        for T in range(4):
            k(f'ds_read_b128 {Q(zf+4*(4*tt+T))}, v{za+T+(4 if tt==2 else 0)} offset:{4096*tt}')

    def twid3(tt):
        c = twi + 2 * tt
        if OPT['tw3'] & 1:
            r = []
            for j in range(4):
                re, im, o = acc + 8 * tt + j, acc + 8 * tt + 4 + j, t + 2 * j
                r.append([f'v_mul_f32 v{o}, v{re}, v{c}', f'v_mul_f32 v{o+1}, v{im}, v{c}',
                          f'v_fma_f32 v{o}, -v{im}, v{c+1}, v{o}', f'v_fmac_f32 v{o+1}, v{re}, v{c+1}',
                          f'v_cvt_pk_bf16_f32 v{ef+4*tt+j}, v{o}, v{o+1}'])
            return sum(r, [])
        r = [[], []]
        for p in range(2):
            re, im, o = acc + 8 * tt + 2 * p, acc + 8 * tt + 4 + 2 * p, t + 4 * p
            r[p] = [f'v_pk_mul_f32 {P(o)}, {P(re)}, {P(c)} op_sel_hi:[1,0]',
                    f'v_pk_mul_f32 {P(o+2)}, {P(im)}, {P(c)} op_sel_hi:[1,0]',
                    f'v_pk_fma_f32 {P(o)}, {P(im)}, {P(c)}, {P(o)} op_sel:[0,1,0] neg_lo:[1,0,0] neg_hi:[1,0,0]',
                    f'v_pk_fma_f32 {P(o+2)}, {P(re)}, {P(c)}, {P(o+2)} op_sel:[0,1,0]',
                    f'v_cvt_pk_bf16_f32 v{ef+4*tt+2*p}, v{o}, v{o+2}',
                    f'v_cvt_pk_bf16_f32 v{ef+4*tt+2*p+1}, v{o+1}, v{o+3}']
        return [r[p][2 * q + i] for q in range(3) for p in range(2) for i in range(2)]
    ya = zf
    s2m = [[f'{MF} {Q(acc+8*tt+4*ri)}, {Q(zf+4*(4*tt+T))}, {Q(F64+8*T+4*(1-ri))}, ' + ('0' if T == 0 else Q(acc + 8 * tt + 4 * ri))
            for T in range(4) for ri in range(2)] for tt in range(3)]
    jm = [[f'{MF} {Q(ya+4*mt)}, {Q(ef+4*tt)}, {Q(mf+4*(3*mt+tt))}, ' + ('0' if tt == 0 else Q(ya + 4 * mt))
           for mt in range(5)] for tt in range(3)]

    def weave(mm, vv, skip, per):
        for i, x in enumerate(mm):
            k(x)
            if i >= skip:
                for y in vv[:per]:
                    k(y)
                vv = vv[per:]
        return vv
    if OPT['tw3'] & 2:
        for x in s2m[0] + s2m[1] + s2m[2] + twid3(0) + twid3(1) + jm[0][:1] + twid3(2) + jm[0][1:] + jm[1] + jm[2]:
            k(x)
    else:
        n = len(twid3(0))
        weave(s2m[0], [], 0, 0)
        xmark(k, 'q3', 2)
        rest = weave(s2m[1], twid3(0), 4, 2)
        rest = weave(s2m[2], rest + twid3(1), 0, 2)
        xmark(k, 'q3', 3)
        for x in rest[:max(0, len(rest) - n)]:
            k(x)
        rest = weave(jm[0], rest[max(0, len(rest) - n):] + twid3(2), 0, 2)
        for x in rest[:max(0, len(rest) - n)]:
            k(x)
        rest = weave(jm[1], rest[max(0, len(rest) - n):], 0, 2)
        for x in rest + jm[2]:
            k(x)
        xmark(k, 'q3', 4)
    pos = {0: 0, 2: 2, 1: 4, 3: 6, 4: 8, 6: 10, 5: 12, 7: 14, 8: 16}

    def vec_reads(dst, va, vb, o):
        r = []
        for j in (0, 1, 4, 5):
            e = o // 256 + j
            r.append(f'ds_read2st64_b64 {Q(dst+pos[j])}, v{vb if e & 1 else va} offset0:{e//2} offset1:{e//2+1}')
        return r + [f'ds_read_b64 {P(dst+16)}, v{va} offset:{o+2048}']
    ga, cb, sb = F64, acc, mf
    for x in vec_reads(ga, ad + 4, a576, 0):
        k(x)
    for mt in range(5):
        k(f'ds_write_b128 v{ad+1 if mt<4 else ad}, {Q(ya+4*mt)} offset:{512*mt}')
    for x in vec_reads(cb, ad + 4, a576, 4608) + vec_reads(sb, ad + 4, a576, 2304):
        k(x)
    k.wait(lg=10)
    xmark(k, 'p3', 2)
    xmark(k, 'q3', 5)
    k('s_barrier')
    xmark(k, 'p3', 3)
    for j in range(9):
        k(f'ds_read_b64 {P(yf+2*j)}, v{ad+2} offset:{256*j}')
    k(f'''s_mul_i32 s48, s{sS2}, 9216
    s_lshl_b32 s49, s{sW}, 10
    s_add_u32 s48, s48, s49
    s_add_u32 s48, s48, {WS_H2}
    s_add_u32 s49, s48, 4096
    s_add_u32 s50, s48, 8192''')
    u = t + 6
    for j in range(9):
        k(f'v_pk_fma_f32 {P(xf+2*j)}, {P(yf+2*j)}, {P(ga+pos[j])}, {P(xf+2*j)}')
    stats(k, xf, u)
    for j in range(9):
        k(f'v_pk_fma_f32 {P(yf+2*j)}, {P(xf+2*j)}, {P(u+2)}, {P(u)} op_sel_hi:[1,0,0]')
    for j in range(9):
        k(f'v_pk_fma_f32 {P(yf+2*j)}, {P(yf+2*j)}, {P(cb+pos[j])}, {P(sb+pos[j])}')
    stats(k, yf, u)
    for j in range(9):
        k(f'v_pk_fma_f32 {P(yf+2*j)}, {P(yf+2*j)}, {P(u+2)}, {P(u)} op_sel_hi:[1,0,0]')
        k(f'v_cvt_pk_bf16_f32 v{xr+j}, v{yf+2*j}, v{yf+2*j+1}')
        if j & 1:
            k(f'ds_write2_b32 v{ad+3}, v{xr+j-1}, v{xr+j} offset0:{32*j-32} offset1:{32*j}')
    k(f'ds_write_b32 v{ad+3}, v{xr+8} offset:1024')
    k.wait(lg=0)
    xmark(k, 'p3', 4)
    k('s_barrier')
    xmark(k, 'p3', 5)
    for i in range(3):
        o = acc + 4 * i
        k(f'ds_read_b64_tr_b16 {P(o)}, v{ad+5} offset:{512*i}')
        k(f'ds_read_b64_tr_b16 {P(o+2)}, v{ad+5} offset:{512*i+4*XROW}')
    for i in range(2):
        k(f'buffer_store_dwordx4 {Q(acc+4*i)}, v{la}, {WS}, s{48+i} offen sc1')
    L1 = k.lab()
    k.wait(lg=0)
    k(f's_cmp_lg_u32 s{sW}, 0\ns_cbranch_scc1 {L1}')
    k(f'buffer_store_dwordx4 {Q(acc+8)}, v{la}, {WS}, s50 offen sc1')
    k.label(L1)
    mark(k, 7)
    for j in range(9):
        k(f'v_cvt_pk_bf16_f32 v{xr+j}, v{xf+2*j}, v{xf+2*j+1}')
    for j in range(0, 8, 2):
        k(f'ds_write2_b32 v{ad+7}, v{xr+j}, v{xr+j+1} offset0:{32*j} offset1:{32*j+32}')
    k(f'ds_write_b32 v{ad+7}, v{xr+8} offset:1024')
    bar(k, lg=0)
    V.p = base
    la2 = V(); t = V(8); vA0 = V(); vA40 = V(); vW0 = V(2); vA = V(); vA4 = V(); vW = V(2)
    fa = V(48, 4); fw = V(16, 4); rg = V(96, 4)
    V.p = 204
    acc = V(48, 4)

    def w_read_addr(extra):
        k(f'''v_lshrrev_b32 v{t}, 2, v0
        v_and_b32 v{t+1}, 7, v{t}
        s_lshl_b32 s59, s{sW}, 1
        s_add_u32 s59, s59, {extra}
        v_xor_b32 v{t+1}, s59, v{t+1}
        v_xor_b32 v{t+2}, 1, v{t+1}
        v_and_b32 v{t+3}, 3, v0
        v_lshlrev_b32 v{t+3}, 3, v{t+3}
        v_lshl_add_u32 v{t}, v{t}, 8, v{t+3}
        v_lshl_add_u32 v{vW0}, v{t+1}, 5, v{t}
        v_lshl_add_u32 v{vW0+1}, v{t+2}, 5, v{t}''')
    LN, LJ = k.lab(), k.lab()
    k(f's_cmp_ge_u32 s{sR}, 27\ns_cbranch_scc1 {LN}')
    w_read_addr(0)
    rg1 = [rg + 16 * x for x in range(6)]
    for x in preload_w(vW0, vW, list(enumerate(rg1))):
        k(x)
    if OPT['rf']:
        bar(k, lg=0)
    bar(k, 0, 0)
    nx = len(reg_stages(0)) - 6
    rgx = [188, fa + 24][:nx]
    k(f'''v_mul_u32_u24 v{vA0}, 1536, v2
    v_lshl_add_u32 v{vA0}, v1, 4, v{vA0}
    v_add_u32 v{vA0}, {L_ACT}, v{vA0}''')
    for nt in range(2):
        for p in range(2):
            a = acc + 4 * nt + 2 * p
            k(f'v_lshlrev_b32 v{a}, 16, v{bb+2*nt+p}\nv_and_b32 v{a+1}, 0xffff0000, v{bb+2*nt+p}')
    for mt in range(1, 6):
        for i in range(0, 8, 2):
            k(f'v_mov_b64 {P(acc+8*mt+i)}, {P(acc+i)}')
    if nx:
        k('s_barrier')
        for x in preload_w(vW0, vW, list(enumerate(rgx))):
            k(x)
        bar(k, lg=0)
    tag(k, 'touch c2')
    tag(k, 'region c2')
    gemm_c(k, 6, 32, 5, 12288, vA0, None, vW0, vW, fa, fw, acc, rg1 + rgx, reg_stages(0), True, at_end=lambda: k('s_barrier'),
           single=nx == 2 or OPT['single'], slot0=nx)
    mark(k, 8)
    k(f'''s_lshl_b32 s48, s51, 2
    s_add_u32 s48, s48, s{sW}
    s_mul_i32 s48, s48, {4*9216}
    s_mul_i32 s49, s52, {96*16}
    s_add_u32 s48, s48, s49
    s_add_u32 s48, s48, {WS_U}
    v_mul_u32_u24 v{vA}, 9216, v2
    v_lshl_add_u32 v{vA}, v1, 4, v{vA}
    s_mov_b32 s60, {f32(-2*0.7978845608028654*0.044715*1.4426950408889634)}
    v_mov_b32 v{bb}, {f32(-2*0.7978845608028654*1.4426950408889634)}''')
    for mt in range(6):
        q = fa + 8 * (mt & 1)
        o = fw + 4 * (mt & 1)
        a = acc + 8 * mt
        for i in range(0, 8, 2):
            k(f'v_pk_mul_f32 {P(q+i)}, {P(a+i)}, {P(a+i)}')
        for i in range(0, 8, 2):
            k(f'v_pk_fma_f32 {P(q+i)}, {P(q+i)}, s[60:61], {P(bb)} op_sel_hi:[1,0,0]')
        for i in range(0, 8, 2):
            k(f'v_pk_mul_f32 {P(q+i)}, {P(q+i)}, {P(a+i)}')
        for i in range(8):
            k(f'v_exp_f32 v{q+i}, v{q+i}')
        for i in range(0, 8, 2):
            k(f'v_pk_add_f32 {P(q+i)}, {P(q+i)}, 1.0 op_sel_hi:[1,0]')
        for i in range(8):
            k(f'v_rcp_f32 v{q+i}, v{q+i}')
        for i in range(0, 8, 2):
            k(f'v_pk_mul_f32 {P(q+i)}, {P(q+i)}, {P(a+i)}')
        for i in range(4):
            k(f'v_cvt_pk_bf16_f32 v{o+i}, v{q+2*i}, v{q+2*i+1}')
        k(f'buffer_store_dwordx4 {Q(o)}, v{vA}, {WS}, s48 offen offset:{256*mt} sc1')
    mark(k, 9)
    k(f's_branch {LJ}')
    tag(k, 'region -')
    k.label(LN)
    k.fresh()
    bar(k, 0)
    srd(k, 40, pW1, S * F * 2)
    srd(k, 44, pW2, S * F * 2)
    k(f'''s_mul_i32 s56, s{sW}, 5
    s_add_u32 s56, s56, s{sR}
    s_sub_u32 s56, s56, 27
    s_add_u32 s57, s56, {OPT['pf2'] + 10*OPT['pf3'] + 27*OPT['pf7']}
    s_add_u32 s56, s56, {OPT['pf9']}''')
    pf_loop(k, 1, 57, 20, min(32 * OPT['nl'], OPT['pfw1']), t, 40)
    pf_loop(k, 2, 56, 20, min(OPT['pf5'], pf_split()[0] - 54 * OPT['pfa'] - 27 * OPT['su']), t + 4, 44)
    if OPT['wo']:
        srd(k, 40, pOUT, S * D * 2)
        k(f'''s_mul_i32 s56, s{sW}, 5
        s_add_u32 s56, s56, s{sR}
        s_sub_u32 s56, s56, 27
        s_lshl_b32 s56, s56, 1
        s_mul_i32 s57, s{sJ}, 36
        v_lshlrev_b32 v{t}, 7, v0''')
        for x in range(2):
            k(f'''s_add_u32 s48, s56, {x}
            s_min_u32 s48, s48, 35
            s_add_u32 s48, s48, s57
            s_lshl_b32 s48, s48, 13''')
            k.raw(f'    buffer_load_dword v{t+1}, v{t}, s[40:43], s48 offen {("", "", "nt", "sc1")[OPT["wo"]]}')
    k.wait(0)
    mark(k, 9)
    bar(k, 0)
    tag(k, 'region c2')
    tag(k, 'target')
    k.label(LJ)
    k('s_lshr_b32 s58, s53, 1')
    w_read_addr('s58')
    k('s_barrier')
    xmark(k, 'h4', 1)
    for x in preload_w(vW0, vW, [((2 + x) % 6, rg1[x]) for x in range(6)]):
        k(x)
    k.wait(lg=0)
    if OPT['rf2']:
        k('s_barrier')
    xmark(k, 'h4', 2)
    bar(k, 0)
    xmark(k, 'h4', 3)
    vAo, vA4g, vAx, og4 = vA0, vA40, vA, vA4
    accf = lambda mt, nt: (188 + 4 * (2 * mt + nt)) if 2 * mt + nt < 17 else 64
    og = 68
    free = quads(rg1, reg_stages(1), OPT['defer'])[1]
    assert len(free) >= 14
    sq = [free[3 * x:3 * x + 3] for x in range(3)]
    gq = free[9:14]
    x1 = fa
    qf = fa + 16
    oa = bb
    k(f'''s_and_b32 s58, s53, 1
    s_mul_i32 s48, s58, 1280
    s_sub_u32 s49, 1280, s48
    v_mul_u32_u24 v{t}, 2304, v2
    v_add_u32 v{t}, {L_ACT2}, v{t}
    v_lshl_add_u32 v{t+2}, v1, 4, v{t}
    v_add_u32 v{vAo}, s48, v{t+2}
    v_add_u32 v{vAx}, s49, v{t+2}
    s_lshl_b32 s48, s58, 3
    v_xor_b32 v{t+1}, s48, v1
    v_lshl_add_u32 v{vA4g}, v{t+1}, 4, v{t}
    v_add_u32 v{vA4g}, 1024, v{vA4g}
    v_lshlrev_b32 v{la2}, 4, v0''')
    k(f'v_lshlrev_b32 v{b2}, 16, v{b2}\nv_cmp_gt_u32 vcc, 32, v0\nv_cndmask_b32 v{t}, 0, v{b2}, vcc')
    for mt in range(9):
        for nt in range(2):
            a = accf(mt, nt)
            if nt == 0 and mt <= 4:
                for i in range(4):
                    k(f'v_mov_b32 v{a+i}, v{b2 if mt < 4 else t}')
            else:
                k(f'v_mov_b64 {P(a)}, 0\nv_mov_b64 {P(a+2)}, 0')
    srd(k, 44, pOUT, S * D * 2)
    k(f'''s_mul_i32 s48, s{sW}, {16*144}
    s_add_u32 s48, s48, {L_X1}
    v_mul_u32_u24 v{t}, 144, v1
    v_lshl_add_u32 v{t}, v2, 3, v{t}
    v_add_u32 v{t}, s48, v{t}
    v_add_u32 v{oa+3}, s48, v{la2}
    s_lshl_b32 s49, s58, 4
    v_add_u32 v{oa}, s49, v{t}
    s_lshl_b32 s49, s58, 7
    s_sub_u32 s49, 128, s49
    v_add_u32 v{t}, s49, v{t}
    v_cmp_gt_u32 vcc, 32, v0
    v_mov_b32 v{t+1}, {L_GB + 512}
    v_cndmask_b32 v{oa+1}, v{t+1}, v{t}, vcc
    v_lshlrev_b32 v{t}, 4, v2
    v_add_u32 v{t}, {L_GB}, v{t}
    s_lshl_b32 s49, s58, 5
    v_add_u32 v{oa+2}, s49, v{t}
    s_lshl_b32 s49, s58, 8
    s_sub_u32 s49, 256, s49
    v_add_u32 v{og4}, s49, v{t}
    s_lshl_b32 s48, s59, 4
    s_lshl_b32 s49, s54, 7
    s_add_u32 s48, s48, s49
    s_mul_i32 s48, s48, 1152
    s_mul_i32 s49, s55, 288
    s_add_u32 s62, s48, s49
    s_mul_i32 s49, s58, 144
    s_add_u32 s62, s62, s49''')
    for i in range(3):
        k(f'''v_add_u32 v{t}, {64*i}, v0
        v_mul_u32_u24 v{t+1}, 911, v{t}
        v_lshrrev_b32 v{t+1}, 13, v{t+1}
        v_mul_u32_u24 v{t+1}, {1152-144}, v{t+1}
        v_lshl_add_u32 v{og+i}, v{t}, 4, v{t+1}''')
    k(f'''v_cmp_gt_u32 vcc, 16, v0
    v_mov_b32 v{t+1}, {OOB}
    v_cndmask_b32 v{og+2}, v{t+1}, v{og+2}, vcc
    s_mul_i32 s48, s{sW}, {XW}
    s_add_u32 s48, s48, {WS_XCH}
    s_mul_i32 s64, s2, {XB}
    s_add_u32 s64, s64, s48
    v_and_b32 v{t}, 3, v0
    v_cmp_eq_u32 vcc, 0, v{t}
    v_lshlrev_b32 v27, 2, v0
    v_cndmask_b32 v26, v{t+1}, v27, vcc
    s_mul_i32 s49, s{sW}, {2*XW}
    s_add_u32 s49, s49, {L_S}
    v_add_u32 v71, s49, v{la2}''')
    if OPT['xc'] == 3:
        k(f'v_mov_b64 {P(72)}, -1')
    else:
        k(f'v_add_u32 v72, {4*AST2}, v{vAo}\nv_add_u32 v75, {4*AST2}, v{vA4g}\nv_add_u32 v74, {4*AST2}, v{vAx}')
    for x in range(1, 4):
        k(f'''s_xor_b32 s{64+x}, s2, {2*x}
        s_mul_i32 s{64+x}, s{64+x}, {XB}
        s_add_u32 s{64+x}, s{64+x}, s48
        s_add_u32 s{64+x}, s{64+x}, {XM*(x-1)}''')
    cue = OPT['xcue']
    assert not cue
    if cue:
        k(f'''v_cmp_gt_u32 vcc, 8, v0
        v_cndmask_b32 v27, v{t+1}, v{la2}, vcc
        s_lshl_b32 s48, s{sW}, 7
        s_add_u32 s48, s48, {WS_XCUE}
        s_mul_i32 s61, s2, 1536
        s_add_u32 s61, s61, s48''')
        for x, r in ((1, 56), (2, 57), (3, 60)):
            k(f'''s_xor_b32 s{r}, s2, {2*x}
            s_mul_i32 s{r}, s{r}, 1536
            s_add_u32 s{r}, s{r}, s48
            s_add_u32 s{r}, s{r}, {512*(x-1)}''')
    mbox = [f'buffer_load_dwordx4 {Q(sq[0][c])}, v{la2}, {WS}, s64 offen offset:{1024*c} sc1' for c in range(2)] + \
           [f'buffer_load_dword v{sq[0][2]}, v27, {WS}, s64 offen offset:2048 sc1']
    sel = fw

    def g2_end():
        xmark(k, 'x', 2)
        k('s_barrier')
        xmark(k, 'x', 3)
        for mt in range(4):
            k(f'ds_read_b64 {P(x1+2*mt)}, v{oa} offset:{32*mt}\nds_read_b128 {Q(gq[mt])}, v{oa+2} offset:{64*mt}')
        k(f'ds_read_b64 {P(x1+8)}, v{oa+1}\nds_read_b128 {Q(gq[4])}, v{og4}')

    def message(x, nt, rows, r8):
        b, r = sq[x - 1], list(r8)
        r += [f'v_mov_b32_dpp v{b[2]+j}, v{b[2]} quad_perm:[{j},{j},{j},{j}] row_mask:0xf bank_mask:0xf' for j in (1, 2, 3)]
        for c in range(2):
            for i in range(4):
                a = accf(rows[2 * c + (i >> 1)], nt) + 2 * (i & 1)
                r.append(f'v_cvt_pk_bf16_f32 v{b[c]+i}, v{a}, v{a+1}')
            r.append(f'buffer_store_dwordx4 {Q(b[c])}, v{la2}, {WS}, s{64+x} offen offset:{1024*c} sc1')
        r.append(f'buffer_store_dwordx4 {Q(b[2])}, v26, {WS}, s{64+x} offen offset:2048 sc1')
        if cue:
            r.append(f'buffer_store_dwordx4 {Q(t+4)}, v27, {WS}, s{(56, 57, 60)[x-1]} offen sc1')
        return r

    def split4(nt, own, other):
        a = accf(4, nt)
        return [f'v_cvt_pk_bf16_f32 v{own}, v{a}, v{a+1}', f'v_cvt_pk_bf16_f32 v{other}, v{a+2}, v{a+3}',
                f'v_permlane32_swap_b32 v{own}, v{other}']

    def send_bc():
        if OPT.get('mk') != 'p1':
            mark(k, 10)
        if cue:
            for i in range(4):
                k(f'v_mov_b32 v{t+4+i}, v{vTAG}')
        s4 = split4(1, sq[1][2], sq[2][2])
        return message(3, 1, [5, 6, 7, 8], s4) + message(2, 1, [0, 1, 2, 3], [])

    def selectors():
        z, u = sel, t
        return [f'v_lshrrev_b32 v{u}, 2, v1', f'v_and_b32 v{u+1}, 1, v1', f'v_lshlrev_b32 v{u+1}, 4, v{u+1}',
                f'v_mov_b32 v{u+2}, 0x3f80', f'v_lshlrev_b32 v{u+1}, v{u+1}, v{u+2}',
                f'v_and_b32 v{u+2}, 2, v1', f'v_add_u32 v{u+3}, v{u}, v{u+2}',
                f'v_cmp_eq_u32 vcc, v{u}, v2', f'v_cndmask_b32 v{z+4}, 0, v{u+1}, vcc',
                f'v_cmp_eq_u32 vcc, v{u+3}, v2', f'v_cndmask_b32 v{z}, 0, v{u+1}, vcc',
                f'v_cmp_gt_u32 vcc, 8, v1', f'v_cndmask_b32 v{z}, 0, v{z}, vcc',
                f'v_cmp_eq_u32 vcc, 0, v{u+2}', f'v_cndmask_b32 v{z+5}, v{z+4}, 0, vcc', f'v_cndmask_b32 v{z+4}, 0, v{z+4}, vcc',
                f'v_mov_b32 v{z+1}, v{z}', f'v_mov_b64 {P(z+2)}, 0', f'v_mov_b64 {P(z+6)}, 0']
    send_a = lambda: (xmark(k, 'x', 1), message(1, 0, [5, 6, 7, 8], split4(0, t + 3, sq[0][2])) + selectors())[1]
    tag(k, 'touch c3')
    tag(k, 'region c3')
    fill, drain = {}, None
    if OPT['xc'] == 3:
        c0, cn = OPT['xclr']
        k(f'''v_mov_b64 {P(74)}, -1
        s_mul_i32 s63, s2, {XB}
        s_lshl_b32 s48, s{sW}, 10
        s_add_u32 s63, s63, s48
        s_add_u32 s63, s63, {WS_XCH}
        s_cmp_eq_u32 s{sW}, 3
        s_cselect_b32 s56, {5*4096}, {6*4096}'''.replace('s_cselect_b32 s56, 20480, 24576', 's_cselect_b32 s56, 4096, 0\ns_sub_u32 s56, 24576, s56'))
        for x in range(7):
            q = 2 * c0 + x * 2 * cn // 7
            so = f's_add_u32 s57, s63, {4096*x}' if x < 6 else 's_add_u32 s57, s63, s56'
            fill.setdefault(q, []).extend([so, f'buffer_store_dwordx4 {Q(72)}, v{la2}, {WS}, s57 offen sc1'])
        drain = 2 * OPT['xrdy'][0]
    gemm2_c(k, vAo, vAx, vA4g, vW0, vW, fa, fw, accf, rg1, reg_stages(1), OPT['defer'], send_bc, send_a, g2_end, fill, drain, (72, 75, 74))

    def add_message(q0, th):
        for i in range(4):
            a = accf(i, 0)
            k(f'{MF} {Q(a)}, {Q(sel + (4 if i % 2 == 0 else 2))}, {Q(q0[i >> 1])}, {Q(a)}')
        if th is not None:
            a = accf(4, 0)
            k(f'{MF} {Q(a)}, {Q(sel)}, {Q(th)}, {Q(a)}')
    k(f's_mul_i32 s49, s{sW}, {2*XW}\ns_add_u32 s49, s49, {L_S}\nv_add_u32 v73, s49, v27')
    for i in range(10):
        k(f'v_lshlrev_b32 v{qf+2*i}, 16, v{x1+i}\nv_and_b32 v{qf+2*i+1}, 0xffff0000, v{x1+i}')
    xmark(k, 'x', 4)
    k.wait(0)
    if OPT.get('mk') != 'p1':
        mark(k, 11)
    if cue == 1:
        k(f'v_mov_b32 v{t}, 0')
        poll(k, [f'buffer_load_dword v{t+1}, v{t}, {WS}, s61 offen sc1'], check_tags(k, [t + 1]), sleep=OPT['xsl'])
    k(f'v_mov_b32 v{sq[0][2]+1}, 0\nv_mov_b64 {P(sq[0][2]+2)}, 0\nv_mov_b64 {P(sq[1][2]+2)}, 0')
    for l in mbox:
        k(l)
    k('s_barrier')
    xmark(k, 'x', 5)
    for x in range(2):
        for c in range(2):
            k(f'ds_read_b128 {Q(sq[x+1][c])}, v71 offset:{XW*x+1024*c}')
    k(f'ds_read_b32 v{sq[1][2]}, v73 offset:2048\nds_read_b32 v{sq[1][2]+1}, v73 offset:{XW+2048}')
    add_message(sq[1], None)
    add_message(sq[2], sq[1][2])
    k.wait(0)
    L1 = k.lab()
    sent = check_sent(k, sq[0], t)
    sent()
    k(f's_cbranch_vccz {L1}')
    poll(k, mbox, sent, masked=True)
    k.label(L1)
    xmark(k, 'x', 6)
    add_message(sq[0], sq[0][2])
    for mt in (0, 1, 2, 3, 4):
        q, a = qf + 4 * mt, accf(mt, 0)
        for p in range(2):
            k(f'v_pk_fma_f32 {P(q+2*p)}, {P(a+2*p)}, {P(gq[mt]+2*p)}, {P(q+2*p)}')
        for p in range(2):
            k(f'v_cvt_pk_bf16_f32 v{x1+2*mt+p}, v{q+2*p}, v{q+2*p+1}')
        k(f'ds_write_b64 v{oa}, {P(x1+2*mt)} offset:{32*mt}' if mt < 4 else f'ds_write_b64 v{oa+1}, {P(x1+8)}')
    xmark(k, 'x', 7)
    if OPT.get('outlin'):
        k(f's_mul_i32 s62, s2, 9216\ns_mul_i32 s48, s{sW}, 2304\ns_add_u32 s62, s62, s48')
        k(f'v_mov_b32 v{og}, v{la2}\nv_add_u32 v{og+1}, 1024, v{la2}\nv_add_u32 v{t}, 2048, v{la2}\nv_cmp_gt_u32 vcc, 16, v0\nv_mov_b32 v{t+1}, {OOB}\nv_cndmask_b32 v{og+2}, v{t+1}, v{t}, vcc')
    for i in range(3):
        k(f'ds_read_b128 {Q(gq[i])}, v{oa+3} offset:{1024*i}')
    for i in range(3):
        k(f'buffer_store_dwordx4 {Q(gq[i])}, v{og+i}, s[44:47], s62 offen {OPT["outflag"]}')
    k('s_branch L_end')


def gen_H(k):
    V = Alloc(4, 256)
    t = V(12); la = V(); fl = V(3, 1); wa = V(3, 1); sa_ = V(3, 1); c0 = V(2); mo = V(4); ones = V(4, 4)
    ld = V(16, 4); Fa = V(8, 4); Fai = V(8, 4); Fb = V(32, 4); Fbi = V(32, 4)
    wv = V(32, 4); acc = V(32, 4); pk = V(16, 4); a0 = V(); a1 = V(); a2 = V(); a3 = V(); a4 = V(); a5 = V(); g4 = V(); lf = V(); dum = V(4); wp = V(16, 4)
    g = acc
    k(f'v_lshlrev_b32 v{la}, 4, v0\nv_mov_b32 v{mo+2}, {OOB}\nv_mov_b32 v{t+8}, {OOB}\nv_mov_b32 v{fl+1}, {OOB}')
    k(f'''s_sub_u32 s63, 255, s2
    s_mul_i32 s62, s63, 171
    s_lshr_b32 s62, s62, 9
    s_mul_i32 s48, s62, 3
    s_sub_u32 s61, s63, s48''')

    def skip_unless(reg, val, op='lg'):
        L = k.lab()
        k(f's_cmp_{op}_u32 s{reg}, {val}\ns_cbranch_scc1 {L}')
        k.cond += 1
        return L

    def endif(L):
        k.cond -= 1
        k.label(L)

    def mod_addr(urgent, part=3):
        if part & 1:
            k(f'''v_lshrrev_b32 v{t}, 3, v0
        v_and_b32 v{t+1}, 7, v0
        v_and_b32 v{t+2}, 6, v{t}
        v_xor_b32 v{t+1}, v{t+1}, v{t+2}
        v_mul_u32_u24 v{t}, 6912, v{t}
        v_lshl_add_u32 v{t+8}, v{t+1}, 4, v{t}
        s_lshl_b32 s48, s61, 2
        s_add_u32 s48, s48, s{sW}
        s_mul_i32 s48, s48, {(48 if urgent else 72)*6912}
        s_lshl_b32 s49, s62, 7
        s_add_u32 s47, s48, s49
        s_lshl_b32 s50, s{sW}, 8
        v_lshl_add_u32 v{c0+1}, v0, 2, s50
        s_mul_i32 s49, s61, {384 if urgent else 576}
        v_add_u32 v{t+5}, s49, v{c0+1}
        v_add_u32 v{t+8}, s47, v{t+8}''')
        if not part & 2:
            return
        k(f'''v_lshrrev_b32 v{t}, 2, v0
        v_bfe_u32 v{t+1}, v{t}, 1, 2
        v_xor_b32 v{t+1}, s{sW}, v{t+1}
        v_lshlrev_b32 v{t+1}, 5, v{t+1}
        v_lshlrev_b32 v{t}, 7, v{t}
        v_and_b32 v{t+2}, 3, v0
        v_lshlrev_b32 v{t+2}, 3, v{t+2}
        v_add3_u32 v{mo}, v{t}, v{t+1}, v{t+2}
        v_lshlrev_b32 v{mo+1}, 3, v2
        v_add_u32 v{mo+1}, {L_SILU}, v{mo+1}''')
        if urgent:
            k(f'''s_mul_i32 s48, s{sW}, 3456
            s_mul_i32 s49, s61, 1152
            s_add_u32 s48, s48, s49
            s_lshl_b32 s49, s62, 6
            s_add_u32 s48, s48, s49
            s_add_u32 s48, s48, {WS_MODG}
            v_mul_u32_u24 v{t}, 13824, v2
            v_lshl_add_u32 v{t}, v1, 2, v{t}
            v_add_u32 v{mo+2}, s48, v{t}
            v_add_u32 v{mo+3}, {4*13824}, v{mo+2}''')
        else:
            k(f'''s_mul_i32 s49, s61, 9216
            s_lshl_b32 s50, s62, 8
            s_add_u32 s49, s49, s50
            s_lshl_b32 s50, s{sW}, 6
            s_add_u32 s49, s49, s50
            s_add_u32 s49, s49, {WS_MODB - 18*256}
            v_lshl_add_u32 v{t}, v1, 2, s49
            v_cmp_gt_u32 vcc, 16, v0
            v_mov_b32 v{t+1}, {OOB}
            v_cndmask_b32 v{mo+2}, v{t+1}, v{t}, vcc''')

    def mod_loads(n, i0, i1):
        if i0 == 0:
            k(f's_mul_i32 m0, s{sW}, {1024*n}\ns_mov_b32 s59, 0')
        for i in range(i0, i1):
            k(f'buffer_load_dwordx4 v{t+8}, s[40:43], s59 offen lds')
            if i < n - 1:
                k(f's_add_u32 m0, m0, 1024\ns_add_u32 s59, s59, {8*6912}')

    def c_load():
        srd(k, 44, pC, D * 2)
        k(f'buffer_load_dword v{c0}, v{t+5}, s[44:47], 0 offen')

    def mod_silu():
        k(f'''v_lshlrev_b32 v{t}, 16, v{c0}
        v_and_b32 v{t+1}, 0xffff0000, v{c0}
        v_mul_f32 v{t+2}, {f32(-1.4426950408889634)}, v{t}
        v_mul_f32 v{t+3}, {f32(-1.4426950408889634)}, v{t+1}
        v_exp_f32 v{t+2}, v{t+2}
        v_exp_f32 v{t+3}, v{t+3}
        v_add_f32 v{t+2}, 1.0, v{t+2}
        v_add_f32 v{t+3}, 1.0, v{t+3}
        v_rcp_f32 v{t+2}, v{t+2}
        v_rcp_f32 v{t+3}, v{t+3}
        v_mul_f32 v{t}, v{t}, v{t+2}
        v_mul_f32 v{t+1}, v{t+1}, v{t+3}
        v_cvt_pk_bf16_f32 v{c0}, v{t}, v{t+1}
        v_add_u32 v{c0+1}, {L_SILU}, v{c0+1}
        ds_write_b32 v{c0+1}, v{c0}''')

    def mod_compute(urgent):
        c = k.cond
        k.cond = 0
        k.lg = []
        n = 6 if urgent else 9
        g = wv
        for stp in range(n):
            a = g + stp * 8
            k(f'''ds_read_b64_tr_b16 {P(a)}, v{mo} offset:{stp*4096}
            ds_read_b64_tr_b16 {P(a+2)}, v{mo} offset:{stp*4096+2048}
            ds_read2_b64 {Q(a+4)}, v{mo+1} offset0:{stp*8} offset1:{stp*8+4}''')
        k(f'v_and_b32 v{t}, 3, v1\nv_or_b32 v{t}, 0x07060500, v{t}')
        for stp in range(n):
            a = g + stp * 8
            k(f'{MF} {Q(ld)}, {Q(a+4)}, {Q(a)}, ' + ('0' if stp == 0 else Q(ld)))
        k(f'v_add_u32 v{ld+4}, 0x80, v{ld}\nv_perm_b32 v{ld+4}, v{ld+4}, v{vTAG}, v{t}')
        k.cond = c
        if urgent:
            k.wait(OPT['warm'])
        for a in range(OPT['nm'] if urgent else 1):
            k(f's_mov_b32 s48, {a*0x20000}')
            for i in range(2 if urgent else 1):
                k(f'buffer_store_dword v{ld+4}, v{mo+2+i}, {WS}, s48 offen sc1')

    def wp_addr():
        k(f'''s_lshl_b32 s67, s{sJ}, 4
        s_add_u32 s67, s67, s{sR}
        s_and_b32 s67, s67, 127
        s_lshl_b32 s48, s{sW}, 9
        s_add_u32 s48, s48, s67
        s_mul_i32 s69, s{sW}, 6144
        s_add_u32 s69, s69, {L_WST}
        s_cmp_eq_u32 s67, 0
        s_cselect_b32 s68, 38, 0
        s_add_u32 s68, s68, 152
        v_mov_b32 v{t+4}, {OOB}''')
        for i in range(3):
            k(f'''v_add_u32 v{t}, {64*i}, v0
            v_mul_u32_u24 v{t+1}, 1725, v{t}
            v_lshrrev_b32 v{t+1}, 16, v{t+1}
            v_mul_u32_u24 v{t+2}, 38, v{t+1}
            v_sub_u32 v{t+2}, v{t}, v{t+2}
            v_cmp_gt_u32 vcc, s68, v{t}
            v_lshl_add_u32 v{t+1}, v{t+1}, 7, s48
            v_and_b32 v{t+1}, 2047, v{t+1}
            v_mul_u32_u24 v{t+1}, 578, v{t+1}
            v_and_b32 v{t+1}, 0xfffffff0, v{t+1}
            v_lshl_add_u32 v{t+1}, v{t+2}, 4, v{t+1}
            v_cndmask_b32 v{wa+i}, v{t+4}, v{t+1}, vcc''')

    def wp_gather():
        k(f'''s_lshl_b32 s48, s67, 1
        s_and_b32 s48, s48, 15
        s_add_u32 s48, s48, s69
        v_and_b32 v{t}, 1, v2
        v_lshrrev_b32 v{t+1}, 1, v2
        v_mul_u32_u24 v{t+2}, 144, v{t}
        v_mad_u32_u24 v{t+2}, v1, 9, v{t+2}
        v_add_lshl_u32 v{t+2}, v{t+2}, v{t+1}, 1
        v_add_u32 v{wa}, s48, v{t+2}
        s_cmp_eq_u32 s67, 0
        s_cselect_b32 s49, 608, 0
        s_add_u32 s48, s48, s49
        s_add_u32 s48, s48, {576-8}
        v_sub_u32 v{wa+1}, s48, v{t+2}
        v_lshl_add_u32 v{t}, v{t+1}, 5, v{t}
        v_lshlrev_b32 v{t}, 14, v{t}
        v_lshl_add_u32 v{sa_}, v1, 4, v{t}
        v_add_u32 v{sa_+1}, {64<<14}, v{sa_}
        v_add_u32 v{sa_+2}, {128<<14}, v{sa_}
        v_cmp_gt_u32 vcc, 32, v0
        v_mov_b32 v{t+4}, {OOB}
        v_cndmask_b32 v{sa_+2}, v{t+4}, v{sa_+2}, vcc
        s_lshl_b32 s48, s67, 2
        s_add_u32 s48, s48, s{sW}
        s_lshl_b32 s48, s48, 4
        s_add_u32 s48, s48, {WS_FLAG}
        v_writelane_b32 v{fl+1}, s48, 0''')
        if OPT['warm']:
            k(f'buffer_load_dword v{dum+2}, v{fl+1}, {WS}, 0 offen')
        for refl in range(2):
            if refl == 0:
                k(f's_mov_b32 s48, s67\ns_mov_b32 s49, s{sW}')
            else:
                k(f's_sub_u32 s48, 128, s67\ns_and_b32 s48, s48, 127\ns_sub_u32 s49, 3, s{sW}')
            k(f'''s_and_b32 s50, s48, 7
            s_lshr_b32 s48, s48, 3
            s_lshl_b32 s58, s50, 16
            s_lshl_b32 s59, s48, 10
            s_add_u32 s58, s58, s59
            s_lshl_b32 s59, s49, 8
            s_add_u32 s58, s58, s59
            s_add_u32 s{56+refl}, s58, {WS_WP + refl*(2<<14)}''')

    def wp_run():
        c = k.cond
        k.cond = 0
        k.lg = []
        g = wv
        for refl in range(2):
            for i in range(3):
                r = g + 24 * refl + 8 * i
                for j in range(4):
                    o = 608 * j + 4 * i if refl == 0 else 608 * (3 - j) + 8 - 4 * i
                    k(f'ds_read_u16 v{r+j}, v{wa+refl} offset:{o}\nds_read_u16 v{r+4+j}, v{wa+refl} offset:{3072+o}')
        k.cond = c
        for refl in range(2):
            for i in range(3):
                r = g + 24 * refl + 8 * i
                for j in range(4):
                    k(f'v_lshl_or_b32 v{r+j}, v{r+4+j}, 16, v{r+j}')
                for j in range(4 * refl):
                    k(f'v_xor_b32 v{r+j}, 0x80000000, v{r+j}')
                k(f'buffer_store_dwordx4 {Q(r)}, v{sa_+i}, {WS}, s{56+refl} offen sc1')

    def wp_loads():
        srd(k, 52, pWR, S * 578)
        srd(k, 56, pWI, S * 578)
        for arr in range(2):
            for i in range(3):
                k(f's_add_u32 m0, s69, {3072*arr+1024*i}')
                k(f'buffer_load_dwordx4 v{wa+i}, s[{52+4*arr}:{55+4*arr}], 0 offen lds')

    def flag_addr():
        k(f'''s_lshr_b32 s51, s{sR}, 2
        s_lshl_b32 s51, s51, 3
        s_add_u32 s51, s51, s{sJ}
        s_and_b32 s60, s{sR}, 3
        s_lshl_b32 s35, s51, 2
        s_add_u32 s35, s35, s60
        s_lshl_b32 s35, s35, 14
        s_bfe_u32 s48, s{sS2}, 0x20002
        s_lshl_b32 s48, s48, 6
        s_lshr_b32 s49, s{sS2}, 4
        s_lshl_b32 s49, s49, 2
        s_add_u32 s48, s48, s49
        s_and_b32 s49, s{sS2}, 3
        s_add_u32 s48, s48, s49
        s_lshl_b32 s48, s48, {OPT['fs']}
        s_lshl_b32 s49, s{sW}, 16
        s_add_u32 s48, s48, s49
        s_add_u32 s48, s48, {WS_FL2}
        v_mov_b32 v{fl}, {OOB}''')
        for a in range(OPT['na']):
            k(f'v_writelane_b32 v{fl}, s48, {a}\ns_add_u32 s48, s48, 16384')
        k(f'''s_add_u32 s48, s2, 160
        s_lshl_b32 s48, s48, 7
        s_add_u32 s48, s48, {WS_CUE+0x8000}
        s_lshl_b32 s49, s{sW}, 8
        s_add_u32 s49, s49, s{sR}
        s_cmp_lt_u32 s49, 12
        s_cselect_b32 s48, s48, {OOB}
        v_mov_b32 v{fl+2}, {OOB}
        v_writelane_b32 v{fl+2}, s48, 0
        s_or_b32 s48, s2, s{sW}
        s_cmp_eq_u32 s48, 0
        s_cselect_b32 s48, 0, {OOB}
        s_add_u32 s48, s48, {WS_EPOCH}
        v_writelane_b32 v{fl+2}, s48, 1''')
        if OPT['ec2']:
            k(f'''s_lshr_b32 s48, s35, 10
            s_lshl_b32 s49, s{sW}, 12
            s_add_u32 s48, s48, s49
            s_add_u32 s48, s48, {WS_FLAG + 0x8000}
            s_cmp_lt_u32 s{sR}, 20
            s_cselect_b32 s48, s48, {OOB}
            v_writelane_b32 v{fl+2}, s48, 2''')

    def warm(regs):
        if OPT['warm']:
            for i, r in enumerate(regs):
                k(f'buffer_load_dword v{dum+i}, v{r}, {WS}, 0 offen')

    def clear1():
        k(f's_lshl_b32 s48, s{sW}, 12\ns_add_u32 s48, s48, s35\ns_add_u32 s48, s48, {WS_T1}')
        for i in range(4):
            k(f'buffer_store_dwordx4 {Q(ones)}, v{la}, {WS}, s48 offen offset:{1024*i} sc1')

    def clear2():
        k(f'''v_min_u32 v{t+1}, {31*16}, v{la}
        s_mul_i32 s48, s{sW}, 2560
        s_mul_i32 s49, s{sS2}, 10240
        s_add_u32 s48, s48, s49
        s_add_u32 s48, s48, {WS_T2}''')
        for i in range(3):
            k(f'buffer_store_dwordx4 {Q(ones)}, v{la if i<2 else t+1}, {WS}, s48 offen offset:{1024*i} sc1')
    LGEN, LNP, LP2, LG, LQ = k.lab(), k.lab(), k.lab(), k.lab(), k.lab()
    L_A, L_B = L_WST, L_WST + 16 * 1040
    k(f's_cmp_ge_u32 s63, 54\ns_cbranch_scc1 {LGEN}')
    if OPT['up'] & 1:
        k('s_setprio 2')
    mod_addr(True, 1)
    k.wait(lg=0)
    srd(k, 40, pWM, D * 3456 * 2)
    mod_loads(6, 0, 6)
    c_load()
    srd(k, 36, pWS, WS_SIZE)
    load_tag(k, t + 3)
    mark(k, 11)
    if OPT['up'] == 3:
        k('s_setprio 0')
    mod_addr(True, 2)
    if OPT['prew']:
        k(f'v_mov_b32 v{t+1}, 0')
        for a in range(OPT['nm']):
            k(f's_mov_b32 s48, {a*0x20000}')
            for i in range(2):
                k(f'buffer_store_dword v{t+1}, v{mo+2+i}, {WS}, s48 offen sc1')
    flag_addr()
    warm([fl])
    k.wait(2 * OPT['nm'] * OPT['prew'] + OPT['warm'])
    mark(k, 10)
    if OPT['up'] & 2:
        k('s_setprio 2')
    mod_silu()
    finish_tag(k)
    mark(k, 1)
    bar(k, lg=0)
    mod_compute(True)
    mark(k, 2)
    xmark(k, 'u', 4)
    if OPT['a0']:
        k('s_barrier')
    k(f's_setprio 0\ns_mov_b32 s63, 999\ns_branch {LQ}')
    k.raw('; @cut')
    k.label(LGEN)
    k.fresh()
    k(f'''s_sub_u32 s61, s63, 54
    s_lshr_b32 s62, s61, 1
    s_add_u32 s62, s62, 18
    s_and_b32 s61, s61, 1''')

    def mats1():
        k(f'''v_cvt_f32_u32 v{g4}, v2
        v_mul_f32 v{g4}, 4.0, v{g4}
        v_cvt_f32_u32 v{lf}, v1
        v_cvt_f32_u32 v{t+9}, s{sJ}
        v_mul_f32 v{t+6}, {f32(1/16)}, v{lf}
        v_fmac_f32 v{t+6}, {f32(1/128)}, v{t+9}
        v_mul_f32 v{t+7}, v{g4}, v{t+6}''')
        dft_frag(k, t + 7, t + 6, Fa, Fa + 4, t, False)
        k(f'''s_lshl_b32 s48, s{sW}, 5
        s_add_u32 s48, s48, s{sJ}
        v_cvt_f32_u32 v{t+10}, s48
        v_mul_f32 v{t+10}, {f32(1/2048)}, v{t+10}
        v_mul_f32 v{t+6}, {f32(1/16)}, v{lf}
        v_add_f32 v{t+6}, v{t+6}, v{t+10}''')
        for tt in range(4):
            if tt:
                k(f'v_add_f32 v{t+6}, {f32(8/2048)}, v{t+6}')
            k(f'v_mul_f32 v{t+7}, v{g4}, v{t+6}')
            dft_frag(k, t + 7, t + 6, Fb + 8 * tt, Fb + 8 * tt + 4, t, False)

    def mats2():
        k(f'''v_mul_f32 v{t+6}, {f32(1/16)}, v{lf}
        v_fmac_f32 v{t+10}, {f32(1/16)}, v{g4}''')
        for tt in range(4):
            if tt:
                k(f'v_add_f32 v{t+10}, {f32(8/2048)}, v{t+10}')
            k(f'v_mul_f32 v{t+7}, v{lf}, v{t+10}')
            dft_frag(k, t + 7, t + 6, Fbi + 8 * tt, Fbi + 8 * tt + 4, t, True)
        k(f'''v_mul_f32 v{t+9}, {f32(1/128)}, v{t+9}
        v_fmac_f32 v{t+9}, {f32(1/16)}, v{g4}
        v_mul_f32 v{t+7}, v{lf}, v{t+9}''')
        dft_frag(k, t + 7, t + 6, Fai, Fai + 4, t, True)

    def p2_addr():
        k(f'''s_lshl_b32 s54, s{sW}, 8
        s_add_u32 s52, s35, s54
        s_add_u32 s52, s52, {WS_T1}
        s_lshl_b32 s53, s{sW}, 12
        s_add_u32 s53, s53, s35
        s_add_u32 s53, s53, {WS_WP}
        v_and_b32 v{t}, 3, v1
        v_lshrrev_b32 v{t+1}, 2, v1
        v_lshlrev_b32 v{t+2}, 6, v{t}
        v_lshl_add_u32 v{t+2}, v{t+1}, 4, v{t+2}
        v_lshl_add_u32 v{a5}, v2, 12, v{t+2}
        v_mul_u32_u24 v{a0}, 1040, v1
        v_lshl_add_u32 v{a0}, v2, 6, v{a0}
        v_add_u32 v{a0}, s54, v{a0}
        s_mul_i32 s48, s{sW}, {4*1040}
        v_add_u32 v{a2}, s48, v{la}
        v_lshl_add_u32 v{t+2}, v2, 2, v{t}
        v_mul_u32_u24 v{a3}, 1056, v{t+2}
        v_lshl_add_u32 v{a3}, v{t+1}, 4, v{a3}
        v_add_u32 v{a3}, s54, v{a3}
        s_mul_i32 s48, s{sW}, {4*1056}
        v_add_u32 v{a1}, s48, v{la}
        s_and_b32 s66, s51, 3
        s_xor_b32 s66, s66, s60
        s_lshl_b32 s66, s66, 6
        s_lshl_b32 s48, s51, 8
        s_add_u32 s66, s66, s48
        s_mul_i32 s48, s{sW}, {4*10240}
        s_add_u32 s66, s66, s48
        s_add_u32 s66, s66, {WS_T2}
        s_add_u32 s67, s66, {16*10240}
        s_add_u32 s68, s66, {32*10240}
        s_add_u32 s69, s66, {48*10240}
        s_lshr_b32 s48, s51, 2
        s_and_b32 s48, s48, 2
        v_xor_b32 v{t}, s48, v{t}
        v_lshl_add_u32 v{t+1}, v2, 6, v{t+1}
        v_mul_u32_u24 v{a4}, 10240, v{t+1}
        v_lshl_add_u32 v{a4}, v{t}, 4, v{a4}''')
    wl = f'buffer_load_dword v{fl+1}, v{t+11}, {WS}, s64 offen sc1'

    def wpre():
        k(f'''s_lshl_b32 s48, s{sW}, 5
        s_add_u32 s48, s48, s{sJ}
        v_lshrrev_b32 v{t+4}, 2, v1
        v_lshl_add_u32 v{t+4}, v{t+4}, 3, s48
        s_cmp_lt_u32 s60, 2
        s_cselect_b32 s48, 1, -1
        v_mul_i32_i24 v{t+4}, s48, v{t+4}
        v_and_b32 v{t+4}, 127, v{t+4}
        v_and_b32 v{t+3}, 3, v1
        v_lshl_add_u32 v{t+4}, v{t+4}, 2, v{t+3}
        v_lshlrev_b32 v{t+11}, 4, v{t+4}
        s_mov_b32 s64, {WS_FLAG}''')
        L1 = skip_unless(sR, 20, 'ge')
        k(wl)
        endif(L1)

    def wpost():
        p2_addr()
        k(f'''s_lshr_b32 s65, s{sJ}, 1
        s_lshl_b32 s65, s65, 16
        s_add_u32 s65, s65, {WS_FL2}
        s_lshl_b32 s48, s{sW}, {6+OPT['fs']}
        s_add_u32 s65, s65, s48
        v_lshlrev_b32 v{g4}, {OPT['fs']}, v0''')
    LB, LJ = k.lab(), k.lab()
    k(f's_cmp_ge_u32 s{sR}, 16\ns_cbranch_scc1 {LB}')
    wp_addr()
    k.wait(lg=0)
    srd(k, 36, pWS, WS_SIZE)
    srd(k, 40, pWM, D * 3456 * 2)
    load_tag(k, t)
    flag_addr()
    warm([fl, fl + 2])

    def clear_xch():
        k(f'''v_mov_b64 {P(ones)}, -1
        v_mov_b64 {P(ones+2)}, -1
        s_lshl_b32 s61, s2, 2
        s_add_u32 s61, s61, s{sW}
        s_mul_i32 s61, s61, {14*1024}
        s_add_u32 s61, s61, {WS_XCH}''')
        for i in range(14):
            k(f'buffer_store_dwordx4 {Q(ones)}, v{la}, {WS}, s61 offen offset:{1024*(i&3)} sc1')
            if i & 3 == 3:
                k('s_add_u32 s61, s61, 4096')
    if OPT['xc'] == 1:
        clear_xch()
    if OPT['wat'] == 0:
        wp_loads()
    if OPT['wat'] >= 2:
        mats1()
    if OPT['wat'] == 3:
        wp_loads()
    mark(k, 1)
    k('s_barrier')
    if OPT['pf1']:
        srd(k, 44, pW1, S * F * 2)
        k(f's_lshl_b32 s61, s{sW}, 4\ns_add_u32 s61, s61, s{sR}')
        pf_loop(k, 1, 61, 64, 16 * OPT['pf1'], ld, 44)
    if OPT['wat'] in (1, 2):
        wp_loads()
    if OPT['xc'] == 2:
        clear_xch()
    wp_gather()
    if OPT['wat'] < 2:
        mats1()
    k.wait(0)
    mark(k, 10)
    finish_tag(k)
    wp_run()
    mark(k, 2)
    k(f's_branch {LQ}')
    k.label(LB)
    k.fresh()
    mod_addr(False)
    k.wait(lg=0)
    srd(k, 36, pWS, WS_SIZE)
    srd(k, 40, pWM, D * 3456 * 2)
    load_tag(k, t)
    c_load()
    flag_addr()
    warm([fl, fl + 2, mo + 2])
    L1 = skip_unless(63, 126, 'ge')
    mod_loads(9, 0, OPT['mb'])
    endif(L1)
    mark(k, 1)
    k('s_barrier')
    k.wait(0)
    L1 = skip_unless(63, 126, 'ge')
    mod_loads(9, OPT['mb'], 9)
    endif(L1)
    finish_tag(k)
    mod_silu()
    L1 = skip_unless(sR, 20, 'ge')
    mats1()
    endif(L1)
    k.label(LQ)
    k.fresh()
    mark(k, 3)
    bar(k, lg=0)
    L1 = skip_unless(sR, 20, 'ge')
    if OPT['wfl']:
        k.wait(0)
        k(f'buffer_store_dword v{vTAG}, v{fl+1}, {WS}, 0 offen sc1')
    mats2()
    endif(L1)
    tag(k, 'touch h1')
    tag(k, 'region h1')
    k.wait(0)
    if OPT['wearly']:
        wpre()
    mark(k, 2)
    k('s_barrier')
    if OPT.get('mk') != 'u':
        mark(k, 10)
    k(f'buffer_store_dword v{vTAG}, v{fl}, {WS}, 0 offen sc1')
    L1 = skip_unless(63, 126, 'ge')
    mod_compute(False)
    endif(L1)
    k(f's_cmp_lt_u32 s{sR}, 20\ns_cbranch_scc1 {LP2}')
    srd(k, 52, pW1, S * F * 2)
    k(f'''s_mul_i32 s58, s{sW}, 12
    s_add_u32 s58, s58, s{sR}
    s_add_u32 s58, s58, {16*OPT['pf1'] - 20}''')
    if OPT['pfd']:
        k.wait(0)
    if OPT['pfd'] > 1:
        k(f's_sleep {OPT["pfd"]}')
    pf_loop(k, 1, 58, 48, OPT['pf2'], dum, 52)
    if OPT['pf9']:
        srd(k, 64, pW2, S * F * 2)
        k(f'''s_mul_i32 s59, s{sW}, 12
        s_add_u32 s59, s59, s{sR}
        s_sub_u32 s59, s59, 20''')
        pf_loop(k, 2, 59, 48, OPT['pf9'], dum, 64)
    k.wait(0)
    mark(k, 5)
    k('s_barrier')
    k(f's_branch {LG}')
    tag(k, 'target')
    k.label(LP2)
    k.fresh()
    if OPT['hp']:
        k('s_setprio 1')
    unp = [f'v_lshlrev_b32 v{wv+8*(x>>2)+(x&3)}, 16, v{wp+x}\nv_and_b32 v{wv+8*(x>>2)+4+(x&3)}, 0xffff0000, v{wp+x}' for x in range(16)]
    if OPT['wfl']:
        if not OPT['wearly']:
            wpre()
        wpost()
        if OPT['wearly']:
            k.wait(1)
        L1 = k.lab()
        check_tags(k, [fl + 1])()
        k(f's_cbranch_vccz {L1}')
        poll(k, [wl], check_tags(k, [fl + 1]))
        k.label(L1)
        for tt in range(4):
            k(f'buffer_load_dwordx4 {Q(wp+4*tt)}, v{la}, {WS}, s53 offen offset:{1024*tt} sc1')
        k.wait({1: 0, 2: 3, 3: 4}[OPT['wfl']])
        mark(k, 11)
        poll(k, [f'buffer_load_dword v{t}, v{g4}, {WS}, s65 offen sc1'], check_tags(k, [t]), masked=True, alt=([65], 16384, OPT['na']))
        mark(k, 1)
        for j in range(4):
            k(f'buffer_load_dwordx4 {Q(ld+4*j)}, v{a5}, {WS}, s52 offen offset:{1024*j} sc1')
        for x in unp:
            k(x)
        unp = [''] * 16
        if OPT['stamp']:
            k.wait(0)
    else:
        p2_addr()
        k(f'''s_lshr_b32 s64, s{sJ}, 1
        s_lshl_b32 s64, s64, 16
        s_add_u32 s64, s64, {WS_FL2}
        s_lshl_b32 s48, s{sW}, {6+OPT['fs']}
        s_add_u32 s65, s64, s48
        v_lshlrev_b32 v{t+1}, {OPT['fs']}, v0
        s_lshl_b32 s48, s{sW}, 5
        s_add_u32 s48, s48, s{sJ}
        v_and_b32 v{t+2}, 3, v0
        v_lshl_add_u32 v{t+2}, v{t+2}, 3, s48
        s_cmp_lt_u32 s60, 2
        s_cselect_b32 s48, 1, -1
        v_mul_i32_i24 v{t+2}, s48, v{t+2}
        v_bfe_u32 v{t+3}, v{t+2}, 2, 2
        v_bfe_u32 v{t+4}, v{t+2}, 4, 3
        v_and_b32 v{t+2}, 3, v{t+2}
        v_lshl_add_u32 v{t+2}, v{t+3}, 6, v{t+2}
        v_lshl_add_u32 v{t+2}, v{t+4}, 3, v{t+2}
        v_lshlrev_b32 v{t+2}, {OPT['fs']}, v{t+2}''')
        k.wait(0)
        mark(k, 11)
        poll(k, [f'buffer_load_dword v{t}, v{t+1}, {WS}, s65 offen sc1', f'buffer_load_dword v{t+3}, v{t+2}, {WS}, s64 offen sc1'],
             check_tags(k, [t, t + 3]), masked=True, alt=([64, 65], 16384, OPT['na']))
        mark(k, 1)
        for j in range(4):
            k(f'buffer_load_dwordx4 {Q(ld+4*j)}, v{a5}, {WS}, s52 offen offset:{1024*j} sc1')
        for tt in range(4):
            k(f'buffer_load_dwordx4 {Q(wp+4*tt)}, v{la}, {WS}, s53 offen offset:{1024*tt} sc1')
    if OPT['stamp']:
        k.wait(4)
    mark(k, 4)
    for i in range(4):
        for j in range(i + 1, 4):
            k(f'v_swap_b32 v{ld+4*i+j}, v{ld+4*j+i}')
        for ri in range(2):
            k(f'{MF} {Q(acc+8*i+4*ri)}, {Q(ld+4*i)}, {Q(Fa+4*ri)}, 0')
    for ci in range(4):
        for j in range(4):
            k(f'v_cvt_pk_bf16_f32 v{pk+4*ci+j}, v{acc+8*ci+j}, v{acc+8*ci+4+j}')
        k(f'ds_write_b128 v{a0}, {Q(pk+4*ci)} offset:{L_A+16*ci}')
    bar(k, lg=0)
    for tt in range(4):
        k(f'ds_read_b128 {Q(ld+4*tt)}, v{a2} offset:{L_A+1040*tt}')
    cue = f'buffer_store_dword v{vTAG}, v{fl+2}, {WS}, 0 offen sc1'
    if OPT['cue_at'] == 0:
        k(cue)
    for x in unp[:8]:
        k(x)
    for tt in range(4):
        for ri in range(2):
            k(f'{MF} {Q(acc+8*tt+4*ri)}, {Q(Fb+8*tt+4*ri)}, {Q(ld+4*tt)}, 0')
            k(unp[8 + 2 * tt + ri])
    for tt in range(4):
        for p in range(2):
            re, im, wr, wi = acc + 8 * tt + 2 * p, acc + 8 * tt + 4 + 2 * p, wv + 8 * tt + 2 * p, wv + 8 * tt + 4 + 2 * p
            o = t + 4 * p
            k(f'''v_pk_mul_f32 {P(o)}, {P(re)}, {P(wr)}
            v_pk_mul_f32 {P(o+2)}, {P(im)}, {P(wr)}
            v_pk_fma_f32 {P(o)}, {P(im)}, {P(wi)}, {P(o)} neg_lo:[1,0,0] neg_hi:[1,0,0]
            v_pk_fma_f32 {P(o+2)}, {P(re)}, {P(wi)}, {P(o+2)}
            v_cvt_pk_bf16_f32 v{pk+4*tt+2*p}, v{o}, v{o+2}
            v_cvt_pk_bf16_f32 v{pk+4*tt+2*p+1}, v{o+1}, v{o+3}''')
            if tt:
                k(f'{MF} {Q(acc+8*(tt-1)+4*p)}, {Q(Fbi+8*(tt-1)+4*p)}, {Q(pk+4*(tt-1))}, 0')
            if OPT['cue_at'] == 4 and (tt, p) == (2, 1):
                k(cue)
    for tt in range(4):
        if tt == 1:
            for ri in range(2):
                k(f'{MF} {Q(acc+24+4*ri)}, {Q(Fbi+24+4*ri)}, {Q(pk+12)}, 0')
        for j in range(4):
            k(f'v_cvt_pk_bf16_f32 v{ld+4*j+tt}, v{acc+8*tt+j}, v{acc+8*tt+4+j}')
            if tt == 3:
                k(f'ds_write_b128 v{a3}, {Q(ld+4*j)} offset:{L_B+64*j}')
    bar(k, lg=0)
    for ci in range(4):
        k(f'ds_read_b128 {Q(pk+4*ci)}, v{a1} offset:{L_B+1056*ci}')
    if OPT['cue_at'] == 1:
        k(cue)
    for ci in range(4):
        for ri in range(2):
            k(f'{MF} {Q(acc+8*ci+4*ri)}, {Q(Fai+4*ri)}, {Q(pk+4*ci)}, 0')
    for ci in range(4):
        if ci == 3 and OPT['sp1'] and OPT['cl3'] == 1:
            k('s_barrier')
        for j in range(4):
            k(f'v_cvt_pk_bf16_f32 v{ld+4*j+ci}, v{acc+8*ci+4+j}, v{acc+8*ci+j}')
            if ci == 3:
                k(f'buffer_store_dwordx4 {Q(ld+4*j)}, v{a4}, {WS}, s{66+j} offen sc1')
    if OPT['cue_at'] == 2:
        k(cue)
    mark(k, 5)
    if OPT['hp']:
        k('s_setprio 0')
    bar(k, None if OPT['ec2'] else 0)
    if OPT['cue_at'] == 3:
        k(cue)
    tag(k, 'region -')
    k.label(LG)
    if OPT.get('nodma'):
        k.drop = lambda x: x.endswith(' lds') and (OPT['nodma'] == 1 or (OPT['nodma'] == 2) == ('sc1' in x))
    k.fresh()
    V.p = 4
    t = V(4); la_ = V(); fl = V(2); da = V(9); xa = V(6); xd = V(24, 4); pv = V(2); xf_ = V(); db = V(9); fb = V(3); xr_ = V(5); vr = V(10)
    k(f'v_lshlrev_b32 v{la_}, 4, v0')
    la = la_
    g1_tile(k)
    g2_tile(k)
    srd(k, 40, pW1, S * F * 2)
    srd(k, 44, pW2, S * F * 2)
    k(f'''s_and_b32 s62, s{sW}, 1
    s_and_b32 s63, s{sJ}, {OPT['xm']}
    s_mul_i32 s63, s63, {OPT["xst"]}
    s_add_u32 s63, s63, {OPT['xo']}
    s_mul_i32 s48, s51, {OPT['rot1']}
    s_add_u32 s63, s63, s48
    s_and_b32 s63, s63, 31
    s_mov_b32 s64, 0
    s_lshl_b32 s68, s62, 13''')

    def start_off(dst, hi, base, first, mul, n):
        k(f's_mul_i32 s{dst}, s{first}, {mul}\ns_add_u32 s{dst}, s{dst}, s{base}\ns_add_u32 s{hi}, s{base}, {n*mul}')

    def w_addr(g, da, lo):
        jst, gst, qoff = ((256 * 9216, 9216, 1024 * 9216), (4096, 16384, 16 * 4096))[g]
        k(f'''v_lshlrev_b32 v{t+1}, 1, v2
        v_xor_b32 v{t+1}, v{t+1}, v1
        v_xor_b32 v{t+2}, 8, v{t+1}
        v_mul_u32_u24 v{t}, {jst}, v2
        v_lshl_add_u32 v{t+1}, v{t+1}, 4, v{t}
        v_lshl_add_u32 v{t+2}, v{t+2}, 4, v{t}''')
        if OPT['rotw'] & (1 << g):
            sm = 16 + 8 * g
            k('s_mul_i32 s12, s52, 43\ns_lshr_b32 s12, s12, 5' if g == 0 else 's_lshl_b32 s12, s55, 1')
            for i in range(8):
                k(f'''s_add_u32 s14, s12, {i}
                s_and_b32 s14, s14, 7
                s_and_b32 s15, s14, 3
                s_mul_i32 s15, s15, {gst}
                s_lshr_b32 s48, s14, 2
                s_mul_i32 s48, s48, {qoff}
                s_add_u32 s15, s15, s48
                s_bitcmp1_b32 s14, 0
                s_cselect_b64 vcc, -1, 0
                v_cndmask_b32 v{da+i}, v{t+1}, v{t+2}, vcc
                v_add_u32 v{da+i}, s15, v{da+i}
                s_lshl_b32 s14, s14, 10
                s_add_u32 s{sm+i}, s14, s68''')
        else:
            k(f'''v_add_u32 v{da+2}, {2*(gst-1024)}, v{t+1}
            v_add_u32 v{da+3}, {3*(gst-1024)}, v{t+2}
            v_add_u32 v{da+1}, {gst-1024}, v{t+2}
            v_mov_b32 v{da}, v{t+1}''')
            for i in range(4):
                k(f'v_add_u32 v{da+4+i}, {qoff}, v{da+i}')
        if g == 0:
            k(f's_mul_i32 s49, s62, {4*9216}\ns_lshl_b32 s48, s51, 8\ns_add_u32 s49, s49, s48')
            start_off(lo, lo + 1, 49, 63, 8 * 9216, 32)
        else:
            k(f'''s_mul_i32 s49, s53, {1152*4096}
            s_lshl_b32 s48, s62, 17
            s_add_u32 s49, s49, s48
            s_lshl_b32 s48, s54, 8
            s_add_u32 s49, s49, s48''')
            start_off(lo, lo + 1, 49, 64, 64 * 4096, NST2)

    def woff(n, mul, NST, lo=60, pair=False, d=50):
        if pair:
            p = f's_mul_i32 s{d}, s62, {(kappa(n+1, NST)-kappa(n, NST))*mul}\ns_add_u32 s{d}, s{d}, s{lo}\ns_add_u32 s{d}, s{d}, {kappa(n, NST)*mul}\n'
        else:
            p = f's_add_u32 s{d}, s{lo}, {kappa(n, NST)*mul}\n'
        return p + f's_cmp_ge_u32 s{d}, s{lo+1}\ns_cselect_b32 s48, {NST*mul}, 0\ns_sub_u32 s{d}, s{d}, s48\n'

    class Stream:
        def __init__(st, items):
            st.items, st.n, st.seq = items, 0, []

        def issue(st, upto, now):
            while st.n < min(upto, len(st.items)):
                need, free, txt = st.items[st.n]
                if free > now:
                    break
                k(txt)
                st.seq.append(k.stats.get('vmem', 0))
                st.n += 1

        def more(st, n):
            st.issue(st.n + n, -1)

        def run(st, NST, quota, last_bar=True, mk=None, hooks={}, verify={}, pre={}):
            landed = -1
            log = []
            for i in range(NST):
                nd = [x for x, it in enumerate(st.items) if it[0] <= i]
                vm = None
                if nd and nd[-1] > landed:
                    assert nd[-1] < st.n, (i, nd[-1], st.n)
                    landed = nd[-1]
                    vm = k.stats.get('vmem', 0) - st.seq[landed]
                if i in verify:
                    if vm is not None:
                        k.wait(vm)
                    verify[i]()
                    k('s_barrier')
                else:
                    bar(k, vm)
                if mk and OPT['stamp'] and i == 0:
                    mark(k, mk)
                    k.raw('    s_memtime s[98:99]')
                if mk and OPT.get('trace'):
                    k(f's_memtime s[14:15]\nv_writelane_b32 v{200 + (mk == 8)}, s14, {i}')
                if landed == len(st.items) - 1 and not last_bar:
                    break
                if i in pre:
                    pre[i]()
                n = st.n
                st.issue(quota(i), i)
                log.append((vm, st.n - n))
                if i in hooks:
                    n = k.stats['vmem']
                    hooks[i]()
                    k.stats['vmem'] = n + hooks.get('min', 0)
            if OPT.get('log'):
                print(log, file=sys.stderr)
            if mk and OPT['stamp']:
                mark(k, mk + 1)
                k('s_memtime s[100:101]')
                k(f's_sub_u32 s{84+mk}, s100, s98')

    def adv(s, inc, span, hi):
        return f's_add_u32 s{s}, s{s}, {inc}\ns_cmp_ge_u32 s{s}, s{hi}\ns_cselect_b32 s48, {span}, 0\ns_sub_u32 s{s}, s{s}, s48\n'

    def spread(n0, n1, i0, i1):
        return lambda i: n0 + int(round((n1 - n0) * max(0, min(i, i1) + 1 - i0) / (i1 + 1 - i0)))
    def scalar_pf():
        su = OPT['su']
        if not su:
            return {}
        n0 = 288 - 64 * OPT['pf8'] - 54 * OPT['pf4'] - 54 * OPT['pfa'] - 27 * su + OPT['n4x']
        k(f'''s_lshl_b32 s63, s{sR}, 2
        s_add_u32 s63, s63, s{sW}
        s_mul_i32 s63, s63, {su*4096}
        s_add_u32 s63, s63, {n0*4*4096}
        s_lshr_b32 s48, s{sJ}, 1
        s_mul_i32 s48, s48, {1152*4096}
        s_add_u32 s63, s63, s48
        s_and_b32 s48, s{sJ}, 1
        s_lshl_b32 s48, s48, 11
        s_add_u32 s63, s63, s48''')
        i0, i1 = OPT['suat']
        tot = 32 * su

        def cb(i):
            def f():
                for q in range(tot * (i - i0) // (i1 - i0), tot * (i + 1 - i0) // (i1 - i0)):
                    k.raw(f'    s_load_dword s13, s[20:21], s63')
                    k(f's_add_u32 s63, s63, {64 + (2048 if q % 32 == 31 else 0)}')
            return f
        return {i: cb(i) for i in range(i0, i1)}
    LHW = k.lab()
    if OPT.get('hprio'):
        k(f's_setprio {OPT["hprio"]}')
    k(f's_cmp_ge_u32 s{sW}, 2\ns_cbranch_scc1 {LHW}')
    x1f = f'buffer_load_dword v{fb+2}, v{fb+1}, {WS}, 0 offen sc1'

    def setup_g1():
        h3_idx(k, 56)
        publish(k, 2, 56, fl)
        k(f's_lshl_b32 s56, s52, 6\ns_add_u32 s56, s56, s51')
        publish(k, 3, 56, fl + 1, ncue=5, cue_add=27)
        k(f'''s_lshr_b32 s65, s{sJ}, 2
        s_lshl_b32 s65, s65, 16
        s_add_u32 s66, s65, {WS_FL2+3*0x40000}
        s_lshl_b32 s48, s62, {7+OPT['fs']}
        s_add_u32 s65, s65, s48
        s_add_u32 s65, s65, {WS_FL2+2*0x40000}
        s_add_u32 s69, s65, {64<<OPT['fs']}
        v_lshlrev_b32 v{xa+5}, {OPT['fs']}, v0
        s_mul_i32 s67, s52, {96*16}
        s_mul_i32 s48, s62, {4*9216}
        s_add_u32 s67, s67, s48
        s_add_u32 s67, s67, {WS_H2}
        v_add_u32 v{da+2}, {9216-1536}, v{la}
        v_cmp_gt_u32 vcc, 32, v0
        v_cndmask_b32 v{da+1}, v{da+2}, v{la}, vcc
        v_add_u32 v{da+3}, {2*9216}, v{la}
        v_add_u32 v{da+4}, {2*9216}, v{da+1}
        v_add_u32 v{da+5}, {2*9216}, v{da+2}
        s_mul_i32 s68, s62, 6144''')
        start_off(58, 59, 67, 63, 8 * 9216, 32)

    def setup_g2():
        for i in range(9):
            k(f'''v_add_u32 v{vr}, {64*i}, v0
            v_mul_u32_u24 v{vr+1}, 1821, v{vr}
            v_lshrrev_b32 v{vr+1}, 18, v{vr+1}
            v_mul_u32_u24 v{vr+1}, {9216-2304}, v{vr+1}
            v_lshl_add_u32 v{vr+1}, v{vr}, 4, v{vr+1}
            v_subrev_u32 v{db+i}, {1024*(i&3)}, v{vr+1}''')
        k(f'''s_mul_i32 s48, s55, 3
        s_add_u32 s49, s48, 2
        s_lshr_b32 s48, s48, 1
        s_lshr_b32 s49, s49, 1
        v_mov_b32 v{vr}, s48
        v_mov_b32 v{vr+1}, s49
        v_cmp_gt_u32 vcc, 32, v0
        v_cndmask_b32 v{vr}, v{vr+1}, v{vr}, vcc
        v_and_b32 v{vr+1}, 31, v0
        v_min_u32 v{vr+1}, 8, v{vr+1}
        v_lshl_add_u32 v{vr}, v{vr}, 6, v{vr+1}
        s_mul_i32 s48, s53, 9
        v_add_u32 v{vr}, s48, v{vr}
        v_lshlrev_b32 v{fb}, {OPT['fs']}, v{vr}''')
        k(f'''s_lshr_b32 s48, s54, 3
        s_lshl_b32 s48, s48, 2
        s_and_b32 s49, s54, 1
        s_lshl_b32 s49, s49, 1
        s_add_u32 s48, s48, s49
        s_add_u32 s48, s48, s62
        s_lshl_b32 s48, s48, 13
        s_add_u32 s48, s48, {WS_FL2 + 0x40000}
        v_lshl_add_u32 v{fb+1}, v0, 7, s48
        v_mov_b32 v{fb+2}, 0''')
        k(f'''s_lshl_b32 s48, s54, 7
        s_lshr_b32 s49, s53, 1
        s_lshl_b32 s49, s49, 4
        s_add_u32 s48, s48, s49
        s_mul_i32 s48, s48, 1152
        s_mul_i32 s49, s55, 288
        s_add_u32 s48, s48, s49
        s_and_b32 s49, s53, 1
        s_mul_i32 s49, s49, 144
        s_add_u32 s48, s48, s49
        s_add_u32 s12, s48, {WS_X1}
        s_lshl_b32 s13, s62, 6''')
        for i in range(5):
            k(f'''v_add_u32 v{vr}, s13, v0
            v_mul_u32_u24 v{vr+1}, 911, v{vr}
            v_lshrrev_b32 v{vr+1}, 13, v{vr+1}
            v_mul_u32_u24 v{vr+2}, 9, v{vr+1}
            v_sub_u32 v{vr+2}, v{vr}, v{vr+2}
            v_and_b32 v{vr}, 48, v{vr+1}
            v_add_u32 v{vr+1}, v{vr+1}, v{vr}
            v_mul_u32_u24 v{vr+1}, 1152, v{vr+1}
            v_lshl_add_u32 v{vr+1}, v{vr+2}, 4, v{vr+1}
            v_add_u32 v{xr_+i}, s12, v{vr+1}
            s_add_u32 s13, s13, 128''')
        k(f'''s_mul_i32 s48, s55, 576
        s_and_b32 s49, s53, 1
        s_mul_i32 s49, s49, 288
        s_add_u32 s48, s48, s49
        s_add_u32 s48, s48, {WS_MOD+5*2304}
        v_min_u32 v{vr}, {17*16}, v{la}
        v_add_u32 v{vr}, s48, v{vr}
        s_cmp_eq_u32 s62, 1
        s_cselect_b64 vcc, -1, 0
        v_cndmask_b32 v{xr_+4}, v{xr_+4}, v{vr}, vcc''')

    def setup_x1():
        k(f's_mul_i32 s56, s62, 288\ns_mul_i32 s57, s{sS2}, 1152\ns_add_u32 s57, s57, {WS_X1}')
        for i in range(5):
            k(f'''v_add_u32 v{t}, {64*i}, v0
            v_min_u32 v{t}, 287, v{t}
            v_add_u32 v{t}, s56, v{t}
            v_mul_u32_u24 v{t+1}, 911, v{t}
            v_lshrrev_b32 v{t+1}, 16, v{t+1}
            v_mul_u32_u24 v{t+1}, {256*1152 - 1152}, v{t+1}
            v_lshl_add_u32 v{xa+i}, v{t}, 4, v{t+1}''')
            if i in (0, 4):
                k(f'v_lshlrev_b32 v{t}, 4, v{t}\nv_add_u32 v{t+2+i//4}, {L_Z}, v{t}')
    if not OPT['lz']:
        setup_g1()
        setup_g2()
        setup_x1()
    tag(k, 'touch a1')
    tag(k, 'region a1')
    def clear_u():
        if OPT['sp2']:
            c0, n = spec_range(1)
            k(f'v_mov_b64 {P(xd)}, -1\nv_mov_b64 {P(xd+2)}, -1\ns_lshl_b32 s56, s2, 1\ns_add_u32 s56, s56, s62')

            def addr():
                k('s_mov_b32 s49, s48')
                for g in range(1, 4):
                    k(f's_cmp_ge_u32 s49, {72*n*g}\ns_cselect_b32 s50, {72*(NST2-n)}, 0\ns_add_u32 s48, s48, s50')
                k(f's_lshl_b32 s48, s48, 10\ns_add_u32 s48, s48, {WS_U + c0*73728}')
            clear_loop(k, 56, 512, 288 * n, addr, xd, la)
    if OPT['cl4'] == 0:
        clear_u()
    n7 = OPT['pf2'] + 10 * OPT['pf3']
    k(f'''s_mul_i32 s56, s62, 27
    s_add_u32 s56, s56, s{sR}
    s_add_u32 s56, s56, {n7}
    s_cmp_lt_u32 s{sR}, 27
    s_cselect_b32 s56, s56, 999
    s_barrier''')
    if OPT['pf7']:
        pf_loop(k, 1, 56, 54, n7 + 27 * OPT['pf7'], xd + 20, 40)
    if OPT['cl4'] == 1:
        clear_u()

    def clear_own_xch():
        k(f'''v_mov_b64 {P(xd)}, -1
        v_mov_b64 {P(xd+2)}, -1
        s_mul_i32 s56, s2, {XB}
        s_lshl_b32 s48, s62, 10
        s_add_u32 s56, s56, s48
        s_add_u32 s56, s56, {WS_XCH}''')
        for x in range(14):
            if x < 13:
                k(f's_add_u32 s48, s56, {2048*x}')
            else:
                k(f's_mul_i32 s48, s62, -2048\ns_add_u32 s48, s48, {2048*13}\ns_add_u32 s48, s48, s56')
            k(f'buffer_store_dwordx4 {Q(xd)}, v{la}, {WS}, s48 offen sc1')
    if OPT['xc'] == 4:
        clear_own_xch()
    if OPT['lz']:
        setup_g1()
    k('s_barrier')
    if OPT['cl4'] == 2:
        clear_u()
    if OPT['xc'] == 5:
        clear_own_xch()
    if OPT['lz']:
        setup_x1()
    if OPT['sp1'] and OPT['c3']:
        c0_, n_ = spec_range(0)
        k(f'''v_lshrrev_b32 v91, 3, v0
        v_lshlrev_b32 v91, 15, v91
        v_and_b32 v92, 7, v0
        v_lshl_add_u32 v91, v92, 4, v91
        s_lshl_b32 s48, s{sS2}, 7
        s_add_u32 s48, s48, {WS_C3}
        v_add_u32 v91, s48, v91
        s_lshr_b32 s48, s{sS2}, 3
        s_sub_u32 s48, s48, {c0_}
        s_cmp_lt_u32 s48, {n_}
        s_cselect_b32 s48, 0, 1
        s_or_b32 s48, s48, s62
        s_cmp_eq_u32 s48, 0
        s_cselect_b64 vcc, -1, 0
        v_mov_b32 v92, {OOB}
        v_cndmask_b32 v91, v92, v91, vcc
        v_mov_b32 v92, v{vTAG}
        v_mov_b32 v93, v{vTAG}
        v_mov_b32 v94, v{vTAG}
        v_mov_b32 v95, v{vTAG}''')
    k('s_barrier\ns_barrier')
    if OPT['sp1'] and OPT['c3']:
        k(f'buffer_store_dwordx4 {Q(92)}, v91, {WS}, 0 offen sc1')
    for i in range(5):
        k(f'ds_read_b128 {Q(xd+4*i)}, v{t+2+i//4} offset:{1024*(i&3)}')
    def x1_stores():
        for i in range(5):
            k(f'buffer_store_dwordx4 {Q(xd+4*i)}, v{xa+i}, {WS}, s57 offen sc1')

    def p3_publish():
        if not OPT['xdef']:
            bar(k, 0)
            do_publish(k, fl)
            return
        bar(k, lg=0)
        k(f'buffer_store_dword v{vTAG}, v{fl}, {WS}, 0 offen sc1')
        nx = len(reg_stages(0)) - 6
        if OPT['lz']:
            setup_g2()
        if OPT['xdef'] == 2:
            k.wait(0)
        if nx:
            k('s_barrier')
        x1_stores()
        if nx:
            k('s_barrier')
        k.wait(0)
        k(f'buffer_store_dwordx4 {Q(xd+20)}, v{xf_}, {WS}, 0 offen sc1')
    if not OPT['xdef']:
        x1_stores()
    else:
        k(f'''s_lshl_b32 s48, s62, 8
        s_add_u32 s48, s48, s{sS2}
        s_lshl_b32 s48, s48, 7
        s_add_u32 s48, s48, {WS_FL2 + 0x40000}
        v_add_u32 v{xf_}, s48, v{la}
        v_cmp_gt_u32 vcc, 8, v0
        v_mov_b32 v{t}, {OOB}
        v_cndmask_b32 v{xf_}, v{t}, v{xf_}, vcc''')
        k.wait(0)
        for i in range(4):
            k(f'v_mov_b32 v{xd+20+i}, v{vTAG}')
    LN, LJ = k.lab(), k.lab()
    k(f's_cmp_ge_u32 s{sR}, 27\ns_cbranch_scc1 {LN}')
    st0 = (list(k.vm), list(k.lg))
    if OPT['rf']:
        k('s_barrier')

    def act_text(g, n, i, so):
        if g == 0:
            pre = f's_add_u32 m0, s68, {L_ACT + (n % 5)*12288 + 1024*i}\n' if i % 3 == 0 else ''
            return pre + f'buffer_load_dwordx4 v{la if i==0 else da+i}, {WS}, s{so} offen offset:{1024*(i%3)} {OPT["fa1"].replace("_", " ")} lds'
        pre = f's_add_u32 m0, s57, {L_ACT2 + (n % NSA2)*AST2 + 1024*i}\n' if i % 4 == 0 else ''
        return pre + f'buffer_load_dwordx4 v{db+i}, {WS}, s{so} offen offset:{1024*(i&3)} {OPT["fa2"].replace("_", " ")} lds'

    def verifier(g, n):
        def f():
            ni, stg = ((6, 12288), (9, AST2))[g]
            L, E = k.lab(), k.lab()
            k.label(L)
            for i in range(ni):
                k(f'ds_read_b32 v{vr+i}, v{vr+9} offset:{n*stg + 1024*i}' if n < 4 or g == 0 else f'ds_read_b32 v{vr+i}, v90 offset:{(n-4)*stg + 1024*i}')
            for i in range(1, ni, 2):
                k(f'v_max3_u32 v{vr}, v{vr}, v{vr+i}, v{vr+min(i+1, ni-1)}')
            k(f'v_cmp_eq_u32 vcc, -1, v{vr}\ns_cbranch_vccz {E}')
            k(f's_sub_u32 s{sBUD}, s{sBUD}, 1\ns_cbranch_scc1 {E}')
            cnt, vm = k.stats['vmem'], k.vm
            k('s_mov_b32 s14, m0')
            if OPT['sl3']:
                k(f's_sleep {OPT["sl3"]}')
            k(woff(n, 8 * 9216, (32, NST2)[g], 58, False, 15))
            for i in range(ni):
                k(act_text(g, n, i, 15))
            k('s_mov_b32 m0, s14')
            k.wait(0)
            k(f's_branch {L}')
            k.stats['vmem'], k.vm = cnt, vm
            k.label(E)
            k(f's_max_i32 s{sBUD}, s{sBUD}, 0')
        return f

    def late_check(loads, regs, mk):
        seq = []

        def issue():
            for l in loads:
                k(l)
            seq.append(k.stats['vmem'])

        def check():
            k.wait(k.stats['vmem'] - seq[0])
            L = k.lab()
            check_tags(k, regs)()
            k(f's_cbranch_vccz {L}')
            cnt, vm = k.stats['vmem'], k.vm
            poll(k, loads, check_tags(k, regs), masked=True)
            k.stats['vmem'], k.vm = cnt, vm
            k.label(L)
            mark(k, mk)
        return issue, check
    h3l = [f'buffer_load_dword v{t}, v{xa+5}, {WS}, s65 offen sc1', f'buffer_load_dword v{t+1}, v{xa+5}, {WS}, s69 offen sc1']
    items = []
    for n in range(32):
        for i in range(6):
            post = '\n' + woff(n + 1, 8 * 9216, 32, 58) if i == 5 and n < 31 else ''
            items.append((n, max(n - 5 + 2, OPT['sp1']) if n >= 5 else -9, act_text(0, n, i, 50) + post))
    st = Stream(items)

    def stag_setup(n0, g, per, i0, span, gap, lim=288, upw=0):
        if not per:
            return {}
        assert n0 >= 0 and per <= 4
        mask, nf = leaders(g)
        w2_lane(k, pv, 35)
        k(f'''s_mov_b32 s49, s35
        s_mul_i32 s48, s62, {1 if OPT['jit'] else nf}
        s_add_u32 s49, s49, s48
        s_bfm_b32 s48, s{sR}, 0
        s_and_b32 s48, s48, {mask}
        s_bcnt1_i32_b32 s48, s48
        s_sub_u32 s12, s{sR}, s48''')
        bs = OPT[('bs1', 'bs2')[g]] or OPT['jit'] or 2
        wg = OPT[('wg1', 'wg2')[g]]
        for x in range(per):
            if OPT['jit']:
                x0 = x - x % bs
                if upw == 3 and per == 2 and bs == 2:
                    k(f's_mul_i32 s35, s12, 3\ns_add_u32 s35, s35, {n0 + 2*x}')
                    if x == 1:
                        k('s_sub_u32 s35, s35, s62')
                        k('s_sub_u32 s35, s35, s62')
                else:
                    k(f's_mul_i32 s35, s12, {2*min(bs, per-x0)}\ns_add_u32 s35, s35, {n0 + 2*x0*nf + 2*(x-x0)}')
            else:
                k(f's_add_u32 s35, s12, {n0 + 2*x*nf}')
            k(f'''s_add_u32 s35, s35, s49
            s_min_u32 s35, s35, {lim-1}
            s_lshl_b32 s{8+x}, s35, 14''')
        k(f'''s_mul_i32 s35, s12, {span*256//nf}
        s_lshr_b32 s35, s35, 8
        s_add_u32 s35, s35, {i0}
        s_mul_i32 s48, s62, {wg}
        s_add_u32 s35, s35, s48
        s_mov_b32 s48, {mask}
        s_bitcmp1_b32 s48, s{sR}
        s_cselect_b32 s35, 999, s35''')

        def hook(i):
            def f():
                for x0 in range(0, per, bs):
                    q = i - gap * (x0 // bs)
                    if i0 <= q < i0 + span + wg:
                        L = k.lab()
                        k(f's_cmp_lg_u32 s35, {q}\ns_cbranch_scc1 {L}')
                        for x in range(x0, min(x0 + bs, per)):
                            if upw == 3 and x == 1:
                                k(f's_cmp_lg_u32 s62, 0\ns_cbranch_scc1 {L}')
                            k.raw(f'    buffer_load_dword v{pv+1}, v{pv}, s[44:47], s{8+x} offen' + (' nt' if OPT['pfnt'] & (4 << g) else ''))
                        k.label(L)
            return f
        return {i: hook(i) for i in range(i0, i0 + span + wg + gap * ((per - 1) // bs))}
    n8 = pf_split()[1]
    hooks = stag_setup(pf_split()[0], 0, OPT['pf4'], *OPT['pf4at'], lim=n8, upw=pf_split()[2])
    k(woff(0, 8 * 9216, 32, 58))
    verify, pre = {}, {}
    if OPT['sp1']:
        k(f's_add_u32 s48, s68, {L_ACT}\nv_add_u32 v{vr+9}, s48, v{la}')
        bar(k, lg=0)
        k(f'buffer_store_dword v{vTAG}, v{fl}, {WS}, 0 offen sc1')
        if OPT['lz']:
            setup_g2()
        if len(reg_stages(0)) > 6:
            k('s_barrier\ns_barrier')
        if OPT['spw']:
            k.wait(0)
        if OPT['c3']:
            c0_, n_ = spec_range(0)
            k(f'''v_min_u32 v91, {8*n_-1}, v0
            v_lshlrev_b32 v91, 7, v91
            s_lshl_b32 s48, s{sJ}, 15
            s_add_u32 s48, s48, {WS_C3 + c0_*8*128}
            v_add_u32 v91, s48, v91''')
            poll(k, [f'buffer_load_dword v92, v91, {WS}, 0 offen sc1'], check_tags(k, [92]), masked=True, sleep=OPT['c3s'])
        mark(k, 6)
        verify = {n: verifier(0, n) for n in range(5)}
        pre[OPT['sp1'] - 1], pre[OPT['sp1']] = late_check(h3l, [t, t + 1], 7)
        pre[5] = x1_stores
        pre[10] = lambda: k(f'buffer_store_dwordx4 {Q(xd+20)}, v{xf_}, {WS}, 0 offen sc1')
    else:
        p3_publish()
        mark(k, 6)
        poll(k, h3l, check_tags(k, [t, t + 1]), masked=True, alt=([65, 69], 16384, OPT['na']))
        mark(k, 7)
    st.more(6 * OPT['a1pre'])
    if OPT['xdef']:
        assert 28 not in hooks
        hooks[28] = lambda: k(x1f)
    if OPT['su']:
        assert not OPT['sp1']
        pre = scalar_pf()
    st.run(32, lambda i: 6 * (i + 4), hooks=hooks, verify=verify, pre=pre)
    if OPT['su']:
        k.raw('    s_waitcnt lgkmcnt(0)')
    k(f's_branch {LJ}')
    k.label(LN)
    k.fresh()
    if OPT['xdef']:
        k.wait(lg=0)
        x1_stores()
        bar(k, 0)
        k(f'buffer_store_dword v{vTAG}, v{fl}, {WS}, 0 offen sc1')
        k(f'buffer_store_dwordx4 {Q(xd+20)}, v{xf_}, {WS}, 0 offen sc1')
        if OPT['lz']:
            setup_g2()
        k.wait(0)
    else:
        p3_publish()
    poll(k, [f'buffer_load_dword v{t}, v{xa+5}, {WS}, s65 offen sc1', f'buffer_load_dword v{t+1}, v{xa+5}, {WS}, s69 offen sc1'],
         check_tags(k, [t, t + 1]), masked=True, alt=([65, 69], 16384, OPT['na']))
    k.label(LJ)
    k.fresh()
    t = xd
    k(f'''s_mul_i32 s67, s55, {144*16}
    s_mul_i32 s48, s53, {NST2*8*9216}
    s_add_u32 s67, s67, s48
    s_mul_i32 s48, s62, {4*9216}
    s_add_u32 s67, s67, s48
    s_add_u32 s67, s67, {WS_U}
    s_mul_i32 s57, s62, 9216
    s_add_u32 s48, s57, {L_ACT2}
    v_add_u32 v{vr+9}, s48, v{la}
    v_add_u32 v90, {4*AST2}, v{vr+9}''')
    start_off(58, 59, 67, 64, 8 * 9216, NST2)
    k.wait(0)
    if OPT['xdef']:
        L1 = k.lab()
        check_tags(k, [fb + 2])()
        k(f's_cbranch_vccz {L1}')
        poll(k, [x1f], check_tags(k, [fb + 2]), masked=True)
        k.label(L1)
    hooks = stag_setup(n8, 1, OPT['pf8'], *OPT['pf8at'], upw=pf_split()[3])
    k('s_barrier')
    tag(k, 'touch a2')
    tag(k, 'region a2')
    LN, LJ = k.lab(), k.lab()
    k('s_barrier\n' * (2 + bool(OPT['rf2'])))
    k(f's_cmp_ge_u32 s{sR}, 27\ns_cbranch_scc1 {LN}')
    k(f'buffer_store_dword v{vTAG}, v{fl+1}, {WS}, 0 offen sc1')
    if not OPT['sp2'] or OPT['spw']:
        k.wait(0)
    k(f's_branch {LJ}')
    k.label(LN)
    wait_cue(k, 3, t)
    k.label(LJ)
    k(woff(0, 8 * 9216, NST2, 58))
    mark(k, 8)
    h4l = [f'buffer_load_dword v{t}, v{fb}, {WS}, s66 offen sc1']
    verify, prh = {}, {}
    if OPT['sp2']:
        verify = {n: verifier(1, n) for n in range(OPT['nsp'])}
        prh[OPT['sp2'] - 1], prh[OPT['sp2']] = late_check(h4l, [t], 9)
    else:
        poll(k, h4l, check_tags(k, [t]), masked=True, alt=([66], 16384, OPT['na']))
        mark(k, 9)
    items = []
    for n in range(NST2):
        for i in range(9):
            post = '\n' + woff(n + 1, 8 * 9216, NST2, 58) if i == 8 and n < NST2 - 1 else ''
            items.append((n, max(n - NSA2 + 2, OPT['sp2']) if n >= OPT['nsp'] else -9, act_text(1, n, i, 50) + post))
    ring2 = [n for n in range(NST2) if n not in reg_stages(1)]
    xfree = max(n for m, n in enumerate(ring2) if m % NSW2 == L_X1 // 16384) + 1
    for i in range(5):
        pre = f's_lshl_b32 s48, s62, 10\ns_add_u32 m0, s48, {L_X1 + 2048*i}\n' if i < 4 else \
              f's_mul_i32 s48, s62, {L_GB - L_X1 - 8192}\ns_add_u32 m0, s48, {L_X1 + 8192}\n'
        items.append((NST2, max(xfree, NST2 - NSA2 + 1), pre + f'buffer_load_dwordx4 v{xr_+i}, {WS}, 0 offen sc1 lds'))
    st = Stream(items)
    st.more(9 * OPT['a2pre'])
    assert OPT['nsp'] <= NSA2
    st.run(NST2 + 1, lambda i: OPT['a2la'] + 9 * (i + 1), last_bar=False, hooks=hooks, verify=verify, pre=prh)
    LT = k.lab()
    k(f's_branch {LT if OPT["hx"] else "L_end"}')
    tag(k, 'region -')
    k.label(LHW)
    k.fresh()

    def witems(g, stages, slot0=0, NSW=NSW):
        NST, sd, mul, regs, lo = ((32, 40, 8 * 9216, da, 60), (NST2, 44, 64 * 4096, db, 58))[g]
        items = []
        for m, n in enumerate(stages):
            for i in range(8):
                pre = woff(n, mul, NST, lo) if i == 0 else ''
                rot = OPT['rotw'] & (1 << g)
                if rot:
                    pre += f's_add_u32 m0, s{16+8*g+i}, {((m + slot0) % NSW)*16384}\n'
                else:
                    pre += f's_add_u32 m0, s68, {((m + slot0) % NSW)*16384 + 1024*i}\n' if i % 4 == 0 else ''
                items.append((n, stages[m - NSW] + 1 if m >= NSW else -9,
                              pre + f'buffer_load_dwordx4 v{regs+i}, s[{sd}:{sd+3}], s50 offen offset:{0 if rot else 1024*(i&3)} {OPT["fw2" if g else "fw1"].replace("_", " ")} lds'))
        return items

    def split(g):
        rs = reg_stages(g)
        return rs, [n for n in range((32, NST2)[g]) if n not in rs]
    w_addr(1, db, 58)
    rs2, ds2 = split(1)
    f1 = [it[2] for it in witems(1, rs2, 2)]
    LN, LJ = k.lab(), k.lab()
    k(f's_cmp_ge_u32 s{sR}, 27\ns_cbranch_scc1 {LN}')
    w_addr(0, da, 60)
    tag(k, 'touch w1')
    tag(k, 'region w1')
    rs, ds = split(0)
    nx = len(rs) - 6
    items = witems(0, ds, nx)
    n1 = len(items)
    assert (len(ds) + nx) % NSW == 2
    ne = OPT['ne']
    for x in range(ne):
        items += [(99, ds[len(ds) - NSW + x] + 1, it) for it in f1[8 * x:8 * x + 8]]
    st = Stream(items)
    s1 = Stream(witems(0, rs[:6]))
    for n in OPT['pw1']:
        s1.more(n)
        k('s_barrier')
    s1.more(999)
    k('s_barrier')
    bar(k, 0)
    if OPT['rf']:
        k('s_barrier')
        st.more(OPT['rf'])
    k('s_barrier')
    if nx:
        assert not OPT['rf']
        Stream(witems(0, rs[6:])).more(99)
        st.more(OPT['pa'])
        bar(k, st.n)
        st.more(4)
        k('s_barrier')
    def pf_early():
        n0 = 288 - 64 * OPT['pf8'] - 54 * OPT['pf4'] - 54 * OPT['pfa'] + OPT['n4x']
        w2_lane(k, xa, 14)
        k(f's_lshl_b32 s14, s{sR}, 1\ns_add_u32 s14, s14, s62\ns_mul_i32 s14, s14, {OPT["pfa"]}\ns_add_u32 s14, s14, {n0}')
        for x in range(OPT['pfa']):
            k(f's_add_u32 s48, s14, {x}\ns_lshl_b32 s48, s48, 14')
            k(f'buffer_load_dword v{xa+2+x}, v{xa}, s[44:47], s48 offen')
    if OPT['pfa'] and OPT['pfap'] == 0:
        pf_early()
    st.issue(OPT['f21'], -1)
    if OPT['pfa'] and OPT['pfap'] == 1:
        pf_early()
    q1 = spread(st.n, n1, 0 if st.n < 48 else 1, ds[-1] - OPT['wla'])
    if OPT['asap']:
        n00 = st.n
        q1 = lambda i: min(n1, n00 + int(OPT['asap'] * (i + 1) / 10))
    st.run(32, lambda i: q1(i) + ([0] * 32 + OPT['neq'])[-32 + i], mk=6, pre=scalar_pf())
    if OPT['su']:
        k.raw('    s_waitcnt lgkmcnt(0)')
    assert st.n == len(items)
    k('s_barrier')
    k(f's_branch {LJ}')
    k.label(LN)
    k.fresh()
    k(f's_sub_u32 s56, s{sR}, 27\ns_lshl_b32 s56, s56, 1\ns_add_u32 s56, s56, s62\ns_add_u32 s56, s56, {OPT["pf2"]}')
    k('s_barrier')
    pf_loop(k, 1, 56, 10, OPT['pf2'] + 10 * OPT['pf3'], xa, 40)
    k('s_barrier\n' * 5)
    for it in f1[:8 * ne]:
        k(it)
    k.label(LJ)
    k.fresh()
    st = Stream(witems(1, ds2, 0, NSW2))
    for it in f1[8 * ne:]:
        k(it)
    tag(k, 'touch w2')
    tag(k, 'region w2')
    bar(k, 0)
    if OPT['rf2']:
        k('s_barrier')
        st.more(OPT['rf2'])
    k('s_barrier')
    st.issue(OPT['f22'], -1)
    wpre, wver = {}, {}
    if OPT['xc'] in (0, 3):
        on, tg, vrd, vpr, vds = 100, 104, 108, 109, 110
        k(f'''v_mov_b64 {P(on)}, -1
        v_mov_b64 {P(on+2)}, -1
        v_mov_b32 v{tg}, v{vTAG}
        v_mov_b32 v{tg+1}, v{vTAG}
        v_mov_b32 v{tg+2}, v{vTAG}
        v_mov_b32 v{tg+3}, v{vTAG}
        v_lshlrev_b32 v{vds}, 4, v0
        s_lshl_b32 s48, s2, 7
        s_add_u32 s48, s48, {WS_XRDY}
        v_add_u32 v{vrd}, s48, v{vds}
        s_cmp_eq_u32 s62, 0
        s_cselect_b32 s48, 8, 0
        v_cmp_gt_u32 vcc, s48, v0
        v_mov_b32 v{vpr}, {OOB}
        v_cndmask_b32 v{vrd}, v{vpr}, v{vrd}, vcc
        v_min_u32 v{vpr}, 2, v0
        v_add_u32 v{vpr}, 1, v{vpr}
        v_lshlrev_b32 v{vpr}, 1, v{vpr}
        v_xor_b32 v{vpr}, s2, v{vpr}
        v_lshlrev_b32 v{vpr}, 7, v{vpr}
        v_add_u32 v{vpr}, {WS_XRDY}, v{vpr}
        v_lshlrev_b32 v{tg+4+3}, 4, v0
        s_mul_i32 s56, s2, {XB}
        s_lshl_b32 s48, s62, 10
        s_add_u32 s56, s56, s48
        s_add_u32 s56, s56, {WS_XCH}''')
        c0, cn = OPT['xclr']
        cseq = []

        def clr(i):
            def f():
                for x in range((i - c0) * 14 // cn, (i - c0 + 1) * 14 // cn):
                    if x < 13:
                        k(f's_add_u32 s57, s56, {2048*x}')
                    else:
                        k(f's_mul_i32 s57, s62, -2048\ns_add_u32 s57, s57, {2048*13}\ns_add_u32 s57, s57, s56')
                    k(f'buffer_store_dwordx4 {Q(on)}, v{tg+7}, {WS}, s57 offen sc1')
                cseq[:] = [k.stats['vmem']]
            return f
        for i in range(c0, c0 + cn):
            if OPT['xc'] == 0:
                wpre[i] = clr(i)
        r0, r1 = OPT['xrdy']
        assert r0 > c0 + cn - 1 and r1 > r0 and r1 < NST2
        if OPT['xc'] == 0:
            wver[r0] = lambda: k.wait(k.stats['vmem'] - cseq[0])
        wpre[r0] = lambda: k(f'buffer_store_dwordx4 {Q(tg)}, v{vrd}, {WS}, 0 offen sc1')
        assert r1 - OPT['xlead'] > r0
        wpre[r1 - OPT['xlead']], chk = late_check([f'buffer_load_dword v{vds}, v{vpr}, {WS}, 0 offen sc1'], [vds], 12)
        wver[r1] = chk
    q2 = spread(st.n, len(st.items), 0 if st.n < 8 * NSW2 else 1, ds2[-1] - OPT['wla2'])
    if OPT['wlead']:
        qs, cur = [], st.n
        for i in range(NST2):
            cur = max(cur, min(8 * sum(n <= i + OPT['wlead'] for n in ds2), cur + OPT['wmax']))
            qs.append(cur)
        q2 = lambda i: qs[i]
    st.run(NST2, q2, mk=8, verify=wver, pre=wpre)
    if not OPT['hx']:
        return
    k('s_barrier')
    k.label(LT)
    k.fresh()
    ha, hr = 100, 104
    k(f'''v_lshlrev_b32 v{ha}, 4, v0
    v_lshlrev_b32 v{ha+1}, 2, v0
    s_mul_i32 s48, s{sW}, {XW}
    s_mul_i32 s60, s2, {XB}
    s_add_u32 s60, s60, s48
    s_add_u32 s60, s60, {WS_XCH + XM}
    s_add_u32 s61, s60, {XM}
    s_mul_i32 s63, s{sW}, {2*XW}
    s_add_u32 s63, s63, {L_S}
    v_add_u32 v{ha+2}, s63, v{ha}
    v_add_u32 v{ha+3}, s63, v{ha+1}''')
    xmark(k, 'x', 1)
    if OPT['hsl']:
        k(f's_sleep {OPT["hsl"]}')
    if OPT['xcue']:
        k(f'''s_lshl_b32 s48, s{sW}, 7
        s_mul_i32 s62, s2, 1536
        s_add_u32 s62, s62, s48
        s_add_u32 s62, s62, {WS_XCUE + 512}
        v_and_b32 v{hr+8}, 1, v0
        v_lshlrev_b32 v{hr+8}, 9, v{hr+8}''')
        poll(k, [f'buffer_load_dword v{hr+9}, v{hr+8}, {WS}, s62 offen sc1'], check_tags(k, [hr + 9]), sleep=OPT['xsl'])
        xmark(k, 'x', 2)
    if OPT['tfirst']:
        poll(k, [f'buffer_load_dword v{hr+8+x}, v{ha+1}, {WS}, s{60+x} offen offset:2048 sc1' for x in (1, 0)],
             check_sent(k, [hr + 8, hr + 9, hr + 9], hr + 6), sleep=OPT['tsl'])
        xmark(k, 'x', 2)
    loads = []
    for x in (1, 0):
        loads.append(f's_add_u32 m0, s63, {XW*x}\n' + f'buffer_load_dwordx4 v{ha}, {WS}, s{60+x} offen sc1 lds')
        loads.append(f'buffer_load_dwordx4 v{ha}, {WS}, s{60+x} offen offset:1024 sc1 lds')
        loads.append(f'buffer_load_dword v{ha+1}, {WS}, s{60+x} offen offset:2048 sc1 lds')

    def hchk():
        for x in range(2):
            k(f'ds_read_b32 v{hr+3*x}, v{ha+2} offset:{XW*x}\nds_read_b32 v{hr+3*x+1}, v{ha+2} offset:{XW*x+1024}\nds_read_b32 v{hr+3*x+2}, v{ha+3} offset:{XW*x+2048}')
        check_sent(k, [hr + i for i in range(6)], hr + 6)()
    poll(k, loads, hchk, sleep=OPT['hsl2'])
    xmark(k, 'x', 3)
    k('s_barrier')


def build():
    geometry()
    k = K('m')
    k(f's_cmp_ge_u32 s2, 256\ns_cbranch_scc1 L_exit')
    if OPT['stamp']:
        k('s_memrealtime s[70:71]')
        for i in range(72, 96):
            k(f's_mov_b32 s{i}, 0')
    k(f'''s_load_dwordx16 s[8:23], s[0:1], 0
    s_load_dwordx8 s[24:31], s[0:1], 64
    s_load_dwordx2 s[32:33], s[0:1], 96''')
    if OPT['codepf']:
        k(f'''v_readfirstlane_b32 s4, v0
        s_lshr_b32 s5, s2, 3
        s_lshr_b32 s4, s4, 6
        s_cmp_lg_u32 s4, s5
        s_cbranch_scc1 L_nopf
        s_getpc_b64 s[52:53]
        L_pc:
        s_sub_u32 s52, s52, L_pc-{NAME}_kernel
        s_subb_u32 s53, s53, 0
        s_mov_b32 s54, L_code_end-{NAME}_kernel
        s_mov_b32 s55, 0x20000
        v_lshlrev_b32 v1, 7, v0''')
        k.raw('    buffer_load_dword v255, v1, s[52:55], 0 offen')
        k('v_add_u32 v1, 65536, v1')
        k.raw('    buffer_load_dword v255, v1, s[52:55], 0 offen')
        k.maxreg['v'] = 255
        k.label('L_nopf')
    k(f'''v_lshrrev_b32 v1, 6, v0
    v_and_b32 v0, 63, v0
    v_readfirstlane_b32 s{sWAVE}, v1
    v_and_b32 v1, 15, v0
    v_lshrrev_b32 v2, 4, v0
    s_and_b32 s{sJ}, s2, 7
    s_lshr_b32 s{sR}, s2, 3
    s_lshl_b32 s{sS2}, s{sJ}, 5
    s_add_u32 s{sS2}, s{sS2}, s{sR}
    s_mov_b32 s{sBUD}, 100000
    s_and_b32 s{sW}, s{sWAVE}, 3''')
    k(f's_cmp_ge_u32 s{sWAVE}, 4')
    k('s_cbranch_scc0 L_C' if OPT['ufirst'] else 's_cbranch_scc1 L_H')
    n0 = len(k.out)
    k.label('L_C')
    gen_C(k)
    tag(k, 'region -')
    n1 = len(k.out)
    k.label('L_H')
    k.fresh()
    gen_H(k)
    n2 = k.out.index('; @cut')
    if OPT['ufirst']:
        k.out = k.out[:n0] + k.out[n1:n2] + k.out[n0:n1] + k.out[n2 + 1:]
    else:
        del k.out[n2]
    k.label('L_end')
    if OPT['stamp']:
        k.fresh()
        k('s_memrealtime s[94:95]')
        k.wait(0, 0)
        k('s_memrealtime s[96:97]')
        k(f's_add_u32 s40, s{pWS}, {64*MB}\ns_addc_u32 s41, s{pWS+1}, 0\ns_mov_b32 s42, {1*MB}\ns_mov_b32 s43, 0x20000')
        k(f's_lshl_b32 s48, s2, 3\ns_add_u32 s48, s48, s{sWAVE}\ns_lshl_b32 s48, s48, 6\nv_mov_b32 v3, 0')
        for i in range(14):
            k(f'v_mov_b32 v{4+i}, s{70+2*i}')
        k(f'v_mov_b32 v18, s{sBUD}\ns_getreg_b32 s49, hwreg(HW_REG_XCC_ID)\ns_getreg_b32 s50, hwreg(HW_REG_HW_ID)\ns_and_b32 s49, s49, 15\ns_lshl_b32 s50, s50, 4\ns_or_b32 s49, s49, s50\nv_mov_b32 v19, s49')
        for i in range(4):
            k(f'buffer_store_dwordx4 {Q(4+4*i)}, v3, s[40:43], s48 offen offset:{16*i}')
        if OPT.get('trace'):
            k(f's_lshl_b32 s48, s48, 3\ns_add_u32 s48, s48, {MB//2}\ns_mov_b32 s42, {2*MB}\nv_lshlrev_b32 v3, 2, v0')
            k('buffer_store_dword v200, v3, s[40:43], s48 offen\nbuffer_store_dword v201, v3, s[40:43], s48 offen offset:256')
    k.label('L_exit')
    k('s_endpgm')
    k.label('L_code_end')
    if OPT['touch']:
        k.out, ch = page_touch([f'{NAME}_kernel:'] + k.out)
        k.out = k.out[1:]
        print(ch, file=sys.stderr)
    ref = open(f'/code/{NAME}.s.ref').read().split('\n')
    hdr = [l for l in ref if l.startswith(';') and '@launch' not in l]
    out = '\n'.join(hdr) + '\n'
    if OPT.get('aslist'):
        out += f'; @launch kernel={NAME}_kernel grid=(256,1,1) block=(512,1,1) lds=163840\n'
    else:
        out += '; @launch grid=(256,1,1) block=(512,1,1) lds=163840\n'
    out += '.amdgcn_target "amdgcn-amd-amdhsa--gfx950"\n.text\n'
    out += f'.globl {NAME}_kernel\n.p2align 8\n.type {NAME}_kernel,@function\n{NAME}_kernel:\n' + k.text()
    out += '.section .rodata,"a"\n' + descriptor(NAME + '_kernel', k.maxreg['v'] + 1, 0, k.maxreg['s'] + 1)
    print('vgpr', k.maxreg['v'] + 1, 'sgpr', k.maxreg['s'] + 1, k.stats, file=sys.stderr)
    return out


if __name__ == '__main__':
    path = f'/code/{NAME}.s'
    for a in sys.argv[1:]:
        if '=' in a:
            n, v = a.split('=')
            OPT[n] = int(v) if v.lstrip('-').isdigit() else ([int(x) for x in v.split(',')] if ',' in v else v)
        else:
            path = a
    if OPT.get('wsh'):
        WS_H2 += OPT['wsh'] * MB
        WS_U += OPT['wsh'] * MB
        WS_SIZE = 64 * MB
    open(path, 'w').write(build())
```

```python
import struct, sys
from asm import *

NAME = 'adaLN_cond__spectral_gfnet__mixer_token_mlp__prompt'
S, D, F = 2048, 576, 4608
MB = 1 << 20
WS_MOD, WS_EPOCH, WS_MODG, WS_MODB, WS_FLAG, WS_CUE = 0, 0x8000, 0xE80000, 0x30000, 0x40000, 0x80000
WS_WP, WS_T1, WS_T2, WS_X1, WS_H2, WS_U, WS_XCH = 1 * MB, 4 * MB, 8 * MB, 12 * MB, 16 * MB, 20 * MB, 26 * MB
WS_SIZE = 48 * MB
WS_XCUE = 36 * MB
WS_C3 = 38 * MB
WS_XRDY = 37 * MB
XW, XM, XB = 2304, 9216, 27648
WS_FL2 = 15 * MB
OOB = 0x7ff00000
MF = 'v_mfma_f32_16x16x32_bf16'
sW, sJ, sR, sS2, sBUD = 3, 4, 5, 6, 7
pX, pWR, pWI, pW1, pB1, pW2, pB2, pC, pWM, pOUT, pWS = 8, 10, 12, 16, 18, 20, 22, 24, 26, 28, 32
sWAVE = 34
WS = 's[36:39]'
vTAG = 3
L_SLAB, L_WST, L_MG, L_TR, L_SILU = 0, 36864, 61440, 77824, 90112
L_X = 100352
L_ST = L_X + 9472
L_M = L_ST + 128
L_E = L_M + 16384
L_MI = 147456
L_ACT = 98304
L_Z, L_MOD, L_Y, L_H = 98304, 108544, 116736, 135808
XROW, YROW = 1184, 2320
AST2, NST2 = 18432, 18
L_ACT2, NSA2, NSW2 = 90112, 4, 5
L_X1, L_GB, L_S = 2 * 16384, 81920, 3 * 16384
NSW = 6
OPT = dict(yw=0, ebl=4, c3=1, c3s=1, u4=0, u8=3, su=0, suat=[0, 30], rotw=0, pfw1=999, bs1=0, bs2=0, wg1=0, wg2=0, tfirst=0, tsl=2, pfa=0, pfap=0, pfnt=0, wo=0, nsp=4, n4x=0, wlead=0, wmax=6, nsa2=4, xc=0, xlead=2, xclr=[2, 8], xrdy=[12, 17], pf9=0, rot1=0, xcue=0, xsl=2, wx=0, hx=1, hsl=0, hsl2=1, stamp=0, codepf=1, poll_sleep=1, outflag='sc1', xst=4, xst2=0, a1pre=2, a2pre=3,
           asap=0, jit=2, xk=0, pfm=0, lz=1, ec2=0, single=0, pa=12, lead=0, fa1='sc1', fa2='sc1', fw1='', fw2='', a0=0, twi=0, ufirst=1, defer=4, wla2=2, sp1=0, sp2=2, spw=0, sl3=2, cl3=0, cl4=1, xo=26, touch=1, mw=1, wla=3, rs1=[6, 9, 12, 15, 18, 21, 24, 27], rs2=[4, 6, 8, 10, 11, 12], rf=0, f21=48, f22=32, pw1=[16, 16],
           pf1=0, pf2=96, pf3=2, pf4=2, pf4at=[0, 14, 0], pf8=2, pf8at=[0, 8, 0], a2la=27, pf5=288, pf6=0, pf7=0, x1=0, cue_at=2, wat=2, prew=1, m1early=2, tlb=0, dly=0, hp=1, up=2, f64=1, mb=2, fs=4, mask=1, warm=1, c2=1, wfl=1, wearly=1, pfd=0, xdef=2, rf2=8, ne=4, neq=[10, 22, 32], xm=7, nl=10, tw1=1, tw3=1, sl2=1, na=1, nm=1)


def pf_split():
    u4, u8 = OPT['u4'] or 2 * OPT['pf4'], OPT['u8'] or 2 * OPT['pf8']
    n8 = 288 - 32 * u8
    return n8 - 27 * u4 + OPT['n4x'], n8, u4, u8


def geometry():
    global L_ACT2, NSA2, NSW2, L_X1, L_GB, L_S
    if OPT['nsa2'] == 5:
        L_ACT2, NSA2, NSW2 = 65536, 5, 4
        L_X1, L_S, L_GB = 0, 16384, 65536 + 5 * AST2


def quads(rg, rs, D):
    D0 = 2 * (NST2 - D)
    early = [rg[i] + 4 * j for i, n in enumerate(rs) if n < NST2 - D for j in range(4)]
    late = [rg[i] + 8 * st + 4 for i, n in enumerate(rs) if n >= NST2 - D for st in range(2)]
    steps = [q for q in range(D0, 2 * NST2) if q >> 1 not in rs]
    park = dict(zip(steps, early))
    assert all(n < NST2 - D - 1 for i, n in enumerate(rs) if rg[i] <= max(park.values()) and n < NST2 - D)
    return park, early[len(steps):] + late


def f32(x):
    return '0x%08x' % struct.unpack('<I', struct.pack('<f', x))[0]


def P(r):
    return f'v[{r}:{r+1}]'


def Q(r):
    return f'v[{r}:{r+3}]'


def srd(k, dst, ptr, size):
    k(f's_mov_b32 s{dst}, s{ptr}\ns_mov_b32 s{dst+1}, s{ptr+1}\ns_mov_b32 s{dst+2}, {size}\ns_mov_b32 s{dst+3}, 0x20000')


def mark(k, i):
    if OPT['stamp']:
        k.raw(f'    s_memrealtime s[{70+2*i}:{71+2*i}]')


def tag(k, what):
    if OPT['touch']:
        k.raw('    ; @' + what)


def xmark(k, grp, i):
    if OPT.get('mk') == grp:
        mark(k, i)
    if OPT.get('mk') == grp + 'c':
        k.raw(f'    s_memtime s[{70+2*i}:{71+2*i}]')


def bar(k, vm=None, lg=None):
    if vm is not None or lg is not None:
        k.wait(vm, lg)
    k('s_barrier')


def cs_pair(k, ang, tc, ts, dsts):
    k(f'v_cos_f32 v{tc}, v{ang}\nv_sin_f32 v{ts}, v{ang}')
    m = {'c': f'v{tc}', 's': f'v{ts}', '-c': f'-v{tc}', '-s': f'-v{ts}'}
    for d, lo, hi in dsts:
        k(f'v_cvt_pk_bf16_f32 v{d}, {m[lo]}, {m[hi]}')


def dft_frag(k, base, step, re, im, tmp, inverse):
    for j in range(4):
        a, tc, ts = tmp + 3 * (j & 1), tmp + 3 * (j & 1) + 1, tmp + 3 * (j & 1) + 2
        if j == 0:
            a = base
        elif j == 3:
            k(f'v_add_f32 v{a}, v{tmp}, v{step}')
        else:
            k(f'v_fma_f32 v{a}, v{step}, {float(j)}, v{base}')
        if inverse:
            cs_pair(k, a, tc, ts, [(re + j, 'c', '-s'), (im + j, 's', 'c')])
        else:
            cs_pair(k, a, tc, ts, [(re + j, 'c', 's'), (im + j, '-s', 'c')])


def red32(k, regs, t):
    for mod in ('quad_perm:[1,0,3,2]', 'quad_perm:[2,3,0,1]', 'row_half_mirror', 'row_mirror'):
        for r in regs:
            k(f'v_add_f32_dpp v{r}, v{r}, v{r} {mod} row_mask:0xf bank_mask:0xf')
    for i, r in enumerate(regs):
        k(f'v_mov_b32 v{t+i}, v{r}')
    for i, r in enumerate(regs):
        k(f'v_permlane16_swap_b32 v{r}, v{t+i}')
    for i, r in enumerate(regs):
        k(f'v_add_f32 v{r}, v{r}, v{t+i}')


def poll(k, loads, check, sleep=None, masked=False, alt=None):
    L, E = k.lab('Lp'), k.lab('Le')
    sleep = OPT['poll_sleep'] if sleep is None else sleep
    if alt and alt[2] > 1:
        k(f's_mov_b32 s14, {alt[2] - 1}')
    k.label(L)
    for l in loads:
        k(l)
    k.wait(0)
    check()
    k(f's_cbranch_vccz {E}')
    k(f's_sub_u32 s{sBUD}, s{sBUD}, 1\ns_cbranch_scc1 {E}')
    if alt and alt[2] > 1:
        k(f's_cmp_gt_i32 s14, 0\ns_cselect_b32 s15, {alt[1]}, 0\ns_sub_u32 s14, s14, 1')
        for r in alt[0]:
            k(f's_add_u32 s{r}, s{r}, s15')
    masked = masked and OPT['mask']
    if masked:
        k('s_mov_b64 exec, vcc')
    if sleep:
        k(f's_sleep {sleep}')
    k(f's_branch {L}')
    k.label(E)
    if masked:
        k('s_mov_b64 exec, -1')
    k(f's_max_i32 s{sBUD}, s{sBUD}, 0')


def check_tags(k, regs):
    def f():
        k(f'v_cmp_ne_u32 vcc, v{vTAG}, v{regs[0]}')
        for r in regs[1:]:
            k(f'v_cmp_ne_u32 s[48:49], v{vTAG}, v{r}\ns_or_b64 vcc, vcc, s[48:49]')
    return f


def publish(k, sync, sidx, t, ncue=0, cue_add=0):
    k(f'''s_lshl_b32 s48, s{sidx}, {OPT['fs']}
    s_lshl_b32 s49, s{sW}, 16
    s_add_u32 s48, s48, s49
    s_add_u32 s48, s48, {WS_FL2 + sync*0x40000}
    v_mov_b32 v{t}, {OOB}''')
    for a in range(OPT['na']):
        k(f'v_writelane_b32 v{t}, s48, {a}\ns_add_u32 s48, s48, 16384')
    if ncue:
        k(f'''s_add_u32 s48, s2, {8*cue_add}
        s_lshl_b32 s48, s48, 7
        s_add_u32 s48, s48, {WS_CUE + sync*0x8000}
        s_lshl_b32 s49, s{sW}, 8
        s_add_u32 s49, s49, s{sR}
        s_cmp_lt_u32 s49, {ncue}
        s_cselect_b32 s48, s48, {OOB}
        v_writelane_b32 v{t}, s48, 8''')


def do_publish(k, t):
    k(f'buffer_store_dword v{vTAG}, v{t}, {WS}, 0 offen sc1')
    k.wait(0)


def wait_cue(k, sync, t, sleep=4):
    k(f's_lshl_b32 s50, s2, 7\ns_add_u32 s50, s50, {WS_CUE + sync*0x8000}\nv_mov_b32 v{t}, 0')
    poll(k, [f'buffer_load_dword v{t+1}, v{t}, {WS}, s50 offen sc1'], check_tags(k, [t + 1]), sleep=sleep)


def h3_idx(k, d):
    k(f'''s_bfe_u32 s{d}, s{sS2}, 0x10002
    s_lshl_b32 s{d}, s{d}, 7
    s_lshr_b32 s{d+1}, s{sS2}, 3
    s_lshl_b32 s{d+1}, s{d+1}, 2
    s_add_u32 s{d}, s{d}, s{d+1}
    s_and_b32 s{d+1}, s{sS2}, 3
    s_add_u32 s{d}, s{d}, s{d+1}''')


def g1_tile(k):
    k(f'''s_mul_i32 s52, s{sJ}, 27
    s_add_u32 s52, s52, s{sR}
    s_mul_i32 s51, s52, 171
    s_lshr_b32 s51, s51, 10
    s_mul_i32 s48, s51, 6
    s_sub_u32 s52, s52, s48''')


def g2_tile(k):
    k(f'''s_lshr_b32 s53, s{sJ}, 1
    s_and_b32 s54, s{sJ}, 1
    s_lshl_b32 s54, s54, 3
    s_lshr_b32 s48, s{sR}, 2
    s_add_u32 s54, s54, s48
    s_and_b32 s55, s{sR}, 3''')


def ring_adv(k, s, step, lo, hi):
    k(f's_add_u32 s{s}, s{s}, {step}\ns_cmp_eq_u32 s{s}, {hi}\ns_cselect_b32 s{s}, {lo}, s{s}')


def preload_w(vW0, vW, pairs):
    r = []
    for half in range(2):
        mine = [(sl, f0) for sl, f0 in pairs if sl // 3 == half]
        if mine:
            r += [f'v_add_u32 v{vW+nt}, {49152*half}, v{vW0+nt}' for nt in range(2)]
        for sl, f0 in mine:
            for st in range(2):
                for nt in range(2):
                    f = f0 + 8 * st + 4 * nt
                    o = (sl % 3) * 16384 + st * 8192
                    r += [f'ds_read_b64_tr_b16 {P(f)}, v{vW+nt} offset:{o}', f'ds_read_b64_tr_b16 {P(f+2)}, v{vW+nt} offset:{o+4096}']
    return r


def reg_stages(g):
    return OPT['rs1'] if g == 0 else OPT['rs2']


def kappa(n, NST):
    rs = reg_stages(0 if NST == 32 else 1)
    return rs.index(n) if n in rs else len(rs) + n - sum(x < n for x in rs)


def leaders(g):
    if not OPT['lead'] & (1 << g):
        return 0, (27, 32)[g]
    l = [6 * (c & 3) + c for c in range(6)] if g == 0 else [4 * d + (d & 3) for d in range(8)]
    return sum(1 << x for x in l), (27, 32)[g] - len(l)


def spec_range(g):
    if g == 0:
        c = {(kappa(n, 32) + OPT['xst'] * (j & OPT['xm']) + OPT['xo']) % 32 for n in range(5) for j in range(8)}
    else:
        c = {kappa(n, NST2) for n in range(OPT['nsp'])}
    return min(c), max(c) - min(c) + 1


def clear_loop(k, sidx, stride, total, addr, ones, la):
    for x in range((total + stride - 1) // stride):
        L = k.lab()
        k(f's_add_u32 s48, s{sidx}, {x*stride}\ns_cmp_ge_u32 s48, {total}\ns_cbranch_scc1 {L}')
        addr()
        k.cond += 1
        k(f'buffer_store_dwordx4 {Q(ones)}, v{la}, {WS}, s48 offen sc1')
        k.cond -= 1
        k.label(L)


def gemm_c(k, MT, NST, NSA, ASTAGE, vA, vA4, vW0, vW, fa, fw, acc, rg, rs, w_is_A, at_end=None, last_order=None, defer=0, send=None, single=False, slot0=0, hold=False):
    NT = 2
    for nt in range(NT):
        k(f'v_add_u32 v{vW+nt}, 49152, v{vW0+nt}')

    def reads(n, st, wslot):
        w, a = [None] * 4, []
        if wslot is not None:
            for nt in range(NT):
                f = fw + 4 * (st * NT + nt)
                r, o = (vW0 if wslot < 3 else vW) + nt, (wslot % 3) * 16384 + st * 8192
                w[2 * nt] = f'ds_read_b64_tr_b16 {P(f)}, v{r} offset:{o}'
                w[2 * nt + 1] = f'ds_read_b64_tr_b16 {P(f+2)}, v{r} offset:{o+4096}'
        o = (n % NSA) * ASTAGE + st * ASTAGE // 2
        for mt in range(MT):
            f = fa + 4 * ((0 if single else st) * MT + mt)
            if vA4 is not None and mt == MT - 1:
                a.append(f'ds_read_b128 {Q(f)}, v{vA4} offset:{o}')
            else:
                a.append(f'ds_read_b128 {Q(f)}, v{vA} offset:{o+256*mt}')
        if single:
            return [x for mt in range(MT) for x in (w[mt] if mt < 4 else None, a[mt])]
        return [w[0], a[0], w[1], a[1], w[2], a[2], w[3]] + a[3:]

    def mfmas(p, wb):
        r = []
        order = [(0, 0), (1, 0), (2, 0), (0, 1), (1, 1), (2, 1)] + [(mt, nt) for mt in range(3, MT) for nt in range(NT)]
        if single:
            order = [(mt, nt) for mt in range(MT) for nt in range(NT)]
        for mt, nt in order:
            a = acc + 4 * (mt * NT + nt)
            x, y = fa + 4 * ((0 if single else p) * MT + mt), wb + 4 * (p * NT + nt)
            if w_is_A:
                x, y = y, x
            r.append(f'{MF} {Q(a)}, {Q(x)}, {Q(y)}, {Q(a)}')
        return r
    def step(mm, rd, barrier, merged=True):
        if OPT.get('noread'):
            rd = []
        if OPT.get('nomfma'):
            mm = ['s_nop 0'] * len(mm)
        if not mm and barrier:
            k('s_barrier')
        per = 1 if len(mm) >= len(rd) else 2
        rd = list(rd) if per == 1 else [x for x in rd if x]
        done = 0
        for i, mi in enumerate(mm):
            if merged and OPT['mw'] and i == 6:
                k.wait(lg=done)
            k(mi)
            if barrier and i == 0:
                k('s_barrier')
            for x in rd[:per]:
                if x:
                    k(x)
                    done += 1
            rd = rd[per:]
        for x in rd:
            if x:
                k(x)
    isnt = lambda mi, nt: ((int(mi.split('[')[1].split(':')[0]) - acc) // 4) % 2 == nt
    prev, m = None, 0
    D0 = 2 * (NST - defer)
    assert all(n < NST - defer - 1 for n in rs)
    for n in range(NST):
        cur, wslot = (rg[rs.index(n)], None) if n in rs else (fw, (m + slot0) % NSW)
        m += n not in rs
        for st in range(2):
            rd = reads(n, st, wslot)
            mm = [] if prev is None and st == 0 else mfmas(st ^ 1, prev if st == 0 else cur)
            q = 2 * n + st
            if q >= D0:
                f, g = fw + 8 * st, rg[0] + 4 * (q - D0)
                rd[0], rd[2] = rd[0].replace(P(f), P(g)), rd[2].replace(P(f + 2), P(g + 2))
                rd = [rd[4], rd[6], rd[1], rd[3], rd[5]] + rd[7:] + [rd[0], rd[2]]
            if q > D0:
                step([x for x in mm if isnt(x, 1)], rd, st == 0, False)
                continue
            if mm and (OPT['mw'] and (n, st) != (0, 1) or (st == 0 and prev == fw)):
                k.wait(lg=MT - 3)
            step(mm, rd, st == 0, not single or OPT['mw'] == 2)
        prev = cur
    if not defer:
        k.wait(lg=0)
        if at_end:
            at_end()
        mm = mfmas(1, prev)
        if last_order:
            mm.sort(key=last_order)
        if hold:
            return mm
        for mi in mm:
            k(mi)
        return []
    acts = lambda q: [x for x in reads(q // 2, q % 2, None) if x]
    mm = [x for x in mfmas(1, prev) if isnt(x, 1)]
    mm.sort(key=last_order)
    last = 2 * NST - 1
    step(mm, acts(D0), False, False)
    step([x for x in mfmas(1, rg[0] + 4 * (last - D0) - 8) if isnt(x, 0)], [], False, False)
    send()
    for q in range(D0, last):
        step([x for x in mfmas(q % 2, rg[0] + 4 * (q - D0) - 8 * (q % 2)) if isnt(x, 0)], acts(q + 1) if q + 1 < last else [], False, False)
    at_end()


def gemm2_c(k, vAo, vAx, vA4, vW0, vW, fa, fw, accf, rg, rs, D, send_bc, send_a, at_end, fill={}, drain=None, vhi=None):
    MT, NST = 9, NST2
    last = 2 * NST - 1
    D0 = 2 * (NST - D)
    park, _ = quads(rg, rs, D)
    assert 1 <= D <= NSA2
    for nt in range(2):
        k(f'v_add_u32 v{vW+nt}, 49152, v{vW0+nt}')

    def aread(q, mt):
        sl = (q >> 1) % NSA2
        base = (vAo, vA4, vAx)
        if sl >= 4:
            base, sl = vhi, sl - 4
        v, o = (base[0], 256 * mt) if mt < 4 else ((base[1], 0) if mt == 4 else (base[2], 256 * (mt - 5)))
        return f'ds_read_b128 {Q(fa+4*mt)}, v{v} offset:{sl*AST2 + (q & 1)*9216 + o}'

    def wreg(q, nt):
        n, st = q >> 1, q & 1
        if n in rs:
            return rg[rs.index(n)] + 8 * st + 4 * nt
        if q >= D0 and nt == 0:
            return park[q]
        return fw + 8 * st + 4 * nt
    ring = [n for n in range(NST) if n not in rs]

    def wreads(q):
        n, st = q >> 1, q & 1
        if n in rs:
            return []
        sl = ring.index(n) % NSW2
        r = []
        for nt in (1, 0):
            f, v, o = wreg(q, nt), (vW0 if sl < 3 else vW) + nt, (sl % 3) * 16384 + st * 8192
            r += [f'ds_read_b64_tr_b16 {P(f)}, v{v} offset:{o}', f'ds_read_b64_tr_b16 {P(f+2)}, v{v} offset:{o+4096}']
        return r

    def mf(q, mt, nt):
        a = accf(mt, nt)
        return f'{MF} {Q(a)}, {Q(fa+4*mt)}, {Q(wreg(q, nt))}, {Q(a)}'

    def emit(mm, after, group=6, barrier=False, extra=None):
        if OPT.get('noread'):
            after = [[x for x in a if not x.startswith('ds_')] for a in after]
        if barrier and not mm:
            k('s_barrier')
        for i, m in enumerate(mm):
            if i % group == 0:
                k.cover(mm[i:i + group])
            k('s_nop 0' if OPT.get('nomfma') else m)
            if barrier and i == 0:
                k('s_barrier')
            for x in after[i]:
                k(x)
            if extra:
                for x in extra[:2]:
                    k(x)
                del extra[:2]
        for a in after[len(mm):]:
            for x in a:
                k(x)
    for q in range(last + 1):
        w = wreads(q)
        p = q - 1
        if p < 0:
            emit([], [w + [aread(q, mt) for mt in range(MT)]], barrier=True)
        elif p < D0:
            mm = [mf(p, mt, nt) for mt in range(MT) for nt in (1, 0)]
            after = [[] for _ in mm]
            for i, x in enumerate(w):
                after[2 * i].append(x)
            for mt in range(MT):
                after[2 * mt + 1].append(aread(q, mt))
            after[10] += fill.get(q, [])
            if q == drain:
                k.wait(0)
            emit(mm, after, barrier=not q & 1)
        else:
            mm = [mf(p, mt, 1) for mt in range(MT)]
            after = [[aread(q, mt)] for mt in range(MT)]
            for i, x in enumerate(w):
                after[(0, 1, 5, 6)[i]].append(x)
            emit(mm, after, group=3, barrier=not q & 1)
    emit([mf(last, mt, 1) for mt in range(MT)], [[] for _ in range(MT)], group=3)
    hi, lo = [4, 5, 6, 7, 8], [0, 1, 2, 3]
    emit([mf(last, mt, 0) for mt in hi + lo], [[aread(D0, mt)] for mt in hi + lo], group=9)
    x = send_bc()
    for q in range(D0, last):
        emit([mf(q, mt, 0) for mt in hi], [[aread(q + 1, mt)] if q + 1 < last else [] for mt in hi], group=5, extra=x)
    for y in x:
        k(y)
    x = None
    for q in range(D0, last):
        emit([mf(q, mt, 0) for mt in lo], [[aread(q + 1, mt)] if q + 1 < last else [] for mt in lo], group=4, extra=x)
        if x is None:
            x = send_a()
    for y in x:
        k(y)
    at_end()


def warm_xch(k, t, dst, store=False):
    k(f'''s_mul_i32 s48, s{sW}, 3072
    s_mul_i32 s49, s2, 36864
    s_add_u32 s48, s48, s49
    s_add_u32 s48, s48, {WS_XCH}''')
    for i in range(2):
        k(f'''v_add_u32 v{t}, {64*i}, v0
        v_min_u32 v{t}, 71, v{t}
        v_mul_u32_u24 v{t+1}, 2731, v{t}
        v_lshrrev_b32 v{t+1}, 16, v{t+1}
        v_mul_u32_u24 v{t+1}, {12288 - 24*128}, v{t+1}
        v_lshl_add_u32 v{t}, v{t}, 7, v{t+1}''')
        k.raw(f'    buffer_load_dword v{dst+i}, v{t}, {WS}, s48 offen')


def load_tag(k, t):
    k(f'v_mov_b32 v{t}, {WS_EPOCH}\nbuffer_load_dword v{vTAG}, v{t}, {WS}, 0 offen sc1')


def finish_tag(k):
    k(f's_mov_b32 s48, 0x9e3779b1\nv_mul_lo_u32 v{vTAG}, v{vTAG}, s48\nv_add_u32 v{vTAG}, 0x7f4a7c15, v{vTAG}\nv_or_b32 v{vTAG}, 0x01010101, v{vTAG}')


def w2_lane(k, t, d):
    k(f'''v_lshrrev_b32 v{t}, 4, v0
    v_and_b32 v{t+1}, 15, v0
    v_lshlrev_b32 v{t}, 12, v{t}
    v_lshl_add_u32 v{t}, v{t+1}, 7, v{t}
    s_lshr_b32 s48, s{sJ}, 1
    s_mul_i32 s48, s48, {1152*4096}
    s_and_b32 s49, s{sJ}, 1
    s_lshl_b32 s49, s49, 11
    s_add_u32 s48, s48, s49
    v_add_u32 v{t}, s48, v{t}
    s_mov_b32 s{d}, 0''')


def pf_loop(k, which, sN, stride, end, t, sd, tmp=50):
    assert 0 <= end <= 320 and stride > 0
    L, E = k.lab(), k.lab()
    if which == 2:
        w2_lane(k, t, tmp)
    k.label(L)
    k(f's_cmp_ge_u32 s{sN}, {end}\ns_cbranch_scc1 {E}')
    if which == 1:
        nl = OPT['nl']
        mg = {9: 911, 10: 820}[nl]
        k(f'''s_mul_i32 s48, s{sN}, {mg}
        s_lshr_b32 s48, s48, 13
        s_mul_i32 s49, s48, {nl}
        s_sub_u32 s49, s{sN}, s49
        s_lshl_b32 s49, s49, 6
        v_add_u32 v{t}, s49, v0
        s_and_b32 s49, s{sJ}, {OPT['xm']}
        s_mul_i32 s49, s49, {OPT['xst']}
        s_add_u32 s48, s48, s49
        s_add_u32 s48, s48, {OPT['xo']}''')
        if OPT['rot1']:
            assert nl == 10
            k(f'''s_mul_i32 s49, s{sJ}, 1152
            s_lshr_b32 s15, s49, 8
            s_mul_i32 s15, s15, {OPT['rot1']}
            s_add_u32 s15, s15, s48
            s_and_b32 s48, s49, -256''')
        else:
            k(f'''s_and_b32 s48, s48, 31
            s_mul_i32 s48, s48, {8*9216}
            s_mul_i32 s49, s{sJ}, 1152
            s_and_b32 s49, s49, {-256 if nl == 10 else -128}
            s_add_u32 s48, s48, s49''')
        k(f'''v_mul_u32_u24 v{t+1}, {mg}, v{t}
        v_lshrrev_b32 v{t+1}, 13, v{t+1}
        v_mul_u32_u24 v{t+2}, {nl}, v{t+1}
        v_sub_u32 v{t+2}, v{t}, v{t+2}
        v_and_b32 v{t}, 7, v{t+1}
        v_lshrrev_b32 v{t+1}, 3, v{t+1}
        v_lshl_add_u32 v{t}, v{t}, 8, v{t+1}
        v_mul_u32_u24 v{t}, 9216, v{t}
        v_lshl_add_u32 v{t}, v{t+2}, 7, v{t}''')
        if OPT['rot1']:
            k(f'''v_lshrrev_b32 v{t+2}, 1, v{t+2}
            v_mul_u32_u24 v{t+2}, {OPT['rot1']}, v{t+2}
            v_add_u32 v{t+2}, s15, v{t+2}
            v_and_b32 v{t+2}, 31, v{t+2}
            v_mul_u32_u24 v{t+2}, {8*9216}, v{t+2}
            v_add_u32 v{t}, v{t}, v{t+2}''')
    else:
        k(f'''s_add_u32 s48, s{sN}, s{tmp}
        s_cmp_ge_u32 s48, 288
        s_cselect_b32 s49, 288, 0
        s_sub_u32 s48, s48, s49
        s_lshl_b32 s48, s48, 14''')
    k.cond += 1
    fl = 'nt' if OPT['pfnt'] & which else ''
    k(f'buffer_load_dword v{t+3}, v{t}, s[{sd}:{sd+3}], s48 offen {fl}')
    k.cond -= 1
    k(f's_add_u32 s{sN}, s{sN}, {stride}\ns_branch {L}')
    k.label(E)


def tag_check4(k, r, t, first):
    k(f'''v_perm_b32 v{t}, v{r+1}, v{r}, s56
    v_perm_b32 v{t+1}, v{r+3}, v{r+2}, s57
    v_or_b32 v{t}, v{t}, v{t+1}''')
    if first:
        k(f'v_cmp_ne_u32 vcc, v{vTAG}, v{t}')
    else:
        k(f'v_cmp_ne_u32 s[48:49], v{vTAG}, v{t}\ns_or_b64 vcc, vcc, s[48:49]')


def check_sent(k, regs, t):
    def f():
        r = list(regs)
        k(f'v_max3_u32 v{t}, v{r[0]}, v{r[1]}, v{r[2]}')
        for x in r[3:]:
            k(f'v_max_u32 v{t}, v{t}, v{x}')
        k(f'v_cmp_eq_u32 vcc, -1, v{t}')
    return f


def stats(k, xf, u):
    k(f'v_pk_add_f32 {P(u)}, {P(xf)}, {P(xf+2)}\nv_pk_mul_f32 {P(u+2)}, {P(xf)}, {P(xf)}')
    for j in range(1, 9):
        if j > 1:
            k(f'v_pk_add_f32 {P(u)}, {P(u)}, {P(xf+2*j)}')
        k(f'v_pk_fma_f32 {P(u+2)}, {P(xf+2*j)}, {P(xf+2*j)}, {P(u+2)}')
    k(f'v_add_f32 v{u}, v{u}, v{u+1}\nv_add_f32 v{u+1}, v{u+2}, v{u+3}')
    red32(k, [u, u + 1], u + 2)
    k(f'''v_mul_f32 v{u}, {f32(-1/576)}, v{u}
    v_mul_f32 v{u+1}, {f32(1/576)}, v{u+1}
    v_fma_f32 v{u+1}, -v{u}, v{u}, v{u+1}
    v_max_f32 v{u+1}, 0, v{u+1}
    v_add_f32 v{u+1}, {f32(1e-5)}, v{u+1}
    v_rsq_f32 v{u+2}, v{u+1}
    v_mul_f32 v{u}, v{u}, v{u+2}''')


def gen_C(k):
    V = Alloc(4, 256)
    bb = V(4, 2); b2 = V()
    base = V.p
    xr = V(9, 1); t = V(12); twi = V(6); la = V(); a576 = V(); F64 = V(32, 4)
    keep = V.p
    mv = V(18, 2); ma = V(8); tw = V(8); xf = V(24, 2); st = V(16, 4); hf = V(12, 4); mf = V(60, 4); acc = V(24, 4)
    if OPT['touch'] == 2:
        tag(k, 'align')
    k(f'''v_lshrrev_b32 v{t}, 5, v0
    v_and_b32 v{t+1}, 31, v0
    v_mul_u32_u24 v{t+2}, {256*1152}, v{t}
    v_lshl_add_u32 v{t+2}, v{t+1}, 2, v{t+2}
    s_mul_i32 s62, s{sW}, {512*1152}
    s_mul_i32 s48, s{sS2}, 1152
    s_add_u32 s62, s62, s48''')
    srd(k, 40, pX, S * D * 2)
    for j in range(9):
        k(f'buffer_load_dword v{xr+j}, v{t+2}, s[40:43], s62 offen offset:{128*j}')
    srd(k, 36, pWS, WS_SIZE)
    load_tag(k, t + 3)
    g1_tile(k)
    g2_tile(k)
    srd(k, 44, pB1, F * 2)
    srd(k, 64, pB2, S * 2)
    k(f'''s_lshl_b32 s48, s51, 8
    s_lshl_b32 s49, s{sW}, 6
    s_add_u32 s48, s48, s49
    v_lshl_add_u32 v{t+4}, v2, 3, s48
    buffer_load_dwordx2 {P(bb)}, v{t+4}, s[44:47], 0 offen
    buffer_load_dwordx2 {P(bb+2)}, v{t+4}, s[44:47], 0 offen offset:32
    s_lshl_b32 s48, s54, 8
    s_add_u32 s48, s48, s49
    s_lshr_b32 s49, s53, 1
    s_lshl_b32 s49, s49, 5
    s_add_u32 s48, s48, s49
    v_lshl_add_u32 v{t+5}, v1, 1, s48
    buffer_load_ushort v{b2}, v{t+5}, s[64:67], 0 offen''')
    if OPT['tlb']:
        k(f'''s_cmp_eq_u32 s{sW}, 1
        s_cselect_b32 s56, s{pW1}, s{pWS}
        s_cselect_b32 s57, s{pW1+1}, s{pWS+1}
        s_cmp_eq_u32 s{sW}, 2
        s_cselect_b32 s56, s{pW2}, s56
        s_cselect_b32 s57, s{pW2+1}, s57
        s_cmp_eq_u32 s{sW}, 3
        s_cselect_b32 s56, s{pOUT}, s56
        s_cselect_b32 s57, s{pOUT+1}, s57
        s_mov_b32 s58, {S*F*2}
        s_cselect_b32 s58, {S*D*2}, s58
        s_cmp_eq_u32 s{sW}, 0
        s_cselect_b32 s58, {WS_SIZE}, s58
        s_mov_b32 s59, 0x20000
        v_lshlrev_b32 v{t+6}, {OPT['tlb']}, v0
        v_add_u32 v{t+6}, {(1<<OPT['tlb'])-128}, v{t+6}
        buffer_load_dword v{tw}, v{t+6}, s[56:59], 0 offen''')
    if OPT['warm']:
        h3_idx(k, 56)
        publish(k, 2, 56, t + 6)
        k(f's_lshl_b32 s56, s52, 6\ns_add_u32 s56, s56, s51')
        publish(k, 3, 56, t + 7, ncue=5, cue_add=27)
        k(f'buffer_load_dword v{ma}, v{t+6}, {WS}, 0 offen\nbuffer_load_dword v{ma+1}, v{t+7}, {WS}, 0 offen')
    if OPT['touch'] == 1:
        tag(k, 'align')
    xw = hf
    k(f'''v_lshlrev_b32 v{la}, 4, v0
    v_mul_u32_u24 v{xw}, {XROW}, v{t}
    v_lshl_add_u32 v{xw}, v{t+1}, 2, v{xw}
    s_mul_i32 s48, s{sW}, {2*XROW}
    s_add_u32 s48, s48, {L_X}
    v_add_u32 v{xw}, s48, v{xw}''')
    m = acc
    k(f'''v_lshrrev_b32 v{m}, 1, v1
    v_and_b32 v{m+1}, 1, v1
    v_and_b32 v{m+2}, 1, v{m}
    v_cvt_f32_u32 v{m}, v{m}
    v_cvt_f32_u32 v{m+1}, v{m+1}
    v_mul_f32 v{m}, {f32(0.125)}, v{m}
    v_mul_f32 v{m+1}, {f32(0.25)}, v{m+1}
    v_mul_u32_u24 v{m+2}, 0x8000, v{m+2}
    v_lshl_or_b32 v{m+2}, v{m+2}, 16, v{m+2}
    s_lshl_b32 s48, s{sW}, 10
    s_add_u32 s48, s48, {L_M}
    v_add_u32 v{m+3}, s48, v{la}
    s_mov_b32 s63, {f32(1/9)}''')
    for i in range(4):
        o = m + 12 + 4 * (i & 1)
        k(f'''s_add_u32 s48, s{sW}, {4*i}
        s_mul_i32 s49, s48, 43
        s_lshr_b32 s49, s49, 7
        s_mul_i32 s50, s49, 3
        s_sub_u32 s50, s48, s50
        s_lshl_b32 s50, s50, 2
        v_add_u32 v{m+4}, s50, v2
        v_cmp_gt_u32 vcc, 9, v{m+4}
        v_mul_u32_u24 v{m+4}, s49, v{m+4}
        v_cvt_f32_u32 v{m+4}, v{m+4}
        v_fma_f32 v{m+4}, v{m+4}, s63, v{m+1}
        v_add_f32 v{m+5}, v{m+4}, v{m}
        v_fma_f32 v{m+6}, v{m}, 2.0, v{m+4}
        v_add_f32 v{m+7}, v{m+6}, v{m}
        v_cos_f32 v{m+4}, v{m+4}
        v_cos_f32 v{m+5}, v{m+5}
        v_cos_f32 v{m+6}, v{m+6}
        v_cos_f32 v{m+7}, v{m+7}
        v_cvt_pk_bf16_f32 v{o}, v{m+4}, v{m+5}
        v_cvt_pk_bf16_f32 v{o+1}, v{m+6}, v{m+7}
        v_cndmask_b32 v{o}, 0, v{o}, vcc
        v_cndmask_b32 v{o+1}, 0, v{o+1}, vcc
        v_xor_b32 v{o+2}, v{m+2}, v{o}
        v_xor_b32 v{o+3}, v{m+2}, v{o+1}
        ds_write_b128 v{m+3}, {Q(o)} offset:{4096*i}''')
    def gen_twi():
        k(f'''v_lshrrev_b32 v{t+4}, 1, v2
        v_cvt_f32_u32 v{t+4}, v{t+4}
        v_add_f32 v{t+5}, 1.0, v{t+4}
        v_mul_f32 v{t+5}, {f32(1/(S*D))}, v{t+5}''')
        for tt in range(3):
            if tt:
                k(f'v_add_f32 v{t+4}, 2.0, v{t+4}')
            sc = f'v{t+5}' if tt == 0 else f32(2 / (S * D))
            k(f'''v_mul_f32 v{t+6}, v{t+4}, v{a576}
            v_cos_f32 v{t+7}, v{t+6}
            v_sin_f32 v{t+8}, v{t+6}
            v_mul_f32 v{twi+2*tt}, {sc}, v{t+7}
            v_mul_f32 v{twi+2*tt+1}, {sc}, v{t+8}''')

    def gen_f64():
        k(f'''s_lshl_b32 s48, s{sW}, 4
        v_add_u32 v{t+6}, s48, v1
        v_cvt_f32_u32 v{t+6}, v{t+6}
        v_mul_f32 v{t+6}, {f32(1/64)}, v{t+6}
        v_cvt_f32_u32 v{t+8}, v2
        v_mul_f32 v{t+8}, 4.0, v{t+8}''')
        for T in range(4):
            if T:
                k(f'v_add_f32 v{t+8}, {f32(16.0)}, v{t+8}')
            k(f'v_mul_f32 v{t+7}, v{t+8}, v{t+6}')
            dft_frag(k, t + 7, t + 6, F64 + 8 * T, F64 + 8 * T + 4, t, False)
        k(f'v_mul_f32 v{a576}, {f32(1/9)}, v{t+6}')
        for lb in range(1, 5):
            k(f'''v_mul_f32 v{t+4}, {f32(float(lb))}, v{a576}
            v_cos_f32 v{tw+2*lb-2}, v{t+4}
            v_sin_f32 v{tw+2*lb-1}, v{t+4}''')
    if OPT['f64'] == 0:
        gen_f64()
    if OPT['a0']:
        L1 = k.lab()
        k(f's_cmp_lt_u32 s2, 202\ns_cbranch_scc1 {L1}')
        vm = list(k.vm)
        if OPT['f64'] == 1:
            gen_f64()
        k.vm = vm
        k('s_barrier')
        k.label(L1)
    ta = st
    k(f'''v_lshrrev_b32 v{t+4}, 5, v0
    v_lshlrev_b32 v{t+4}, 2, v{t+4}
    s_lshl_b32 s48, s{sW}, 3
    s_add_u32 s48, s48, {L_ST}
    v_add_u32 v{t+4}, s48, v{t+4}
    v_bfe_u32 v{t}, v0, 2, 2
    v_mul_u32_u24 v{t}, {XROW}, v{t}
    v_and_b32 v{t+1}, 3, v0
    v_lshl_add_u32 v{t}, v{t+1}, 3, v{t}
    s_lshl_b32 s48, s{sW}, 5
    s_add_u32 s48, s48, {L_X}
    v_add_u32 v{t+1}, s48, v{t}
    v_lshl_add_u32 v{t}, v2, 7, v{t+1}
    v_mov_b32 v{t+2}, {L_ST}
    v_add_u32 v{t+3}, {L_M}, v{la}''')
    for j in range(9):
        k(f'ds_write_b32 v{xw}, v{xr+j} offset:{128*j}')
        k(f'v_lshlrev_b32 v{xf+2*j}, 16, v{xr+j}\nv_and_b32 v{xf+2*j+1}, 0xffff0000, v{xr+j}')
    stats(k, xf, t + 6)
    k(f'ds_write_b32 v{t+4}, v{t+8}\nds_write_b32 v{t+4}, v{t+6} offset:32')
    mark(k, 1)
    if OPT['touch'] == 3:
        tag(k, 'align')
    bar(k, lg=0)
    for i in range(4):
        k(f'ds_read_b128 {Q(st+4*i)}, v{t+2} offset:{16*i}')
    for tt in range(3):
        a = t if tt < 2 else t + 1
        k(f'ds_read_b64_tr_b16 {P(hf+4*tt)}, v{a} offset:{512*tt}')
        k(f'ds_read_b64_tr_b16 {P(hf+4*tt+2)}, v{a} offset:{512*tt+4*XROW}')
    for fi in range(15):
        k(f'ds_read_b128 {Q(mf+4*fi)}, v{t+3} offset:{1024*fi}')
    if OPT['f64'] == 1:
        L1 = k.lab()
        if OPT['a0']:
            k(f's_cmp_ge_u32 s2, 202\ns_cbranch_scc1 {L1}')
        lg, vm = list(k.lg), list(k.vm)
        gen_f64()
        k.lg, k.vm = lg, vm
        k.label(L1)
    for tt in range(3):
        for p in range(4):
            x = xf + 8 * tt + 2 * p
            k(f'''v_lshlrev_b32 v{x}, 16, v{hf+4*tt+p}
            v_and_b32 v{x+1}, 0xffff0000, v{hf+4*tt+p}
            v_pk_fma_f32 {P(x)}, {P(x)}, {P(st+2*p)}, {P(st+8+2*p)}''')
    def gen_m1i(m):
        k(f'''v_and_b32 v{m}, 7, v1
        v_cvt_f32_u32 v{m}, v{m}
        v_mul_f32 v{m}, {f32(0.125)}, v{m}
        v_and_b32 v{m+1}, 1, v2
        v_cvt_f32_u32 v{m+1}, v{m+1}
        v_mul_f32 v{m+1}, 4.0, v{m+1}
        v_mul_f32 v{m+1}, v{m+1}, v{m}
        v_lshrrev_b32 v{m+2}, 3, v1
        v_lshrrev_b32 v{m+3}, 1, v2
        s_lshl_b32 s48, s{sW}, 10
        s_add_u32 s48, s48, {L_MI}
        v_add_u32 v{m+4}, s48, v{la}''')
        for i in range(4):
            o = m + 12 + 4 * (i & 1)
            k(f'''s_add_u32 s48, s{sW}, {4*i}
            s_mul_i32 s49, s48, 43
            s_lshr_b32 s49, s49, 7
            s_mul_i32 s50, s49, 3
            s_sub_u32 s50, s48, s50
            s_lshl_b32 s50, s50, 1
            s_lshl_b32 s49, s49, 1
            v_add_u32 v{m+5}, s49, v{m+2}
            v_add_u32 v{m+6}, s50, v{m+3}
            v_cmp_gt_u32 vcc, 9, v{m+5}
            v_cmp_gt_u32 s[48:49], 5, v{m+6}
            v_mul_u32_u24 v{m+5}, v{m+5}, v{m+6}
            v_cvt_f32_u32 v{m+5}, v{m+5}
            s_and_b64 vcc, vcc, s[48:49]
            v_fma_f32 v{m+5}, v{m+5}, s63, v{m+1}''')
            for j in range(4):
                if j:
                    k(f'v_add_f32 v{m+5}, v{m+5}, v{m}')
                cs_pair(k, m + 5, m + 6 + 2 * (j & 1), m + 7 + 2 * (j & 1), [(o + j, 'c', '-s')])
            for j in range(4):
                k(f'v_cndmask_b32 v{o+j}, 0, v{o+j}, vcc')
            k(f'ds_write_b128 v{m+4}, {Q(o)} offset:{4096*i}')
    if OPT['m1early'] == 1:
        gen_m1i(acc)
    if OPT['m1early'] == 2:
        L1 = k.lab()
        k.wait(lg=0)
        k(f's_cmp_ge_u32 s2, 202\ns_cbranch_scc1 {L1}')
        gen_m1i(acc)
        k.label(L1)
    gen_twi()
    finish_tag(k)
    k(f'''s_lshl_b32 s48, s{sW}, 6
    s_add_u32 s48, s48, {L_E}
    v_mul_u32_u24 v{t}, 576, v2
    v_lshl_add_u32 v{t}, v1, 2, v{t}
    v_add_u32 v{t}, s48, v{t}
    v_mul_u32_u24 v{t+1}, 288, v1
    v_lshl_add_u32 v{t+1}, v2, 4, v{t+1}
    v_add_u32 v{t+1}, {L_E}, v{t+1}
    v_bfe_u32 v{t+9}, v1, 1, 2
    v_xor_b32 v{t+9}, v{t+9}, v2
    v_lshl_add_u32 v{t+9}, v1, 2, v{t+9}
    s_mul_i32 s48, s{sW}, 3072
    s_add_u32 s48, s48, {L_TR}
    v_lshl_add_u32 v{t+9}, v{t+9}, 4, s48
    v_add_u32 v{t+10}, s48, v{la}
    v_lshrrev_b32 v{t+2}, 3, v0
    v_xor_b32 v{t+2}, v{t+2}, v0
    v_and_b32 v{t+2}, 3, v{t+2}
    v_lshlrev_b32 v{t+2}, 4, v{t+2}
    v_lshrrev_b32 v{t+3}, 2, v0
    v_lshl_add_u32 v{t+2}, v{t+3}, 16, v{t+2}
    s_lshl_b32 s48, s{sW}, 14
    s_lshl_b32 s49, s{sS2}, 6
    s_add_u32 s48, s48, s49
    s_add_u32 s48, s48, {WS_T1}
    v_add_u32 v{t+2}, s48, v{t+2}
    v_add_u32 v{t+3}, {1<<20}, v{t+2}
    v_add_u32 v{t+4}, {2<<20}, v{t+2}
    v_cmp_gt_u32 vcc, 32, v0
    v_mov_b32 v{t+5}, {OOB}
    v_cndmask_b32 v{t+4}, v{t+5}, v{t+4}, vcc
    s_lshl_b32 s58, s{sW}, 12
    s_add_u32 s58, s58, {L_MG}
    v_lshl_add_u32 v{ma+3}, v1, 2, s58
    v_lshl_add_u32 v{ma}, v2, 6, v{ma+3}
    v_add_u32 v{ma+3}, 512, v{ma+3}
    v_add_u32 v{ma+1}, 1152, v{ma}
    v_add_u32 v{ma+2}, 2304, v{ma}
    v_add_u32 v{ma+4}, 1152, v{ma+3}
    v_add_u32 v{ma+5}, 2304, v{ma+3}
    v_cmp_gt_u32 vcc, 24, v0
    v_cndmask_b32 v{ma+6}, v{t+5}, v{la}, vcc
    s_mul_i32 s59, s{sJ}, 13824
    s_mul_i32 s48, s{sW}, 3456
    s_add_u32 s59, s59, s48
    s_add_u32 s59, s59, {WS_MODG}
    v_min_u32 v{ma+7}, {31*16}, v{la}
    s_mul_i32 s48, s{sW}, 2560
    s_mul_i32 s60, s{sS2}, 10240
    s_add_u32 s60, s60, s48
    s_add_u32 s60, s60, {WS_T2}
    v_mov_b64 {P(st+12)}, -1
    v_mov_b64 {P(st+14)}, -1
    v_and_b32 v{t+6}, 3, v1
    v_lshlrev_b32 v{t+6}, 3, v{t+6}
    v_bfe_u32 v{t+6}, v{vTAG}, v{t+6}, 8
    s_mov_b32 m0, s58''')
    tag(k, 'touch c1')
    tag(k, 'region c1')
    k.wait(0, 0)
    mark(k, 2)

    def chk():
        for p in range(3):
            for tt in range(3):
                o = 64 * tt if tt < 2 else 0
                k(f'ds_read2_b32 {P(mv+6*p+2*tt)}, v{ma+p+(3 if tt==2 else 0)} offset0:{o} offset1:{o+144}')
        for i in range(0, 18, 2):
            k(f'v_xor_b32 v{mv+i}, v{mv+i}, v{t+6}\nv_xor_b32 v{mv+i+1}, v{mv+i+1}, v{t+6}')
            k(f'v_or3_b32 v{t+8}, v{mv+i}, v{mv+i+1}, v{t+8}' if i else f'v_or_b32 v{t+8}, v{mv}, v{mv+1}')
        k(f'v_and_b32 v{t+8}, 0xff, v{t+8}\nv_cmp_ne_u32 vcc, 0, v{t+8}')

    def clr2():
        for i in range(3):
            k(f'buffer_store_dwordx4 {Q(st+12)}, v{la if i<2 else ma+7}, {WS}, s60 offen offset:{1024*i} sc1')
    if OPT['c2'] == 0:
        clr2()
        k.wait(0)
    if OPT['dly']:
        k(f's_sleep {OPT["dly"]}')
    poll(k, [f'buffer_load_dwordx4 v{la if i<3 else ma+6}, {WS}, s59 offen offset:{1024*i} sc1 lds' for i in range(4)], chk, alt=([59], 0x20000, OPT['nm']))
    mark(k, 3)
    if OPT['c2'] == 1:
        clr2()
    for tt in range(3):
        a = mv + 2 * tt
        k(f'v_pk_add_f32 {P(a)}, {P(a)}, {P(a+6)}')
    for tt in range(3):
        a = mv + 2 * tt
        k(f'v_pk_add_f32 {P(a)}, {P(a)}, {P(a+12)}')
    for tt in range(3):
        a = mv + 2 * tt
        k(f'''v_cvt_pk_bf16_f32 v{a+6}, v{a}, v{a+1}
        v_and_b32 v{a+1}, 0xffff0000, v{a+6}
        v_add_f32 v{a+1}, 1.0, v{a+1}
        v_lshlrev_b32 v{a}, 16, v{a+6}
        v_cvt_pk_bf16_f32 v{a+1}, 0, v{a+1}''')
        for p in range(4):
            x = xf + 8 * tt + 2 * p
            k(f'v_pk_fma_f32 {P(x)}, {P(x)}, {P(a)}, {P(a)} op_sel:[0,1,0] op_sel_hi:[1,1,0]')
        for p in range(4):
            x = xf + 8 * tt + 2 * p
            k(f'v_cvt_pk_bf16_f32 v{hf+4*tt+p}, v{x}, v{x+1}')

    def twid(lb):
        r = []
        for jj in range(2):
            z = acc + 4 * lb + 2 * jj
            o = xf + 4 * (jj + 2 * (lb & 1))
            c = tw + 2 * lb - 2
            if lb == 0:
                r.append(f'v_cvt_pk_bf16_f32 v{o+2}, v{z}, v{z+1}')
            elif OPT['tw1'] & 1:
                r += [f'v_mul_f32 v{o}, v{z}, v{c}', f'v_mul_f32 v{o+1}, v{z+1}, v{c}',
                      f'v_fmac_f32 v{o}, v{z+1}, v{c+1}', f'v_fma_f32 v{o+1}, -v{z}, v{c+1}, v{o+1}',
                      f'v_cvt_pk_bf16_f32 v{o+2}, v{o}, v{o+1}']
            else:
                r += [f'v_pk_mul_f32 {P(o)}, {P(z)}, {P(c)} op_sel_hi:[1,0]',
                      f'v_pk_fma_f32 {P(o)}, {P(z)}, {P(c)}, {P(o)} op_sel:[1,1,0] op_sel_hi:[0,1,1] neg_hi:[1,0,0]',
                      f'v_cvt_pk_bf16_f32 v{o+2}, v{o}, v{o+1}']
            r.append(f'ds_write_b32 v{t}, v{o+2} offset:{(8*lb+jj)*288}')
        return r
    order = [1, 2, 3, 4, 0]
    pend = []
    for x, lb in enumerate(order):
        if x >= 2:
            pend += twid(order[x - 2])
        for tt in range(3):
            a = acc + 4 * lb
            k(f'{MF} {Q(a)}, {Q(mf+4*(3*lb+tt))}, {Q(hf+4*tt)}, ' + ('0' if tt == 0 else Q(a)))
            for _ in range(0 if OPT['tw1'] & 2 else (2 if OPT['tw1'] & 1 else (4 if tt < 2 else 0))):
                if pend:
                    k(pend.pop(0))
    for x in pend + twid(order[3]) + twid(order[4]):
        k(x)
    k.wait(lg=0)
    xmark(k, 'p1', 10)
    k('s_barrier')
    xmark(k, 'p1', 11)
    ef = mf
    for tt in range(3):
        for T in range(4):
            k(f'ds_read_b128 {Q(ef+4*(4*tt+T))}, v{t+1} offset:{16*288*tt+64*T}')
    pend = []
    for tt in range(3):
        for T in range(4):
            for ri in range(2):
                a = acc + 8 * tt + 4 * ri
                k(f'{MF} {Q(a)}, {Q(F64+8*T+4*ri)}, {Q(ef+4*(4*tt+T))}, ' + ('0' if T == 0 else Q(a)))
                if T >= 2 and pend:
                    k(pend.pop(0))
        for x in pend:
            k(x)
        o = hf + 4 * tt
        pend = [f'v_cvt_pk_bf16_f32 v{o+j}, v{acc+8*tt+j}, v{acc+8*tt+4+j}' for j in range(4)]
        st_prev = f'buffer_store_dwordx4 {Q(st+4*(tt-1))}, v{t+1+tt}, {WS}, 0 offen sc1'
        pend.append(f'ds_write_b128 v{t+9}, {Q(o)} offset:{1024*tt}\nds_read_b128 {Q(st+4*tt)}, v{t+10} offset:{1024*tt}')
        if tt:
            pend.append(st_prev)
    for x in pend:
        k(x)
    k(f'buffer_store_dwordx4 {Q(st+8)}, v{t+4}, {WS}, 0 offen sc1')
    if OPT['c2'] == 2:
        clr2()
    mark(k, 4)
    V.p = keep
    za = V(8); zf = V(48, 4); mf = V(60, 4); acc = V(24, 4); ef = V(12, 4); ad = V(8); zl = V(4); xf = V(18, 2)
    yf = zf + 20
    assert za + 8 <= st
    k(f'''v_lshrrev_b32 v{t}, 2, v1
    v_and_b32 v{t}, 2, v{t}
    v_xor_b32 v{t}, v{t}, v2
    v_lshlrev_b32 v{t}, 4, v{t}
    v_lshl_add_u32 v{t}, v1, 8, v{t}
    v_add_u32 v{t}, {L_Z}, v{t}
    v_and_b32 v{t+1}, 7, v1
    v_lshlrev_b32 v{t+1}, 8, v{t+1}
    v_lshl_add_u32 v{t+1}, v2, 4, v{t+1}
    v_add_u32 v{t+1}, {L_Z}, v{t+1}
    v_and_b32 v{t+5}, 3, v1''')
    for T in range(4):
        k(f'''v_xor_b32 v{t+6}, {T}, v{t+5}
        v_lshl_add_u32 v{za+T}, v{t+6}, 6, v{t}
        v_lshl_add_u32 v{za+4+T}, v{t+6}, 6, v{t+1}''')
    k(f'''v_and_b32 v{t}, 7, v1
    v_mul_u32_u24 v{t}, {YROW}, v{t}
    v_lshl_add_u32 v{t}, v2, 4, v{t}
    s_lshl_b32 s48, s{sW}, 6
    s_add_u32 s48, s48, {L_Y}
    v_add_u32 v{t}, s48, v{t}
    v_lshrrev_b32 v{t+1}, 3, v1
    v_lshl_add_u32 v{ad+1}, v{t+1}, 8, v{t}
    v_cmp_gt_u32 vcc, 8, v1
    v_mov_b32 v{t+5}, {L_Y+8*YROW-2048}
    v_cndmask_b32 v{ad}, v{t+5}, v{t}, vcc
    v_lshrrev_b32 v{t+5}, 5, v0
    s_lshl_b32 s48, s{sW}, 1
    v_add_u32 v{t+5}, s48, v{t+5}
    v_and_b32 v{t+6}, 31, v0
    v_mul_u32_u24 v{t}, {YROW}, v{t+5}
    v_lshl_add_u32 v{t}, v{t+6}, 3, v{t}
    v_add_u32 v{ad+2}, {L_Y}, v{t}
    v_mul_u32_u24 v{t}, {XROW}, v{t+5}
    v_lshl_add_u32 v{t}, v{t+6}, 2, v{t}
    v_add_u32 v{ad+3}, {L_H}, v{t}
    v_mul_u32_u24 v{t}, 1152, v{t+5}
    v_lshl_add_u32 v{t}, v{t+6}, 2, v{t}
    v_add_u32 v{ad+7}, {L_Z}, v{t}
    v_lshlrev_b32 v{t}, 3, v{t+6}
    v_add_u32 v{ad+4}, {L_MOD}, v{t}
    v_add_u32 v{a576}, {L_MOD+256}, v{t}
    v_bfe_u32 v{t}, v0, 2, 2
    v_mul_u32_u24 v{t}, {XROW}, v{t}
    v_and_b32 v{t+1}, 3, v0
    v_lshl_add_u32 v{t}, v{t+1}, 3, v{t}
    v_lshl_add_u32 v{t}, v2, 5, v{t}
    s_lshl_b32 s48, s{sW}, 7
    s_add_u32 s48, s48, {L_H}
    v_add_u32 v{ad+5}, s48, v{t}
    v_add_u32 v{ad+6}, {L_MI}, v{la}
    v_min_u32 v{zl}, {31*16}, v{la}
    s_mul_i32 s48, s{sW}, 2560
    s_mul_i32 s66, s{sS2}, 10240
    s_add_u32 s66, s66, s48
    s_add_u32 s66, s66, {WS_T2}
    s_add_u32 s48, s48, {L_Z}
    v_add_u32 v{zl+1}, s48, v{la}
    v_add_u32 v{zl+2}, s48, v{zl}
    s_lshr_b32 s48, s{sJ}, 1
    s_lshl_b32 s48, s48, 12
    s_mul_i32 s49, s{sW}, 640
    s_add_u32 s48, s48, s49
    s_add_u32 s48, s48, {WS_FLAG + 0x8000}
    v_min_u32 v{zl+3}, {39*16}, v{la}
    v_add_u32 v{zl+3}, s48, v{zl+3}''')
    k.wait(0)
    if OPT.get('mk') != 'u':
        mark(k, 1)
    bar(k, 0)
    if OPT['wx'] == 1:
        warm_xch(k, t, ef)
    if not OPT['m1early']:
        gen_m1i(acc)
    if OPT['m1early'] == 2:
        L1 = k.lab()
        k(f's_cmp_lt_u32 s2, 202\ns_cbranch_scc1 {L1}')
        gen_m1i(acc)
        k.label(L1)
    k(f's_lshl_b32 s58, s{sW}, 10')
    k(f'''v_add_u32 v{t}, s58, v{la}
    v_add_u32 v{t+1}, 4096, v{t}
    v_min_u32 v{t+1}, {431*16}, v{t+1}
    v_min_u32 v{t+2}, {143*16}, v{t}
    v_add_u32 v{t+2}, {432*16}, v{t+2}
    s_mov_b32 s56, 0x0c0c0400
    s_mov_b32 s57, 0x04000c0c
    s_mov_b32 s58, {WS_MODB}
    s_mov_b32 s59, {WS_MODB+9216}
    s_mov_b32 s60, {WS_MODB+18432}''')
    mb = zf

    def modb_loads(rounds):
        return [f'buffer_load_dwordx4 {Q(mb+12*x+4*p)}, v{t+rd}, {WS}, s{58+p} offen sc1' for x, rd in enumerate(rounds) for p in range(2)]

    def modb_chk(n):
        def f():
            for x in range(2 * n):
                tag_check4(k, mb + 12 * (x >> 1) + 4 * (x & 1), t + 4, x == 0)
        return f

    def modb_sum(x, one):
        a = mb + 12 * x
        for j in range(8):
            k(f'v_and_b32 v{a+j}, 0xffffff00, v{a+j}')
        for p in (1,):
            k(f'v_pk_add_f32 {P(a)}, {P(a)}, {P(a+4*p)}\nv_pk_add_f32 {P(a+2)}, {P(a+2)}, {P(a+4*p+2)}')
        for j in range(4):
            k(f'v_cvt_pk_bf16_f32 v{a+j}, 0, v{a+j}')
        if one is not None:
            for j in range(4):
                k(f'v_add_f32 v{a+j}, v{a+j}, v{one}')
            for j in range(4):
                k(f'v_cvt_pk_bf16_f32 v{a+j}, 0, v{a+j}')

    def clear_h2():
        c0, n = spec_range(0)
        k(f'v_mov_b64 {P(ef)}, -1\nv_mov_b64 {P(ef+2)}, -1\ns_lshl_b32 s61, s2, 2\ns_add_u32 s61, s61, s{sW}')
        clear_loop(k, 61, 640, 72 * n, lambda: k(f's_lshl_b32 s48, s48, 10\ns_add_u32 s48, s48, {WS_H2 + c0*73728}'), ef, la)
    L1 = k.lab()
    k.wait(lg=0)
    k(f's_cmp_ge_u32 s{sR}, 20\ns_cbranch_scc1 {L1}')
    if OPT['sp1'] and OPT['cl3'] == 0:
        clear_h2()
        k.wait(0)
    k('s_barrier')
    if OPT['sp1'] and OPT['cl3'] == 1:
        clear_h2()
    k.label(L1)
    for l in modb_loads([0, 1]):
        k(l)
    L1 = k.lab()
    k(f's_cmp_ge_u32 s{sR}, 20\ns_cbranch_scc1 {L1}\ns_barrier')
    if OPT['sp1'] and OPT['cl3'] == 1:
        vm = k.vm
        bar(k, 4)
        k.vm = vm
    k.label(L1)
    L2 = k.lab()
    k.wait(0)
    modb_chk(2)()
    k(f's_cbranch_vccz {L2}')
    poll(k, modb_loads([0, 1]), modb_chk(2))
    k.label(L2)
    k(f'v_cmp_le_u32 vcc, {288*16}, v{t+1}\nv_cndmask_b32 v{t+4}, 0, 1.0, vcc')
    modb_sum(0, None)
    modb_sum(1, t + 4)
    k(f'''v_add_u32 v{t+4}, {L_MOD}, v{t}
    v_add_u32 v{t+5}, {L_MOD}, v{t+1}
    ds_write_b128 v{t+4}, {Q(mb)}
    ds_write_b128 v{t+5}, {Q(mb+12)}''')
    L2 = k.lab()
    k(f's_cmp_lg_u32 s2, 255\ns_cbranch_scc1 {L2}')
    k(f's_mov_b32 s50, {WS_MOD+2*2304}')
    k(f'buffer_store_dwordx4 {Q(mb)}, v{t}, {WS}, s50 offen sc1\nbuffer_store_dwordx4 {Q(mb+12)}, v{t+1}, {WS}, s50 offen sc1')
    mb += 24
    poll(k, modb_loads([2]), modb_chk(1))
    modb_sum(0, None)
    k(f'buffer_store_dwordx4 {Q(mb)}, v{t+2}, {WS}, s50 offen sc1')
    k.label(L2)
    for j in range(9):
        k(f'v_lshlrev_b32 v{xf+2*j}, 16, v{xr+j}\nv_and_b32 v{xf+2*j+1}, 0xffff0000, v{xr+j}')
    LN, LJ = k.lab(), k.lab()
    k(f's_cmp_ge_u32 s{sR}, 20\ns_cbranch_scc1 {LN}')
    for fi in range(15):
        k(f'ds_read_b128 {Q(mf+4*fi)}, v{ad+6} offset:{1024*fi}')
    bar(k, lg=0)
    k(f's_branch {LJ}')
    k.label(LN)
    bar(k, lg=0)
    for fi in range(15):
        k(f'ds_read_b128 {Q(mf+4*fi)}, v{ad+6} offset:{1024*fi}')
    if OPT['ec2'] != 2:
        wait_cue(k, 1, t)
    k.wait(lg=0)
    k.label(LJ)
    if OPT['ec2']:
        poll(k, [f'buffer_load_dword v{t}, v{zl+3}, {WS}, 0 offen sc1'], check_tags(k, [t]), masked=True)
    mark(k, 5)
    zi = ef
    poll(k, [f'buffer_load_dwordx4 {Q(zi+4*i)}, v{la if i<2 else zl}, {WS}, s66 offen offset:{1024*i} sc1' for i in range(3)],
         check_sent(k, [zi, zi + 4, zi + 8], t), masked=True, sleep=OPT['sl2'])
    for i in range(3):
        k(f'ds_write_b128 v{zl+1 if i<2 else zl+2}, {Q(zi+4*i)} offset:{1024*i}')
    mark(k, 6)
    bar(k, lg=0)
    xmark(k, 'p3', 1)
    xmark(k, 'q3', 1)
    for tt in range(3):
        for T in range(4):
            k(f'ds_read_b128 {Q(zf+4*(4*tt+T))}, v{za+T+(4 if tt==2 else 0)} offset:{4096*tt}')

    def twid3(tt):
        c = twi + 2 * tt
        if OPT['tw3'] & 1:
            r = []
            for j in range(4):
                re, im, o = acc + 8 * tt + j, acc + 8 * tt + 4 + j, t + 2 * j
                r.append([f'v_mul_f32 v{o}, v{re}, v{c}', f'v_mul_f32 v{o+1}, v{im}, v{c}',
                          f'v_fma_f32 v{o}, -v{im}, v{c+1}, v{o}', f'v_fmac_f32 v{o+1}, v{re}, v{c+1}',
                          f'v_cvt_pk_bf16_f32 v{ef+4*tt+j}, v{o}, v{o+1}'])
            return sum(r, [])
        r = [[], []]
        for p in range(2):
            re, im, o = acc + 8 * tt + 2 * p, acc + 8 * tt + 4 + 2 * p, t + 4 * p
            r[p] = [f'v_pk_mul_f32 {P(o)}, {P(re)}, {P(c)} op_sel_hi:[1,0]',
                    f'v_pk_mul_f32 {P(o+2)}, {P(im)}, {P(c)} op_sel_hi:[1,0]',
                    f'v_pk_fma_f32 {P(o)}, {P(im)}, {P(c)}, {P(o)} op_sel:[0,1,0] neg_lo:[1,0,0] neg_hi:[1,0,0]',
                    f'v_pk_fma_f32 {P(o+2)}, {P(re)}, {P(c)}, {P(o+2)} op_sel:[0,1,0]',
                    f'v_cvt_pk_bf16_f32 v{ef+4*tt+2*p}, v{o}, v{o+2}',
                    f'v_cvt_pk_bf16_f32 v{ef+4*tt+2*p+1}, v{o+1}, v{o+3}']
        return [r[p][2 * q + i] for q in range(3) for p in range(2) for i in range(2)]
    ya = zf
    s2m = [[f'{MF} {Q(acc+8*tt+4*ri)}, {Q(zf+4*(4*tt+T))}, {Q(F64+8*T+4*(1-ri))}, ' + ('0' if T == 0 else Q(acc + 8 * tt + 4 * ri))
            for T in range(4) for ri in range(2)] for tt in range(3)]
    jm = [[f'{MF} {Q(ya+4*mt)}, {Q(ef+4*tt)}, {Q(mf+4*(3*mt+tt))}, ' + ('0' if tt == 0 else Q(ya + 4 * mt))
           for mt in range(5)] for tt in range(3)]

    def weave(mm, vv, skip, per):
        for i, x in enumerate(mm):
            k(x)
            if i >= skip:
                for y in vv[:per]:
                    k(y)
                vv = vv[per:]
        return vv
    if OPT['tw3'] & 2:
        for x in s2m[0] + s2m[1] + s2m[2] + twid3(0) + twid3(1) + jm[0][:1] + twid3(2) + jm[0][1:] + jm[1] + jm[2]:
            k(x)
    else:
        n = len(twid3(0))
        weave(s2m[0], [], 0, 0)
        xmark(k, 'q3', 2)
        rest = weave(s2m[1], twid3(0), 4, 2)
        rest = weave(s2m[2], rest + twid3(1), 0, 2)
        xmark(k, 'q3', 3)
        for x in rest[:max(0, len(rest) - n)]:
            k(x)
        rest = weave(jm[0], rest[max(0, len(rest) - n):] + twid3(2), 0, 2)
        for x in rest[:max(0, len(rest) - n)]:
            k(x)
        rest = weave(jm[1], rest[max(0, len(rest) - n):], 0, 2)
        for x in rest + jm[2]:
            k(x)
        xmark(k, 'q3', 4)
    pos = {0: 0, 2: 2, 1: 4, 3: 6, 4: 8, 6: 10, 5: 12, 7: 14, 8: 16}

    def vec_reads(dst, va, vb, o):
        r = []
        for j in (0, 1, 4, 5):
            e = o // 256 + j
            r.append(f'ds_read2st64_b64 {Q(dst+pos[j])}, v{vb if e & 1 else va} offset0:{e//2} offset1:{e//2+1}')
        return r + [f'ds_read_b64 {P(dst+16)}, v{va} offset:{o+2048}']
    ga, cb, sb = F64, acc, mf
    if not OPT['yw']:
        for x in vec_reads(ga, ad + 4, a576, 0):
            k(x)
    for mt in range(5):
        k(f'ds_write_b128 v{ad+1 if mt<4 else ad}, {Q(ya+4*mt)} offset:{512*mt}')
    rd = vec_reads(cb, ad + 4, a576, 4608) + vec_reads(sb, ad + 4, a576, 2304)
    if OPT['yw']:
        rd = vec_reads(ga, ad + 4, a576, 0) + rd
        for x in rd[:OPT['yw']]:
            k(x)
        k.wait(lg=OPT['yw'])
        xmark(k, 'p3', 2)
        xmark(k, 'q3', 5)
        k('s_barrier')
        xmark(k, 'p3', 3)
        late = rd[OPT['yw']:]
    else:
        for x in rd:
            k(x)
        k.wait(lg=10)
    if not OPT['yw']:
        xmark(k, 'p3', 2)
        xmark(k, 'q3', 5)
        k('s_barrier')
        xmark(k, 'p3', 3)
        late = []
    for j in range(9):
        k(f'ds_read_b64 {P(yf+2*j)}, v{ad+2} offset:{256*j}')
    for x in late:
        k(x)
    k(f'''s_mul_i32 s48, s{sS2}, 9216
    s_lshl_b32 s49, s{sW}, 10
    s_add_u32 s48, s48, s49
    s_add_u32 s48, s48, {WS_H2}
    s_add_u32 s49, s48, 4096
    s_add_u32 s50, s48, 8192''')
    u = t + 6
    for j in range(9):
        k(f'v_pk_fma_f32 {P(xf+2*j)}, {P(yf+2*j)}, {P(ga+pos[j])}, {P(xf+2*j)}')
    stats(k, xf, u)
    for j in range(9):
        k(f'v_pk_fma_f32 {P(yf+2*j)}, {P(xf+2*j)}, {P(u+2)}, {P(u)} op_sel_hi:[1,0,0]')
    for j in range(9):
        k(f'v_pk_fma_f32 {P(yf+2*j)}, {P(yf+2*j)}, {P(cb+pos[j])}, {P(sb+pos[j])}')
    stats(k, yf, u)
    for j in range(9):
        k(f'v_pk_fma_f32 {P(yf+2*j)}, {P(yf+2*j)}, {P(u+2)}, {P(u)} op_sel_hi:[1,0,0]')
        k(f'v_cvt_pk_bf16_f32 v{xr+j}, v{yf+2*j}, v{yf+2*j+1}')
        if j & 1:
            k(f'ds_write2_b32 v{ad+3}, v{xr+j-1}, v{xr+j} offset0:{32*j-32} offset1:{32*j}')
    k(f'ds_write_b32 v{ad+3}, v{xr+8} offset:1024')
    k.wait(lg=0)
    xmark(k, 'p3', 4)
    k('s_barrier')
    xmark(k, 'p3', 5)
    for i in range(3):
        o = acc + 4 * i
        k(f'ds_read_b64_tr_b16 {P(o)}, v{ad+5} offset:{512*i}')
        k(f'ds_read_b64_tr_b16 {P(o+2)}, v{ad+5} offset:{512*i+4*XROW}')
    for i in range(2):
        k(f'buffer_store_dwordx4 {Q(acc+4*i)}, v{la}, {WS}, s{48+i} offen sc1')
    L1 = k.lab()
    k.wait(lg=0)
    k(f's_cmp_lg_u32 s{sW}, 0\ns_cbranch_scc1 {L1}')
    k(f'buffer_store_dwordx4 {Q(acc+8)}, v{la}, {WS}, s50 offen sc1')
    k.label(L1)
    mark(k, 7)
    for j in range(9):
        k(f'v_cvt_pk_bf16_f32 v{xr+j}, v{xf+2*j}, v{xf+2*j+1}')
    for j in range(0, 8, 2):
        k(f'ds_write2_b32 v{ad+7}, v{xr+j}, v{xr+j+1} offset0:{32*j} offset1:{32*j+32}')
    k(f'ds_write_b32 v{ad+7}, v{xr+8} offset:1024')
    bar(k, lg=0)
    V.p = base
    la2 = V(); t = V(8); vA0 = V(); vA40 = V(); vW0 = V(2); vA = V(); vA4 = V(); vW = V(2)
    fa = V(48, 4); fw = V(16, 4); rg = V(96, 4)
    V.p = 204
    acc = V(48, 4)

    def w_read_addr(extra):
        k(f'''v_lshrrev_b32 v{t}, 2, v0
        v_and_b32 v{t+1}, 7, v{t}
        s_lshl_b32 s59, s{sW}, 1
        s_add_u32 s59, s59, {extra}
        v_xor_b32 v{t+1}, s59, v{t+1}
        v_xor_b32 v{t+2}, 1, v{t+1}
        v_and_b32 v{t+3}, 3, v0
        v_lshlrev_b32 v{t+3}, 3, v{t+3}
        v_lshl_add_u32 v{t}, v{t}, 8, v{t+3}
        v_lshl_add_u32 v{vW0}, v{t+1}, 5, v{t}
        v_lshl_add_u32 v{vW0+1}, v{t+2}, 5, v{t}''')
    LN, LJ = k.lab(), k.lab()
    k(f's_cmp_ge_u32 s{sR}, 27\ns_cbranch_scc1 {LN}')
    w_read_addr(0)
    rg1 = [rg + 16 * x for x in range(6)]
    for x in preload_w(vW0, vW, list(enumerate(rg1))):
        k(x)
    if OPT['rf']:
        bar(k, lg=0)
    bar(k, 0, 0)
    nx = len(reg_stages(0)) - 6
    rgx = [188, fa + 24][:nx]
    k(f'''v_mul_u32_u24 v{vA0}, 1536, v2
    v_lshl_add_u32 v{vA0}, v1, 4, v{vA0}
    v_add_u32 v{vA0}, {L_ACT}, v{vA0}''')
    for nt in range(2):
        for p in range(2):
            a = acc + 4 * nt + 2 * p
            k(f'v_lshlrev_b32 v{a}, 16, v{bb+2*nt+p}\nv_and_b32 v{a+1}, 0xffff0000, v{bb+2*nt+p}')
    for mt in range(1, 6):
        for i in range(0, 8, 2):
            k(f'v_mov_b64 {P(acc+8*mt+i)}, {P(acc+i)}')
    if nx:
        k('s_barrier')
        for x in preload_w(vW0, vW, list(enumerate(rgx))):
            k(x)
        bar(k, lg=0)
    tag(k, 'touch c2')
    tag(k, 'region c2')
    ebl = OPT['ebl'] and (nx == 2 or OPT['single'])

    def u_addr():
        k(f'''s_lshl_b32 s48, s51, 2
        s_add_u32 s48, s48, s{sW}
        s_mul_i32 s48, s48, {4*9216}
        s_mul_i32 s49, s52, {96*16}
        s_add_u32 s48, s48, s49
        s_add_u32 s48, s48, {WS_U}
        v_mul_u32_u24 v{vA}, 9216, v2
        v_lshl_add_u32 v{vA}, v1, 4, v{vA}
        s_mov_b32 s60, {f32(-2*0.7978845608028654*0.044715*1.4426950408889634)}
        v_mov_b32 v{bb}, {f32(-2*0.7978845608028654*1.4426950408889634)}''')
    last = gemm_c(k, 6, 32, 5, 12288, vA0, None, vW0, vW, fa, fw, acc, rg1 + rgx, reg_stages(0), True,
                  at_end=lambda: ((u_addr() if ebl else None), k('s_barrier')),
                  single=nx == 2 or OPT['single'], slot0=nx, hold=ebl)
    for x in last[:OPT['ebl']] if ebl else []:
        k(x)
    last = last[OPT['ebl']:] if ebl else []
    mark(k, 8)
    if not ebl:
        u_addr()

    def gelu(mt):
        q = (rg if ebl else fa) + 8 * (mt & 1)
        o = fw + 4 * (mt & 1)
        a = acc + 8 * mt
        r = [f'v_pk_mul_f32 {P(q+i)}, {P(a+i)}, {P(a+i)}' for i in range(0, 8, 2)]
        r += [f'v_pk_fma_f32 {P(q+i)}, {P(q+i)}, s[60:61], {P(bb)} op_sel_hi:[1,0,0]' for i in range(0, 8, 2)]
        r += [f'v_pk_mul_f32 {P(q+i)}, {P(q+i)}, {P(a+i)}' for i in range(0, 8, 2)]
        r += [f'v_exp_f32 v{q+i}, v{q+i}' for i in range(8)]
        r += [f'v_pk_add_f32 {P(q+i)}, {P(q+i)}, 1.0 op_sel_hi:[1,0]' for i in range(0, 8, 2)]
        r += [f'v_rcp_f32 v{q+i}, v{q+i}' for i in range(8)]
        r += [f'v_pk_mul_f32 {P(q+i)}, {P(q+i)}, {P(a+i)}' for i in range(0, 8, 2)]
        r += [f'v_cvt_pk_bf16_f32 v{o+i}, v{q+2*i}, v{q+2*i+1}' for i in range(4)]
        r.append(f'buffer_store_dwordx4 {Q(o)}, v{vA}, {WS}, s48 offen offset:{256*mt} sc1')
        return r
    for mt in range(6):
        for i, x in enumerate(gelu(mt)):
            k(x)
            if last and i % 3 == 2:
                k(last.pop(0))
    assert not last
    mark(k, 9)
    k(f's_branch {LJ}')
    tag(k, 'region -')
    k.label(LN)
    k.fresh()
    bar(k, 0)
    srd(k, 40, pW1, S * F * 2)
    srd(k, 44, pW2, S * F * 2)
    k(f'''s_mul_i32 s56, s{sW}, 5
    s_add_u32 s56, s56, s{sR}
    s_sub_u32 s56, s56, 27
    s_add_u32 s57, s56, {OPT['pf2'] + 10*OPT['pf3'] + 27*OPT['pf7']}
    s_add_u32 s56, s56, {OPT['pf9']}''')
    pf_loop(k, 1, 57, 20, min(32 * OPT['nl'], OPT['pfw1']), t, 40)
    pf_loop(k, 2, 56, 20, min(OPT['pf5'], pf_split()[0] - 54 * OPT['pfa'] - 27 * OPT['su']), t + 4, 44)
    if OPT['wo']:
        srd(k, 40, pOUT, S * D * 2)
        k(f'''s_mul_i32 s56, s{sW}, 5
        s_add_u32 s56, s56, s{sR}
        s_sub_u32 s56, s56, 27
        s_lshl_b32 s56, s56, 1
        s_mul_i32 s57, s{sJ}, 36
        v_lshlrev_b32 v{t}, 7, v0''')
        for x in range(2):
            k(f'''s_add_u32 s48, s56, {x}
            s_min_u32 s48, s48, 35
            s_add_u32 s48, s48, s57
            s_lshl_b32 s48, s48, 13''')
            k.raw(f'    buffer_load_dword v{t+1}, v{t}, s[40:43], s48 offen {("", "", "nt", "sc1")[OPT["wo"]]}')
    k.wait(0)
    mark(k, 9)
    bar(k, 0)
    tag(k, 'region c2')
    tag(k, 'target')
    k.label(LJ)
    k('s_lshr_b32 s58, s53, 1')
    w_read_addr('s58')
    k('s_barrier')
    xmark(k, 'h4', 1)
    for x in preload_w(vW0, vW, [((2 + x) % 6, rg1[x]) for x in range(6)]):
        k(x)
    k.wait(lg=0)
    if OPT['rf2']:
        k('s_barrier')
    xmark(k, 'h4', 2)
    bar(k, 0)
    xmark(k, 'h4', 3)
    vAo, vA4g, vAx, og4 = vA0, vA40, vA, vA4
    accf = lambda mt, nt: (188 + 4 * (2 * mt + nt)) if 2 * mt + nt < 17 else 64
    og = 68
    free = quads(rg1, reg_stages(1), OPT['defer'])[1]
    assert len(free) >= 14
    sq = [free[3 * x:3 * x + 3] for x in range(3)]
    gq = free[9:14]
    x1 = fa
    qf = fa + 16
    oa = bb
    k(f'''s_and_b32 s58, s53, 1
    s_mul_i32 s48, s58, 1280
    s_sub_u32 s49, 1280, s48
    v_mul_u32_u24 v{t}, 2304, v2
    v_add_u32 v{t}, {L_ACT2}, v{t}
    v_lshl_add_u32 v{t+2}, v1, 4, v{t}
    v_add_u32 v{vAo}, s48, v{t+2}
    v_add_u32 v{vAx}, s49, v{t+2}
    s_lshl_b32 s48, s58, 3
    v_xor_b32 v{t+1}, s48, v1
    v_lshl_add_u32 v{vA4g}, v{t+1}, 4, v{t}
    v_add_u32 v{vA4g}, 1024, v{vA4g}
    v_lshlrev_b32 v{la2}, 4, v0''')
    k(f'v_lshlrev_b32 v{b2}, 16, v{b2}\nv_cmp_gt_u32 vcc, 32, v0\nv_cndmask_b32 v{t}, 0, v{b2}, vcc')
    for mt in range(9):
        for nt in range(2):
            a = accf(mt, nt)
            if nt == 0 and mt <= 4:
                for i in range(4):
                    k(f'v_mov_b32 v{a+i}, v{b2 if mt < 4 else t}')
            else:
                k(f'v_mov_b64 {P(a)}, 0\nv_mov_b64 {P(a+2)}, 0')
    srd(k, 44, pOUT, S * D * 2)
    k(f'''s_mul_i32 s48, s{sW}, {16*144}
    s_add_u32 s48, s48, {L_X1}
    v_mul_u32_u24 v{t}, 144, v1
    v_lshl_add_u32 v{t}, v2, 3, v{t}
    v_add_u32 v{t}, s48, v{t}
    v_add_u32 v{oa+3}, s48, v{la2}
    s_lshl_b32 s49, s58, 4
    v_add_u32 v{oa}, s49, v{t}
    s_lshl_b32 s49, s58, 7
    s_sub_u32 s49, 128, s49
    v_add_u32 v{t}, s49, v{t}
    v_cmp_gt_u32 vcc, 32, v0
    v_mov_b32 v{t+1}, {L_GB + 512}
    v_cndmask_b32 v{oa+1}, v{t+1}, v{t}, vcc
    v_lshlrev_b32 v{t}, 4, v2
    v_add_u32 v{t}, {L_GB}, v{t}
    s_lshl_b32 s49, s58, 5
    v_add_u32 v{oa+2}, s49, v{t}
    s_lshl_b32 s49, s58, 8
    s_sub_u32 s49, 256, s49
    v_add_u32 v{og4}, s49, v{t}
    s_lshl_b32 s48, s59, 4
    s_lshl_b32 s49, s54, 7
    s_add_u32 s48, s48, s49
    s_mul_i32 s48, s48, 1152
    s_mul_i32 s49, s55, 288
    s_add_u32 s62, s48, s49
    s_mul_i32 s49, s58, 144
    s_add_u32 s62, s62, s49''')
    for i in range(3):
        k(f'''v_add_u32 v{t}, {64*i}, v0
        v_mul_u32_u24 v{t+1}, 911, v{t}
        v_lshrrev_b32 v{t+1}, 13, v{t+1}
        v_mul_u32_u24 v{t+1}, {1152-144}, v{t+1}
        v_lshl_add_u32 v{og+i}, v{t}, 4, v{t+1}''')
    k(f'''v_cmp_gt_u32 vcc, 16, v0
    v_mov_b32 v{t+1}, {OOB}
    v_cndmask_b32 v{og+2}, v{t+1}, v{og+2}, vcc
    s_mul_i32 s48, s{sW}, {XW}
    s_add_u32 s48, s48, {WS_XCH}
    s_mul_i32 s64, s2, {XB}
    s_add_u32 s64, s64, s48
    v_and_b32 v{t}, 3, v0
    v_cmp_eq_u32 vcc, 0, v{t}
    v_lshlrev_b32 v27, 2, v0
    v_cndmask_b32 v26, v{t+1}, v27, vcc
    s_mul_i32 s49, s{sW}, {2*XW}
    s_add_u32 s49, s49, {L_S}
    v_add_u32 v71, s49, v{la2}''')
    if OPT['xc'] == 3:
        k(f'v_mov_b64 {P(72)}, -1')
    else:
        k(f'v_add_u32 v72, {4*AST2}, v{vAo}\nv_add_u32 v75, {4*AST2}, v{vA4g}\nv_add_u32 v74, {4*AST2}, v{vAx}')
    for x in range(1, 4):
        k(f'''s_xor_b32 s{64+x}, s2, {2*x}
        s_mul_i32 s{64+x}, s{64+x}, {XB}
        s_add_u32 s{64+x}, s{64+x}, s48
        s_add_u32 s{64+x}, s{64+x}, {XM*(x-1)}''')
    cue = OPT['xcue']
    assert not cue
    if cue:
        k(f'''v_cmp_gt_u32 vcc, 8, v0
        v_cndmask_b32 v27, v{t+1}, v{la2}, vcc
        s_lshl_b32 s48, s{sW}, 7
        s_add_u32 s48, s48, {WS_XCUE}
        s_mul_i32 s61, s2, 1536
        s_add_u32 s61, s61, s48''')
        for x, r in ((1, 56), (2, 57), (3, 60)):
            k(f'''s_xor_b32 s{r}, s2, {2*x}
            s_mul_i32 s{r}, s{r}, 1536
            s_add_u32 s{r}, s{r}, s48
            s_add_u32 s{r}, s{r}, {512*(x-1)}''')
    mbox = [f'buffer_load_dwordx4 {Q(sq[0][c])}, v{la2}, {WS}, s64 offen offset:{1024*c} sc1' for c in range(2)] + \
           [f'buffer_load_dword v{sq[0][2]}, v27, {WS}, s64 offen offset:2048 sc1']
    sel = fw

    def g2_end():
        xmark(k, 'x', 2)
        k('s_barrier')
        xmark(k, 'x', 3)
        for mt in range(4):
            k(f'ds_read_b64 {P(x1+2*mt)}, v{oa} offset:{32*mt}\nds_read_b128 {Q(gq[mt])}, v{oa+2} offset:{64*mt}')
        k(f'ds_read_b64 {P(x1+8)}, v{oa+1}\nds_read_b128 {Q(gq[4])}, v{og4}')

    def message(x, nt, rows, r8):
        b, r = sq[x - 1], list(r8)
        r += [f'v_mov_b32_dpp v{b[2]+j}, v{b[2]} quad_perm:[{j},{j},{j},{j}] row_mask:0xf bank_mask:0xf' for j in (1, 2, 3)]
        for c in range(2):
            for i in range(4):
                a = accf(rows[2 * c + (i >> 1)], nt) + 2 * (i & 1)
                r.append(f'v_cvt_pk_bf16_f32 v{b[c]+i}, v{a}, v{a+1}')
            r.append(f'buffer_store_dwordx4 {Q(b[c])}, v{la2}, {WS}, s{64+x} offen offset:{1024*c} sc1')
        r.append(f'buffer_store_dwordx4 {Q(b[2])}, v26, {WS}, s{64+x} offen offset:2048 sc1')
        if cue:
            r.append(f'buffer_store_dwordx4 {Q(t+4)}, v27, {WS}, s{(56, 57, 60)[x-1]} offen sc1')
        return r

    def split4(nt, own, other):
        a = accf(4, nt)
        return [f'v_cvt_pk_bf16_f32 v{own}, v{a}, v{a+1}', f'v_cvt_pk_bf16_f32 v{other}, v{a+2}, v{a+3}',
                f'v_permlane32_swap_b32 v{own}, v{other}']

    def send_bc():
        if OPT.get('mk') != 'p1':
            mark(k, 10)
        if cue:
            for i in range(4):
                k(f'v_mov_b32 v{t+4+i}, v{vTAG}')
        s4 = split4(1, sq[1][2], sq[2][2])
        return message(3, 1, [5, 6, 7, 8], s4) + message(2, 1, [0, 1, 2, 3], [])

    def selectors():
        z, u = sel, t
        return [f'v_lshrrev_b32 v{u}, 2, v1', f'v_and_b32 v{u+1}, 1, v1', f'v_lshlrev_b32 v{u+1}, 4, v{u+1}',
                f'v_mov_b32 v{u+2}, 0x3f80', f'v_lshlrev_b32 v{u+1}, v{u+1}, v{u+2}',
                f'v_and_b32 v{u+2}, 2, v1', f'v_add_u32 v{u+3}, v{u}, v{u+2}',
                f'v_cmp_eq_u32 vcc, v{u}, v2', f'v_cndmask_b32 v{z+4}, 0, v{u+1}, vcc',
                f'v_cmp_eq_u32 vcc, v{u+3}, v2', f'v_cndmask_b32 v{z}, 0, v{u+1}, vcc',
                f'v_cmp_gt_u32 vcc, 8, v1', f'v_cndmask_b32 v{z}, 0, v{z}, vcc',
                f'v_cmp_eq_u32 vcc, 0, v{u+2}', f'v_cndmask_b32 v{z+5}, v{z+4}, 0, vcc', f'v_cndmask_b32 v{z+4}, 0, v{z+4}, vcc',
                f'v_mov_b32 v{z+1}, v{z}', f'v_mov_b64 {P(z+2)}, 0', f'v_mov_b64 {P(z+6)}, 0']
    send_a = lambda: (xmark(k, 'x', 1), message(1, 0, [5, 6, 7, 8], split4(0, t + 3, sq[0][2])) + selectors())[1]
    tag(k, 'touch c3')
    tag(k, 'region c3')
    fill, drain = {}, None
    if OPT['xc'] == 3:
        c0, cn = OPT['xclr']
        k(f'''v_mov_b64 {P(74)}, -1
        s_mul_i32 s63, s2, {XB}
        s_lshl_b32 s48, s{sW}, 10
        s_add_u32 s63, s63, s48
        s_add_u32 s63, s63, {WS_XCH}
        s_cmp_eq_u32 s{sW}, 3
        s_cselect_b32 s56, {5*4096}, {6*4096}'''.replace('s_cselect_b32 s56, 20480, 24576', 's_cselect_b32 s56, 4096, 0\ns_sub_u32 s56, 24576, s56'))
        for x in range(7):
            q = 2 * c0 + x * 2 * cn // 7
            so = f's_add_u32 s57, s63, {4096*x}' if x < 6 else 's_add_u32 s57, s63, s56'
            fill.setdefault(q, []).extend([so, f'buffer_store_dwordx4 {Q(72)}, v{la2}, {WS}, s57 offen sc1'])
        drain = 2 * OPT['xrdy'][0]
    gemm2_c(k, vAo, vAx, vA4g, vW0, vW, fa, fw, accf, rg1, reg_stages(1), OPT['defer'], send_bc, send_a, g2_end, fill, drain, (72, 75, 74))

    def add_message(q0, th):
        for i in range(4):
            a = accf(i, 0)
            k(f'{MF} {Q(a)}, {Q(sel + (4 if i % 2 == 0 else 2))}, {Q(q0[i >> 1])}, {Q(a)}')
        if th is not None:
            a = accf(4, 0)
            k(f'{MF} {Q(a)}, {Q(sel)}, {Q(th)}, {Q(a)}')
    k(f's_mul_i32 s49, s{sW}, {2*XW}\ns_add_u32 s49, s49, {L_S}\nv_add_u32 v73, s49, v27')
    for i in range(10):
        k(f'v_lshlrev_b32 v{qf+2*i}, 16, v{x1+i}\nv_and_b32 v{qf+2*i+1}, 0xffff0000, v{x1+i}')
    xmark(k, 'x', 4)
    k.wait(0)
    if OPT.get('mk') != 'p1':
        mark(k, 11)
    if cue == 1:
        k(f'v_mov_b32 v{t}, 0')
        poll(k, [f'buffer_load_dword v{t+1}, v{t}, {WS}, s61 offen sc1'], check_tags(k, [t + 1]), sleep=OPT['xsl'])
    k(f'v_mov_b32 v{sq[0][2]+1}, 0\nv_mov_b64 {P(sq[0][2]+2)}, 0\nv_mov_b64 {P(sq[1][2]+2)}, 0')
    for l in mbox:
        k(l)
    k('s_barrier')
    xmark(k, 'x', 5)
    for x in range(2):
        for c in range(2):
            k(f'ds_read_b128 {Q(sq[x+1][c])}, v71 offset:{XW*x+1024*c}')
    k(f'ds_read_b32 v{sq[1][2]}, v73 offset:2048\nds_read_b32 v{sq[1][2]+1}, v73 offset:{XW+2048}')
    add_message(sq[1], None)
    add_message(sq[2], sq[1][2])
    k.wait(0)
    L1 = k.lab()
    sent = check_sent(k, sq[0], t)
    sent()
    k(f's_cbranch_vccz {L1}')
    poll(k, mbox, sent, masked=True)
    k.label(L1)
    xmark(k, 'x', 6)
    add_message(sq[0], sq[0][2])
    for mt in (0, 1, 2, 3, 4):
        q, a = qf + 4 * mt, accf(mt, 0)
        for p in range(2):
            k(f'v_pk_fma_f32 {P(q+2*p)}, {P(a+2*p)}, {P(gq[mt]+2*p)}, {P(q+2*p)}')
        for p in range(2):
            k(f'v_cvt_pk_bf16_f32 v{x1+2*mt+p}, v{q+2*p}, v{q+2*p+1}')
        k(f'ds_write_b64 v{oa}, {P(x1+2*mt)} offset:{32*mt}' if mt < 4 else f'ds_write_b64 v{oa+1}, {P(x1+8)}')
    xmark(k, 'x', 7)
    if OPT.get('outlin'):
        k(f's_mul_i32 s62, s2, 9216\ns_mul_i32 s48, s{sW}, 2304\ns_add_u32 s62, s62, s48')
        k(f'v_mov_b32 v{og}, v{la2}\nv_add_u32 v{og+1}, 1024, v{la2}\nv_add_u32 v{t}, 2048, v{la2}\nv_cmp_gt_u32 vcc, 16, v0\nv_mov_b32 v{t+1}, {OOB}\nv_cndmask_b32 v{og+2}, v{t+1}, v{t}, vcc')
    for i in range(3):
        k(f'ds_read_b128 {Q(gq[i])}, v{oa+3} offset:{1024*i}')
    for i in range(3):
        k(f'buffer_store_dwordx4 {Q(gq[i])}, v{og+i}, s[44:47], s62 offen {OPT["outflag"]}')
    k('s_branch L_end')


def gen_H(k):
    V = Alloc(4, 256)
    t = V(12); la = V(); fl = V(3, 1); wa = V(3, 1); sa_ = V(3, 1); c0 = V(2); mo = V(4); ones = V(4, 4)
    ld = V(16, 4); Fa = V(8, 4); Fai = V(8, 4); Fb = V(32, 4); Fbi = V(32, 4)
    wv = V(32, 4); acc = V(32, 4); pk = V(16, 4); a0 = V(); a1 = V(); a2 = V(); a3 = V(); a4 = V(); a5 = V(); g4 = V(); lf = V(); dum = V(4); wp = V(16, 4)
    g = acc
    k(f'v_lshlrev_b32 v{la}, 4, v0\nv_mov_b32 v{mo+2}, {OOB}\nv_mov_b32 v{t+8}, {OOB}\nv_mov_b32 v{fl+1}, {OOB}')
    k(f'''s_sub_u32 s63, 255, s2
    s_mul_i32 s62, s63, 171
    s_lshr_b32 s62, s62, 9
    s_mul_i32 s48, s62, 3
    s_sub_u32 s61, s63, s48''')

    def skip_unless(reg, val, op='lg'):
        L = k.lab()
        k(f's_cmp_{op}_u32 s{reg}, {val}\ns_cbranch_scc1 {L}')
        k.cond += 1
        return L

    def endif(L):
        k.cond -= 1
        k.label(L)

    def mod_addr(urgent, part=3):
        if part & 1:
            k(f'''v_lshrrev_b32 v{t}, 3, v0
        v_and_b32 v{t+1}, 7, v0
        v_and_b32 v{t+2}, 6, v{t}
        v_xor_b32 v{t+1}, v{t+1}, v{t+2}
        v_mul_u32_u24 v{t}, 6912, v{t}
        v_lshl_add_u32 v{t+8}, v{t+1}, 4, v{t}
        s_lshl_b32 s48, s61, 2
        s_add_u32 s48, s48, s{sW}
        s_mul_i32 s48, s48, {(48 if urgent else 72)*6912}
        s_lshl_b32 s49, s62, 7
        s_add_u32 s47, s48, s49
        s_lshl_b32 s50, s{sW}, 8
        v_lshl_add_u32 v{c0+1}, v0, 2, s50
        s_mul_i32 s49, s61, {384 if urgent else 576}
        v_add_u32 v{t+5}, s49, v{c0+1}
        v_add_u32 v{t+8}, s47, v{t+8}''')
        if not part & 2:
            return
        k(f'''v_lshrrev_b32 v{t}, 2, v0
        v_bfe_u32 v{t+1}, v{t}, 1, 2
        v_xor_b32 v{t+1}, s{sW}, v{t+1}
        v_lshlrev_b32 v{t+1}, 5, v{t+1}
        v_lshlrev_b32 v{t}, 7, v{t}
        v_and_b32 v{t+2}, 3, v0
        v_lshlrev_b32 v{t+2}, 3, v{t+2}
        v_add3_u32 v{mo}, v{t}, v{t+1}, v{t+2}
        v_lshlrev_b32 v{mo+1}, 3, v2
        v_add_u32 v{mo+1}, {L_SILU}, v{mo+1}''')
        if urgent:
            k(f'''s_mul_i32 s48, s{sW}, 3456
            s_mul_i32 s49, s61, 1152
            s_add_u32 s48, s48, s49
            s_lshl_b32 s49, s62, 6
            s_add_u32 s48, s48, s49
            s_add_u32 s48, s48, {WS_MODG}
            v_mul_u32_u24 v{t}, 13824, v2
            v_lshl_add_u32 v{t}, v1, 2, v{t}
            v_add_u32 v{mo+2}, s48, v{t}
            v_add_u32 v{mo+3}, {4*13824}, v{mo+2}''')
        else:
            k(f'''s_mul_i32 s49, s61, 9216
            s_lshl_b32 s50, s62, 8
            s_add_u32 s49, s49, s50
            s_lshl_b32 s50, s{sW}, 6
            s_add_u32 s49, s49, s50
            s_add_u32 s49, s49, {WS_MODB - 18*256}
            v_lshl_add_u32 v{t}, v1, 2, s49
            v_cmp_gt_u32 vcc, 16, v0
            v_mov_b32 v{t+1}, {OOB}
            v_cndmask_b32 v{mo+2}, v{t+1}, v{t}, vcc''')

    def mod_loads(n, i0, i1):
        if i0 == 0:
            k(f's_mul_i32 m0, s{sW}, {1024*n}\ns_mov_b32 s59, 0')
        for i in range(i0, i1):
            k(f'buffer_load_dwordx4 v{t+8}, s[40:43], s59 offen lds')
            if i < n - 1:
                k(f's_add_u32 m0, m0, 1024\ns_add_u32 s59, s59, {8*6912}')

    def c_load():
        srd(k, 44, pC, D * 2)
        k(f'buffer_load_dword v{c0}, v{t+5}, s[44:47], 0 offen')

    def mod_silu():
        k(f'''v_lshlrev_b32 v{t}, 16, v{c0}
        v_and_b32 v{t+1}, 0xffff0000, v{c0}
        v_mul_f32 v{t+2}, {f32(-1.4426950408889634)}, v{t}
        v_mul_f32 v{t+3}, {f32(-1.4426950408889634)}, v{t+1}
        v_exp_f32 v{t+2}, v{t+2}
        v_exp_f32 v{t+3}, v{t+3}
        v_add_f32 v{t+2}, 1.0, v{t+2}
        v_add_f32 v{t+3}, 1.0, v{t+3}
        v_rcp_f32 v{t+2}, v{t+2}
        v_rcp_f32 v{t+3}, v{t+3}
        v_mul_f32 v{t}, v{t}, v{t+2}
        v_mul_f32 v{t+1}, v{t+1}, v{t+3}
        v_cvt_pk_bf16_f32 v{c0}, v{t}, v{t+1}
        v_add_u32 v{c0+1}, {L_SILU}, v{c0+1}
        ds_write_b32 v{c0+1}, v{c0}''')

    def mod_compute(urgent):
        c = k.cond
        k.cond = 0
        k.lg = []
        n = 6 if urgent else 9
        g = wv
        for stp in range(n):
            a = g + stp * 8
            k(f'''ds_read_b64_tr_b16 {P(a)}, v{mo} offset:{stp*4096}
            ds_read_b64_tr_b16 {P(a+2)}, v{mo} offset:{stp*4096+2048}
            ds_read2_b64 {Q(a+4)}, v{mo+1} offset0:{stp*8} offset1:{stp*8+4}''')
        k(f'v_and_b32 v{t}, 3, v1\nv_or_b32 v{t}, 0x07060500, v{t}')
        for stp in range(n):
            a = g + stp * 8
            k(f'{MF} {Q(ld)}, {Q(a+4)}, {Q(a)}, ' + ('0' if stp == 0 else Q(ld)))
        k(f'v_add_u32 v{ld+4}, 0x80, v{ld}\nv_perm_b32 v{ld+4}, v{ld+4}, v{vTAG}, v{t}')
        k.cond = c
        if urgent:
            k.wait(OPT['warm'])
        for a in range(OPT['nm'] if urgent else 1):
            k(f's_mov_b32 s48, {a*0x20000}')
            for i in range(2 if urgent else 1):
                k(f'buffer_store_dword v{ld+4}, v{mo+2+i}, {WS}, s48 offen sc1')

    def wp_addr():
        k(f'''s_lshl_b32 s67, s{sJ}, 4
        s_add_u32 s67, s67, s{sR}
        s_and_b32 s67, s67, 127
        s_lshl_b32 s48, s{sW}, 9
        s_add_u32 s48, s48, s67
        s_mul_i32 s69, s{sW}, 6144
        s_add_u32 s69, s69, {L_WST}
        s_cmp_eq_u32 s67, 0
        s_cselect_b32 s68, 38, 0
        s_add_u32 s68, s68, 152
        v_mov_b32 v{t+4}, {OOB}''')
        for i in range(3):
            k(f'''v_add_u32 v{t}, {64*i}, v0
            v_mul_u32_u24 v{t+1}, 1725, v{t}
            v_lshrrev_b32 v{t+1}, 16, v{t+1}
            v_mul_u32_u24 v{t+2}, 38, v{t+1}
            v_sub_u32 v{t+2}, v{t}, v{t+2}
            v_cmp_gt_u32 vcc, s68, v{t}
            v_lshl_add_u32 v{t+1}, v{t+1}, 7, s48
            v_and_b32 v{t+1}, 2047, v{t+1}
            v_mul_u32_u24 v{t+1}, 578, v{t+1}
            v_and_b32 v{t+1}, 0xfffffff0, v{t+1}
            v_lshl_add_u32 v{t+1}, v{t+2}, 4, v{t+1}
            v_cndmask_b32 v{wa+i}, v{t+4}, v{t+1}, vcc''')

    def wp_gather():
        k(f'''s_lshl_b32 s48, s67, 1
        s_and_b32 s48, s48, 15
        s_add_u32 s48, s48, s69
        v_and_b32 v{t}, 1, v2
        v_lshrrev_b32 v{t+1}, 1, v2
        v_mul_u32_u24 v{t+2}, 144, v{t}
        v_mad_u32_u24 v{t+2}, v1, 9, v{t+2}
        v_add_lshl_u32 v{t+2}, v{t+2}, v{t+1}, 1
        v_add_u32 v{wa}, s48, v{t+2}
        s_cmp_eq_u32 s67, 0
        s_cselect_b32 s49, 608, 0
        s_add_u32 s48, s48, s49
        s_add_u32 s48, s48, {576-8}
        v_sub_u32 v{wa+1}, s48, v{t+2}
        v_lshl_add_u32 v{t}, v{t+1}, 5, v{t}
        v_lshlrev_b32 v{t}, 14, v{t}
        v_lshl_add_u32 v{sa_}, v1, 4, v{t}
        v_add_u32 v{sa_+1}, {64<<14}, v{sa_}
        v_add_u32 v{sa_+2}, {128<<14}, v{sa_}
        v_cmp_gt_u32 vcc, 32, v0
        v_mov_b32 v{t+4}, {OOB}
        v_cndmask_b32 v{sa_+2}, v{t+4}, v{sa_+2}, vcc
        s_lshl_b32 s48, s67, 2
        s_add_u32 s48, s48, s{sW}
        s_lshl_b32 s48, s48, 4
        s_add_u32 s48, s48, {WS_FLAG}
        v_writelane_b32 v{fl+1}, s48, 0''')
        if OPT['warm']:
            k(f'buffer_load_dword v{dum+2}, v{fl+1}, {WS}, 0 offen')
        for refl in range(2):
            if refl == 0:
                k(f's_mov_b32 s48, s67\ns_mov_b32 s49, s{sW}')
            else:
                k(f's_sub_u32 s48, 128, s67\ns_and_b32 s48, s48, 127\ns_sub_u32 s49, 3, s{sW}')
            k(f'''s_and_b32 s50, s48, 7
            s_lshr_b32 s48, s48, 3
            s_lshl_b32 s58, s50, 16
            s_lshl_b32 s59, s48, 10
            s_add_u32 s58, s58, s59
            s_lshl_b32 s59, s49, 8
            s_add_u32 s58, s58, s59
            s_add_u32 s{56+refl}, s58, {WS_WP + refl*(2<<14)}''')

    def wp_run():
        c = k.cond
        k.cond = 0
        k.lg = []
        g = wv
        for refl in range(2):
            for i in range(3):
                r = g + 24 * refl + 8 * i
                for j in range(4):
                    o = 608 * j + 4 * i if refl == 0 else 608 * (3 - j) + 8 - 4 * i
                    k(f'ds_read_u16 v{r+j}, v{wa+refl} offset:{o}\nds_read_u16 v{r+4+j}, v{wa+refl} offset:{3072+o}')
        k.cond = c
        for refl in range(2):
            for i in range(3):
                r = g + 24 * refl + 8 * i
                for j in range(4):
                    k(f'v_lshl_or_b32 v{r+j}, v{r+4+j}, 16, v{r+j}')
                for j in range(4 * refl):
                    k(f'v_xor_b32 v{r+j}, 0x80000000, v{r+j}')
                k(f'buffer_store_dwordx4 {Q(r)}, v{sa_+i}, {WS}, s{56+refl} offen sc1')

    def wp_loads():
        srd(k, 52, pWR, S * 578)
        srd(k, 56, pWI, S * 578)
        for arr in range(2):
            for i in range(3):
                k(f's_add_u32 m0, s69, {3072*arr+1024*i}')
                k(f'buffer_load_dwordx4 v{wa+i}, s[{52+4*arr}:{55+4*arr}], 0 offen lds')

    def flag_addr():
        k(f'''s_lshr_b32 s51, s{sR}, 2
        s_lshl_b32 s51, s51, 3
        s_add_u32 s51, s51, s{sJ}
        s_and_b32 s60, s{sR}, 3
        s_lshl_b32 s35, s51, 2
        s_add_u32 s35, s35, s60
        s_lshl_b32 s35, s35, 14
        s_bfe_u32 s48, s{sS2}, 0x20002
        s_lshl_b32 s48, s48, 6
        s_lshr_b32 s49, s{sS2}, 4
        s_lshl_b32 s49, s49, 2
        s_add_u32 s48, s48, s49
        s_and_b32 s49, s{sS2}, 3
        s_add_u32 s48, s48, s49
        s_lshl_b32 s48, s48, {OPT['fs']}
        s_lshl_b32 s49, s{sW}, 16
        s_add_u32 s48, s48, s49
        s_add_u32 s48, s48, {WS_FL2}
        v_mov_b32 v{fl}, {OOB}''')
        for a in range(OPT['na']):
            k(f'v_writelane_b32 v{fl}, s48, {a}\ns_add_u32 s48, s48, 16384')
        k(f'''s_add_u32 s48, s2, 160
        s_lshl_b32 s48, s48, 7
        s_add_u32 s48, s48, {WS_CUE+0x8000}
        s_lshl_b32 s49, s{sW}, 8
        s_add_u32 s49, s49, s{sR}
        s_cmp_lt_u32 s49, 12
        s_cselect_b32 s48, s48, {OOB}
        v_mov_b32 v{fl+2}, {OOB}
        v_writelane_b32 v{fl+2}, s48, 0
        s_or_b32 s48, s2, s{sW}
        s_cmp_eq_u32 s48, 0
        s_cselect_b32 s48, 0, {OOB}
        s_add_u32 s48, s48, {WS_EPOCH}
        v_writelane_b32 v{fl+2}, s48, 1''')
        if OPT['ec2']:
            k(f'''s_lshr_b32 s48, s35, 10
            s_lshl_b32 s49, s{sW}, 12
            s_add_u32 s48, s48, s49
            s_add_u32 s48, s48, {WS_FLAG + 0x8000}
            s_cmp_lt_u32 s{sR}, 20
            s_cselect_b32 s48, s48, {OOB}
            v_writelane_b32 v{fl+2}, s48, 2''')

    def warm(regs):
        if OPT['warm']:
            for i, r in enumerate(regs):
                k(f'buffer_load_dword v{dum+i}, v{r}, {WS}, 0 offen')

    def clear1():
        k(f's_lshl_b32 s48, s{sW}, 12\ns_add_u32 s48, s48, s35\ns_add_u32 s48, s48, {WS_T1}')
        for i in range(4):
            k(f'buffer_store_dwordx4 {Q(ones)}, v{la}, {WS}, s48 offen offset:{1024*i} sc1')

    def clear2():
        k(f'''v_min_u32 v{t+1}, {31*16}, v{la}
        s_mul_i32 s48, s{sW}, 2560
        s_mul_i32 s49, s{sS2}, 10240
        s_add_u32 s48, s48, s49
        s_add_u32 s48, s48, {WS_T2}''')
        for i in range(3):
            k(f'buffer_store_dwordx4 {Q(ones)}, v{la if i<2 else t+1}, {WS}, s48 offen offset:{1024*i} sc1')
    LGEN, LNP, LP2, LG, LQ = k.lab(), k.lab(), k.lab(), k.lab(), k.lab()
    L_A, L_B = L_WST, L_WST + 16 * 1040
    k(f's_cmp_ge_u32 s63, 54\ns_cbranch_scc1 {LGEN}')
    if OPT['up'] & 1:
        k('s_setprio 2')
    mod_addr(True, 1)
    k.wait(lg=0)
    srd(k, 40, pWM, D * 3456 * 2)
    mod_loads(6, 0, 6)
    c_load()
    srd(k, 36, pWS, WS_SIZE)
    load_tag(k, t + 3)
    mark(k, 11)
    if OPT['up'] == 3:
        k('s_setprio 0')
    mod_addr(True, 2)
    if OPT['prew']:
        k(f'v_mov_b32 v{t+1}, 0')
        for a in range(OPT['nm']):
            k(f's_mov_b32 s48, {a*0x20000}')
            for i in range(2):
                k(f'buffer_store_dword v{t+1}, v{mo+2+i}, {WS}, s48 offen sc1')
    flag_addr()
    warm([fl])
    k.wait(2 * OPT['nm'] * OPT['prew'] + OPT['warm'])
    mark(k, 10)
    if OPT['up'] & 2:
        k('s_setprio 2')
    mod_silu()
    finish_tag(k)
    mark(k, 1)
    bar(k, lg=0)
    mod_compute(True)
    mark(k, 2)
    xmark(k, 'u', 4)
    if OPT['a0']:
        k('s_barrier')
    k(f's_setprio 0\ns_mov_b32 s63, 999\ns_branch {LQ}')
    k.raw('; @cut')
    k.label(LGEN)
    k.fresh()
    k(f'''s_sub_u32 s61, s63, 54
    s_lshr_b32 s62, s61, 1
    s_add_u32 s62, s62, 18
    s_and_b32 s61, s61, 1''')

    def mats1():
        k(f'''v_cvt_f32_u32 v{g4}, v2
        v_mul_f32 v{g4}, 4.0, v{g4}
        v_cvt_f32_u32 v{lf}, v1
        v_cvt_f32_u32 v{t+9}, s{sJ}
        v_mul_f32 v{t+6}, {f32(1/16)}, v{lf}
        v_fmac_f32 v{t+6}, {f32(1/128)}, v{t+9}
        v_mul_f32 v{t+7}, v{g4}, v{t+6}''')
        dft_frag(k, t + 7, t + 6, Fa, Fa + 4, t, False)
        k(f'''s_lshl_b32 s48, s{sW}, 5
        s_add_u32 s48, s48, s{sJ}
        v_cvt_f32_u32 v{t+10}, s48
        v_mul_f32 v{t+10}, {f32(1/2048)}, v{t+10}
        v_mul_f32 v{t+6}, {f32(1/16)}, v{lf}
        v_add_f32 v{t+6}, v{t+6}, v{t+10}''')
        for tt in range(4):
            if tt:
                k(f'v_add_f32 v{t+6}, {f32(8/2048)}, v{t+6}')
            k(f'v_mul_f32 v{t+7}, v{g4}, v{t+6}')
            dft_frag(k, t + 7, t + 6, Fb + 8 * tt, Fb + 8 * tt + 4, t, False)

    def mats2():
        k(f'''v_mul_f32 v{t+6}, {f32(1/16)}, v{lf}
        v_fmac_f32 v{t+10}, {f32(1/16)}, v{g4}''')
        for tt in range(4):
            if tt:
                k(f'v_add_f32 v{t+10}, {f32(8/2048)}, v{t+10}')
            k(f'v_mul_f32 v{t+7}, v{lf}, v{t+10}')
            dft_frag(k, t + 7, t + 6, Fbi + 8 * tt, Fbi + 8 * tt + 4, t, True)
        k(f'''v_mul_f32 v{t+9}, {f32(1/128)}, v{t+9}
        v_fmac_f32 v{t+9}, {f32(1/16)}, v{g4}
        v_mul_f32 v{t+7}, v{lf}, v{t+9}''')
        dft_frag(k, t + 7, t + 6, Fai, Fai + 4, t, True)

    def p2_addr():
        k(f'''s_lshl_b32 s54, s{sW}, 8
        s_add_u32 s52, s35, s54
        s_add_u32 s52, s52, {WS_T1}
        s_lshl_b32 s53, s{sW}, 12
        s_add_u32 s53, s53, s35
        s_add_u32 s53, s53, {WS_WP}
        v_and_b32 v{t}, 3, v1
        v_lshrrev_b32 v{t+1}, 2, v1
        v_lshlrev_b32 v{t+2}, 6, v{t}
        v_lshl_add_u32 v{t+2}, v{t+1}, 4, v{t+2}
        v_lshl_add_u32 v{a5}, v2, 12, v{t+2}
        v_mul_u32_u24 v{a0}, 1040, v1
        v_lshl_add_u32 v{a0}, v2, 6, v{a0}
        v_add_u32 v{a0}, s54, v{a0}
        s_mul_i32 s48, s{sW}, {4*1040}
        v_add_u32 v{a2}, s48, v{la}
        v_lshl_add_u32 v{t+2}, v2, 2, v{t}
        v_mul_u32_u24 v{a3}, 1056, v{t+2}
        v_lshl_add_u32 v{a3}, v{t+1}, 4, v{a3}
        v_add_u32 v{a3}, s54, v{a3}
        s_mul_i32 s48, s{sW}, {4*1056}
        v_add_u32 v{a1}, s48, v{la}
        s_and_b32 s66, s51, 3
        s_xor_b32 s66, s66, s60
        s_lshl_b32 s66, s66, 6
        s_lshl_b32 s48, s51, 8
        s_add_u32 s66, s66, s48
        s_mul_i32 s48, s{sW}, {4*10240}
        s_add_u32 s66, s66, s48
        s_add_u32 s66, s66, {WS_T2}
        s_add_u32 s67, s66, {16*10240}
        s_add_u32 s68, s66, {32*10240}
        s_add_u32 s69, s66, {48*10240}
        s_lshr_b32 s48, s51, 2
        s_and_b32 s48, s48, 2
        v_xor_b32 v{t}, s48, v{t}
        v_lshl_add_u32 v{t+1}, v2, 6, v{t+1}
        v_mul_u32_u24 v{a4}, 10240, v{t+1}
        v_lshl_add_u32 v{a4}, v{t}, 4, v{a4}''')
    wl = f'buffer_load_dword v{fl+1}, v{t+11}, {WS}, s64 offen sc1'

    def wpre():
        k(f'''s_lshl_b32 s48, s{sW}, 5
        s_add_u32 s48, s48, s{sJ}
        v_lshrrev_b32 v{t+4}, 2, v1
        v_lshl_add_u32 v{t+4}, v{t+4}, 3, s48
        s_cmp_lt_u32 s60, 2
        s_cselect_b32 s48, 1, -1
        v_mul_i32_i24 v{t+4}, s48, v{t+4}
        v_and_b32 v{t+4}, 127, v{t+4}
        v_and_b32 v{t+3}, 3, v1
        v_lshl_add_u32 v{t+4}, v{t+4}, 2, v{t+3}
        v_lshlrev_b32 v{t+11}, 4, v{t+4}
        s_mov_b32 s64, {WS_FLAG}''')
        L1 = skip_unless(sR, 20, 'ge')
        k(wl)
        endif(L1)

    def wpost():
        p2_addr()
        k(f'''s_lshr_b32 s65, s{sJ}, 1
        s_lshl_b32 s65, s65, 16
        s_add_u32 s65, s65, {WS_FL2}
        s_lshl_b32 s48, s{sW}, {6+OPT['fs']}
        s_add_u32 s65, s65, s48
        v_lshlrev_b32 v{g4}, {OPT['fs']}, v0''')
    LB, LJ = k.lab(), k.lab()
    k(f's_cmp_ge_u32 s{sR}, 16\ns_cbranch_scc1 {LB}')
    wp_addr()
    k.wait(lg=0)
    srd(k, 36, pWS, WS_SIZE)
    srd(k, 40, pWM, D * 3456 * 2)
    load_tag(k, t)
    flag_addr()
    warm([fl, fl + 2])

    def clear_xch():
        k(f'''v_mov_b64 {P(ones)}, -1
        v_mov_b64 {P(ones+2)}, -1
        s_lshl_b32 s61, s2, 2
        s_add_u32 s61, s61, s{sW}
        s_mul_i32 s61, s61, {14*1024}
        s_add_u32 s61, s61, {WS_XCH}''')
        for i in range(14):
            k(f'buffer_store_dwordx4 {Q(ones)}, v{la}, {WS}, s61 offen offset:{1024*(i&3)} sc1')
            if i & 3 == 3:
                k('s_add_u32 s61, s61, 4096')
    if OPT['xc'] == 1:
        clear_xch()
    if OPT['wat'] == 0:
        wp_loads()
    if OPT['wat'] >= 2:
        mats1()
    if OPT['wat'] == 3:
        wp_loads()
    mark(k, 1)
    k('s_barrier')
    if OPT['pf1']:
        srd(k, 44, pW1, S * F * 2)
        k(f's_lshl_b32 s61, s{sW}, 4\ns_add_u32 s61, s61, s{sR}')
        pf_loop(k, 1, 61, 64, 16 * OPT['pf1'], ld, 44)
    if OPT['wat'] in (1, 2):
        wp_loads()
    if OPT['xc'] == 2:
        clear_xch()
    wp_gather()
    if OPT['wat'] < 2:
        mats1()
    k.wait(0)
    mark(k, 10)
    finish_tag(k)
    wp_run()
    mark(k, 2)
    k(f's_branch {LQ}')
    k.label(LB)
    k.fresh()
    mod_addr(False)
    k.wait(lg=0)
    srd(k, 36, pWS, WS_SIZE)
    srd(k, 40, pWM, D * 3456 * 2)
    load_tag(k, t)
    c_load()
    flag_addr()
    warm([fl, fl + 2, mo + 2])
    L1 = skip_unless(63, 126, 'ge')
    mod_loads(9, 0, OPT['mb'])
    endif(L1)
    mark(k, 1)
    k('s_barrier')
    k.wait(0)
    L1 = skip_unless(63, 126, 'ge')
    mod_loads(9, OPT['mb'], 9)
    endif(L1)
    finish_tag(k)
    mod_silu()
    L1 = skip_unless(sR, 20, 'ge')
    mats1()
    endif(L1)
    k.label(LQ)
    k.fresh()
    mark(k, 3)
    bar(k, lg=0)
    L1 = skip_unless(sR, 20, 'ge')
    if OPT['wfl']:
        k.wait(0)
        k(f'buffer_store_dword v{vTAG}, v{fl+1}, {WS}, 0 offen sc1')
    mats2()
    endif(L1)
    tag(k, 'touch h1')
    tag(k, 'region h1')
    k.wait(0)
    if OPT['wearly']:
        wpre()
    mark(k, 2)
    k('s_barrier')
    if OPT.get('mk') != 'u':
        mark(k, 10)
    k(f'buffer_store_dword v{vTAG}, v{fl}, {WS}, 0 offen sc1')
    L1 = skip_unless(63, 126, 'ge')
    mod_compute(False)
    endif(L1)
    k(f's_cmp_lt_u32 s{sR}, 20\ns_cbranch_scc1 {LP2}')
    srd(k, 52, pW1, S * F * 2)
    k(f'''s_mul_i32 s58, s{sW}, 12
    s_add_u32 s58, s58, s{sR}
    s_add_u32 s58, s58, {16*OPT['pf1'] - 20}''')
    if OPT['pfd']:
        k.wait(0)
    if OPT['pfd'] > 1:
        k(f's_sleep {OPT["pfd"]}')
    pf_loop(k, 1, 58, 48, OPT['pf2'], dum, 52)
    if OPT['pf9']:
        srd(k, 64, pW2, S * F * 2)
        k(f'''s_mul_i32 s59, s{sW}, 12
        s_add_u32 s59, s59, s{sR}
        s_sub_u32 s59, s59, 20''')
        pf_loop(k, 2, 59, 48, OPT['pf9'], dum, 64)
    k.wait(0)
    mark(k, 5)
    k('s_barrier')
    k(f's_branch {LG}')
    tag(k, 'target')
    k.label(LP2)
    k.fresh()
    if OPT['hp']:
        k('s_setprio 1')
    unp = [f'v_lshlrev_b32 v{wv+8*(x>>2)+(x&3)}, 16, v{wp+x}\nv_and_b32 v{wv+8*(x>>2)+4+(x&3)}, 0xffff0000, v{wp+x}' for x in range(16)]
    if OPT['wfl']:
        if not OPT['wearly']:
            wpre()
        wpost()
        if OPT['wearly']:
            k.wait(1)
        L1 = k.lab()
        check_tags(k, [fl + 1])()
        k(f's_cbranch_vccz {L1}')
        poll(k, [wl], check_tags(k, [fl + 1]))
        k.label(L1)
        for tt in range(4):
            k(f'buffer_load_dwordx4 {Q(wp+4*tt)}, v{la}, {WS}, s53 offen offset:{1024*tt} sc1')
        k.wait({1: 0, 2: 3, 3: 4}[OPT['wfl']])
        mark(k, 11)
        poll(k, [f'buffer_load_dword v{t}, v{g4}, {WS}, s65 offen sc1'], check_tags(k, [t]), masked=True, alt=([65], 16384, OPT['na']))
        mark(k, 1)
        for j in range(4):
            k(f'buffer_load_dwordx4 {Q(ld+4*j)}, v{a5}, {WS}, s52 offen offset:{1024*j} sc1')
        for x in unp:
            k(x)
        unp = [''] * 16
        if OPT['stamp']:
            k.wait(0)
    else:
        p2_addr()
        k(f'''s_lshr_b32 s64, s{sJ}, 1
        s_lshl_b32 s64, s64, 16
        s_add_u32 s64, s64, {WS_FL2}
        s_lshl_b32 s48, s{sW}, {6+OPT['fs']}
        s_add_u32 s65, s64, s48
        v_lshlrev_b32 v{t+1}, {OPT['fs']}, v0
        s_lshl_b32 s48, s{sW}, 5
        s_add_u32 s48, s48, s{sJ}
        v_and_b32 v{t+2}, 3, v0
        v_lshl_add_u32 v{t+2}, v{t+2}, 3, s48
        s_cmp_lt_u32 s60, 2
        s_cselect_b32 s48, 1, -1
        v_mul_i32_i24 v{t+2}, s48, v{t+2}
        v_bfe_u32 v{t+3}, v{t+2}, 2, 2
        v_bfe_u32 v{t+4}, v{t+2}, 4, 3
        v_and_b32 v{t+2}, 3, v{t+2}
        v_lshl_add_u32 v{t+2}, v{t+3}, 6, v{t+2}
        v_lshl_add_u32 v{t+2}, v{t+4}, 3, v{t+2}
        v_lshlrev_b32 v{t+2}, {OPT['fs']}, v{t+2}''')
        k.wait(0)
        mark(k, 11)
        poll(k, [f'buffer_load_dword v{t}, v{t+1}, {WS}, s65 offen sc1', f'buffer_load_dword v{t+3}, v{t+2}, {WS}, s64 offen sc1'],
             check_tags(k, [t, t + 3]), masked=True, alt=([64, 65], 16384, OPT['na']))
        mark(k, 1)
        for j in range(4):
            k(f'buffer_load_dwordx4 {Q(ld+4*j)}, v{a5}, {WS}, s52 offen offset:{1024*j} sc1')
        for tt in range(4):
            k(f'buffer_load_dwordx4 {Q(wp+4*tt)}, v{la}, {WS}, s53 offen offset:{1024*tt} sc1')
    if OPT['stamp']:
        k.wait(4)
    mark(k, 4)
    for i in range(4):
        for j in range(i + 1, 4):
            k(f'v_swap_b32 v{ld+4*i+j}, v{ld+4*j+i}')
        for ri in range(2):
            k(f'{MF} {Q(acc+8*i+4*ri)}, {Q(ld+4*i)}, {Q(Fa+4*ri)}, 0')
    for ci in range(4):
        for j in range(4):
            k(f'v_cvt_pk_bf16_f32 v{pk+4*ci+j}, v{acc+8*ci+j}, v{acc+8*ci+4+j}')
        k(f'ds_write_b128 v{a0}, {Q(pk+4*ci)} offset:{L_A+16*ci}')
    bar(k, lg=0)
    for tt in range(4):
        k(f'ds_read_b128 {Q(ld+4*tt)}, v{a2} offset:{L_A+1040*tt}')
    cue = f'buffer_store_dword v{vTAG}, v{fl+2}, {WS}, 0 offen sc1'
    if OPT['cue_at'] == 0:
        k(cue)
    for x in unp[:8]:
        k(x)
    for tt in range(4):
        for ri in range(2):
            k(f'{MF} {Q(acc+8*tt+4*ri)}, {Q(Fb+8*tt+4*ri)}, {Q(ld+4*tt)}, 0')
            k(unp[8 + 2 * tt + ri])
    for tt in range(4):
        for p in range(2):
            re, im, wr, wi = acc + 8 * tt + 2 * p, acc + 8 * tt + 4 + 2 * p, wv + 8 * tt + 2 * p, wv + 8 * tt + 4 + 2 * p
            o = t + 4 * p
            k(f'''v_pk_mul_f32 {P(o)}, {P(re)}, {P(wr)}
            v_pk_mul_f32 {P(o+2)}, {P(im)}, {P(wr)}
            v_pk_fma_f32 {P(o)}, {P(im)}, {P(wi)}, {P(o)} neg_lo:[1,0,0] neg_hi:[1,0,0]
            v_pk_fma_f32 {P(o+2)}, {P(re)}, {P(wi)}, {P(o+2)}
            v_cvt_pk_bf16_f32 v{pk+4*tt+2*p}, v{o}, v{o+2}
            v_cvt_pk_bf16_f32 v{pk+4*tt+2*p+1}, v{o+1}, v{o+3}''')
            if tt:
                k(f'{MF} {Q(acc+8*(tt-1)+4*p)}, {Q(Fbi+8*(tt-1)+4*p)}, {Q(pk+4*(tt-1))}, 0')
            if OPT['cue_at'] == 4 and (tt, p) == (2, 1):
                k(cue)
    for tt in range(4):
        if tt == 1:
            for ri in range(2):
                k(f'{MF} {Q(acc+24+4*ri)}, {Q(Fbi+24+4*ri)}, {Q(pk+12)}, 0')
        for j in range(4):
            k(f'v_cvt_pk_bf16_f32 v{ld+4*j+tt}, v{acc+8*tt+j}, v{acc+8*tt+4+j}')
            if tt == 3:
                k(f'ds_write_b128 v{a3}, {Q(ld+4*j)} offset:{L_B+64*j}')
    bar(k, lg=0)
    for ci in range(4):
        k(f'ds_read_b128 {Q(pk+4*ci)}, v{a1} offset:{L_B+1056*ci}')
    if OPT['cue_at'] == 1:
        k(cue)
    for ci in range(4):
        for ri in range(2):
            k(f'{MF} {Q(acc+8*ci+4*ri)}, {Q(Fai+4*ri)}, {Q(pk+4*ci)}, 0')
    for ci in range(4):
        if ci == 3 and OPT['sp1'] and OPT['cl3'] == 1:
            k('s_barrier')
        for j in range(4):
            k(f'v_cvt_pk_bf16_f32 v{ld+4*j+ci}, v{acc+8*ci+4+j}, v{acc+8*ci+j}')
            if ci == 3:
                k(f'buffer_store_dwordx4 {Q(ld+4*j)}, v{a4}, {WS}, s{66+j} offen sc1')
    if OPT['cue_at'] == 2:
        k(cue)
    mark(k, 5)
    if OPT['hp']:
        k('s_setprio 0')
    bar(k, None if OPT['ec2'] else 0)
    if OPT['cue_at'] == 3:
        k(cue)
    tag(k, 'region -')
    k.label(LG)
    if OPT.get('nodma'):
        k.drop = lambda x: x.endswith(' lds') and (OPT['nodma'] == 1 or (OPT['nodma'] == 2) == ('sc1' in x))
    k.fresh()
    V.p = 4
    t = V(4); la_ = V(); fl = V(2); da = V(9); xa = V(6); xd = V(24, 4); pv = V(2); xf_ = V(); db = V(9); fb = V(3); xr_ = V(5); vr = V(10)
    k(f'v_lshlrev_b32 v{la_}, 4, v0')
    la = la_
    g1_tile(k)
    g2_tile(k)
    srd(k, 40, pW1, S * F * 2)
    srd(k, 44, pW2, S * F * 2)
    k(f'''s_and_b32 s62, s{sW}, 1
    s_and_b32 s63, s{sJ}, {OPT['xm']}
    s_mul_i32 s63, s63, {OPT["xst"]}
    s_add_u32 s63, s63, {OPT['xo']}
    s_mul_i32 s48, s51, {OPT['rot1']}
    s_add_u32 s63, s63, s48
    s_and_b32 s63, s63, 31
    s_mov_b32 s64, 0
    s_lshl_b32 s68, s62, 13''')

    def start_off(dst, hi, base, first, mul, n):
        k(f's_mul_i32 s{dst}, s{first}, {mul}\ns_add_u32 s{dst}, s{dst}, s{base}\ns_add_u32 s{hi}, s{base}, {n*mul}')

    def w_addr(g, da, lo):
        jst, gst, qoff = ((256 * 9216, 9216, 1024 * 9216), (4096, 16384, 16 * 4096))[g]
        k(f'''v_lshlrev_b32 v{t+1}, 1, v2
        v_xor_b32 v{t+1}, v{t+1}, v1
        v_xor_b32 v{t+2}, 8, v{t+1}
        v_mul_u32_u24 v{t}, {jst}, v2
        v_lshl_add_u32 v{t+1}, v{t+1}, 4, v{t}
        v_lshl_add_u32 v{t+2}, v{t+2}, 4, v{t}''')
        if OPT['rotw'] & (1 << g):
            sm = 16 + 8 * g
            k('s_mul_i32 s12, s52, 43\ns_lshr_b32 s12, s12, 5' if g == 0 else 's_lshl_b32 s12, s55, 1')
            for i in range(8):
                k(f'''s_add_u32 s14, s12, {i}
                s_and_b32 s14, s14, 7
                s_and_b32 s15, s14, 3
                s_mul_i32 s15, s15, {gst}
                s_lshr_b32 s48, s14, 2
                s_mul_i32 s48, s48, {qoff}
                s_add_u32 s15, s15, s48
                s_bitcmp1_b32 s14, 0
                s_cselect_b64 vcc, -1, 0
                v_cndmask_b32 v{da+i}, v{t+1}, v{t+2}, vcc
                v_add_u32 v{da+i}, s15, v{da+i}
                s_lshl_b32 s14, s14, 10
                s_add_u32 s{sm+i}, s14, s68''')
        else:
            k(f'''v_add_u32 v{da+2}, {2*(gst-1024)}, v{t+1}
            v_add_u32 v{da+3}, {3*(gst-1024)}, v{t+2}
            v_add_u32 v{da+1}, {gst-1024}, v{t+2}
            v_mov_b32 v{da}, v{t+1}''')
            for i in range(4):
                k(f'v_add_u32 v{da+4+i}, {qoff}, v{da+i}')
        if g == 0:
            k(f's_mul_i32 s49, s62, {4*9216}\ns_lshl_b32 s48, s51, 8\ns_add_u32 s49, s49, s48')
            start_off(lo, lo + 1, 49, 63, 8 * 9216, 32)
        else:
            k(f'''s_mul_i32 s49, s53, {1152*4096}
            s_lshl_b32 s48, s62, 17
            s_add_u32 s49, s49, s48
            s_lshl_b32 s48, s54, 8
            s_add_u32 s49, s49, s48''')
            start_off(lo, lo + 1, 49, 64, 64 * 4096, NST2)

    def woff(n, mul, NST, lo=60, pair=False, d=50):
        if pair:
            p = f's_mul_i32 s{d}, s62, {(kappa(n+1, NST)-kappa(n, NST))*mul}\ns_add_u32 s{d}, s{d}, s{lo}\ns_add_u32 s{d}, s{d}, {kappa(n, NST)*mul}\n'
        else:
            p = f's_add_u32 s{d}, s{lo}, {kappa(n, NST)*mul}\n'
        return p + f's_cmp_ge_u32 s{d}, s{lo+1}\ns_cselect_b32 s48, {NST*mul}, 0\ns_sub_u32 s{d}, s{d}, s48\n'

    class Stream:
        def __init__(st, items):
            st.items, st.n, st.seq = items, 0, []

        def issue(st, upto, now):
            while st.n < min(upto, len(st.items)):
                need, free, txt = st.items[st.n]
                if free > now:
                    break
                k(txt)
                st.seq.append(k.stats.get('vmem', 0))
                st.n += 1

        def more(st, n):
            st.issue(st.n + n, -1)

        def run(st, NST, quota, last_bar=True, mk=None, hooks={}, verify={}, pre={}):
            landed = -1
            log = []
            for i in range(NST):
                nd = [x for x, it in enumerate(st.items) if it[0] <= i]
                vm = None
                if nd and nd[-1] > landed:
                    assert nd[-1] < st.n, (i, nd[-1], st.n)
                    landed = nd[-1]
                    vm = k.stats.get('vmem', 0) - st.seq[landed]
                if i in verify:
                    if vm is not None:
                        k.wait(vm)
                    verify[i]()
                    k('s_barrier')
                else:
                    bar(k, vm)
                if mk and OPT['stamp'] and i == 0:
                    mark(k, mk)
                    k.raw('    s_memtime s[98:99]')
                if mk and OPT.get('trace'):
                    k(f's_memtime s[14:15]\nv_writelane_b32 v{200 + (mk == 8)}, s14, {i}')
                if landed == len(st.items) - 1 and not last_bar:
                    break
                if i in pre:
                    pre[i]()
                n = st.n
                st.issue(quota(i), i)
                log.append((vm, st.n - n))
                if i in hooks:
                    n = k.stats['vmem']
                    hooks[i]()
                    k.stats['vmem'] = n + hooks.get('min', 0)
            if OPT.get('log'):
                print(log, file=sys.stderr)
            if mk and OPT['stamp']:
                mark(k, mk + 1)
                k('s_memtime s[100:101]')
                k(f's_sub_u32 s{84+mk}, s100, s98')

    def adv(s, inc, span, hi):
        return f's_add_u32 s{s}, s{s}, {inc}\ns_cmp_ge_u32 s{s}, s{hi}\ns_cselect_b32 s48, {span}, 0\ns_sub_u32 s{s}, s{s}, s48\n'

    def spread(n0, n1, i0, i1):
        return lambda i: n0 + int(round((n1 - n0) * max(0, min(i, i1) + 1 - i0) / (i1 + 1 - i0)))
    def scalar_pf():
        su = OPT['su']
        if not su:
            return {}
        n0 = 288 - 64 * OPT['pf8'] - 54 * OPT['pf4'] - 54 * OPT['pfa'] - 27 * su + OPT['n4x']
        k(f'''s_lshl_b32 s63, s{sR}, 2
        s_add_u32 s63, s63, s{sW}
        s_mul_i32 s63, s63, {su*4096}
        s_add_u32 s63, s63, {n0*4*4096}
        s_lshr_b32 s48, s{sJ}, 1
        s_mul_i32 s48, s48, {1152*4096}
        s_add_u32 s63, s63, s48
        s_and_b32 s48, s{sJ}, 1
        s_lshl_b32 s48, s48, 11
        s_add_u32 s63, s63, s48''')
        i0, i1 = OPT['suat']
        tot = 32 * su

        def cb(i):
            def f():
                for q in range(tot * (i - i0) // (i1 - i0), tot * (i + 1 - i0) // (i1 - i0)):
                    k.raw(f'    s_load_dword s13, s[20:21], s63')
                    k(f's_add_u32 s63, s63, {64 + (2048 if q % 32 == 31 else 0)}')
            return f
        return {i: cb(i) for i in range(i0, i1)}
    LHW = k.lab()
    if OPT.get('hprio'):
        k(f's_setprio {OPT["hprio"]}')
    k(f's_cmp_ge_u32 s{sW}, 2\ns_cbranch_scc1 {LHW}')
    x1f = f'buffer_load_dword v{fb+2}, v{fb+1}, {WS}, 0 offen sc1'

    def setup_g1():
        h3_idx(k, 56)
        publish(k, 2, 56, fl)
        k(f's_lshl_b32 s56, s52, 6\ns_add_u32 s56, s56, s51')
        publish(k, 3, 56, fl + 1, ncue=5, cue_add=27)
        k(f'''s_lshr_b32 s65, s{sJ}, 2
        s_lshl_b32 s65, s65, 16
        s_add_u32 s66, s65, {WS_FL2+3*0x40000}
        s_lshl_b32 s48, s62, {7+OPT['fs']}
        s_add_u32 s65, s65, s48
        s_add_u32 s65, s65, {WS_FL2+2*0x40000}
        s_add_u32 s69, s65, {64<<OPT['fs']}
        v_lshlrev_b32 v{xa+5}, {OPT['fs']}, v0
        s_mul_i32 s67, s52, {96*16}
        s_mul_i32 s48, s62, {4*9216}
        s_add_u32 s67, s67, s48
        s_add_u32 s67, s67, {WS_H2}
        v_add_u32 v{da+2}, {9216-1536}, v{la}
        v_cmp_gt_u32 vcc, 32, v0
        v_cndmask_b32 v{da+1}, v{da+2}, v{la}, vcc
        v_add_u32 v{da+3}, {2*9216}, v{la}
        v_add_u32 v{da+4}, {2*9216}, v{da+1}
        v_add_u32 v{da+5}, {2*9216}, v{da+2}
        s_mul_i32 s68, s62, 6144''')
        start_off(58, 59, 67, 63, 8 * 9216, 32)

    def setup_g2():
        for i in range(9):
            k(f'''v_add_u32 v{vr}, {64*i}, v0
            v_mul_u32_u24 v{vr+1}, 1821, v{vr}
            v_lshrrev_b32 v{vr+1}, 18, v{vr+1}
            v_mul_u32_u24 v{vr+1}, {9216-2304}, v{vr+1}
            v_lshl_add_u32 v{vr+1}, v{vr}, 4, v{vr+1}
            v_subrev_u32 v{db+i}, {1024*(i&3)}, v{vr+1}''')
        k(f'''s_mul_i32 s48, s55, 3
        s_add_u32 s49, s48, 2
        s_lshr_b32 s48, s48, 1
        s_lshr_b32 s49, s49, 1
        v_mov_b32 v{vr}, s48
        v_mov_b32 v{vr+1}, s49
        v_cmp_gt_u32 vcc, 32, v0
        v_cndmask_b32 v{vr}, v{vr+1}, v{vr}, vcc
        v_and_b32 v{vr+1}, 31, v0
        v_min_u32 v{vr+1}, 8, v{vr+1}
        v_lshl_add_u32 v{vr}, v{vr}, 6, v{vr+1}
        s_mul_i32 s48, s53, 9
        v_add_u32 v{vr}, s48, v{vr}
        v_lshlrev_b32 v{fb}, {OPT['fs']}, v{vr}''')
        k(f'''s_lshr_b32 s48, s54, 3
        s_lshl_b32 s48, s48, 2
        s_and_b32 s49, s54, 1
        s_lshl_b32 s49, s49, 1
        s_add_u32 s48, s48, s49
        s_add_u32 s48, s48, s62
        s_lshl_b32 s48, s48, 13
        s_add_u32 s48, s48, {WS_FL2 + 0x40000}
        v_lshl_add_u32 v{fb+1}, v0, 7, s48
        v_mov_b32 v{fb+2}, 0''')
        k(f'''s_lshl_b32 s48, s54, 7
        s_lshr_b32 s49, s53, 1
        s_lshl_b32 s49, s49, 4
        s_add_u32 s48, s48, s49
        s_mul_i32 s48, s48, 1152
        s_mul_i32 s49, s55, 288
        s_add_u32 s48, s48, s49
        s_and_b32 s49, s53, 1
        s_mul_i32 s49, s49, 144
        s_add_u32 s48, s48, s49
        s_add_u32 s12, s48, {WS_X1}
        s_lshl_b32 s13, s62, 6''')
        for i in range(5):
            k(f'''v_add_u32 v{vr}, s13, v0
            v_mul_u32_u24 v{vr+1}, 911, v{vr}
            v_lshrrev_b32 v{vr+1}, 13, v{vr+1}
            v_mul_u32_u24 v{vr+2}, 9, v{vr+1}
            v_sub_u32 v{vr+2}, v{vr}, v{vr+2}
            v_and_b32 v{vr}, 48, v{vr+1}
            v_add_u32 v{vr+1}, v{vr+1}, v{vr}
            v_mul_u32_u24 v{vr+1}, 1152, v{vr+1}
            v_lshl_add_u32 v{vr+1}, v{vr+2}, 4, v{vr+1}
            v_add_u32 v{xr_+i}, s12, v{vr+1}
            s_add_u32 s13, s13, 128''')
        k(f'''s_mul_i32 s48, s55, 576
        s_and_b32 s49, s53, 1
        s_mul_i32 s49, s49, 288
        s_add_u32 s48, s48, s49
        s_add_u32 s48, s48, {WS_MOD+5*2304}
        v_min_u32 v{vr}, {17*16}, v{la}
        v_add_u32 v{vr}, s48, v{vr}
        s_cmp_eq_u32 s62, 1
        s_cselect_b64 vcc, -1, 0
        v_cndmask_b32 v{xr_+4}, v{xr_+4}, v{vr}, vcc''')

    def setup_x1():
        k(f's_mul_i32 s56, s62, 288\ns_mul_i32 s57, s{sS2}, 1152\ns_add_u32 s57, s57, {WS_X1}')
        for i in range(5):
            k(f'''v_add_u32 v{t}, {64*i}, v0
            v_min_u32 v{t}, 287, v{t}
            v_add_u32 v{t}, s56, v{t}
            v_mul_u32_u24 v{t+1}, 911, v{t}
            v_lshrrev_b32 v{t+1}, 16, v{t+1}
            v_mul_u32_u24 v{t+1}, {256*1152 - 1152}, v{t+1}
            v_lshl_add_u32 v{xa+i}, v{t}, 4, v{t+1}''')
            if i in (0, 4):
                k(f'v_lshlrev_b32 v{t}, 4, v{t}\nv_add_u32 v{t+2+i//4}, {L_Z}, v{t}')
    if not OPT['lz']:
        setup_g1()
        setup_g2()
        setup_x1()
    tag(k, 'touch a1')
    tag(k, 'region a1')
    def clear_u():
        if OPT['sp2']:
            c0, n = spec_range(1)
            k(f'v_mov_b64 {P(xd)}, -1\nv_mov_b64 {P(xd+2)}, -1\ns_lshl_b32 s56, s2, 1\ns_add_u32 s56, s56, s62')

            def addr():
                k('s_mov_b32 s49, s48')
                for g in range(1, 4):
                    k(f's_cmp_ge_u32 s49, {72*n*g}\ns_cselect_b32 s50, {72*(NST2-n)}, 0\ns_add_u32 s48, s48, s50')
                k(f's_lshl_b32 s48, s48, 10\ns_add_u32 s48, s48, {WS_U + c0*73728}')
            clear_loop(k, 56, 512, 288 * n, addr, xd, la)
    if OPT['cl4'] == 0:
        clear_u()
    n7 = OPT['pf2'] + 10 * OPT['pf3']
    k(f'''s_mul_i32 s56, s62, 27
    s_add_u32 s56, s56, s{sR}
    s_add_u32 s56, s56, {n7}
    s_cmp_lt_u32 s{sR}, 27
    s_cselect_b32 s56, s56, 999
    s_barrier''')
    if OPT['pf7']:
        pf_loop(k, 1, 56, 54, n7 + 27 * OPT['pf7'], xd + 20, 40)
    if OPT['cl4'] == 1:
        clear_u()

    def clear_own_xch():
        k(f'''v_mov_b64 {P(xd)}, -1
        v_mov_b64 {P(xd+2)}, -1
        s_mul_i32 s56, s2, {XB}
        s_lshl_b32 s48, s62, 10
        s_add_u32 s56, s56, s48
        s_add_u32 s56, s56, {WS_XCH}''')
        for x in range(14):
            if x < 13:
                k(f's_add_u32 s48, s56, {2048*x}')
            else:
                k(f's_mul_i32 s48, s62, -2048\ns_add_u32 s48, s48, {2048*13}\ns_add_u32 s48, s48, s56')
            k(f'buffer_store_dwordx4 {Q(xd)}, v{la}, {WS}, s48 offen sc1')
    if OPT['xc'] == 4:
        clear_own_xch()
    if OPT['lz']:
        setup_g1()
    k('s_barrier')
    if OPT['cl4'] == 2:
        clear_u()
    if OPT['xc'] == 5:
        clear_own_xch()
    if OPT['lz']:
        setup_x1()
    if OPT['sp1'] and OPT['c3']:
        c0_, n_ = spec_range(0)
        k(f'''v_lshrrev_b32 v91, 3, v0
        v_lshlrev_b32 v91, 15, v91
        v_and_b32 v92, 7, v0
        v_lshl_add_u32 v91, v92, 4, v91
        s_lshl_b32 s48, s{sS2}, 7
        s_add_u32 s48, s48, {WS_C3}
        v_add_u32 v91, s48, v91
        s_lshr_b32 s48, s{sS2}, 3
        s_sub_u32 s48, s48, {c0_}
        s_cmp_lt_u32 s48, {n_}
        s_cselect_b32 s48, 0, 1
        s_or_b32 s48, s48, s62
        s_cmp_eq_u32 s48, 0
        s_cselect_b64 vcc, -1, 0
        v_mov_b32 v92, {OOB}
        v_cndmask_b32 v91, v92, v91, vcc
        v_mov_b32 v92, v{vTAG}
        v_mov_b32 v93, v{vTAG}
        v_mov_b32 v94, v{vTAG}
        v_mov_b32 v95, v{vTAG}''')
    k('s_barrier\ns_barrier')
    if OPT['sp1'] and OPT['c3']:
        k(f'buffer_store_dwordx4 {Q(92)}, v91, {WS}, 0 offen sc1')
    for i in range(5):
        k(f'ds_read_b128 {Q(xd+4*i)}, v{t+2+i//4} offset:{1024*(i&3)}')
    def x1_stores():
        for i in range(5):
            k(f'buffer_store_dwordx4 {Q(xd+4*i)}, v{xa+i}, {WS}, s57 offen sc1')

    def p3_publish():
        if not OPT['xdef']:
            bar(k, 0)
            do_publish(k, fl)
            return
        bar(k, lg=0)
        k(f'buffer_store_dword v{vTAG}, v{fl}, {WS}, 0 offen sc1')
        nx = len(reg_stages(0)) - 6
        if OPT['lz']:
            setup_g2()
        if OPT['xdef'] == 2:
            k.wait(0)
        if nx:
            k('s_barrier')
        x1_stores()
        if nx:
            k('s_barrier')
        k.wait(0)
        k(f'buffer_store_dwordx4 {Q(xd+20)}, v{xf_}, {WS}, 0 offen sc1')
    if not OPT['xdef']:
        x1_stores()
    else:
        k(f'''s_lshl_b32 s48, s62, 8
        s_add_u32 s48, s48, s{sS2}
        s_lshl_b32 s48, s48, 7
        s_add_u32 s48, s48, {WS_FL2 + 0x40000}
        v_add_u32 v{xf_}, s48, v{la}
        v_cmp_gt_u32 vcc, 8, v0
        v_mov_b32 v{t}, {OOB}
        v_cndmask_b32 v{xf_}, v{t}, v{xf_}, vcc''')
        k.wait(0)
        for i in range(4):
            k(f'v_mov_b32 v{xd+20+i}, v{vTAG}')
    LN, LJ = k.lab(), k.lab()
    k(f's_cmp_ge_u32 s{sR}, 27\ns_cbranch_scc1 {LN}')
    st0 = (list(k.vm), list(k.lg))
    if OPT['rf']:
        k('s_barrier')

    def act_text(g, n, i, so):
        if g == 0:
            pre = f's_add_u32 m0, s68, {L_ACT + (n % 5)*12288 + 1024*i}\n' if i % 3 == 0 else ''
            return pre + f'buffer_load_dwordx4 v{la if i==0 else da+i}, {WS}, s{so} offen offset:{1024*(i%3)} {OPT["fa1"].replace("_", " ")} lds'
        pre = f's_add_u32 m0, s57, {L_ACT2 + (n % NSA2)*AST2 + 1024*i}\n' if i % 4 == 0 else ''
        return pre + f'buffer_load_dwordx4 v{db+i}, {WS}, s{so} offen offset:{1024*(i&3)} {OPT["fa2"].replace("_", " ")} lds'

    def verifier(g, n):
        def f():
            ni, stg = ((6, 12288), (9, AST2))[g]
            L, E = k.lab(), k.lab()
            k.label(L)
            for i in range(ni):
                k(f'ds_read_b32 v{vr+i}, v{vr+9} offset:{n*stg + 1024*i}' if n < 4 or g == 0 else f'ds_read_b32 v{vr+i}, v90 offset:{(n-4)*stg + 1024*i}')
            for i in range(1, ni, 2):
                k(f'v_max3_u32 v{vr}, v{vr}, v{vr+i}, v{vr+min(i+1, ni-1)}')
            k(f'v_cmp_eq_u32 vcc, -1, v{vr}\ns_cbranch_vccz {E}')
            k(f's_sub_u32 s{sBUD}, s{sBUD}, 1\ns_cbranch_scc1 {E}')
            cnt, vm = k.stats['vmem'], k.vm
            k('s_mov_b32 s14, m0')
            if OPT['sl3']:
                k(f's_sleep {OPT["sl3"]}')
            k(woff(n, 8 * 9216, (32, NST2)[g], 58, False, 15))
            for i in range(ni):
                k(act_text(g, n, i, 15))
            k('s_mov_b32 m0, s14')
            k.wait(0)
            k(f's_branch {L}')
            k.stats['vmem'], k.vm = cnt, vm
            k.label(E)
            k(f's_max_i32 s{sBUD}, s{sBUD}, 0')
        return f

    def late_check(loads, regs, mk):
        seq = []

        def issue():
            for l in loads:
                k(l)
            seq.append(k.stats['vmem'])

        def check():
            k.wait(k.stats['vmem'] - seq[0])
            L = k.lab()
            check_tags(k, regs)()
            k(f's_cbranch_vccz {L}')
            cnt, vm = k.stats['vmem'], k.vm
            poll(k, loads, check_tags(k, regs), masked=True)
            k.stats['vmem'], k.vm = cnt, vm
            k.label(L)
            mark(k, mk)
        return issue, check
    h3l = [f'buffer_load_dword v{t}, v{xa+5}, {WS}, s65 offen sc1', f'buffer_load_dword v{t+1}, v{xa+5}, {WS}, s69 offen sc1']
    items = []
    for n in range(32):
        for i in range(6):
            post = '\n' + woff(n + 1, 8 * 9216, 32, 58) if i == 5 and n < 31 else ''
            items.append((n, max(n - 5 + 2, OPT['sp1']) if n >= 5 else -9, act_text(0, n, i, 50) + post))
    st = Stream(items)

    def stag_setup(n0, g, per, i0, span, gap, lim=288, upw=0):
        if not per:
            return {}
        assert n0 >= 0 and per <= 4
        mask, nf = leaders(g)
        w2_lane(k, pv, 35)
        k(f'''s_mov_b32 s49, s35
        s_mul_i32 s48, s62, {1 if OPT['jit'] else nf}
        s_add_u32 s49, s49, s48
        s_bfm_b32 s48, s{sR}, 0
        s_and_b32 s48, s48, {mask}
        s_bcnt1_i32_b32 s48, s48
        s_sub_u32 s12, s{sR}, s48''')
        bs = OPT[('bs1', 'bs2')[g]] or OPT['jit'] or 2
        wg = OPT[('wg1', 'wg2')[g]]
        for x in range(per):
            if OPT['jit']:
                x0 = x - x % bs
                if upw == 3 and per == 2 and bs == 2:
                    k(f's_mul_i32 s35, s12, 3\ns_add_u32 s35, s35, {n0 + 2*x}')
                    if x == 1:
                        k('s_sub_u32 s35, s35, s62')
                        k('s_sub_u32 s35, s35, s62')
                else:
                    k(f's_mul_i32 s35, s12, {2*min(bs, per-x0)}\ns_add_u32 s35, s35, {n0 + 2*x0*nf + 2*(x-x0)}')
            else:
                k(f's_add_u32 s35, s12, {n0 + 2*x*nf}')
            k(f'''s_add_u32 s35, s35, s49
            s_min_u32 s35, s35, {lim-1}
            s_lshl_b32 s{8+x}, s35, 14''')
        k(f'''s_mul_i32 s35, s12, {span*256//nf}
        s_lshr_b32 s35, s35, 8
        s_add_u32 s35, s35, {i0}
        s_mul_i32 s48, s62, {wg}
        s_add_u32 s35, s35, s48
        s_mov_b32 s48, {mask}
        s_bitcmp1_b32 s48, s{sR}
        s_cselect_b32 s35, 999, s35''')

        def hook(i):
            def f():
                for x0 in range(0, per, bs):
                    q = i - gap * (x0 // bs)
                    if i0 <= q < i0 + span + wg:
                        L = k.lab()
                        k(f's_cmp_lg_u32 s35, {q}\ns_cbranch_scc1 {L}')
                        for x in range(x0, min(x0 + bs, per)):
                            if upw == 3 and x == 1:
                                k(f's_cmp_lg_u32 s62, 0\ns_cbranch_scc1 {L}')
                            k.raw(f'    buffer_load_dword v{pv+1}, v{pv}, s[44:47], s{8+x} offen' + (' nt' if OPT['pfnt'] & (4 << g) else ''))
                        k.label(L)
            return f
        return {i: hook(i) for i in range(i0, i0 + span + wg + gap * ((per - 1) // bs))}
    n8 = pf_split()[1]
    hooks = stag_setup(pf_split()[0], 0, OPT['pf4'], *OPT['pf4at'], lim=n8, upw=pf_split()[2])
    k(woff(0, 8 * 9216, 32, 58))
    verify, pre = {}, {}
    if OPT['sp1']:
        k(f's_add_u32 s48, s68, {L_ACT}\nv_add_u32 v{vr+9}, s48, v{la}')
        bar(k, lg=0)
        k(f'buffer_store_dword v{vTAG}, v{fl}, {WS}, 0 offen sc1')
        if OPT['lz']:
            setup_g2()
        if len(reg_stages(0)) > 6:
            k('s_barrier\ns_barrier')
        if OPT['spw']:
            k.wait(0)
        if OPT['c3']:
            c0_, n_ = spec_range(0)
            k(f'''v_min_u32 v91, {8*n_-1}, v0
            v_lshlrev_b32 v91, 7, v91
            s_lshl_b32 s48, s{sJ}, 15
            s_add_u32 s48, s48, {WS_C3 + c0_*8*128}
            v_add_u32 v91, s48, v91''')
            poll(k, [f'buffer_load_dword v92, v91, {WS}, 0 offen sc1'], check_tags(k, [92]), masked=True, sleep=OPT['c3s'])
        mark(k, 6)
        verify = {n: verifier(0, n) for n in range(5)}
        pre[OPT['sp1'] - 1], pre[OPT['sp1']] = late_check(h3l, [t, t + 1], 7)
        pre[5] = x1_stores
        pre[10] = lambda: k(f'buffer_store_dwordx4 {Q(xd+20)}, v{xf_}, {WS}, 0 offen sc1')
    else:
        p3_publish()
        mark(k, 6)
        poll(k, h3l, check_tags(k, [t, t + 1]), masked=True, alt=([65, 69], 16384, OPT['na']))
        mark(k, 7)
    st.more(6 * OPT['a1pre'])
    if OPT['xdef']:
        assert 28 not in hooks
        hooks[28] = lambda: k(x1f)
    if OPT['su']:
        assert not OPT['sp1']
        pre = scalar_pf()
    st.run(32, lambda i: 6 * (i + 4), hooks=hooks, verify=verify, pre=pre)
    if OPT['su']:
        k.raw('    s_waitcnt lgkmcnt(0)')
    k(f's_branch {LJ}')
    k.label(LN)
    k.fresh()
    if OPT['xdef']:
        k.wait(lg=0)
        x1_stores()
        bar(k, 0)
        k(f'buffer_store_dword v{vTAG}, v{fl}, {WS}, 0 offen sc1')
        k(f'buffer_store_dwordx4 {Q(xd+20)}, v{xf_}, {WS}, 0 offen sc1')
        if OPT['lz']:
            setup_g2()
        k.wait(0)
    else:
        p3_publish()
    poll(k, [f'buffer_load_dword v{t}, v{xa+5}, {WS}, s65 offen sc1', f'buffer_load_dword v{t+1}, v{xa+5}, {WS}, s69 offen sc1'],
         check_tags(k, [t, t + 1]), masked=True, alt=([65, 69], 16384, OPT['na']))
    k.label(LJ)
    k.fresh()
    t = xd
    k(f'''s_mul_i32 s67, s55, {144*16}
    s_mul_i32 s48, s53, {NST2*8*9216}
    s_add_u32 s67, s67, s48
    s_mul_i32 s48, s62, {4*9216}
    s_add_u32 s67, s67, s48
    s_add_u32 s67, s67, {WS_U}
    s_mul_i32 s57, s62, 9216
    s_add_u32 s48, s57, {L_ACT2}
    v_add_u32 v{vr+9}, s48, v{la}
    v_add_u32 v90, {4*AST2}, v{vr+9}''')
    start_off(58, 59, 67, 64, 8 * 9216, NST2)
    k.wait(0)
    if OPT['xdef']:
        L1 = k.lab()
        check_tags(k, [fb + 2])()
        k(f's_cbranch_vccz {L1}')
        poll(k, [x1f], check_tags(k, [fb + 2]), masked=True)
        k.label(L1)
    hooks = stag_setup(n8, 1, OPT['pf8'], *OPT['pf8at'], upw=pf_split()[3])
    k('s_barrier')
    tag(k, 'touch a2')
    tag(k, 'region a2')
    LN, LJ = k.lab(), k.lab()
    k('s_barrier\n' * (2 + bool(OPT['rf2'])))
    k(f's_cmp_ge_u32 s{sR}, 27\ns_cbranch_scc1 {LN}')
    k(f'buffer_store_dword v{vTAG}, v{fl+1}, {WS}, 0 offen sc1')
    if not OPT['sp2'] or OPT['spw']:
        k.wait(0)
    k(f's_branch {LJ}')
    k.label(LN)
    wait_cue(k, 3, t)
    k.label(LJ)
    k(woff(0, 8 * 9216, NST2, 58))
    mark(k, 8)
    h4l = [f'buffer_load_dword v{t}, v{fb}, {WS}, s66 offen sc1']
    verify, prh = {}, {}
    if OPT['sp2']:
        verify = {n: verifier(1, n) for n in range(OPT['nsp'])}
        prh[OPT['sp2'] - 1], prh[OPT['sp2']] = late_check(h4l, [t], 9)
    else:
        poll(k, h4l, check_tags(k, [t]), masked=True, alt=([66], 16384, OPT['na']))
        mark(k, 9)
    items = []
    for n in range(NST2):
        for i in range(9):
            post = '\n' + woff(n + 1, 8 * 9216, NST2, 58) if i == 8 and n < NST2 - 1 else ''
            items.append((n, max(n - NSA2 + 2, OPT['sp2']) if n >= OPT['nsp'] else -9, act_text(1, n, i, 50) + post))
    ring2 = [n for n in range(NST2) if n not in reg_stages(1)]
    xfree = max(n for m, n in enumerate(ring2) if m % NSW2 == L_X1 // 16384) + 1
    for i in range(5):
        pre = f's_lshl_b32 s48, s62, 10\ns_add_u32 m0, s48, {L_X1 + 2048*i}\n' if i < 4 else \
              f's_mul_i32 s48, s62, {L_GB - L_X1 - 8192}\ns_add_u32 m0, s48, {L_X1 + 8192}\n'
        items.append((NST2, max(xfree, NST2 - NSA2 + 1), pre + f'buffer_load_dwordx4 v{xr_+i}, {WS}, 0 offen sc1 lds'))
    st = Stream(items)
    st.more(9 * OPT['a2pre'])
    assert OPT['nsp'] <= NSA2
    st.run(NST2 + 1, lambda i: OPT['a2la'] + 9 * (i + 1), last_bar=False, hooks=hooks, verify=verify, pre=prh)
    LT = k.lab()
    k(f's_branch {LT if OPT["hx"] else "L_end"}')
    tag(k, 'region -')
    k.label(LHW)
    k.fresh()

    def witems(g, stages, slot0=0, NSW=NSW):
        NST, sd, mul, regs, lo = ((32, 40, 8 * 9216, da, 60), (NST2, 44, 64 * 4096, db, 58))[g]
        items = []
        for m, n in enumerate(stages):
            for i in range(8):
                pre = woff(n, mul, NST, lo) if i == 0 else ''
                rot = OPT['rotw'] & (1 << g)
                if rot:
                    pre += f's_add_u32 m0, s{16+8*g+i}, {((m + slot0) % NSW)*16384}\n'
                else:
                    pre += f's_add_u32 m0, s68, {((m + slot0) % NSW)*16384 + 1024*i}\n' if i % 4 == 0 else ''
                items.append((n, stages[m - NSW] + 1 if m >= NSW else -9,
                              pre + f'buffer_load_dwordx4 v{regs+i}, s[{sd}:{sd+3}], s50 offen offset:{0 if rot else 1024*(i&3)} {OPT["fw2" if g else "fw1"].replace("_", " ")} lds'))
        return items

    def split(g):
        rs = reg_stages(g)
        return rs, [n for n in range((32, NST2)[g]) if n not in rs]
    w_addr(1, db, 58)
    rs2, ds2 = split(1)
    f1 = [it[2] for it in witems(1, rs2, 2)]
    LN, LJ = k.lab(), k.lab()
    k(f's_cmp_ge_u32 s{sR}, 27\ns_cbranch_scc1 {LN}')
    w_addr(0, da, 60)
    tag(k, 'touch w1')
    tag(k, 'region w1')
    rs, ds = split(0)
    nx = len(rs) - 6
    items = witems(0, ds, nx)
    n1 = len(items)
    assert (len(ds) + nx) % NSW == 2
    ne = OPT['ne']
    for x in range(ne):
        items += [(99, ds[len(ds) - NSW + x] + 1, it) for it in f1[8 * x:8 * x + 8]]
    st = Stream(items)
    s1 = Stream(witems(0, rs[:6]))
    for n in OPT['pw1']:
        s1.more(n)
        k('s_barrier')
    s1.more(999)
    k('s_barrier')
    bar(k, 0)
    if OPT['rf']:
        k('s_barrier')
        st.more(OPT['rf'])
    k('s_barrier')
    if nx:
        assert not OPT['rf']
        Stream(witems(0, rs[6:])).more(99)
        st.more(OPT['pa'])
        bar(k, st.n)
        st.more(4)
        k('s_barrier')
    def pf_early():
        n0 = 288 - 64 * OPT['pf8'] - 54 * OPT['pf4'] - 54 * OPT['pfa'] + OPT['n4x']
        w2_lane(k, xa, 14)
        k(f's_lshl_b32 s14, s{sR}, 1\ns_add_u32 s14, s14, s62\ns_mul_i32 s14, s14, {OPT["pfa"]}\ns_add_u32 s14, s14, {n0}')
        for x in range(OPT['pfa']):
            k(f's_add_u32 s48, s14, {x}\ns_lshl_b32 s48, s48, 14')
            k(f'buffer_load_dword v{xa+2+x}, v{xa}, s[44:47], s48 offen')
    if OPT['pfa'] and OPT['pfap'] == 0:
        pf_early()
    st.issue(OPT['f21'], -1)
    if OPT['pfa'] and OPT['pfap'] == 1:
        pf_early()
    q1 = spread(st.n, n1, 0 if st.n < 48 else 1, ds[-1] - OPT['wla'])
    if OPT['asap']:
        n00 = st.n
        q1 = lambda i: min(n1, n00 + int(OPT['asap'] * (i + 1) / 10))
    st.run(32, lambda i: q1(i) + ([0] * 32 + OPT['neq'])[-32 + i], mk=6, pre=scalar_pf())
    if OPT['su']:
        k.raw('    s_waitcnt lgkmcnt(0)')
    assert st.n == len(items)
    k('s_barrier')
    k(f's_branch {LJ}')
    k.label(LN)
    k.fresh()
    k(f's_sub_u32 s56, s{sR}, 27\ns_lshl_b32 s56, s56, 1\ns_add_u32 s56, s56, s62\ns_add_u32 s56, s56, {OPT["pf2"]}')
    k('s_barrier')
    pf_loop(k, 1, 56, 10, OPT['pf2'] + 10 * OPT['pf3'], xa, 40)
    k('s_barrier\n' * 5)
    for it in f1[:8 * ne]:
        k(it)
    k.label(LJ)
    k.fresh()
    st = Stream(witems(1, ds2, 0, NSW2))
    for it in f1[8 * ne:]:
        k(it)
    tag(k, 'touch w2')
    tag(k, 'region w2')
    bar(k, 0)
    if OPT['rf2']:
        k('s_barrier')
        st.more(OPT['rf2'])
    k('s_barrier')
    st.issue(OPT['f22'], -1)
    wpre, wver = {}, {}
    if OPT['xc'] in (0, 3):
        on, tg, vrd, vpr, vds = 100, 104, 108, 109, 110
        k(f'''v_mov_b64 {P(on)}, -1
        v_mov_b64 {P(on+2)}, -1
        v_mov_b32 v{tg}, v{vTAG}
        v_mov_b32 v{tg+1}, v{vTAG}
        v_mov_b32 v{tg+2}, v{vTAG}
        v_mov_b32 v{tg+3}, v{vTAG}
        v_lshlrev_b32 v{vds}, 4, v0
        s_lshl_b32 s48, s2, 7
        s_add_u32 s48, s48, {WS_XRDY}
        v_add_u32 v{vrd}, s48, v{vds}
        s_cmp_eq_u32 s62, 0
        s_cselect_b32 s48, 8, 0
        v_cmp_gt_u32 vcc, s48, v0
        v_mov_b32 v{vpr}, {OOB}
        v_cndmask_b32 v{vrd}, v{vpr}, v{vrd}, vcc
        v_min_u32 v{vpr}, 2, v0
        v_add_u32 v{vpr}, 1, v{vpr}
        v_lshlrev_b32 v{vpr}, 1, v{vpr}
        v_xor_b32 v{vpr}, s2, v{vpr}
        v_lshlrev_b32 v{vpr}, 7, v{vpr}
        v_add_u32 v{vpr}, {WS_XRDY}, v{vpr}
        v_lshlrev_b32 v{tg+4+3}, 4, v0
        s_mul_i32 s56, s2, {XB}
        s_lshl_b32 s48, s62, 10
        s_add_u32 s56, s56, s48
        s_add_u32 s56, s56, {WS_XCH}''')
        c0, cn = OPT['xclr']
        cseq = []

        def clr(i):
            def f():
                for x in range((i - c0) * 14 // cn, (i - c0 + 1) * 14 // cn):
                    if x < 13:
                        k(f's_add_u32 s57, s56, {2048*x}')
                    else:
                        k(f's_mul_i32 s57, s62, -2048\ns_add_u32 s57, s57, {2048*13}\ns_add_u32 s57, s57, s56')
                    k(f'buffer_store_dwordx4 {Q(on)}, v{tg+7}, {WS}, s57 offen sc1')
                cseq[:] = [k.stats['vmem']]
            return f
        for i in range(c0, c0 + cn):
            if OPT['xc'] == 0:
                wpre[i] = clr(i)
        r0, r1 = OPT['xrdy']
        assert r0 > c0 + cn - 1 and r1 > r0 and r1 < NST2
        if OPT['xc'] == 0:
            wver[r0] = lambda: k.wait(k.stats['vmem'] - cseq[0])
        wpre[r0] = lambda: k(f'buffer_store_dwordx4 {Q(tg)}, v{vrd}, {WS}, 0 offen sc1')
        assert r1 - OPT['xlead'] > r0
        wpre[r1 - OPT['xlead']], chk = late_check([f'buffer_load_dword v{vds}, v{vpr}, {WS}, 0 offen sc1'], [vds], 12)
        wver[r1] = chk
    q2 = spread(st.n, len(st.items), 0 if st.n < 8 * NSW2 else 1, ds2[-1] - OPT['wla2'])
    if OPT['wlead']:
        qs, cur = [], st.n
        for i in range(NST2):
            cur = max(cur, min(8 * sum(n <= i + OPT['wlead'] for n in ds2), cur + OPT['wmax']))
            qs.append(cur)
        q2 = lambda i: qs[i]
    st.run(NST2, q2, mk=8, verify=wver, pre=wpre)
    if not OPT['hx']:
        return
    k('s_barrier')
    k.label(LT)
    k.fresh()
    ha, hr = 100, 104
    k(f'''v_lshlrev_b32 v{ha}, 4, v0
    v_lshlrev_b32 v{ha+1}, 2, v0
    s_mul_i32 s48, s{sW}, {XW}
    s_mul_i32 s60, s2, {XB}
    s_add_u32 s60, s60, s48
    s_add_u32 s60, s60, {WS_XCH + XM}
    s_add_u32 s61, s60, {XM}
    s_mul_i32 s63, s{sW}, {2*XW}
    s_add_u32 s63, s63, {L_S}
    v_add_u32 v{ha+2}, s63, v{ha}
    v_add_u32 v{ha+3}, s63, v{ha+1}''')
    xmark(k, 'x', 1)
    if OPT['hsl']:
        k(f's_sleep {OPT["hsl"]}')
    if OPT['xcue']:
        k(f'''s_lshl_b32 s48, s{sW}, 7
        s_mul_i32 s62, s2, 1536
        s_add_u32 s62, s62, s48
        s_add_u32 s62, s62, {WS_XCUE + 512}
        v_and_b32 v{hr+8}, 1, v0
        v_lshlrev_b32 v{hr+8}, 9, v{hr+8}''')
        poll(k, [f'buffer_load_dword v{hr+9}, v{hr+8}, {WS}, s62 offen sc1'], check_tags(k, [hr + 9]), sleep=OPT['xsl'])
        xmark(k, 'x', 2)
    if OPT['tfirst']:
        poll(k, [f'buffer_load_dword v{hr+8+x}, v{ha+1}, {WS}, s{60+x} offen offset:2048 sc1' for x in (1, 0)],
             check_sent(k, [hr + 8, hr + 9, hr + 9], hr + 6), sleep=OPT['tsl'])
        xmark(k, 'x', 2)
    loads = []
    for x in (1, 0):
        loads.append(f's_add_u32 m0, s63, {XW*x}\n' + f'buffer_load_dwordx4 v{ha}, {WS}, s{60+x} offen sc1 lds')
        loads.append(f'buffer_load_dwordx4 v{ha}, {WS}, s{60+x} offen offset:1024 sc1 lds')
        loads.append(f'buffer_load_dword v{ha+1}, {WS}, s{60+x} offen offset:2048 sc1 lds')

    def hchk():
        for x in range(2):
            k(f'ds_read_b32 v{hr+3*x}, v{ha+2} offset:{XW*x}\nds_read_b32 v{hr+3*x+1}, v{ha+2} offset:{XW*x+1024}\nds_read_b32 v{hr+3*x+2}, v{ha+3} offset:{XW*x+2048}')
        check_sent(k, [hr + i for i in range(6)], hr + 6)()
    poll(k, loads, hchk, sleep=OPT['hsl2'])
    xmark(k, 'x', 3)
    k('s_barrier')


def build():
    geometry()
    k = K('m')
    k(f's_cmp_ge_u32 s2, 256\ns_cbranch_scc1 L_exit')
    if OPT['stamp']:
        k('s_memrealtime s[70:71]')
        for i in range(72, 96):
            k(f's_mov_b32 s{i}, 0')
    k(f'''s_load_dwordx16 s[8:23], s[0:1], 0
    s_load_dwordx8 s[24:31], s[0:1], 64
    s_load_dwordx2 s[32:33], s[0:1], 96''')
    if OPT['codepf']:
        k(f'''v_readfirstlane_b32 s4, v0
        s_lshr_b32 s5, s2, 3
        s_lshr_b32 s4, s4, 6
        s_cmp_lg_u32 s4, s5
        s_cbranch_scc1 L_nopf
        s_getpc_b64 s[52:53]
        L_pc:
        s_sub_u32 s52, s52, L_pc-{NAME}_kernel
        s_subb_u32 s53, s53, 0
        s_mov_b32 s54, L_code_end-{NAME}_kernel
        s_mov_b32 s55, 0x20000
        v_lshlrev_b32 v1, 7, v0''')
        k.raw('    buffer_load_dword v255, v1, s[52:55], 0 offen')
        k('v_add_u32 v1, 65536, v1')
        k.raw('    buffer_load_dword v255, v1, s[52:55], 0 offen')
        k.maxreg['v'] = 255
        k.label('L_nopf')
    k(f'''v_lshrrev_b32 v1, 6, v0
    v_and_b32 v0, 63, v0
    v_readfirstlane_b32 s{sWAVE}, v1
    v_and_b32 v1, 15, v0
    v_lshrrev_b32 v2, 4, v0
    s_and_b32 s{sJ}, s2, 7
    s_lshr_b32 s{sR}, s2, 3
    s_lshl_b32 s{sS2}, s{sJ}, 5
    s_add_u32 s{sS2}, s{sS2}, s{sR}
    s_mov_b32 s{sBUD}, 100000
    s_and_b32 s{sW}, s{sWAVE}, 3''')
    k(f's_cmp_ge_u32 s{sWAVE}, 4')
    k('s_cbranch_scc0 L_C' if OPT['ufirst'] else 's_cbranch_scc1 L_H')
    n0 = len(k.out)
    k.label('L_C')
    gen_C(k)
    tag(k, 'region -')
    n1 = len(k.out)
    k.label('L_H')
    k.fresh()
    gen_H(k)
    n2 = k.out.index('; @cut')
    if OPT['ufirst']:
        k.out = k.out[:n0] + k.out[n1:n2] + k.out[n0:n1] + k.out[n2 + 1:]
    else:
        del k.out[n2]
    k.label('L_end')
    if OPT['stamp']:
        k.fresh()
        k('s_memrealtime s[94:95]')
        k.wait(0, 0)
        k('s_memrealtime s[96:97]')
        k(f's_add_u32 s40, s{pWS}, {64*MB}\ns_addc_u32 s41, s{pWS+1}, 0\ns_mov_b32 s42, {1*MB}\ns_mov_b32 s43, 0x20000')
        k(f's_lshl_b32 s48, s2, 3\ns_add_u32 s48, s48, s{sWAVE}\ns_lshl_b32 s48, s48, 6\nv_mov_b32 v3, 0')
        for i in range(14):
            k(f'v_mov_b32 v{4+i}, s{70+2*i}')
        k(f'v_mov_b32 v18, s{sBUD}\ns_getreg_b32 s49, hwreg(HW_REG_XCC_ID)\ns_getreg_b32 s50, hwreg(HW_REG_HW_ID)\ns_and_b32 s49, s49, 15\ns_lshl_b32 s50, s50, 4\ns_or_b32 s49, s49, s50\nv_mov_b32 v19, s49')
        for i in range(4):
            k(f'buffer_store_dwordx4 {Q(4+4*i)}, v3, s[40:43], s48 offen offset:{16*i}')
        if OPT.get('trace'):
            k(f's_lshl_b32 s48, s48, 3\ns_add_u32 s48, s48, {MB//2}\ns_mov_b32 s42, {2*MB}\nv_lshlrev_b32 v3, 2, v0')
            k('buffer_store_dword v200, v3, s[40:43], s48 offen\nbuffer_store_dword v201, v3, s[40:43], s48 offen offset:256')
    k.label('L_exit')
    k('s_endpgm')
    k.label('L_code_end')
    if OPT['touch']:
        k.out, ch = page_touch([f'{NAME}_kernel:'] + k.out)
        k.out = k.out[1:]
        print(ch, file=sys.stderr)
    ref = open(f'/code/{NAME}.s.ref').read().split('\n')
    hdr = [l for l in ref if l.startswith(';') and '@launch' not in l]
    out = '\n'.join(hdr) + '\n'
    if OPT.get('aslist'):
        out += f'; @launch kernel={NAME}_kernel grid=(256,1,1) block=(512,1,1) lds=163840\n'
    else:
        out += '; @launch grid=(256,1,1) block=(512,1,1) lds=163840\n'
    out += '.amdgcn_target "amdgcn-amd-amdhsa--gfx950"\n.text\n'
    out += f'.globl {NAME}_kernel\n.p2align 8\n.type {NAME}_kernel,@function\n{NAME}_kernel:\n' + k.text()
    out += '.section .rodata,"a"\n' + descriptor(NAME + '_kernel', k.maxreg['v'] + 1, 0, k.maxreg['s'] + 1)
    print('vgpr', k.maxreg['v'] + 1, 'sgpr', k.maxreg['s'] + 1, k.stats, file=sys.stderr)
    return out


if __name__ == '__main__':
    path = f'/code/{NAME}.s'
    for a in sys.argv[1:]:
        if '=' in a:
            n, v = a.split('=')
            OPT[n] = int(v) if v.lstrip('-').isdigit() else ([int(x) for x in v.split(',')] if ',' in v else v)
        else:
            path = a
    if OPT.get('wsh'):
        WS_H2 += OPT['wsh'] * MB
        WS_U += OPT['wsh'] * MB
        WS_SIZE = 64 * MB
    open(path, 'w').write(build())
```

```python
import struct, sys
from asm import *

NAME = 'adaLN_cond__spectral_gfnet__mixer_token_mlp__prompt'
S, D, F = 2048, 576, 4608
MB = 1 << 20
WS_MOD, WS_EPOCH, WS_MODG, WS_MODB, WS_FLAG, WS_CUE = 0, 0x8000, 0xE80000, 0x30000, 0x40000, 0x80000
WS_WP, WS_T1, WS_T2, WS_X1, WS_H2, WS_U, WS_XCH = 1 * MB, 4 * MB, 8 * MB, 12 * MB, 16 * MB, 20 * MB, 26 * MB
WS_SIZE = 48 * MB
WS_XCUE = 36 * MB
WS_C3 = 38 * MB
WS_XRDY = 37 * MB
XW, XM, XB = 2304, 9216, 27648
WS_FL2 = 15 * MB
OOB = 0x7ff00000
MF = 'v_mfma_f32_16x16x32_bf16'
sW, sJ, sR, sS2, sBUD = 3, 4, 5, 6, 7
pX, pWR, pWI, pW1, pB1, pW2, pB2, pC, pWM, pOUT, pWS = 8, 10, 12, 16, 18, 20, 22, 24, 26, 28, 32
sWAVE = 34
WS = 's[36:39]'
vTAG = 3
L_SLAB, L_WST, L_MG, L_TR, L_SILU = 0, 36864, 61440, 77824, 90112
L_X = 100352
L_ST = L_X + 9472
L_M = L_ST + 128
L_E = L_M + 16384
L_MI = 147456
L_ACT = 98304
L_Z, L_MOD, L_Y, L_H = 98304, 108544, 116736, 135808
XROW, YROW = 1184, 2320
AST2, NST2 = 18432, 18
L_ACT2, NSA2, NSW2 = 90112, 4, 5
L_X1, L_GB, L_S = 2 * 16384, 81920, 3 * 16384
NSW = 6
OPT = dict(swp=1, w1lead=5, w1max=8, pfb=0, pfbat=0, xc3=0, yw=0, ebl=4, c3=1, c3s=1, u4=0, u8=3, su=0, suat=[0, 30], rotw=0, pfw1=999, bs1=0, bs2=0, wg1=0, wg2=0, tfirst=0, tsl=2, pfa=0, pfap=0, pfnt=0, wo=0, nsp=4, n4x=0, wlead=0, wmax=6, nsa2=4, xc=0, xlead=2, xclr=[2, 8], xrdy=[12, 17], pf9=0, rot1=0, xcue=0, xsl=2, wx=0, hx=1, hsl=0, hsl2=1, stamp=0, codepf=1, poll_sleep=1, outflag='sc1', xst=4, xst2=0, a1pre=2, a2pre=3,
           asap=0, jit=2, xk=0, pfm=0, lz=1, ec2=0, single=0, pa=12, lead=0, fa1='sc1', fa2='sc1', fw1='', fw2='', a0=0, twi=0, ufirst=1, defer=4, wla2=2, sp1=0, sp2=2, spw=0, sl3=2, cl3=0, cl4=1, xo=26, touch=1, mw=1, wla=3, rs1=[6, 9, 12, 15, 18, 21, 24, 27], rs2=[4, 6, 8, 10, 11, 12], rf=0, f21=32, f22=32, pw1=[16, 16],
           pf1=0, pf2=96, pf3=2, pf4=2, pf4at=[0, 14, 0], pf8=2, pf8at=[0, 8, 0], a2la=27, pf5=288, pf6=0, pf7=0, x1=0, cue_at=2, wat=2, prew=1, m1early=2, tlb=0, dly=0, hp=1, up=2, f64=1, mb=2, fs=4, mask=1, warm=1, c2=1, wfl=1, wearly=1, pfd=0, xdef=2, rf2=8, ne=4, neq=[10, 22, 32], xm=7, nl=10, tw1=1, tw3=1, sl2=1, na=1, nm=1)


def pf_split():
    u4, u8 = OPT['u4'] or 2 * OPT['pf4'], OPT['u8'] or 2 * OPT['pf8']
    n8 = 288 - 32 * u8
    return n8 - 27 * u4 + OPT['n4x'], n8, u4, u8


def geometry():
    global L_ACT2, NSA2, NSW2, L_X1, L_GB, L_S
    if OPT['nsa2'] == 5:
        L_ACT2, NSA2, NSW2 = 65536, 5, 4
        L_X1, L_S, L_GB = 0, 16384, 65536 + 5 * AST2


def quads(rg, rs, D):
    D0 = 2 * (NST2 - D)
    early = [rg[i] + 4 * j for i, n in enumerate(rs) if n < NST2 - D for j in range(4)]
    late = [rg[i] + 8 * st + 4 for i, n in enumerate(rs) if n >= NST2 - D for st in range(2)]
    steps = [q for q in range(D0, 2 * NST2) if q >> 1 not in rs]
    park = dict(zip(steps, early))
    assert all(n < NST2 - D - 1 for i, n in enumerate(rs) if rg[i] <= max(park.values()) and n < NST2 - D)
    return park, early[len(steps):] + late


def f32(x):
    return '0x%08x' % struct.unpack('<I', struct.pack('<f', x))[0]


def P(r):
    return f'v[{r}:{r+1}]'


def Q(r):
    return f'v[{r}:{r+3}]'


def srd(k, dst, ptr, size):
    k(f's_mov_b32 s{dst}, s{ptr}\ns_mov_b32 s{dst+1}, s{ptr+1}\ns_mov_b32 s{dst+2}, {size}\ns_mov_b32 s{dst+3}, 0x20000')


def mark(k, i):
    if OPT['stamp']:
        k.raw(f'    s_memrealtime s[{70+2*i}:{71+2*i}]')


def tag(k, what):
    if OPT['touch']:
        k.raw('    ; @' + what)


def xmark(k, grp, i):
    if OPT.get('mk') == grp:
        mark(k, i)
    if OPT.get('mk') == grp + 'c':
        k.raw(f'    s_memtime s[{70+2*i}:{71+2*i}]')


def bar(k, vm=None, lg=None):
    if vm is not None or lg is not None:
        k.wait(vm, lg)
    k('s_barrier')


def cs_pair(k, ang, tc, ts, dsts):
    k(f'v_cos_f32 v{tc}, v{ang}\nv_sin_f32 v{ts}, v{ang}')
    m = {'c': f'v{tc}', 's': f'v{ts}', '-c': f'-v{tc}', '-s': f'-v{ts}'}
    for d, lo, hi in dsts:
        k(f'v_cvt_pk_bf16_f32 v{d}, {m[lo]}, {m[hi]}')


def dft_frag(k, base, step, re, im, tmp, inverse):
    for j in range(4):
        a, tc, ts = tmp + 3 * (j & 1), tmp + 3 * (j & 1) + 1, tmp + 3 * (j & 1) + 2
        if j == 0:
            a = base
        elif j == 3:
            k(f'v_add_f32 v{a}, v{tmp}, v{step}')
        else:
            k(f'v_fma_f32 v{a}, v{step}, {float(j)}, v{base}')
        if inverse:
            cs_pair(k, a, tc, ts, [(re + j, 'c', '-s'), (im + j, 's', 'c')])
        else:
            cs_pair(k, a, tc, ts, [(re + j, 'c', 's'), (im + j, '-s', 'c')])


def red32(k, regs, t):
    for mod in ('quad_perm:[1,0,3,2]', 'quad_perm:[2,3,0,1]', 'row_half_mirror', 'row_mirror'):
        for r in regs:
            k(f'v_add_f32_dpp v{r}, v{r}, v{r} {mod} row_mask:0xf bank_mask:0xf')
    for i, r in enumerate(regs):
        k(f'v_mov_b32 v{t+i}, v{r}')
    for i, r in enumerate(regs):
        k(f'v_permlane16_swap_b32 v{r}, v{t+i}')
    for i, r in enumerate(regs):
        k(f'v_add_f32 v{r}, v{r}, v{t+i}')


def poll(k, loads, check, sleep=None, masked=False, alt=None):
    L, E = k.lab('Lp'), k.lab('Le')
    sleep = OPT['poll_sleep'] if sleep is None else sleep
    if alt and alt[2] > 1:
        k(f's_mov_b32 s14, {alt[2] - 1}')
    k.label(L)
    for l in loads:
        k(l)
    k.wait(0)
    check()
    k(f's_cbranch_vccz {E}')
    k(f's_sub_u32 s{sBUD}, s{sBUD}, 1\ns_cbranch_scc1 {E}')
    if alt and alt[2] > 1:
        k(f's_cmp_gt_i32 s14, 0\ns_cselect_b32 s15, {alt[1]}, 0\ns_sub_u32 s14, s14, 1')
        for r in alt[0]:
            k(f's_add_u32 s{r}, s{r}, s15')
    masked = masked and OPT['mask']
    if masked:
        k('s_mov_b64 exec, vcc')
    if sleep:
        k(f's_sleep {sleep}')
    k(f's_branch {L}')
    k.label(E)
    if masked:
        k('s_mov_b64 exec, -1')
    k(f's_max_i32 s{sBUD}, s{sBUD}, 0')


def check_tags(k, regs):
    def f():
        k(f'v_cmp_ne_u32 vcc, v{vTAG}, v{regs[0]}')
        for r in regs[1:]:
            k(f'v_cmp_ne_u32 s[48:49], v{vTAG}, v{r}\ns_or_b64 vcc, vcc, s[48:49]')
    return f


def publish(k, sync, sidx, t, ncue=0, cue_add=0):
    k(f'''s_lshl_b32 s48, s{sidx}, {OPT['fs']}
    s_lshl_b32 s49, s{sW}, 16
    s_add_u32 s48, s48, s49
    s_add_u32 s48, s48, {WS_FL2 + sync*0x40000}
    v_mov_b32 v{t}, {OOB}''')
    for a in range(OPT['na']):
        k(f'v_writelane_b32 v{t}, s48, {a}\ns_add_u32 s48, s48, 16384')
    if ncue:
        k(f'''s_add_u32 s48, s2, {8*cue_add}
        s_lshl_b32 s48, s48, 7
        s_add_u32 s48, s48, {WS_CUE + sync*0x8000}
        s_lshl_b32 s49, s{sW}, 8
        s_add_u32 s49, s49, s{sR}
        s_cmp_lt_u32 s49, {ncue}
        s_cselect_b32 s48, s48, {OOB}
        v_writelane_b32 v{t}, s48, 8''')


def do_publish(k, t):
    k(f'buffer_store_dword v{vTAG}, v{t}, {WS}, 0 offen sc1')
    k.wait(0)


def wait_cue(k, sync, t, sleep=4):
    k(f's_lshl_b32 s50, s2, 7\ns_add_u32 s50, s50, {WS_CUE + sync*0x8000}\nv_mov_b32 v{t}, 0')
    poll(k, [f'buffer_load_dword v{t+1}, v{t}, {WS}, s50 offen sc1'], check_tags(k, [t + 1]), sleep=sleep)


def h3_idx(k, d):
    k(f'''s_bfe_u32 s{d}, s{sS2}, 0x10002
    s_lshl_b32 s{d}, s{d}, 7
    s_lshr_b32 s{d+1}, s{sS2}, 3
    s_lshl_b32 s{d+1}, s{d+1}, 2
    s_add_u32 s{d}, s{d}, s{d+1}
    s_and_b32 s{d+1}, s{sS2}, 3
    s_add_u32 s{d}, s{d}, s{d+1}''')


def g1_tile(k):
    k(f'''s_mul_i32 s52, s{sJ}, 27
    s_add_u32 s52, s52, s{sR}
    s_mul_i32 s51, s52, 171
    s_lshr_b32 s51, s51, 10
    s_mul_i32 s48, s51, 6
    s_sub_u32 s52, s52, s48''')


def g2_tile(k):
    k(f'''s_lshr_b32 s53, s{sJ}, 1
    s_and_b32 s54, s{sJ}, 1
    s_lshl_b32 s54, s54, 3
    s_lshr_b32 s48, s{sR}, 2
    s_add_u32 s54, s54, s48
    s_and_b32 s55, s{sR}, 3''')


def ring_adv(k, s, step, lo, hi):
    k(f's_add_u32 s{s}, s{s}, {step}\ns_cmp_eq_u32 s{s}, {hi}\ns_cselect_b32 s{s}, {lo}, s{s}')


def preload_w(vW0, vW, pairs):
    r = []
    for half in range(2):
        mine = [(sl, f0) for sl, f0 in pairs if sl // 3 == half]
        if mine:
            r += [f'v_add_u32 v{vW+nt}, {49152*half}, v{vW0+nt}' for nt in range(2)]
        for sl, f0 in mine:
            for st in range(2):
                for nt in range(2):
                    f = f0 + 8 * st + 4 * nt
                    o = (sl % 3) * 16384 + st * 8192
                    r += [f'ds_read_b64_tr_b16 {P(f)}, v{vW+nt} offset:{o}', f'ds_read_b64_tr_b16 {P(f+2)}, v{vW+nt} offset:{o+4096}']
    return r


def reg_stages(g):
    return OPT['rs1'] if g == 0 else OPT['rs2']


def kappa(n, NST):
    rs = reg_stages(0 if NST == 32 else 1)
    return rs.index(n) if n in rs else len(rs) + n - sum(x < n for x in rs)


def leaders(g):
    if not OPT['lead'] & (1 << g):
        return 0, (27, 32)[g]
    l = [6 * (c & 3) + c for c in range(6)] if g == 0 else [4 * d + (d & 3) for d in range(8)]
    return sum(1 << x for x in l), (27, 32)[g] - len(l)


def spec_range(g):
    if g == 0:
        c = {(kappa(n, 32) + OPT['xst'] * (j & OPT['xm']) + OPT['xo']) % 32 for n in range(5) for j in range(8)}
    else:
        c = {kappa(n, NST2) for n in range(OPT['nsp'])}
    return min(c), max(c) - min(c) + 1


def clear_loop(k, sidx, stride, total, addr, ones, la):
    for x in range((total + stride - 1) // stride):
        L = k.lab()
        k(f's_add_u32 s48, s{sidx}, {x*stride}\ns_cmp_ge_u32 s48, {total}\ns_cbranch_scc1 {L}')
        addr()
        k.cond += 1
        k(f'buffer_store_dwordx4 {Q(ones)}, v{la}, {WS}, s48 offen sc1')
        k.cond -= 1
        k.label(L)


def gemm_c(k, MT, NST, NSA, ASTAGE, vA, vA4, vW0, vW, fa, fw, acc, rg, rs, w_is_A, at_end=None, last_order=None, defer=0, send=None, single=False, slot0=0, hold=False):
    NT = 2
    for nt in range(NT):
        k(f'v_add_u32 v{vW+nt}, 49152, v{vW0+nt}')

    def reads(n, st, wslot):
        w, a = [None] * 4, []
        if wslot is not None:
            for nt in range(NT):
                f = fw + 4 * (st * NT + nt)
                r, o = (vW0 if wslot < 3 else vW) + nt, (wslot % 3) * 16384 + st * 8192
                w[2 * nt] = f'ds_read_b64_tr_b16 {P(f)}, v{r} offset:{o}'
                w[2 * nt + 1] = f'ds_read_b64_tr_b16 {P(f+2)}, v{r} offset:{o+4096}'
        o = (n % NSA) * ASTAGE + st * ASTAGE // 2
        for mt in range(MT):
            f = fa + 4 * ((0 if single else st) * MT + mt)
            if vA4 is not None and mt == MT - 1:
                a.append(f'ds_read_b128 {Q(f)}, v{vA4} offset:{o}')
            else:
                a.append(f'ds_read_b128 {Q(f)}, v{vA} offset:{o+256*mt}')
        if single:
            return [x for mt in range(MT) for x in (w[mt] if mt < 4 else None, a[mt])]
        return [w[0], a[0], w[1], a[1], w[2], a[2], w[3]] + a[3:]

    def mfmas(p, wb):
        r = []
        order = [(0, 0), (1, 0), (2, 0), (0, 1), (1, 1), (2, 1)] + [(mt, nt) for mt in range(3, MT) for nt in range(NT)]
        if single:
            order = [(mt, nt) for mt in range(MT) for nt in range(NT)]
        for mt, nt in order:
            a = acc + 4 * (mt * NT + nt)
            x, y = fa + 4 * ((0 if single else p) * MT + mt), wb + 4 * (p * NT + nt)
            if w_is_A:
                x, y = y, x
            r.append(f'{MF} {Q(a)}, {Q(x)}, {Q(y)}, {Q(a)}')
        return r
    def step(mm, rd, barrier, merged=True):
        if OPT.get('noread'):
            rd = []
        if OPT.get('nomfma'):
            mm = ['s_nop 0'] * len(mm)
        if not mm and barrier:
            k('s_barrier')
        per = 1 if len(mm) >= len(rd) else 2
        rd = list(rd) if per == 1 else [x for x in rd if x]
        done = 0
        for i, mi in enumerate(mm):
            if merged and OPT['mw'] and i == 6:
                k.wait(lg=done)
            k(mi)
            if barrier and i == 0:
                k('s_barrier')
            for x in rd[:per]:
                if x:
                    k(x)
                    done += 1
            rd = rd[per:]
        for x in rd:
            if x:
                k(x)
    isnt = lambda mi, nt: ((int(mi.split('[')[1].split(':')[0]) - acc) // 4) % 2 == nt
    prev, m = None, 0
    D0 = 2 * (NST - defer)
    assert all(n < NST - defer - 1 for n in rs)
    for n in range(NST):
        cur, wslot = (rg[rs.index(n)], None) if n in rs else (fw, (m + slot0) % NSW)
        m += n not in rs
        for st in range(2):
            rd = reads(n, st, wslot)
            mm = [] if prev is None and st == 0 else mfmas(st ^ 1, prev if st == 0 else cur)
            q = 2 * n + st
            if q >= D0:
                f, g = fw + 8 * st, rg[0] + 4 * (q - D0)
                rd[0], rd[2] = rd[0].replace(P(f), P(g)), rd[2].replace(P(f + 2), P(g + 2))
                rd = [rd[4], rd[6], rd[1], rd[3], rd[5]] + rd[7:] + [rd[0], rd[2]]
            if q > D0:
                step([x for x in mm if isnt(x, 1)], rd, st == 0, False)
                continue
            if mm and (OPT['mw'] and (n, st) != (0, 1) or (st == 0 and prev == fw)):
                k.wait(lg=MT - 3)
            step(mm, rd, st == 0, not single or OPT['mw'] == 2)
        prev = cur
    if not defer:
        k.wait(lg=0)
        if at_end:
            at_end()
        mm = mfmas(1, prev)
        if last_order:
            mm.sort(key=last_order)
        if hold:
            return mm
        for mi in mm:
            k(mi)
        return []
    acts = lambda q: [x for x in reads(q // 2, q % 2, None) if x]
    mm = [x for x in mfmas(1, prev) if isnt(x, 1)]
    mm.sort(key=last_order)
    last = 2 * NST - 1
    step(mm, acts(D0), False, False)
    step([x for x in mfmas(1, rg[0] + 4 * (last - D0) - 8) if isnt(x, 0)], [], False, False)
    send()
    for q in range(D0, last):
        step([x for x in mfmas(q % 2, rg[0] + 4 * (q - D0) - 8 * (q % 2)) if isnt(x, 0)], acts(q + 1) if q + 1 < last else [], False, False)
    at_end()


def gemm2_c(k, vAo, vAx, vA4, vW0, vW, fa, fw, accf, rg, rs, D, send_bc, send_a, at_end, fill={}, drain=None, vhi=None):
    MT, NST = 9, NST2
    last = 2 * NST - 1
    D0 = 2 * (NST - D)
    park, _ = quads(rg, rs, D)
    assert 1 <= D <= NSA2
    for nt in range(2):
        k(f'v_add_u32 v{vW+nt}, 49152, v{vW0+nt}')

    def aread(q, mt):
        sl = (q >> 1) % NSA2
        base = (vAo, vA4, vAx)
        if sl >= 4:
            base, sl = vhi, sl - 4
        v, o = (base[0], 256 * mt) if mt < 4 else ((base[1], 0) if mt == 4 else (base[2], 256 * (mt - 5)))
        return f'ds_read_b128 {Q(fa+4*mt)}, v{v} offset:{sl*AST2 + (q & 1)*9216 + o}'

    def wreg(q, nt):
        n, st = q >> 1, q & 1
        if n in rs:
            return rg[rs.index(n)] + 8 * st + 4 * nt
        if q >= D0 and nt == 0:
            return park[q]
        return fw + 8 * st + 4 * nt
    ring = [n for n in range(NST) if n not in rs]

    def wreads(q):
        n, st = q >> 1, q & 1
        if n in rs:
            return []
        sl = ring.index(n) % NSW2
        r = []
        for nt in (1, 0):
            f, v, o = wreg(q, nt), (vW0 if sl < 3 else vW) + nt, (sl % 3) * 16384 + st * 8192
            r += [f'ds_read_b64_tr_b16 {P(f)}, v{v} offset:{o}', f'ds_read_b64_tr_b16 {P(f+2)}, v{v} offset:{o+4096}']
        return r

    def mf(q, mt, nt):
        a = accf(mt, nt)
        return f'{MF} {Q(a)}, {Q(fa+4*mt)}, {Q(wreg(q, nt))}, {Q(a)}'

    def emit(mm, after, group=6, barrier=False, extra=None):
        if OPT.get('noread'):
            after = [[x for x in a if not x.startswith('ds_')] for a in after]
        if barrier and not mm:
            k('s_barrier')
        for i, m in enumerate(mm):
            if i % group == 0:
                k.cover(mm[i:i + group])
            k('s_nop 0' if OPT.get('nomfma') else m)
            if barrier and i == 0:
                k('s_barrier')
            for x in after[i]:
                k(x)
            if extra:
                for x in extra[:2]:
                    k(x)
                del extra[:2]
        for a in after[len(mm):]:
            for x in a:
                k(x)
    for q in range(last + 1):
        w = wreads(q)
        p = q - 1
        if p < 0:
            emit([], [w + [aread(q, mt) for mt in range(MT)]], barrier=True)
        elif p < D0:
            mm = [mf(p, mt, nt) for mt in range(MT) for nt in (1, 0)]
            after = [[] for _ in mm]
            for i, x in enumerate(w):
                after[2 * i].append(x)
            for mt in range(MT):
                after[2 * mt + 1].append(aread(q, mt))
            after[10] += fill.get(q, [])
            if q == drain:
                k.wait(0)
            emit(mm, after, barrier=not q & 1)
        else:
            mm = [mf(p, mt, 1) for mt in range(MT)]
            after = [[aread(q, mt)] for mt in range(MT)]
            for i, x in enumerate(w):
                after[(0, 1, 5, 6)[i]].append(x)
            emit(mm, after, group=3, barrier=not q & 1)
    emit([mf(last, mt, 1) for mt in range(MT)], [[] for _ in range(MT)], group=3)
    hi, lo = [4, 5, 6, 7, 8], [0, 1, 2, 3]
    emit([mf(last, mt, 0) for mt in hi + lo], [[aread(D0, mt)] for mt in hi + lo], group=9)
    x = send_bc()
    for q in range(D0, last):
        emit([mf(q, mt, 0) for mt in hi], [[aread(q + 1, mt)] if q + 1 < last else [] for mt in hi], group=5, extra=x)
    for y in x:
        k(y)
    x = None
    for q in range(D0, last):
        emit([mf(q, mt, 0) for mt in lo], [[aread(q + 1, mt)] if q + 1 < last else [] for mt in lo], group=4, extra=x)
        if x is None:
            x = send_a()
    for y in x:
        k(y)
    at_end()


def warm_xch(k, t, dst, store=False):
    k(f'''s_mul_i32 s48, s{sW}, 3072
    s_mul_i32 s49, s2, 36864
    s_add_u32 s48, s48, s49
    s_add_u32 s48, s48, {WS_XCH}''')
    for i in range(2):
        k(f'''v_add_u32 v{t}, {64*i}, v0
        v_min_u32 v{t}, 71, v{t}
        v_mul_u32_u24 v{t+1}, 2731, v{t}
        v_lshrrev_b32 v{t+1}, 16, v{t+1}
        v_mul_u32_u24 v{t+1}, {12288 - 24*128}, v{t+1}
        v_lshl_add_u32 v{t}, v{t}, 7, v{t+1}''')
        k.raw(f'    buffer_load_dword v{dst+i}, v{t}, {WS}, s48 offen')


def load_tag(k, t):
    k(f'v_mov_b32 v{t}, {WS_EPOCH}\nbuffer_load_dword v{vTAG}, v{t}, {WS}, 0 offen sc1')


def finish_tag(k):
    k(f's_mov_b32 s48, 0x9e3779b1\nv_mul_lo_u32 v{vTAG}, v{vTAG}, s48\nv_add_u32 v{vTAG}, 0x7f4a7c15, v{vTAG}\nv_or_b32 v{vTAG}, 0x01010101, v{vTAG}')


def w2_lane(k, t, d):
    k(f'''v_lshrrev_b32 v{t}, 4, v0
    v_and_b32 v{t+1}, 15, v0
    v_lshlrev_b32 v{t}, 12, v{t}
    v_lshl_add_u32 v{t}, v{t+1}, 7, v{t}
    s_lshr_b32 s48, s{sJ}, 1
    s_mul_i32 s48, s48, {1152*4096}
    s_and_b32 s49, s{sJ}, 1
    s_lshl_b32 s49, s49, 11
    s_add_u32 s48, s48, s49
    v_add_u32 v{t}, s48, v{t}
    s_mov_b32 s{d}, 0''')


def pf_loop(k, which, sN, stride, end, t, sd, tmp=50, addr_only=False):
    assert 0 <= end <= 320 and stride > 0
    L, E = k.lab(), k.lab()
    if which == 2:
        w2_lane(k, t, tmp)
    if not addr_only:
        k.label(L)
        k(f's_cmp_ge_u32 s{sN}, {end}\ns_cbranch_scc1 {E}')
    if which == 1:
        nl = OPT['nl']
        mg = {9: 911, 10: 820}[nl]
        k(f'''s_mul_i32 s48, s{sN}, {mg}
        s_lshr_b32 s48, s48, 13
        s_mul_i32 s49, s48, {nl}
        s_sub_u32 s49, s{sN}, s49
        s_lshl_b32 s49, s49, 6
        v_add_u32 v{t}, s49, v0
        s_and_b32 s49, s{sJ}, {OPT['xm']}
        s_mul_i32 s49, s49, {OPT['xst']}
        s_add_u32 s48, s48, s49
        s_add_u32 s48, s48, {OPT['xo']}''')
        if OPT['rot1']:
            assert nl == 10
            k(f'''s_mul_i32 s49, s{sJ}, 1152
            s_lshr_b32 s15, s49, 8
            s_mul_i32 s15, s15, {OPT['rot1']}
            s_add_u32 s15, s15, s48
            s_and_b32 s48, s49, -256''')
        else:
            k(f'''s_and_b32 s48, s48, 31
            s_mul_i32 s48, s48, {8*9216}
            s_mul_i32 s49, s{sJ}, 1152
            s_and_b32 s49, s49, {-256 if nl == 10 else -128}
            s_add_u32 s48, s48, s49''')
        k(f'''v_mul_u32_u24 v{t+1}, {mg}, v{t}
        v_lshrrev_b32 v{t+1}, 13, v{t+1}
        v_mul_u32_u24 v{t+2}, {nl}, v{t+1}
        v_sub_u32 v{t+2}, v{t}, v{t+2}
        v_and_b32 v{t}, 7, v{t+1}
        v_lshrrev_b32 v{t+1}, 3, v{t+1}
        v_lshl_add_u32 v{t}, v{t}, 8, v{t+1}
        v_mul_u32_u24 v{t}, 9216, v{t}
        v_lshl_add_u32 v{t}, v{t+2}, 7, v{t}''')
        if OPT['rot1']:
            k(f'''v_lshrrev_b32 v{t+2}, 1, v{t+2}
            v_mul_u32_u24 v{t+2}, {OPT['rot1']}, v{t+2}
            v_add_u32 v{t+2}, s15, v{t+2}
            v_and_b32 v{t+2}, 31, v{t+2}
            v_mul_u32_u24 v{t+2}, {8*9216}, v{t+2}
            v_add_u32 v{t}, v{t}, v{t+2}''')
    else:
        k(f'''s_add_u32 s48, s{sN}, s{tmp}
        s_cmp_ge_u32 s48, 288
        s_cselect_b32 s49, 288, 0
        s_sub_u32 s48, s48, s49
        s_lshl_b32 s48, s48, 14''')
    if addr_only:
        return
    k.cond += 1
    fl = 'nt' if OPT['pfnt'] & which else ''
    k(f'buffer_load_dword v{t+3}, v{t}, s[{sd}:{sd+3}], s48 offen {fl}')
    k.cond -= 1
    k(f's_add_u32 s{sN}, s{sN}, {stride}\ns_branch {L}')
    k.label(E)


def tag_check4(k, r, t, first):
    k(f'''v_perm_b32 v{t}, v{r+1}, v{r}, s56
    v_perm_b32 v{t+1}, v{r+3}, v{r+2}, s57
    v_or_b32 v{t}, v{t}, v{t+1}''')
    if first:
        k(f'v_cmp_ne_u32 vcc, v{vTAG}, v{t}')
    else:
        k(f'v_cmp_ne_u32 s[48:49], v{vTAG}, v{t}\ns_or_b64 vcc, vcc, s[48:49]')


def check_sent(k, regs, t):
    def f():
        r = list(regs)
        k(f'v_max3_u32 v{t}, v{r[0]}, v{r[1]}, v{r[2]}')
        for x in r[3:]:
            k(f'v_max_u32 v{t}, v{t}, v{x}')
        k(f'v_cmp_eq_u32 vcc, -1, v{t}')
    return f


def stats(k, xf, u):
    k(f'v_pk_add_f32 {P(u)}, {P(xf)}, {P(xf+2)}\nv_pk_mul_f32 {P(u+2)}, {P(xf)}, {P(xf)}')
    for j in range(1, 9):
        if j > 1:
            k(f'v_pk_add_f32 {P(u)}, {P(u)}, {P(xf+2*j)}')
        k(f'v_pk_fma_f32 {P(u+2)}, {P(xf+2*j)}, {P(xf+2*j)}, {P(u+2)}')
    k(f'v_add_f32 v{u}, v{u}, v{u+1}\nv_add_f32 v{u+1}, v{u+2}, v{u+3}')
    red32(k, [u, u + 1], u + 2)
    k(f'''v_mul_f32 v{u}, {f32(-1/576)}, v{u}
    v_mul_f32 v{u+1}, {f32(1/576)}, v{u+1}
    v_fma_f32 v{u+1}, -v{u}, v{u}, v{u+1}
    v_max_f32 v{u+1}, 0, v{u+1}
    v_add_f32 v{u+1}, {f32(1e-5)}, v{u+1}
    v_rsq_f32 v{u+2}, v{u+1}
    v_mul_f32 v{u}, v{u}, v{u+2}''')


def gen_C(k):
    V = Alloc(4, 256)
    bb = V(4, 2); b2 = V()
    base = V.p
    xr = V(9, 1); t = V(12); twi = V(6); la = V(); a576 = V(); F64 = V(32, 4)
    keep = V.p
    mv = V(18, 2); ma = V(8); tw = V(8); xf = V(24, 2); st = V(16, 4); hf = V(12, 4); mf = V(60, 4); acc = V(24, 4)
    if OPT['touch'] == 2:
        tag(k, 'align')
    k(f'''v_lshrrev_b32 v{t}, 5, v0
    v_and_b32 v{t+1}, 31, v0
    v_mul_u32_u24 v{t+2}, {256*1152}, v{t}
    v_lshl_add_u32 v{t+2}, v{t+1}, 2, v{t+2}
    s_mul_i32 s62, s{sW}, {512*1152}
    s_mul_i32 s48, s{sS2}, 1152
    s_add_u32 s62, s62, s48''')
    srd(k, 40, pX, S * D * 2)
    for j in range(9):
        k(f'buffer_load_dword v{xr+j}, v{t+2}, s[40:43], s62 offen offset:{128*j}')
    srd(k, 36, pWS, WS_SIZE)
    load_tag(k, t + 3)
    g1_tile(k)
    g2_tile(k)
    srd(k, 44, pB1, F * 2)
    srd(k, 64, pB2, S * 2)
    k(f'''s_lshl_b32 s48, s51, 8
    s_lshl_b32 s49, s{sW}, 6
    s_add_u32 s48, s48, s49
    v_lshl_add_u32 v{t+4}, v2, 3, s48
    buffer_load_dwordx2 {P(bb)}, v{t+4}, s[44:47], 0 offen
    buffer_load_dwordx2 {P(bb+2)}, v{t+4}, s[44:47], 0 offen offset:32
    s_lshl_b32 s48, s54, 8
    s_add_u32 s48, s48, s49
    s_lshr_b32 s49, s53, 1
    s_lshl_b32 s49, s49, 5
    s_add_u32 s48, s48, s49
    v_lshl_add_u32 v{t+5}, v1, 1, s48
    buffer_load_ushort v{b2}, v{t+5}, s[64:67], 0 offen''')
    if OPT['tlb']:
        k(f'''s_cmp_eq_u32 s{sW}, 1
        s_cselect_b32 s56, s{pW1}, s{pWS}
        s_cselect_b32 s57, s{pW1+1}, s{pWS+1}
        s_cmp_eq_u32 s{sW}, 2
        s_cselect_b32 s56, s{pW2}, s56
        s_cselect_b32 s57, s{pW2+1}, s57
        s_cmp_eq_u32 s{sW}, 3
        s_cselect_b32 s56, s{pOUT}, s56
        s_cselect_b32 s57, s{pOUT+1}, s57
        s_mov_b32 s58, {S*F*2}
        s_cselect_b32 s58, {S*D*2}, s58
        s_cmp_eq_u32 s{sW}, 0
        s_cselect_b32 s58, {WS_SIZE}, s58
        s_mov_b32 s59, 0x20000
        v_lshlrev_b32 v{t+6}, {OPT['tlb']}, v0
        v_add_u32 v{t+6}, {(1<<OPT['tlb'])-128}, v{t+6}
        buffer_load_dword v{tw}, v{t+6}, s[56:59], 0 offen''')
    if OPT['warm']:
        h3_idx(k, 56)
        publish(k, 2, 56, t + 6)
        k(f's_lshl_b32 s56, s52, 6\ns_add_u32 s56, s56, s51')
        publish(k, 3, 56, t + 7, ncue=5, cue_add=27)
        k(f'buffer_load_dword v{ma}, v{t+6}, {WS}, 0 offen\nbuffer_load_dword v{ma+1}, v{t+7}, {WS}, 0 offen')
    if OPT['touch'] == 1:
        tag(k, 'align')
    xw = hf
    k(f'''v_lshlrev_b32 v{la}, 4, v0
    v_mul_u32_u24 v{xw}, {XROW}, v{t}
    v_lshl_add_u32 v{xw}, v{t+1}, 2, v{xw}
    s_mul_i32 s48, s{sW}, {2*XROW}
    s_add_u32 s48, s48, {L_X}
    v_add_u32 v{xw}, s48, v{xw}''')
    m = acc
    k(f'''v_lshrrev_b32 v{m}, 1, v1
    v_and_b32 v{m+1}, 1, v1
    v_and_b32 v{m+2}, 1, v{m}
    v_cvt_f32_u32 v{m}, v{m}
    v_cvt_f32_u32 v{m+1}, v{m+1}
    v_mul_f32 v{m}, {f32(0.125)}, v{m}
    v_mul_f32 v{m+1}, {f32(0.25)}, v{m+1}
    v_mul_u32_u24 v{m+2}, 0x8000, v{m+2}
    v_lshl_or_b32 v{m+2}, v{m+2}, 16, v{m+2}
    s_lshl_b32 s48, s{sW}, 10
    s_add_u32 s48, s48, {L_M}
    v_add_u32 v{m+3}, s48, v{la}
    s_mov_b32 s63, {f32(1/9)}''')
    for i in range(4):
        o = m + 12 + 4 * (i & 1)
        k(f'''s_add_u32 s48, s{sW}, {4*i}
        s_mul_i32 s49, s48, 43
        s_lshr_b32 s49, s49, 7
        s_mul_i32 s50, s49, 3
        s_sub_u32 s50, s48, s50
        s_lshl_b32 s50, s50, 2
        v_add_u32 v{m+4}, s50, v2
        v_cmp_gt_u32 vcc, 9, v{m+4}
        v_mul_u32_u24 v{m+4}, s49, v{m+4}
        v_cvt_f32_u32 v{m+4}, v{m+4}
        v_fma_f32 v{m+4}, v{m+4}, s63, v{m+1}
        v_add_f32 v{m+5}, v{m+4}, v{m}
        v_fma_f32 v{m+6}, v{m}, 2.0, v{m+4}
        v_add_f32 v{m+7}, v{m+6}, v{m}
        v_cos_f32 v{m+4}, v{m+4}
        v_cos_f32 v{m+5}, v{m+5}
        v_cos_f32 v{m+6}, v{m+6}
        v_cos_f32 v{m+7}, v{m+7}
        v_cvt_pk_bf16_f32 v{o}, v{m+4}, v{m+5}
        v_cvt_pk_bf16_f32 v{o+1}, v{m+6}, v{m+7}
        v_cndmask_b32 v{o}, 0, v{o}, vcc
        v_cndmask_b32 v{o+1}, 0, v{o+1}, vcc
        v_xor_b32 v{o+2}, v{m+2}, v{o}
        v_xor_b32 v{o+3}, v{m+2}, v{o+1}
        ds_write_b128 v{m+3}, {Q(o)} offset:{4096*i}''')
    def gen_twi():
        k(f'''v_lshrrev_b32 v{t+4}, 1, v2
        v_cvt_f32_u32 v{t+4}, v{t+4}
        v_add_f32 v{t+5}, 1.0, v{t+4}
        v_mul_f32 v{t+5}, {f32(1/(S*D))}, v{t+5}''')
        for tt in range(3):
            if tt:
                k(f'v_add_f32 v{t+4}, 2.0, v{t+4}')
            sc = f'v{t+5}' if tt == 0 else f32(2 / (S * D))
            k(f'''v_mul_f32 v{t+6}, v{t+4}, v{a576}
            v_cos_f32 v{t+7}, v{t+6}
            v_sin_f32 v{t+8}, v{t+6}
            v_mul_f32 v{twi+2*tt}, {sc}, v{t+7}
            v_mul_f32 v{twi+2*tt+1}, {sc}, v{t+8}''')

    def gen_f64():
        k(f'''s_lshl_b32 s48, s{sW}, 4
        v_add_u32 v{t+6}, s48, v1
        v_cvt_f32_u32 v{t+6}, v{t+6}
        v_mul_f32 v{t+6}, {f32(1/64)}, v{t+6}
        v_cvt_f32_u32 v{t+8}, v2
        v_mul_f32 v{t+8}, 4.0, v{t+8}''')
        for T in range(4):
            if T:
                k(f'v_add_f32 v{t+8}, {f32(16.0)}, v{t+8}')
            k(f'v_mul_f32 v{t+7}, v{t+8}, v{t+6}')
            dft_frag(k, t + 7, t + 6, F64 + 8 * T, F64 + 8 * T + 4, t, False)
        k(f'v_mul_f32 v{a576}, {f32(1/9)}, v{t+6}')
        for lb in range(1, 5):
            k(f'''v_mul_f32 v{t+4}, {f32(float(lb))}, v{a576}
            v_cos_f32 v{tw+2*lb-2}, v{t+4}
            v_sin_f32 v{tw+2*lb-1}, v{t+4}''')
    if OPT['f64'] == 0:
        gen_f64()
    if OPT['a0']:
        L1 = k.lab()
        k(f's_cmp_lt_u32 s2, 202\ns_cbranch_scc1 {L1}')
        vm = list(k.vm)
        if OPT['f64'] == 1:
            gen_f64()
        k.vm = vm
        k('s_barrier')
        k.label(L1)
    ta = st
    k(f'''v_lshrrev_b32 v{t+4}, 5, v0
    v_lshlrev_b32 v{t+4}, 2, v{t+4}
    s_lshl_b32 s48, s{sW}, 3
    s_add_u32 s48, s48, {L_ST}
    v_add_u32 v{t+4}, s48, v{t+4}
    v_bfe_u32 v{t}, v0, 2, 2
    v_mul_u32_u24 v{t}, {XROW}, v{t}
    v_and_b32 v{t+1}, 3, v0
    v_lshl_add_u32 v{t}, v{t+1}, 3, v{t}
    s_lshl_b32 s48, s{sW}, 5
    s_add_u32 s48, s48, {L_X}
    v_add_u32 v{t+1}, s48, v{t}
    v_lshl_add_u32 v{t}, v2, 7, v{t+1}
    v_mov_b32 v{t+2}, {L_ST}
    v_add_u32 v{t+3}, {L_M}, v{la}''')
    for j in range(9):
        k(f'ds_write_b32 v{xw}, v{xr+j} offset:{128*j}')
        k(f'v_lshlrev_b32 v{xf+2*j}, 16, v{xr+j}\nv_and_b32 v{xf+2*j+1}, 0xffff0000, v{xr+j}')
    stats(k, xf, t + 6)
    k(f'ds_write_b32 v{t+4}, v{t+8}\nds_write_b32 v{t+4}, v{t+6} offset:32')
    mark(k, 1)
    if OPT['touch'] == 3:
        tag(k, 'align')
    bar(k, lg=0)
    for i in range(4):
        k(f'ds_read_b128 {Q(st+4*i)}, v{t+2} offset:{16*i}')
    for tt in range(3):
        a = t if tt < 2 else t + 1
        k(f'ds_read_b64_tr_b16 {P(hf+4*tt)}, v{a} offset:{512*tt}')
        k(f'ds_read_b64_tr_b16 {P(hf+4*tt+2)}, v{a} offset:{512*tt+4*XROW}')
    for fi in range(15):
        k(f'ds_read_b128 {Q(mf+4*fi)}, v{t+3} offset:{1024*fi}')
    if OPT['f64'] == 1:
        L1 = k.lab()
        if OPT['a0']:
            k(f's_cmp_ge_u32 s2, 202\ns_cbranch_scc1 {L1}')
        lg, vm = list(k.lg), list(k.vm)
        gen_f64()
        k.lg, k.vm = lg, vm
        k.label(L1)
    for tt in range(3):
        for p in range(4):
            x = xf + 8 * tt + 2 * p
            k(f'''v_lshlrev_b32 v{x}, 16, v{hf+4*tt+p}
            v_and_b32 v{x+1}, 0xffff0000, v{hf+4*tt+p}
            v_pk_fma_f32 {P(x)}, {P(x)}, {P(st+2*p)}, {P(st+8+2*p)}''')
    def gen_m1i(m):
        k(f'''v_and_b32 v{m}, 7, v1
        v_cvt_f32_u32 v{m}, v{m}
        v_mul_f32 v{m}, {f32(0.125)}, v{m}
        v_and_b32 v{m+1}, 1, v2
        v_cvt_f32_u32 v{m+1}, v{m+1}
        v_mul_f32 v{m+1}, 4.0, v{m+1}
        v_mul_f32 v{m+1}, v{m+1}, v{m}
        v_lshrrev_b32 v{m+2}, 3, v1
        v_lshrrev_b32 v{m+3}, 1, v2
        s_lshl_b32 s48, s{sW}, 10
        s_add_u32 s48, s48, {L_MI}
        v_add_u32 v{m+4}, s48, v{la}''')
        for i in range(4):
            o = m + 12 + 4 * (i & 1)
            k(f'''s_add_u32 s48, s{sW}, {4*i}
            s_mul_i32 s49, s48, 43
            s_lshr_b32 s49, s49, 7
            s_mul_i32 s50, s49, 3
            s_sub_u32 s50, s48, s50
            s_lshl_b32 s50, s50, 1
            s_lshl_b32 s49, s49, 1
            v_add_u32 v{m+5}, s49, v{m+2}
            v_add_u32 v{m+6}, s50, v{m+3}
            v_cmp_gt_u32 vcc, 9, v{m+5}
            v_cmp_gt_u32 s[48:49], 5, v{m+6}
            v_mul_u32_u24 v{m+5}, v{m+5}, v{m+6}
            v_cvt_f32_u32 v{m+5}, v{m+5}
            s_and_b64 vcc, vcc, s[48:49]
            v_fma_f32 v{m+5}, v{m+5}, s63, v{m+1}''')
            for j in range(4):
                if j:
                    k(f'v_add_f32 v{m+5}, v{m+5}, v{m}')
                cs_pair(k, m + 5, m + 6 + 2 * (j & 1), m + 7 + 2 * (j & 1), [(o + j, 'c', '-s')])
            for j in range(4):
                k(f'v_cndmask_b32 v{o+j}, 0, v{o+j}, vcc')
            k(f'ds_write_b128 v{m+4}, {Q(o)} offset:{4096*i}')
    if OPT['m1early'] == 1:
        gen_m1i(acc)
    if OPT['m1early'] == 2:
        L1 = k.lab()
        k.wait(lg=0)
        k(f's_cmp_ge_u32 s2, 202\ns_cbranch_scc1 {L1}')
        gen_m1i(acc)
        k.label(L1)
    gen_twi()
    finish_tag(k)
    k(f'''s_lshl_b32 s48, s{sW}, 6
    s_add_u32 s48, s48, {L_E}
    v_mul_u32_u24 v{t}, 576, v2
    v_lshl_add_u32 v{t}, v1, 2, v{t}
    v_add_u32 v{t}, s48, v{t}
    v_mul_u32_u24 v{t+1}, 288, v1
    v_lshl_add_u32 v{t+1}, v2, 4, v{t+1}
    v_add_u32 v{t+1}, {L_E}, v{t+1}
    v_bfe_u32 v{t+9}, v1, 1, 2
    v_xor_b32 v{t+9}, v{t+9}, v2
    v_lshl_add_u32 v{t+9}, v1, 2, v{t+9}
    s_mul_i32 s48, s{sW}, 3072
    s_add_u32 s48, s48, {L_TR}
    v_lshl_add_u32 v{t+9}, v{t+9}, 4, s48
    v_add_u32 v{t+10}, s48, v{la}
    v_lshrrev_b32 v{t+2}, 3, v0
    v_xor_b32 v{t+2}, v{t+2}, v0
    v_and_b32 v{t+2}, 3, v{t+2}
    v_lshlrev_b32 v{t+2}, 4, v{t+2}
    v_lshrrev_b32 v{t+3}, 2, v0
    v_lshl_add_u32 v{t+2}, v{t+3}, 16, v{t+2}
    s_lshl_b32 s48, s{sW}, 14
    s_lshl_b32 s49, s{sS2}, 6
    s_add_u32 s48, s48, s49
    s_add_u32 s48, s48, {WS_T1}
    v_add_u32 v{t+2}, s48, v{t+2}
    v_add_u32 v{t+3}, {1<<20}, v{t+2}
    v_add_u32 v{t+4}, {2<<20}, v{t+2}
    v_cmp_gt_u32 vcc, 32, v0
    v_mov_b32 v{t+5}, {OOB}
    v_cndmask_b32 v{t+4}, v{t+5}, v{t+4}, vcc
    s_lshl_b32 s58, s{sW}, 12
    s_add_u32 s58, s58, {L_MG}
    v_lshl_add_u32 v{ma+3}, v1, 2, s58
    v_lshl_add_u32 v{ma}, v2, 6, v{ma+3}
    v_add_u32 v{ma+3}, 512, v{ma+3}
    v_add_u32 v{ma+1}, 1152, v{ma}
    v_add_u32 v{ma+2}, 2304, v{ma}
    v_add_u32 v{ma+4}, 1152, v{ma+3}
    v_add_u32 v{ma+5}, 2304, v{ma+3}
    v_cmp_gt_u32 vcc, 24, v0
    v_cndmask_b32 v{ma+6}, v{t+5}, v{la}, vcc
    s_mul_i32 s59, s{sJ}, 13824
    s_mul_i32 s48, s{sW}, 3456
    s_add_u32 s59, s59, s48
    s_add_u32 s59, s59, {WS_MODG}
    v_min_u32 v{ma+7}, {31*16}, v{la}
    s_mul_i32 s48, s{sW}, 2560
    s_mul_i32 s60, s{sS2}, 10240
    s_add_u32 s60, s60, s48
    s_add_u32 s60, s60, {WS_T2}
    v_mov_b64 {P(st+12)}, -1
    v_mov_b64 {P(st+14)}, -1
    v_and_b32 v{t+6}, 3, v1
    v_lshlrev_b32 v{t+6}, 3, v{t+6}
    v_bfe_u32 v{t+6}, v{vTAG}, v{t+6}, 8
    s_mov_b32 m0, s58''')
    tag(k, 'touch c1')
    tag(k, 'region c1')
    k.wait(0, 0)
    mark(k, 2)

    def chk():
        for p in range(3):
            for tt in range(3):
                o = 64 * tt if tt < 2 else 0
                k(f'ds_read2_b32 {P(mv+6*p+2*tt)}, v{ma+p+(3 if tt==2 else 0)} offset0:{o} offset1:{o+144}')
        for i in range(0, 18, 2):
            k(f'v_xor_b32 v{mv+i}, v{mv+i}, v{t+6}\nv_xor_b32 v{mv+i+1}, v{mv+i+1}, v{t+6}')
            k(f'v_or3_b32 v{t+8}, v{mv+i}, v{mv+i+1}, v{t+8}' if i else f'v_or_b32 v{t+8}, v{mv}, v{mv+1}')
        k(f'v_and_b32 v{t+8}, 0xff, v{t+8}\nv_cmp_ne_u32 vcc, 0, v{t+8}')

    def clr2():
        for i in range(3):
            k(f'buffer_store_dwordx4 {Q(st+12)}, v{la if i<2 else ma+7}, {WS}, s60 offen offset:{1024*i} sc1')
    if OPT['c2'] == 0:
        clr2()
        k.wait(0)
    if OPT['dly']:
        k(f's_sleep {OPT["dly"]}')
    poll(k, [f'buffer_load_dwordx4 v{la if i<3 else ma+6}, {WS}, s59 offen offset:{1024*i} sc1 lds' for i in range(4)], chk, alt=([59], 0x20000, OPT['nm']))
    mark(k, 3)
    if OPT['c2'] == 1:
        clr2()
    for tt in range(3):
        a = mv + 2 * tt
        k(f'v_pk_add_f32 {P(a)}, {P(a)}, {P(a+6)}')
    for tt in range(3):
        a = mv + 2 * tt
        k(f'v_pk_add_f32 {P(a)}, {P(a)}, {P(a+12)}')
    for tt in range(3):
        a = mv + 2 * tt
        k(f'''v_cvt_pk_bf16_f32 v{a+6}, v{a}, v{a+1}
        v_and_b32 v{a+1}, 0xffff0000, v{a+6}
        v_add_f32 v{a+1}, 1.0, v{a+1}
        v_lshlrev_b32 v{a}, 16, v{a+6}
        v_cvt_pk_bf16_f32 v{a+1}, 0, v{a+1}''')
        for p in range(4):
            x = xf + 8 * tt + 2 * p
            k(f'v_pk_fma_f32 {P(x)}, {P(x)}, {P(a)}, {P(a)} op_sel:[0,1,0] op_sel_hi:[1,1,0]')
        for p in range(4):
            x = xf + 8 * tt + 2 * p
            k(f'v_cvt_pk_bf16_f32 v{hf+4*tt+p}, v{x}, v{x+1}')

    def twid(lb):
        r = []
        for jj in range(2):
            z = acc + 4 * lb + 2 * jj
            o = xf + 4 * (jj + 2 * (lb & 1))
            c = tw + 2 * lb - 2
            if lb == 0:
                r.append(f'v_cvt_pk_bf16_f32 v{o+2}, v{z}, v{z+1}')
            elif OPT['tw1'] & 1:
                r += [f'v_mul_f32 v{o}, v{z}, v{c}', f'v_mul_f32 v{o+1}, v{z+1}, v{c}',
                      f'v_fmac_f32 v{o}, v{z+1}, v{c+1}', f'v_fma_f32 v{o+1}, -v{z}, v{c+1}, v{o+1}',
                      f'v_cvt_pk_bf16_f32 v{o+2}, v{o}, v{o+1}']
            else:
                r += [f'v_pk_mul_f32 {P(o)}, {P(z)}, {P(c)} op_sel_hi:[1,0]',
                      f'v_pk_fma_f32 {P(o)}, {P(z)}, {P(c)}, {P(o)} op_sel:[1,1,0] op_sel_hi:[0,1,1] neg_hi:[1,0,0]',
                      f'v_cvt_pk_bf16_f32 v{o+2}, v{o}, v{o+1}']
            r.append(f'ds_write_b32 v{t}, v{o+2} offset:{(8*lb+jj)*288}')
        return r
    order = [1, 2, 3, 4, 0]
    pend = []
    for x, lb in enumerate(order):
        if x >= 2:
            pend += twid(order[x - 2])
        for tt in range(3):
            a = acc + 4 * lb
            k(f'{MF} {Q(a)}, {Q(mf+4*(3*lb+tt))}, {Q(hf+4*tt)}, ' + ('0' if tt == 0 else Q(a)))
            for _ in range(0 if OPT['tw1'] & 2 else (2 if OPT['tw1'] & 1 else (4 if tt < 2 else 0))):
                if pend:
                    k(pend.pop(0))
    for x in pend + twid(order[3]) + twid(order[4]):
        k(x)
    k.wait(lg=0)
    xmark(k, 'p1', 10)
    k('s_barrier')
    xmark(k, 'p1', 11)
    ef = mf
    for tt in range(3):
        for T in range(4):
            k(f'ds_read_b128 {Q(ef+4*(4*tt+T))}, v{t+1} offset:{16*288*tt+64*T}')
    pend = []
    for tt in range(3):
        for T in range(4):
            for ri in range(2):
                a = acc + 8 * tt + 4 * ri
                k(f'{MF} {Q(a)}, {Q(F64+8*T+4*ri)}, {Q(ef+4*(4*tt+T))}, ' + ('0' if T == 0 else Q(a)))
                if T >= 2 and pend:
                    k(pend.pop(0))
        for x in pend:
            k(x)
        o = hf + 4 * tt
        pend = [f'v_cvt_pk_bf16_f32 v{o+j}, v{acc+8*tt+j}, v{acc+8*tt+4+j}' for j in range(4)]
        st_prev = f'buffer_store_dwordx4 {Q(st+4*(tt-1))}, v{t+1+tt}, {WS}, 0 offen sc1'
        pend.append(f'ds_write_b128 v{t+9}, {Q(o)} offset:{1024*tt}\nds_read_b128 {Q(st+4*tt)}, v{t+10} offset:{1024*tt}')
        if tt:
            pend.append(st_prev)
    for x in pend:
        k(x)
    k(f'buffer_store_dwordx4 {Q(st+8)}, v{t+4}, {WS}, 0 offen sc1')
    if OPT['c2'] == 2:
        clr2()
    mark(k, 4)
    V.p = keep
    za = V(8); zf = V(48, 4); mf = V(60, 4); acc = V(24, 4); ef = V(12, 4); ad = V(8); zl = V(4); xf = V(18, 2)
    yf = zf + 20
    assert za + 8 <= st
    k(f'''v_lshrrev_b32 v{t}, 2, v1
    v_and_b32 v{t}, 2, v{t}
    v_xor_b32 v{t}, v{t}, v2
    v_lshlrev_b32 v{t}, 4, v{t}
    v_lshl_add_u32 v{t}, v1, 8, v{t}
    v_add_u32 v{t}, {L_Z}, v{t}
    v_and_b32 v{t+1}, 7, v1
    v_lshlrev_b32 v{t+1}, 8, v{t+1}
    v_lshl_add_u32 v{t+1}, v2, 4, v{t+1}
    v_add_u32 v{t+1}, {L_Z}, v{t+1}
    v_and_b32 v{t+5}, 3, v1''')
    for T in range(4):
        k(f'''v_xor_b32 v{t+6}, {T}, v{t+5}
        v_lshl_add_u32 v{za+T}, v{t+6}, 6, v{t}
        v_lshl_add_u32 v{za+4+T}, v{t+6}, 6, v{t+1}''')
    k(f'''v_and_b32 v{t}, 7, v1
    v_mul_u32_u24 v{t}, {YROW}, v{t}
    v_lshl_add_u32 v{t}, v2, 4, v{t}
    s_lshl_b32 s48, s{sW}, 6
    s_add_u32 s48, s48, {L_Y}
    v_add_u32 v{t}, s48, v{t}
    v_lshrrev_b32 v{t+1}, 3, v1
    v_lshl_add_u32 v{ad+1}, v{t+1}, 8, v{t}
    v_cmp_gt_u32 vcc, 8, v1
    v_mov_b32 v{t+5}, {L_Y+8*YROW-2048}
    v_cndmask_b32 v{ad}, v{t+5}, v{t}, vcc
    v_lshrrev_b32 v{t+5}, 5, v0
    s_lshl_b32 s48, s{sW}, 1
    v_add_u32 v{t+5}, s48, v{t+5}
    v_and_b32 v{t+6}, 31, v0
    v_mul_u32_u24 v{t}, {YROW}, v{t+5}
    v_lshl_add_u32 v{t}, v{t+6}, 3, v{t}
    v_add_u32 v{ad+2}, {L_Y}, v{t}
    v_mul_u32_u24 v{t}, {XROW}, v{t+5}
    v_lshl_add_u32 v{t}, v{t+6}, 2, v{t}
    v_add_u32 v{ad+3}, {L_H}, v{t}
    v_mul_u32_u24 v{t}, 1152, v{t+5}
    v_lshl_add_u32 v{t}, v{t+6}, 2, v{t}
    v_add_u32 v{ad+7}, {L_Z}, v{t}
    v_lshlrev_b32 v{t}, 3, v{t+6}
    v_add_u32 v{ad+4}, {L_MOD}, v{t}
    v_add_u32 v{a576}, {L_MOD+256}, v{t}
    v_bfe_u32 v{t}, v0, 2, 2
    v_mul_u32_u24 v{t}, {XROW}, v{t}
    v_and_b32 v{t+1}, 3, v0
    v_lshl_add_u32 v{t}, v{t+1}, 3, v{t}
    v_lshl_add_u32 v{t}, v2, 5, v{t}
    s_lshl_b32 s48, s{sW}, 7
    s_add_u32 s48, s48, {L_H}
    v_add_u32 v{ad+5}, s48, v{t}
    v_add_u32 v{ad+6}, {L_MI}, v{la}
    v_min_u32 v{zl}, {31*16}, v{la}
    s_mul_i32 s48, s{sW}, 2560
    s_mul_i32 s66, s{sS2}, 10240
    s_add_u32 s66, s66, s48
    s_add_u32 s66, s66, {WS_T2}
    s_add_u32 s48, s48, {L_Z}
    v_add_u32 v{zl+1}, s48, v{la}
    v_add_u32 v{zl+2}, s48, v{zl}
    s_lshr_b32 s48, s{sJ}, 1
    s_lshl_b32 s48, s48, 12
    s_mul_i32 s49, s{sW}, 640
    s_add_u32 s48, s48, s49
    s_add_u32 s48, s48, {WS_FLAG + 0x8000}
    v_min_u32 v{zl+3}, {39*16}, v{la}
    v_add_u32 v{zl+3}, s48, v{zl+3}''')
    k.wait(0)
    if OPT.get('mk') != 'u':
        mark(k, 1)
    bar(k, 0)
    if OPT['wx'] == 1:
        warm_xch(k, t, ef)
    if not OPT['m1early']:
        gen_m1i(acc)
    if OPT['m1early'] == 2:
        L1 = k.lab()
        k(f's_cmp_lt_u32 s2, 202\ns_cbranch_scc1 {L1}')
        gen_m1i(acc)
        k.label(L1)
    k(f's_lshl_b32 s58, s{sW}, 10')
    k(f'''v_add_u32 v{t}, s58, v{la}
    v_add_u32 v{t+1}, 4096, v{t}
    v_min_u32 v{t+1}, {431*16}, v{t+1}
    v_min_u32 v{t+2}, {143*16}, v{t}
    v_add_u32 v{t+2}, {432*16}, v{t+2}
    s_mov_b32 s56, 0x0c0c0400
    s_mov_b32 s57, 0x04000c0c
    s_mov_b32 s58, {WS_MODB}
    s_mov_b32 s59, {WS_MODB+9216}
    s_mov_b32 s60, {WS_MODB+18432}''')
    mb = zf

    def modb_loads(rounds):
        return [f'buffer_load_dwordx4 {Q(mb+12*x+4*p)}, v{t+rd}, {WS}, s{58+p} offen sc1' for x, rd in enumerate(rounds) for p in range(2)]

    def modb_chk(n):
        def f():
            for x in range(2 * n):
                tag_check4(k, mb + 12 * (x >> 1) + 4 * (x & 1), t + 4, x == 0)
        return f

    def modb_sum(x, one):
        a = mb + 12 * x
        for j in range(8):
            k(f'v_and_b32 v{a+j}, 0xffffff00, v{a+j}')
        for p in (1,):
            k(f'v_pk_add_f32 {P(a)}, {P(a)}, {P(a+4*p)}\nv_pk_add_f32 {P(a+2)}, {P(a+2)}, {P(a+4*p+2)}')
        for j in range(4):
            k(f'v_cvt_pk_bf16_f32 v{a+j}, 0, v{a+j}')
        if one is not None:
            for j in range(4):
                k(f'v_add_f32 v{a+j}, v{a+j}, v{one}')
            for j in range(4):
                k(f'v_cvt_pk_bf16_f32 v{a+j}, 0, v{a+j}')

    def clear_h2():
        c0, n = spec_range(0)
        k(f'v_mov_b64 {P(ef)}, -1\nv_mov_b64 {P(ef+2)}, -1\ns_lshl_b32 s61, s2, 2\ns_add_u32 s61, s61, s{sW}')
        clear_loop(k, 61, 640, 72 * n, lambda: k(f's_lshl_b32 s48, s48, 10\ns_add_u32 s48, s48, {WS_H2 + c0*73728}'), ef, la)
    L1 = k.lab()
    k.wait(lg=0)
    k(f's_cmp_ge_u32 s{sR}, 20\ns_cbranch_scc1 {L1}')
    if OPT['sp1'] and OPT['cl3'] == 0:
        clear_h2()
        k.wait(0)
    k('s_barrier')
    if OPT['sp1'] and OPT['cl3'] == 1:
        clear_h2()
    k.label(L1)
    for l in modb_loads([0, 1]):
        k(l)
    L1 = k.lab()
    k(f's_cmp_ge_u32 s{sR}, 20\ns_cbranch_scc1 {L1}\ns_barrier')
    if OPT['sp1'] and OPT['cl3'] == 1:
        vm = k.vm
        bar(k, 4)
        k.vm = vm
    k.label(L1)
    L2 = k.lab()
    k.wait(0)
    modb_chk(2)()
    k(f's_cbranch_vccz {L2}')
    poll(k, modb_loads([0, 1]), modb_chk(2))
    k.label(L2)
    k(f'v_cmp_le_u32 vcc, {288*16}, v{t+1}\nv_cndmask_b32 v{t+4}, 0, 1.0, vcc')
    modb_sum(0, None)
    modb_sum(1, t + 4)
    k(f'''v_add_u32 v{t+4}, {L_MOD}, v{t}
    v_add_u32 v{t+5}, {L_MOD}, v{t+1}
    ds_write_b128 v{t+4}, {Q(mb)}
    ds_write_b128 v{t+5}, {Q(mb+12)}''')
    L2 = k.lab()
    k(f's_cmp_lg_u32 s2, 255\ns_cbranch_scc1 {L2}')
    k(f's_mov_b32 s50, {WS_MOD+2*2304}')
    k(f'buffer_store_dwordx4 {Q(mb)}, v{t}, {WS}, s50 offen sc1\nbuffer_store_dwordx4 {Q(mb+12)}, v{t+1}, {WS}, s50 offen sc1')
    mb += 24
    poll(k, modb_loads([2]), modb_chk(1))
    modb_sum(0, None)
    k(f'buffer_store_dwordx4 {Q(mb)}, v{t+2}, {WS}, s50 offen sc1')
    k.label(L2)
    for j in range(9):
        k(f'v_lshlrev_b32 v{xf+2*j}, 16, v{xr+j}\nv_and_b32 v{xf+2*j+1}, 0xffff0000, v{xr+j}')
    LN, LJ = k.lab(), k.lab()
    k(f's_cmp_ge_u32 s{sR}, 20\ns_cbranch_scc1 {LN}')
    for fi in range(15):
        k(f'ds_read_b128 {Q(mf+4*fi)}, v{ad+6} offset:{1024*fi}')
    bar(k, lg=0)
    k(f's_branch {LJ}')
    k.label(LN)
    bar(k, lg=0)
    for fi in range(15):
        k(f'ds_read_b128 {Q(mf+4*fi)}, v{ad+6} offset:{1024*fi}')
    if OPT['ec2'] != 2:
        wait_cue(k, 1, t)
    k.wait(lg=0)
    k.label(LJ)
    if OPT['ec2']:
        poll(k, [f'buffer_load_dword v{t}, v{zl+3}, {WS}, 0 offen sc1'], check_tags(k, [t]), masked=True)
    mark(k, 5)
    zi = ef
    poll(k, [f'buffer_load_dwordx4 {Q(zi+4*i)}, v{la if i<2 else zl}, {WS}, s66 offen offset:{1024*i} sc1' for i in range(3)],
         check_sent(k, [zi, zi + 4, zi + 8], t), masked=True, sleep=OPT['sl2'])
    for i in range(3):
        k(f'ds_write_b128 v{zl+1 if i<2 else zl+2}, {Q(zi+4*i)} offset:{1024*i}')
    mark(k, 6)
    bar(k, lg=0)
    xmark(k, 'p3', 1)
    xmark(k, 'q3', 1)
    for tt in range(3):
        for T in range(4):
            k(f'ds_read_b128 {Q(zf+4*(4*tt+T))}, v{za+T+(4 if tt==2 else 0)} offset:{4096*tt}')

    def twid3(tt):
        c = twi + 2 * tt
        if OPT['tw3'] & 1:
            r = []
            for j in range(4):
                re, im, o = acc + 8 * tt + j, acc + 8 * tt + 4 + j, t + 2 * j
                r.append([f'v_mul_f32 v{o}, v{re}, v{c}', f'v_mul_f32 v{o+1}, v{im}, v{c}',
                          f'v_fma_f32 v{o}, -v{im}, v{c+1}, v{o}', f'v_fmac_f32 v{o+1}, v{re}, v{c+1}',
                          f'v_cvt_pk_bf16_f32 v{ef+4*tt+j}, v{o}, v{o+1}'])
            return sum(r, [])
        r = [[], []]
        for p in range(2):
            re, im, o = acc + 8 * tt + 2 * p, acc + 8 * tt + 4 + 2 * p, t + 4 * p
            r[p] = [f'v_pk_mul_f32 {P(o)}, {P(re)}, {P(c)} op_sel_hi:[1,0]',
                    f'v_pk_mul_f32 {P(o+2)}, {P(im)}, {P(c)} op_sel_hi:[1,0]',
                    f'v_pk_fma_f32 {P(o)}, {P(im)}, {P(c)}, {P(o)} op_sel:[0,1,0] neg_lo:[1,0,0] neg_hi:[1,0,0]',
                    f'v_pk_fma_f32 {P(o+2)}, {P(re)}, {P(c)}, {P(o+2)} op_sel:[0,1,0]',
                    f'v_cvt_pk_bf16_f32 v{ef+4*tt+2*p}, v{o}, v{o+2}',
                    f'v_cvt_pk_bf16_f32 v{ef+4*tt+2*p+1}, v{o+1}, v{o+3}']
        return [r[p][2 * q + i] for q in range(3) for p in range(2) for i in range(2)]
    ya = zf
    s2m = [[f'{MF} {Q(acc+8*tt+4*ri)}, {Q(zf+4*(4*tt+T))}, {Q(F64+8*T+4*(1-ri))}, ' + ('0' if T == 0 else Q(acc + 8 * tt + 4 * ri))
            for T in range(4) for ri in range(2)] for tt in range(3)]
    jm = [[f'{MF} {Q(ya+4*mt)}, {Q(ef+4*tt)}, {Q(mf+4*(3*mt+tt))}, ' + ('0' if tt == 0 else Q(ya + 4 * mt))
           for mt in range(5)] for tt in range(3)]

    def weave(mm, vv, skip, per):
        for i, x in enumerate(mm):
            k(x)
            if i >= skip:
                for y in vv[:per]:
                    k(y)
                vv = vv[per:]
        return vv
    if OPT['tw3'] & 2:
        for x in s2m[0] + s2m[1] + s2m[2] + twid3(0) + twid3(1) + jm[0][:1] + twid3(2) + jm[0][1:] + jm[1] + jm[2]:
            k(x)
    else:
        n = len(twid3(0))
        weave(s2m[0], [], 0, 0)
        xmark(k, 'q3', 2)
        rest = weave(s2m[1], twid3(0), 4, 2)
        rest = weave(s2m[2], rest + twid3(1), 0, 2)
        xmark(k, 'q3', 3)
        for x in rest[:max(0, len(rest) - n)]:
            k(x)
        rest = weave(jm[0], rest[max(0, len(rest) - n):] + twid3(2), 0, 2)
        for x in rest[:max(0, len(rest) - n)]:
            k(x)
        rest = weave(jm[1], rest[max(0, len(rest) - n):], 0, 2)
        for x in rest + jm[2]:
            k(x)
        xmark(k, 'q3', 4)
    pos = {0: 0, 2: 2, 1: 4, 3: 6, 4: 8, 6: 10, 5: 12, 7: 14, 8: 16}

    def vec_reads(dst, va, vb, o):
        r = []
        for j in (0, 1, 4, 5):
            e = o // 256 + j
            r.append(f'ds_read2st64_b64 {Q(dst+pos[j])}, v{vb if e & 1 else va} offset0:{e//2} offset1:{e//2+1}')
        return r + [f'ds_read_b64 {P(dst+16)}, v{va} offset:{o+2048}']
    ga, cb, sb = F64, acc, mf
    if not OPT['yw']:
        for x in vec_reads(ga, ad + 4, a576, 0):
            k(x)
    for mt in range(5):
        k(f'ds_write_b128 v{ad+1 if mt<4 else ad}, {Q(ya+4*mt)} offset:{512*mt}')
    rd = vec_reads(cb, ad + 4, a576, 4608) + vec_reads(sb, ad + 4, a576, 2304)
    if OPT['yw']:
        rd = vec_reads(ga, ad + 4, a576, 0) + rd
        for x in rd[:OPT['yw']]:
            k(x)
        k.wait(lg=OPT['yw'])
        xmark(k, 'p3', 2)
        xmark(k, 'q3', 5)
        k('s_barrier')
        xmark(k, 'p3', 3)
        late = rd[OPT['yw']:]
    else:
        for x in rd:
            k(x)
        k.wait(lg=10)
    if not OPT['yw']:
        xmark(k, 'p3', 2)
        xmark(k, 'q3', 5)
        k('s_barrier')
        xmark(k, 'p3', 3)
        late = []
    for j in range(9):
        k(f'ds_read_b64 {P(yf+2*j)}, v{ad+2} offset:{256*j}')
    for x in late:
        k(x)
    k(f'''s_mul_i32 s48, s{sS2}, 9216
    s_lshl_b32 s49, s{sW}, 10
    s_add_u32 s48, s48, s49
    s_add_u32 s48, s48, {WS_H2}
    s_add_u32 s49, s48, 4096
    s_add_u32 s50, s48, 8192''')
    u = t + 6
    for j in range(9):
        k(f'v_pk_fma_f32 {P(xf+2*j)}, {P(yf+2*j)}, {P(ga+pos[j])}, {P(xf+2*j)}')
    stats(k, xf, u)
    for j in range(9):
        k(f'v_pk_fma_f32 {P(yf+2*j)}, {P(xf+2*j)}, {P(u+2)}, {P(u)} op_sel_hi:[1,0,0]')
    for j in range(9):
        k(f'v_pk_fma_f32 {P(yf+2*j)}, {P(yf+2*j)}, {P(cb+pos[j])}, {P(sb+pos[j])}')
    stats(k, yf, u)
    for j in range(9):
        k(f'v_pk_fma_f32 {P(yf+2*j)}, {P(yf+2*j)}, {P(u+2)}, {P(u)} op_sel_hi:[1,0,0]')
        k(f'v_cvt_pk_bf16_f32 v{xr+j}, v{yf+2*j}, v{yf+2*j+1}')
        if j & 1:
            k(f'ds_write2_b32 v{ad+3}, v{xr+j-1}, v{xr+j} offset0:{32*j-32} offset1:{32*j}')
    k(f'ds_write_b32 v{ad+3}, v{xr+8} offset:1024')
    k.wait(lg=0)
    xmark(k, 'p3', 4)
    k('s_barrier')
    xmark(k, 'p3', 5)
    for i in range(3):
        o = acc + 4 * i
        k(f'ds_read_b64_tr_b16 {P(o)}, v{ad+5} offset:{512*i}')
        k(f'ds_read_b64_tr_b16 {P(o+2)}, v{ad+5} offset:{512*i+4*XROW}')
    for i in range(2):
        k(f'buffer_store_dwordx4 {Q(acc+4*i)}, v{la}, {WS}, s{48+i} offen sc1')
    L1 = k.lab()
    k.wait(lg=0)
    k(f's_cmp_lg_u32 s{sW}, 0\ns_cbranch_scc1 {L1}')
    k(f'buffer_store_dwordx4 {Q(acc+8)}, v{la}, {WS}, s50 offen sc1')
    k.label(L1)
    mark(k, 7)
    for j in range(9):
        k(f'v_cvt_pk_bf16_f32 v{xr+j}, v{xf+2*j}, v{xf+2*j+1}')
    for j in range(0, 8, 2):
        k(f'ds_write2_b32 v{ad+7}, v{xr+j}, v{xr+j+1} offset0:{32*j} offset1:{32*j+32}')
    k(f'ds_write_b32 v{ad+7}, v{xr+8} offset:1024')
    bar(k, lg=0)
    V.p = base
    la2 = V(); t = V(8); vA0 = V(); vA40 = V(); vW0 = V(2); vA = V(); vA4 = V(); vW = V(2)
    fa = V(48, 4); fw = V(16, 4); rg = V(96, 4)
    V.p = 204
    acc = V(48, 4)

    def w_read_addr(extra):
        k(f'''v_lshrrev_b32 v{t}, 2, v0
        v_and_b32 v{t+1}, 7, v{t}
        s_lshl_b32 s59, s{sW}, 1
        s_add_u32 s59, s59, {extra}
        v_xor_b32 v{t+1}, s59, v{t+1}
        v_xor_b32 v{t+2}, 1, v{t+1}
        v_and_b32 v{t+3}, 3, v0
        v_lshlrev_b32 v{t+3}, 3, v{t+3}
        v_lshl_add_u32 v{t}, v{t}, 8, v{t+3}
        v_lshl_add_u32 v{vW0}, v{t+1}, 5, v{t}
        v_lshl_add_u32 v{vW0+1}, v{t+2}, 5, v{t}''')
    LN, LJ = k.lab(), k.lab()
    k(f's_cmp_ge_u32 s{sR}, 27\ns_cbranch_scc1 {LN}')
    w_read_addr(0)
    rg1 = [rg + 16 * x for x in range(6)]
    for x in preload_w(vW0, vW, list(enumerate(rg1))):
        k(x)
    if OPT['rf']:
        bar(k, lg=0)
    bar(k, 0, 0)
    nx = len(reg_stages(0)) - 6
    rgx = [188, fa + 24][:nx]
    k(f'''v_mul_u32_u24 v{vA0}, 1536, v2
    v_lshl_add_u32 v{vA0}, v1, 4, v{vA0}
    v_add_u32 v{vA0}, {L_ACT}, v{vA0}''')
    for nt in range(2):
        for p in range(2):
            a = acc + 4 * nt + 2 * p
            k(f'v_lshlrev_b32 v{a}, 16, v{bb+2*nt+p}\nv_and_b32 v{a+1}, 0xffff0000, v{bb+2*nt+p}')
    for mt in range(1, 6):
        for i in range(0, 8, 2):
            k(f'v_mov_b64 {P(acc+8*mt+i)}, {P(acc+i)}')
    if nx:
        k('s_barrier')
        for x in preload_w(vW0, vW, list(enumerate(rgx))):
            k(x)
        bar(k, lg=0)
    tag(k, 'touch c2')
    tag(k, 'region c2')
    ebl = OPT['ebl'] and (nx == 2 or OPT['single'])

    def u_addr():
        k(f'''s_lshl_b32 s48, s51, 2
        s_add_u32 s48, s48, s{sW}
        s_mul_i32 s48, s48, {4*9216}
        s_mul_i32 s49, s52, {96*16}
        s_add_u32 s48, s48, s49
        s_add_u32 s48, s48, {WS_U}
        v_mul_u32_u24 v{vA}, 9216, v2
        v_lshl_add_u32 v{vA}, v1, 4, v{vA}
        s_mov_b32 s60, {f32(-2*0.7978845608028654*0.044715*1.4426950408889634)}
        v_mov_b32 v{bb}, {f32(-2*0.7978845608028654*1.4426950408889634)}''')
    last = gemm_c(k, 6, 32, 5, 12288, vA0, None, vW0, vW, fa, fw, acc, rg1 + rgx, reg_stages(0), True,
                  at_end=lambda: ((u_addr() if ebl else None), k('s_barrier')),
                  single=nx == 2 or OPT['single'], slot0=nx, hold=ebl)
    for x in last[:OPT['ebl']] if ebl else []:
        k(x)
    last = last[OPT['ebl']:] if ebl else []
    mark(k, 8)
    if not ebl:
        u_addr()

    def gelu(mt):
        q = (rg if ebl else fa) + 8 * (mt & 1)
        o = fw + 4 * (mt & 1)
        a = acc + 8 * mt
        r = [f'v_pk_mul_f32 {P(q+i)}, {P(a+i)}, {P(a+i)}' for i in range(0, 8, 2)]
        r += [f'v_pk_fma_f32 {P(q+i)}, {P(q+i)}, s[60:61], {P(bb)} op_sel_hi:[1,0,0]' for i in range(0, 8, 2)]
        r += [f'v_pk_mul_f32 {P(q+i)}, {P(q+i)}, {P(a+i)}' for i in range(0, 8, 2)]
        r += [f'v_exp_f32 v{q+i}, v{q+i}' for i in range(8)]
        r += [f'v_pk_add_f32 {P(q+i)}, {P(q+i)}, 1.0 op_sel_hi:[1,0]' for i in range(0, 8, 2)]
        r += [f'v_rcp_f32 v{q+i}, v{q+i}' for i in range(8)]
        r += [f'v_pk_mul_f32 {P(q+i)}, {P(q+i)}, {P(a+i)}' for i in range(0, 8, 2)]
        r += [f'v_cvt_pk_bf16_f32 v{o+i}, v{q+2*i}, v{q+2*i+1}' for i in range(4)]
        r.append(f'buffer_store_dwordx4 {Q(o)}, v{vA}, {WS}, s48 offen offset:{256*mt} sc1')
        return r
    for mt in range(6):
        for i, x in enumerate(gelu(mt)):
            k(x)
            if last and i % 3 == 2:
                k(last.pop(0))
    assert not last
    mark(k, 9)
    k(f's_branch {LJ}')
    tag(k, 'region -')
    k.label(LN)
    k.fresh()
    bar(k, 0)
    srd(k, 40, pW1, S * F * 2)
    srd(k, 44, pW2, S * F * 2)
    k(f'''s_mul_i32 s56, s{sW}, 5
    s_add_u32 s56, s56, s{sR}
    s_sub_u32 s56, s56, 27
    s_add_u32 s57, s56, {OPT['pf2'] + 10*OPT['pf3'] + 27*OPT['pf7'] + 20*OPT['pfb']}
    s_add_u32 s56, s56, {OPT['pf9'] + (27*pf_split()[2] if OPT['swp'] else 0)}''')
    pf_loop(k, 1, 57, 20, min(32 * OPT['nl'], OPT['pfw1']), t, 40)
    pf_loop(k, 2, 56, 20, min(OPT['pf5'], pf_split()[1] if OPT['swp'] else pf_split()[0] - 54 * OPT['pfa'] - 27 * OPT['su']), t + 4, 44)
    if OPT['wo']:
        srd(k, 40, pOUT, S * D * 2)
        k(f'''s_mul_i32 s56, s{sW}, 5
        s_add_u32 s56, s56, s{sR}
        s_sub_u32 s56, s56, 27
        s_lshl_b32 s56, s56, 1
        s_mul_i32 s57, s{sJ}, 36
        v_lshlrev_b32 v{t}, 7, v0''')
        for x in range(2):
            k(f'''s_add_u32 s48, s56, {x}
            s_min_u32 s48, s48, 35
            s_add_u32 s48, s48, s57
            s_lshl_b32 s48, s48, 13''')
            k.raw(f'    buffer_load_dword v{t+1}, v{t}, s[40:43], s48 offen {("", "", "nt", "sc1")[OPT["wo"]]}')
    k.wait(0)
    mark(k, 9)
    bar(k, 0)
    tag(k, 'region c2')
    tag(k, 'target')
    k.label(LJ)
    k('s_lshr_b32 s58, s53, 1')
    w_read_addr('s58')
    k('s_barrier')
    xmark(k, 'h4', 1)
    for x in preload_w(vW0, vW, [((2 + x) % 6, rg1[x]) for x in range(6)]):
        k(x)
    k.wait(lg=0)
    if OPT['rf2']:
        k('s_barrier')
    xmark(k, 'h4', 2)
    bar(k, 0)
    xmark(k, 'h4', 3)
    vAo, vA4g, vAx, og4 = vA0, vA40, vA, vA4
    accf = lambda mt, nt: (188 + 4 * (2 * mt + nt)) if 2 * mt + nt < 17 else 64
    og = 68
    free = quads(rg1, reg_stages(1), OPT['defer'])[1]
    assert len(free) >= 14
    sq = [free[3 * x:3 * x + 3] for x in range(3)]
    gq = free[9:14]
    x1 = fa
    qf = fa + 16
    oa = bb
    k(f'''s_and_b32 s58, s53, 1
    s_mul_i32 s48, s58, 1280
    s_sub_u32 s49, 1280, s48
    v_mul_u32_u24 v{t}, 2304, v2
    v_add_u32 v{t}, {L_ACT2}, v{t}
    v_lshl_add_u32 v{t+2}, v1, 4, v{t}
    v_add_u32 v{vAo}, s48, v{t+2}
    v_add_u32 v{vAx}, s49, v{t+2}
    s_lshl_b32 s48, s58, 3
    v_xor_b32 v{t+1}, s48, v1
    v_lshl_add_u32 v{vA4g}, v{t+1}, 4, v{t}
    v_add_u32 v{vA4g}, 1024, v{vA4g}
    v_lshlrev_b32 v{la2}, 4, v0''')
    k(f'v_lshlrev_b32 v{b2}, 16, v{b2}\nv_cmp_gt_u32 vcc, 32, v0\nv_cndmask_b32 v{t}, 0, v{b2}, vcc')
    for mt in range(9):
        for nt in range(2):
            a = accf(mt, nt)
            if nt == 0 and mt <= 4:
                for i in range(4):
                    k(f'v_mov_b32 v{a+i}, v{b2 if mt < 4 else t}')
            else:
                k(f'v_mov_b64 {P(a)}, 0\nv_mov_b64 {P(a+2)}, 0')
    srd(k, 44, pOUT, S * D * 2)
    k(f'''s_mul_i32 s48, s{sW}, {16*144}
    s_add_u32 s48, s48, {L_X1}
    v_mul_u32_u24 v{t}, 144, v1
    v_lshl_add_u32 v{t}, v2, 3, v{t}
    v_add_u32 v{t}, s48, v{t}
    v_add_u32 v{oa+3}, s48, v{la2}
    s_lshl_b32 s49, s58, 4
    v_add_u32 v{oa}, s49, v{t}
    s_lshl_b32 s49, s58, 7
    s_sub_u32 s49, 128, s49
    v_add_u32 v{t}, s49, v{t}
    v_cmp_gt_u32 vcc, 32, v0
    v_mov_b32 v{t+1}, {L_GB + 512}
    v_cndmask_b32 v{oa+1}, v{t+1}, v{t}, vcc
    v_lshlrev_b32 v{t}, 4, v2
    v_add_u32 v{t}, {L_GB}, v{t}
    s_lshl_b32 s49, s58, 5
    v_add_u32 v{oa+2}, s49, v{t}
    s_lshl_b32 s49, s58, 8
    s_sub_u32 s49, 256, s49
    v_add_u32 v{og4}, s49, v{t}
    s_lshl_b32 s48, s59, 4
    s_lshl_b32 s49, s54, 7
    s_add_u32 s48, s48, s49
    s_mul_i32 s48, s48, 1152
    s_mul_i32 s49, s55, 288
    s_add_u32 s62, s48, s49
    s_mul_i32 s49, s58, 144
    s_add_u32 s62, s62, s49''')
    for i in range(3):
        k(f'''v_add_u32 v{t}, {64*i}, v0
        v_mul_u32_u24 v{t+1}, 911, v{t}
        v_lshrrev_b32 v{t+1}, 13, v{t+1}
        v_mul_u32_u24 v{t+1}, {1152-144}, v{t+1}
        v_lshl_add_u32 v{og+i}, v{t}, 4, v{t+1}''')
    k(f'''v_cmp_gt_u32 vcc, 16, v0
    v_mov_b32 v{t+1}, {OOB}
    v_cndmask_b32 v{og+2}, v{t+1}, v{og+2}, vcc
    s_mul_i32 s48, s{sW}, {XW}
    s_add_u32 s48, s48, {WS_XCH}
    s_mul_i32 s64, s2, {XB}
    s_add_u32 s64, s64, s48
    v_and_b32 v{t}, 3, v0
    v_cmp_eq_u32 vcc, 0, v{t}
    v_lshlrev_b32 v27, 2, v0
    v_cndmask_b32 v26, v{t+1}, v27, vcc
    s_mul_i32 s49, s{sW}, {2*XW}
    s_add_u32 s49, s49, {L_S}
    v_add_u32 v71, s49, v{la2}''')
    if OPT['xc'] == 3:
        k(f'v_mov_b64 {P(72)}, -1')
    else:
        k(f'v_add_u32 v72, {4*AST2}, v{vAo}\nv_add_u32 v75, {4*AST2}, v{vA4g}\nv_add_u32 v74, {4*AST2}, v{vAx}')
    for x in range(1, 4):
        k(f'''s_xor_b32 s{64+x}, s2, {2*x}
        s_mul_i32 s{64+x}, s{64+x}, {XB}
        s_add_u32 s{64+x}, s{64+x}, s48
        s_add_u32 s{64+x}, s{64+x}, {XM*(x-1)}''')
    cue = OPT['xcue']
    assert not cue
    if cue:
        k(f'''v_cmp_gt_u32 vcc, 8, v0
        v_cndmask_b32 v27, v{t+1}, v{la2}, vcc
        s_lshl_b32 s48, s{sW}, 7
        s_add_u32 s48, s48, {WS_XCUE}
        s_mul_i32 s61, s2, 1536
        s_add_u32 s61, s61, s48''')
        for x, r in ((1, 56), (2, 57), (3, 60)):
            k(f'''s_xor_b32 s{r}, s2, {2*x}
            s_mul_i32 s{r}, s{r}, 1536
            s_add_u32 s{r}, s{r}, s48
            s_add_u32 s{r}, s{r}, {512*(x-1)}''')
    mbox = [f'buffer_load_dwordx4 {Q(sq[0][c])}, v{la2}, {WS}, s64 offen offset:{1024*c} sc1' for c in range(2)] + \
           [f'buffer_load_dword v{sq[0][2]}, v27, {WS}, s64 offen offset:2048 sc1']
    sel = fw

    def g2_end():
        xmark(k, 'x', 2)
        k('s_barrier')
        xmark(k, 'x', 3)
        for mt in range(4):
            k(f'ds_read_b64 {P(x1+2*mt)}, v{oa} offset:{32*mt}\nds_read_b128 {Q(gq[mt])}, v{oa+2} offset:{64*mt}')
        k(f'ds_read_b64 {P(x1+8)}, v{oa+1}\nds_read_b128 {Q(gq[4])}, v{og4}')

    def message(x, nt, rows, r8):
        b, r = sq[x - 1], list(r8)
        r += [f'v_mov_b32_dpp v{b[2]+j}, v{b[2]} quad_perm:[{j},{j},{j},{j}] row_mask:0xf bank_mask:0xf' for j in (1, 2, 3)]
        for c in range(2):
            for i in range(4):
                a = accf(rows[2 * c + (i >> 1)], nt) + 2 * (i & 1)
                r.append(f'v_cvt_pk_bf16_f32 v{b[c]+i}, v{a}, v{a+1}')
            r.append(f'buffer_store_dwordx4 {Q(b[c])}, v{la2}, {WS}, s{64+x} offen offset:{1024*c} sc1')
        r.append(f'buffer_store_dwordx4 {Q(b[2])}, v26, {WS}, s{64+x} offen offset:2048 sc1')
        if cue:
            r.append(f'buffer_store_dwordx4 {Q(t+4)}, v27, {WS}, s{(56, 57, 60)[x-1]} offen sc1')
        return r

    def split4(nt, own, other):
        a = accf(4, nt)
        return [f'v_cvt_pk_bf16_f32 v{own}, v{a}, v{a+1}', f'v_cvt_pk_bf16_f32 v{other}, v{a+2}, v{a+3}',
                f'v_permlane32_swap_b32 v{own}, v{other}']

    def send_bc():
        if OPT.get('mk') != 'p1':
            mark(k, 10)
        if cue:
            for i in range(4):
                k(f'v_mov_b32 v{t+4+i}, v{vTAG}')
        s4 = split4(1, sq[1][2], sq[2][2])
        return message(3, 1, [5, 6, 7, 8], s4) + message(2, 1, [0, 1, 2, 3], [])

    def selectors():
        z, u = sel, t
        return [f'v_lshrrev_b32 v{u}, 2, v1', f'v_and_b32 v{u+1}, 1, v1', f'v_lshlrev_b32 v{u+1}, 4, v{u+1}',
                f'v_mov_b32 v{u+2}, 0x3f80', f'v_lshlrev_b32 v{u+1}, v{u+1}, v{u+2}',
                f'v_and_b32 v{u+2}, 2, v1', f'v_add_u32 v{u+3}, v{u}, v{u+2}',
                f'v_cmp_eq_u32 vcc, v{u}, v2', f'v_cndmask_b32 v{z+4}, 0, v{u+1}, vcc',
                f'v_cmp_eq_u32 vcc, v{u+3}, v2', f'v_cndmask_b32 v{z}, 0, v{u+1}, vcc',
                f'v_cmp_gt_u32 vcc, 8, v1', f'v_cndmask_b32 v{z}, 0, v{z}, vcc',
                f'v_cmp_eq_u32 vcc, 0, v{u+2}', f'v_cndmask_b32 v{z+5}, v{z+4}, 0, vcc', f'v_cndmask_b32 v{z+4}, 0, v{z+4}, vcc',
                f'v_mov_b32 v{z+1}, v{z}', f'v_mov_b64 {P(z+2)}, 0', f'v_mov_b64 {P(z+6)}, 0']
    send_a = lambda: (xmark(k, 'x', 1), message(1, 0, [5, 6, 7, 8], split4(0, t + 3, sq[0][2])) + selectors())[1]
    tag(k, 'touch c3')
    tag(k, 'region c3')
    fill, drain = {}, None
    if OPT['xc'] == 3:
        c0, cn = OPT['xclr']
        k(f'''v_mov_b64 {P(74)}, -1
        s_mul_i32 s63, s2, {XB}
        s_lshl_b32 s48, s{sW}, 10
        s_add_u32 s63, s63, s48
        s_add_u32 s63, s63, {WS_XCH}
        s_cmp_eq_u32 s{sW}, 3
        s_cselect_b32 s56, {5*4096}, {6*4096}'''.replace('s_cselect_b32 s56, 20480, 24576', 's_cselect_b32 s56, 4096, 0\ns_sub_u32 s56, 24576, s56'))
        for x in range(7):
            q = 2 * c0 + x * 2 * cn // 7
            so = f's_add_u32 s57, s63, {4096*x}' if x < 6 else 's_add_u32 s57, s63, s56'
            fill.setdefault(q, []).extend([so, f'buffer_store_dwordx4 {Q(72)}, v{la2}, {WS}, s57 offen sc1'])
        drain = 2 * OPT['xrdy'][0]
    gemm2_c(k, vAo, vAx, vA4g, vW0, vW, fa, fw, accf, rg1, reg_stages(1), OPT['defer'], send_bc, send_a, g2_end, fill, drain, (72, 75, 74))

    def add_message(q0, th):
        for i in range(4):
            a = accf(i, 0)
            k(f'{MF} {Q(a)}, {Q(sel + (4 if i % 2 == 0 else 2))}, {Q(q0[i >> 1])}, {Q(a)}')
        if th is not None:
            a = accf(4, 0)
            k(f'{MF} {Q(a)}, {Q(sel)}, {Q(th)}, {Q(a)}')
    k(f's_mul_i32 s49, s{sW}, {2*XW}\ns_add_u32 s49, s49, {L_S}\nv_add_u32 v73, s49, v27')
    for i in range(10):
        k(f'v_lshlrev_b32 v{qf+2*i}, 16, v{x1+i}\nv_and_b32 v{qf+2*i+1}, 0xffff0000, v{x1+i}')
    xmark(k, 'x', 4)
    k.wait(0)
    if OPT.get('mk') != 'p1':
        mark(k, 11)
    if cue == 1:
        k(f'v_mov_b32 v{t}, 0')
        poll(k, [f'buffer_load_dword v{t+1}, v{t}, {WS}, s61 offen sc1'], check_tags(k, [t + 1]), sleep=OPT['xsl'])
    k(f'v_mov_b32 v{sq[0][2]+1}, 0\nv_mov_b64 {P(sq[0][2]+2)}, 0\nv_mov_b64 {P(sq[1][2]+2)}, 0')
    for l in mbox:
        k(l)
    k('s_barrier')
    xmark(k, 'x', 5)
    for x in range(2):
        for c in range(2):
            k(f'ds_read_b128 {Q(sq[x+1][c])}, v71 offset:{XW*x+1024*c}')
    k(f'ds_read_b32 v{sq[1][2]}, v73 offset:2048\nds_read_b32 v{sq[1][2]+1}, v73 offset:{XW+2048}')
    add_message(sq[1], None)
    add_message(sq[2], sq[1][2])
    k.wait(0)
    L1 = k.lab()
    sent = check_sent(k, sq[0], t)
    sent()
    k(f's_cbranch_vccz {L1}')
    poll(k, mbox, sent, masked=True)
    k.label(L1)
    xmark(k, 'x', 6)
    add_message(sq[0], sq[0][2])
    for mt in (0, 1, 2, 3, 4):
        q, a = qf + 4 * mt, accf(mt, 0)
        for p in range(2):
            k(f'v_pk_fma_f32 {P(q+2*p)}, {P(a+2*p)}, {P(gq[mt]+2*p)}, {P(q+2*p)}')
        for p in range(2):
            k(f'v_cvt_pk_bf16_f32 v{x1+2*mt+p}, v{q+2*p}, v{q+2*p+1}')
        k(f'ds_write_b64 v{oa}, {P(x1+2*mt)} offset:{32*mt}' if mt < 4 else f'ds_write_b64 v{oa+1}, {P(x1+8)}')
    xmark(k, 'x', 7)
    if OPT.get('outlin'):
        k(f's_mul_i32 s62, s2, 9216\ns_mul_i32 s48, s{sW}, 2304\ns_add_u32 s62, s62, s48')
        k(f'v_mov_b32 v{og}, v{la2}\nv_add_u32 v{og+1}, 1024, v{la2}\nv_add_u32 v{t}, 2048, v{la2}\nv_cmp_gt_u32 vcc, 16, v0\nv_mov_b32 v{t+1}, {OOB}\nv_cndmask_b32 v{og+2}, v{t+1}, v{t}, vcc')
    for i in range(3):
        k(f'ds_read_b128 {Q(gq[i])}, v{oa+3} offset:{1024*i}')
    for i in range(3):
        k(f'buffer_store_dwordx4 {Q(gq[i])}, v{og+i}, s[44:47], s62 offen {OPT["outflag"]}')
    k('s_branch L_end')


def gen_H(k):
    V = Alloc(4, 256)
    t = V(12); la = V(); fl = V(3, 1); wa = V(3, 1); sa_ = V(3, 1); c0 = V(2); mo = V(4); ones = V(4, 4)
    ld = V(16, 4); Fa = V(8, 4); Fai = V(8, 4); Fb = V(32, 4); Fbi = V(32, 4)
    wv = V(32, 4); acc = V(32, 4); pk = V(16, 4); a0 = V(); a1 = V(); a2 = V(); a3 = V(); a4 = V(); a5 = V(); g4 = V(); lf = V(); dum = V(4); wp = V(16, 4)
    g = acc
    k(f'v_lshlrev_b32 v{la}, 4, v0\nv_mov_b32 v{mo+2}, {OOB}\nv_mov_b32 v{t+8}, {OOB}\nv_mov_b32 v{fl+1}, {OOB}')
    k(f'''s_sub_u32 s63, 255, s2
    s_mul_i32 s62, s63, 171
    s_lshr_b32 s62, s62, 9
    s_mul_i32 s48, s62, 3
    s_sub_u32 s61, s63, s48''')

    def skip_unless(reg, val, op='lg'):
        L = k.lab()
        k(f's_cmp_{op}_u32 s{reg}, {val}\ns_cbranch_scc1 {L}')
        k.cond += 1
        return L

    def endif(L):
        k.cond -= 1
        k.label(L)

    def mod_addr(urgent, part=3):
        if part & 1:
            k(f'''v_lshrrev_b32 v{t}, 3, v0
        v_and_b32 v{t+1}, 7, v0
        v_and_b32 v{t+2}, 6, v{t}
        v_xor_b32 v{t+1}, v{t+1}, v{t+2}
        v_mul_u32_u24 v{t}, 6912, v{t}
        v_lshl_add_u32 v{t+8}, v{t+1}, 4, v{t}
        s_lshl_b32 s48, s61, 2
        s_add_u32 s48, s48, s{sW}
        s_mul_i32 s48, s48, {(48 if urgent else 72)*6912}
        s_lshl_b32 s49, s62, 7
        s_add_u32 s47, s48, s49
        s_lshl_b32 s50, s{sW}, 8
        v_lshl_add_u32 v{c0+1}, v0, 2, s50
        s_mul_i32 s49, s61, {384 if urgent else 576}
        v_add_u32 v{t+5}, s49, v{c0+1}
        v_add_u32 v{t+8}, s47, v{t+8}''')
        if not part & 2:
            return
        k(f'''v_lshrrev_b32 v{t}, 2, v0
        v_bfe_u32 v{t+1}, v{t}, 1, 2
        v_xor_b32 v{t+1}, s{sW}, v{t+1}
        v_lshlrev_b32 v{t+1}, 5, v{t+1}
        v_lshlrev_b32 v{t}, 7, v{t}
        v_and_b32 v{t+2}, 3, v0
        v_lshlrev_b32 v{t+2}, 3, v{t+2}
        v_add3_u32 v{mo}, v{t}, v{t+1}, v{t+2}
        v_lshlrev_b32 v{mo+1}, 3, v2
        v_add_u32 v{mo+1}, {L_SILU}, v{mo+1}''')
        if urgent:
            k(f'''s_mul_i32 s48, s{sW}, 3456
            s_mul_i32 s49, s61, 1152
            s_add_u32 s48, s48, s49
            s_lshl_b32 s49, s62, 6
            s_add_u32 s48, s48, s49
            s_add_u32 s48, s48, {WS_MODG}
            v_mul_u32_u24 v{t}, 13824, v2
            v_lshl_add_u32 v{t}, v1, 2, v{t}
            v_add_u32 v{mo+2}, s48, v{t}
            v_add_u32 v{mo+3}, {4*13824}, v{mo+2}''')
        else:
            k(f'''s_mul_i32 s49, s61, 9216
            s_lshl_b32 s50, s62, 8
            s_add_u32 s49, s49, s50
            s_lshl_b32 s50, s{sW}, 6
            s_add_u32 s49, s49, s50
            s_add_u32 s49, s49, {WS_MODB - 18*256}
            v_lshl_add_u32 v{t}, v1, 2, s49
            v_cmp_gt_u32 vcc, 16, v0
            v_mov_b32 v{t+1}, {OOB}
            v_cndmask_b32 v{mo+2}, v{t+1}, v{t}, vcc''')

    def mod_loads(n, i0, i1):
        if i0 == 0:
            k(f's_mul_i32 m0, s{sW}, {1024*n}\ns_mov_b32 s59, 0')
        for i in range(i0, i1):
            k(f'buffer_load_dwordx4 v{t+8}, s[40:43], s59 offen lds')
            if i < n - 1:
                k(f's_add_u32 m0, m0, 1024\ns_add_u32 s59, s59, {8*6912}')

    def c_load():
        srd(k, 44, pC, D * 2)
        k(f'buffer_load_dword v{c0}, v{t+5}, s[44:47], 0 offen')

    def mod_silu():
        k(f'''v_lshlrev_b32 v{t}, 16, v{c0}
        v_and_b32 v{t+1}, 0xffff0000, v{c0}
        v_mul_f32 v{t+2}, {f32(-1.4426950408889634)}, v{t}
        v_mul_f32 v{t+3}, {f32(-1.4426950408889634)}, v{t+1}
        v_exp_f32 v{t+2}, v{t+2}
        v_exp_f32 v{t+3}, v{t+3}
        v_add_f32 v{t+2}, 1.0, v{t+2}
        v_add_f32 v{t+3}, 1.0, v{t+3}
        v_rcp_f32 v{t+2}, v{t+2}
        v_rcp_f32 v{t+3}, v{t+3}
        v_mul_f32 v{t}, v{t}, v{t+2}
        v_mul_f32 v{t+1}, v{t+1}, v{t+3}
        v_cvt_pk_bf16_f32 v{c0}, v{t}, v{t+1}
        v_add_u32 v{c0+1}, {L_SILU}, v{c0+1}
        ds_write_b32 v{c0+1}, v{c0}''')

    def mod_compute(urgent):
        c = k.cond
        k.cond = 0
        k.lg = []
        n = 6 if urgent else 9
        g = wv
        for stp in range(n):
            a = g + stp * 8
            k(f'''ds_read_b64_tr_b16 {P(a)}, v{mo} offset:{stp*4096}
            ds_read_b64_tr_b16 {P(a+2)}, v{mo} offset:{stp*4096+2048}
            ds_read2_b64 {Q(a+4)}, v{mo+1} offset0:{stp*8} offset1:{stp*8+4}''')
        k(f'v_and_b32 v{t}, 3, v1\nv_or_b32 v{t}, 0x07060500, v{t}')
        for stp in range(n):
            a = g + stp * 8
            k(f'{MF} {Q(ld)}, {Q(a+4)}, {Q(a)}, ' + ('0' if stp == 0 else Q(ld)))
        k(f'v_add_u32 v{ld+4}, 0x80, v{ld}\nv_perm_b32 v{ld+4}, v{ld+4}, v{vTAG}, v{t}')
        k.cond = c
        if urgent:
            k.wait(OPT['warm'])
        for a in range(OPT['nm'] if urgent else 1):
            k(f's_mov_b32 s48, {a*0x20000}')
            for i in range(2 if urgent else 1):
                k(f'buffer_store_dword v{ld+4}, v{mo+2+i}, {WS}, s48 offen sc1')

    def wp_addr():
        k(f'''s_lshl_b32 s67, s{sJ}, 4
        s_add_u32 s67, s67, s{sR}
        s_and_b32 s67, s67, 127
        s_lshl_b32 s48, s{sW}, 9
        s_add_u32 s48, s48, s67
        s_mul_i32 s69, s{sW}, 6144
        s_add_u32 s69, s69, {L_WST}
        s_cmp_eq_u32 s67, 0
        s_cselect_b32 s68, 38, 0
        s_add_u32 s68, s68, 152
        v_mov_b32 v{t+4}, {OOB}''')
        for i in range(3):
            k(f'''v_add_u32 v{t}, {64*i}, v0
            v_mul_u32_u24 v{t+1}, 1725, v{t}
            v_lshrrev_b32 v{t+1}, 16, v{t+1}
            v_mul_u32_u24 v{t+2}, 38, v{t+1}
            v_sub_u32 v{t+2}, v{t}, v{t+2}
            v_cmp_gt_u32 vcc, s68, v{t}
            v_lshl_add_u32 v{t+1}, v{t+1}, 7, s48
            v_and_b32 v{t+1}, 2047, v{t+1}
            v_mul_u32_u24 v{t+1}, 578, v{t+1}
            v_and_b32 v{t+1}, 0xfffffff0, v{t+1}
            v_lshl_add_u32 v{t+1}, v{t+2}, 4, v{t+1}
            v_cndmask_b32 v{wa+i}, v{t+4}, v{t+1}, vcc''')

    def wp_gather():
        k(f'''s_lshl_b32 s48, s67, 1
        s_and_b32 s48, s48, 15
        s_add_u32 s48, s48, s69
        v_and_b32 v{t}, 1, v2
        v_lshrrev_b32 v{t+1}, 1, v2
        v_mul_u32_u24 v{t+2}, 144, v{t}
        v_mad_u32_u24 v{t+2}, v1, 9, v{t+2}
        v_add_lshl_u32 v{t+2}, v{t+2}, v{t+1}, 1
        v_add_u32 v{wa}, s48, v{t+2}
        s_cmp_eq_u32 s67, 0
        s_cselect_b32 s49, 608, 0
        s_add_u32 s48, s48, s49
        s_add_u32 s48, s48, {576-8}
        v_sub_u32 v{wa+1}, s48, v{t+2}
        v_lshl_add_u32 v{t}, v{t+1}, 5, v{t}
        v_lshlrev_b32 v{t}, 14, v{t}
        v_lshl_add_u32 v{sa_}, v1, 4, v{t}
        v_add_u32 v{sa_+1}, {64<<14}, v{sa_}
        v_add_u32 v{sa_+2}, {128<<14}, v{sa_}
        v_cmp_gt_u32 vcc, 32, v0
        v_mov_b32 v{t+4}, {OOB}
        v_cndmask_b32 v{sa_+2}, v{t+4}, v{sa_+2}, vcc
        s_lshl_b32 s48, s67, 2
        s_add_u32 s48, s48, s{sW}
        s_lshl_b32 s48, s48, 4
        s_add_u32 s48, s48, {WS_FLAG}
        v_writelane_b32 v{fl+1}, s48, 0''')
        if OPT['warm']:
            k(f'buffer_load_dword v{dum+2}, v{fl+1}, {WS}, 0 offen')
        for refl in range(2):
            if refl == 0:
                k(f's_mov_b32 s48, s67\ns_mov_b32 s49, s{sW}')
            else:
                k(f's_sub_u32 s48, 128, s67\ns_and_b32 s48, s48, 127\ns_sub_u32 s49, 3, s{sW}')
            k(f'''s_and_b32 s50, s48, 7
            s_lshr_b32 s48, s48, 3
            s_lshl_b32 s58, s50, 16
            s_lshl_b32 s59, s48, 10
            s_add_u32 s58, s58, s59
            s_lshl_b32 s59, s49, 8
            s_add_u32 s58, s58, s59
            s_add_u32 s{56+refl}, s58, {WS_WP + refl*(2<<14)}''')

    def wp_run():
        c = k.cond
        k.cond = 0
        k.lg = []
        g = wv
        for refl in range(2):
            for i in range(3):
                r = g + 24 * refl + 8 * i
                for j in range(4):
                    o = 608 * j + 4 * i if refl == 0 else 608 * (3 - j) + 8 - 4 * i
                    k(f'ds_read_u16 v{r+j}, v{wa+refl} offset:{o}\nds_read_u16 v{r+4+j}, v{wa+refl} offset:{3072+o}')
        k.cond = c
        for refl in range(2):
            for i in range(3):
                r = g + 24 * refl + 8 * i
                for j in range(4):
                    k(f'v_lshl_or_b32 v{r+j}, v{r+4+j}, 16, v{r+j}')
                for j in range(4 * refl):
                    k(f'v_xor_b32 v{r+j}, 0x80000000, v{r+j}')
                k(f'buffer_store_dwordx4 {Q(r)}, v{sa_+i}, {WS}, s{56+refl} offen sc1')

    def wp_loads(arrs=(0, 1)):
        if 0 in arrs:
            srd(k, 52, pWR, S * 578)
            srd(k, 56, pWI, S * 578)
        for arr in arrs:
            for i in range(3):
                k(f's_add_u32 m0, s69, {3072*arr+1024*i}')
                k(f'buffer_load_dwordx4 v{wa+i}, s[{52+4*arr}:{55+4*arr}], 0 offen lds')

    def flag_addr():
        k(f'''s_lshr_b32 s51, s{sR}, 2
        s_lshl_b32 s51, s51, 3
        s_add_u32 s51, s51, s{sJ}
        s_and_b32 s60, s{sR}, 3
        s_lshl_b32 s35, s51, 2
        s_add_u32 s35, s35, s60
        s_lshl_b32 s35, s35, 14
        s_bfe_u32 s48, s{sS2}, 0x20002
        s_lshl_b32 s48, s48, 6
        s_lshr_b32 s49, s{sS2}, 4
        s_lshl_b32 s49, s49, 2
        s_add_u32 s48, s48, s49
        s_and_b32 s49, s{sS2}, 3
        s_add_u32 s48, s48, s49
        s_lshl_b32 s48, s48, {OPT['fs']}
        s_lshl_b32 s49, s{sW}, 16
        s_add_u32 s48, s48, s49
        s_add_u32 s48, s48, {WS_FL2}
        v_mov_b32 v{fl}, {OOB}''')
        for a in range(OPT['na']):
            k(f'v_writelane_b32 v{fl}, s48, {a}\ns_add_u32 s48, s48, 16384')
        k(f'''s_add_u32 s48, s2, 160
        s_lshl_b32 s48, s48, 7
        s_add_u32 s48, s48, {WS_CUE+0x8000}
        s_lshl_b32 s49, s{sW}, 8
        s_add_u32 s49, s49, s{sR}
        s_cmp_lt_u32 s49, 12
        s_cselect_b32 s48, s48, {OOB}
        v_mov_b32 v{fl+2}, {OOB}
        v_writelane_b32 v{fl+2}, s48, 0
        s_or_b32 s48, s2, s{sW}
        s_cmp_eq_u32 s48, 0
        s_cselect_b32 s48, 0, {OOB}
        s_add_u32 s48, s48, {WS_EPOCH}
        v_writelane_b32 v{fl+2}, s48, 1''')
        if OPT['ec2']:
            k(f'''s_lshr_b32 s48, s35, 10
            s_lshl_b32 s49, s{sW}, 12
            s_add_u32 s48, s48, s49
            s_add_u32 s48, s48, {WS_FLAG + 0x8000}
            s_cmp_lt_u32 s{sR}, 20
            s_cselect_b32 s48, s48, {OOB}
            v_writelane_b32 v{fl+2}, s48, 2''')

    def warm(regs):
        if OPT['warm']:
            for i, r in enumerate(regs):
                k(f'buffer_load_dword v{dum+i}, v{r}, {WS}, 0 offen')

    def clear1():
        k(f's_lshl_b32 s48, s{sW}, 12\ns_add_u32 s48, s48, s35\ns_add_u32 s48, s48, {WS_T1}')
        for i in range(4):
            k(f'buffer_store_dwordx4 {Q(ones)}, v{la}, {WS}, s48 offen offset:{1024*i} sc1')

    def clear2():
        k(f'''v_min_u32 v{t+1}, {31*16}, v{la}
        s_mul_i32 s48, s{sW}, 2560
        s_mul_i32 s49, s{sS2}, 10240
        s_add_u32 s48, s48, s49
        s_add_u32 s48, s48, {WS_T2}''')
        for i in range(3):
            k(f'buffer_store_dwordx4 {Q(ones)}, v{la if i<2 else t+1}, {WS}, s48 offen offset:{1024*i} sc1')
    LGEN, LNP, LP2, LG, LQ = k.lab(), k.lab(), k.lab(), k.lab(), k.lab()
    L_A, L_B = L_WST, L_WST + 16 * 1040
    k(f's_cmp_ge_u32 s63, 54\ns_cbranch_scc1 {LGEN}')
    if OPT['up'] & 1:
        k('s_setprio 2')
    mod_addr(True, 1)
    k.wait(lg=0)
    srd(k, 40, pWM, D * 3456 * 2)
    mod_loads(6, 0, 6)
    c_load()
    srd(k, 36, pWS, WS_SIZE)
    load_tag(k, t + 3)
    mark(k, 11)
    if OPT['up'] == 3:
        k('s_setprio 0')
    mod_addr(True, 2)
    if OPT['prew']:
        k(f'v_mov_b32 v{t+1}, 0')
        for a in range(OPT['nm']):
            k(f's_mov_b32 s48, {a*0x20000}')
            for i in range(2):
                k(f'buffer_store_dword v{t+1}, v{mo+2+i}, {WS}, s48 offen sc1')
    flag_addr()
    warm([fl])
    k.wait(2 * OPT['nm'] * OPT['prew'] + OPT['warm'])
    mark(k, 10)
    if OPT['up'] & 2:
        k('s_setprio 2')
    mod_silu()
    finish_tag(k)
    mark(k, 1)
    bar(k, lg=0)
    mod_compute(True)
    mark(k, 2)
    xmark(k, 'u', 4)
    if OPT['a0']:
        k('s_barrier')
    k(f's_setprio 0\ns_mov_b32 s63, 999\ns_branch {LQ}')
    k.raw('; @cut')
    k.label(LGEN)
    k.fresh()
    k(f'''s_sub_u32 s61, s63, 54
    s_lshr_b32 s62, s61, 1
    s_add_u32 s62, s62, 18
    s_and_b32 s61, s61, 1''')

    def mats1():
        k(f'''v_cvt_f32_u32 v{g4}, v2
        v_mul_f32 v{g4}, 4.0, v{g4}
        v_cvt_f32_u32 v{lf}, v1
        v_cvt_f32_u32 v{t+9}, s{sJ}
        v_mul_f32 v{t+6}, {f32(1/16)}, v{lf}
        v_fmac_f32 v{t+6}, {f32(1/128)}, v{t+9}
        v_mul_f32 v{t+7}, v{g4}, v{t+6}''')
        dft_frag(k, t + 7, t + 6, Fa, Fa + 4, t, False)
        k(f'''s_lshl_b32 s48, s{sW}, 5
        s_add_u32 s48, s48, s{sJ}
        v_cvt_f32_u32 v{t+10}, s48
        v_mul_f32 v{t+10}, {f32(1/2048)}, v{t+10}
        v_mul_f32 v{t+6}, {f32(1/16)}, v{lf}
        v_add_f32 v{t+6}, v{t+6}, v{t+10}''')
        for tt in range(4):
            if tt:
                k(f'v_add_f32 v{t+6}, {f32(8/2048)}, v{t+6}')
            k(f'v_mul_f32 v{t+7}, v{g4}, v{t+6}')
            dft_frag(k, t + 7, t + 6, Fb + 8 * tt, Fb + 8 * tt + 4, t, False)

    def mats2():
        k(f'''v_mul_f32 v{t+6}, {f32(1/16)}, v{lf}
        v_fmac_f32 v{t+10}, {f32(1/16)}, v{g4}''')
        for tt in range(4):
            if tt:
                k(f'v_add_f32 v{t+10}, {f32(8/2048)}, v{t+10}')
            k(f'v_mul_f32 v{t+7}, v{lf}, v{t+10}')
            dft_frag(k, t + 7, t + 6, Fbi + 8 * tt, Fbi + 8 * tt + 4, t, True)
        k(f'''v_mul_f32 v{t+9}, {f32(1/128)}, v{t+9}
        v_fmac_f32 v{t+9}, {f32(1/16)}, v{g4}
        v_mul_f32 v{t+7}, v{lf}, v{t+9}''')
        dft_frag(k, t + 7, t + 6, Fai, Fai + 4, t, True)

    def p2_addr():
        k(f'''s_lshl_b32 s54, s{sW}, 8
        s_add_u32 s52, s35, s54
        s_add_u32 s52, s52, {WS_T1}
        s_lshl_b32 s53, s{sW}, 12
        s_add_u32 s53, s53, s35
        s_add_u32 s53, s53, {WS_WP}
        v_and_b32 v{t}, 3, v1
        v_lshrrev_b32 v{t+1}, 2, v1
        v_lshlrev_b32 v{t+2}, 6, v{t}
        v_lshl_add_u32 v{t+2}, v{t+1}, 4, v{t+2}
        v_lshl_add_u32 v{a5}, v2, 12, v{t+2}
        v_mul_u32_u24 v{a0}, 1040, v1
        v_lshl_add_u32 v{a0}, v2, 6, v{a0}
        v_add_u32 v{a0}, s54, v{a0}
        s_mul_i32 s48, s{sW}, {4*1040}
        v_add_u32 v{a2}, s48, v{la}
        v_lshl_add_u32 v{t+2}, v2, 2, v{t}
        v_mul_u32_u24 v{a3}, 1056, v{t+2}
        v_lshl_add_u32 v{a3}, v{t+1}, 4, v{a3}
        v_add_u32 v{a3}, s54, v{a3}
        s_mul_i32 s48, s{sW}, {4*1056}
        v_add_u32 v{a1}, s48, v{la}
        s_and_b32 s66, s51, 3
        s_xor_b32 s66, s66, s60
        s_lshl_b32 s66, s66, 6
        s_lshl_b32 s48, s51, 8
        s_add_u32 s66, s66, s48
        s_mul_i32 s48, s{sW}, {4*10240}
        s_add_u32 s66, s66, s48
        s_add_u32 s66, s66, {WS_T2}
        s_add_u32 s67, s66, {16*10240}
        s_add_u32 s68, s66, {32*10240}
        s_add_u32 s69, s66, {48*10240}
        s_lshr_b32 s48, s51, 2
        s_and_b32 s48, s48, 2
        v_xor_b32 v{t}, s48, v{t}
        v_lshl_add_u32 v{t+1}, v2, 6, v{t+1}
        v_mul_u32_u24 v{a4}, 10240, v{t+1}
        v_lshl_add_u32 v{a4}, v{t}, 4, v{a4}''')
    wl = f'buffer_load_dword v{fl+1}, v{t+11}, {WS}, s64 offen sc1'

    def wpre():
        k(f'''s_lshl_b32 s48, s{sW}, 5
        s_add_u32 s48, s48, s{sJ}
        v_lshrrev_b32 v{t+4}, 2, v1
        v_lshl_add_u32 v{t+4}, v{t+4}, 3, s48
        s_cmp_lt_u32 s60, 2
        s_cselect_b32 s48, 1, -1
        v_mul_i32_i24 v{t+4}, s48, v{t+4}
        v_and_b32 v{t+4}, 127, v{t+4}
        v_and_b32 v{t+3}, 3, v1
        v_lshl_add_u32 v{t+4}, v{t+4}, 2, v{t+3}
        v_lshlrev_b32 v{t+11}, 4, v{t+4}
        s_mov_b32 s64, {WS_FLAG}''')
        L1 = skip_unless(sR, 20, 'ge')
        k(wl)
        endif(L1)

    def wpost():
        p2_addr()
        k(f'''s_lshr_b32 s65, s{sJ}, 1
        s_lshl_b32 s65, s65, 16
        s_add_u32 s65, s65, {WS_FL2}
        s_lshl_b32 s48, s{sW}, {6+OPT['fs']}
        s_add_u32 s65, s65, s48
        v_lshlrev_b32 v{g4}, {OPT['fs']}, v0''')
    LB, LJ = k.lab(), k.lab()
    k(f's_cmp_ge_u32 s{sR}, 16\ns_cbranch_scc1 {LB}')
    wp_addr()
    k.wait(lg=0)
    srd(k, 36, pWS, WS_SIZE)
    srd(k, 40, pWM, D * 3456 * 2)
    load_tag(k, t)
    flag_addr()
    warm([fl, fl + 2])

    def clear_xch():
        k(f'''v_mov_b64 {P(ones)}, -1
        v_mov_b64 {P(ones+2)}, -1
        s_lshl_b32 s61, s2, 2
        s_add_u32 s61, s61, s{sW}
        s_mul_i32 s61, s61, {14*1024}
        s_add_u32 s61, s61, {WS_XCH}''')
        for i in range(14):
            k(f'buffer_store_dwordx4 {Q(ones)}, v{la}, {WS}, s61 offen offset:{1024*(i&3)} sc1')
            if i & 3 == 3:
                k('s_add_u32 s61, s61, 4096')
    if OPT['xc'] == 1:
        clear_xch()
    if OPT['wat'] == 0:
        wp_loads()
    if OPT['wat'] == 4:
        wp_loads((0,))
    if OPT['wat'] >= 2:
        mats1()
    if OPT['wat'] == 3:
        wp_loads()
    if OPT['wat'] == 5:
        wp_loads((0,))
    mark(k, 1)
    k('s_barrier')
    if OPT['pf1']:
        srd(k, 44, pW1, S * F * 2)
        k(f's_lshl_b32 s61, s{sW}, 4\ns_add_u32 s61, s61, s{sR}')
        pf_loop(k, 1, 61, 64, 16 * OPT['pf1'], ld, 44)
    if OPT['wat'] in (1, 2):
        wp_loads()
    if OPT['wat'] in (4, 5):
        wp_loads((1,))
    if OPT['xc'] == 2:
        clear_xch()
    wp_gather()
    if OPT['wat'] < 2:
        mats1()
    k.wait(0)
    mark(k, 10)
    finish_tag(k)
    wp_run()
    mark(k, 2)
    k(f's_branch {LQ}')
    k.label(LB)
    k.fresh()
    mod_addr(False)
    k.wait(lg=0)
    srd(k, 36, pWS, WS_SIZE)
    srd(k, 40, pWM, D * 3456 * 2)
    load_tag(k, t)
    c_load()
    flag_addr()
    warm([fl, fl + 2, mo + 2])
    L1 = skip_unless(63, 126, 'ge')
    mod_loads(9, 0, OPT['mb'])
    endif(L1)
    mark(k, 1)
    k('s_barrier')
    k.wait(0)
    L1 = skip_unless(63, 126, 'ge')
    mod_loads(9, OPT['mb'], 9)
    endif(L1)
    finish_tag(k)
    mod_silu()
    L1 = skip_unless(sR, 20, 'ge')
    mats1()
    endif(L1)
    k.label(LQ)
    k.fresh()
    mark(k, 3)
    bar(k, lg=0)
    L1 = skip_unless(sR, 20, 'ge')
    if OPT['wfl']:
        k.wait(0)
        k(f'buffer_store_dword v{vTAG}, v{fl+1}, {WS}, 0 offen sc1')
    mats2()
    endif(L1)
    tag(k, 'touch h1')
    tag(k, 'region h1')
    k.wait(0)
    if OPT['wearly']:
        wpre()
    mark(k, 2)
    k('s_barrier')
    if OPT.get('mk') != 'u':
        mark(k, 10)
    k(f'buffer_store_dword v{vTAG}, v{fl}, {WS}, 0 offen sc1')
    L1 = skip_unless(63, 126, 'ge')
    mod_compute(False)
    endif(L1)
    k(f's_cmp_lt_u32 s{sR}, 20\ns_cbranch_scc1 {LP2}')
    srd(k, 52, pW1, S * F * 2)
    k(f'''s_mul_i32 s58, s{sW}, 12
    s_add_u32 s58, s58, s{sR}
    s_add_u32 s58, s58, {16*OPT['pf1'] - 20}''')
    if OPT['pfd']:
        k.wait(0)
    if OPT['pfd'] > 1:
        k(f's_sleep {OPT["pfd"]}')
    pf_loop(k, 1, 58, 48, OPT['pf2'], dum, 52)
    if OPT['pf9']:
        srd(k, 64, pW2, S * F * 2)
        k(f'''s_mul_i32 s59, s{sW}, 12
        s_add_u32 s59, s59, s{sR}
        s_sub_u32 s59, s59, 20''')
        pf_loop(k, 2, 59, 48, OPT['pf9'], dum, 64)
    k.wait(0)
    mark(k, 5)
    k('s_barrier')
    k(f's_branch {LG}')
    tag(k, 'target')
    k.label(LP2)
    k.fresh()
    if OPT['hp']:
        k('s_setprio 1')
    unp = [f'v_lshlrev_b32 v{wv+8*(x>>2)+(x&3)}, 16, v{wp+x}\nv_and_b32 v{wv+8*(x>>2)+4+(x&3)}, 0xffff0000, v{wp+x}' for x in range(16)]
    if OPT['wfl']:
        if not OPT['wearly']:
            wpre()
        wpost()
        if OPT['pfb']:
            srd(k, 40, pW1, S * F * 2)
            k(f's_mul_i32 s58, s{sW}, 20\ns_add_u32 s58, s58, s{sR}\ns_add_u32 s58, s58, {OPT["pf2"] + 10*OPT["pf3"]}')
            pf_loop(k, 1, 58, 1, 320, dum, 40, addr_only=True)
            k(f'''s_mov_b32 s59, s48
            s_cmp_lt_u32 s{sW}, {OPT['pfb']}
            s_cselect_b64 vcc, -1, 0
            v_mov_b32 v{dum+1}, {OOB}
            v_cndmask_b32 v{dum}, v{dum+1}, v{dum}, vcc''')
        if OPT['wearly']:
            k.wait(1)
        L1 = k.lab()
        check_tags(k, [fl + 1])()
        k(f's_cbranch_vccz {L1}')
        poll(k, [wl], check_tags(k, [fl + 1]))
        k.label(L1)
        for tt in range(4):
            k(f'buffer_load_dwordx4 {Q(wp+4*tt)}, v{la}, {WS}, s53 offen offset:{1024*tt} sc1')
        k.wait({1: 0, 2: 3, 3: 4}[OPT['wfl']])
        mark(k, 11)
        poll(k, [f'buffer_load_dword v{t}, v{g4}, {WS}, s65 offen sc1'], check_tags(k, [t]), masked=True, alt=([65], 16384, OPT['na']))
        mark(k, 1)
        for j in range(4):
            k(f'buffer_load_dwordx4 {Q(ld+4*j)}, v{a5}, {WS}, s52 offen offset:{1024*j} sc1')
        for x in unp:
            k(x)
        unp = [''] * 16
        if OPT['stamp']:
            k.wait(0)
    else:
        p2_addr()
        k(f'''s_lshr_b32 s64, s{sJ}, 1
        s_lshl_b32 s64, s64, 16
        s_add_u32 s64, s64, {WS_FL2}
        s_lshl_b32 s48, s{sW}, {6+OPT['fs']}
        s_add_u32 s65, s64, s48
        v_lshlrev_b32 v{t+1}, {OPT['fs']}, v0
        s_lshl_b32 s48, s{sW}, 5
        s_add_u32 s48, s48, s{sJ}
        v_and_b32 v{t+2}, 3, v0
        v_lshl_add_u32 v{t+2}, v{t+2}, 3, s48
        s_cmp_lt_u32 s60, 2
        s_cselect_b32 s48, 1, -1
        v_mul_i32_i24 v{t+2}, s48, v{t+2}
        v_bfe_u32 v{t+3}, v{t+2}, 2, 2
        v_bfe_u32 v{t+4}, v{t+2}, 4, 3
        v_and_b32 v{t+2}, 3, v{t+2}
        v_lshl_add_u32 v{t+2}, v{t+3}, 6, v{t+2}
        v_lshl_add_u32 v{t+2}, v{t+4}, 3, v{t+2}
        v_lshlrev_b32 v{t+2}, {OPT['fs']}, v{t+2}''')
        k.wait(0)
        mark(k, 11)
        poll(k, [f'buffer_load_dword v{t}, v{t+1}, {WS}, s65 offen sc1', f'buffer_load_dword v{t+3}, v{t+2}, {WS}, s64 offen sc1'],
             check_tags(k, [t, t + 3]), masked=True, alt=([64, 65], 16384, OPT['na']))
        mark(k, 1)
        for j in range(4):
            k(f'buffer_load_dwordx4 {Q(ld+4*j)}, v{a5}, {WS}, s52 offen offset:{1024*j} sc1')
        for tt in range(4):
            k(f'buffer_load_dwordx4 {Q(wp+4*tt)}, v{la}, {WS}, s53 offen offset:{1024*tt} sc1')
    if OPT['stamp']:
        k.wait(4)
    mark(k, 4)
    for i in range(4):
        for j in range(i + 1, 4):
            k(f'v_swap_b32 v{ld+4*i+j}, v{ld+4*j+i}')
        for ri in range(2):
            k(f'{MF} {Q(acc+8*i+4*ri)}, {Q(ld+4*i)}, {Q(Fa+4*ri)}, 0')
        if i == OPT['pfbat'] and OPT['pfb']:
            k.raw(f'    buffer_load_dword v{dum+3}, v{dum}, s[40:43], s59 offen')
    for ci in range(4):
        for j in range(4):
            k(f'v_cvt_pk_bf16_f32 v{pk+4*ci+j}, v{acc+8*ci+j}, v{acc+8*ci+4+j}')
        k(f'ds_write_b128 v{a0}, {Q(pk+4*ci)} offset:{L_A+16*ci}')
    bar(k, lg=0)
    for tt in range(4):
        k(f'ds_read_b128 {Q(ld+4*tt)}, v{a2} offset:{L_A+1040*tt}')
    cue = f'buffer_store_dword v{vTAG}, v{fl+2}, {WS}, 0 offen sc1'
    if OPT['cue_at'] == 0:
        k(cue)
    for x in unp[:8]:
        k(x)
    for tt in range(4):
        for ri in range(2):
            k(f'{MF} {Q(acc+8*tt+4*ri)}, {Q(Fb+8*tt+4*ri)}, {Q(ld+4*tt)}, 0')
            k(unp[8 + 2 * tt + ri])
    for tt in range(4):
        for p in range(2):
            re, im, wr, wi = acc + 8 * tt + 2 * p, acc + 8 * tt + 4 + 2 * p, wv + 8 * tt + 2 * p, wv + 8 * tt + 4 + 2 * p
            o = t + 4 * p
            k(f'''v_pk_mul_f32 {P(o)}, {P(re)}, {P(wr)}
            v_pk_mul_f32 {P(o+2)}, {P(im)}, {P(wr)}
            v_pk_fma_f32 {P(o)}, {P(im)}, {P(wi)}, {P(o)} neg_lo:[1,0,0] neg_hi:[1,0,0]
            v_pk_fma_f32 {P(o+2)}, {P(re)}, {P(wi)}, {P(o+2)}
            v_cvt_pk_bf16_f32 v{pk+4*tt+2*p}, v{o}, v{o+2}
            v_cvt_pk_bf16_f32 v{pk+4*tt+2*p+1}, v{o+1}, v{o+3}''')
            if tt:
                k(f'{MF} {Q(acc+8*(tt-1)+4*p)}, {Q(Fbi+8*(tt-1)+4*p)}, {Q(pk+4*(tt-1))}, 0')
            if OPT['cue_at'] == 4 and (tt, p) == (2, 1):
                k(cue)
    for tt in range(4):
        if tt == 1:
            for ri in range(2):
                k(f'{MF} {Q(acc+24+4*ri)}, {Q(Fbi+24+4*ri)}, {Q(pk+12)}, 0')
        for j in range(4):
            k(f'v_cvt_pk_bf16_f32 v{ld+4*j+tt}, v{acc+8*tt+j}, v{acc+8*tt+4+j}')
            if tt == 3:
                k(f'ds_write_b128 v{a3}, {Q(ld+4*j)} offset:{L_B+64*j}')
    bar(k, lg=0)
    for ci in range(4):
        k(f'ds_read_b128 {Q(pk+4*ci)}, v{a1} offset:{L_B+1056*ci}')
    if OPT['cue_at'] == 1:
        k(cue)
    for ci in range(4):
        for ri in range(2):
            k(f'{MF} {Q(acc+8*ci+4*ri)}, {Q(Fai+4*ri)}, {Q(pk+4*ci)}, 0')
    for ci in range(4):
        if ci == 3 and OPT['sp1'] and OPT['cl3'] == 1:
            k('s_barrier')
        for j in range(4):
            k(f'v_cvt_pk_bf16_f32 v{ld+4*j+ci}, v{acc+8*ci+4+j}, v{acc+8*ci+j}')
            if ci == 3:
                k(f'buffer_store_dwordx4 {Q(ld+4*j)}, v{a4}, {WS}, s{66+j} offen sc1')
    if OPT['cue_at'] == 2:
        k(cue)
    mark(k, 5)
    if OPT['hp']:
        k('s_setprio 0')
    bar(k, None if OPT['ec2'] else 0)
    if OPT['cue_at'] == 3:
        k(cue)
    tag(k, 'region -')
    k.label(LG)
    if OPT.get('nodma'):
        k.drop = lambda x: x.endswith(' lds') and (OPT['nodma'] == 1 or (OPT['nodma'] == 2) == ('sc1' in x))
    k.fresh()
    V.p = 4
    t = V(4); la_ = V(); fl = V(2); da = V(9); xa = V(6); xd = V(24, 4); pv = V(2); xf_ = V(); db = V(9); fb = V(3); xr_ = V(5); vr = V(10)
    k(f'v_lshlrev_b32 v{la_}, 4, v0')
    la = la_
    g1_tile(k)
    g2_tile(k)
    srd(k, 40, pW1, S * F * 2)
    srd(k, 44, pW2, S * F * 2)
    k(f'''s_and_b32 s62, s{sW}, 1
    s_and_b32 s63, s{sJ}, {OPT['xm']}
    s_mul_i32 s63, s63, {OPT["xst"]}
    s_add_u32 s63, s63, {OPT['xo']}
    s_mul_i32 s48, s51, {OPT['rot1']}
    s_add_u32 s63, s63, s48
    s_and_b32 s63, s63, 31
    s_mov_b32 s64, 0
    s_lshl_b32 s68, s62, 13''')

    def start_off(dst, hi, base, first, mul, n):
        k(f's_mul_i32 s{dst}, s{first}, {mul}\ns_add_u32 s{dst}, s{dst}, s{base}\ns_add_u32 s{hi}, s{base}, {n*mul}')

    def w_addr(g, da, lo):
        jst, gst, qoff = ((256 * 9216, 9216, 1024 * 9216), (4096, 16384, 16 * 4096))[g]
        k(f'''v_lshlrev_b32 v{t+1}, 1, v2
        v_xor_b32 v{t+1}, v{t+1}, v1
        v_xor_b32 v{t+2}, 8, v{t+1}
        v_mul_u32_u24 v{t}, {jst}, v2
        v_lshl_add_u32 v{t+1}, v{t+1}, 4, v{t}
        v_lshl_add_u32 v{t+2}, v{t+2}, 4, v{t}''')
        if OPT['rotw'] & (1 << g):
            sm = 16 + 8 * g
            k('s_mul_i32 s12, s52, 43\ns_lshr_b32 s12, s12, 5' if g == 0 else 's_lshl_b32 s12, s55, 1')
            for i in range(8):
                k(f'''s_add_u32 s14, s12, {i}
                s_and_b32 s14, s14, 7
                s_and_b32 s15, s14, 3
                s_mul_i32 s15, s15, {gst}
                s_lshr_b32 s48, s14, 2
                s_mul_i32 s48, s48, {qoff}
                s_add_u32 s15, s15, s48
                s_bitcmp1_b32 s14, 0
                s_cselect_b64 vcc, -1, 0
                v_cndmask_b32 v{da+i}, v{t+1}, v{t+2}, vcc
                v_add_u32 v{da+i}, s15, v{da+i}
                s_lshl_b32 s14, s14, 10
                s_add_u32 s{sm+i}, s14, s68''')
        else:
            k(f'''v_add_u32 v{da+2}, {2*(gst-1024)}, v{t+1}
            v_add_u32 v{da+3}, {3*(gst-1024)}, v{t+2}
            v_add_u32 v{da+1}, {gst-1024}, v{t+2}
            v_mov_b32 v{da}, v{t+1}''')
            for i in range(4):
                k(f'v_add_u32 v{da+4+i}, {qoff}, v{da+i}')
        if g == 0:
            k(f's_mul_i32 s49, s62, {4*9216}\ns_lshl_b32 s48, s51, 8\ns_add_u32 s49, s49, s48')
            start_off(lo, lo + 1, 49, 63, 8 * 9216, 32)
        else:
            k(f'''s_mul_i32 s49, s53, {1152*4096}
            s_lshl_b32 s48, s62, 17
            s_add_u32 s49, s49, s48
            s_lshl_b32 s48, s54, 8
            s_add_u32 s49, s49, s48''')
            start_off(lo, lo + 1, 49, 64, 64 * 4096, NST2)

    def woff(n, mul, NST, lo=60, pair=False, d=50):
        if pair:
            p = f's_mul_i32 s{d}, s62, {(kappa(n+1, NST)-kappa(n, NST))*mul}\ns_add_u32 s{d}, s{d}, s{lo}\ns_add_u32 s{d}, s{d}, {kappa(n, NST)*mul}\n'
        else:
            p = f's_add_u32 s{d}, s{lo}, {kappa(n, NST)*mul}\n'
        return p + f's_cmp_ge_u32 s{d}, s{lo+1}\ns_cselect_b32 s48, {NST*mul}, 0\ns_sub_u32 s{d}, s{d}, s48\n'

    class Stream:
        def __init__(st, items):
            st.items, st.n, st.seq = items, 0, []

        def issue(st, upto, now):
            while st.n < min(upto, len(st.items)):
                need, free, txt = st.items[st.n]
                if free > now:
                    break
                k(txt)
                st.seq.append(k.stats.get('vmem', 0))
                st.n += 1

        def more(st, n):
            st.issue(st.n + n, -1)

        def run(st, NST, quota, last_bar=True, mk=None, hooks={}, verify={}, pre={}):
            landed = -1
            log = []
            for i in range(NST):
                nd = [x for x, it in enumerate(st.items) if it[0] <= i]
                vm = None
                if nd and nd[-1] > landed:
                    assert nd[-1] < st.n, (i, nd[-1], st.n)
                    landed = nd[-1]
                    vm = k.stats.get('vmem', 0) - st.seq[landed]
                if i in verify:
                    if vm is not None:
                        k.wait(vm)
                    verify[i]()
                    k('s_barrier')
                else:
                    bar(k, vm)
                if mk and OPT['stamp'] and i == 0:
                    mark(k, mk)
                    k.raw('    s_memtime s[98:99]')
                if mk and OPT.get('trace'):
                    k(f's_memtime s[14:15]\nv_writelane_b32 v{200 + (mk == 8)}, s14, {i}')
                if landed == len(st.items) - 1 and not last_bar:
                    break
                if i in pre:
                    pre[i]()
                n = st.n
                st.issue(quota(i), i)
                log.append((vm, st.n - n))
                if i in hooks:
                    n = k.stats['vmem']
                    hooks[i]()
                    k.stats['vmem'] = n + hooks.get('min', 0)
            if OPT.get('log'):
                print(log, file=sys.stderr)
            if mk and OPT['stamp']:
                mark(k, mk + 1)
                k('s_memtime s[100:101]')
                k(f's_sub_u32 s{84+mk}, s100, s98')

    def adv(s, inc, span, hi):
        return f's_add_u32 s{s}, s{s}, {inc}\ns_cmp_ge_u32 s{s}, s{hi}\ns_cselect_b32 s48, {span}, 0\ns_sub_u32 s{s}, s{s}, s48\n'

    def spread(n0, n1, i0, i1):
        return lambda i: n0 + int(round((n1 - n0) * max(0, min(i, i1) + 1 - i0) / (i1 + 1 - i0)))
    def scalar_pf():
        su = OPT['su']
        if not su:
            return {}
        n0 = 288 - 64 * OPT['pf8'] - 54 * OPT['pf4'] - 54 * OPT['pfa'] - 27 * su + OPT['n4x']
        k(f'''s_lshl_b32 s63, s{sR}, 2
        s_add_u32 s63, s63, s{sW}
        s_mul_i32 s63, s63, {su*4096}
        s_add_u32 s63, s63, {n0*4*4096}
        s_lshr_b32 s48, s{sJ}, 1
        s_mul_i32 s48, s48, {1152*4096}
        s_add_u32 s63, s63, s48
        s_and_b32 s48, s{sJ}, 1
        s_lshl_b32 s48, s48, 11
        s_add_u32 s63, s63, s48''')
        i0, i1 = OPT['suat']
        tot = 32 * su

        def cb(i):
            def f():
                for q in range(tot * (i - i0) // (i1 - i0), tot * (i + 1 - i0) // (i1 - i0)):
                    k.raw(f'    s_load_dword s13, s[20:21], s63')
                    k(f's_add_u32 s63, s63, {64 + (2048 if q % 32 == 31 else 0)}')
            return f
        return {i: cb(i) for i in range(i0, i1)}
    LHW = k.lab()
    if OPT.get('hprio'):
        k(f's_setprio {OPT["hprio"]}')
    k(f's_cmp_ge_u32 s{sW}, 2\ns_cbranch_scc1 {LHW}')
    x1f = f'buffer_load_dword v{fb+2}, v{fb+1}, {WS}, 0 offen sc1'

    def setup_g1():
        h3_idx(k, 56)
        publish(k, 2, 56, fl)
        k(f's_lshl_b32 s56, s52, 6\ns_add_u32 s56, s56, s51')
        publish(k, 3, 56, fl + 1, ncue=5, cue_add=27)
        k(f'''s_lshr_b32 s65, s{sJ}, 2
        s_lshl_b32 s65, s65, 16
        s_add_u32 s66, s65, {WS_FL2+3*0x40000}
        s_lshl_b32 s48, s62, {7+OPT['fs']}
        s_add_u32 s65, s65, s48
        s_add_u32 s65, s65, {WS_FL2+2*0x40000}
        s_add_u32 s69, s65, {64<<OPT['fs']}
        v_lshlrev_b32 v{xa+5}, {OPT['fs']}, v0
        s_mul_i32 s67, s52, {96*16}
        s_mul_i32 s48, s62, {4*9216}
        s_add_u32 s67, s67, s48
        s_add_u32 s67, s67, {WS_H2}
        v_add_u32 v{da+2}, {9216-1536}, v{la}
        v_cmp_gt_u32 vcc, 32, v0
        v_cndmask_b32 v{da+1}, v{da+2}, v{la}, vcc
        v_add_u32 v{da+3}, {2*9216}, v{la}
        v_add_u32 v{da+4}, {2*9216}, v{da+1}
        v_add_u32 v{da+5}, {2*9216}, v{da+2}
        s_mul_i32 s68, s62, 6144''')
        start_off(58, 59, 67, 63, 8 * 9216, 32)

    def setup_g2():
        for i in range(9):
            k(f'''v_add_u32 v{vr}, {64*i}, v0
            v_mul_u32_u24 v{vr+1}, 1821, v{vr}
            v_lshrrev_b32 v{vr+1}, 18, v{vr+1}
            v_mul_u32_u24 v{vr+1}, {9216-2304}, v{vr+1}
            v_lshl_add_u32 v{vr+1}, v{vr}, 4, v{vr+1}
            v_subrev_u32 v{db+i}, {1024*(i&3)}, v{vr+1}''')
        k(f'''s_mul_i32 s48, s55, 3
        s_add_u32 s49, s48, 2
        s_lshr_b32 s48, s48, 1
        s_lshr_b32 s49, s49, 1
        v_mov_b32 v{vr}, s48
        v_mov_b32 v{vr+1}, s49
        v_cmp_gt_u32 vcc, 32, v0
        v_cndmask_b32 v{vr}, v{vr+1}, v{vr}, vcc
        v_and_b32 v{vr+1}, 31, v0
        v_min_u32 v{vr+1}, 8, v{vr+1}
        v_lshl_add_u32 v{vr}, v{vr}, 6, v{vr+1}
        s_mul_i32 s48, s53, 9
        v_add_u32 v{vr}, s48, v{vr}
        v_lshlrev_b32 v{fb}, {OPT['fs']}, v{vr}''')
        k(f'''s_lshr_b32 s48, s54, 3
        s_lshl_b32 s48, s48, 2
        s_and_b32 s49, s54, 1
        s_lshl_b32 s49, s49, 1
        s_add_u32 s48, s48, s49
        s_add_u32 s48, s48, s62
        s_lshl_b32 s48, s48, 13
        s_add_u32 s48, s48, {WS_FL2 + 0x40000}
        v_lshl_add_u32 v{fb+1}, v0, 7, s48
        v_mov_b32 v{fb+2}, 0''')
        k(f'''s_lshl_b32 s48, s54, 7
        s_lshr_b32 s49, s53, 1
        s_lshl_b32 s49, s49, 4
        s_add_u32 s48, s48, s49
        s_mul_i32 s48, s48, 1152
        s_mul_i32 s49, s55, 288
        s_add_u32 s48, s48, s49
        s_and_b32 s49, s53, 1
        s_mul_i32 s49, s49, 144
        s_add_u32 s48, s48, s49
        s_add_u32 s12, s48, {WS_X1}
        s_lshl_b32 s13, s62, 6''')
        for i in range(5):
            k(f'''v_add_u32 v{vr}, s13, v0
            v_mul_u32_u24 v{vr+1}, 911, v{vr}
            v_lshrrev_b32 v{vr+1}, 13, v{vr+1}
            v_mul_u32_u24 v{vr+2}, 9, v{vr+1}
            v_sub_u32 v{vr+2}, v{vr}, v{vr+2}
            v_and_b32 v{vr}, 48, v{vr+1}
            v_add_u32 v{vr+1}, v{vr+1}, v{vr}
            v_mul_u32_u24 v{vr+1}, 1152, v{vr+1}
            v_lshl_add_u32 v{vr+1}, v{vr+2}, 4, v{vr+1}
            v_add_u32 v{xr_+i}, s12, v{vr+1}
            s_add_u32 s13, s13, 128''')
        k(f'''s_mul_i32 s48, s55, 576
        s_and_b32 s49, s53, 1
        s_mul_i32 s49, s49, 288
        s_add_u32 s48, s48, s49
        s_add_u32 s48, s48, {WS_MOD+5*2304}
        v_min_u32 v{vr}, {17*16}, v{la}
        v_add_u32 v{vr}, s48, v{vr}
        s_cmp_eq_u32 s62, 1
        s_cselect_b64 vcc, -1, 0
        v_cndmask_b32 v{xr_+4}, v{xr_+4}, v{vr}, vcc''')

    def setup_x1():
        k(f's_mul_i32 s56, s62, 288\ns_mul_i32 s57, s{sS2}, 1152\ns_add_u32 s57, s57, {WS_X1}')
        for i in range(5):
            k(f'''v_add_u32 v{t}, {64*i}, v0
            v_min_u32 v{t}, 287, v{t}
            v_add_u32 v{t}, s56, v{t}
            v_mul_u32_u24 v{t+1}, 911, v{t}
            v_lshrrev_b32 v{t+1}, 16, v{t+1}
            v_mul_u32_u24 v{t+1}, {256*1152 - 1152}, v{t+1}
            v_lshl_add_u32 v{xa+i}, v{t}, 4, v{t+1}''')
            if i in (0, 4):
                k(f'v_lshlrev_b32 v{t}, 4, v{t}\nv_add_u32 v{t+2+i//4}, {L_Z}, v{t}')
    if not OPT['lz']:
        setup_g1()
        setup_g2()
        setup_x1()
    tag(k, 'touch a1')
    tag(k, 'region a1')
    def clear_u():
        if OPT['sp2']:
            c0, n = spec_range(1)
            k(f'v_mov_b64 {P(xd)}, -1\nv_mov_b64 {P(xd+2)}, -1\ns_lshl_b32 s56, s2, 1\ns_add_u32 s56, s56, s62')

            def addr():
                k('s_mov_b32 s49, s48')
                for g in range(1, 4):
                    k(f's_cmp_ge_u32 s49, {72*n*g}\ns_cselect_b32 s50, {72*(NST2-n)}, 0\ns_add_u32 s48, s48, s50')
                k(f's_lshl_b32 s48, s48, 10\ns_add_u32 s48, s48, {WS_U + c0*73728}')
            clear_loop(k, 56, 512, 288 * n, addr, xd, la)
    if OPT['cl4'] == 0:
        clear_u()
    n7 = OPT['pf2'] + 10 * OPT['pf3']
    k(f'''s_mul_i32 s56, s62, 27
    s_add_u32 s56, s56, s{sR}
    s_add_u32 s56, s56, {n7}
    s_cmp_lt_u32 s{sR}, 27
    s_cselect_b32 s56, s56, 999
    s_barrier''')
    if OPT['pf7']:
        pf_loop(k, 1, 56, 54, n7 + 27 * OPT['pf7'], xd + 20, 40)
    if OPT['cl4'] == 1:
        clear_u()

    def clear_own_xch(upto=14):
        k(f'''v_mov_b64 {P(xd)}, -1
        v_mov_b64 {P(xd+2)}, -1
        s_mul_i32 s56, s2, {XB}
        s_lshl_b32 s48, s62, 10
        s_add_u32 s56, s56, s48
        s_add_u32 s56, s56, {WS_XCH}''')
        for x in range(upto):
            if x < 13:
                k(f's_add_u32 s48, s56, {2048*x}')
            else:
                k(f's_mul_i32 s48, s62, -2048\ns_add_u32 s48, s48, {2048*13}\ns_add_u32 s48, s48, s56')
            k(f'buffer_store_dwordx4 {Q(xd)}, v{la}, {WS}, s48 offen sc1')
    if OPT['xc'] == 4:
        clear_own_xch()
    if OPT['xc'] == 0 and OPT['xc3']:
        clear_own_xch(OPT['xc3'])
    if OPT['lz']:
        setup_g1()
    k('s_barrier')
    if OPT['cl4'] == 2:
        clear_u()
    if OPT['xc'] == 5:
        clear_own_xch()
    if OPT['lz']:
        setup_x1()
    if OPT['sp1'] and OPT['c3']:
        c0_, n_ = spec_range(0)
        k(f'''v_lshrrev_b32 v91, 3, v0
        v_lshlrev_b32 v91, 15, v91
        v_and_b32 v92, 7, v0
        v_lshl_add_u32 v91, v92, 4, v91
        s_lshl_b32 s48, s{sS2}, 7
        s_add_u32 s48, s48, {WS_C3}
        v_add_u32 v91, s48, v91
        s_lshr_b32 s48, s{sS2}, 3
        s_sub_u32 s48, s48, {c0_}
        s_cmp_lt_u32 s48, {n_}
        s_cselect_b32 s48, 0, 1
        s_or_b32 s48, s48, s62
        s_cmp_eq_u32 s48, 0
        s_cselect_b64 vcc, -1, 0
        v_mov_b32 v92, {OOB}
        v_cndmask_b32 v91, v92, v91, vcc
        v_mov_b32 v92, v{vTAG}
        v_mov_b32 v93, v{vTAG}
        v_mov_b32 v94, v{vTAG}
        v_mov_b32 v95, v{vTAG}''')
    k('s_barrier\ns_barrier')
    if OPT['sp1'] and OPT['c3']:
        k(f'buffer_store_dwordx4 {Q(92)}, v91, {WS}, 0 offen sc1')
    for i in range(5):
        k(f'ds_read_b128 {Q(xd+4*i)}, v{t+2+i//4} offset:{1024*(i&3)}')
    def x1_stores():
        for i in range(5):
            k(f'buffer_store_dwordx4 {Q(xd+4*i)}, v{xa+i}, {WS}, s57 offen sc1')

    def p3_publish():
        if not OPT['xdef']:
            bar(k, 0)
            do_publish(k, fl)
            return
        bar(k, lg=0)
        k(f'buffer_store_dword v{vTAG}, v{fl}, {WS}, 0 offen sc1')
        nx = len(reg_stages(0)) - 6
        if OPT['lz']:
            setup_g2()
        if OPT['xdef'] == 2:
            k.wait(0)
        if nx:
            k('s_barrier')
        x1_stores()
        if nx:
            k('s_barrier')
        k.wait(0)
        k(f'buffer_store_dwordx4 {Q(xd+20)}, v{xf_}, {WS}, 0 offen sc1')
    if not OPT['xdef']:
        x1_stores()
    else:
        k(f'''s_lshl_b32 s48, s62, 8
        s_add_u32 s48, s48, s{sS2}
        s_lshl_b32 s48, s48, 7
        s_add_u32 s48, s48, {WS_FL2 + 0x40000}
        v_add_u32 v{xf_}, s48, v{la}
        v_cmp_gt_u32 vcc, 8, v0
        v_mov_b32 v{t}, {OOB}
        v_cndmask_b32 v{xf_}, v{t}, v{xf_}, vcc''')
        k.wait(0)
        for i in range(4):
            k(f'v_mov_b32 v{xd+20+i}, v{vTAG}')
    LN, LJ = k.lab(), k.lab()
    k(f's_cmp_ge_u32 s{sR}, 27\ns_cbranch_scc1 {LN}')
    st0 = (list(k.vm), list(k.lg))
    if OPT['rf']:
        k('s_barrier')

    def act_text(g, n, i, so):
        if g == 0:
            pre = f's_add_u32 m0, s68, {L_ACT + (n % 5)*12288 + 1024*i}\n' if i % 3 == 0 else ''
            return pre + f'buffer_load_dwordx4 v{la if i==0 else da+i}, {WS}, s{so} offen offset:{1024*(i%3)} {OPT["fa1"].replace("_", " ")} lds'
        pre = f's_add_u32 m0, s57, {L_ACT2 + (n % NSA2)*AST2 + 1024*i}\n' if i % 4 == 0 else ''
        return pre + f'buffer_load_dwordx4 v{db+i}, {WS}, s{so} offen offset:{1024*(i&3)} {OPT["fa2"].replace("_", " ")} lds'

    def verifier(g, n):
        def f():
            ni, stg = ((6, 12288), (9, AST2))[g]
            L, E = k.lab(), k.lab()
            k.label(L)
            for i in range(ni):
                k(f'ds_read_b32 v{vr+i}, v{vr+9} offset:{n*stg + 1024*i}' if n < 4 or g == 0 else f'ds_read_b32 v{vr+i}, v90 offset:{(n-4)*stg + 1024*i}')
            for i in range(1, ni, 2):
                k(f'v_max3_u32 v{vr}, v{vr}, v{vr+i}, v{vr+min(i+1, ni-1)}')
            k(f'v_cmp_eq_u32 vcc, -1, v{vr}\ns_cbranch_vccz {E}')
            k(f's_sub_u32 s{sBUD}, s{sBUD}, 1\ns_cbranch_scc1 {E}')
            cnt, vm = k.stats['vmem'], k.vm
            k('s_mov_b32 s14, m0')
            if OPT['sl3']:
                k(f's_sleep {OPT["sl3"]}')
            k(woff(n, 8 * 9216, (32, NST2)[g], 58, False, 15))
            for i in range(ni):
                k(act_text(g, n, i, 15))
            k('s_mov_b32 m0, s14')
            k.wait(0)
            k(f's_branch {L}')
            k.stats['vmem'], k.vm = cnt, vm
            k.label(E)
            k(f's_max_i32 s{sBUD}, s{sBUD}, 0')
        return f

    def late_check(loads, regs, mk):
        seq = []

        def issue():
            for l in loads:
                k(l)
            seq.append(k.stats['vmem'])

        def check():
            k.wait(k.stats['vmem'] - seq[0])
            L = k.lab()
            check_tags(k, regs)()
            k(f's_cbranch_vccz {L}')
            cnt, vm = k.stats['vmem'], k.vm
            poll(k, loads, check_tags(k, regs), masked=True)
            k.stats['vmem'], k.vm = cnt, vm
            k.label(L)
            mark(k, mk)
        return issue, check
    h3l = [f'buffer_load_dword v{t}, v{xa+5}, {WS}, s65 offen sc1', f'buffer_load_dword v{t+1}, v{xa+5}, {WS}, s69 offen sc1']
    items = []
    for n in range(32):
        for i in range(6):
            post = '\n' + woff(n + 1, 8 * 9216, 32, 58) if i == 5 and n < 31 else ''
            items.append((n, max(n - 5 + 2, OPT['sp1']) if n >= 5 else -9, act_text(0, n, i, 50) + post))
    st = Stream(items)

    def stag_setup(n0, g, per, i0, span, gap, lim=288, upw=0):
        if not per:
            return {}
        assert n0 >= 0 and per <= 4
        mask, nf = leaders(g)
        w2_lane(k, pv, 35)
        k(f'''s_mov_b32 s49, s35
        s_mul_i32 s48, s62, {1 if OPT['jit'] else nf}
        s_add_u32 s49, s49, s48
        s_bfm_b32 s48, s{sR}, 0
        s_and_b32 s48, s48, {mask}
        s_bcnt1_i32_b32 s48, s48
        s_sub_u32 s12, s{sR}, s48''')
        bs = OPT[('bs1', 'bs2')[g]] or OPT['jit'] or 2
        wg = OPT[('wg1', 'wg2')[g]]
        for x in range(per):
            if OPT['jit']:
                x0 = x - x % bs
                if upw == 3 and per == 2 and bs == 2:
                    k(f's_mul_i32 s35, s12, 3\ns_add_u32 s35, s35, {n0 + 2*x}')
                    if x == 1:
                        k('s_sub_u32 s35, s35, s62')
                        k('s_sub_u32 s35, s35, s62')
                else:
                    k(f's_mul_i32 s35, s12, {2*min(bs, per-x0)}\ns_add_u32 s35, s35, {n0 + 2*x0*nf + 2*(x-x0)}')
            else:
                k(f's_add_u32 s35, s12, {n0 + 2*x*nf}')
            k(f'''s_add_u32 s35, s35, s49
            s_min_u32 s35, s35, {lim-1}
            s_lshl_b32 s{8+x}, s35, 14''')
        k(f'''s_mul_i32 s35, s12, {span*256//nf}
        s_lshr_b32 s35, s35, 8
        s_add_u32 s35, s35, {i0}
        s_mul_i32 s48, s62, {wg}
        s_add_u32 s35, s35, s48
        s_mov_b32 s48, {mask}
        s_bitcmp1_b32 s48, s{sR}
        s_cselect_b32 s35, 999, s35''')

        def hook(i):
            def f():
                for x0 in range(0, per, bs):
                    q = i - gap * (x0 // bs)
                    if i0 <= q < i0 + span + wg:
                        L = k.lab()
                        k(f's_cmp_lg_u32 s35, {q}\ns_cbranch_scc1 {L}')
                        for x in range(x0, min(x0 + bs, per)):
                            if upw == 3 and x == 1:
                                k(f's_cmp_lg_u32 s62, 0\ns_cbranch_scc1 {L}')
                            k.raw(f'    buffer_load_dword v{pv+1}, v{pv}, s[44:47], s{8+x} offen' + (' nt' if OPT['pfnt'] & (4 << g) else ''))
                        k.label(L)
            return f
        return {i: hook(i) for i in range(i0, i0 + span + wg + gap * ((per - 1) // bs))}
    n8 = pf_split()[1]
    hooks = stag_setup(0 if OPT['swp'] else pf_split()[0], 0, OPT['pf4'], *OPT['pf4at'], lim=n8, upw=pf_split()[2])
    k(woff(0, 8 * 9216, 32, 58))
    verify, pre = {}, {}
    if OPT['sp1']:
        k(f's_add_u32 s48, s68, {L_ACT}\nv_add_u32 v{vr+9}, s48, v{la}')
        bar(k, lg=0)
        k(f'buffer_store_dword v{vTAG}, v{fl}, {WS}, 0 offen sc1')
        if OPT['lz']:
            setup_g2()
        if len(reg_stages(0)) > 6:
            k('s_barrier\ns_barrier')
        if OPT['spw']:
            k.wait(0)
        if OPT['c3']:
            c0_, n_ = spec_range(0)
            k(f'''v_min_u32 v91, {8*n_-1}, v0
            v_lshlrev_b32 v91, 7, v91
            s_lshl_b32 s48, s{sJ}, 15
            s_add_u32 s48, s48, {WS_C3 + c0_*8*128}
            v_add_u32 v91, s48, v91''')
            poll(k, [f'buffer_load_dword v92, v91, {WS}, 0 offen sc1'], check_tags(k, [92]), masked=True, sleep=OPT['c3s'])
        mark(k, 6)
        verify = {n: verifier(0, n) for n in range(5)}
        pre[OPT['sp1'] - 1], pre[OPT['sp1']] = late_check(h3l, [t, t + 1], 7)
        pre[5] = x1_stores
        pre[10] = lambda: k(f'buffer_store_dwordx4 {Q(xd+20)}, v{xf_}, {WS}, 0 offen sc1')
    else:
        p3_publish()
        mark(k, 6)
        poll(k, h3l, check_tags(k, [t, t + 1]), masked=True, alt=([65, 69], 16384, OPT['na']))
        mark(k, 7)
    st.more(6 * OPT['a1pre'])
    if OPT['xdef']:
        assert 28 not in hooks
        hooks[28] = lambda: k(x1f)
    if OPT['su']:
        assert not OPT['sp1']
        pre = scalar_pf()
    st.run(32, lambda i: 6 * (i + 4), hooks=hooks, verify=verify, pre=pre)
    if OPT['su']:
        k.raw('    s_waitcnt lgkmcnt(0)')
    k(f's_branch {LJ}')
    k.label(LN)
    k.fresh()
    if OPT['xdef']:
        k.wait(lg=0)
        x1_stores()
        bar(k, 0)
        k(f'buffer_store_dword v{vTAG}, v{fl}, {WS}, 0 offen sc1')
        k(f'buffer_store_dwordx4 {Q(xd+20)}, v{xf_}, {WS}, 0 offen sc1')
        if OPT['lz']:
            setup_g2()
        k.wait(0)
    else:
        p3_publish()
    poll(k, [f'buffer_load_dword v{t}, v{xa+5}, {WS}, s65 offen sc1', f'buffer_load_dword v{t+1}, v{xa+5}, {WS}, s69 offen sc1'],
         check_tags(k, [t, t + 1]), masked=True, alt=([65, 69], 16384, OPT['na']))
    k.label(LJ)
    k.fresh()
    t = xd
    k(f'''s_mul_i32 s67, s55, {144*16}
    s_mul_i32 s48, s53, {NST2*8*9216}
    s_add_u32 s67, s67, s48
    s_mul_i32 s48, s62, {4*9216}
    s_add_u32 s67, s67, s48
    s_add_u32 s67, s67, {WS_U}
    s_mul_i32 s57, s62, 9216
    s_add_u32 s48, s57, {L_ACT2}
    v_add_u32 v{vr+9}, s48, v{la}
    v_add_u32 v90, {4*AST2}, v{vr+9}''')
    start_off(58, 59, 67, 64, 8 * 9216, NST2)
    k.wait(0)
    if OPT['xdef']:
        L1 = k.lab()
        check_tags(k, [fb + 2])()
        k(f's_cbranch_vccz {L1}')
        poll(k, [x1f], check_tags(k, [fb + 2]), masked=True)
        k.label(L1)
    hooks = stag_setup(n8, 1, OPT['pf8'], *OPT['pf8at'], upw=pf_split()[3])
    k('s_barrier')
    tag(k, 'touch a2')
    tag(k, 'region a2')
    LN, LJ = k.lab(), k.lab()
    k('s_barrier\n' * (2 + bool(OPT['rf2'])))
    k(f's_cmp_ge_u32 s{sR}, 27\ns_cbranch_scc1 {LN}')
    k(f'buffer_store_dword v{vTAG}, v{fl+1}, {WS}, 0 offen sc1')
    if not OPT['sp2'] or OPT['spw']:
        k.wait(0)
    k(f's_branch {LJ}')
    k.label(LN)
    wait_cue(k, 3, t)
    k.label(LJ)
    k(woff(0, 8 * 9216, NST2, 58))
    mark(k, 8)
    h4l = [f'buffer_load_dword v{t}, v{fb}, {WS}, s66 offen sc1']
    verify, prh = {}, {}
    if OPT['sp2']:
        verify = {n: verifier(1, n) for n in range(OPT['nsp'])}
        prh[OPT['sp2'] - 1], prh[OPT['sp2']] = late_check(h4l, [t], 9)
    else:
        poll(k, h4l, check_tags(k, [t]), masked=True, alt=([66], 16384, OPT['na']))
        mark(k, 9)
    items = []
    for n in range(NST2):
        for i in range(9):
            post = '\n' + woff(n + 1, 8 * 9216, NST2, 58) if i == 8 and n < NST2 - 1 else ''
            items.append((n, max(n - NSA2 + 2, OPT['sp2']) if n >= OPT['nsp'] else -9, act_text(1, n, i, 50) + post))
    ring2 = [n for n in range(NST2) if n not in reg_stages(1)]
    xfree = max(n for m, n in enumerate(ring2) if m % NSW2 == L_X1 // 16384) + 1
    for i in range(5):
        pre = f's_lshl_b32 s48, s62, 10\ns_add_u32 m0, s48, {L_X1 + 2048*i}\n' if i < 4 else \
              f's_mul_i32 s48, s62, {L_GB - L_X1 - 8192}\ns_add_u32 m0, s48, {L_X1 + 8192}\n'
        items.append((NST2, max(xfree, NST2 - NSA2 + 1), pre + f'buffer_load_dwordx4 v{xr_+i}, {WS}, 0 offen sc1 lds'))
    st = Stream(items)
    st.more(9 * OPT['a2pre'])
    assert OPT['nsp'] <= NSA2
    st.run(NST2 + 1, lambda i: OPT['a2la'] + 9 * (i + 1), last_bar=False, hooks=hooks, verify=verify, pre=prh)
    LT = k.lab()
    k(f's_branch {LT if OPT["hx"] else "L_end"}')
    tag(k, 'region -')
    k.label(LHW)
    k.fresh()

    def witems(g, stages, slot0=0, NSW=NSW):
        NST, sd, mul, regs, lo = ((32, 40, 8 * 9216, da, 60), (NST2, 44, 64 * 4096, db, 58))[g]
        items = []
        for m, n in enumerate(stages):
            for i in range(8):
                pre = woff(n, mul, NST, lo) if i == 0 else ''
                rot = OPT['rotw'] & (1 << g)
                if rot:
                    pre += f's_add_u32 m0, s{16+8*g+i}, {((m + slot0) % NSW)*16384}\n'
                else:
                    pre += f's_add_u32 m0, s68, {((m + slot0) % NSW)*16384 + 1024*i}\n' if i % 4 == 0 else ''
                items.append((n, stages[m - NSW] + 1 if m >= NSW else -9,
                              pre + f'buffer_load_dwordx4 v{regs+i}, s[{sd}:{sd+3}], s50 offen offset:{0 if rot else 1024*(i&3)} {OPT["fw2" if g else "fw1"].replace("_", " ")} lds'))
        return items

    def split(g):
        rs = reg_stages(g)
        return rs, [n for n in range((32, NST2)[g]) if n not in rs]
    w_addr(1, db, 58)
    rs2, ds2 = split(1)
    f1 = [it[2] for it in witems(1, rs2, 2)]
    LN, LJ = k.lab(), k.lab()
    k(f's_cmp_ge_u32 s{sR}, 27\ns_cbranch_scc1 {LN}')
    w_addr(0, da, 60)
    tag(k, 'touch w1')
    tag(k, 'region w1')
    rs, ds = split(0)
    nx = len(rs) - 6
    items = witems(0, ds, nx)
    n1 = len(items)
    assert (len(ds) + nx) % NSW == 2
    ne = OPT['ne']
    for x in range(ne):
        items += [(99, ds[len(ds) - NSW + x] + 1, it) for it in f1[8 * x:8 * x + 8]]
    st = Stream(items)
    s1 = Stream(witems(0, rs[:6]))
    for n in OPT['pw1']:
        s1.more(n)
        k('s_barrier')
    s1.more(999)
    k('s_barrier')
    bar(k, 0)
    if OPT['rf']:
        k('s_barrier')
        st.more(OPT['rf'])
    k('s_barrier')
    if nx:
        assert not OPT['rf']
        Stream(witems(0, rs[6:])).more(99)
        st.more(OPT['pa'])
        bar(k, st.n)
        st.more(4)
        k('s_barrier')
    def pf_early():
        n0 = 288 - 64 * OPT['pf8'] - 54 * OPT['pf4'] - 54 * OPT['pfa'] + OPT['n4x']
        w2_lane(k, xa, 14)
        k(f's_lshl_b32 s14, s{sR}, 1\ns_add_u32 s14, s14, s62\ns_mul_i32 s14, s14, {OPT["pfa"]}\ns_add_u32 s14, s14, {n0}')
        for x in range(OPT['pfa']):
            k(f's_add_u32 s48, s14, {x}\ns_lshl_b32 s48, s48, 14')
            k(f'buffer_load_dword v{xa+2+x}, v{xa}, s[44:47], s48 offen')
    if OPT['pfa'] and OPT['pfap'] == 0:
        pf_early()
    st.issue(OPT['f21'], -1)
    if OPT['pfa'] and OPT['pfap'] == 1:
        pf_early()
    q1 = spread(st.n, n1, 0 if st.n < 48 else 1, ds[-1] - OPT['wla'])
    if OPT['w1lead']:
        qs, cur = [], st.n
        for i in range(32):
            cur = max(cur, min(8 * sum(n <= i + OPT['w1lead'] for n in ds), cur + OPT['w1max'], n1))
            qs.append(cur)
        q1 = lambda i: qs[i]
    if OPT['asap']:
        n00 = st.n
        q1 = lambda i: min(n1, n00 + int(OPT['asap'] * (i + 1) / 10))
    st.run(32, lambda i: q1(i) + ([0] * 32 + OPT['neq'])[-32 + i], mk=6, pre=scalar_pf())
    if OPT['su']:
        k.raw('    s_waitcnt lgkmcnt(0)')
    assert st.n == len(items)
    k('s_barrier')
    k(f's_branch {LJ}')
    k.label(LN)
    k.fresh()
    k(f's_sub_u32 s56, s{sR}, 27\ns_lshl_b32 s56, s56, 1\ns_add_u32 s56, s56, s62\ns_add_u32 s56, s56, {OPT["pf2"]}')
    k('s_barrier')
    pf_loop(k, 1, 56, 10, OPT['pf2'] + 10 * OPT['pf3'], xa, 40)
    k('s_barrier\n' * 5)
    for it in f1[:8 * ne]:
        k(it)
    k.label(LJ)
    k.fresh()
    st = Stream(witems(1, ds2, 0, NSW2))
    for it in f1[8 * ne:]:
        k(it)
    tag(k, 'touch w2')
    tag(k, 'region w2')
    bar(k, 0)
    if OPT['rf2']:
        k('s_barrier')
        st.more(OPT['rf2'])
    k('s_barrier')
    st.issue(OPT['f22'], -1)
    wpre, wver = {}, {}
    if OPT['xc'] in (0, 3):
        on, tg, vrd, vpr, vds = 100, 104, 108, 109, 110
        k(f'''v_mov_b64 {P(on)}, -1
        v_mov_b64 {P(on+2)}, -1
        v_mov_b32 v{tg}, v{vTAG}
        v_mov_b32 v{tg+1}, v{vTAG}
        v_mov_b32 v{tg+2}, v{vTAG}
        v_mov_b32 v{tg+3}, v{vTAG}
        v_lshlrev_b32 v{vds}, 4, v0
        s_lshl_b32 s48, s2, 7
        s_add_u32 s48, s48, {WS_XRDY}
        v_add_u32 v{vrd}, s48, v{vds}
        s_cmp_eq_u32 s62, 0
        s_cselect_b32 s48, 8, 0
        v_cmp_gt_u32 vcc, s48, v0
        v_mov_b32 v{vpr}, {OOB}
        v_cndmask_b32 v{vrd}, v{vpr}, v{vrd}, vcc
        v_min_u32 v{vpr}, 2, v0
        v_add_u32 v{vpr}, 1, v{vpr}
        v_lshlrev_b32 v{vpr}, 1, v{vpr}
        v_xor_b32 v{vpr}, s2, v{vpr}
        v_lshlrev_b32 v{vpr}, 7, v{vpr}
        v_add_u32 v{vpr}, {WS_XRDY}, v{vpr}
        v_lshlrev_b32 v{tg+4+3}, 4, v0
        s_mul_i32 s56, s2, {XB}
        s_lshl_b32 s48, s62, 10
        s_add_u32 s56, s56, s48
        s_add_u32 s56, s56, {WS_XCH}''')
        c0, cn = OPT['xclr']
        cseq = []

        def clr(i):
            def f():
                n3 = OPT['xc3']
                for x in range(n3 + (i - c0) * (14 - n3) // cn, n3 + (i - c0 + 1) * (14 - n3) // cn):
                    if x < 13:
                        k(f's_add_u32 s57, s56, {2048*x}')
                    else:
                        k(f's_mul_i32 s57, s62, -2048\ns_add_u32 s57, s57, {2048*13}\ns_add_u32 s57, s57, s56')
                    k(f'buffer_store_dwordx4 {Q(on)}, v{tg+7}, {WS}, s57 offen sc1')
                cseq[:] = [k.stats['vmem']]
            return f
        for i in range(c0, c0 + cn):
            if OPT['xc'] == 0:
                wpre[i] = clr(i)
        r0, r1 = OPT['xrdy']
        assert r0 > c0 + cn - 1 and r1 > r0 and r1 < NST2
        if OPT['xc'] == 0:
            wver[r0] = lambda: k.wait(k.stats['vmem'] - cseq[0])
        wpre[r0] = lambda: k(f'buffer_store_dwordx4 {Q(tg)}, v{vrd}, {WS}, 0 offen sc1')
        assert r1 - OPT['xlead'] > r0
        wpre[r1 - OPT['xlead']], chk = late_check([f'buffer_load_dword v{vds}, v{vpr}, {WS}, 0 offen sc1'], [vds], 12)
        wver[r1] = chk
    q2 = spread(st.n, len(st.items), 0 if st.n < 8 * NSW2 else 1, ds2[-1] - OPT['wla2'])
    if OPT['wlead']:
        qs, cur = [], st.n
        for i in range(NST2):
            cur = max(cur, min(8 * sum(n <= i + OPT['wlead'] for n in ds2), cur + OPT['wmax']))
            qs.append(cur)
        q2 = lambda i: qs[i]
    st.run(NST2, q2, mk=8, verify=wver, pre=wpre)
    if not OPT['hx']:
        return
    k('s_barrier')
    k.label(LT)
    k.fresh()
    ha, hr = 100, 104
    k(f'''v_lshlrev_b32 v{ha}, 4, v0
    v_lshlrev_b32 v{ha+1}, 2, v0
    s_mul_i32 s48, s{sW}, {XW}
    s_mul_i32 s60, s2, {XB}
    s_add_u32 s60, s60, s48
    s_add_u32 s60, s60, {WS_XCH + XM}
    s_add_u32 s61, s60, {XM}
    s_mul_i32 s63, s{sW}, {2*XW}
    s_add_u32 s63, s63, {L_S}
    v_add_u32 v{ha+2}, s63, v{ha}
    v_add_u32 v{ha+3}, s63, v{ha+1}''')
    xmark(k, 'x', 1)
    if OPT['hsl']:
        k(f's_sleep {OPT["hsl"]}')
    if OPT['xcue']:
        k(f'''s_lshl_b32 s48, s{sW}, 7
        s_mul_i32 s62, s2, 1536
        s_add_u32 s62, s62, s48
        s_add_u32 s62, s62, {WS_XCUE + 512}
        v_and_b32 v{hr+8}, 1, v0
        v_lshlrev_b32 v{hr+8}, 9, v{hr+8}''')
        poll(k, [f'buffer_load_dword v{hr+9}, v{hr+8}, {WS}, s62 offen sc1'], check_tags(k, [hr + 9]), sleep=OPT['xsl'])
        xmark(k, 'x', 2)
    if OPT['tfirst']:
        poll(k, [f'buffer_load_dword v{hr+8+x}, v{ha+1}, {WS}, s{60+x} offen offset:2048 sc1' for x in (1, 0)],
             check_sent(k, [hr + 8, hr + 9, hr + 9], hr + 6), sleep=OPT['tsl'])
        xmark(k, 'x', 2)
    loads = []
    for x in (1, 0):
        loads.append(f's_add_u32 m0, s63, {XW*x}\n' + f'buffer_load_dwordx4 v{ha}, {WS}, s{60+x} offen sc1 lds')
        loads.append(f'buffer_load_dwordx4 v{ha}, {WS}, s{60+x} offen offset:1024 sc1 lds')
        loads.append(f'buffer_load_dword v{ha+1}, {WS}, s{60+x} offen offset:2048 sc1 lds')

    def hchk():
        for x in range(2):
            k(f'ds_read_b32 v{hr+3*x}, v{ha+2} offset:{XW*x}\nds_read_b32 v{hr+3*x+1}, v{ha+2} offset:{XW*x+1024}\nds_read_b32 v{hr+3*x+2}, v{ha+3} offset:{XW*x+2048}')
        check_sent(k, [hr + i for i in range(6)], hr + 6)()
    poll(k, loads, hchk, sleep=OPT['hsl2'])
    xmark(k, 'x', 3)
    k('s_barrier')


def build():
    geometry()
    k = K('m')
    k(f's_cmp_ge_u32 s2, 256\ns_cbranch_scc1 L_exit')
    if OPT['stamp']:
        k('s_memrealtime s[70:71]')
        for i in range(72, 96):
            k(f's_mov_b32 s{i}, 0')
    k(f'''s_load_dwordx16 s[8:23], s[0:1], 0
    s_load_dwordx8 s[24:31], s[0:1], 64
    s_load_dwordx2 s[32:33], s[0:1], 96''')
    if OPT['codepf']:
        k(f'''v_readfirstlane_b32 s4, v0
        s_lshr_b32 s5, s2, 3
        s_lshr_b32 s4, s4, 6
        s_cmp_lg_u32 s4, s5
        s_cbranch_scc1 L_nopf
        s_getpc_b64 s[52:53]
        L_pc:
        s_sub_u32 s52, s52, L_pc-{NAME}_kernel
        s_subb_u32 s53, s53, 0
        s_mov_b32 s54, L_code_end-{NAME}_kernel
        s_mov_b32 s55, 0x20000
        v_lshlrev_b32 v1, 7, v0''')
        k.raw('    buffer_load_dword v255, v1, s[52:55], 0 offen')
        k('v_add_u32 v1, 65536, v1')
        k.raw('    buffer_load_dword v255, v1, s[52:55], 0 offen')
        k.maxreg['v'] = 255
        k.label('L_nopf')
    k(f'''v_lshrrev_b32 v1, 6, v0
    v_and_b32 v0, 63, v0
    v_readfirstlane_b32 s{sWAVE}, v1
    v_and_b32 v1, 15, v0
    v_lshrrev_b32 v2, 4, v0
    s_and_b32 s{sJ}, s2, 7
    s_lshr_b32 s{sR}, s2, 3
    s_lshl_b32 s{sS2}, s{sJ}, 5
    s_add_u32 s{sS2}, s{sS2}, s{sR}
    s_mov_b32 s{sBUD}, 100000
    s_and_b32 s{sW}, s{sWAVE}, 3''')
    k(f's_cmp_ge_u32 s{sWAVE}, 4')
    k('s_cbranch_scc0 L_C' if OPT['ufirst'] else 's_cbranch_scc1 L_H')
    n0 = len(k.out)
    k.label('L_C')
    gen_C(k)
    tag(k, 'region -')
    n1 = len(k.out)
    k.label('L_H')
    k.fresh()
    gen_H(k)
    n2 = k.out.index('; @cut')
    if OPT['ufirst']:
        k.out = k.out[:n0] + k.out[n1:n2] + k.out[n0:n1] + k.out[n2 + 1:]
    else:
        del k.out[n2]
    k.label('L_end')
    if OPT['stamp']:
        k.fresh()
        k('s_memrealtime s[94:95]')
        k.wait(0, 0)
        k('s_memrealtime s[96:97]')
        k(f's_add_u32 s40, s{pWS}, {64*MB}\ns_addc_u32 s41, s{pWS+1}, 0\ns_mov_b32 s42, {1*MB}\ns_mov_b32 s43, 0x20000')
        k(f's_lshl_b32 s48, s2, 3\ns_add_u32 s48, s48, s{sWAVE}\ns_lshl_b32 s48, s48, 6\nv_mov_b32 v3, 0')
        for i in range(14):
            k(f'v_mov_b32 v{4+i}, s{70+2*i}')
        k(f'v_mov_b32 v18, s{sBUD}\ns_getreg_b32 s49, hwreg(HW_REG_XCC_ID)\ns_getreg_b32 s50, hwreg(HW_REG_HW_ID)\ns_and_b32 s49, s49, 15\ns_lshl_b32 s50, s50, 4\ns_or_b32 s49, s49, s50\nv_mov_b32 v19, s49')
        for i in range(4):
            k(f'buffer_store_dwordx4 {Q(4+4*i)}, v3, s[40:43], s48 offen offset:{16*i}')
        if OPT.get('trace'):
            k(f's_lshl_b32 s48, s48, 3\ns_add_u32 s48, s48, {MB//2}\ns_mov_b32 s42, {2*MB}\nv_lshlrev_b32 v3, 2, v0')
            k('buffer_store_dword v200, v3, s[40:43], s48 offen\nbuffer_store_dword v201, v3, s[40:43], s48 offen offset:256')
    k.label('L_exit')
    k('s_endpgm')
    k.label('L_code_end')
    if OPT['touch']:
        k.out, ch = page_touch([f'{NAME}_kernel:'] + k.out)
        k.out = k.out[1:]
        print(ch, file=sys.stderr)
    ref = open(f'/code/{NAME}.s.ref').read().split('\n')
    hdr = [l for l in ref if l.startswith(';') and '@launch' not in l]
    out = '\n'.join(hdr) + '\n'
    if OPT.get('aslist'):
        out += f'; @launch kernel={NAME}_kernel grid=(256,1,1) block=(512,1,1) lds=163840\n'
    else:
        out += '; @launch grid=(256,1,1) block=(512,1,1) lds=163840\n'
    out += '.amdgcn_target "amdgcn-amd-amdhsa--gfx950"\n.text\n'
    out += f'.globl {NAME}_kernel\n.p2align 8\n.type {NAME}_kernel,@function\n{NAME}_kernel:\n' + k.text()
    out += '.section .rodata,"a"\n' + descriptor(NAME + '_kernel', k.maxreg['v'] + 1, 0, k.maxreg['s'] + 1)
    print('vgpr', k.maxreg['v'] + 1, 'sgpr', k.maxreg['s'] + 1, k.stats, file=sys.stderr)
    return out


if __name__ == '__main__':
    path = f'/code/{NAME}.s'
    for a in sys.argv[1:]:
        if '=' in a:
            n, v = a.split('=')
            OPT[n] = int(v) if v.lstrip('-').isdigit() else ([int(x) for x in v.split(',')] if ',' in v else v)
        else:
            path = a
    if OPT.get('wsh'):
        WS_H2 += OPT['wsh'] * MB
        WS_U += OPT['wsh'] * MB
        WS_SIZE = 64 * MB
    open(path, 'w').write(build())
```

```python
import struct, sys
from asm import *

NAME = 'adaLN_cond__spectral_gfnet__mixer_token_mlp__prompt'
S, D, F = 2048, 576, 4608
MB = 1 << 20
WS_MOD, WS_EPOCH, WS_MODG, WS_MODB, WS_FLAG, WS_CUE = 0, 0x8000, 0xE80000, 0x30000, 0x40000, 0x80000
WS_WP, WS_T1, WS_T2, WS_X1, WS_H2, WS_U, WS_XCH = 1 * MB, 4 * MB, 8 * MB, 12 * MB, 16 * MB, 20 * MB, 26 * MB
WS_SIZE = 48 * MB
WS_XCUE = 36 * MB
WS_C3 = 38 * MB
WS_XRDY = 37 * MB
XW, XM, XB = 2304, 9216, 27648
WS_FL2 = 15 * MB
OOB = 0x7ff00000
MF = 'v_mfma_f32_16x16x32_bf16'
sW, sJ, sR, sS2, sBUD = 3, 4, 5, 6, 7
pX, pWR, pWI, pW1, pB1, pW2, pB2, pC, pWM, pOUT, pWS = 8, 10, 12, 16, 18, 20, 22, 24, 26, 28, 32
sWAVE = 34
WS = 's[36:39]'
vTAG = 3
L_SLAB, L_WST, L_MG, L_TR, L_SILU = 0, 36864, 61440, 77824, 90112
L_X = 100352
L_ST = L_X + 9472
L_M = L_ST + 128
L_E = L_M + 16384
L_MI = 147456
L_ACT = 98304
L_Z, L_MOD, L_Y, L_H = 98304, 108544, 116736, 135808
XROW, YROW = 1184, 2320
AST2, NST2 = 18432, 18
L_ACT2, NSA2, NSW2 = 90112, 4, 5
L_X1, L_GB, L_S = 2 * 16384, 81920, 3 * 16384
NSW = 6
OPT = dict(n6=0, swp=1, w1lead=5, w1max=8, pfb=0, pfbat=0, xc3=0, yw=0, ebl=4, c3=1, c3s=1, u4=0, u8=3, su=0, suat=[0, 30], rotw=0, pfw1=999, bs1=0, bs2=0, wg1=0, wg2=0, tfirst=0, tsl=2, pfa=0, pfap=0, pfnt=0, wo=0, nsp=4, n4x=0, wlead=0, wmax=6, nsa2=4, xc=0, xlead=2, xclr=[2, 8], xrdy=[12, 17], pf9=0, rot1=0, xcue=0, xsl=2, wx=0, hx=1, hsl=0, hsl2=1, stamp=0, codepf=1, poll_sleep=1, outflag='sc1', xst=4, xst2=0, a1pre=2, a2pre=3,
           asap=0, jit=2, xk=0, pfm=0, lz=1, ec2=0, single=0, pa=12, lead=0, fa1='sc1', fa2='sc1', fw1='', fw2='', a0=0, twi=0, ufirst=1, defer=4, wla2=2, sp1=0, sp2=2, spw=0, sl3=2, cl3=0, cl4=1, xo=26, touch=1, mw=1, wla=3, rs1=[6, 9, 12, 15, 18, 21, 24, 27], rs2=[4, 6, 8, 10, 11, 12], rf=0, f21=32, f22=32, pw1=[16, 16],
           pf1=0, pf2=96, pf3=2, pf4=2, pf4at=[0, 14, 0], pf8=2, pf8at=[0, 8, 0], a2la=27, pf5=288, pf6=0, pf7=0, x1=0, cue_at=2, wat=2, prew=1, m1early=2, tlb=0, dly=0, hp=1, up=2, f64=1, mb=2, fs=4, mask=1, warm=1, c2=1, wfl=1, wearly=1, pfd=0, xdef=2, rf2=8, ne=4, neq=[10, 22, 32], xm=7, nl=10, tw1=1, tw3=1, sl2=1, na=1, nm=1)


def g1_rings():
    nx = len(reg_stages(0)) - 6
    nds = 32 - len(reg_stages(0))
    if OPT['n6']:
        return 81920, 6, 5, [(nds - 5 + x + nx) % 5 for x in range(5)] + [5]
    return L_ACT, 5, 6, [(2 + x) % 6 for x in range(6)]


def pf_split():
    u4, u8 = OPT['u4'] or 2 * OPT['pf4'], OPT['u8'] or 2 * OPT['pf8']
    n8 = 288 - 32 * u8
    return n8 - 27 * u4 + OPT['n4x'], n8, u4, u8


def geometry():
    global L_ACT2, NSA2, NSW2, L_X1, L_GB, L_S
    if OPT['nsa2'] == 5:
        L_ACT2, NSA2, NSW2 = 65536, 5, 4
        L_X1, L_S, L_GB = 0, 16384, 65536 + 5 * AST2


def quads(rg, rs, D):
    D0 = 2 * (NST2 - D)
    early = [rg[i] + 4 * j for i, n in enumerate(rs) if n < NST2 - D for j in range(4)]
    late = [rg[i] + 8 * st + 4 for i, n in enumerate(rs) if n >= NST2 - D for st in range(2)]
    steps = [q for q in range(D0, 2 * NST2) if q >> 1 not in rs]
    park = dict(zip(steps, early))
    assert all(n < NST2 - D - 1 for i, n in enumerate(rs) if rg[i] <= max(park.values()) and n < NST2 - D)
    return park, early[len(steps):] + late


def f32(x):
    return '0x%08x' % struct.unpack('<I', struct.pack('<f', x))[0]


def P(r):
    return f'v[{r}:{r+1}]'


def Q(r):
    return f'v[{r}:{r+3}]'


def srd(k, dst, ptr, size):
    k(f's_mov_b32 s{dst}, s{ptr}\ns_mov_b32 s{dst+1}, s{ptr+1}\ns_mov_b32 s{dst+2}, {size}\ns_mov_b32 s{dst+3}, 0x20000')


def mark(k, i):
    if OPT['stamp']:
        k.raw(f'    s_memrealtime s[{70+2*i}:{71+2*i}]')


def tag(k, what):
    if OPT['touch']:
        k.raw('    ; @' + what)


def xmark(k, grp, i):
    if OPT.get('mk') == grp:
        mark(k, i)
    if OPT.get('mk') == grp + 'c':
        k.raw(f'    s_memtime s[{70+2*i}:{71+2*i}]')


def bar(k, vm=None, lg=None):
    if vm is not None or lg is not None:
        k.wait(vm, lg)
    k('s_barrier')


def cs_pair(k, ang, tc, ts, dsts):
    k(f'v_cos_f32 v{tc}, v{ang}\nv_sin_f32 v{ts}, v{ang}')
    m = {'c': f'v{tc}', 's': f'v{ts}', '-c': f'-v{tc}', '-s': f'-v{ts}'}
    for d, lo, hi in dsts:
        k(f'v_cvt_pk_bf16_f32 v{d}, {m[lo]}, {m[hi]}')


def dft_frag(k, base, step, re, im, tmp, inverse):
    for j in range(4):
        a, tc, ts = tmp + 3 * (j & 1), tmp + 3 * (j & 1) + 1, tmp + 3 * (j & 1) + 2
        if j == 0:
            a = base
        elif j == 3:
            k(f'v_add_f32 v{a}, v{tmp}, v{step}')
        else:
            k(f'v_fma_f32 v{a}, v{step}, {float(j)}, v{base}')
        if inverse:
            cs_pair(k, a, tc, ts, [(re + j, 'c', '-s'), (im + j, 's', 'c')])
        else:
            cs_pair(k, a, tc, ts, [(re + j, 'c', 's'), (im + j, '-s', 'c')])


def red32(k, regs, t):
    for mod in ('quad_perm:[1,0,3,2]', 'quad_perm:[2,3,0,1]', 'row_half_mirror', 'row_mirror'):
        for r in regs:
            k(f'v_add_f32_dpp v{r}, v{r}, v{r} {mod} row_mask:0xf bank_mask:0xf')
    for i, r in enumerate(regs):
        k(f'v_mov_b32 v{t+i}, v{r}')
    for i, r in enumerate(regs):
        k(f'v_permlane16_swap_b32 v{r}, v{t+i}')
    for i, r in enumerate(regs):
        k(f'v_add_f32 v{r}, v{r}, v{t+i}')


def poll(k, loads, check, sleep=None, masked=False, alt=None):
    L, E = k.lab('Lp'), k.lab('Le')
    sleep = OPT['poll_sleep'] if sleep is None else sleep
    if alt and alt[2] > 1:
        k(f's_mov_b32 s14, {alt[2] - 1}')
    k.label(L)
    for l in loads:
        k(l)
    k.wait(0)
    check()
    k(f's_cbranch_vccz {E}')
    k(f's_sub_u32 s{sBUD}, s{sBUD}, 1\ns_cbranch_scc1 {E}')
    if alt and alt[2] > 1:
        k(f's_cmp_gt_i32 s14, 0\ns_cselect_b32 s15, {alt[1]}, 0\ns_sub_u32 s14, s14, 1')
        for r in alt[0]:
            k(f's_add_u32 s{r}, s{r}, s15')
    masked = masked and OPT['mask']
    if masked:
        k('s_mov_b64 exec, vcc')
    if sleep:
        k(f's_sleep {sleep}')
    k(f's_branch {L}')
    k.label(E)
    if masked:
        k('s_mov_b64 exec, -1')
    k(f's_max_i32 s{sBUD}, s{sBUD}, 0')


def check_tags(k, regs):
    def f():
        k(f'v_cmp_ne_u32 vcc, v{vTAG}, v{regs[0]}')
        for r in regs[1:]:
            k(f'v_cmp_ne_u32 s[48:49], v{vTAG}, v{r}\ns_or_b64 vcc, vcc, s[48:49]')
    return f


def publish(k, sync, sidx, t, ncue=0, cue_add=0):
    k(f'''s_lshl_b32 s48, s{sidx}, {OPT['fs']}
    s_lshl_b32 s49, s{sW}, 16
    s_add_u32 s48, s48, s49
    s_add_u32 s48, s48, {WS_FL2 + sync*0x40000}
    v_mov_b32 v{t}, {OOB}''')
    for a in range(OPT['na']):
        k(f'v_writelane_b32 v{t}, s48, {a}\ns_add_u32 s48, s48, 16384')
    if ncue:
        k(f'''s_add_u32 s48, s2, {8*cue_add}
        s_lshl_b32 s48, s48, 7
        s_add_u32 s48, s48, {WS_CUE + sync*0x8000}
        s_lshl_b32 s49, s{sW}, 8
        s_add_u32 s49, s49, s{sR}
        s_cmp_lt_u32 s49, {ncue}
        s_cselect_b32 s48, s48, {OOB}
        v_writelane_b32 v{t}, s48, 8''')


def do_publish(k, t):
    k(f'buffer_store_dword v{vTAG}, v{t}, {WS}, 0 offen sc1')
    k.wait(0)


def wait_cue(k, sync, t, sleep=4):
    k(f's_lshl_b32 s50, s2, 7\ns_add_u32 s50, s50, {WS_CUE + sync*0x8000}\nv_mov_b32 v{t}, 0')
    poll(k, [f'buffer_load_dword v{t+1}, v{t}, {WS}, s50 offen sc1'], check_tags(k, [t + 1]), sleep=sleep)


def h3_idx(k, d):
    k(f'''s_bfe_u32 s{d}, s{sS2}, 0x10002
    s_lshl_b32 s{d}, s{d}, 7
    s_lshr_b32 s{d+1}, s{sS2}, 3
    s_lshl_b32 s{d+1}, s{d+1}, 2
    s_add_u32 s{d}, s{d}, s{d+1}
    s_and_b32 s{d+1}, s{sS2}, 3
    s_add_u32 s{d}, s{d}, s{d+1}''')


def g1_tile(k):
    k(f'''s_mul_i32 s52, s{sJ}, 27
    s_add_u32 s52, s52, s{sR}
    s_mul_i32 s51, s52, 171
    s_lshr_b32 s51, s51, 10
    s_mul_i32 s48, s51, 6
    s_sub_u32 s52, s52, s48''')


def g2_tile(k):
    k(f'''s_lshr_b32 s53, s{sJ}, 1
    s_and_b32 s54, s{sJ}, 1
    s_lshl_b32 s54, s54, 3
    s_lshr_b32 s48, s{sR}, 2
    s_add_u32 s54, s54, s48
    s_and_b32 s55, s{sR}, 3''')


def ring_adv(k, s, step, lo, hi):
    k(f's_add_u32 s{s}, s{s}, {step}\ns_cmp_eq_u32 s{s}, {hi}\ns_cselect_b32 s{s}, {lo}, s{s}')


def preload_w(vW0, vW, pairs):
    r = []
    for half in range(2):
        mine = [(sl, f0) for sl, f0 in pairs if sl // 3 == half]
        if mine:
            r += [f'v_add_u32 v{vW+nt}, {49152*half}, v{vW0+nt}' for nt in range(2)]
        for sl, f0 in mine:
            for st in range(2):
                for nt in range(2):
                    f = f0 + 8 * st + 4 * nt
                    o = (sl % 3) * 16384 + st * 8192
                    r += [f'ds_read_b64_tr_b16 {P(f)}, v{vW+nt} offset:{o}', f'ds_read_b64_tr_b16 {P(f+2)}, v{vW+nt} offset:{o+4096}']
    return r


def reg_stages(g):
    return OPT['rs1'] if g == 0 else OPT['rs2']


def kappa(n, NST):
    rs = reg_stages(0 if NST == 32 else 1)
    return rs.index(n) if n in rs else len(rs) + n - sum(x < n for x in rs)


def leaders(g):
    if not OPT['lead'] & (1 << g):
        return 0, (27, 32)[g]
    l = [6 * (c & 3) + c for c in range(6)] if g == 0 else [4 * d + (d & 3) for d in range(8)]
    return sum(1 << x for x in l), (27, 32)[g] - len(l)


def spec_range(g):
    if g == 0:
        c = {(kappa(n, 32) + OPT['xst'] * (j & OPT['xm']) + OPT['xo']) % 32 for n in range(5) for j in range(8)}
    else:
        c = {kappa(n, NST2) for n in range(OPT['nsp'])}
    return min(c), max(c) - min(c) + 1


def clear_loop(k, sidx, stride, total, addr, ones, la):
    for x in range((total + stride - 1) // stride):
        L = k.lab()
        k(f's_add_u32 s48, s{sidx}, {x*stride}\ns_cmp_ge_u32 s48, {total}\ns_cbranch_scc1 {L}')
        addr()
        k.cond += 1
        k(f'buffer_store_dwordx4 {Q(ones)}, v{la}, {WS}, s48 offen sc1')
        k.cond -= 1
        k.label(L)


def gemm_c(k, MT, NST, NSA, ASTAGE, vA, vA4, vW0, vW, fa, fw, acc, rg, rs, w_is_A, at_end=None, last_order=None, defer=0, send=None, single=False, slot0=0, hold=False, nsw=NSW, vAhi=None):
    NT = 2
    for nt in range(NT):
        k(f'v_add_u32 v{vW+nt}, 49152, v{vW0+nt}')

    def reads(n, st, wslot):
        w, a = [None] * 4, []
        if wslot is not None:
            for nt in range(NT):
                f = fw + 4 * (st * NT + nt)
                r, o = (vW0 if wslot < 3 else vW) + nt, (wslot % 3) * 16384 + st * 8192
                w[2 * nt] = f'ds_read_b64_tr_b16 {P(f)}, v{r} offset:{o}'
                w[2 * nt + 1] = f'ds_read_b64_tr_b16 {P(f+2)}, v{r} offset:{o+4096}'
        o = (n % NSA) * ASTAGE + st * ASTAGE // 2
        va = vA
        if n % NSA == 5:
            va, o = vAhi, o - 5 * ASTAGE
        for mt in range(MT):
            f = fa + 4 * ((0 if single else st) * MT + mt)
            if vA4 is not None and mt == MT - 1:
                a.append(f'ds_read_b128 {Q(f)}, v{vA4} offset:{o}')
            else:
                a.append(f'ds_read_b128 {Q(f)}, v{va} offset:{o+256*mt}')
        if single:
            return [x for mt in range(MT) for x in (w[mt] if mt < 4 else None, a[mt])]
        return [w[0], a[0], w[1], a[1], w[2], a[2], w[3]] + a[3:]

    def mfmas(p, wb):
        r = []
        order = [(0, 0), (1, 0), (2, 0), (0, 1), (1, 1), (2, 1)] + [(mt, nt) for mt in range(3, MT) for nt in range(NT)]
        if single:
            order = [(mt, nt) for mt in range(MT) for nt in range(NT)]
        for mt, nt in order:
            a = acc + 4 * (mt * NT + nt)
            x, y = fa + 4 * ((0 if single else p) * MT + mt), wb + 4 * (p * NT + nt)
            if w_is_A:
                x, y = y, x
            r.append(f'{MF} {Q(a)}, {Q(x)}, {Q(y)}, {Q(a)}')
        return r
    def step(mm, rd, barrier, merged=True):
        if OPT.get('noread'):
            rd = []
        if OPT.get('nomfma'):
            mm = ['s_nop 0'] * len(mm)
        if not mm and barrier:
            k('s_barrier')
        per = 1 if len(mm) >= len(rd) else 2
        rd = list(rd) if per == 1 else [x for x in rd if x]
        done = 0
        for i, mi in enumerate(mm):
            if merged and OPT['mw'] and i == 6:
                k.wait(lg=done)
            k(mi)
            if barrier and i == 0:
                k('s_barrier')
            for x in rd[:per]:
                if x:
                    k(x)
                    done += 1
            rd = rd[per:]
        for x in rd:
            if x:
                k(x)
    isnt = lambda mi, nt: ((int(mi.split('[')[1].split(':')[0]) - acc) // 4) % 2 == nt
    prev, m = None, 0
    D0 = 2 * (NST - defer)
    assert all(n < NST - defer - 1 for n in rs)
    for n in range(NST):
        cur, wslot = (rg[rs.index(n)], None) if n in rs else (fw, (m + slot0) % nsw)
        m += n not in rs
        for st in range(2):
            rd = reads(n, st, wslot)
            mm = [] if prev is None and st == 0 else mfmas(st ^ 1, prev if st == 0 else cur)
            q = 2 * n + st
            if q >= D0:
                f, g = fw + 8 * st, rg[0] + 4 * (q - D0)
                rd[0], rd[2] = rd[0].replace(P(f), P(g)), rd[2].replace(P(f + 2), P(g + 2))
                rd = [rd[4], rd[6], rd[1], rd[3], rd[5]] + rd[7:] + [rd[0], rd[2]]
            if q > D0:
                step([x for x in mm if isnt(x, 1)], rd, st == 0, False)
                continue
            if mm and (OPT['mw'] and (n, st) != (0, 1) or (st == 0 and prev == fw)):
                k.wait(lg=MT - 3)
            step(mm, rd, st == 0, not single or OPT['mw'] == 2)
        prev = cur
    if not defer:
        k.wait(lg=0)
        if at_end:
            at_end()
        mm = mfmas(1, prev)
        if last_order:
            mm.sort(key=last_order)
        if hold:
            return mm
        for mi in mm:
            k(mi)
        return []
    acts = lambda q: [x for x in reads(q // 2, q % 2, None) if x]
    mm = [x for x in mfmas(1, prev) if isnt(x, 1)]
    mm.sort(key=last_order)
    last = 2 * NST - 1
    step(mm, acts(D0), False, False)
    step([x for x in mfmas(1, rg[0] + 4 * (last - D0) - 8) if isnt(x, 0)], [], False, False)
    send()
    for q in range(D0, last):
        step([x for x in mfmas(q % 2, rg[0] + 4 * (q - D0) - 8 * (q % 2)) if isnt(x, 0)], acts(q + 1) if q + 1 < last else [], False, False)
    at_end()


def gemm2_c(k, vAo, vAx, vA4, vW0, vW, fa, fw, accf, rg, rs, D, send_bc, send_a, at_end, fill={}, drain=None, vhi=None):
    MT, NST = 9, NST2
    last = 2 * NST - 1
    D0 = 2 * (NST - D)
    park, _ = quads(rg, rs, D)
    assert 1 <= D <= NSA2
    for nt in range(2):
        k(f'v_add_u32 v{vW+nt}, 49152, v{vW0+nt}')

    def aread(q, mt):
        sl = (q >> 1) % NSA2
        base = (vAo, vA4, vAx)
        if sl >= 4:
            base, sl = vhi, sl - 4
        v, o = (base[0], 256 * mt) if mt < 4 else ((base[1], 0) if mt == 4 else (base[2], 256 * (mt - 5)))
        return f'ds_read_b128 {Q(fa+4*mt)}, v{v} offset:{sl*AST2 + (q & 1)*9216 + o}'

    def wreg(q, nt):
        n, st = q >> 1, q & 1
        if n in rs:
            return rg[rs.index(n)] + 8 * st + 4 * nt
        if q >= D0 and nt == 0:
            return park[q]
        return fw + 8 * st + 4 * nt
    ring = [n for n in range(NST) if n not in rs]

    def wreads(q):
        n, st = q >> 1, q & 1
        if n in rs:
            return []
        sl = ring.index(n) % NSW2
        r = []
        for nt in (1, 0):
            f, v, o = wreg(q, nt), (vW0 if sl < 3 else vW) + nt, (sl % 3) * 16384 + st * 8192
            r += [f'ds_read_b64_tr_b16 {P(f)}, v{v} offset:{o}', f'ds_read_b64_tr_b16 {P(f+2)}, v{v} offset:{o+4096}']
        return r

    def mf(q, mt, nt):
        a = accf(mt, nt)
        return f'{MF} {Q(a)}, {Q(fa+4*mt)}, {Q(wreg(q, nt))}, {Q(a)}'

    def emit(mm, after, group=6, barrier=False, extra=None):
        if OPT.get('noread'):
            after = [[x for x in a if not x.startswith('ds_')] for a in after]
        if barrier and not mm:
            k('s_barrier')
        for i, m in enumerate(mm):
            if i % group == 0:
                k.cover(mm[i:i + group])
            k('s_nop 0' if OPT.get('nomfma') else m)
            if barrier and i == 0:
                k('s_barrier')
            for x in after[i]:
                k(x)
            if extra:
                for x in extra[:2]:
                    k(x)
                del extra[:2]
        for a in after[len(mm):]:
            for x in a:
                k(x)
    for q in range(last + 1):
        w = wreads(q)
        p = q - 1
        if p < 0:
            emit([], [w + [aread(q, mt) for mt in range(MT)]], barrier=True)
        elif p < D0:
            mm = [mf(p, mt, nt) for mt in range(MT) for nt in (1, 0)]
            after = [[] for _ in mm]
            for i, x in enumerate(w):
                after[2 * i].append(x)
            for mt in range(MT):
                after[2 * mt + 1].append(aread(q, mt))
            after[10] += fill.get(q, [])
            if q == drain:
                k.wait(0)
            emit(mm, after, barrier=not q & 1)
        else:
            mm = [mf(p, mt, 1) for mt in range(MT)]
            after = [[aread(q, mt)] for mt in range(MT)]
            for i, x in enumerate(w):
                after[(0, 1, 5, 6)[i]].append(x)
            emit(mm, after, group=3, barrier=not q & 1)
    emit([mf(last, mt, 1) for mt in range(MT)], [[] for _ in range(MT)], group=3)
    hi, lo = [4, 5, 6, 7, 8], [0, 1, 2, 3]
    emit([mf(last, mt, 0) for mt in hi + lo], [[aread(D0, mt)] for mt in hi + lo], group=9)
    x = send_bc()
    for q in range(D0, last):
        emit([mf(q, mt, 0) for mt in hi], [[aread(q + 1, mt)] if q + 1 < last else [] for mt in hi], group=5, extra=x)
    for y in x:
        k(y)
    x = None
    for q in range(D0, last):
        emit([mf(q, mt, 0) for mt in lo], [[aread(q + 1, mt)] if q + 1 < last else [] for mt in lo], group=4, extra=x)
        if x is None:
            x = send_a()
    for y in x:
        k(y)
    at_end()


def warm_xch(k, t, dst, store=False):
    k(f'''s_mul_i32 s48, s{sW}, 3072
    s_mul_i32 s49, s2, 36864
    s_add_u32 s48, s48, s49
    s_add_u32 s48, s48, {WS_XCH}''')
    for i in range(2):
        k(f'''v_add_u32 v{t}, {64*i}, v0
        v_min_u32 v{t}, 71, v{t}
        v_mul_u32_u24 v{t+1}, 2731, v{t}
        v_lshrrev_b32 v{t+1}, 16, v{t+1}
        v_mul_u32_u24 v{t+1}, {12288 - 24*128}, v{t+1}
        v_lshl_add_u32 v{t}, v{t}, 7, v{t+1}''')
        k.raw(f'    buffer_load_dword v{dst+i}, v{t}, {WS}, s48 offen')


def load_tag(k, t):
    k(f'v_mov_b32 v{t}, {WS_EPOCH}\nbuffer_load_dword v{vTAG}, v{t}, {WS}, 0 offen sc1')


def finish_tag(k):
    k(f's_mov_b32 s48, 0x9e3779b1\nv_mul_lo_u32 v{vTAG}, v{vTAG}, s48\nv_add_u32 v{vTAG}, 0x7f4a7c15, v{vTAG}\nv_or_b32 v{vTAG}, 0x01010101, v{vTAG}')


def w2_lane(k, t, d):
    k(f'''v_lshrrev_b32 v{t}, 4, v0
    v_and_b32 v{t+1}, 15, v0
    v_lshlrev_b32 v{t}, 12, v{t}
    v_lshl_add_u32 v{t}, v{t+1}, 7, v{t}
    s_lshr_b32 s48, s{sJ}, 1
    s_mul_i32 s48, s48, {1152*4096}
    s_and_b32 s49, s{sJ}, 1
    s_lshl_b32 s49, s49, 11
    s_add_u32 s48, s48, s49
    v_add_u32 v{t}, s48, v{t}
    s_mov_b32 s{d}, 0''')


def pf_loop(k, which, sN, stride, end, t, sd, tmp=50, addr_only=False):
    assert 0 <= end <= 320 and stride > 0
    L, E = k.lab(), k.lab()
    if which == 2:
        w2_lane(k, t, tmp)
    if not addr_only:
        k.label(L)
        k(f's_cmp_ge_u32 s{sN}, {end}\ns_cbranch_scc1 {E}')
    if which == 1:
        nl = OPT['nl']
        mg = {9: 911, 10: 820}[nl]
        k(f'''s_mul_i32 s48, s{sN}, {mg}
        s_lshr_b32 s48, s48, 13
        s_mul_i32 s49, s48, {nl}
        s_sub_u32 s49, s{sN}, s49
        s_lshl_b32 s49, s49, 6
        v_add_u32 v{t}, s49, v0
        s_and_b32 s49, s{sJ}, {OPT['xm']}
        s_mul_i32 s49, s49, {OPT['xst']}
        s_add_u32 s48, s48, s49
        s_add_u32 s48, s48, {OPT['xo']}''')
        if OPT['rot1']:
            assert nl == 10
            k(f'''s_mul_i32 s49, s{sJ}, 1152
            s_lshr_b32 s15, s49, 8
            s_mul_i32 s15, s15, {OPT['rot1']}
            s_add_u32 s15, s15, s48
            s_and_b32 s48, s49, -256''')
        else:
            k(f'''s_and_b32 s48, s48, 31
            s_mul_i32 s48, s48, {8*9216}
            s_mul_i32 s49, s{sJ}, 1152
            s_and_b32 s49, s49, {-256 if nl == 10 else -128}
            s_add_u32 s48, s48, s49''')
        k(f'''v_mul_u32_u24 v{t+1}, {mg}, v{t}
        v_lshrrev_b32 v{t+1}, 13, v{t+1}
        v_mul_u32_u24 v{t+2}, {nl}, v{t+1}
        v_sub_u32 v{t+2}, v{t}, v{t+2}
        v_and_b32 v{t}, 7, v{t+1}
        v_lshrrev_b32 v{t+1}, 3, v{t+1}
        v_lshl_add_u32 v{t}, v{t}, 8, v{t+1}
        v_mul_u32_u24 v{t}, 9216, v{t}
        v_lshl_add_u32 v{t}, v{t+2}, 7, v{t}''')
        if OPT['rot1']:
            k(f'''v_lshrrev_b32 v{t+2}, 1, v{t+2}
            v_mul_u32_u24 v{t+2}, {OPT['rot1']}, v{t+2}
            v_add_u32 v{t+2}, s15, v{t+2}
            v_and_b32 v{t+2}, 31, v{t+2}
            v_mul_u32_u24 v{t+2}, {8*9216}, v{t+2}
            v_add_u32 v{t}, v{t}, v{t+2}''')
    else:
        k(f'''s_add_u32 s48, s{sN}, s{tmp}
        s_cmp_ge_u32 s48, 288
        s_cselect_b32 s49, 288, 0
        s_sub_u32 s48, s48, s49
        s_lshl_b32 s48, s48, 14''')
    if addr_only:
        return
    k.cond += 1
    fl = 'nt' if OPT['pfnt'] & which else ''
    k(f'buffer_load_dword v{t+3}, v{t}, s[{sd}:{sd+3}], s48 offen {fl}')
    k.cond -= 1
    k(f's_add_u32 s{sN}, s{sN}, {stride}\ns_branch {L}')
    k.label(E)


def tag_check4(k, r, t, first):
    k(f'''v_perm_b32 v{t}, v{r+1}, v{r}, s56
    v_perm_b32 v{t+1}, v{r+3}, v{r+2}, s57
    v_or_b32 v{t}, v{t}, v{t+1}''')
    if first:
        k(f'v_cmp_ne_u32 vcc, v{vTAG}, v{t}')
    else:
        k(f'v_cmp_ne_u32 s[48:49], v{vTAG}, v{t}\ns_or_b64 vcc, vcc, s[48:49]')


def check_sent(k, regs, t):
    def f():
        r = list(regs)
        k(f'v_max3_u32 v{t}, v{r[0]}, v{r[1]}, v{r[2]}')
        for x in r[3:]:
            k(f'v_max_u32 v{t}, v{t}, v{x}')
        k(f'v_cmp_eq_u32 vcc, -1, v{t}')
    return f


def stats(k, xf, u):
    k(f'v_pk_add_f32 {P(u)}, {P(xf)}, {P(xf+2)}\nv_pk_mul_f32 {P(u+2)}, {P(xf)}, {P(xf)}')
    for j in range(1, 9):
        if j > 1:
            k(f'v_pk_add_f32 {P(u)}, {P(u)}, {P(xf+2*j)}')
        k(f'v_pk_fma_f32 {P(u+2)}, {P(xf+2*j)}, {P(xf+2*j)}, {P(u+2)}')
    k(f'v_add_f32 v{u}, v{u}, v{u+1}\nv_add_f32 v{u+1}, v{u+2}, v{u+3}')
    red32(k, [u, u + 1], u + 2)
    k(f'''v_mul_f32 v{u}, {f32(-1/576)}, v{u}
    v_mul_f32 v{u+1}, {f32(1/576)}, v{u+1}
    v_fma_f32 v{u+1}, -v{u}, v{u}, v{u+1}
    v_max_f32 v{u+1}, 0, v{u+1}
    v_add_f32 v{u+1}, {f32(1e-5)}, v{u+1}
    v_rsq_f32 v{u+2}, v{u+1}
    v_mul_f32 v{u}, v{u}, v{u+2}''')


def gen_C(k):
    V = Alloc(4, 256)
    bb = V(4, 2); b2 = V()
    base = V.p
    xr = V(9, 1); t = V(12); twi = V(6); la = V(); a576 = V(); F64 = V(32, 4)
    keep = V.p
    mv = V(18, 2); ma = V(8); tw = V(8); xf = V(24, 2); st = V(16, 4); hf = V(12, 4); mf = V(60, 4); acc = V(24, 4)
    if OPT['touch'] == 2:
        tag(k, 'align')
    k(f'''v_lshrrev_b32 v{t}, 5, v0
    v_and_b32 v{t+1}, 31, v0
    v_mul_u32_u24 v{t+2}, {256*1152}, v{t}
    v_lshl_add_u32 v{t+2}, v{t+1}, 2, v{t+2}
    s_mul_i32 s62, s{sW}, {512*1152}
    s_mul_i32 s48, s{sS2}, 1152
    s_add_u32 s62, s62, s48''')
    srd(k, 40, pX, S * D * 2)
    for j in range(9):
        k(f'buffer_load_dword v{xr+j}, v{t+2}, s[40:43], s62 offen offset:{128*j}')
    srd(k, 36, pWS, WS_SIZE)
    load_tag(k, t + 3)
    g1_tile(k)
    g2_tile(k)
    srd(k, 44, pB1, F * 2)
    srd(k, 64, pB2, S * 2)
    k(f'''s_lshl_b32 s48, s51, 8
    s_lshl_b32 s49, s{sW}, 6
    s_add_u32 s48, s48, s49
    v_lshl_add_u32 v{t+4}, v2, 3, s48
    buffer_load_dwordx2 {P(bb)}, v{t+4}, s[44:47], 0 offen
    buffer_load_dwordx2 {P(bb+2)}, v{t+4}, s[44:47], 0 offen offset:32
    s_lshl_b32 s48, s54, 8
    s_add_u32 s48, s48, s49
    s_lshr_b32 s49, s53, 1
    s_lshl_b32 s49, s49, 5
    s_add_u32 s48, s48, s49
    v_lshl_add_u32 v{t+5}, v1, 1, s48
    buffer_load_ushort v{b2}, v{t+5}, s[64:67], 0 offen''')
    if OPT['tlb']:
        k(f'''s_cmp_eq_u32 s{sW}, 1
        s_cselect_b32 s56, s{pW1}, s{pWS}
        s_cselect_b32 s57, s{pW1+1}, s{pWS+1}
        s_cmp_eq_u32 s{sW}, 2
        s_cselect_b32 s56, s{pW2}, s56
        s_cselect_b32 s57, s{pW2+1}, s57
        s_cmp_eq_u32 s{sW}, 3
        s_cselect_b32 s56, s{pOUT}, s56
        s_cselect_b32 s57, s{pOUT+1}, s57
        s_mov_b32 s58, {S*F*2}
        s_cselect_b32 s58, {S*D*2}, s58
        s_cmp_eq_u32 s{sW}, 0
        s_cselect_b32 s58, {WS_SIZE}, s58
        s_mov_b32 s59, 0x20000
        v_lshlrev_b32 v{t+6}, {OPT['tlb']}, v0
        v_add_u32 v{t+6}, {(1<<OPT['tlb'])-128}, v{t+6}
        buffer_load_dword v{tw}, v{t+6}, s[56:59], 0 offen''')
    if OPT['warm']:
        h3_idx(k, 56)
        publish(k, 2, 56, t + 6)
        k(f's_lshl_b32 s56, s52, 6\ns_add_u32 s56, s56, s51')
        publish(k, 3, 56, t + 7, ncue=5, cue_add=27)
        k(f'buffer_load_dword v{ma}, v{t+6}, {WS}, 0 offen\nbuffer_load_dword v{ma+1}, v{t+7}, {WS}, 0 offen')
    if OPT['touch'] == 1:
        tag(k, 'align')
    xw = hf
    k(f'''v_lshlrev_b32 v{la}, 4, v0
    v_mul_u32_u24 v{xw}, {XROW}, v{t}
    v_lshl_add_u32 v{xw}, v{t+1}, 2, v{xw}
    s_mul_i32 s48, s{sW}, {2*XROW}
    s_add_u32 s48, s48, {L_X}
    v_add_u32 v{xw}, s48, v{xw}''')
    m = acc
    k(f'''v_lshrrev_b32 v{m}, 1, v1
    v_and_b32 v{m+1}, 1, v1
    v_and_b32 v{m+2}, 1, v{m}
    v_cvt_f32_u32 v{m}, v{m}
    v_cvt_f32_u32 v{m+1}, v{m+1}
    v_mul_f32 v{m}, {f32(0.125)}, v{m}
    v_mul_f32 v{m+1}, {f32(0.25)}, v{m+1}
    v_mul_u32_u24 v{m+2}, 0x8000, v{m+2}
    v_lshl_or_b32 v{m+2}, v{m+2}, 16, v{m+2}
    s_lshl_b32 s48, s{sW}, 10
    s_add_u32 s48, s48, {L_M}
    v_add_u32 v{m+3}, s48, v{la}
    s_mov_b32 s63, {f32(1/9)}''')
    for i in range(4):
        o = m + 12 + 4 * (i & 1)
        k(f'''s_add_u32 s48, s{sW}, {4*i}
        s_mul_i32 s49, s48, 43
        s_lshr_b32 s49, s49, 7
        s_mul_i32 s50, s49, 3
        s_sub_u32 s50, s48, s50
        s_lshl_b32 s50, s50, 2
        v_add_u32 v{m+4}, s50, v2
        v_cmp_gt_u32 vcc, 9, v{m+4}
        v_mul_u32_u24 v{m+4}, s49, v{m+4}
        v_cvt_f32_u32 v{m+4}, v{m+4}
        v_fma_f32 v{m+4}, v{m+4}, s63, v{m+1}
        v_add_f32 v{m+5}, v{m+4}, v{m}
        v_fma_f32 v{m+6}, v{m}, 2.0, v{m+4}
        v_add_f32 v{m+7}, v{m+6}, v{m}
        v_cos_f32 v{m+4}, v{m+4}
        v_cos_f32 v{m+5}, v{m+5}
        v_cos_f32 v{m+6}, v{m+6}
        v_cos_f32 v{m+7}, v{m+7}
        v_cvt_pk_bf16_f32 v{o}, v{m+4}, v{m+5}
        v_cvt_pk_bf16_f32 v{o+1}, v{m+6}, v{m+7}
        v_cndmask_b32 v{o}, 0, v{o}, vcc
        v_cndmask_b32 v{o+1}, 0, v{o+1}, vcc
        v_xor_b32 v{o+2}, v{m+2}, v{o}
        v_xor_b32 v{o+3}, v{m+2}, v{o+1}
        ds_write_b128 v{m+3}, {Q(o)} offset:{4096*i}''')
    def gen_twi():
        k(f'''v_lshrrev_b32 v{t+4}, 1, v2
        v_cvt_f32_u32 v{t+4}, v{t+4}
        v_add_f32 v{t+5}, 1.0, v{t+4}
        v_mul_f32 v{t+5}, {f32(1/(S*D))}, v{t+5}''')
        for tt in range(3):
            if tt:
                k(f'v_add_f32 v{t+4}, 2.0, v{t+4}')
            sc = f'v{t+5}' if tt == 0 else f32(2 / (S * D))
            k(f'''v_mul_f32 v{t+6}, v{t+4}, v{a576}
            v_cos_f32 v{t+7}, v{t+6}
            v_sin_f32 v{t+8}, v{t+6}
            v_mul_f32 v{twi+2*tt}, {sc}, v{t+7}
            v_mul_f32 v{twi+2*tt+1}, {sc}, v{t+8}''')

    def gen_f64():
        k(f'''s_lshl_b32 s48, s{sW}, 4
        v_add_u32 v{t+6}, s48, v1
        v_cvt_f32_u32 v{t+6}, v{t+6}
        v_mul_f32 v{t+6}, {f32(1/64)}, v{t+6}
        v_cvt_f32_u32 v{t+8}, v2
        v_mul_f32 v{t+8}, 4.0, v{t+8}''')
        for T in range(4):
            if T:
                k(f'v_add_f32 v{t+8}, {f32(16.0)}, v{t+8}')
            k(f'v_mul_f32 v{t+7}, v{t+8}, v{t+6}')
            dft_frag(k, t + 7, t + 6, F64 + 8 * T, F64 + 8 * T + 4, t, False)
        k(f'v_mul_f32 v{a576}, {f32(1/9)}, v{t+6}')
        for lb in range(1, 5):
            k(f'''v_mul_f32 v{t+4}, {f32(float(lb))}, v{a576}
            v_cos_f32 v{tw+2*lb-2}, v{t+4}
            v_sin_f32 v{tw+2*lb-1}, v{t+4}''')
    if OPT['f64'] == 0:
        gen_f64()
    if OPT['a0']:
        L1 = k.lab()
        k(f's_cmp_lt_u32 s2, 202\ns_cbranch_scc1 {L1}')
        vm = list(k.vm)
        if OPT['f64'] == 1:
            gen_f64()
        k.vm = vm
        k('s_barrier')
        k.label(L1)
    ta = st
    k(f'''v_lshrrev_b32 v{t+4}, 5, v0
    v_lshlrev_b32 v{t+4}, 2, v{t+4}
    s_lshl_b32 s48, s{sW}, 3
    s_add_u32 s48, s48, {L_ST}
    v_add_u32 v{t+4}, s48, v{t+4}
    v_bfe_u32 v{t}, v0, 2, 2
    v_mul_u32_u24 v{t}, {XROW}, v{t}
    v_and_b32 v{t+1}, 3, v0
    v_lshl_add_u32 v{t}, v{t+1}, 3, v{t}
    s_lshl_b32 s48, s{sW}, 5
    s_add_u32 s48, s48, {L_X}
    v_add_u32 v{t+1}, s48, v{t}
    v_lshl_add_u32 v{t}, v2, 7, v{t+1}
    v_mov_b32 v{t+2}, {L_ST}
    v_add_u32 v{t+3}, {L_M}, v{la}''')
    for j in range(9):
        k(f'ds_write_b32 v{xw}, v{xr+j} offset:{128*j}')
        k(f'v_lshlrev_b32 v{xf+2*j}, 16, v{xr+j}\nv_and_b32 v{xf+2*j+1}, 0xffff0000, v{xr+j}')
    stats(k, xf, t + 6)
    k(f'ds_write_b32 v{t+4}, v{t+8}\nds_write_b32 v{t+4}, v{t+6} offset:32')
    mark(k, 1)
    if OPT['touch'] == 3:
        tag(k, 'align')
    bar(k, lg=0)
    for i in range(4):
        k(f'ds_read_b128 {Q(st+4*i)}, v{t+2} offset:{16*i}')
    for tt in range(3):
        a = t if tt < 2 else t + 1
        k(f'ds_read_b64_tr_b16 {P(hf+4*tt)}, v{a} offset:{512*tt}')
        k(f'ds_read_b64_tr_b16 {P(hf+4*tt+2)}, v{a} offset:{512*tt+4*XROW}')
    for fi in range(15):
        k(f'ds_read_b128 {Q(mf+4*fi)}, v{t+3} offset:{1024*fi}')
    if OPT['f64'] == 1:
        L1 = k.lab()
        if OPT['a0']:
            k(f's_cmp_ge_u32 s2, 202\ns_cbranch_scc1 {L1}')
        lg, vm = list(k.lg), list(k.vm)
        gen_f64()
        k.lg, k.vm = lg, vm
        k.label(L1)
    for tt in range(3):
        for p in range(4):
            x = xf + 8 * tt + 2 * p
            k(f'''v_lshlrev_b32 v{x}, 16, v{hf+4*tt+p}
            v_and_b32 v{x+1}, 0xffff0000, v{hf+4*tt+p}
            v_pk_fma_f32 {P(x)}, {P(x)}, {P(st+2*p)}, {P(st+8+2*p)}''')
    def gen_m1i(m):
        k(f'''v_and_b32 v{m}, 7, v1
        v_cvt_f32_u32 v{m}, v{m}
        v_mul_f32 v{m}, {f32(0.125)}, v{m}
        v_and_b32 v{m+1}, 1, v2
        v_cvt_f32_u32 v{m+1}, v{m+1}
        v_mul_f32 v{m+1}, 4.0, v{m+1}
        v_mul_f32 v{m+1}, v{m+1}, v{m}
        v_lshrrev_b32 v{m+2}, 3, v1
        v_lshrrev_b32 v{m+3}, 1, v2
        s_lshl_b32 s48, s{sW}, 10
        s_add_u32 s48, s48, {L_MI}
        v_add_u32 v{m+4}, s48, v{la}''')
        for i in range(4):
            o = m + 12 + 4 * (i & 1)
            k(f'''s_add_u32 s48, s{sW}, {4*i}
            s_mul_i32 s49, s48, 43
            s_lshr_b32 s49, s49, 7
            s_mul_i32 s50, s49, 3
            s_sub_u32 s50, s48, s50
            s_lshl_b32 s50, s50, 1
            s_lshl_b32 s49, s49, 1
            v_add_u32 v{m+5}, s49, v{m+2}
            v_add_u32 v{m+6}, s50, v{m+3}
            v_cmp_gt_u32 vcc, 9, v{m+5}
            v_cmp_gt_u32 s[48:49], 5, v{m+6}
            v_mul_u32_u24 v{m+5}, v{m+5}, v{m+6}
            v_cvt_f32_u32 v{m+5}, v{m+5}
            s_and_b64 vcc, vcc, s[48:49]
            v_fma_f32 v{m+5}, v{m+5}, s63, v{m+1}''')
            for j in range(4):
                if j:
                    k(f'v_add_f32 v{m+5}, v{m+5}, v{m}')
                cs_pair(k, m + 5, m + 6 + 2 * (j & 1), m + 7 + 2 * (j & 1), [(o + j, 'c', '-s')])
            for j in range(4):
                k(f'v_cndmask_b32 v{o+j}, 0, v{o+j}, vcc')
            k(f'ds_write_b128 v{m+4}, {Q(o)} offset:{4096*i}')
    if OPT['m1early'] == 1:
        gen_m1i(acc)
    if OPT['m1early'] == 2:
        L1 = k.lab()
        k.wait(lg=0)
        k(f's_cmp_ge_u32 s2, 202\ns_cbranch_scc1 {L1}')
        gen_m1i(acc)
        k.label(L1)
    gen_twi()
    finish_tag(k)
    k(f'''s_lshl_b32 s48, s{sW}, 6
    s_add_u32 s48, s48, {L_E}
    v_mul_u32_u24 v{t}, 576, v2
    v_lshl_add_u32 v{t}, v1, 2, v{t}
    v_add_u32 v{t}, s48, v{t}
    v_mul_u32_u24 v{t+1}, 288, v1
    v_lshl_add_u32 v{t+1}, v2, 4, v{t+1}
    v_add_u32 v{t+1}, {L_E}, v{t+1}
    v_bfe_u32 v{t+9}, v1, 1, 2
    v_xor_b32 v{t+9}, v{t+9}, v2
    v_lshl_add_u32 v{t+9}, v1, 2, v{t+9}
    s_mul_i32 s48, s{sW}, 3072
    s_add_u32 s48, s48, {L_TR}
    v_lshl_add_u32 v{t+9}, v{t+9}, 4, s48
    v_add_u32 v{t+10}, s48, v{la}
    v_lshrrev_b32 v{t+2}, 3, v0
    v_xor_b32 v{t+2}, v{t+2}, v0
    v_and_b32 v{t+2}, 3, v{t+2}
    v_lshlrev_b32 v{t+2}, 4, v{t+2}
    v_lshrrev_b32 v{t+3}, 2, v0
    v_lshl_add_u32 v{t+2}, v{t+3}, 16, v{t+2}
    s_lshl_b32 s48, s{sW}, 14
    s_lshl_b32 s49, s{sS2}, 6
    s_add_u32 s48, s48, s49
    s_add_u32 s48, s48, {WS_T1}
    v_add_u32 v{t+2}, s48, v{t+2}
    v_add_u32 v{t+3}, {1<<20}, v{t+2}
    v_add_u32 v{t+4}, {2<<20}, v{t+2}
    v_cmp_gt_u32 vcc, 32, v0
    v_mov_b32 v{t+5}, {OOB}
    v_cndmask_b32 v{t+4}, v{t+5}, v{t+4}, vcc
    s_lshl_b32 s58, s{sW}, 12
    s_add_u32 s58, s58, {L_MG}
    v_lshl_add_u32 v{ma+3}, v1, 2, s58
    v_lshl_add_u32 v{ma}, v2, 6, v{ma+3}
    v_add_u32 v{ma+3}, 512, v{ma+3}
    v_add_u32 v{ma+1}, 1152, v{ma}
    v_add_u32 v{ma+2}, 2304, v{ma}
    v_add_u32 v{ma+4}, 1152, v{ma+3}
    v_add_u32 v{ma+5}, 2304, v{ma+3}
    v_cmp_gt_u32 vcc, 24, v0
    v_cndmask_b32 v{ma+6}, v{t+5}, v{la}, vcc
    s_mul_i32 s59, s{sJ}, 13824
    s_mul_i32 s48, s{sW}, 3456
    s_add_u32 s59, s59, s48
    s_add_u32 s59, s59, {WS_MODG}
    v_min_u32 v{ma+7}, {31*16}, v{la}
    s_mul_i32 s48, s{sW}, 2560
    s_mul_i32 s60, s{sS2}, 10240
    s_add_u32 s60, s60, s48
    s_add_u32 s60, s60, {WS_T2}
    v_mov_b64 {P(st+12)}, -1
    v_mov_b64 {P(st+14)}, -1
    v_and_b32 v{t+6}, 3, v1
    v_lshlrev_b32 v{t+6}, 3, v{t+6}
    v_bfe_u32 v{t+6}, v{vTAG}, v{t+6}, 8
    s_mov_b32 m0, s58''')
    tag(k, 'touch c1')
    tag(k, 'region c1')
    k.wait(0, 0)
    mark(k, 2)

    def chk():
        for p in range(3):
            for tt in range(3):
                o = 64 * tt if tt < 2 else 0
                k(f'ds_read2_b32 {P(mv+6*p+2*tt)}, v{ma+p+(3 if tt==2 else 0)} offset0:{o} offset1:{o+144}')
        for i in range(0, 18, 2):
            k(f'v_xor_b32 v{mv+i}, v{mv+i}, v{t+6}\nv_xor_b32 v{mv+i+1}, v{mv+i+1}, v{t+6}')
            k(f'v_or3_b32 v{t+8}, v{mv+i}, v{mv+i+1}, v{t+8}' if i else f'v_or_b32 v{t+8}, v{mv}, v{mv+1}')
        k(f'v_and_b32 v{t+8}, 0xff, v{t+8}\nv_cmp_ne_u32 vcc, 0, v{t+8}')

    def clr2():
        for i in range(3):
            k(f'buffer_store_dwordx4 {Q(st+12)}, v{la if i<2 else ma+7}, {WS}, s60 offen offset:{1024*i} sc1')
    if OPT['c2'] == 0:
        clr2()
        k.wait(0)
    if OPT['dly']:
        k(f's_sleep {OPT["dly"]}')
    poll(k, [f'buffer_load_dwordx4 v{la if i<3 else ma+6}, {WS}, s59 offen offset:{1024*i} sc1 lds' for i in range(4)], chk, alt=([59], 0x20000, OPT['nm']))
    mark(k, 3)
    if OPT['c2'] == 1:
        clr2()
    for tt in range(3):
        a = mv + 2 * tt
        k(f'v_pk_add_f32 {P(a)}, {P(a)}, {P(a+6)}')
    for tt in range(3):
        a = mv + 2 * tt
        k(f'v_pk_add_f32 {P(a)}, {P(a)}, {P(a+12)}')
    for tt in range(3):
        a = mv + 2 * tt
        k(f'''v_cvt_pk_bf16_f32 v{a+6}, v{a}, v{a+1}
        v_and_b32 v{a+1}, 0xffff0000, v{a+6}
        v_add_f32 v{a+1}, 1.0, v{a+1}
        v_lshlrev_b32 v{a}, 16, v{a+6}
        v_cvt_pk_bf16_f32 v{a+1}, 0, v{a+1}''')
        for p in range(4):
            x = xf + 8 * tt + 2 * p
            k(f'v_pk_fma_f32 {P(x)}, {P(x)}, {P(a)}, {P(a)} op_sel:[0,1,0] op_sel_hi:[1,1,0]')
        for p in range(4):
            x = xf + 8 * tt + 2 * p
            k(f'v_cvt_pk_bf16_f32 v{hf+4*tt+p}, v{x}, v{x+1}')

    def twid(lb):
        r = []
        for jj in range(2):
            z = acc + 4 * lb + 2 * jj
            o = xf + 4 * (jj + 2 * (lb & 1))
            c = tw + 2 * lb - 2
            if lb == 0:
                r.append(f'v_cvt_pk_bf16_f32 v{o+2}, v{z}, v{z+1}')
            elif OPT['tw1'] & 1:
                r += [f'v_mul_f32 v{o}, v{z}, v{c}', f'v_mul_f32 v{o+1}, v{z+1}, v{c}',
                      f'v_fmac_f32 v{o}, v{z+1}, v{c+1}', f'v_fma_f32 v{o+1}, -v{z}, v{c+1}, v{o+1}',
                      f'v_cvt_pk_bf16_f32 v{o+2}, v{o}, v{o+1}']
            else:
                r += [f'v_pk_mul_f32 {P(o)}, {P(z)}, {P(c)} op_sel_hi:[1,0]',
                      f'v_pk_fma_f32 {P(o)}, {P(z)}, {P(c)}, {P(o)} op_sel:[1,1,0] op_sel_hi:[0,1,1] neg_hi:[1,0,0]',
                      f'v_cvt_pk_bf16_f32 v{o+2}, v{o}, v{o+1}']
            r.append(f'ds_write_b32 v{t}, v{o+2} offset:{(8*lb+jj)*288}')
        return r
    order = [1, 2, 3, 4, 0]
    pend = []
    for x, lb in enumerate(order):
        if x >= 2:
            pend += twid(order[x - 2])
        for tt in range(3):
            a = acc + 4 * lb
            k(f'{MF} {Q(a)}, {Q(mf+4*(3*lb+tt))}, {Q(hf+4*tt)}, ' + ('0' if tt == 0 else Q(a)))
            for _ in range(0 if OPT['tw1'] & 2 else (2 if OPT['tw1'] & 1 else (4 if tt < 2 else 0))):
                if pend:
                    k(pend.pop(0))
    for x in pend + twid(order[3]) + twid(order[4]):
        k(x)
    k.wait(lg=0)
    xmark(k, 'p1', 10)
    k('s_barrier')
    xmark(k, 'p1', 11)
    ef = mf
    for tt in range(3):
        for T in range(4):
            k(f'ds_read_b128 {Q(ef+4*(4*tt+T))}, v{t+1} offset:{16*288*tt+64*T}')
    pend = []
    for tt in range(3):
        for T in range(4):
            for ri in range(2):
                a = acc + 8 * tt + 4 * ri
                k(f'{MF} {Q(a)}, {Q(F64+8*T+4*ri)}, {Q(ef+4*(4*tt+T))}, ' + ('0' if T == 0 else Q(a)))
                if T >= 2 and pend:
                    k(pend.pop(0))
        for x in pend:
            k(x)
        o = hf + 4 * tt
        pend = [f'v_cvt_pk_bf16_f32 v{o+j}, v{acc+8*tt+j}, v{acc+8*tt+4+j}' for j in range(4)]
        st_prev = f'buffer_store_dwordx4 {Q(st+4*(tt-1))}, v{t+1+tt}, {WS}, 0 offen sc1'
        pend.append(f'ds_write_b128 v{t+9}, {Q(o)} offset:{1024*tt}\nds_read_b128 {Q(st+4*tt)}, v{t+10} offset:{1024*tt}')
        if tt:
            pend.append(st_prev)
    for x in pend:
        k(x)
    k(f'buffer_store_dwordx4 {Q(st+8)}, v{t+4}, {WS}, 0 offen sc1')
    if OPT['c2'] == 2:
        clr2()
    mark(k, 4)
    V.p = keep
    za = V(8); zf = V(48, 4); mf = V(60, 4); acc = V(24, 4); ef = V(12, 4); ad = V(8); zl = V(4); xf = V(18, 2)
    yf = zf + 20
    assert za + 8 <= st
    k(f'''v_lshrrev_b32 v{t}, 2, v1
    v_and_b32 v{t}, 2, v{t}
    v_xor_b32 v{t}, v{t}, v2
    v_lshlrev_b32 v{t}, 4, v{t}
    v_lshl_add_u32 v{t}, v1, 8, v{t}
    v_add_u32 v{t}, {L_Z}, v{t}
    v_and_b32 v{t+1}, 7, v1
    v_lshlrev_b32 v{t+1}, 8, v{t+1}
    v_lshl_add_u32 v{t+1}, v2, 4, v{t+1}
    v_add_u32 v{t+1}, {L_Z}, v{t+1}
    v_and_b32 v{t+5}, 3, v1''')
    for T in range(4):
        k(f'''v_xor_b32 v{t+6}, {T}, v{t+5}
        v_lshl_add_u32 v{za+T}, v{t+6}, 6, v{t}
        v_lshl_add_u32 v{za+4+T}, v{t+6}, 6, v{t+1}''')
    k(f'''v_and_b32 v{t}, 7, v1
    v_mul_u32_u24 v{t}, {YROW}, v{t}
    v_lshl_add_u32 v{t}, v2, 4, v{t}
    s_lshl_b32 s48, s{sW}, 6
    s_add_u32 s48, s48, {L_Y}
    v_add_u32 v{t}, s48, v{t}
    v_lshrrev_b32 v{t+1}, 3, v1
    v_lshl_add_u32 v{ad+1}, v{t+1}, 8, v{t}
    v_cmp_gt_u32 vcc, 8, v1
    v_mov_b32 v{t+5}, {L_Y+8*YROW-2048}
    v_cndmask_b32 v{ad}, v{t+5}, v{t}, vcc
    v_lshrrev_b32 v{t+5}, 5, v0
    s_lshl_b32 s48, s{sW}, 1
    v_add_u32 v{t+5}, s48, v{t+5}
    v_and_b32 v{t+6}, 31, v0
    v_mul_u32_u24 v{t}, {YROW}, v{t+5}
    v_lshl_add_u32 v{t}, v{t+6}, 3, v{t}
    v_add_u32 v{ad+2}, {L_Y}, v{t}
    v_mul_u32_u24 v{t}, {XROW}, v{t+5}
    v_lshl_add_u32 v{t}, v{t+6}, 2, v{t}
    v_add_u32 v{ad+3}, {L_H}, v{t}
    v_mul_u32_u24 v{t}, 1152, v{t+5}
    v_lshl_add_u32 v{t}, v{t+6}, 2, v{t}
    v_add_u32 v{ad+7}, {L_Z}, v{t}
    v_lshlrev_b32 v{t}, 3, v{t+6}
    v_add_u32 v{ad+4}, {L_MOD}, v{t}
    v_add_u32 v{a576}, {L_MOD+256}, v{t}
    v_bfe_u32 v{t}, v0, 2, 2
    v_mul_u32_u24 v{t}, {XROW}, v{t}
    v_and_b32 v{t+1}, 3, v0
    v_lshl_add_u32 v{t}, v{t+1}, 3, v{t}
    v_lshl_add_u32 v{t}, v2, 5, v{t}
    s_lshl_b32 s48, s{sW}, 7
    s_add_u32 s48, s48, {L_H}
    v_add_u32 v{ad+5}, s48, v{t}
    v_add_u32 v{ad+6}, {L_MI}, v{la}
    v_min_u32 v{zl}, {31*16}, v{la}
    s_mul_i32 s48, s{sW}, 2560
    s_mul_i32 s66, s{sS2}, 10240
    s_add_u32 s66, s66, s48
    s_add_u32 s66, s66, {WS_T2}
    s_add_u32 s48, s48, {L_Z}
    v_add_u32 v{zl+1}, s48, v{la}
    v_add_u32 v{zl+2}, s48, v{zl}
    s_lshr_b32 s48, s{sJ}, 1
    s_lshl_b32 s48, s48, 12
    s_mul_i32 s49, s{sW}, 640
    s_add_u32 s48, s48, s49
    s_add_u32 s48, s48, {WS_FLAG + 0x8000}
    v_min_u32 v{zl+3}, {39*16}, v{la}
    v_add_u32 v{zl+3}, s48, v{zl+3}''')
    k.wait(0)
    if OPT.get('mk') != 'u':
        mark(k, 1)
    bar(k, 0)
    if OPT['wx'] == 1:
        warm_xch(k, t, ef)
    if not OPT['m1early']:
        gen_m1i(acc)
    if OPT['m1early'] == 2:
        L1 = k.lab()
        k(f's_cmp_lt_u32 s2, 202\ns_cbranch_scc1 {L1}')
        gen_m1i(acc)
        k.label(L1)
    k(f's_lshl_b32 s58, s{sW}, 10')
    k(f'''v_add_u32 v{t}, s58, v{la}
    v_add_u32 v{t+1}, 4096, v{t}
    v_min_u32 v{t+1}, {431*16}, v{t+1}
    v_min_u32 v{t+2}, {143*16}, v{t}
    v_add_u32 v{t+2}, {432*16}, v{t+2}
    s_mov_b32 s56, 0x0c0c0400
    s_mov_b32 s57, 0x04000c0c
    s_mov_b32 s58, {WS_MODB}
    s_mov_b32 s59, {WS_MODB+9216}
    s_mov_b32 s60, {WS_MODB+18432}''')
    mb = zf

    def modb_loads(rounds):
        return [f'buffer_load_dwordx4 {Q(mb+12*x+4*p)}, v{t+rd}, {WS}, s{58+p} offen sc1' for x, rd in enumerate(rounds) for p in range(2)]

    def modb_chk(n):
        def f():
            for x in range(2 * n):
                tag_check4(k, mb + 12 * (x >> 1) + 4 * (x & 1), t + 4, x == 0)
        return f

    def modb_sum(x, one):
        a = mb + 12 * x
        for j in range(8):
            k(f'v_and_b32 v{a+j}, 0xffffff00, v{a+j}')
        for p in (1,):
            k(f'v_pk_add_f32 {P(a)}, {P(a)}, {P(a+4*p)}\nv_pk_add_f32 {P(a+2)}, {P(a+2)}, {P(a+4*p+2)}')
        for j in range(4):
            k(f'v_cvt_pk_bf16_f32 v{a+j}, 0, v{a+j}')
        if one is not None:
            for j in range(4):
                k(f'v_add_f32 v{a+j}, v{a+j}, v{one}')
            for j in range(4):
                k(f'v_cvt_pk_bf16_f32 v{a+j}, 0, v{a+j}')

    def clear_h2():
        c0, n = spec_range(0)
        k(f'v_mov_b64 {P(ef)}, -1\nv_mov_b64 {P(ef+2)}, -1\ns_lshl_b32 s61, s2, 2\ns_add_u32 s61, s61, s{sW}')
        clear_loop(k, 61, 640, 72 * n, lambda: k(f's_lshl_b32 s48, s48, 10\ns_add_u32 s48, s48, {WS_H2 + c0*73728}'), ef, la)
    L1 = k.lab()
    k.wait(lg=0)
    k(f's_cmp_ge_u32 s{sR}, 20\ns_cbranch_scc1 {L1}')
    if OPT['sp1'] and OPT['cl3'] == 0:
        clear_h2()
        k.wait(0)
    k('s_barrier')
    if OPT['sp1'] and OPT['cl3'] == 1:
        clear_h2()
    k.label(L1)
    for l in modb_loads([0, 1]):
        k(l)
    L1 = k.lab()
    k(f's_cmp_ge_u32 s{sR}, 20\ns_cbranch_scc1 {L1}\ns_barrier')
    if OPT['sp1'] and OPT['cl3'] == 1:
        vm = k.vm
        bar(k, 4)
        k.vm = vm
    k.label(L1)
    L2 = k.lab()
    k.wait(0)
    modb_chk(2)()
    k(f's_cbranch_vccz {L2}')
    poll(k, modb_loads([0, 1]), modb_chk(2))
    k.label(L2)
    k(f'v_cmp_le_u32 vcc, {288*16}, v{t+1}\nv_cndmask_b32 v{t+4}, 0, 1.0, vcc')
    modb_sum(0, None)
    modb_sum(1, t + 4)
    k(f'''v_add_u32 v{t+4}, {L_MOD}, v{t}
    v_add_u32 v{t+5}, {L_MOD}, v{t+1}
    ds_write_b128 v{t+4}, {Q(mb)}
    ds_write_b128 v{t+5}, {Q(mb+12)}''')
    L2 = k.lab()
    k(f's_cmp_lg_u32 s2, 255\ns_cbranch_scc1 {L2}')
    k(f's_mov_b32 s50, {WS_MOD+2*2304}')
    k(f'buffer_store_dwordx4 {Q(mb)}, v{t}, {WS}, s50 offen sc1\nbuffer_store_dwordx4 {Q(mb+12)}, v{t+1}, {WS}, s50 offen sc1')
    mb += 24
    poll(k, modb_loads([2]), modb_chk(1))
    modb_sum(0, None)
    k(f'buffer_store_dwordx4 {Q(mb)}, v{t+2}, {WS}, s50 offen sc1')
    k.label(L2)
    for j in range(9):
        k(f'v_lshlrev_b32 v{xf+2*j}, 16, v{xr+j}\nv_and_b32 v{xf+2*j+1}, 0xffff0000, v{xr+j}')
    LN, LJ = k.lab(), k.lab()
    k(f's_cmp_ge_u32 s{sR}, 20\ns_cbranch_scc1 {LN}')
    for fi in range(15):
        k(f'ds_read_b128 {Q(mf+4*fi)}, v{ad+6} offset:{1024*fi}')
    bar(k, lg=0)
    k(f's_branch {LJ}')
    k.label(LN)
    bar(k, lg=0)
    for fi in range(15):
        k(f'ds_read_b128 {Q(mf+4*fi)}, v{ad+6} offset:{1024*fi}')
    if OPT['ec2'] != 2:
        wait_cue(k, 1, t)
    k.wait(lg=0)
    k.label(LJ)
    if OPT['ec2']:
        poll(k, [f'buffer_load_dword v{t}, v{zl+3}, {WS}, 0 offen sc1'], check_tags(k, [t]), masked=True)
    mark(k, 5)
    zi = ef
    poll(k, [f'buffer_load_dwordx4 {Q(zi+4*i)}, v{la if i<2 else zl}, {WS}, s66 offen offset:{1024*i} sc1' for i in range(3)],
         check_sent(k, [zi, zi + 4, zi + 8], t), masked=True, sleep=OPT['sl2'])
    for i in range(3):
        k(f'ds_write_b128 v{zl+1 if i<2 else zl+2}, {Q(zi+4*i)} offset:{1024*i}')
    mark(k, 6)
    bar(k, lg=0)
    xmark(k, 'p3', 1)
    xmark(k, 'q3', 1)
    for tt in range(3):
        for T in range(4):
            k(f'ds_read_b128 {Q(zf+4*(4*tt+T))}, v{za+T+(4 if tt==2 else 0)} offset:{4096*tt}')

    def twid3(tt):
        c = twi + 2 * tt
        if OPT['tw3'] & 1:
            r = []
            for j in range(4):
                re, im, o = acc + 8 * tt + j, acc + 8 * tt + 4 + j, t + 2 * j
                r.append([f'v_mul_f32 v{o}, v{re}, v{c}', f'v_mul_f32 v{o+1}, v{im}, v{c}',
                          f'v_fma_f32 v{o}, -v{im}, v{c+1}, v{o}', f'v_fmac_f32 v{o+1}, v{re}, v{c+1}',
                          f'v_cvt_pk_bf16_f32 v{ef+4*tt+j}, v{o}, v{o+1}'])
            return sum(r, [])
        r = [[], []]
        for p in range(2):
            re, im, o = acc + 8 * tt + 2 * p, acc + 8 * tt + 4 + 2 * p, t + 4 * p
            r[p] = [f'v_pk_mul_f32 {P(o)}, {P(re)}, {P(c)} op_sel_hi:[1,0]',
                    f'v_pk_mul_f32 {P(o+2)}, {P(im)}, {P(c)} op_sel_hi:[1,0]',
                    f'v_pk_fma_f32 {P(o)}, {P(im)}, {P(c)}, {P(o)} op_sel:[0,1,0] neg_lo:[1,0,0] neg_hi:[1,0,0]',
                    f'v_pk_fma_f32 {P(o+2)}, {P(re)}, {P(c)}, {P(o+2)} op_sel:[0,1,0]',
                    f'v_cvt_pk_bf16_f32 v{ef+4*tt+2*p}, v{o}, v{o+2}',
                    f'v_cvt_pk_bf16_f32 v{ef+4*tt+2*p+1}, v{o+1}, v{o+3}']
        return [r[p][2 * q + i] for q in range(3) for p in range(2) for i in range(2)]
    ya = zf
    s2m = [[f'{MF} {Q(acc+8*tt+4*ri)}, {Q(zf+4*(4*tt+T))}, {Q(F64+8*T+4*(1-ri))}, ' + ('0' if T == 0 else Q(acc + 8 * tt + 4 * ri))
            for T in range(4) for ri in range(2)] for tt in range(3)]
    jm = [[f'{MF} {Q(ya+4*mt)}, {Q(ef+4*tt)}, {Q(mf+4*(3*mt+tt))}, ' + ('0' if tt == 0 else Q(ya + 4 * mt))
           for mt in range(5)] for tt in range(3)]

    def weave(mm, vv, skip, per):
        for i, x in enumerate(mm):
            k(x)
            if i >= skip:
                for y in vv[:per]:
                    k(y)
                vv = vv[per:]
        return vv
    if OPT['tw3'] & 2:
        for x in s2m[0] + s2m[1] + s2m[2] + twid3(0) + twid3(1) + jm[0][:1] + twid3(2) + jm[0][1:] + jm[1] + jm[2]:
            k(x)
    else:
        n = len(twid3(0))
        weave(s2m[0], [], 0, 0)
        xmark(k, 'q3', 2)
        rest = weave(s2m[1], twid3(0), 4, 2)
        rest = weave(s2m[2], rest + twid3(1), 0, 2)
        xmark(k, 'q3', 3)
        for x in rest[:max(0, len(rest) - n)]:
            k(x)
        rest = weave(jm[0], rest[max(0, len(rest) - n):] + twid3(2), 0, 2)
        for x in rest[:max(0, len(rest) - n)]:
            k(x)
        rest = weave(jm[1], rest[max(0, len(rest) - n):], 0, 2)
        for x in rest + jm[2]:
            k(x)
        xmark(k, 'q3', 4)
    pos = {0: 0, 2: 2, 1: 4, 3: 6, 4: 8, 6: 10, 5: 12, 7: 14, 8: 16}

    def vec_reads(dst, va, vb, o):
        r = []
        for j in (0, 1, 4, 5):
            e = o // 256 + j
            r.append(f'ds_read2st64_b64 {Q(dst+pos[j])}, v{vb if e & 1 else va} offset0:{e//2} offset1:{e//2+1}')
        return r + [f'ds_read_b64 {P(dst+16)}, v{va} offset:{o+2048}']
    ga, cb, sb = F64, acc, mf
    if not OPT['yw']:
        for x in vec_reads(ga, ad + 4, a576, 0):
            k(x)
    for mt in range(5):
        k(f'ds_write_b128 v{ad+1 if mt<4 else ad}, {Q(ya+4*mt)} offset:{512*mt}')
    rd = vec_reads(cb, ad + 4, a576, 4608) + vec_reads(sb, ad + 4, a576, 2304)
    if OPT['yw']:
        rd = vec_reads(ga, ad + 4, a576, 0) + rd
        for x in rd[:OPT['yw']]:
            k(x)
        k.wait(lg=OPT['yw'])
        xmark(k, 'p3', 2)
        xmark(k, 'q3', 5)
        k('s_barrier')
        xmark(k, 'p3', 3)
        late = rd[OPT['yw']:]
    else:
        for x in rd:
            k(x)
        k.wait(lg=10)
    if not OPT['yw']:
        xmark(k, 'p3', 2)
        xmark(k, 'q3', 5)
        k('s_barrier')
        xmark(k, 'p3', 3)
        late = []
    for j in range(9):
        k(f'ds_read_b64 {P(yf+2*j)}, v{ad+2} offset:{256*j}')
    for x in late:
        k(x)
    k(f'''s_mul_i32 s48, s{sS2}, 9216
    s_lshl_b32 s49, s{sW}, 10
    s_add_u32 s48, s48, s49
    s_add_u32 s48, s48, {WS_H2}
    s_add_u32 s49, s48, 4096
    s_add_u32 s50, s48, 8192''')
    u = t + 6
    for j in range(9):
        k(f'v_pk_fma_f32 {P(xf+2*j)}, {P(yf+2*j)}, {P(ga+pos[j])}, {P(xf+2*j)}')
    stats(k, xf, u)
    for j in range(9):
        k(f'v_pk_fma_f32 {P(yf+2*j)}, {P(xf+2*j)}, {P(u+2)}, {P(u)} op_sel_hi:[1,0,0]')
    for j in range(9):
        k(f'v_pk_fma_f32 {P(yf+2*j)}, {P(yf+2*j)}, {P(cb+pos[j])}, {P(sb+pos[j])}')
    stats(k, yf, u)
    for j in range(9):
        k(f'v_pk_fma_f32 {P(yf+2*j)}, {P(yf+2*j)}, {P(u+2)}, {P(u)} op_sel_hi:[1,0,0]')
        k(f'v_cvt_pk_bf16_f32 v{xr+j}, v{yf+2*j}, v{yf+2*j+1}')
        if j & 1:
            k(f'ds_write2_b32 v{ad+3}, v{xr+j-1}, v{xr+j} offset0:{32*j-32} offset1:{32*j}')
    k(f'ds_write_b32 v{ad+3}, v{xr+8} offset:1024')
    k.wait(lg=0)
    xmark(k, 'p3', 4)
    k('s_barrier')
    xmark(k, 'p3', 5)
    for i in range(3):
        o = acc + 4 * i
        k(f'ds_read_b64_tr_b16 {P(o)}, v{ad+5} offset:{512*i}')
        k(f'ds_read_b64_tr_b16 {P(o+2)}, v{ad+5} offset:{512*i+4*XROW}')
    for i in range(2):
        k(f'buffer_store_dwordx4 {Q(acc+4*i)}, v{la}, {WS}, s{48+i} offen sc1')
    L1 = k.lab()
    k.wait(lg=0)
    k(f's_cmp_lg_u32 s{sW}, 0\ns_cbranch_scc1 {L1}')
    k(f'buffer_store_dwordx4 {Q(acc+8)}, v{la}, {WS}, s50 offen sc1')
    k.label(L1)
    mark(k, 7)
    for j in range(9):
        k(f'v_cvt_pk_bf16_f32 v{xr+j}, v{xf+2*j}, v{xf+2*j+1}')
    for j in range(0, 8, 2):
        k(f'ds_write2_b32 v{ad+7}, v{xr+j}, v{xr+j+1} offset0:{32*j} offset1:{32*j+32}')
    k(f'ds_write_b32 v{ad+7}, v{xr+8} offset:1024')
    bar(k, lg=0)
    V.p = base
    la2 = V(); t = V(8); vA0 = V(); vA40 = V(); vW0 = V(2); vA = V(); vA4 = V(); vW = V(2)
    fa = V(48, 4); fw = V(16, 4); rg = V(96, 4)
    V.p = 204
    acc = V(48, 4)

    def w_read_addr(extra):
        k(f'''v_lshrrev_b32 v{t}, 2, v0
        v_and_b32 v{t+1}, 7, v{t}
        s_lshl_b32 s59, s{sW}, 1
        s_add_u32 s59, s59, {extra}
        v_xor_b32 v{t+1}, s59, v{t+1}
        v_xor_b32 v{t+2}, 1, v{t+1}
        v_and_b32 v{t+3}, 3, v0
        v_lshlrev_b32 v{t+3}, 3, v{t+3}
        v_lshl_add_u32 v{t}, v{t}, 8, v{t+3}
        v_lshl_add_u32 v{vW0}, v{t+1}, 5, v{t}
        v_lshl_add_u32 v{vW0+1}, v{t+2}, 5, v{t}''')
    LN, LJ = k.lab(), k.lab()
    k(f's_cmp_ge_u32 s{sR}, 27\ns_cbranch_scc1 {LN}')
    w_read_addr(0)
    rg1 = [rg + 16 * x for x in range(6)]
    for x in preload_w(vW0, vW, list(enumerate(rg1))):
        k(x)
    if OPT['rf']:
        bar(k, lg=0)
    bar(k, 0, 0)
    nx = len(reg_stages(0)) - 6
    rgx = [188, fa + 24][:nx]
    k(f'''v_mul_u32_u24 v{vA0}, 1536, v2
    v_lshl_add_u32 v{vA0}, v1, 4, v{vA0}
    v_add_u32 v{vA0}, {g1_rings()[0]}, v{vA0}
    v_add_u32 v27, {5*12288}, v{vA0}''')
    for nt in range(2):
        for p in range(2):
            a = acc + 4 * nt + 2 * p
            k(f'v_lshlrev_b32 v{a}, 16, v{bb+2*nt+p}\nv_and_b32 v{a+1}, 0xffff0000, v{bb+2*nt+p}')
    for mt in range(1, 6):
        for i in range(0, 8, 2):
            k(f'v_mov_b64 {P(acc+8*mt+i)}, {P(acc+i)}')
    if nx:
        k('s_barrier')
        for x in preload_w(vW0, vW, list(enumerate(rgx))):
            k(x)
        bar(k, lg=0)
    tag(k, 'touch c2')
    tag(k, 'region c2')
    ebl = OPT['ebl'] and (nx == 2 or OPT['single'])

    def u_addr():
        k(f'''s_lshl_b32 s48, s51, 2
        s_add_u32 s48, s48, s{sW}
        s_mul_i32 s48, s48, {4*9216}
        s_mul_i32 s49, s52, {96*16}
        s_add_u32 s48, s48, s49
        s_add_u32 s48, s48, {WS_U}
        v_mul_u32_u24 v{vA}, 9216, v2
        v_lshl_add_u32 v{vA}, v1, 4, v{vA}
        s_mov_b32 s60, {f32(-2*0.7978845608028654*0.044715*1.4426950408889634)}
        v_mov_b32 v{bb}, {f32(-2*0.7978845608028654*1.4426950408889634)}''')
    last = gemm_c(k, 6, 32, g1_rings()[1], 12288, vA0, None, vW0, vW, fa, fw, acc, rg1 + rgx, reg_stages(0), True,
                  at_end=lambda: ((u_addr() if ebl else None), k('s_barrier')),
                  single=nx == 2 or OPT['single'], slot0=nx, hold=ebl, nsw=g1_rings()[2], vAhi=27)
    for x in last[:OPT['ebl']] if ebl else []:
        k(x)
    last = last[OPT['ebl']:] if ebl else []
    mark(k, 8)
    if not ebl:
        u_addr()

    def gelu(mt):
        q = (rg if ebl else fa) + 8 * (mt & 1)
        o = fw + 4 * (mt & 1)
        a = acc + 8 * mt
        r = [f'v_pk_mul_f32 {P(q+i)}, {P(a+i)}, {P(a+i)}' for i in range(0, 8, 2)]
        r += [f'v_pk_fma_f32 {P(q+i)}, {P(q+i)}, s[60:61], {P(bb)} op_sel_hi:[1,0,0]' for i in range(0, 8, 2)]
        r += [f'v_pk_mul_f32 {P(q+i)}, {P(q+i)}, {P(a+i)}' for i in range(0, 8, 2)]
        r += [f'v_exp_f32 v{q+i}, v{q+i}' for i in range(8)]
        r += [f'v_pk_add_f32 {P(q+i)}, {P(q+i)}, 1.0 op_sel_hi:[1,0]' for i in range(0, 8, 2)]
        r += [f'v_rcp_f32 v{q+i}, v{q+i}' for i in range(8)]
        r += [f'v_pk_mul_f32 {P(q+i)}, {P(q+i)}, {P(a+i)}' for i in range(0, 8, 2)]
        r += [f'v_cvt_pk_bf16_f32 v{o+i}, v{q+2*i}, v{q+2*i+1}' for i in range(4)]
        r.append(f'buffer_store_dwordx4 {Q(o)}, v{vA}, {WS}, s48 offen offset:{256*mt} sc1')
        return r
    for mt in range(6):
        for i, x in enumerate(gelu(mt)):
            k(x)
            if last and i % 3 == 2:
                k(last.pop(0))
    assert not last
    mark(k, 9)
    k(f's_branch {LJ}')
    tag(k, 'region -')
    k.label(LN)
    k.fresh()
    bar(k, 0)
    srd(k, 40, pW1, S * F * 2)
    srd(k, 44, pW2, S * F * 2)
    k(f'''s_mul_i32 s56, s{sW}, 5
    s_add_u32 s56, s56, s{sR}
    s_sub_u32 s56, s56, 27
    s_add_u32 s57, s56, {OPT['pf2'] + 10*OPT['pf3'] + 27*OPT['pf7'] + 20*OPT['pfb']}
    s_add_u32 s56, s56, {OPT['pf9'] + (27*pf_split()[2] if OPT['swp'] else 0)}''')
    pf_loop(k, 1, 57, 20, min(32 * OPT['nl'], OPT['pfw1']), t, 40)
    pf_loop(k, 2, 56, 20, min(OPT['pf5'], pf_split()[1] if OPT['swp'] else pf_split()[0] - 54 * OPT['pfa'] - 27 * OPT['su']), t + 4, 44)
    if OPT['wo']:
        srd(k, 40, pOUT, S * D * 2)
        k(f'''s_mul_i32 s56, s{sW}, 5
        s_add_u32 s56, s56, s{sR}
        s_sub_u32 s56, s56, 27
        s_lshl_b32 s56, s56, 1
        s_mul_i32 s57, s{sJ}, 36
        v_lshlrev_b32 v{t}, 7, v0''')
        for x in range(2):
            k(f'''s_add_u32 s48, s56, {x}
            s_min_u32 s48, s48, 35
            s_add_u32 s48, s48, s57
            s_lshl_b32 s48, s48, 13''')
            k.raw(f'    buffer_load_dword v{t+1}, v{t}, s[40:43], s48 offen {("", "", "nt", "sc1")[OPT["wo"]]}')
    k.wait(0)
    mark(k, 9)
    bar(k, 0)
    tag(k, 'region c2')
    tag(k, 'target')
    k.label(LJ)
    k('s_lshr_b32 s58, s53, 1')
    w_read_addr('s58')
    k('s_barrier')
    xmark(k, 'h4', 1)
    for x in preload_w(vW0, vW, [(g1_rings()[3][x], rg1[x]) for x in range(6)]):
        k(x)
    k.wait(lg=0)
    if OPT['rf2']:
        k('s_barrier')
    xmark(k, 'h4', 2)
    bar(k, 0)
    xmark(k, 'h4', 3)
    vAo, vA4g, vAx, og4 = vA0, vA40, vA, vA4
    accf = lambda mt, nt: (188 + 4 * (2 * mt + nt)) if 2 * mt + nt < 17 else 64
    og = 68
    free = quads(rg1, reg_stages(1), OPT['defer'])[1]
    assert len(free) >= 14
    sq = [free[3 * x:3 * x + 3] for x in range(3)]
    gq = free[9:14]
    x1 = fa
    qf = fa + 16
    oa = bb
    k(f'''s_and_b32 s58, s53, 1
    s_mul_i32 s48, s58, 1280
    s_sub_u32 s49, 1280, s48
    v_mul_u32_u24 v{t}, 2304, v2
    v_add_u32 v{t}, {L_ACT2}, v{t}
    v_lshl_add_u32 v{t+2}, v1, 4, v{t}
    v_add_u32 v{vAo}, s48, v{t+2}
    v_add_u32 v{vAx}, s49, v{t+2}
    s_lshl_b32 s48, s58, 3
    v_xor_b32 v{t+1}, s48, v1
    v_lshl_add_u32 v{vA4g}, v{t+1}, 4, v{t}
    v_add_u32 v{vA4g}, 1024, v{vA4g}
    v_lshlrev_b32 v{la2}, 4, v0''')
    k(f'v_lshlrev_b32 v{b2}, 16, v{b2}\nv_cmp_gt_u32 vcc, 32, v0\nv_cndmask_b32 v{t}, 0, v{b2}, vcc')
    for mt in range(9):
        for nt in range(2):
            a = accf(mt, nt)
            if nt == 0 and mt <= 4:
                for i in range(4):
                    k(f'v_mov_b32 v{a+i}, v{b2 if mt < 4 else t}')
            else:
                k(f'v_mov_b64 {P(a)}, 0\nv_mov_b64 {P(a+2)}, 0')
    srd(k, 44, pOUT, S * D * 2)
    k(f'''s_mul_i32 s48, s{sW}, {16*144}
    s_add_u32 s48, s48, {L_X1}
    v_mul_u32_u24 v{t}, 144, v1
    v_lshl_add_u32 v{t}, v2, 3, v{t}
    v_add_u32 v{t}, s48, v{t}
    v_add_u32 v{oa+3}, s48, v{la2}
    s_lshl_b32 s49, s58, 4
    v_add_u32 v{oa}, s49, v{t}
    s_lshl_b32 s49, s58, 7
    s_sub_u32 s49, 128, s49
    v_add_u32 v{t}, s49, v{t}
    v_cmp_gt_u32 vcc, 32, v0
    v_mov_b32 v{t+1}, {L_GB + 512}
    v_cndmask_b32 v{oa+1}, v{t+1}, v{t}, vcc
    v_lshlrev_b32 v{t}, 4, v2
    v_add_u32 v{t}, {L_GB}, v{t}
    s_lshl_b32 s49, s58, 5
    v_add_u32 v{oa+2}, s49, v{t}
    s_lshl_b32 s49, s58, 8
    s_sub_u32 s49, 256, s49
    v_add_u32 v{og4}, s49, v{t}
    s_lshl_b32 s48, s59, 4
    s_lshl_b32 s49, s54, 7
    s_add_u32 s48, s48, s49
    s_mul_i32 s48, s48, 1152
    s_mul_i32 s49, s55, 288
    s_add_u32 s62, s48, s49
    s_mul_i32 s49, s58, 144
    s_add_u32 s62, s62, s49''')
    for i in range(3):
        k(f'''v_add_u32 v{t}, {64*i}, v0
        v_mul_u32_u24 v{t+1}, 911, v{t}
        v_lshrrev_b32 v{t+1}, 13, v{t+1}
        v_mul_u32_u24 v{t+1}, {1152-144}, v{t+1}
        v_lshl_add_u32 v{og+i}, v{t}, 4, v{t+1}''')
    k(f'''v_cmp_gt_u32 vcc, 16, v0
    v_mov_b32 v{t+1}, {OOB}
    v_cndmask_b32 v{og+2}, v{t+1}, v{og+2}, vcc
    s_mul_i32 s48, s{sW}, {XW}
    s_add_u32 s48, s48, {WS_XCH}
    s_mul_i32 s64, s2, {XB}
    s_add_u32 s64, s64, s48
    v_and_b32 v{t}, 3, v0
    v_cmp_eq_u32 vcc, 0, v{t}
    v_lshlrev_b32 v27, 2, v0
    v_cndmask_b32 v26, v{t+1}, v27, vcc
    s_mul_i32 s49, s{sW}, {2*XW}
    s_add_u32 s49, s49, {L_S}
    v_add_u32 v71, s49, v{la2}''')
    if OPT['xc'] == 3:
        k(f'v_mov_b64 {P(72)}, -1')
    else:
        k(f'v_add_u32 v72, {4*AST2}, v{vAo}\nv_add_u32 v75, {4*AST2}, v{vA4g}\nv_add_u32 v74, {4*AST2}, v{vAx}')
    for x in range(1, 4):
        k(f'''s_xor_b32 s{64+x}, s2, {2*x}
        s_mul_i32 s{64+x}, s{64+x}, {XB}
        s_add_u32 s{64+x}, s{64+x}, s48
        s_add_u32 s{64+x}, s{64+x}, {XM*(x-1)}''')
    cue = OPT['xcue']
    assert not cue
    if cue:
        k(f'''v_cmp_gt_u32 vcc, 8, v0
        v_cndmask_b32 v27, v{t+1}, v{la2}, vcc
        s_lshl_b32 s48, s{sW}, 7
        s_add_u32 s48, s48, {WS_XCUE}
        s_mul_i32 s61, s2, 1536
        s_add_u32 s61, s61, s48''')
        for x, r in ((1, 56), (2, 57), (3, 60)):
            k(f'''s_xor_b32 s{r}, s2, {2*x}
            s_mul_i32 s{r}, s{r}, 1536
            s_add_u32 s{r}, s{r}, s48
            s_add_u32 s{r}, s{r}, {512*(x-1)}''')
    mbox = [f'buffer_load_dwordx4 {Q(sq[0][c])}, v{la2}, {WS}, s64 offen offset:{1024*c} sc1' for c in range(2)] + \
           [f'buffer_load_dword v{sq[0][2]}, v27, {WS}, s64 offen offset:2048 sc1']
    sel = fw

    def g2_end():
        xmark(k, 'x', 2)
        k('s_barrier')
        xmark(k, 'x', 3)
        for mt in range(4):
            k(f'ds_read_b64 {P(x1+2*mt)}, v{oa} offset:{32*mt}\nds_read_b128 {Q(gq[mt])}, v{oa+2} offset:{64*mt}')
        k(f'ds_read_b64 {P(x1+8)}, v{oa+1}\nds_read_b128 {Q(gq[4])}, v{og4}')

    def message(x, nt, rows, r8):
        b, r = sq[x - 1], list(r8)
        r += [f'v_mov_b32_dpp v{b[2]+j}, v{b[2]} quad_perm:[{j},{j},{j},{j}] row_mask:0xf bank_mask:0xf' for j in (1, 2, 3)]
        for c in range(2):
            for i in range(4):
                a = accf(rows[2 * c + (i >> 1)], nt) + 2 * (i & 1)
                r.append(f'v_cvt_pk_bf16_f32 v{b[c]+i}, v{a}, v{a+1}')
            r.append(f'buffer_store_dwordx4 {Q(b[c])}, v{la2}, {WS}, s{64+x} offen offset:{1024*c} sc1')
        r.append(f'buffer_store_dwordx4 {Q(b[2])}, v26, {WS}, s{64+x} offen offset:2048 sc1')
        if cue:
            r.append(f'buffer_store_dwordx4 {Q(t+4)}, v27, {WS}, s{(56, 57, 60)[x-1]} offen sc1')
        return r

    def split4(nt, own, other):
        a = accf(4, nt)
        return [f'v_cvt_pk_bf16_f32 v{own}, v{a}, v{a+1}', f'v_cvt_pk_bf16_f32 v{other}, v{a+2}, v{a+3}',
                f'v_permlane32_swap_b32 v{own}, v{other}']

    def send_bc():
        if OPT.get('mk') != 'p1':
            mark(k, 10)
        if cue:
            for i in range(4):
                k(f'v_mov_b32 v{t+4+i}, v{vTAG}')
        s4 = split4(1, sq[1][2], sq[2][2])
        return message(3, 1, [5, 6, 7, 8], s4) + message(2, 1, [0, 1, 2, 3], [])

    def selectors():
        z, u = sel, t
        return [f'v_lshrrev_b32 v{u}, 2, v1', f'v_and_b32 v{u+1}, 1, v1', f'v_lshlrev_b32 v{u+1}, 4, v{u+1}',
                f'v_mov_b32 v{u+2}, 0x3f80', f'v_lshlrev_b32 v{u+1}, v{u+1}, v{u+2}',
                f'v_and_b32 v{u+2}, 2, v1', f'v_add_u32 v{u+3}, v{u}, v{u+2}',
                f'v_cmp_eq_u32 vcc, v{u}, v2', f'v_cndmask_b32 v{z+4}, 0, v{u+1}, vcc',
                f'v_cmp_eq_u32 vcc, v{u+3}, v2', f'v_cndmask_b32 v{z}, 0, v{u+1}, vcc',
                f'v_cmp_gt_u32 vcc, 8, v1', f'v_cndmask_b32 v{z}, 0, v{z}, vcc',
                f'v_cmp_eq_u32 vcc, 0, v{u+2}', f'v_cndmask_b32 v{z+5}, v{z+4}, 0, vcc', f'v_cndmask_b32 v{z+4}, 0, v{z+4}, vcc',
                f'v_mov_b32 v{z+1}, v{z}', f'v_mov_b64 {P(z+2)}, 0', f'v_mov_b64 {P(z+6)}, 0']
    send_a = lambda: (xmark(k, 'x', 1), message(1, 0, [5, 6, 7, 8], split4(0, t + 3, sq[0][2])) + selectors())[1]
    tag(k, 'touch c3')
    tag(k, 'region c3')
    fill, drain = {}, None
    if OPT['xc'] == 3:
        c0, cn = OPT['xclr']
        k(f'''v_mov_b64 {P(74)}, -1
        s_mul_i32 s63, s2, {XB}
        s_lshl_b32 s48, s{sW}, 10
        s_add_u32 s63, s63, s48
        s_add_u32 s63, s63, {WS_XCH}
        s_cmp_eq_u32 s{sW}, 3
        s_cselect_b32 s56, {5*4096}, {6*4096}'''.replace('s_cselect_b32 s56, 20480, 24576', 's_cselect_b32 s56, 4096, 0\ns_sub_u32 s56, 24576, s56'))
        for x in range(7):
            q = 2 * c0 + x * 2 * cn // 7
            so = f's_add_u32 s57, s63, {4096*x}' if x < 6 else 's_add_u32 s57, s63, s56'
            fill.setdefault(q, []).extend([so, f'buffer_store_dwordx4 {Q(72)}, v{la2}, {WS}, s57 offen sc1'])
        drain = 2 * OPT['xrdy'][0]
    gemm2_c(k, vAo, vAx, vA4g, vW0, vW, fa, fw, accf, rg1, reg_stages(1), OPT['defer'], send_bc, send_a, g2_end, fill, drain, (72, 75, 74))

    def add_message(q0, th):
        for i in range(4):
            a = accf(i, 0)
            k(f'{MF} {Q(a)}, {Q(sel + (4 if i % 2 == 0 else 2))}, {Q(q0[i >> 1])}, {Q(a)}')
        if th is not None:
            a = accf(4, 0)
            k(f'{MF} {Q(a)}, {Q(sel)}, {Q(th)}, {Q(a)}')
    k(f's_mul_i32 s49, s{sW}, {2*XW}\ns_add_u32 s49, s49, {L_S}\nv_add_u32 v73, s49, v27')
    for i in range(10):
        k(f'v_lshlrev_b32 v{qf+2*i}, 16, v{x1+i}\nv_and_b32 v{qf+2*i+1}, 0xffff0000, v{x1+i}')
    xmark(k, 'x', 4)
    k.wait(0)
    if OPT.get('mk') != 'p1':
        mark(k, 11)
    if cue == 1:
        k(f'v_mov_b32 v{t}, 0')
        poll(k, [f'buffer_load_dword v{t+1}, v{t}, {WS}, s61 offen sc1'], check_tags(k, [t + 1]), sleep=OPT['xsl'])
    k(f'v_mov_b32 v{sq[0][2]+1}, 0\nv_mov_b64 {P(sq[0][2]+2)}, 0\nv_mov_b64 {P(sq[1][2]+2)}, 0')
    for l in mbox:
        k(l)
    k('s_barrier')
    xmark(k, 'x', 5)
    for x in range(2):
        for c in range(2):
            k(f'ds_read_b128 {Q(sq[x+1][c])}, v71 offset:{XW*x+1024*c}')
    k(f'ds_read_b32 v{sq[1][2]}, v73 offset:2048\nds_read_b32 v{sq[1][2]+1}, v73 offset:{XW+2048}')
    add_message(sq[1], None)
    add_message(sq[2], sq[1][2])
    k.wait(0)
    L1 = k.lab()
    sent = check_sent(k, sq[0], t)
    sent()
    k(f's_cbranch_vccz {L1}')
    poll(k, mbox, sent, masked=True)
    k.label(L1)
    xmark(k, 'x', 6)
    add_message(sq[0], sq[0][2])
    for mt in (0, 1, 2, 3, 4):
        q, a = qf + 4 * mt, accf(mt, 0)
        for p in range(2):
            k(f'v_pk_fma_f32 {P(q+2*p)}, {P(a+2*p)}, {P(gq[mt]+2*p)}, {P(q+2*p)}')
        for p in range(2):
            k(f'v_cvt_pk_bf16_f32 v{x1+2*mt+p}, v{q+2*p}, v{q+2*p+1}')
        k(f'ds_write_b64 v{oa}, {P(x1+2*mt)} offset:{32*mt}' if mt < 4 else f'ds_write_b64 v{oa+1}, {P(x1+8)}')
    xmark(k, 'x', 7)
    if OPT.get('outlin'):
        k(f's_mul_i32 s62, s2, 9216\ns_mul_i32 s48, s{sW}, 2304\ns_add_u32 s62, s62, s48')
        k(f'v_mov_b32 v{og}, v{la2}\nv_add_u32 v{og+1}, 1024, v{la2}\nv_add_u32 v{t}, 2048, v{la2}\nv_cmp_gt_u32 vcc, 16, v0\nv_mov_b32 v{t+1}, {OOB}\nv_cndmask_b32 v{og+2}, v{t+1}, v{t}, vcc')
    for i in range(3):
        k(f'ds_read_b128 {Q(gq[i])}, v{oa+3} offset:{1024*i}')
    for i in range(3):
        k(f'buffer_store_dwordx4 {Q(gq[i])}, v{og+i}, s[44:47], s62 offen {OPT["outflag"]}')
    k('s_branch L_end')


def gen_H(k):
    V = Alloc(4, 256)
    t = V(12); la = V(); fl = V(3, 1); wa = V(3, 1); sa_ = V(3, 1); c0 = V(2); mo = V(4); ones = V(4, 4)
    ld = V(16, 4); Fa = V(8, 4); Fai = V(8, 4); Fb = V(32, 4); Fbi = V(32, 4)
    wv = V(32, 4); acc = V(32, 4); pk = V(16, 4); a0 = V(); a1 = V(); a2 = V(); a3 = V(); a4 = V(); a5 = V(); g4 = V(); lf = V(); dum = V(4); wp = V(16, 4)
    g = acc
    k(f'v_lshlrev_b32 v{la}, 4, v0\nv_mov_b32 v{mo+2}, {OOB}\nv_mov_b32 v{t+8}, {OOB}\nv_mov_b32 v{fl+1}, {OOB}')
    k(f'''s_sub_u32 s63, 255, s2
    s_mul_i32 s62, s63, 171
    s_lshr_b32 s62, s62, 9
    s_mul_i32 s48, s62, 3
    s_sub_u32 s61, s63, s48''')

    def skip_unless(reg, val, op='lg'):
        L = k.lab()
        k(f's_cmp_{op}_u32 s{reg}, {val}\ns_cbranch_scc1 {L}')
        k.cond += 1
        return L

    def endif(L):
        k.cond -= 1
        k.label(L)

    def mod_addr(urgent, part=3):
        if part & 1:
            k(f'''v_lshrrev_b32 v{t}, 3, v0
        v_and_b32 v{t+1}, 7, v0
        v_and_b32 v{t+2}, 6, v{t}
        v_xor_b32 v{t+1}, v{t+1}, v{t+2}
        v_mul_u32_u24 v{t}, 6912, v{t}
        v_lshl_add_u32 v{t+8}, v{t+1}, 4, v{t}
        s_lshl_b32 s48, s61, 2
        s_add_u32 s48, s48, s{sW}
        s_mul_i32 s48, s48, {(48 if urgent else 72)*6912}
        s_lshl_b32 s49, s62, 7
        s_add_u32 s47, s48, s49
        s_lshl_b32 s50, s{sW}, 8
        v_lshl_add_u32 v{c0+1}, v0, 2, s50
        s_mul_i32 s49, s61, {384 if urgent else 576}
        v_add_u32 v{t+5}, s49, v{c0+1}
        v_add_u32 v{t+8}, s47, v{t+8}''')
        if not part & 2:
            return
        k(f'''v_lshrrev_b32 v{t}, 2, v0
        v_bfe_u32 v{t+1}, v{t}, 1, 2
        v_xor_b32 v{t+1}, s{sW}, v{t+1}
        v_lshlrev_b32 v{t+1}, 5, v{t+1}
        v_lshlrev_b32 v{t}, 7, v{t}
        v_and_b32 v{t+2}, 3, v0
        v_lshlrev_b32 v{t+2}, 3, v{t+2}
        v_add3_u32 v{mo}, v{t}, v{t+1}, v{t+2}
        v_lshlrev_b32 v{mo+1}, 3, v2
        v_add_u32 v{mo+1}, {L_SILU}, v{mo+1}''')
        if urgent:
            k(f'''s_mul_i32 s48, s{sW}, 3456
            s_mul_i32 s49, s61, 1152
            s_add_u32 s48, s48, s49
            s_lshl_b32 s49, s62, 6
            s_add_u32 s48, s48, s49
            s_add_u32 s48, s48, {WS_MODG}
            v_mul_u32_u24 v{t}, 13824, v2
            v_lshl_add_u32 v{t}, v1, 2, v{t}
            v_add_u32 v{mo+2}, s48, v{t}
            v_add_u32 v{mo+3}, {4*13824}, v{mo+2}''')
        else:
            k(f'''s_mul_i32 s49, s61, 9216
            s_lshl_b32 s50, s62, 8
            s_add_u32 s49, s49, s50
            s_lshl_b32 s50, s{sW}, 6
            s_add_u32 s49, s49, s50
            s_add_u32 s49, s49, {WS_MODB - 18*256}
            v_lshl_add_u32 v{t}, v1, 2, s49
            v_cmp_gt_u32 vcc, 16, v0
            v_mov_b32 v{t+1}, {OOB}
            v_cndmask_b32 v{mo+2}, v{t+1}, v{t}, vcc''')

    def mod_loads(n, i0, i1):
        if i0 == 0:
            k(f's_mul_i32 m0, s{sW}, {1024*n}\ns_mov_b32 s59, 0')
        for i in range(i0, i1):
            k(f'buffer_load_dwordx4 v{t+8}, s[40:43], s59 offen lds')
            if i < n - 1:
                k(f's_add_u32 m0, m0, 1024\ns_add_u32 s59, s59, {8*6912}')

    def c_load():
        srd(k, 44, pC, D * 2)
        k(f'buffer_load_dword v{c0}, v{t+5}, s[44:47], 0 offen')

    def mod_silu():
        k(f'''v_lshlrev_b32 v{t}, 16, v{c0}
        v_and_b32 v{t+1}, 0xffff0000, v{c0}
        v_mul_f32 v{t+2}, {f32(-1.4426950408889634)}, v{t}
        v_mul_f32 v{t+3}, {f32(-1.4426950408889634)}, v{t+1}
        v_exp_f32 v{t+2}, v{t+2}
        v_exp_f32 v{t+3}, v{t+3}
        v_add_f32 v{t+2}, 1.0, v{t+2}
        v_add_f32 v{t+3}, 1.0, v{t+3}
        v_rcp_f32 v{t+2}, v{t+2}
        v_rcp_f32 v{t+3}, v{t+3}
        v_mul_f32 v{t}, v{t}, v{t+2}
        v_mul_f32 v{t+1}, v{t+1}, v{t+3}
        v_cvt_pk_bf16_f32 v{c0}, v{t}, v{t+1}
        v_add_u32 v{c0+1}, {L_SILU}, v{c0+1}
        ds_write_b32 v{c0+1}, v{c0}''')

    def mod_compute(urgent):
        c = k.cond
        k.cond = 0
        k.lg = []
        n = 6 if urgent else 9
        g = wv
        for stp in range(n):
            a = g + stp * 8
            k(f'''ds_read_b64_tr_b16 {P(a)}, v{mo} offset:{stp*4096}
            ds_read_b64_tr_b16 {P(a+2)}, v{mo} offset:{stp*4096+2048}
            ds_read2_b64 {Q(a+4)}, v{mo+1} offset0:{stp*8} offset1:{stp*8+4}''')
        k(f'v_and_b32 v{t}, 3, v1\nv_or_b32 v{t}, 0x07060500, v{t}')
        for stp in range(n):
            a = g + stp * 8
            k(f'{MF} {Q(ld)}, {Q(a+4)}, {Q(a)}, ' + ('0' if stp == 0 else Q(ld)))
        k(f'v_add_u32 v{ld+4}, 0x80, v{ld}\nv_perm_b32 v{ld+4}, v{ld+4}, v{vTAG}, v{t}')
        k.cond = c
        if urgent:
            k.wait(OPT['warm'])
        for a in range(OPT['nm'] if urgent else 1):
            k(f's_mov_b32 s48, {a*0x20000}')
            for i in range(2 if urgent else 1):
                k(f'buffer_store_dword v{ld+4}, v{mo+2+i}, {WS}, s48 offen sc1')

    def wp_addr():
        k(f'''s_lshl_b32 s67, s{sJ}, 4
        s_add_u32 s67, s67, s{sR}
        s_and_b32 s67, s67, 127
        s_lshl_b32 s48, s{sW}, 9
        s_add_u32 s48, s48, s67
        s_mul_i32 s69, s{sW}, 6144
        s_add_u32 s69, s69, {L_WST}
        s_cmp_eq_u32 s67, 0
        s_cselect_b32 s68, 38, 0
        s_add_u32 s68, s68, 152
        v_mov_b32 v{t+4}, {OOB}''')
        for i in range(3):
            k(f'''v_add_u32 v{t}, {64*i}, v0
            v_mul_u32_u24 v{t+1}, 1725, v{t}
            v_lshrrev_b32 v{t+1}, 16, v{t+1}
            v_mul_u32_u24 v{t+2}, 38, v{t+1}
            v_sub_u32 v{t+2}, v{t}, v{t+2}
            v_cmp_gt_u32 vcc, s68, v{t}
            v_lshl_add_u32 v{t+1}, v{t+1}, 7, s48
            v_and_b32 v{t+1}, 2047, v{t+1}
            v_mul_u32_u24 v{t+1}, 578, v{t+1}
            v_and_b32 v{t+1}, 0xfffffff0, v{t+1}
            v_lshl_add_u32 v{t+1}, v{t+2}, 4, v{t+1}
            v_cndmask_b32 v{wa+i}, v{t+4}, v{t+1}, vcc''')

    def wp_gather():
        k(f'''s_lshl_b32 s48, s67, 1
        s_and_b32 s48, s48, 15
        s_add_u32 s48, s48, s69
        v_and_b32 v{t}, 1, v2
        v_lshrrev_b32 v{t+1}, 1, v2
        v_mul_u32_u24 v{t+2}, 144, v{t}
        v_mad_u32_u24 v{t+2}, v1, 9, v{t+2}
        v_add_lshl_u32 v{t+2}, v{t+2}, v{t+1}, 1
        v_add_u32 v{wa}, s48, v{t+2}
        s_cmp_eq_u32 s67, 0
        s_cselect_b32 s49, 608, 0
        s_add_u32 s48, s48, s49
        s_add_u32 s48, s48, {576-8}
        v_sub_u32 v{wa+1}, s48, v{t+2}
        v_lshl_add_u32 v{t}, v{t+1}, 5, v{t}
        v_lshlrev_b32 v{t}, 14, v{t}
        v_lshl_add_u32 v{sa_}, v1, 4, v{t}
        v_add_u32 v{sa_+1}, {64<<14}, v{sa_}
        v_add_u32 v{sa_+2}, {128<<14}, v{sa_}
        v_cmp_gt_u32 vcc, 32, v0
        v_mov_b32 v{t+4}, {OOB}
        v_cndmask_b32 v{sa_+2}, v{t+4}, v{sa_+2}, vcc
        s_lshl_b32 s48, s67, 2
        s_add_u32 s48, s48, s{sW}
        s_lshl_b32 s48, s48, 4
        s_add_u32 s48, s48, {WS_FLAG}
        v_writelane_b32 v{fl+1}, s48, 0''')
        if OPT['warm']:
            k(f'buffer_load_dword v{dum+2}, v{fl+1}, {WS}, 0 offen')
        for refl in range(2):
            if refl == 0:
                k(f's_mov_b32 s48, s67\ns_mov_b32 s49, s{sW}')
            else:
                k(f's_sub_u32 s48, 128, s67\ns_and_b32 s48, s48, 127\ns_sub_u32 s49, 3, s{sW}')
            k(f'''s_and_b32 s50, s48, 7
            s_lshr_b32 s48, s48, 3
            s_lshl_b32 s58, s50, 16
            s_lshl_b32 s59, s48, 10
            s_add_u32 s58, s58, s59
            s_lshl_b32 s59, s49, 8
            s_add_u32 s58, s58, s59
            s_add_u32 s{56+refl}, s58, {WS_WP + refl*(2<<14)}''')

    def wp_run():
        c = k.cond
        k.cond = 0
        k.lg = []
        g = wv
        for refl in range(2):
            for i in range(3):
                r = g + 24 * refl + 8 * i
                for j in range(4):
                    o = 608 * j + 4 * i if refl == 0 else 608 * (3 - j) + 8 - 4 * i
                    k(f'ds_read_u16 v{r+j}, v{wa+refl} offset:{o}\nds_read_u16 v{r+4+j}, v{wa+refl} offset:{3072+o}')
        k.cond = c
        for refl in range(2):
            for i in range(3):
                r = g + 24 * refl + 8 * i
                for j in range(4):
                    k(f'v_lshl_or_b32 v{r+j}, v{r+4+j}, 16, v{r+j}')
                for j in range(4 * refl):
                    k(f'v_xor_b32 v{r+j}, 0x80000000, v{r+j}')
                k(f'buffer_store_dwordx4 {Q(r)}, v{sa_+i}, {WS}, s{56+refl} offen sc1')

    def wp_loads(arrs=(0, 1)):
        if 0 in arrs:
            srd(k, 52, pWR, S * 578)
            srd(k, 56, pWI, S * 578)
        for arr in arrs:
            for i in range(3):
                k(f's_add_u32 m0, s69, {3072*arr+1024*i}')
                k(f'buffer_load_dwordx4 v{wa+i}, s[{52+4*arr}:{55+4*arr}], 0 offen lds')

    def flag_addr():
        k(f'''s_lshr_b32 s51, s{sR}, 2
        s_lshl_b32 s51, s51, 3
        s_add_u32 s51, s51, s{sJ}
        s_and_b32 s60, s{sR}, 3
        s_lshl_b32 s35, s51, 2
        s_add_u32 s35, s35, s60
        s_lshl_b32 s35, s35, 14
        s_bfe_u32 s48, s{sS2}, 0x20002
        s_lshl_b32 s48, s48, 6
        s_lshr_b32 s49, s{sS2}, 4
        s_lshl_b32 s49, s49, 2
        s_add_u32 s48, s48, s49
        s_and_b32 s49, s{sS2}, 3
        s_add_u32 s48, s48, s49
        s_lshl_b32 s48, s48, {OPT['fs']}
        s_lshl_b32 s49, s{sW}, 16
        s_add_u32 s48, s48, s49
        s_add_u32 s48, s48, {WS_FL2}
        v_mov_b32 v{fl}, {OOB}''')
        for a in range(OPT['na']):
            k(f'v_writelane_b32 v{fl}, s48, {a}\ns_add_u32 s48, s48, 16384')
        k(f'''s_add_u32 s48, s2, 160
        s_lshl_b32 s48, s48, 7
        s_add_u32 s48, s48, {WS_CUE+0x8000}
        s_lshl_b32 s49, s{sW}, 8
        s_add_u32 s49, s49, s{sR}
        s_cmp_lt_u32 s49, 12
        s_cselect_b32 s48, s48, {OOB}
        v_mov_b32 v{fl+2}, {OOB}
        v_writelane_b32 v{fl+2}, s48, 0
        s_or_b32 s48, s2, s{sW}
        s_cmp_eq_u32 s48, 0
        s_cselect_b32 s48, 0, {OOB}
        s_add_u32 s48, s48, {WS_EPOCH}
        v_writelane_b32 v{fl+2}, s48, 1''')
        if OPT['ec2']:
            k(f'''s_lshr_b32 s48, s35, 10
            s_lshl_b32 s49, s{sW}, 12
            s_add_u32 s48, s48, s49
            s_add_u32 s48, s48, {WS_FLAG + 0x8000}
            s_cmp_lt_u32 s{sR}, 20
            s_cselect_b32 s48, s48, {OOB}
            v_writelane_b32 v{fl+2}, s48, 2''')

    def warm(regs):
        if OPT['warm']:
            for i, r in enumerate(regs):
                k(f'buffer_load_dword v{dum+i}, v{r}, {WS}, 0 offen')

    def clear1():
        k(f's_lshl_b32 s48, s{sW}, 12\ns_add_u32 s48, s48, s35\ns_add_u32 s48, s48, {WS_T1}')
        for i in range(4):
            k(f'buffer_store_dwordx4 {Q(ones)}, v{la}, {WS}, s48 offen offset:{1024*i} sc1')

    def clear2():
        k(f'''v_min_u32 v{t+1}, {31*16}, v{la}
        s_mul_i32 s48, s{sW}, 2560
        s_mul_i32 s49, s{sS2}, 10240
        s_add_u32 s48, s48, s49
        s_add_u32 s48, s48, {WS_T2}''')
        for i in range(3):
            k(f'buffer_store_dwordx4 {Q(ones)}, v{la if i<2 else t+1}, {WS}, s48 offen offset:{1024*i} sc1')
    LGEN, LNP, LP2, LG, LQ = k.lab(), k.lab(), k.lab(), k.lab(), k.lab()
    L_A, L_B = L_WST, L_WST + 16 * 1040
    k(f's_cmp_ge_u32 s63, 54\ns_cbranch_scc1 {LGEN}')
    if OPT['up'] & 1:
        k('s_setprio 2')
    mod_addr(True, 1)
    k.wait(lg=0)
    srd(k, 40, pWM, D * 3456 * 2)
    mod_loads(6, 0, 6)
    c_load()
    srd(k, 36, pWS, WS_SIZE)
    load_tag(k, t + 3)
    mark(k, 11)
    if OPT['up'] == 3:
        k('s_setprio 0')
    mod_addr(True, 2)
    if OPT['prew']:
        k(f'v_mov_b32 v{t+1}, 0')
        for a in range(OPT['nm']):
            k(f's_mov_b32 s48, {a*0x20000}')
            for i in range(2):
                k(f'buffer_store_dword v{t+1}, v{mo+2+i}, {WS}, s48 offen sc1')
    flag_addr()
    warm([fl])
    k.wait(2 * OPT['nm'] * OPT['prew'] + OPT['warm'])
    mark(k, 10)
    if OPT['up'] & 2:
        k('s_setprio 2')
    mod_silu()
    finish_tag(k)
    mark(k, 1)
    bar(k, lg=0)
    mod_compute(True)
    mark(k, 2)
    xmark(k, 'u', 4)
    if OPT['a0']:
        k('s_barrier')
    k(f's_setprio 0\ns_mov_b32 s63, 999\ns_branch {LQ}')
    k.raw('; @cut')
    k.label(LGEN)
    k.fresh()
    k(f'''s_sub_u32 s61, s63, 54
    s_lshr_b32 s62, s61, 1
    s_add_u32 s62, s62, 18
    s_and_b32 s61, s61, 1''')

    def mats1():
        k(f'''v_cvt_f32_u32 v{g4}, v2
        v_mul_f32 v{g4}, 4.0, v{g4}
        v_cvt_f32_u32 v{lf}, v1
        v_cvt_f32_u32 v{t+9}, s{sJ}
        v_mul_f32 v{t+6}, {f32(1/16)}, v{lf}
        v_fmac_f32 v{t+6}, {f32(1/128)}, v{t+9}
        v_mul_f32 v{t+7}, v{g4}, v{t+6}''')
        dft_frag(k, t + 7, t + 6, Fa, Fa + 4, t, False)
        k(f'''s_lshl_b32 s48, s{sW}, 5
        s_add_u32 s48, s48, s{sJ}
        v_cvt_f32_u32 v{t+10}, s48
        v_mul_f32 v{t+10}, {f32(1/2048)}, v{t+10}
        v_mul_f32 v{t+6}, {f32(1/16)}, v{lf}
        v_add_f32 v{t+6}, v{t+6}, v{t+10}''')
        for tt in range(4):
            if tt:
                k(f'v_add_f32 v{t+6}, {f32(8/2048)}, v{t+6}')
            k(f'v_mul_f32 v{t+7}, v{g4}, v{t+6}')
            dft_frag(k, t + 7, t + 6, Fb + 8 * tt, Fb + 8 * tt + 4, t, False)

    def mats2():
        k(f'''v_mul_f32 v{t+6}, {f32(1/16)}, v{lf}
        v_fmac_f32 v{t+10}, {f32(1/16)}, v{g4}''')
        for tt in range(4):
            if tt:
                k(f'v_add_f32 v{t+10}, {f32(8/2048)}, v{t+10}')
            k(f'v_mul_f32 v{t+7}, v{lf}, v{t+10}')
            dft_frag(k, t + 7, t + 6, Fbi + 8 * tt, Fbi + 8 * tt + 4, t, True)
        k(f'''v_mul_f32 v{t+9}, {f32(1/128)}, v{t+9}
        v_fmac_f32 v{t+9}, {f32(1/16)}, v{g4}
        v_mul_f32 v{t+7}, v{lf}, v{t+9}''')
        dft_frag(k, t + 7, t + 6, Fai, Fai + 4, t, True)

    def p2_addr():
        k(f'''s_lshl_b32 s54, s{sW}, 8
        s_add_u32 s52, s35, s54
        s_add_u32 s52, s52, {WS_T1}
        s_lshl_b32 s53, s{sW}, 12
        s_add_u32 s53, s53, s35
        s_add_u32 s53, s53, {WS_WP}
        v_and_b32 v{t}, 3, v1
        v_lshrrev_b32 v{t+1}, 2, v1
        v_lshlrev_b32 v{t+2}, 6, v{t}
        v_lshl_add_u32 v{t+2}, v{t+1}, 4, v{t+2}
        v_lshl_add_u32 v{a5}, v2, 12, v{t+2}
        v_mul_u32_u24 v{a0}, 1040, v1
        v_lshl_add_u32 v{a0}, v2, 6, v{a0}
        v_add_u32 v{a0}, s54, v{a0}
        s_mul_i32 s48, s{sW}, {4*1040}
        v_add_u32 v{a2}, s48, v{la}
        v_lshl_add_u32 v{t+2}, v2, 2, v{t}
        v_mul_u32_u24 v{a3}, 1056, v{t+2}
        v_lshl_add_u32 v{a3}, v{t+1}, 4, v{a3}
        v_add_u32 v{a3}, s54, v{a3}
        s_mul_i32 s48, s{sW}, {4*1056}
        v_add_u32 v{a1}, s48, v{la}
        s_and_b32 s66, s51, 3
        s_xor_b32 s66, s66, s60
        s_lshl_b32 s66, s66, 6
        s_lshl_b32 s48, s51, 8
        s_add_u32 s66, s66, s48
        s_mul_i32 s48, s{sW}, {4*10240}
        s_add_u32 s66, s66, s48
        s_add_u32 s66, s66, {WS_T2}
        s_add_u32 s67, s66, {16*10240}
        s_add_u32 s68, s66, {32*10240}
        s_add_u32 s69, s66, {48*10240}
        s_lshr_b32 s48, s51, 2
        s_and_b32 s48, s48, 2
        v_xor_b32 v{t}, s48, v{t}
        v_lshl_add_u32 v{t+1}, v2, 6, v{t+1}
        v_mul_u32_u24 v{a4}, 10240, v{t+1}
        v_lshl_add_u32 v{a4}, v{t}, 4, v{a4}''')
    wl = f'buffer_load_dword v{fl+1}, v{t+11}, {WS}, s64 offen sc1'

    def wpre():
        k(f'''s_lshl_b32 s48, s{sW}, 5
        s_add_u32 s48, s48, s{sJ}
        v_lshrrev_b32 v{t+4}, 2, v1
        v_lshl_add_u32 v{t+4}, v{t+4}, 3, s48
        s_cmp_lt_u32 s60, 2
        s_cselect_b32 s48, 1, -1
        v_mul_i32_i24 v{t+4}, s48, v{t+4}
        v_and_b32 v{t+4}, 127, v{t+4}
        v_and_b32 v{t+3}, 3, v1
        v_lshl_add_u32 v{t+4}, v{t+4}, 2, v{t+3}
        v_lshlrev_b32 v{t+11}, 4, v{t+4}
        s_mov_b32 s64, {WS_FLAG}''')
        L1 = skip_unless(sR, 20, 'ge')
        k(wl)
        endif(L1)

    def wpost():
        p2_addr()
        k(f'''s_lshr_b32 s65, s{sJ}, 1
        s_lshl_b32 s65, s65, 16
        s_add_u32 s65, s65, {WS_FL2}
        s_lshl_b32 s48, s{sW}, {6+OPT['fs']}
        s_add_u32 s65, s65, s48
        v_lshlrev_b32 v{g4}, {OPT['fs']}, v0''')
    LB, LJ = k.lab(), k.lab()
    k(f's_cmp_ge_u32 s{sR}, 16\ns_cbranch_scc1 {LB}')
    wp_addr()
    k.wait(lg=0)
    srd(k, 36, pWS, WS_SIZE)
    srd(k, 40, pWM, D * 3456 * 2)
    load_tag(k, t)
    flag_addr()
    warm([fl, fl + 2])

    def clear_xch():
        k(f'''v_mov_b64 {P(ones)}, -1
        v_mov_b64 {P(ones+2)}, -1
        s_lshl_b32 s61, s2, 2
        s_add_u32 s61, s61, s{sW}
        s_mul_i32 s61, s61, {14*1024}
        s_add_u32 s61, s61, {WS_XCH}''')
        for i in range(14):
            k(f'buffer_store_dwordx4 {Q(ones)}, v{la}, {WS}, s61 offen offset:{1024*(i&3)} sc1')
            if i & 3 == 3:
                k('s_add_u32 s61, s61, 4096')
    if OPT['xc'] == 1:
        clear_xch()
    if OPT['wat'] == 0:
        wp_loads()
    if OPT['wat'] == 4:
        wp_loads((0,))
    if OPT['wat'] >= 2:
        mats1()
    if OPT['wat'] == 3:
        wp_loads()
    if OPT['wat'] == 5:
        wp_loads((0,))
    mark(k, 1)
    k('s_barrier')
    if OPT['pf1']:
        srd(k, 44, pW1, S * F * 2)
        k(f's_lshl_b32 s61, s{sW}, 4\ns_add_u32 s61, s61, s{sR}')
        pf_loop(k, 1, 61, 64, 16 * OPT['pf1'], ld, 44)
    if OPT['wat'] in (1, 2):
        wp_loads()
    if OPT['wat'] in (4, 5):
        wp_loads((1,))
    if OPT['xc'] == 2:
        clear_xch()
    wp_gather()
    if OPT['wat'] < 2:
        mats1()
    k.wait(0)
    mark(k, 10)
    finish_tag(k)
    wp_run()
    mark(k, 2)
    k(f's_branch {LQ}')
    k.label(LB)
    k.fresh()
    mod_addr(False)
    k.wait(lg=0)
    srd(k, 36, pWS, WS_SIZE)
    srd(k, 40, pWM, D * 3456 * 2)
    load_tag(k, t)
    c_load()
    flag_addr()
    warm([fl, fl + 2, mo + 2])
    L1 = skip_unless(63, 126, 'ge')
    mod_loads(9, 0, OPT['mb'])
    endif(L1)
    mark(k, 1)
    k('s_barrier')
    k.wait(0)
    L1 = skip_unless(63, 126, 'ge')
    mod_loads(9, OPT['mb'], 9)
    endif(L1)
    finish_tag(k)
    mod_silu()
    L1 = skip_unless(sR, 20, 'ge')
    mats1()
    endif(L1)
    k.label(LQ)
    k.fresh()
    mark(k, 3)
    bar(k, lg=0)
    L1 = skip_unless(sR, 20, 'ge')
    if OPT['wfl']:
        k.wait(0)
        k(f'buffer_store_dword v{vTAG}, v{fl+1}, {WS}, 0 offen sc1')
    mats2()
    endif(L1)
    tag(k, 'touch h1')
    tag(k, 'region h1')
    k.wait(0)
    if OPT['wearly']:
        wpre()
    mark(k, 2)
    k('s_barrier')
    if OPT.get('mk') != 'u':
        mark(k, 10)
    k(f'buffer_store_dword v{vTAG}, v{fl}, {WS}, 0 offen sc1')
    L1 = skip_unless(63, 126, 'ge')
    mod_compute(False)
    endif(L1)
    k(f's_cmp_lt_u32 s{sR}, 20\ns_cbranch_scc1 {LP2}')
    srd(k, 52, pW1, S * F * 2)
    k(f'''s_mul_i32 s58, s{sW}, 12
    s_add_u32 s58, s58, s{sR}
    s_add_u32 s58, s58, {16*OPT['pf1'] - 20}''')
    if OPT['pfd']:
        k.wait(0)
    if OPT['pfd'] > 1:
        k(f's_sleep {OPT["pfd"]}')
    pf_loop(k, 1, 58, 48, OPT['pf2'], dum, 52)
    if OPT['pf9']:
        srd(k, 64, pW2, S * F * 2)
        k(f'''s_mul_i32 s59, s{sW}, 12
        s_add_u32 s59, s59, s{sR}
        s_sub_u32 s59, s59, 20''')
        pf_loop(k, 2, 59, 48, OPT['pf9'], dum, 64)
    k.wait(0)
    mark(k, 5)
    k('s_barrier')
    k(f's_branch {LG}')
    tag(k, 'target')
    k.label(LP2)
    k.fresh()
    if OPT['hp']:
        k('s_setprio 1')
    unp = [f'v_lshlrev_b32 v{wv+8*(x>>2)+(x&3)}, 16, v{wp+x}\nv_and_b32 v{wv+8*(x>>2)+4+(x&3)}, 0xffff0000, v{wp+x}' for x in range(16)]
    if OPT['wfl']:
        if not OPT['wearly']:
            wpre()
        wpost()
        if OPT['pfb']:
            srd(k, 40, pW1, S * F * 2)
            k(f's_mul_i32 s58, s{sW}, 20\ns_add_u32 s58, s58, s{sR}\ns_add_u32 s58, s58, {OPT["pf2"] + 10*OPT["pf3"]}')
            pf_loop(k, 1, 58, 1, 320, dum, 40, addr_only=True)
            k(f'''s_mov_b32 s59, s48
            s_cmp_lt_u32 s{sW}, {OPT['pfb']}
            s_cselect_b64 vcc, -1, 0
            v_mov_b32 v{dum+1}, {OOB}
            v_cndmask_b32 v{dum}, v{dum+1}, v{dum}, vcc''')
        if OPT['wearly']:
            k.wait(1)
        L1 = k.lab()
        check_tags(k, [fl + 1])()
        k(f's_cbranch_vccz {L1}')
        poll(k, [wl], check_tags(k, [fl + 1]))
        k.label(L1)
        for tt in range(4):
            k(f'buffer_load_dwordx4 {Q(wp+4*tt)}, v{la}, {WS}, s53 offen offset:{1024*tt} sc1')
        k.wait({1: 0, 2: 3, 3: 4}[OPT['wfl']])
        mark(k, 11)
        poll(k, [f'buffer_load_dword v{t}, v{g4}, {WS}, s65 offen sc1'], check_tags(k, [t]), masked=True, alt=([65], 16384, OPT['na']))
        mark(k, 1)
        for j in range(4):
            k(f'buffer_load_dwordx4 {Q(ld+4*j)}, v{a5}, {WS}, s52 offen offset:{1024*j} sc1')
        for x in unp:
            k(x)
        unp = [''] * 16
        if OPT['stamp']:
            k.wait(0)
    else:
        p2_addr()
        k(f'''s_lshr_b32 s64, s{sJ}, 1
        s_lshl_b32 s64, s64, 16
        s_add_u32 s64, s64, {WS_FL2}
        s_lshl_b32 s48, s{sW}, {6+OPT['fs']}
        s_add_u32 s65, s64, s48
        v_lshlrev_b32 v{t+1}, {OPT['fs']}, v0
        s_lshl_b32 s48, s{sW}, 5
        s_add_u32 s48, s48, s{sJ}
        v_and_b32 v{t+2}, 3, v0
        v_lshl_add_u32 v{t+2}, v{t+2}, 3, s48
        s_cmp_lt_u32 s60, 2
        s_cselect_b32 s48, 1, -1
        v_mul_i32_i24 v{t+2}, s48, v{t+2}
        v_bfe_u32 v{t+3}, v{t+2}, 2, 2
        v_bfe_u32 v{t+4}, v{t+2}, 4, 3
        v_and_b32 v{t+2}, 3, v{t+2}
        v_lshl_add_u32 v{t+2}, v{t+3}, 6, v{t+2}
        v_lshl_add_u32 v{t+2}, v{t+4}, 3, v{t+2}
        v_lshlrev_b32 v{t+2}, {OPT['fs']}, v{t+2}''')
        k.wait(0)
        mark(k, 11)
        poll(k, [f'buffer_load_dword v{t}, v{t+1}, {WS}, s65 offen sc1', f'buffer_load_dword v{t+3}, v{t+2}, {WS}, s64 offen sc1'],
             check_tags(k, [t, t + 3]), masked=True, alt=([64, 65], 16384, OPT['na']))
        mark(k, 1)
        for j in range(4):
            k(f'buffer_load_dwordx4 {Q(ld+4*j)}, v{a5}, {WS}, s52 offen offset:{1024*j} sc1')
        for tt in range(4):
            k(f'buffer_load_dwordx4 {Q(wp+4*tt)}, v{la}, {WS}, s53 offen offset:{1024*tt} sc1')
    if OPT['stamp']:
        k.wait(4)
    mark(k, 4)
    for i in range(4):
        for j in range(i + 1, 4):
            k(f'v_swap_b32 v{ld+4*i+j}, v{ld+4*j+i}')
        for ri in range(2):
            k(f'{MF} {Q(acc+8*i+4*ri)}, {Q(ld+4*i)}, {Q(Fa+4*ri)}, 0')
        if i == OPT['pfbat'] and OPT['pfb']:
            k.raw(f'    buffer_load_dword v{dum+3}, v{dum}, s[40:43], s59 offen')
    for ci in range(4):
        for j in range(4):
            k(f'v_cvt_pk_bf16_f32 v{pk+4*ci+j}, v{acc+8*ci+j}, v{acc+8*ci+4+j}')
        k(f'ds_write_b128 v{a0}, {Q(pk+4*ci)} offset:{L_A+16*ci}')
    bar(k, lg=0)
    for tt in range(4):
        k(f'ds_read_b128 {Q(ld+4*tt)}, v{a2} offset:{L_A+1040*tt}')
    cue = f'buffer_store_dword v{vTAG}, v{fl+2}, {WS}, 0 offen sc1'
    if OPT['cue_at'] == 0:
        k(cue)
    for x in unp[:8]:
        k(x)
    for tt in range(4):
        for ri in range(2):
            k(f'{MF} {Q(acc+8*tt+4*ri)}, {Q(Fb+8*tt+4*ri)}, {Q(ld+4*tt)}, 0')
            k(unp[8 + 2 * tt + ri])
    for tt in range(4):
        for p in range(2):
            re, im, wr, wi = acc + 8 * tt + 2 * p, acc + 8 * tt + 4 + 2 * p, wv + 8 * tt + 2 * p, wv + 8 * tt + 4 + 2 * p
            o = t + 4 * p
            k(f'''v_pk_mul_f32 {P(o)}, {P(re)}, {P(wr)}
            v_pk_mul_f32 {P(o+2)}, {P(im)}, {P(wr)}
            v_pk_fma_f32 {P(o)}, {P(im)}, {P(wi)}, {P(o)} neg_lo:[1,0,0] neg_hi:[1,0,0]
            v_pk_fma_f32 {P(o+2)}, {P(re)}, {P(wi)}, {P(o+2)}
            v_cvt_pk_bf16_f32 v{pk+4*tt+2*p}, v{o}, v{o+2}
            v_cvt_pk_bf16_f32 v{pk+4*tt+2*p+1}, v{o+1}, v{o+3}''')
            if tt:
                k(f'{MF} {Q(acc+8*(tt-1)+4*p)}, {Q(Fbi+8*(tt-1)+4*p)}, {Q(pk+4*(tt-1))}, 0')
            if OPT['cue_at'] == 4 and (tt, p) == (2, 1):
                k(cue)
    for tt in range(4):
        if tt == 1:
            for ri in range(2):
                k(f'{MF} {Q(acc+24+4*ri)}, {Q(Fbi+24+4*ri)}, {Q(pk+12)}, 0')
        for j in range(4):
            k(f'v_cvt_pk_bf16_f32 v{ld+4*j+tt}, v{acc+8*tt+j}, v{acc+8*tt+4+j}')
            if tt == 3:
                k(f'ds_write_b128 v{a3}, {Q(ld+4*j)} offset:{L_B+64*j}')
    bar(k, lg=0)
    for ci in range(4):
        k(f'ds_read_b128 {Q(pk+4*ci)}, v{a1} offset:{L_B+1056*ci}')
    if OPT['cue_at'] == 1:
        k(cue)
    for ci in range(4):
        for ri in range(2):
            k(f'{MF} {Q(acc+8*ci+4*ri)}, {Q(Fai+4*ri)}, {Q(pk+4*ci)}, 0')
    for ci in range(4):
        if ci == 3 and OPT['sp1'] and OPT['cl3'] == 1:
            k('s_barrier')
        for j in range(4):
            k(f'v_cvt_pk_bf16_f32 v{ld+4*j+ci}, v{acc+8*ci+4+j}, v{acc+8*ci+j}')
            if ci == 3:
                k(f'buffer_store_dwordx4 {Q(ld+4*j)}, v{a4}, {WS}, s{66+j} offen sc1')
    if OPT['cue_at'] == 2:
        k(cue)
    mark(k, 5)
    if OPT['hp']:
        k('s_setprio 0')
    bar(k, None if OPT['ec2'] else 0)
    if OPT['cue_at'] == 3:
        k(cue)
    tag(k, 'region -')
    k.label(LG)
    if OPT.get('nodma'):
        k.drop = lambda x: x.endswith(' lds') and (OPT['nodma'] == 1 or (OPT['nodma'] == 2) == ('sc1' in x))
    k.fresh()
    V.p = 4
    t = V(4); la_ = V(); fl = V(2); da = V(9); xa = V(6); xd = V(24, 4); pv = V(2); xf_ = V(); db = V(9); fb = V(3); xr_ = V(5); vr = V(10)
    k(f'v_lshlrev_b32 v{la_}, 4, v0')
    la = la_
    g1_tile(k)
    g2_tile(k)
    srd(k, 40, pW1, S * F * 2)
    srd(k, 44, pW2, S * F * 2)
    k(f'''s_and_b32 s62, s{sW}, 1
    s_and_b32 s63, s{sJ}, {OPT['xm']}
    s_mul_i32 s63, s63, {OPT["xst"]}
    s_add_u32 s63, s63, {OPT['xo']}
    s_mul_i32 s48, s51, {OPT['rot1']}
    s_add_u32 s63, s63, s48
    s_and_b32 s63, s63, 31
    s_mov_b32 s64, 0
    s_lshl_b32 s68, s62, 13''')

    def start_off(dst, hi, base, first, mul, n):
        k(f's_mul_i32 s{dst}, s{first}, {mul}\ns_add_u32 s{dst}, s{dst}, s{base}\ns_add_u32 s{hi}, s{base}, {n*mul}')

    def w_addr(g, da, lo):
        jst, gst, qoff = ((256 * 9216, 9216, 1024 * 9216), (4096, 16384, 16 * 4096))[g]
        k(f'''v_lshlrev_b32 v{t+1}, 1, v2
        v_xor_b32 v{t+1}, v{t+1}, v1
        v_xor_b32 v{t+2}, 8, v{t+1}
        v_mul_u32_u24 v{t}, {jst}, v2
        v_lshl_add_u32 v{t+1}, v{t+1}, 4, v{t}
        v_lshl_add_u32 v{t+2}, v{t+2}, 4, v{t}''')
        if OPT['rotw'] & (1 << g):
            sm = 16 + 8 * g
            k('s_mul_i32 s12, s52, 43\ns_lshr_b32 s12, s12, 5' if g == 0 else 's_lshl_b32 s12, s55, 1')
            for i in range(8):
                k(f'''s_add_u32 s14, s12, {i}
                s_and_b32 s14, s14, 7
                s_and_b32 s15, s14, 3
                s_mul_i32 s15, s15, {gst}
                s_lshr_b32 s48, s14, 2
                s_mul_i32 s48, s48, {qoff}
                s_add_u32 s15, s15, s48
                s_bitcmp1_b32 s14, 0
                s_cselect_b64 vcc, -1, 0
                v_cndmask_b32 v{da+i}, v{t+1}, v{t+2}, vcc
                v_add_u32 v{da+i}, s15, v{da+i}
                s_lshl_b32 s14, s14, 10
                s_add_u32 s{sm+i}, s14, s68''')
        else:
            k(f'''v_add_u32 v{da+2}, {2*(gst-1024)}, v{t+1}
            v_add_u32 v{da+3}, {3*(gst-1024)}, v{t+2}
            v_add_u32 v{da+1}, {gst-1024}, v{t+2}
            v_mov_b32 v{da}, v{t+1}''')
            for i in range(4):
                k(f'v_add_u32 v{da+4+i}, {qoff}, v{da+i}')
        if g == 0:
            k(f's_mul_i32 s49, s62, {4*9216}\ns_lshl_b32 s48, s51, 8\ns_add_u32 s49, s49, s48')
            start_off(lo, lo + 1, 49, 63, 8 * 9216, 32)
        else:
            k(f'''s_mul_i32 s49, s53, {1152*4096}
            s_lshl_b32 s48, s62, 17
            s_add_u32 s49, s49, s48
            s_lshl_b32 s48, s54, 8
            s_add_u32 s49, s49, s48''')
            start_off(lo, lo + 1, 49, 64, 64 * 4096, NST2)

    def woff(n, mul, NST, lo=60, pair=False, d=50):
        if pair:
            p = f's_mul_i32 s{d}, s62, {(kappa(n+1, NST)-kappa(n, NST))*mul}\ns_add_u32 s{d}, s{d}, s{lo}\ns_add_u32 s{d}, s{d}, {kappa(n, NST)*mul}\n'
        else:
            p = f's_add_u32 s{d}, s{lo}, {kappa(n, NST)*mul}\n'
        return p + f's_cmp_ge_u32 s{d}, s{lo+1}\ns_cselect_b32 s48, {NST*mul}, 0\ns_sub_u32 s{d}, s{d}, s48\n'

    class Stream:
        def __init__(st, items):
            st.items, st.n, st.seq = items, 0, []

        def issue(st, upto, now):
            while st.n < min(upto, len(st.items)):
                need, free, txt = st.items[st.n]
                if free > now:
                    break
                k(txt)
                st.seq.append(k.stats.get('vmem', 0))
                st.n += 1

        def more(st, n):
            st.issue(st.n + n, -1)

        def run(st, NST, quota, last_bar=True, mk=None, hooks={}, verify={}, pre={}):
            landed = -1
            log = []
            for i in range(NST):
                nd = [x for x, it in enumerate(st.items) if it[0] <= i]
                vm = None
                if nd and nd[-1] > landed:
                    assert nd[-1] < st.n, (i, nd[-1], st.n)
                    landed = nd[-1]
                    vm = k.stats.get('vmem', 0) - st.seq[landed]
                if i in verify:
                    if vm is not None:
                        k.wait(vm)
                    verify[i]()
                    k('s_barrier')
                else:
                    bar(k, vm)
                if mk and OPT['stamp'] and i == 0:
                    mark(k, mk)
                    k.raw('    s_memtime s[98:99]')
                if mk and OPT.get('trace'):
                    k(f's_memtime s[14:15]\nv_writelane_b32 v{200 + (mk == 8)}, s14, {i}')
                if landed == len(st.items) - 1 and not last_bar:
                    break
                if i in pre:
                    pre[i]()
                n = st.n
                st.issue(quota(i), i)
                log.append((vm, st.n - n))
                if i in hooks:
                    n = k.stats['vmem']
                    hooks[i]()
                    k.stats['vmem'] = n + hooks.get('min', 0)
            if OPT.get('log'):
                print(log, file=sys.stderr)
            if mk and OPT['stamp']:
                mark(k, mk + 1)
                k('s_memtime s[100:101]')
                k(f's_sub_u32 s{84+mk}, s100, s98')

    def adv(s, inc, span, hi):
        return f's_add_u32 s{s}, s{s}, {inc}\ns_cmp_ge_u32 s{s}, s{hi}\ns_cselect_b32 s48, {span}, 0\ns_sub_u32 s{s}, s{s}, s48\n'

    def spread(n0, n1, i0, i1):
        return lambda i: n0 + int(round((n1 - n0) * max(0, min(i, i1) + 1 - i0) / (i1 + 1 - i0)))
    def scalar_pf():
        su = OPT['su']
        if not su:
            return {}
        n0 = 288 - 64 * OPT['pf8'] - 54 * OPT['pf4'] - 54 * OPT['pfa'] - 27 * su + OPT['n4x']
        k(f'''s_lshl_b32 s63, s{sR}, 2
        s_add_u32 s63, s63, s{sW}
        s_mul_i32 s63, s63, {su*4096}
        s_add_u32 s63, s63, {n0*4*4096}
        s_lshr_b32 s48, s{sJ}, 1
        s_mul_i32 s48, s48, {1152*4096}
        s_add_u32 s63, s63, s48
        s_and_b32 s48, s{sJ}, 1
        s_lshl_b32 s48, s48, 11
        s_add_u32 s63, s63, s48''')
        i0, i1 = OPT['suat']
        tot = 32 * su

        def cb(i):
            def f():
                for q in range(tot * (i - i0) // (i1 - i0), tot * (i + 1 - i0) // (i1 - i0)):
                    k.raw(f'    s_load_dword s13, s[20:21], s63')
                    k(f's_add_u32 s63, s63, {64 + (2048 if q % 32 == 31 else 0)}')
            return f
        return {i: cb(i) for i in range(i0, i1)}
    LHW = k.lab()
    if OPT.get('hprio'):
        k(f's_setprio {OPT["hprio"]}')
    k(f's_cmp_ge_u32 s{sW}, 2\ns_cbranch_scc1 {LHW}')
    x1f = f'buffer_load_dword v{fb+2}, v{fb+1}, {WS}, 0 offen sc1'

    def setup_g1():
        h3_idx(k, 56)
        publish(k, 2, 56, fl)
        k(f's_lshl_b32 s56, s52, 6\ns_add_u32 s56, s56, s51')
        publish(k, 3, 56, fl + 1, ncue=5, cue_add=27)
        k(f'''s_lshr_b32 s65, s{sJ}, 2
        s_lshl_b32 s65, s65, 16
        s_add_u32 s66, s65, {WS_FL2+3*0x40000}
        s_lshl_b32 s48, s62, {7+OPT['fs']}
        s_add_u32 s65, s65, s48
        s_add_u32 s65, s65, {WS_FL2+2*0x40000}
        s_add_u32 s69, s65, {64<<OPT['fs']}
        v_lshlrev_b32 v{xa+5}, {OPT['fs']}, v0
        s_mul_i32 s67, s52, {96*16}
        s_mul_i32 s48, s62, {4*9216}
        s_add_u32 s67, s67, s48
        s_add_u32 s67, s67, {WS_H2}
        v_add_u32 v{da+2}, {9216-1536}, v{la}
        v_cmp_gt_u32 vcc, 32, v0
        v_cndmask_b32 v{da+1}, v{da+2}, v{la}, vcc
        v_add_u32 v{da+3}, {2*9216}, v{la}
        v_add_u32 v{da+4}, {2*9216}, v{da+1}
        v_add_u32 v{da+5}, {2*9216}, v{da+2}
        s_mul_i32 s68, s62, 6144''')
        start_off(58, 59, 67, 63, 8 * 9216, 32)

    def setup_g2():
        for i in range(9):
            k(f'''v_add_u32 v{vr}, {64*i}, v0
            v_mul_u32_u24 v{vr+1}, 1821, v{vr}
            v_lshrrev_b32 v{vr+1}, 18, v{vr+1}
            v_mul_u32_u24 v{vr+1}, {9216-2304}, v{vr+1}
            v_lshl_add_u32 v{vr+1}, v{vr}, 4, v{vr+1}
            v_subrev_u32 v{db+i}, {1024*(i&3)}, v{vr+1}''')
        k(f'''s_mul_i32 s48, s55, 3
        s_add_u32 s49, s48, 2
        s_lshr_b32 s48, s48, 1
        s_lshr_b32 s49, s49, 1
        v_mov_b32 v{vr}, s48
        v_mov_b32 v{vr+1}, s49
        v_cmp_gt_u32 vcc, 32, v0
        v_cndmask_b32 v{vr}, v{vr+1}, v{vr}, vcc
        v_and_b32 v{vr+1}, 31, v0
        v_min_u32 v{vr+1}, 8, v{vr+1}
        v_lshl_add_u32 v{vr}, v{vr}, 6, v{vr+1}
        s_mul_i32 s48, s53, 9
        v_add_u32 v{vr}, s48, v{vr}
        v_lshlrev_b32 v{fb}, {OPT['fs']}, v{vr}''')
        k(f'''s_lshr_b32 s48, s54, 3
        s_lshl_b32 s48, s48, 2
        s_and_b32 s49, s54, 1
        s_lshl_b32 s49, s49, 1
        s_add_u32 s48, s48, s49
        s_add_u32 s48, s48, s62
        s_lshl_b32 s48, s48, 13
        s_add_u32 s48, s48, {WS_FL2 + 0x40000}
        v_lshl_add_u32 v{fb+1}, v0, 7, s48
        v_mov_b32 v{fb+2}, 0''')
        k(f'''s_lshl_b32 s48, s54, 7
        s_lshr_b32 s49, s53, 1
        s_lshl_b32 s49, s49, 4
        s_add_u32 s48, s48, s49
        s_mul_i32 s48, s48, 1152
        s_mul_i32 s49, s55, 288
        s_add_u32 s48, s48, s49
        s_and_b32 s49, s53, 1
        s_mul_i32 s49, s49, 144
        s_add_u32 s48, s48, s49
        s_add_u32 s12, s48, {WS_X1}
        s_lshl_b32 s13, s62, 6''')
        for i in range(5):
            k(f'''v_add_u32 v{vr}, s13, v0
            v_mul_u32_u24 v{vr+1}, 911, v{vr}
            v_lshrrev_b32 v{vr+1}, 13, v{vr+1}
            v_mul_u32_u24 v{vr+2}, 9, v{vr+1}
            v_sub_u32 v{vr+2}, v{vr}, v{vr+2}
            v_and_b32 v{vr}, 48, v{vr+1}
            v_add_u32 v{vr+1}, v{vr+1}, v{vr}
            v_mul_u32_u24 v{vr+1}, 1152, v{vr+1}
            v_lshl_add_u32 v{vr+1}, v{vr+2}, 4, v{vr+1}
            v_add_u32 v{xr_+i}, s12, v{vr+1}
            s_add_u32 s13, s13, 128''')
        k(f'''s_mul_i32 s48, s55, 576
        s_and_b32 s49, s53, 1
        s_mul_i32 s49, s49, 288
        s_add_u32 s48, s48, s49
        s_add_u32 s48, s48, {WS_MOD+5*2304}
        v_min_u32 v{vr}, {17*16}, v{la}
        v_add_u32 v{vr}, s48, v{vr}
        s_cmp_eq_u32 s62, 1
        s_cselect_b64 vcc, -1, 0
        v_cndmask_b32 v{xr_+4}, v{xr_+4}, v{vr}, vcc''')

    def setup_x1():
        k(f's_mul_i32 s56, s62, 288\ns_mul_i32 s57, s{sS2}, 1152\ns_add_u32 s57, s57, {WS_X1}')
        for i in range(5):
            k(f'''v_add_u32 v{t}, {64*i}, v0
            v_min_u32 v{t}, 287, v{t}
            v_add_u32 v{t}, s56, v{t}
            v_mul_u32_u24 v{t+1}, 911, v{t}
            v_lshrrev_b32 v{t+1}, 16, v{t+1}
            v_mul_u32_u24 v{t+1}, {256*1152 - 1152}, v{t+1}
            v_lshl_add_u32 v{xa+i}, v{t}, 4, v{t+1}''')
            if i in (0, 4):
                k(f'v_lshlrev_b32 v{t}, 4, v{t}\nv_add_u32 v{t+2+i//4}, {L_Z}, v{t}')
    if not OPT['lz']:
        setup_g1()
        setup_g2()
        setup_x1()
    tag(k, 'touch a1')
    tag(k, 'region a1')
    def clear_u():
        if OPT['sp2']:
            c0, n = spec_range(1)
            k(f'v_mov_b64 {P(xd)}, -1\nv_mov_b64 {P(xd+2)}, -1\ns_lshl_b32 s56, s2, 1\ns_add_u32 s56, s56, s62')

            def addr():
                k('s_mov_b32 s49, s48')
                for g in range(1, 4):
                    k(f's_cmp_ge_u32 s49, {72*n*g}\ns_cselect_b32 s50, {72*(NST2-n)}, 0\ns_add_u32 s48, s48, s50')
                k(f's_lshl_b32 s48, s48, 10\ns_add_u32 s48, s48, {WS_U + c0*73728}')
            clear_loop(k, 56, 512, 288 * n, addr, xd, la)
    if OPT['cl4'] == 0:
        clear_u()
    n7 = OPT['pf2'] + 10 * OPT['pf3']
    k(f'''s_mul_i32 s56, s62, 27
    s_add_u32 s56, s56, s{sR}
    s_add_u32 s56, s56, {n7}
    s_cmp_lt_u32 s{sR}, 27
    s_cselect_b32 s56, s56, 999
    s_barrier''')
    if OPT['pf7']:
        pf_loop(k, 1, 56, 54, n7 + 27 * OPT['pf7'], xd + 20, 40)
    if OPT['cl4'] == 1:
        clear_u()

    def clear_own_xch(upto=14):
        k(f'''v_mov_b64 {P(xd)}, -1
        v_mov_b64 {P(xd+2)}, -1
        s_mul_i32 s56, s2, {XB}
        s_lshl_b32 s48, s62, 10
        s_add_u32 s56, s56, s48
        s_add_u32 s56, s56, {WS_XCH}''')
        for x in range(upto):
            if x < 13:
                k(f's_add_u32 s48, s56, {2048*x}')
            else:
                k(f's_mul_i32 s48, s62, -2048\ns_add_u32 s48, s48, {2048*13}\ns_add_u32 s48, s48, s56')
            k(f'buffer_store_dwordx4 {Q(xd)}, v{la}, {WS}, s48 offen sc1')
    if OPT['xc'] == 4:
        clear_own_xch()
    if OPT['xc'] == 0 and OPT['xc3']:
        clear_own_xch(OPT['xc3'])
    if OPT['lz']:
        setup_g1()
    k('s_barrier')
    if OPT['cl4'] == 2:
        clear_u()
    if OPT['xc'] == 5:
        clear_own_xch()
    if OPT['lz']:
        setup_x1()
    if OPT['sp1'] and OPT['c3']:
        c0_, n_ = spec_range(0)
        k(f'''v_lshrrev_b32 v91, 3, v0
        v_lshlrev_b32 v91, 15, v91
        v_and_b32 v92, 7, v0
        v_lshl_add_u32 v91, v92, 4, v91
        s_lshl_b32 s48, s{sS2}, 7
        s_add_u32 s48, s48, {WS_C3}
        v_add_u32 v91, s48, v91
        s_lshr_b32 s48, s{sS2}, 3
        s_sub_u32 s48, s48, {c0_}
        s_cmp_lt_u32 s48, {n_}
        s_cselect_b32 s48, 0, 1
        s_or_b32 s48, s48, s62
        s_cmp_eq_u32 s48, 0
        s_cselect_b64 vcc, -1, 0
        v_mov_b32 v92, {OOB}
        v_cndmask_b32 v91, v92, v91, vcc
        v_mov_b32 v92, v{vTAG}
        v_mov_b32 v93, v{vTAG}
        v_mov_b32 v94, v{vTAG}
        v_mov_b32 v95, v{vTAG}''')
    k('s_barrier\ns_barrier')
    if OPT['sp1'] and OPT['c3']:
        k(f'buffer_store_dwordx4 {Q(92)}, v91, {WS}, 0 offen sc1')
    for i in range(5):
        k(f'ds_read_b128 {Q(xd+4*i)}, v{t+2+i//4} offset:{1024*(i&3)}')
    def x1_stores():
        for i in range(5):
            k(f'buffer_store_dwordx4 {Q(xd+4*i)}, v{xa+i}, {WS}, s57 offen sc1')

    def p3_publish():
        if not OPT['xdef']:
            bar(k, 0)
            do_publish(k, fl)
            return
        bar(k, lg=0)
        k(f'buffer_store_dword v{vTAG}, v{fl}, {WS}, 0 offen sc1')
        nx = len(reg_stages(0)) - 6
        if OPT['lz']:
            setup_g2()
        if OPT['xdef'] == 2:
            k.wait(0)
        if nx:
            k('s_barrier')
        x1_stores()
        if nx:
            k('s_barrier')
        k.wait(0)
        k(f'buffer_store_dwordx4 {Q(xd+20)}, v{xf_}, {WS}, 0 offen sc1')
    if not OPT['xdef']:
        x1_stores()
    else:
        k(f'''s_lshl_b32 s48, s62, 8
        s_add_u32 s48, s48, s{sS2}
        s_lshl_b32 s48, s48, 7
        s_add_u32 s48, s48, {WS_FL2 + 0x40000}
        v_add_u32 v{xf_}, s48, v{la}
        v_cmp_gt_u32 vcc, 8, v0
        v_mov_b32 v{t}, {OOB}
        v_cndmask_b32 v{xf_}, v{t}, v{xf_}, vcc''')
        k.wait(0)
        for i in range(4):
            k(f'v_mov_b32 v{xd+20+i}, v{vTAG}')
    LN, LJ = k.lab(), k.lab()
    k(f's_cmp_ge_u32 s{sR}, 27\ns_cbranch_scc1 {LN}')
    st0 = (list(k.vm), list(k.lg))
    if OPT['rf']:
        k('s_barrier')

    def act_text(g, n, i, so):
        if g == 0:
            pre = f's_add_u32 m0, s68, {g1_rings()[0] + (n % g1_rings()[1])*12288 + 1024*i}\n' if i % 3 == 0 else ''
            return pre + f'buffer_load_dwordx4 v{la if i==0 else da+i}, {WS}, s{so} offen offset:{1024*(i%3)} {OPT["fa1"].replace("_", " ")} lds'
        pre = f's_add_u32 m0, s57, {L_ACT2 + (n % NSA2)*AST2 + 1024*i}\n' if i % 4 == 0 else ''
        return pre + f'buffer_load_dwordx4 v{db+i}, {WS}, s{so} offen offset:{1024*(i&3)} {OPT["fa2"].replace("_", " ")} lds'

    def verifier(g, n):
        def f():
            ni, stg = ((6, 12288), (9, AST2))[g]
            L, E = k.lab(), k.lab()
            k.label(L)
            for i in range(ni):
                k(f'ds_read_b32 v{vr+i}, v{vr+9} offset:{n*stg + 1024*i}' if n < 4 or g == 0 else f'ds_read_b32 v{vr+i}, v90 offset:{(n-4)*stg + 1024*i}')
            for i in range(1, ni, 2):
                k(f'v_max3_u32 v{vr}, v{vr}, v{vr+i}, v{vr+min(i+1, ni-1)}')
            k(f'v_cmp_eq_u32 vcc, -1, v{vr}\ns_cbranch_vccz {E}')
            k(f's_sub_u32 s{sBUD}, s{sBUD}, 1\ns_cbranch_scc1 {E}')
            cnt, vm = k.stats['vmem'], k.vm
            k('s_mov_b32 s14, m0')
            if OPT['sl3']:
                k(f's_sleep {OPT["sl3"]}')
            k(woff(n, 8 * 9216, (32, NST2)[g], 58, False, 15))
            for i in range(ni):
                k(act_text(g, n, i, 15))
            k('s_mov_b32 m0, s14')
            k.wait(0)
            k(f's_branch {L}')
            k.stats['vmem'], k.vm = cnt, vm
            k.label(E)
            k(f's_max_i32 s{sBUD}, s{sBUD}, 0')
        return f

    def late_check(loads, regs, mk):
        seq = []

        def issue():
            for l in loads:
                k(l)
            seq.append(k.stats['vmem'])

        def check():
            k.wait(k.stats['vmem'] - seq[0])
            L = k.lab()
            check_tags(k, regs)()
            k(f's_cbranch_vccz {L}')
            cnt, vm = k.stats['vmem'], k.vm
            poll(k, loads, check_tags(k, regs), masked=True)
            k.stats['vmem'], k.vm = cnt, vm
            k.label(L)
            mark(k, mk)
        return issue, check
    h3l = [f'buffer_load_dword v{t}, v{xa+5}, {WS}, s65 offen sc1', f'buffer_load_dword v{t+1}, v{xa+5}, {WS}, s69 offen sc1']
    items = []
    for n in range(32):
        for i in range(6):
            post = '\n' + woff(n + 1, 8 * 9216, 32, 58) if i == 5 and n < 31 else ''
            items.append((n, max(n - g1_rings()[1] + 2, OPT['sp1']) if n >= g1_rings()[1] else -9, act_text(0, n, i, 50) + post))
    st = Stream(items)

    def stag_setup(n0, g, per, i0, span, gap, lim=288, upw=0):
        if not per:
            return {}
        assert n0 >= 0 and per <= 4
        mask, nf = leaders(g)
        w2_lane(k, pv, 35)
        k(f'''s_mov_b32 s49, s35
        s_mul_i32 s48, s62, {1 if OPT['jit'] else nf}
        s_add_u32 s49, s49, s48
        s_bfm_b32 s48, s{sR}, 0
        s_and_b32 s48, s48, {mask}
        s_bcnt1_i32_b32 s48, s48
        s_sub_u32 s12, s{sR}, s48''')
        bs = OPT[('bs1', 'bs2')[g]] or OPT['jit'] or 2
        wg = OPT[('wg1', 'wg2')[g]]
        for x in range(per):
            if OPT['jit']:
                x0 = x - x % bs
                if upw == 3 and per == 2 and bs == 2:
                    k(f's_mul_i32 s35, s12, 3\ns_add_u32 s35, s35, {n0 + 2*x}')
                    if x == 1:
                        k('s_sub_u32 s35, s35, s62')
                        k('s_sub_u32 s35, s35, s62')
                else:
                    k(f's_mul_i32 s35, s12, {2*min(bs, per-x0)}\ns_add_u32 s35, s35, {n0 + 2*x0*nf + 2*(x-x0)}')
            else:
                k(f's_add_u32 s35, s12, {n0 + 2*x*nf}')
            k(f'''s_add_u32 s35, s35, s49
            s_min_u32 s35, s35, {lim-1}
            s_lshl_b32 s{8+x}, s35, 14''')
        k(f'''s_mul_i32 s35, s12, {span*256//nf}
        s_lshr_b32 s35, s35, 8
        s_add_u32 s35, s35, {i0}
        s_mul_i32 s48, s62, {wg}
        s_add_u32 s35, s35, s48
        s_mov_b32 s48, {mask}
        s_bitcmp1_b32 s48, s{sR}
        s_cselect_b32 s35, 999, s35''')

        def hook(i):
            def f():
                for x0 in range(0, per, bs):
                    q = i - gap * (x0 // bs)
                    if i0 <= q < i0 + span + wg:
                        L = k.lab()
                        k(f's_cmp_lg_u32 s35, {q}\ns_cbranch_scc1 {L}')
                        for x in range(x0, min(x0 + bs, per)):
                            if upw == 3 and x == 1:
                                k(f's_cmp_lg_u32 s62, 0\ns_cbranch_scc1 {L}')
                            k.raw(f'    buffer_load_dword v{pv+1}, v{pv}, s[44:47], s{8+x} offen' + (' nt' if OPT['pfnt'] & (4 << g) else ''))
                        k.label(L)
            return f
        return {i: hook(i) for i in range(i0, i0 + span + wg + gap * ((per - 1) // bs))}
    n8 = pf_split()[1]
    hooks = stag_setup(0 if OPT['swp'] else pf_split()[0], 0, OPT['pf4'], *OPT['pf4at'], lim=n8, upw=pf_split()[2])
    k(woff(0, 8 * 9216, 32, 58))
    verify, pre = {}, {}
    if OPT['sp1']:
        k(f's_add_u32 s48, s68, {L_ACT}\nv_add_u32 v{vr+9}, s48, v{la}')
        bar(k, lg=0)
        k(f'buffer_store_dword v{vTAG}, v{fl}, {WS}, 0 offen sc1')
        if OPT['lz']:
            setup_g2()
        if len(reg_stages(0)) > 6:
            k('s_barrier\ns_barrier')
        if OPT['spw']:
            k.wait(0)
        if OPT['c3']:
            c0_, n_ = spec_range(0)
            k(f'''v_min_u32 v91, {8*n_-1}, v0
            v_lshlrev_b32 v91, 7, v91
            s_lshl_b32 s48, s{sJ}, 15
            s_add_u32 s48, s48, {WS_C3 + c0_*8*128}
            v_add_u32 v91, s48, v91''')
            poll(k, [f'buffer_load_dword v92, v91, {WS}, 0 offen sc1'], check_tags(k, [92]), masked=True, sleep=OPT['c3s'])
        mark(k, 6)
        verify = {n: verifier(0, n) for n in range(5)}
        pre[OPT['sp1'] - 1], pre[OPT['sp1']] = late_check(h3l, [t, t + 1], 7)
        pre[5] = x1_stores
        pre[10] = lambda: k(f'buffer_store_dwordx4 {Q(xd+20)}, v{xf_}, {WS}, 0 offen sc1')
    else:
        p3_publish()
        mark(k, 6)
        poll(k, h3l, check_tags(k, [t, t + 1]), masked=True, alt=([65, 69], 16384, OPT['na']))
        mark(k, 7)
    st.more(6 * OPT['a1pre'])
    if OPT['xdef']:
        assert 28 not in hooks
        hooks[28] = lambda: k(x1f)
    if OPT['su']:
        assert not OPT['sp1']
        pre = scalar_pf()
    st.run(32, lambda i: 6 * (i + g1_rings()[1] - 1), hooks=hooks, verify=verify, pre=pre)
    if OPT['su']:
        k.raw('    s_waitcnt lgkmcnt(0)')
    k(f's_branch {LJ}')
    k.label(LN)
    k.fresh()
    if OPT['xdef']:
        k.wait(lg=0)
        x1_stores()
        bar(k, 0)
        k(f'buffer_store_dword v{vTAG}, v{fl}, {WS}, 0 offen sc1')
        k(f'buffer_store_dwordx4 {Q(xd+20)}, v{xf_}, {WS}, 0 offen sc1')
        if OPT['lz']:
            setup_g2()
        k.wait(0)
    else:
        p3_publish()
    poll(k, [f'buffer_load_dword v{t}, v{xa+5}, {WS}, s65 offen sc1', f'buffer_load_dword v{t+1}, v{xa+5}, {WS}, s69 offen sc1'],
         check_tags(k, [t, t + 1]), masked=True, alt=([65, 69], 16384, OPT['na']))
    k.label(LJ)
    k.fresh()
    t = xd
    k(f'''s_mul_i32 s67, s55, {144*16}
    s_mul_i32 s48, s53, {NST2*8*9216}
    s_add_u32 s67, s67, s48
    s_mul_i32 s48, s62, {4*9216}
    s_add_u32 s67, s67, s48
    s_add_u32 s67, s67, {WS_U}
    s_mul_i32 s57, s62, 9216
    s_add_u32 s48, s57, {L_ACT2}
    v_add_u32 v{vr+9}, s48, v{la}
    v_add_u32 v90, {4*AST2}, v{vr+9}''')
    start_off(58, 59, 67, 64, 8 * 9216, NST2)
    k.wait(0)
    if OPT['xdef']:
        L1 = k.lab()
        check_tags(k, [fb + 2])()
        k(f's_cbranch_vccz {L1}')
        poll(k, [x1f], check_tags(k, [fb + 2]), masked=True)
        k.label(L1)
    hooks = stag_setup(n8, 1, OPT['pf8'], *OPT['pf8at'], upw=pf_split()[3])
    k('s_barrier')
    tag(k, 'touch a2')
    tag(k, 'region a2')
    LN, LJ = k.lab(), k.lab()
    k('s_barrier\n' * (2 + bool(OPT['rf2'])))
    k(f's_cmp_ge_u32 s{sR}, 27\ns_cbranch_scc1 {LN}')
    k(f'buffer_store_dword v{vTAG}, v{fl+1}, {WS}, 0 offen sc1')
    if not OPT['sp2'] or OPT['spw']:
        k.wait(0)
    k(f's_branch {LJ}')
    k.label(LN)
    wait_cue(k, 3, t)
    k.label(LJ)
    k(woff(0, 8 * 9216, NST2, 58))
    mark(k, 8)
    h4l = [f'buffer_load_dword v{t}, v{fb}, {WS}, s66 offen sc1']
    verify, prh = {}, {}
    if OPT['sp2']:
        verify = {n: verifier(1, n) for n in range(OPT['nsp'])}
        prh[OPT['sp2'] - 1], prh[OPT['sp2']] = late_check(h4l, [t], 9)
    else:
        poll(k, h4l, check_tags(k, [t]), masked=True, alt=([66], 16384, OPT['na']))
        mark(k, 9)
    items = []
    for n in range(NST2):
        for i in range(9):
            post = '\n' + woff(n + 1, 8 * 9216, NST2, 58) if i == 8 and n < NST2 - 1 else ''
            items.append((n, max(n - NSA2 + 2, OPT['sp2']) if n >= OPT['nsp'] else -9, act_text(1, n, i, 50) + post))
    ring2 = [n for n in range(NST2) if n not in reg_stages(1)]
    xfree = max(n for m, n in enumerate(ring2) if m % NSW2 == L_X1 // 16384) + 1
    for i in range(5):
        pre = f's_lshl_b32 s48, s62, 10\ns_add_u32 m0, s48, {L_X1 + 2048*i}\n' if i < 4 else \
              f's_mul_i32 s48, s62, {L_GB - L_X1 - 8192}\ns_add_u32 m0, s48, {L_X1 + 8192}\n'
        items.append((NST2, max(xfree, NST2 - NSA2 + 1), pre + f'buffer_load_dwordx4 v{xr_+i}, {WS}, 0 offen sc1 lds'))
    st = Stream(items)
    st.more(9 * OPT['a2pre'])
    assert OPT['nsp'] <= NSA2
    st.run(NST2 + 1, lambda i: OPT['a2la'] + 9 * (i + 1), last_bar=False, hooks=hooks, verify=verify, pre=prh)
    LT = k.lab()
    k(f's_branch {LT if OPT["hx"] else "L_end"}')
    tag(k, 'region -')
    k.label(LHW)
    k.fresh()

    def witems(g, stages, slot0=0, NSW=NSW, slots=None):
        NST, sd, mul, regs, lo = ((32, 40, 8 * 9216, da, 60), (NST2, 44, 64 * 4096, db, 58))[g]
        items = []
        for m, n in enumerate(stages):
            for i in range(8):
                pre = woff(n, mul, NST, lo) if i == 0 else ''
                rot = OPT['rotw'] & (1 << g)
                sl = slots[m] if slots else (m + slot0) % NSW
                if rot:
                    pre += f's_add_u32 m0, s{16+8*g+i}, {sl*16384}\n'
                else:
                    pre += f's_add_u32 m0, s68, {sl*16384 + 1024*i}\n' if i % 4 == 0 else ''
                items.append((n, stages[m - NSW] + 1 if m >= NSW else -9,
                              pre + f'buffer_load_dwordx4 v{regs+i}, s[{sd}:{sd+3}], s50 offen offset:{0 if rot else 1024*(i&3)} {OPT["fw2" if g else "fw1"].replace("_", " ")} lds'))
        return items

    def split(g):
        rs = reg_stages(g)
        return rs, [n for n in range((32, NST2)[g]) if n not in rs]
    w_addr(1, db, 58)
    rs2, ds2 = split(1)
    f1 = [it[2] for it in witems(1, rs2, slots=g1_rings()[3])]
    LN, LJ = k.lab(), k.lab()
    k(f's_cmp_ge_u32 s{sR}, 27\ns_cbranch_scc1 {LN}')
    w_addr(0, da, 60)
    tag(k, 'touch w1')
    tag(k, 'region w1')
    rs, ds = split(0)
    nx = len(rs) - 6
    nsw1 = g1_rings()[2]
    items = witems(0, ds, nx, nsw1)
    n1 = len(items)
    assert OPT['n6'] or (len(ds) + nx) % NSW == 2
    ne = OPT['ne']
    for x in range(ne):
        items += [(99, ds[len(ds) - nsw1 + x] + 1, it) for it in f1[8 * x:8 * x + 8]]
    st = Stream(items)
    s1 = Stream(witems(0, rs[:6]))
    for n in OPT['pw1']:
        s1.more(n)
        k('s_barrier')
    s1.more(999)
    k('s_barrier')
    bar(k, 0)
    if OPT['rf']:
        k('s_barrier')
        st.more(OPT['rf'])
    k('s_barrier')
    if nx:
        assert not OPT['rf']
        Stream(witems(0, rs[6:])).more(99)
        st.more(OPT['pa'])
        bar(k, st.n)
        st.more(4)
        k('s_barrier')
    def pf_early():
        n0 = 288 - 64 * OPT['pf8'] - 54 * OPT['pf4'] - 54 * OPT['pfa'] + OPT['n4x']
        w2_lane(k, xa, 14)
        k(f's_lshl_b32 s14, s{sR}, 1\ns_add_u32 s14, s14, s62\ns_mul_i32 s14, s14, {OPT["pfa"]}\ns_add_u32 s14, s14, {n0}')
        for x in range(OPT['pfa']):
            k(f's_add_u32 s48, s14, {x}\ns_lshl_b32 s48, s48, 14')
            k(f'buffer_load_dword v{xa+2+x}, v{xa}, s[44:47], s48 offen')
    if OPT['pfa'] and OPT['pfap'] == 0:
        pf_early()
    st.issue(OPT['f21'], -1)
    if OPT['pfa'] and OPT['pfap'] == 1:
        pf_early()
    q1 = spread(st.n, n1, 0 if st.n < 48 else 1, ds[-1] - OPT['wla'])
    if OPT['w1lead']:
        qs, cur = [], st.n
        for i in range(32):
            cur = max(cur, min(8 * sum(n <= i + OPT['w1lead'] for n in ds), cur + OPT['w1max'], n1))
            qs.append(cur)
        q1 = lambda i: qs[i]
    if OPT['asap']:
        n00 = st.n
        q1 = lambda i: min(n1, n00 + int(OPT['asap'] * (i + 1) / 10))
    st.run(32, lambda i: q1(i) + ([0] * 32 + OPT['neq'])[-32 + i], mk=6, pre=scalar_pf())
    if OPT['su']:
        k.raw('    s_waitcnt lgkmcnt(0)')
    assert st.n == len(items)
    k('s_barrier')
    k(f's_branch {LJ}')
    k.label(LN)
    k.fresh()
    k(f's_sub_u32 s56, s{sR}, 27\ns_lshl_b32 s56, s56, 1\ns_add_u32 s56, s56, s62\ns_add_u32 s56, s56, {OPT["pf2"]}')
    k('s_barrier')
    pf_loop(k, 1, 56, 10, OPT['pf2'] + 10 * OPT['pf3'], xa, 40)
    k('s_barrier\n' * 5)
    for it in f1[:8 * ne]:
        k(it)
    k.label(LJ)
    k.fresh()
    st = Stream(witems(1, ds2, 0, NSW2))
    for it in f1[8 * ne:]:
        k(it)
    tag(k, 'touch w2')
    tag(k, 'region w2')
    bar(k, 0)
    if OPT['rf2']:
        k('s_barrier')
        st.more(OPT['rf2'])
    k('s_barrier')
    st.issue(OPT['f22'], -1)
    wpre, wver = {}, {}
    if OPT['xc'] in (0, 3):
        on, tg, vrd, vpr, vds = 100, 104, 108, 109, 110
        k(f'''v_mov_b64 {P(on)}, -1
        v_mov_b64 {P(on+2)}, -1
        v_mov_b32 v{tg}, v{vTAG}
        v_mov_b32 v{tg+1}, v{vTAG}
        v_mov_b32 v{tg+2}, v{vTAG}
        v_mov_b32 v{tg+3}, v{vTAG}
        v_lshlrev_b32 v{vds}, 4, v0
        s_lshl_b32 s48, s2, 7
        s_add_u32 s48, s48, {WS_XRDY}
        v_add_u32 v{vrd}, s48, v{vds}
        s_cmp_eq_u32 s62, 0
        s_cselect_b32 s48, 8, 0
        v_cmp_gt_u32 vcc, s48, v0
        v_mov_b32 v{vpr}, {OOB}
        v_cndmask_b32 v{vrd}, v{vpr}, v{vrd}, vcc
        v_min_u32 v{vpr}, 2, v0
        v_add_u32 v{vpr}, 1, v{vpr}
        v_lshlrev_b32 v{vpr}, 1, v{vpr}
        v_xor_b32 v{vpr}, s2, v{vpr}
        v_lshlrev_b32 v{vpr}, 7, v{vpr}
        v_add_u32 v{vpr}, {WS_XRDY}, v{vpr}
        v_lshlrev_b32 v{tg+4+3}, 4, v0
        s_mul_i32 s56, s2, {XB}
        s_lshl_b32 s48, s62, 10
        s_add_u32 s56, s56, s48
        s_add_u32 s56, s56, {WS_XCH}''')
        c0, cn = OPT['xclr']
        cseq = []

        def clr(i):
            def f():
                n3 = OPT['xc3']
                for x in range(n3 + (i - c0) * (14 - n3) // cn, n3 + (i - c0 + 1) * (14 - n3) // cn):
                    if x < 13:
                        k(f's_add_u32 s57, s56, {2048*x}')
                    else:
                        k(f's_mul_i32 s57, s62, -2048\ns_add_u32 s57, s57, {2048*13}\ns_add_u32 s57, s57, s56')
                    k(f'buffer_store_dwordx4 {Q(on)}, v{tg+7}, {WS}, s57 offen sc1')
                cseq[:] = [k.stats['vmem']]
            return f
        for i in range(c0, c0 + cn):
            if OPT['xc'] == 0:
                wpre[i] = clr(i)
        r0, r1 = OPT['xrdy']
        assert r0 > c0 + cn - 1 and r1 > r0 and r1 < NST2
        if OPT['xc'] == 0:
            wver[r0] = lambda: k.wait(k.stats['vmem'] - cseq[0])
        wpre[r0] = lambda: k(f'buffer_store_dwordx4 {Q(tg)}, v{vrd}, {WS}, 0 offen sc1')
        assert r1 - OPT['xlead'] > r0
        wpre[r1 - OPT['xlead']], chk = late_check([f'buffer_load_dword v{vds}, v{vpr}, {WS}, 0 offen sc1'], [vds], 12)
        wver[r1] = chk
    q2 = spread(st.n, len(st.items), 0 if st.n < 8 * NSW2 else 1, ds2[-1] - OPT['wla2'])
    if OPT['wlead']:
        qs, cur = [], st.n
        for i in range(NST2):
            cur = max(cur, min(8 * sum(n <= i + OPT['wlead'] for n in ds2), cur + OPT['wmax']))
            qs.append(cur)
        q2 = lambda i: qs[i]
    st.run(NST2, q2, mk=8, verify=wver, pre=wpre)
    if not OPT['hx']:
        return
    k('s_barrier')
    k.label(LT)
    k.fresh()
    ha, hr = 100, 104
    k(f'''v_lshlrev_b32 v{ha}, 4, v0
    v_lshlrev_b32 v{ha+1}, 2, v0
    s_mul_i32 s48, s{sW}, {XW}
    s_mul_i32 s60, s2, {XB}
    s_add_u32 s60, s60, s48
    s_add_u32 s60, s60, {WS_XCH + XM}
    s_add_u32 s61, s60, {XM}
    s_mul_i32 s63, s{sW}, {2*XW}
    s_add_u32 s63, s63, {L_S}
    v_add_u32 v{ha+2}, s63, v{ha}
    v_add_u32 v{ha+3}, s63, v{ha+1}''')
    xmark(k, 'x', 1)
    if OPT['hsl']:
        k(f's_sleep {OPT["hsl"]}')
    if OPT['xcue']:
        k(f'''s_lshl_b32 s48, s{sW}, 7
        s_mul_i32 s62, s2, 1536
        s_add_u32 s62, s62, s48
        s_add_u32 s62, s62, {WS_XCUE + 512}
        v_and_b32 v{hr+8}, 1, v0
        v_lshlrev_b32 v{hr+8}, 9, v{hr+8}''')
        poll(k, [f'buffer_load_dword v{hr+9}, v{hr+8}, {WS}, s62 offen sc1'], check_tags(k, [hr + 9]), sleep=OPT['xsl'])
        xmark(k, 'x', 2)
    if OPT['tfirst']:
        poll(k, [f'buffer_load_dword v{hr+8+x}, v{ha+1}, {WS}, s{60+x} offen offset:2048 sc1' for x in (1, 0)],
             check_sent(k, [hr + 8, hr + 9, hr + 9], hr + 6), sleep=OPT['tsl'])
        xmark(k, 'x', 2)
    loads = []
    for x in (1, 0):
        loads.append(f's_add_u32 m0, s63, {XW*x}\n' + f'buffer_load_dwordx4 v{ha}, {WS}, s{60+x} offen sc1 lds')
        loads.append(f'buffer_load_dwordx4 v{ha}, {WS}, s{60+x} offen offset:1024 sc1 lds')
        loads.append(f'buffer_load_dword v{ha+1}, {WS}, s{60+x} offen offset:2048 sc1 lds')

    def hchk():
        for x in range(2):
            k(f'ds_read_b32 v{hr+3*x}, v{ha+2} offset:{XW*x}\nds_read_b32 v{hr+3*x+1}, v{ha+2} offset:{XW*x+1024}\nds_read_b32 v{hr+3*x+2}, v{ha+3} offset:{XW*x+2048}')
        check_sent(k, [hr + i for i in range(6)], hr + 6)()
    poll(k, loads, hchk, sleep=OPT['hsl2'])
    xmark(k, 'x', 3)
    k('s_barrier')


def build():
    geometry()
    k = K('m')
    k(f's_cmp_ge_u32 s2, 256\ns_cbranch_scc1 L_exit')
    if OPT['stamp']:
        k('s_memrealtime s[70:71]')
        for i in range(72, 96):
            k(f's_mov_b32 s{i}, 0')
    k(f'''s_load_dwordx16 s[8:23], s[0:1], 0
    s_load_dwordx8 s[24:31], s[0:1], 64
    s_load_dwordx2 s[32:33], s[0:1], 96''')
    if OPT['codepf']:
        k(f'''v_readfirstlane_b32 s4, v0
        s_lshr_b32 s5, s2, 3
        s_lshr_b32 s4, s4, 6
        s_cmp_lg_u32 s4, s5
        s_cbranch_scc1 L_nopf
        s_getpc_b64 s[52:53]
        L_pc:
        s_sub_u32 s52, s52, L_pc-{NAME}_kernel
        s_subb_u32 s53, s53, 0
        s_mov_b32 s54, L_code_end-{NAME}_kernel
        s_mov_b32 s55, 0x20000
        v_lshlrev_b32 v1, 7, v0''')
        k.raw('    buffer_load_dword v255, v1, s[52:55], 0 offen')
        k('v_add_u32 v1, 65536, v1')
        k.raw('    buffer_load_dword v255, v1, s[52:55], 0 offen')
        k.maxreg['v'] = 255
        k.label('L_nopf')
    k(f'''v_lshrrev_b32 v1, 6, v0
    v_and_b32 v0, 63, v0
    v_readfirstlane_b32 s{sWAVE}, v1
    v_and_b32 v1, 15, v0
    v_lshrrev_b32 v2, 4, v0
    s_and_b32 s{sJ}, s2, 7
    s_lshr_b32 s{sR}, s2, 3
    s_lshl_b32 s{sS2}, s{sJ}, 5
    s_add_u32 s{sS2}, s{sS2}, s{sR}
    s_mov_b32 s{sBUD}, 100000
    s_and_b32 s{sW}, s{sWAVE}, 3''')
    k(f's_cmp_ge_u32 s{sWAVE}, 4')
    k('s_cbranch_scc0 L_C' if OPT['ufirst'] else 's_cbranch_scc1 L_H')
    n0 = len(k.out)
    k.label('L_C')
    gen_C(k)
    tag(k, 'region -')
    n1 = len(k.out)
    k.label('L_H')
    k.fresh()
    gen_H(k)
    n2 = k.out.index('; @cut')
    if OPT['ufirst']:
        k.out = k.out[:n0] + k.out[n1:n2] + k.out[n0:n1] + k.out[n2 + 1:]
    else:
        del k.out[n2]
    k.label('L_end')
    if OPT['stamp']:
        k.fresh()
        k('s_memrealtime s[94:95]')
        k.wait(0, 0)
        k('s_memrealtime s[96:97]')
        k(f's_add_u32 s40, s{pWS}, {64*MB}\ns_addc_u32 s41, s{pWS+1}, 0\ns_mov_b32 s42, {1*MB}\ns_mov_b32 s43, 0x20000')
        k(f's_lshl_b32 s48, s2, 3\ns_add_u32 s48, s48, s{sWAVE}\ns_lshl_b32 s48, s48, 6\nv_mov_b32 v3, 0')
        for i in range(14):
            k(f'v_mov_b32 v{4+i}, s{70+2*i}')
        k(f'v_mov_b32 v18, s{sBUD}\ns_getreg_b32 s49, hwreg(HW_REG_XCC_ID)\ns_getreg_b32 s50, hwreg(HW_REG_HW_ID)\ns_and_b32 s49, s49, 15\ns_lshl_b32 s50, s50, 4\ns_or_b32 s49, s49, s50\nv_mov_b32 v19, s49')
        for i in range(4):
            k(f'buffer_store_dwordx4 {Q(4+4*i)}, v3, s[40:43], s48 offen offset:{16*i}')
        if OPT.get('trace'):
            k(f's_lshl_b32 s48, s48, 3\ns_add_u32 s48, s48, {MB//2}\ns_mov_b32 s42, {2*MB}\nv_lshlrev_b32 v3, 2, v0')
            k('buffer_store_dword v200, v3, s[40:43], s48 offen\nbuffer_store_dword v201, v3, s[40:43], s48 offen offset:256')
    k.label('L_exit')
    k('s_endpgm')
    k.label('L_code_end')
    if OPT['touch']:
        k.out, ch = page_touch([f'{NAME}_kernel:'] + k.out)
        k.out = k.out[1:]
        print(ch, file=sys.stderr)
    ref = open(f'/code/{NAME}.s.ref').read().split('\n')
    hdr = [l for l in ref if l.startswith(';') and '@launch' not in l]
    out = '\n'.join(hdr) + '\n'
    if OPT.get('aslist'):
        out += f'; @launch kernel={NAME}_kernel grid=(256,1,1) block=(512,1,1) lds=163840\n'
    else:
        out += '; @launch grid=(256,1,1) block=(512,1,1) lds=163840\n'
    out += '.amdgcn_target "amdgcn-amd-amdhsa--gfx950"\n.text\n'
    out += f'.globl {NAME}_kernel\n.p2align 8\n.type {NAME}_kernel,@function\n{NAME}_kernel:\n' + k.text()
    out += '.section .rodata,"a"\n' + descriptor(NAME + '_kernel', k.maxreg['v'] + 1, 0, k.maxreg['s'] + 1)
    print('vgpr', k.maxreg['v'] + 1, 'sgpr', k.maxreg['s'] + 1, k.stats, file=sys.stderr)
    return out


if __name__ == '__main__':
    path = f'/code/{NAME}.s'
    for a in sys.argv[1:]:
        if '=' in a:
            n, v = a.split('=')
            OPT[n] = int(v) if v.lstrip('-').isdigit() else ([int(x) for x in v.split(',')] if ',' in v else v)
        else:
            path = a
    if OPT.get('wsh'):
        WS_H2 += OPT['wsh'] * MB
        WS_U += OPT['wsh'] * MB
        WS_SIZE = 64 * MB
    open(path, 'w').write(build())
```
